```python
import torch

def _softmax(x, axis=-1):
    return torch.softmax(x, dim=axis)
def _gelu(x):
    return torch.nn.functional.gelu(x, approximate="tanh")
def _silu(x):
    return torch.nn.functional.silu(x)
def _sigmoid(x):
    return torch.sigmoid(x)
def _layernorm(x, axis=-1, eps=1e-5):
    m = x.mean(dim=axis, keepdim=True)
    v = x.var(dim=axis, keepdim=True, unbiased=False)
    return (x - m) / torch.sqrt(v + eps)
def _scatter_add(tgt, idx, src, axis=0):
    return tgt.clone().index_add_(axis, idx, src)
def _segment_sum(src, seg, n):
    out = torch.zeros((n,) + src.shape[1:], dtype=src.dtype)
    return out.index_add_(0, seg, src)
def _pad(x, pw):
    flat = tuple(v for pair in reversed(pw) for v in pair)
    return torch.nn.functional.pad(x, flat)

kernel_name = 'recurrent_scan__linear_kernel_hedgehog__dense_activation_silu__prompt'

def setup_inputs():

    _w = (lambda a: (lambda t: t.to(torch.bfloat16) if t.is_floating_point() else t)(torch.as_tensor(a)))
    def _A_setup():
        B, S, D, H = 1, 2048, 448, 16
        Dh = D // H
        return {
            "x": _w((lambda *s: torch.randn(*s, dtype=torch.bfloat16) * 0.05)(B, S, D)),
            "wqkv": _w((lambda *s: torch.randn(*s, dtype=torch.bfloat16) * 0.4)(D, 3 * D)),
            "w_phi": _w((lambda *s: torch.randn(*s, dtype=torch.bfloat16) * 0.4)(H, Dh, Dh) * (Dh ** -0.5)),
            "wo": _w((lambda *s: torch.randn(*s, dtype=torch.bfloat16) * 0.2)(D, D)),
        }
    _A_in = _A_setup()

    def _B_setup():
        B, S, D, F = 1, 2048, 448, 1792
        return {
            "x": _w((lambda *s: torch.randn(*s, dtype=torch.bfloat16) * 0.05)(B, S, D)),
            "w1": _w((lambda *s: torch.randn(*s, dtype=torch.bfloat16) * 0.4)(D, F) * (D ** -0.5)),
            "w2": _w((lambda *s: torch.randn(*s, dtype=torch.bfloat16) * 0.1)(F, D) * (F ** -0.5)),
        }
    _B_in = _B_setup()

    return {
        "A_x": _A_in["x"],
        "A_wqkv": _A_in["wqkv"],
        "A_w_phi": _A_in["w_phi"],
        "A_wo": _A_in["wo"],
        "B_x": _B_in["x"],
        "B_w1": _B_in["w1"],
        "B_w2": _B_in["w2"],
    }

def reference(A_x, A_wqkv, A_w_phi, A_wo, B_x, B_w1, B_w2):
    def _A_ref(x, wqkv, w_phi, wo):
        B, S, D = x.shape
        H = 16; Dh = D // H
        qkv = (lambda x, *d: x.permute(*d))((x @ wqkv).reshape(B, S, 3, H, Dh), 2, 0, 3, 1, 4)
        q, k, v = qkv[0], qkv[1], qkv[2]
        pq = torch.einsum("bhsd,hdf->bhsf", q, w_phi)
        pk = torch.einsum("bhsd,hdf->bhsf", k, w_phi)
        phi_q = torch.concatenate([_softmax(pq, axis=-1), _softmax(-pq, axis=-1)], axis=-1)
        phi_k = torch.concatenate([_softmax(pk, axis=-1), _softmax(-pk, axis=-1)], axis=-1)
        kv = torch.einsum("bhsf,bhsd->bhfd", phi_k, v)
        z  = torch.einsum("bhsf->bhf", phi_k)
        num = torch.einsum("bhqf,bhfd->bhqd", phi_q, kv)
        den = torch.einsum("bhqf,bhf->bhq", phi_q, z)[..., None] + 1e-6
        o = num / den
        return (lambda x, *d: x.permute(*d))(o, 0, 2, 1, 3).reshape(B, S, D) @ wo

    def _B_ref(x, w1, w2):
        h = torch.einsum("bsd,df->bsf", x, w1)
        h = _silu(h)
        out = torch.einsum("bsf,fd->bsd", h, w2)
        return out

    x = A_x
    xn = _layernorm(x, axis=-1)
    s = _A_ref(xn, A_wqkv, A_w_phi, A_wo)
    g = _silu(_B_ref(xn, B_w1, B_w2))
    return x + s * g
```

```python
import re

def _regs(tok):
    tok = tok.strip()
    tok = tok.lstrip('-')
    m = re.match(r'^abs\((.*)\)$', tok)
    if m: tok = m.group(1)
    m = re.match(r'^\|(.*)\|$', tok)
    if m: tok = m.group(1)
    m = re.match(r'^([vsa])(\d+)$', tok)
    if m: return [(m.group(1), int(m.group(2)))]
    m = re.match(r'^([vsa])\[(\d+):(\d+)\]$', tok)
    if m: return [(m.group(1), i) for i in range(int(m.group(2)), int(m.group(3)) + 1)]
    if tok in ('vcc', 'vcc_lo', 'vcc_hi'): return [('vcc', 0)]
    if tok in ('exec', 'exec_lo', 'exec_hi'): return [('exec', 0)]
    if tok == 'm0': return [('m0', 0)]
    return []

TRANS = ('v_exp_f32', 'v_log_f32', 'v_rcp_f32', 'v_rsq_f32', 'v_sqrt_f32', 'v_sin_f32', 'v_cos_f32')

class Ins:
    __slots__ = ('text', 'op', 'rd', 'wr', 'kind', 'tok', 'srcc', 'ab', 'note', 'cost')
    def __init__(self, text, tok=None):
        self.text = text.strip(); self.tok = tok; self.note = None
        t = self.text.split(';')[0].strip()
        self.rd = set(); self.wr = set(); self.srcc = set(); self.ab = set()
        if t.endswith(':') or t.startswith('.') or not t:
            self.op = t; self.kind = 'label' if t.endswith(':') else 'dir'; self.cost = 0; return
        parts = t.split(None, 1)
        op = parts[0]; self.op = op
        rest = parts[1] if len(parts) > 1 else ''
        ops = [o.strip() for o in rest.split(',')] if rest else []
        mods = ''
        if ops:
            joined = rest
            mm = re.search(r'\s(offen|idxen|offset|offset0|offset1|sc0|sc1|nt|lds|op_sel|op_sel_hi|neg_lo|neg_hi|row_|quad_perm|dst_sel|bitop3|clamp|mul:|div:|cbsz|abid|blgp|glc|wave_|bound_ctrl|row_mask)', ' ' + joined)
            if mm:
                cut = mm.start()
                mods = joined[cut:]
                joined = joined[:cut]
            ops = [o.strip() for o in joined.split(',') if o.strip()]
        R = [_regs(o) for o in ops]
        base = op.replace('_e32', '').replace('_e64', '')
        self.cost = 1
        def rdall(lst):
            for r in lst: self.rd.update(r)
        if op.startswith('v_mfma'):
            self.kind = 'mfma'; self.wr.update(R[0]); rdall(R[1:]); self.srcc = set(R[3]); self.ab = set(R[1]) | set(R[2]); self.rd.add(('exec', 0))
        elif op.startswith('v_cmp'):
            self.kind = 'valu'; self.wr.update(R[0]); rdall(R[1:]); self.rd.add(('exec', 0))
            if op.startswith('v_cmpx'): self.wr.add(('exec', 0))
        elif op.startswith('v_readfirstlane') or op.startswith('v_readlane'):
            self.kind = 'valu'; self.wr.update(R[0]); rdall(R[1:])
        elif op.startswith('v_permlane') and 'swap' in op:
            self.kind = 'valu'; self.wr.update(R[0]); self.wr.update(R[1]); rdall(R)
        elif op.startswith('v_'):
            self.kind = 'valu'
            if base in TRANS: self.kind = 'trans'; self.cost = 2
            if base.startswith('v_dot'): self.kind = 'dot'
            if R: self.wr.update(R[0])
            if base in ('v_add_co_u32', 'v_sub_co_u32', 'v_addc_co_u32', 'v_subb_co_u32', 'v_mad_u64_u32'):
                self.wr.update(R[1]); rdall(R[2:])
            else:
                rdall(R[1:])
            if base in ('v_fmac_f32', 'v_dot2c_f32_bf16', 'v_writelane_b32', 'v_pk_fmac_f16'): self.rd.update(R[0])
            self.rd.add(('exec', 0))
        elif op.startswith('ds_read') or op.startswith('ds_bpermute') or op.startswith('ds_swizzle'):
            self.kind = 'ds'; self.wr.update(R[0]); rdall(R[1:])
        elif op.startswith('ds_write') or op.startswith('ds_add'):
            self.kind = 'ds'; rdall(R)
        elif op.startswith('buffer_load') or op.startswith('global_load'):
            if re.search(r'\blds\b', mods) or 'load_lds' in op:
                self.kind = 'dma'; rdall(R); self.rd.add(('m0', 0))
            else:
                self.kind = 'vload'; self.wr.update(R[0]); rdall(R[1:])
        elif op.startswith('buffer_store') or op.startswith('global_store') or op.startswith('buffer_atomic') or op.startswith('global_atomic'):
            self.kind = 'vstore'; rdall(R)
            if op.startswith('buffer_store'): self.srcc = set(R[0])
            elif op.startswith('global_store'): self.srcc = set(R[1])
        elif op.startswith('s_load') or op.startswith('s_memrealtime') or op.startswith('s_memtime'):
            self.kind = 'smem'; self.wr.update(R[0]); rdall(R[1:])
        elif op == 's_waitcnt': self.kind = 'wait'
        elif op == 's_barrier': self.kind = 'barrier'
        elif op == 's_nop': self.kind = 'nop'; self.cost = int(rest.strip(), 0) + 1
        elif op.startswith('s_cbranch') or op == 's_branch' or op == 's_endpgm': self.kind = 'branch'
        elif op.startswith('s_cmp') or op.startswith('s_bitcmp'): self.kind = 'salu'; rdall(R)
        elif op in ('s_sleep', 's_setprio'): self.kind = 'salu'
        elif op.startswith('s_'):
            self.kind = 'salu'; self.wr.update(R[0]); rdall(R[1:])
            if 'saveexec' in op: self.wr.add(('exec', 0)); self.rd.add(('exec', 0))
        elif op == 'WAIT':
            self.kind = 'pwait'
        else:
            raise ValueError('unknown op ' + op)
    def __repr__(self): return self.text

class Stream:
    def __init__(self): self.l = []
    def __call__(self, text, tok=None):
        for line in text.split('\n'):
            if line.strip():
                self.l.append(Ins(line, tok))
        return self
    def wait(self, *toks):
        i = Ins('WAIT'); i.tok = set(toks); self.l.append(i)
    def ext(self, lst): self.l.extend(lst)

def autowait(ins):
    out = []
    vm = []
    lg = []
    smem_pending = False; smem_regs = set()
    def need(q, pred):
        last = -1
        for i, e in enumerate(q):
            if pred(e): last = i
        return last
    for I in ins:
        if I.kind == 'wait':
            m = re.search(r'vmcnt\((\d+)\)', I.text)
            if m:
                n = int(m.group(1)); vm[:] = vm[len(vm) - n:] if n < len(vm) and n > 0 else ([] if n == 0 else vm)
            m = re.search(r'lgkmcnt\((\d+)\)', I.text)
            if m:
                n = int(m.group(1)); lg[:] = lg[len(lg) - n:] if n < len(lg) and n > 0 else ([] if n == 0 else lg)
                if n == 0: smem_pending = False; smem_regs = set()
            out.append(I); continue
        touch = (I.rd | I.wr)
        if I.kind == 'pwait':
            iv = need(vm, lambda e: e[1] in I.tok); il = need(lg, lambda e: e[1] in I.tok)
        else:
            iv = need(vm, lambda e: e[0] & touch); il = need(lg, lambda e: e[0] & touch)
        w = []
        if iv >= 0:
            n = min(len(vm) - 1 - iv, 63); w.append(f'vmcnt({n})'); vm[:] = vm[len(vm) - n:] if n > 0 else []
        if smem_pending and (touch & smem_regs):
            w.append('lgkmcnt(0)'); lg[:] = []; smem_pending = False; smem_regs = set()
        elif il >= 0:
            n = min(len(lg) - 1 - il, 15)
            if smem_pending: n = 0; smem_pending = False; smem_regs = set()
            w.append(f'lgkmcnt({n})'); lg[:] = lg[len(lg) - n:] if n > 0 else []
        if w: out.append(Ins('s_waitcnt ' + ' '.join(w)))
        if I.kind == 'pwait': continue
        if I.kind == 'vload': vm.append((set(I.wr), I.tok))
        elif I.kind in ('dma', 'vstore'): vm.append((set(), I.tok))
        elif I.kind == 'ds': lg.append((set(I.wr), I.tok))
        elif I.kind == 'smem': smem_pending = True; smem_regs |= I.wr
        assert len(vm) <= 63, "too many outstanding vmem: %s" % I.text
        out.append(I)
    return out

def hazards(ins):
    out = []
    hist = []
    def dist_need(I):
        need = 0; d = 0
        isvalu = I.kind in ('valu', 'trans', 'dot')
        vr = {r for r in I.rd if r[0] == 'v'}; vw = {r for r in I.wr if r[0] == 'v'}
        sr = {r for r in I.rd if r[0] in ('s', 'vcc')}
        for P in reversed(hist):
            req = 0
            pv = P.kind in ('valu', 'trans', 'dot')
            pw = {r for r in P.wr if r[0] == 'v'}
            psw = {r for r in P.wr if r[0] in ('s', 'vcc')}
            if P.kind == 'mfma':
                passes = 8 if '32x32' in P.op else 4
                big = {8: 12, 4: 8}[passes]; ovl = {8: 10, 4: 6}[passes]; war = {8: 7, 4: 3}[passes]
                if I.kind == 'mfma':
                    if pw & I.ab: req = max(req, big)
                    if pw & I.srcc and not (pw == I.srcc and P.op == I.op): req = max(req, ovl)
                    if pw & vw and not (pw == vw) and not (pw & I.srcc): req = max(req, big)
                    if pw & vw and pw == vw and not (pw & I.srcc): req = max(req, big)
                else:
                    if pw & (vr | vw): req = max(req, big)
                    if isvalu and (P.srcc & vw): req = max(req, war)
                    if I.kind in ('ds', 'vload') and (P.srcc & vw): req = max(req, war)
            if pv:
                if I.kind == 'mfma' and (pw & vr): req = max(req, 2)
                if I.op.startswith('v_permlane') and (pw & vr): req = max(req, 2)
                if ('dpp' in I.op or 'row_' in I.text or 'quad_perm' in I.text) and (pw & vr): req = max(req, 2)
                if (I.op.startswith('v_readfirstlane') or I.op.startswith('v_readlane')) and (pw & vr): req = max(req, 1)
                if P.kind == 'trans' and isvalu and I.kind != 'trans' and (pw & vr): req = max(req, 1)
                if P.kind == 'trans' and I.kind == 'trans' and (pw & vr): req = max(req, 1)
                if P.kind == 'dot':
                    if pw & (vr | vw):
                        same = (I.op.replace('_e32', '') == P.op.replace('_e32', ''))
                        if same and I.op.startswith('v_dot2c') and (pw & vw) and not (pw & (vr - vw)): pass
                        else: req = max(req, 3)
                if 'sdwa' in P.op and isvalu and (pw & (vr | vw)): req = max(req, 1)
                if psw:
                    if isvalu and (psw & sr): req = max(req, 2)
                    if I.kind in ('vload', 'vstore', 'dma') and (psw & sr): req = max(req, 5)
                    if (I.op.startswith('v_readlane') or I.op.startswith('v_writelane')) and (psw & sr): req = max(req, 4)
                    if I.kind in ('salu', 'branch') and ((psw & sr) or ('vcc' in I.op and ('vcc', 0) in psw)): req = max(req, 1)
                if ('exec', 0) in P.wr:
                    if I.kind == 'mfma' or I.op.startswith('v_permlane') or I.op.startswith('v_read'): req = max(req, 4)
                    if 'dpp' in I.op: req = max(req, 5)
            if P.kind == 'salu' and ('m0', 0) in P.wr and I.kind == 'dma': req = max(req, 1)
            if P.kind == 'vstore' and ('x3' in P.op or 'x4' in P.op) and (P.srcc & vw):
                req = max(req, 2 if isvalu else 1)
            need = max(need, req - d)
            d += P.cost if P.kind == 'nop' else (0 if P.kind in ('label', 'dir') else 1)
            if d > 20: break
        return need
    for I in ins:
        n = dist_need(I)
        while n > 0:
            k = min(n, 16); N = Ins(f's_nop {k - 1}'); out.append(N); hist.append(N); n -= k
        out.append(I); hist.append(I)
        if len(hist) > 40: hist = hist[-40:]
    return out

def finalize(ins):
    return hazards(autowait(ins))

def text(ins):
    return '\n'.join(('' if i.kind in ('label', 'dir') else '    ') + i.text for i in ins) + '\n'

def interleave(groups, fill, weights=None):
    slots = sum(1 for g in groups for x in g if x is None)
    total = sum(i.cost for i in fill)
    out = []; k = 0; acc = 0.0; used = 0; si = 0
    for g in groups:
        for x in g:
            if x is None:
                si += 1
                target = total * si / slots
                while k < len(fill) and used + fill[k].cost / 2.0 <= target:
                    out.append(fill[k]); used += fill[k].cost; k += 1
            else:
                out.append(x)
    out.extend(fill[k:])
    return out
```

```python
import sys, struct
sys.path.insert(0, "dev")
from asmlib import *

NAME = "recurrent_scan__linear_kernel_hedgehog__dense_activation_silu__prompt_kernel"
K1 = 1024
WS_H   = 0
WS_PQ  = 64 * 112 * K1
WS_KVP = WS_PQ + 64 * 16 * 2048
WS_KVF = WS_KVP + 32 * 16 * 4096
WS_FH  = WS_KVF + 64 * K1
WS_FP  = WS_FH + 16 * 256
WS_FK  = WS_FP + 32 * 256
WS_TAG = WS_FK + 4 * 256
WS_DIAG = WS_TAG + 4096
WS_SIZE = WS_DIAG + 256 * 8 * 64
SLOT = 28 * K1
SPARE = 140 * K1
WPHI_L = 156 * K1
LDS_TOTAL = 160 * K1
F_REG = 24 * K1
A_BASE = 96 * K1
A_REG = 16 * K1
L2E = 1.4426950408889634
def f2u(x): return struct.unpack('<I', struct.pack('<f', x))[0]
def hx(x): return '0x%08x' % (x & 0xffffffff)

sWAVE, sXCD, sI, sRB, sROLE = 3, 4, 5, 6, 7
SRD_X, SRD_W, SRD_WS, SRD_W2, SRD_WO, SRD_OUT, SRD_DBG, SRD_WPHI = 8, 12, 16, 20, 24, 28, 32, 36
sTB, sCB, sIDX, sTAG, sPITCH = 40, 41, 42, 43, 44
sCOL = [45, 46, 47]
sCOLS = 48
sT0, sT1, sT2, sT3 = 50, 51, 52, 53
sHI = 54
sSAVE = 56
sCNT = 58
sW4 = 59
sFT = 60
sFS = 61
sL2E = 62
STAMP0 = 84
def srd(b): return f's[{b}:{b+3}]'
def v(a, n=1): return f'v{a}' if n == 1 else f'v[{a}:{a+n-1}]'

class Opt:
    diag = False
    pk = False

def stamp(S, k):
    if Opt.diag:
        S(f's_memrealtime s[{STAMP0+2*k}:{STAMP0+2*k+1}]\ns_waitcnt lgkmcnt(0)')

def diag_out(S):
    if not Opt.diag: return
    S('s_waitcnt vmcnt(0) lgkmcnt(0)')
    stamp(S, 7)
    for k in range(8): S(f'v_mov_b32 v{16+k}, s{STAMP0+2*k}')
    S(f's_lshl_b32 s{sT0}, s2, 3\ns_add_u32 s{sT0}, s{sT0}, s{sWAVE}\ns_lshl_b32 s{sT0}, s{sT0}, 6\ns_add_u32 s{sT0}, s{sT0}, {WS_DIAG}')
    S('v_mov_b32 v24, 0\ns_mov_b64 exec, 1')
    S(f'buffer_store_dwordx4 v[16:19], v24, {srd(SRD_WS)}, s{sT0} offen')
    S(f'buffer_store_dwordx4 v[20:23], v24, {srd(SRD_WS)}, s{sT0} offen offset:16')

def half_pieces(h):
    if h == 0: return [4 * SLOT + i * K1 for i in range(28)]
    if h == 1: return [SPARE + i * K1 for i in range(16)] + [i * K1 for i in range(12)]
    if h == 5: return [4 * SLOT + i * K1 for i in range(28)]
    return [(h - 1) * SLOT + i * K1 for i in range(28)]

vLANE, vL16 = 1, 2
def prologue(S):
    S(f's_cmp_ge_u32 s2, 256\ns_cbranch_scc1 L_end')
    stamp(S, 0)
    S('s_load_dwordx16 s[64:79], s[0:1], 0\ns_load_dwordx4 s[80:83], s[0:1], 64')
    S(f'v_lshrrev_b32 v3, 6, v0\nv_and_b32 v{vLANE}, 63, v0\nv_readfirstlane_b32 s{sWAVE}, v3\nv_lshlrev_b32 v{vL16}, 4, v{vLANE}')
    S(f's_and_b32 s{sXCD}, s2, 7\ns_lshr_b32 s{sI}, s2, 3')
    S(f's_lshr_b32 s{sRB}, s{sXCD}, 1\ns_lshl_b32 s{sRB}, s{sRB}, 2\ns_and_b32 s{sT0}, s{sI}, 3\ns_add_u32 s{sRB}, s{sRB}, s{sT0}')
    S(f's_lshl_b32 s{sTB}, s{sXCD}, 2\ns_add_u32 s{sTB}, s{sTB}, s{sT0}\ns_lshr_b32 s{sCB}, s{sI}, 2')
    S(f's_and_b32 s{sIDX}, s{sXCD}, 1\ns_lshl_b32 s{sIDX}, s{sIDX}, 2\ns_and_b32 s{sT0}, s{sCB}, 3\ns_add_u32 s{sIDX}, s{sIDX}, s{sT0}')
    S(f's_and_b32 s{sT0}, s{sCB}, 4\ns_lshl_b32 s{sT0}, s{sT0}, 1\ns_add_u32 s{sROLE}, s{sIDX}, s{sT0}')
    S(f's_and_b32 s{sW4}, s{sWAVE}, 3')
    S(f's_mov_b32 s{sHI}, 0\ns_mov_b32 s{sHI+1}, -1\ns_mov_b32 s{sL2E}, {hx(f2u(L2E))}')
    S(f's_mul_i32 s{sT0}, s{sIDX}, 448\ns_and_b32 s{sT1}, s{sIDX}, 1\ns_lshl_b32 s{sT2}, s{sT1}, 6\ns_add_u32 s{sT2}, s{sT2}, s{sT0}')
    S(f's_mul_i32 s{sT1}, s{sT1}, 384\ns_sub_u32 s{sCOLS}, s{sT0}, s{sT1}\ns_add_u32 s{sCOLS}, s{sCOLS}, 384')
    S(f's_mul_i32 s{sT0}, s{sIDX}, 112')
    S(f's_add_u32 s{sT1}, s{sT0}, 896\ns_add_u32 s{sT3}, s{sT0}, 1792')
    S(f's_cmp_ge_u32 s{sROLE}, 8')
    S(f's_cselect_b32 s{sCOL[0]}, s{sT1}, s{sT2}')
    S(f's_movk_i32 s{sPITCH}, 3584\ns_cselect_b32 s{sPITCH}, 2688, s{sPITCH}')
    S(f's_add_u32 s{sT2}, s{sT2}, 128\ns_cmp_ge_u32 s{sROLE}, 8\ns_cselect_b32 s{sCOL[1]}, s{sT3}, s{sT2}')
    S(f's_add_u32 s{sT2}, s{sT2}, 128\ns_cmp_ge_u32 s{sROLE}, 8\ns_cselect_b32 s{sCOL[2]}, s{sT0}, s{sT2}')
    S('s_waitcnt lgkmcnt(0)')
    def mk(b, lo, size):
        S(f's_mov_b32 s{b}, s{lo}\ns_mov_b32 s{b+1}, s{lo+1}\ns_mov_b32 s{b+2}, {size}\ns_mov_b32 s{b+3}, 0x20000')
    mk(SRD_X, 64, 2048 * 896)
    S(f's_cmp_ge_u32 s{sROLE}, 8')
    S(f's_cselect_b32 s{SRD_W}, s66, s74\ns_cselect_b32 s{SRD_W+1}, s67, s75\ns_mul_i32 s{SRD_W+2}, s{sPITCH}, 448\ns_mov_b32 s{SRD_W+3}, 0x20000')
    mk(SRD_WS, 82, WS_SIZE); mk(SRD_W2, 76, 1792 * 896); mk(SRD_WO, 70, 448 * 896)
    mk(SRD_OUT, 78, 2048 * 896); mk(SRD_DBG, 80, 256); mk(SRD_WPHI, 68, 16 * 1568)

def tag_prefetch(S, vt):
    S(f'v_mov_b32 v{vt+1}, 0\nbuffer_load_dword v{vt}, v{vt+1}, {srd(SRD_DBG)}, 0 offen sc1')
_lab = [0]
def newlab(p):
    _lab[0] += 1; return f'L_{p}{_lab[0]}'
def tag_get(S, vt):
    a, b = newlab('tg'), newlab('tg')
    S(f'v_readfirstlane_b32 s{sTAG}, v{vt}')
    S(f's_mov_b32 s{sCNT}, 0\ns_cmp_lg_u32 s{sTAG}, 0\ns_cbranch_scc1 {b}')
    S(f'{a}:')
    S.l.append(RAW(f'buffer_load_dword v{vt}, v{vt+1}, {srd(SRD_DBG)}, 0 offen sc1'))
    S.l.append(RAW('s_waitcnt vmcnt(0)'))
    S.l.append(RAW(f'v_readfirstlane_b32 s{sTAG}, v{vt}'))
    S(f's_add_u32 s{sCNT}, s{sCNT}, 1\ns_cmp_gt_u32 s{sCNT}, 0x20000\ns_cbranch_scc1 {b}\ns_sleep 1\ns_cmp_eq_u32 s{sTAG}, 0\ns_cbranch_scc1 {a}')
    S(f'{b}:')
def RAW(t):
    i = Ins(t); i.kind = 'salu'; i.rd = set(); i.wr = set(); return i

def poll(S, voff, soff, nl, vt):
    a, b = newlab('pl'), newlab('pl')
    S(f's_mov_b64 exec, {hex((1 << nl) - 1)}\ns_mov_b32 s{sCNT}, 0')
    S(f'{a}:')
    S(f'buffer_load_dword v{vt}, v{voff}, {srd(SRD_WS)}, s{soff} offen sc1')
    S('s_waitcnt vmcnt(0)')
    S(f'v_cmp_ne_u32 vcc, s{sTAG}, v{vt}')
    S(f's_add_u32 s{sCNT}, s{sCNT}, 1\ns_cbranch_vccz {b}\ns_cmp_gt_u32 s{sCNT}, 0x20000\ns_cbranch_scc1 {b}\ns_sleep 1\ns_branch {a}')
    S(f'{b}:')
    S('s_mov_b64 exec, -1')

def flag_store(S, soff, vt):
    S(f'v_mov_b32 v{vt}, s{sTAG}\nv_mov_b32 v{vt+1}, 0\ns_mov_b64 exec, 1')
    S(f'buffer_store_dword v{vt}, v{vt+1}, {srd(SRD_WS)}, s{soff} offen sc1')
    S('s_mov_b64 exec, -1')

X0 = 16; ACC = [[128, 144], [160, 176]]; AF = 192; WPHI = 216; T = 232; U = 240; TT = 248
vVA = [3, 4]; vWA = [5, 6]; vVS = 7; vR, vRM, vNRL, vSD, vMK, vNM = 8, 9, 10, 11, 12, 13; vTAG = 14

def lane_consts_tr(S, dst, tmp, cstride_sreg, rowmap):
    t0, t1, t2 = tmp, tmp + 1, tmp + 2
    S(f'v_bfe_u32 v{t0}, v{vLANE}, 2, 2')
    S(f'v_lshrrev_b32 v{t1}, 5, v{vLANE}')
    S(f'v_lshlrev_b32 v{t1}, {10 if rowmap == "A" else 9}, v{t1}\nv_lshl_add_u32 v{t1}, v{t0}, 7, v{t1}')
    S(f'v_bfe_u32 v{t0}, v{vLANE}, 3, 1\nv_lshlrev_b32 v{t0}, 6, v{t0}')
    S(f'v_bfe_u32 v{t2}, v{vLANE}, 4, 1\nv_lshlrev_b32 v{t2}, 5, v{t2}\nv_and_b32 v{dst[0]}, 3, v{vLANE}\nv_lshl_add_u32 v{t2}, v{dst[0]}, 3, v{t2}')
    S(f'v_xor_b32 v{dst[0]}, v{t2}, v{t0}\nv_add_u32 v{dst[0]}, v{dst[0]}, v{t1}')
    S(f'v_add_u32 v{t2}, {cstride_sreg}, v{t2}\nv_xor_b32 v{dst[1]}, v{t2}, v{t0}\nv_add_u32 v{dst[1]}, v{dst[1]}, v{t1}')

def c_load_x(S):
    a, b = T, T + 1
    S(f'v_lshrrev_b32 v{T+2}, 3, v{vLANE}\nv_mul_u32_u24 v{a}, 896, v{T+2}')
    S(f'v_lshrrev_b32 v{T+2}, 4, v{vLANE}\nv_and_b32 v{T+3}, 7, v{vLANE}\nv_xor_b32 v{T+2}, v{T+2}, v{T+3}\nv_lshl_add_u32 v{a}, v{T+2}, 4, v{a}\nv_xor_b32 v{b}, 64, v{a}')
    S(f's_lshl_b32 s{sT0}, s{sRB}, 2\ns_add_u32 s{sT0}, s{sT0}, s{sWAVE}\ns_mul_i32 s{sT0}, s{sT0}, {32*896}')
    S(f's_mul_i32 s{sT1}, s{sWAVE}, {SLOT}')
    for lc in range(7):
        for g in range(4):
            S(f's_add_u32 m0, s{sT1}, {lc*4096 + g*1024}\ns_add_u32 s{sT2}, s{sT0}, {g*8*896 + lc*128}')
            S(f'buffer_load_dwordx4 v{a if g % 2 == 0 else b}, {srd(SRD_X)}, s{sT2} offen lds', tok=('x', lc))
    xa = T + 4
    S(f'v_and_b32 v{T+2}, 31, v{vLANE}\nv_bfe_u32 v{T+3}, v{vLANE}, 1, 3\nv_lshrrev_b32 v{xa}, 5, v{vLANE}\nv_xor_b32 v{T+3}, v{T+3}, v{xa}')
    S(f'v_lshlrev_b32 v{T+3}, 4, v{T+3}\nv_lshl_add_u32 v{xa}, v{T+2}, 7, v{T+3}\nv_add_u32 v{xa}, s{sT1}, v{xa}')
    for q in range(1, 4): S(f'v_xor_b32 v{xa+q}, {q*32}, v{xa}')
    sA, sB, qA, qB, one = U, U + 1, U + 2, U + 3, U + 4
    S(f'v_mov_b32 v{sA}, 0\nv_mov_b32 v{sB}, 0\nv_mov_b32 v{qA}, 0\nv_mov_b32 v{qB}, 0\nv_mov_b32 v{one}, 0x3f803f80')
    def stats(lc):
        for q in range(4):
            for j in range(4):
                r = X0 + (lc * 4 + q) * 4 + j
                S(f'v_dot2c_f32_bf16 v{sA + (j & 1)}, v{r}, v{one}\nv_dot2c_f32_bf16 v{qA + (j & 1)}, v{r}, v{r}')
    for lc in range(7):
        S.wait(('x', lc))
        for q in range(4):
            S(f'ds_read_b128 {v(X0 + (lc*4+q)*4, 4)}, v{xa+q} offset:{lc*4096}')
        if lc > 0: stats(lc - 1)
    S('s_waitcnt lgkmcnt(0)\ns_barrier')
    stamp(S, 1)
    stats(6)
    t = U + 5
    S(f'v_add_f32 v{sA}, v{sA}, v{sB}\nv_add_f32 v{qA}, v{qA}, v{qB}\nv_mov_b32 v{sB}, v{sA}\nv_mov_b32 v{qB}, v{qA}')
    S(f'v_permlane32_swap_b32 v{sA}, v{sB}\nv_permlane32_swap_b32 v{qA}, v{qB}')
    S(f'v_add_f32 v{sA}, v{sA}, v{sB}\nv_add_f32 v{qA}, v{qA}, v{qB}')
    inv = hx(f2u(1.0 / 448))
    S(f'v_mul_f32 v{sA}, {inv}, v{sA}\nv_mul_f32 v{qA}, {inv}, v{qA}')
    S(f'v_fma_f32 v{qA}, -v{sA}, v{sA}, v{qA}\nv_max_f32 v{qA}, 0, v{qA}')
    S(f'v_cvt_pk_bf16_f32 v{t}, v{sA}, v{qA}')
    S(f'v_lshlrev_b32 v{vNM}, 16, v{t}\nv_xor_b32 v{vNM}, 0x80000000, v{vNM}')
    S(f'v_and_b32 v{qA}, 0xffff0000, v{t}\nv_add_f32 v{qA}, {hx(f2u(1e-5))}, v{qA}')
    S(f'v_cvt_pk_bf16_f32 v{t}, v{qA}, v{qA}\nv_and_b32 v{qA}, 0xffff0000, v{t}\nv_sqrt_f32 v{qA}, v{qA}')
    S(f'v_cvt_pk_bf16_f32 v{t}, v{qA}, v{qA}\nv_and_b32 v{vSD}, 0xffff0000, v{t}\nv_rcp_f32 v{vR}, v{vSD}')
    S(f'v_mul_f32 v{vNRL}, {hx(f2u(-L2E))}, v{vR}')
    S(f'v_cndmask_b32 v{vRM}, v{vR}, 0, s[{sHI}:{sHI+1}]\nv_cndmask_b32 v{vMK}, 1.0, 0, s[{sHI}:{sHI+1}]')

sSEL_LO, sSEL_HI = 49, 63
def center(s):
    S = Stream()
    for j in range(4):
        r = X0 + s * 4 + j
        a, b = TT + 2 * j, TT + 2 * j + 1
        S(f'v_dot2_f32_bf16 v{a}, v{r}, s{sSEL_LO}, v{vNM}\nv_dot2_f32_bf16 v{b}, v{r}, s{sSEL_HI}, v{vNM}')
    for j in range(4):
        r = X0 + s * 4 + j
        S(f'v_cvt_pk_bf16_f32 v{r}, v{TT+2*j}, v{TT+2*j+1}')
    return S.l

def silu_tile(acc, u, soff, tok):
    S = Stream()
    for g in range(4):
        a = acc + 4 * g
        for i in range(4): S(f'v_mul_f32 v{TT+i}, v{a+i}, v{vNRL}')
        for i in range(4): S(f'v_exp_f32 v{TT+i}, v{TT+i}')
        for i in range(4): S(f'v_fma_f32 v{TT+i}, v{TT+i}, v{vSD}, v{vSD}')
        for i in range(4): S(f'v_rcp_f32 v{TT+i}, v{TT+i}')
        for i in range(4): S(f'v_mul_f32 v{TT+4+i}, v{a+i}, v{TT+i}')
        S(f'v_cvt_pk_bf16_f32 v{u+2*g}, v{TT+4}, v{TT+5}\nv_cvt_pk_bf16_f32 v{u+2*g+1}, v{TT+6}, v{TT+7}')
        if g % 2 == 1:
            S(f'buffer_store_dwordx4 {v(u + 4*(g//2), 4)}, v{vL16}, {srd(SRD_WS)}, s{soff[0]} offen offset:{soff[1] + 1024*(g//2)} sc1', tok=tok)
    return S.l

class Steps:
    def __init__(self, nstage_pairs, single):
        self.steps = []
        for st in range(nstage_pairs):
            for s in range(28):
                h = st * 2 + s // 14; pcs = half_pieces(h); sp = s % 14
                self.steps.append(dict(st=st, s=s, nt=2, h=h, addr=pcs[2*sp], bar=(sp == 0)))
        if single:
            for s in range(28):
                self.steps.append(dict(st=nstage_pairs, s=s, nt=1, h=6, addr=s * K1, bar=(s == 0)))
        self.segbase = None
    def reads(self, n, pre_bar=None):
        if n >= len(self.steps): return [], []
        p = self.steps[n]; S = Stream(); pre = Stream()
        if p['bar']:
            if pre_bar and p['h'] in pre_bar: pre.ext(pre_bar[p['h']])
            pre('s_barrier')
        ring = AF + (n % 3) * 8
        if p['nt'] == 2:
            if self.segbase is None or not (0 <= p['addr'] - self.segbase <= 60000) or p['bar']:
                self.segbase = p['addr']
                pre(f'v_add_u32 v{vWA[0]}, {p["addr"]}, v{vVA[0]}\nv_add_u32 v{vWA[1]}, {p["addr"]}, v{vVA[1]}')
            o = p['addr'] - self.segbase
            for c in range(2):
                for u in range(2):
                    S(f'ds_read_b64_tr_b16 {v(ring + 4*c + 2*u, 2)}, v{vWA[c]} offset:{o + 512*u}')
        else:
            for u in range(2):
                S(f'ds_read_b64_tr_b16 {v(ring + 2*u, 2)}, v{vVS} offset:{p["addr"] + 256*u}')
        return pre.l, S.l
    def mfmas(self, n):
        p = self.steps[n]; ring = AF + (n % 3) * 8; out = []
        for c in range(p['nt']):
            acc = ACC[p['st'] % 2][c]
            C = '0' if p['s'] == 0 else v(acc, 16)
            out.append(Ins(f'v_mfma_f32_32x32x16_bf16 {v(acc,16)}, {v(ring+4*c,4)}, {v(X0+4*p["s"],4)}, {C}'))
        return out
    def stage(self, st, fill, perstep=None, pre_bar=None, last_hook=None, mid=None):
        idx = [n for n, p in enumerate(self.steps) if p['st'] == st]
        groups = []
        for n in idx:
            p = self.steps[n]
            pre, rd = self.reads(n + 2, pre_bar)
            if n + 2 == len(self.steps) and last_hook: pre = last_hook
            m = self.mfmas(n)
            g = []
            if mid and p['s'] in mid: g += mid[p['s']]
            sl = [None] if p['s'] > 0 or perstep else []
            if p['nt'] == 2:
                g += [m[0]] + pre + sl + rd[0:1] + sl + rd[1:2] + sl + [m[1]] + sl + rd[2:3] + sl + rd[3:4] + sl
            else:
                g += [m[0]] + pre + sl + rd[0:2] + sl + rd[2:4] + sl
            if perstep:
                g = interleave([g], perstep(p['s']))
            groups.append(g)
        if perstep: return [x for g in groups for x in g]
        return interleave(groups, fill)

def c_common_start(S, cstride):
    S(f's_mov_b32 s{sSEL_LO}, 0x00003f80\ns_mov_b32 s{sSEL_HI}, 0x3f800000')
    c_load_x(S)
    lane_consts_tr(S, vVA, T, cstride, 'A')

def c_ffn(S):
    c_common_start(S, 64)
    S(f'v_lshrrev_b32 v{T}, 5, v{vLANE}\nv_lshlrev_b32 v{vVS}, 9, v{T}\nv_bfe_u32 v{T}, v{vLANE}, 2, 2\nv_lshl_add_u32 v{vVS}, v{T}, 6, v{vVS}')
    S(f'v_bfe_u32 v{T}, v{vLANE}, 4, 1\nv_lshl_add_u32 v{vVS}, v{T}, 5, v{vVS}\nv_and_b32 v{T}, 3, v{vLANE}\nv_lshl_add_u32 v{vVS}, v{T}, 3, v{vVS}')
    S(f's_lshl_b32 s{sT0}, s{sRB}, 2\ns_add_u32 s{sT0}, s{sT0}, s{sWAVE}\ns_mul_i32 s{sT0}, s{sT0}, {112*K1}')
    S(f's_mul_i32 s{sT1}, s{sIDX}, 7\ns_and_b32 s{sT2}, s{sIDX}, 1\ns_add_u32 s{sT3}, s{sT1}, s{sT2}\ns_lshl_b32 s{sT3}, s{sT3}, 11\ns_add_u32 s{sFT}, s{sT0}, s{sT3}')
    S(f's_mul_i32 s{sT2}, s{sT2}, 6\ns_sub_u32 s{sT1}, s{sT1}, s{sT2}\ns_add_u32 s{sT1}, s{sT1}, 6\ns_lshl_b32 s{sT1}, s{sT1}, 11\ns_add_u32 s{sFS}, s{sT0}, s{sT1}')
    P = Steps(3, True)
    S.ext(center(0)); S.ext(center(1))
    for n in range(2):
        pre, rd = P.reads(n); S.ext(pre); S.ext(rd)
    stamp(S, 2)
    S.ext(P.stage(0, None, perstep=lambda s: center(s + 2) if s + 2 < 28 else []))
    for st in (1, 2, 3):
        pa = ACC[(st - 1) % 2]
        fill = [Ins(f's_add_u32 s{sT0}, s{sFT}, {(st-1)*4096}')]
        fill += silu_tile(pa[0], T, (sT0, 0), 'st') + silu_tile(pa[1], U, (sT0, 2048), 'st')
        if st == 2:
            t = Stream(); tag_prefetch(t, vTAG); fill = t.l + fill
        hook = [Ins('s_waitcnt lgkmcnt(0)'), Ins('s_barrier')] if st == 3 else None
        S.ext(P.stage(st, fill, last_hook=hook))
    stamp(S, 3)
    S.ext(silu_tile(ACC[1][0], T, (sFS, 0), 'st'))

def softmax_k(acc, c, vPW):
    S = Stream()
    for i in range(4): S(f'v_cndmask_b32 v{acc+12+i}, v{acc+12+i}, v{acc+8+i}, s[{sHI}:{sHI+1}]')
    mx, mn, t0, t1 = TT, TT + 1, TT + 2, TT + 3
    for op, d in (('v_max3_f32', mx), ('v_min3_f32', mn)):
        S(f'{op} v{d}, v{acc}, v{acc+1}, v{acc+2}')
        for i in range(3, 15, 2): S(f'{op} v{d}, v{d}, v{acc+i}, v{acc+i+1}')
    S(f'v_max_f32 v{mx}, v{mx}, v{acc+15}\nv_min_f32 v{mn}, v{mn}, v{acc+15}')
    S(f'v_mov_b32 v{t0}, v{mx}\nv_mov_b32 v{t1}, v{mn}\nv_permlane32_swap_b32 v{mx}, v{t0}\nv_permlane32_swap_b32 v{mn}, v{t1}')
    S(f'v_max_f32 v{mx}, v{mx}, v{t0}\nv_min_f32 v{mn}, v{mn}, v{t1}')
    S(f'v_mul_f32 v{mx}, {hx(f2u(-L2E))}, v{mx}\nv_mul_f32 v{mn}, s{sL2E}, v{mn}')
    for sign in range(2):
        E = T if sign == 0 else acc
        for i in range(16):
            if sign == 0: S(f'v_fma_f32 v{E+i}, v{acc+i}, s{sL2E}, v{mx}')
            else: S(f'v_fma_f32 v{E+i}, -v{acc+i}, s{sL2E}, v{mn}')
        for i in range(16): S(f'v_exp_f32 v{E+i}, v{E+i}')
        s0, s1 = TT + 4, TT + 5
        S(f'v_add_f32 v{s0}, v{E}, v{E+1}\nv_add_f32 v{s1}, v{E+12}, v{E+13}')
        for i in range(2, 12): S(f'v_add_f32 v{s0}, v{s0}, v{E+i}')
        S(f'v_add_f32 v{s1}, v{s1}, v{E+14}\nv_add_f32 v{s1}, v{s1}, v{E+15}\nv_fma_f32 v{s0}, v{s1}, v{vMK}, v{s0}')
        S(f'v_mov_b32 v{s1}, v{s0}\nv_permlane32_swap_b32 v{s0}, v{s1}\nv_add_f32 v{s0}, v{s0}, v{s1}\nv_rcp_f32 v{s0}, v{s0}')
        for i in range(16): S(f'v_mul_f32 v{E+i}, v{E+i}, v{s0}')
        for i in range(8): S(f'v_cvt_pk_bf16_f32 v{E+i}, v{E+2*i}, v{E+2*i+1}')
        for qd in range(4):
            if qd == 3: S(f's_mov_b64 exec, 0xffffffff')
            S(f'ds_write_b64 v{vPW}, {v(E+2*qd, 2)} offset:{c*14336 + sign*56 + qd*16}')
            if qd == 3: S(f's_mov_b64 exec, -1')
    return S.l

def scale_pack(acc, dst, masked=True):
    S = Stream()
    for i in range(16): S(f'v_mul_f32 v{acc+i}, v{acc+i}, v{vRM if (masked and i >= 12) else vR}')
    for i in range(8): S(f'v_cvt_pk_bf16_f32 v{dst+i}, v{acc+2*i}, v{acc+2*i+1}')
    return S.l

def phi_mfma(acc, c, b):
    return [Ins(f'v_mfma_f32_32x32x16_bf16 {v(acc,16)}, {v(WPHI+8*c,4)}, {v(b,4)}, 0'),
            Ins(f'v_mfma_f32_32x32x16_bf16 {v(acc,16)}, {v(WPHI+8*c+4,4)}, {v(b+4,4)}, {v(acc,16)}')]

def c_attn(S, spare_label):
    c_common_start(S, 56)
    vPW, vVW = vVS, vNRL
    S(f'v_and_b32 v{T}, 31, v{vLANE}\ns_lshl_b32 s{sT0}, s{sWAVE}, 5\nv_add_u32 v{T}, s{sT0}, v{T}\nv_lshrrev_b32 v{T+1}, 5, v{vLANE}\nv_lshlrev_b32 v{T+1}, 3, v{T+1}')
    S(f'v_mul_u32_u24 v{vPW}, 112, v{T}\nv_add_u32 v{vPW}, v{vPW}, v{T+1}')
    S(f'v_mul_u32_u24 v{vVW}, 72, v{T}\nv_add_u32 v{vVW}, v{vVW}, v{T+1}\nv_add_u32 v{vVW}, {SLOT}, v{vVW}')
    def trbase(dst, rowmul_hf, pitch, tmp):
        S(f'v_lshrrev_b32 v{tmp}, 5, v{vLANE}\nv_lshlrev_b32 v{tmp}, {rowmul_hf}, v{tmp}\nv_bfe_u32 v{dst}, v{vLANE}, 2, 2\nv_add_u32 v{tmp}, v{tmp}, v{dst}\nv_mul_u32_u24 v{dst}, {pitch}, v{tmp}')
        S(f'v_bfe_u32 v{tmp}, v{vLANE}, 4, 1\nv_lshl_add_u32 v{dst}, v{tmp}, 5, v{dst}\nv_and_b32 v{tmp}, 3, v{vLANE}\nv_lshl_add_u32 v{dst}, v{tmp}, 3, v{dst}')
    trbase(T + 2, 2, 56, T + 3)
    S(f'v_add_u32 v{T+2}, {WPHI_L}, v{T+2}')
    P = Steps(3, False)
    S.ext(center(0)); S.ext(center(1))
    for n in range(2):
        pre, rd = P.reads(n); S.ext(pre); S.ext(rd)
    for c in range(2):
        for st in range(2):
            for u in range(2):
                S(f'ds_read_b64_tr_b16 {v(WPHI + 8*c + 4*st + 2*u, 2)}, v{T+2} offset:{c*1568 + (16*st + 8*u)*56}')
    stamp(S, 2)
    pb = {2: [Ins('s_waitcnt lgkmcnt(0)')], 5: [Ins('s_waitcnt lgkmcnt(0)')]}
    S.ext(P.stage(0, None, perstep=lambda s: center(s + 2) if s + 2 < 28 else [], pre_bar=pb))
    ka = ACC[0]
    fill = scale_pack(ka[0], T) + scale_pack(ka[1], T + 8) + phi_mfma(ka[0], 0, T) + phi_mfma(ka[1], 1, T + 8)
    t = Stream(); tag_prefetch(t, vTAG); fill = t.l + fill
    fill += softmax_k(ka[0], 0, vPW) + softmax_k(ka[1], 1, vPW)
    S.ext(P.stage(1, fill, pre_bar=pb))
    va = ACC[1]
    t = Stream()
    for c in range(2):
        t.ext(scale_pack(va[c], T, masked=False))
        t(f'v_cndmask_b32 v{T+6}, v{T+6}, v{TT}, s[{sHI}:{sHI+1}]\nv_cndmask_b32 v{T+7}, v{T+7}, 0, s[{sHI}:{sHI+1}]')
        for qd in range(4): t(f'ds_write_b64 v{vVW}, {v(T+2*qd, 2)} offset:{c*9216 + qd*16}')
    vfill = [Ins(f'v_mov_b32 v{TT}, 0x3f80')] + t.l
    kA, kB = TT + 1, TT + 2
    t = Stream(); S0 = S
    def trb(St, dst, pitch, tmp):
        St(f'v_lshrrev_b32 v{tmp}, 5, v{vLANE}\nv_lshlrev_b32 v{tmp}, 3, v{tmp}\nv_bfe_u32 v{dst}, v{vLANE}, 2, 2\nv_add_u32 v{tmp}, v{tmp}, v{dst}\nv_mul_u32_u24 v{dst}, {pitch}, v{tmp}')
        St(f'v_bfe_u32 v{tmp}, v{vLANE}, 4, 1\nv_lshl_add_u32 v{dst}, v{tmp}, 5, v{dst}\nv_and_b32 v{tmp}, 3, v{vLANE}\nv_lshl_add_u32 v{dst}, v{tmp}, 3, v{dst}')
    trb(t, kA, 112, TT + 3); trb(t, kB, 72, TT + 3)
    t(f's_lshr_b32 s{sT0}, s{sWAVE}, 1\ns_and_b32 s{sT1}, s{sWAVE}, 1\ns_mul_i32 s{sT2}, s{sT0}, 14336\ns_mul_i32 s{sT3}, s{sT1}, 56\ns_add_u32 s{sT2}, s{sT2}, s{sT3}\nv_add_u32 v{kA}, s{sT2}, v{kA}')
    t(f's_mul_i32 s{sT2}, s{sT0}, 9216\ns_add_u32 s{sT2}, s{sT2}, {SLOT}\nv_add_u32 v{kB}, s{sT2}, v{kB}')
    t(f's_lshl_b32 s{sFT}, s{sIDX}, 2\ns_add_u32 s{sFT}, s{sFT}, s{sWAVE}\ns_lshl_b32 s{sFS}, s{sFT}, 8\ns_lshl_b32 s{sFT}, s{sFT}, 4\ns_add_u32 s{sFT}, s{sFT}, s{sRB}\ns_lshl_b32 s{sFT}, s{sFT}, 12\ns_add_u32 s{sFT}, s{sFT}, {WS_KVP}')
    t(f's_lshl_b32 s{sT0}, s{sRB}, 2\ns_add_u32 s{sFS}, s{sFS}, s{sT0}\ns_add_u32 s{sFS}, s{sFS}, {WS_FP}')
    vfill += t.l
    kv = Stream()
    bufs = [va[1], va[1] + 8, T, T + 8]
    def kvread(ts):
        b = bufs[ts % 4]
        for u in range(2): kv(f'ds_read_b64_tr_b16 {v(b + 2*u, 2)}, v{kA} offset:{(16*ts + 4*u)*112}')
        for u in range(2): kv(f'ds_read_b64_tr_b16 {v(b + 4 + 2*u, 2)}, v{kB} offset:{(16*ts + 4*u)*72}')
    for ts in range(3): kvread(ts)
    for ts in range(8):
        if ts + 3 < 8: kvread(ts + 3)
        b = bufs[ts % 4]
        kv(f'v_mfma_f32_32x32x16_bf16 {v(va[0],16)}, {v(b,4)}, {v(b+4,4)}, {"0" if ts == 0 else v(va[0],16)}')
    kvst = Stream()
    for qd in range(4):
        kvst(f'buffer_store_dwordx4 {v(va[0]+4*qd,4)}, v{vL16}, {srd(SRD_WS)}, s{sFT} offen offset:{qd*1024} sc1', tok='kvp')
    fl = Stream(); fl.wait('kvp'); tag_get(fl, vTAG); flag_store(fl, sFS, TT + 4)
    def ps(s):
        if s == 0: return []
        if s <= 11:
            n = len(vfill); return vfill[(s-1)*n//11: s*n//11]
        if 13 <= s <= 18:
            n = len(kv.l); return kv.l[(s-13)*n//6:(s-12)*n//6]
        if s == 20: return kvst.l
        return []
    endhook = [Ins('s_waitcnt lgkmcnt(0)'), Ins(f's_cmp_eq_u32 s{sCB}, 7'), Ins('s_cbranch_scc1 L_noend'), Ins('s_barrier'), Ins('L_noend:')]
    S.ext(P.stage(2, None, perstep=ps, pre_bar=pb, last_hook=endhook))
    stamp(S, 3)
    qa = ACC[0]
    S.ext(scale_pack(qa[0], T)); S.ext(phi_mfma(qa[0], 0, T)); S.ext(scale_pack(qa[1], T + 8)); S.ext(phi_mfma(qa[1], 1, T + 8))
    S(f's_lshl_b32 s{sT0}, s{sRB}, 2\ns_add_u32 s{sT0}, s{sT0}, s{sWAVE}\ns_lshl_b32 s{sT0}, s{sT0}, 3\ns_add_u32 s{sT0}, s{sT0}, s{sIDX}\ns_lshl_b32 s{sT0}, s{sT0}, 12\ns_add_u32 s{sT0}, s{sT0}, {WS_PQ}')
    for c in range(2):
        d = AF + 8 * c
        for i in range(8): S(f'v_cvt_pk_bf16_f32 v{d+i}, v{qa[c]+2*i}, v{qa[c]+2*i+1}')
        S(f'v_cndmask_b32 v{d+6}, v{d+6}, v{d+4}, s[{sHI}:{sHI+1}]\nv_cndmask_b32 v{d+7}, v{d+7}, v{d+5}, s[{sHI}:{sHI+1}]')
        for hh in range(2):
            S(f'buffer_store_dwordx4 {v(d+4*hh,4)}, v{vL16}, {srd(SRD_WS)}, s{sT0} offen offset:{c*2048 + hh*1024} sc1', tok='st')
    S.ext(fl.l)

def c_publish(S, have_tag):
    S('s_waitcnt vmcnt(0)')
    if not have_tag: tag_get(S, vTAG)
    S(f's_lshl_b32 s{sT0}, s{sRB}, 8\ns_lshl_b32 s{sT1}, s{sROLE}, 4\ns_add_u32 s{sT0}, s{sT0}, s{sT1}\ns_lshl_b32 s{sT1}, s{sWAVE}, 2\ns_add_u32 s{sT0}, s{sT0}, s{sT1}\ns_add_u32 s{sT0}, s{sT0}, {WS_FH}')
    flag_store(S, sT0, TT)
    stamp(S, 4)

W2R = 16; FACC = 144; HR = 208
vLW, vLS, vL2 = 3, 4, 5
vVW2 = [6, 7]
def swz_voff(S, dst, pitch, tmp):
    S(f'v_lshrrev_b32 v{tmp}, 3, v{vLANE}\nv_mul_lo_u32 v{dst}, v{tmp}, {pitch}')
    S(f'v_bfe_u32 v{tmp}, v{vLANE}, 4, 1\nv_lshlrev_b32 v{tmp}, 2, v{tmp}\nv_and_b32 v{tmp+1}, 7, v{vLANE}\nv_xor_b32 v{tmp}, v{tmp}, v{tmp+1}\nv_lshl_add_u32 v{dst}, v{tmp}, 4, v{dst}')

def l_phase1(S, ffn, tile):
    s8 = sFT
    swz_voff(S, vLW, f's{sPITCH}', 8)
    S(f's_mul_i32 s{sFS}, s{sW4}, s{sPITCH}\ns_lshl_b32 s{sFS}, s{sFS}, 3')
    S(f's_lshl_b32 s{sT3}, s{sW4}, 10')
    def dma_half(h, lo, hi):
        pcs = half_pieces(h); st = h // 2
        for i in range(lo, hi, 4):
            assert pcs[i + 3] == pcs[i] + 3 * K1
            rows = (h % 2) * 224 + i * 8
            S(f's_add_u32 m0, s{sT3}, {pcs[i]}')
            S(f's_mul_i32 s{sT0}, s{sPITCH}, {rows}\ns_add_u32 s{sT0}, s{sT0}, s{sFS}\ns_add_u32 s{sT0}, s{sT0}, s{sCOL[st]}')
            S(f'buffer_load_dwordx4 v{vLW}, {srd(SRD_W)}, s{sT0} offen lds', tok=('h', h))
    dma_half(0, 0, 28)
    if not ffn:
        S(f's_add_u32 m0, s{sT3}, {WPHI_L}\ns_mul_i32 s{sT0}, s{sIDX}, 3136\ns_add_u32 s{sT0}, s{sT0}, s{sT3}')
        S(f'buffer_load_dwordx4 v{vL16}, {srd(SRD_WPHI)}, s{sT0} offen lds', tok=('h', 0))
    dma_half(1, 0, 16)
    lab = newlab('nt')
    S(f's_or_b32 s{sT0}, s2, s{sW4}\ns_cmp_lg_u32 s{sT0}, 0\ns_cbranch_scc1 {lab}')
    for t in (f's_mov_b32 s{sT0}, {WS_TAG}', 'v_mov_b32 v9, 0', 's_mov_b64 exec, 1', f'buffer_load_dword v8, v9, {srd(SRD_WS)}, s{sT0} offen sc1', 's_waitcnt vmcnt(0)',
              'v_add_u32 v8, 1, v8', 'v_max_u32 v8, 1, v8', 's_nop 1', f'buffer_store_dword v8, v9, {srd(SRD_WS)}, s{sT0} offen sc1', f'buffer_store_dword v8, v9, {srd(SRD_DBG)}, 0 offen sc1', 's_waitcnt vmcnt(0)', 's_mov_b64 exec, -1'):
        S.l.append(RAW(t))
    S(f'{lab}:')
    if ffn:
        S(f'v_lshrrev_b32 v8, 2, v{vLANE}\nv_mul_u32_u24 v{vLS}, 3584, v8\nv_and_b32 v8, 3, v{vLANE}\nv_lshl_add_u32 v{vLS}, v8, 4, v{vLS}')
    if tile:
        swz_voff(S, vL2, f's{sT0}', 8) if False else None
        S(f's_mov_b32 s{sT1}, 896'); swz_voff(S, vL2, f's{sT1}', 8)
        lane_consts_tr(S, vVW2, 8, 64, 'B')
    S('s_barrier')
    stamp(S, 1)
    dma_half(1, 16, 28); dma_half(2, 0, 28); dma_half(3, 0, 28); dma_half(4, 0, 28)
    S.wait(('h', 0)); S('s_barrier')
    S.wait(('h', 1)); S('s_barrier')
    sW2 = sCOLS if not ffn else sCOL[0]
    if tile:
        S(f's_mul_i32 s{sT1}, s{sW4}, {448*896}\ns_lshl_b32 s{sT2}, s{sCB}, 7\ns_add_u32 s{sT1}, s{sT1}, s{sT2}')
        for i in range(32):
            S(f's_add_u32 s{sT0}, s{sT1}, {i*8*896}')
            S(f'buffer_load_dwordx4 {v(W2R+4*i,4)}, v{vL2}, {srd(SRD_W2)}, s{sT0} offen')
    S.wait(('h', 2)); S('s_barrier')
    dma_half(5, 0, 28)
    tag_prefetch(S, vTAG)
    S.wait(('h', 3)); S('s_barrier')
    if ffn:
        for i in range(0, 28, 4):
            S(f's_add_u32 m0, s{sT3}, {i*K1}')
            S(f's_lshl_b32 s{sT0}, s{sFS}, 1\ns_add_u32 s{sT0}, s{sT0}, {i*16*3584}\ns_add_u32 s{sT0}, s{sT0}, s{sCOLS}')
            S(f'buffer_load_dwordx4 v{vLS}, {srd(SRD_W)}, s{sT0} offen lds', tok=('h', 6))
    if tile:
        S(f's_lshl_b32 s{sT0}, s{sW4}, 12\ns_add_u32 s{sT0}, s{sT0}, {SPARE}')
        S(f'v_add_u32 v8, s{sT0}, v{vL16}\nv_add_u32 v9, s{sT0}, v{vVW2[0]}\nv_add_u32 v10, s{sT0}, v{vVW2[1]}')
        def tr(ks):
            o = (ks % 2) * 2048; b = W2R + 8 * ks
            S(f'ds_write_b128 v8, {v(b,4)} offset:{o}\nds_write_b128 v8, {v(b+4,4)} offset:{o+1024}')
            for c in range(2):
                for u in range(2):
                    S(f'ds_read_b64_tr_b16 {v(b + 4*c + 2*u, 2)}, v{9+c} offset:{o + 1024*u}')
        for ks in range(8): tr(ks)
    S.wait(('h', 4)); S('s_barrier')
    if tile:
        for ks in range(8, 16): tr(ks)
    S.wait(('h', 5)); S('s_barrier')
    if ffn:
        S.wait(('h', 6)); S('s_barrier')
    tag_get(S, vTAG)
    if tile:
        S('s_waitcnt lgkmcnt(0)\ns_barrier')
        stamp(S, 3)
        S(f's_mul_i32 s{sT1}, s{sW4}, {448*896}\ns_lshl_b32 s{sT2}, s{sCB}, 7\ns_add_u32 s{sT1}, s{sT1}, s{sT2}\ns_mul_i32 s{sT3}, s{sW4}, {F_REG}')
        for i in range(24):
            S(f's_add_u32 m0, s{sT3}, {i*K1}\ns_add_u32 s{sT0}, s{sT1}, {(32+i)*8*896}')
            S(f'buffer_load_dwordx4 v{vL2}, {srd(SRD_W2)}, s{sT0} offen lds', tok='w2')

def hflag_poll(S, rolebase):
    S(f'v_lshrrev_b32 v8, 1, v{vLANE}\nv_lshlrev_b32 v8, 4, v8\nv_and_b32 v9, 1, v{vLANE}\nv_lshl_add_u32 v8, v9, 2, v8')
    S(f's_lshr_b32 s{sT0}, s{sTB}, 1\ns_lshl_b32 s{sT0}, s{sT0}, 8\ns_lshl_b32 s{sT1}, s{sW4}, 5\ns_add_u32 s{sT0}, s{sT0}, s{sT1}')
    S(f's_and_b32 s{sT1}, s{sTB}, 1\ns_lshl_b32 s{sT1}, s{sT1}, 3\ns_add_u32 s{sT0}, s{sT0}, s{sT1}\ns_add_u32 s{sT0}, s{sT0}, {WS_FH + rolebase*16}')
    poll(S, 8, sT0, 4, 9)

def f_phase2(S):
    hflag_poll(S, 0)
    stamp(S, 4)
    S(f's_mul_i32 s{sT1}, s{sTB}, {224*K1}\ns_mul_i32 s{sT2}, s{sW4}, {28*K1}\ns_add_u32 s{sT1}, s{sT1}, s{sT2}\ns_add_u32 s{sT2}, s{sT1}, {112*K1}')
    S(f's_mul_i32 s{sT3}, s{sW4}, {F_REG}\nv_add_u32 v9, s{sT3}, v{vVW2[0]}\nv_add_u32 v10, s{sT3}, v{vVW2[1]}')
    hdst = {}
    for ks in range(28):
        if ks < 6: hdst[ks] = HR + 8 * ks
        elif ks - 6 < 10: hdst[ks] = W2R + 8 * (ks - 6)
        else: hdst[ks] = hdst[ks - 12] if ks - 12 < 6 else hdst[ks - 12]
    adst = {ks: (W2R + 8 * ks if ks < 16 else W2R + 8 * (10 + (ks - 16) % 3)) for ks in range(28)}
    def hload(ks):
        for tt2 in range(2):
            sreg = sT1 if tt2 == 0 else sT2
            if ks % 4 == 0 and ks > 0: S(f's_add_u32 s{sreg}, s{sreg}, 4096')
            S(f'buffer_load_dwordx4 {v(hdst[ks]+4*tt2,4)}, v{vL16}, {srd(SRD_WS)}, s{sreg} offen offset:{(ks%4)*1024} sc1')
    def aread(ks):
        o = (ks - 16) * 2048; b = adst[ks]
        for c in range(2):
            for u in range(2):
                S(f'ds_read_b64_tr_b16 {v(b + 4*c + 2*u, 2)}, v{9+c} offset:{o + 1024*u}')
    for ks in range(6): hload(ks)
    nxt = 6
    for ks in range(28):
        if ks + 2 >= 16 and ks + 2 < 28: aread(ks + 2)
        for c in range(2):
            for tt2 in range(2):
                acc = FACC + 16 * (2 * c + tt2)
                S(f'v_mfma_f32_32x32x16_bf16 {v(acc,16)}, {v(adst[ks]+4*c,4)}, {v(hdst[ks]+4*tt2,4)}, {"0" if ks == 0 else v(acc,16)}')
        while nxt < 28 and ((nxt < 16 and nxt - 6 <= ks) or (nxt >= 16 and nxt - 12 <= ks)):
            hload(nxt); nxt += 1
    stamp(S, 5)
    S(f'v_add_u32 v8, s{sT3}, v{vL16}')
    for q in range(4):
        for i in range(4):
            S(f'ds_write_b128 v8, {v(FACC + 16*q + 4*i, 4)} offset:{q*4096 + i*1024}')
    S('s_waitcnt lgkmcnt(0)\ns_barrier')

PHI = 16; PN = 144; KV = 208; XT = 240
def a_phase2(S):
    hflag_poll(S, 8)
    stamp(S, 5)
    S(f's_lshl_b32 s{sT1}, s{sTB}, 16\ns_lshl_b32 s{sT2}, s{sW4}, 13\ns_add_u32 s{sT1}, s{sT1}, s{sT2}\ns_add_u32 s{sT1}, s{sT1}, {WS_PQ}')
    for hd in range(4):
        for tt2 in range(2):
            t = hd * 2 + tt2
            S(f's_add_u32 s{sT0}, s{sT1}, {tt2*32768 + hd*2048}')
            for hh in range(2):
                S(f'buffer_load_dwordx4 {v(PHI+16*t+8+4*hh,4)}, v{vL16}, {srd(SRD_WS)}, s{sT0} offen offset:{hh*1024} sc1')
    S(f's_mov_b32 s{sT2}, 896'); swz_voff(S, 5, f's{sT2}', 8)
    S(f's_mul_i32 s{sT1}, s{sW4}, {112*896}\ns_lshl_b32 s{sT2}, s{sCB}, 7\ns_add_u32 s{sT1}, s{sT1}, s{sT2}\ns_mul_i32 s{sT3}, s{sW4}, {A_REG}\ns_add_u32 s{sT3}, s{sT3}, {A_BASE}')
    for i in range(15):
        S(f's_add_u32 m0, s{sT3}, {i*K1}\ns_add_u32 s{sT0}, s{sT1}, {i*8*896}')
        S(f'buffer_load_dwordx4 v5, {srd(SRD_WO)}, s{sT0} offen lds', tok='wo')
    vO = 3
    S(f'v_and_b32 v8, 31, v{vLANE}\nv_mul_u32_u24 v{vO}, 896, v8\nv_lshrrev_b32 v8, 5, v{vLANE}\nv_lshl_add_u32 v{vO}, v8, 4, v{vO}')
    S(f's_and_b32 s{sT0}, s{sW4}, 1\ns_lshl_b32 s{sT1}, s{sTB}, 1\ns_add_u32 s{sT0}, s{sT0}, s{sT1}\ns_mul_i32 s{sFT}, s{sT0}, {32*896}')
    S(f's_lshr_b32 s{sT0}, s{sW4}, 1\ns_lshl_b32 s{sT0}, s{sT0}, 6\ns_add_u32 s{sFT}, s{sFT}, s{sT0}\ns_lshl_b32 s{sT0}, s{sCB}, 7\ns_add_u32 s{sFT}, s{sFT}, s{sT0}')
    for hh in range(2):
        S(f'buffer_load_dwordx4 {v(XT+4*hh,4)}, v{vO}, {srd(SRD_X)}, s{sFT} offen offset:{32*hh}')
    lane_consts_tr(S, vVW2, 8, 64, 'B')
    S(f'v_add_u32 v{vVW2[0]}, s{sT3}, v{vVW2[0]}\nv_add_u32 v{vVW2[1]}, s{sT3}, v{vVW2[1]}\nv_add_u32 v4, s{sT3}, v{vL16}')
    for t in range(8):
        raw = PHI + 16 * t + 8; Xv = PN + 32 * (t % 2); E = Xv + 16
        for i in range(8): S(f'v_lshlrev_b32 v{Xv+2*i}, 16, v{raw+i}\nv_and_b32 v{Xv+2*i+1}, 0xffff0000, v{raw+i}')
        mx, mn, t0, t1 = TT, TT + 1, TT + 2, TT + 3
        for op, d in (('v_max3_f32', mx), ('v_min3_f32', mn)):
            S(f'{op} v{d}, v{Xv}, v{Xv+1}, v{Xv+2}')
            for i in range(3, 15, 2): S(f'{op} v{d}, v{d}, v{Xv+i}, v{Xv+i+1}')
        S(f'v_max_f32 v{mx}, v{mx}, v{Xv+15}\nv_min_f32 v{mn}, v{mn}, v{Xv+15}')
        S(f'v_mov_b32 v{t0}, v{mx}\nv_mov_b32 v{t1}, v{mn}\nv_permlane32_swap_b32 v{mx}, v{t0}\nv_permlane32_swap_b32 v{mn}, v{t1}')
        S(f'v_max_f32 v{mx}, v{mx}, v{t0}\nv_min_f32 v{mn}, v{mn}, v{t1}')
        S(f'v_mul_f32 v{mx}, {hx(f2u(-L2E))}, v{mx}\nv_mul_f32 v{mn}, s{sL2E}, v{mn}')
        for i in range(16): S(f'v_fma_f32 v{E+i}, v{Xv+i}, s{sL2E}, v{mx}')
        for i in range(16): S(f'v_fma_f32 v{Xv+i}, -v{Xv+i}, s{sL2E}, v{mn}')
        for i in range(16): S(f'v_exp_f32 v{E+i}, v{E+i}')
        for i in range(16): S(f'v_exp_f32 v{Xv+i}, v{Xv+i}')
        for i in range(8): S(f'v_cvt_pk_bf16_f32 v{PHI+16*t+i}, v{E+2*i}, v{E+2*i+1}')
        for i in range(8): S(f'v_cvt_pk_bf16_f32 v{PHI+16*t+8+i}, v{Xv+2*i}, v{Xv+2*i+1}')
    stamp(S, 6)
    S(f'v_lshlrev_b32 v8, 2, v{vLANE}\ns_lshl_b32 s{sT0}, s{sW4}, 8\ns_add_u32 s{sT0}, s{sT0}, {WS_FK}')
    poll(S, 8, sT0, 32, 9)
    S(f's_lshl_b32 s{sT1}, s{sW4}, 14\ns_add_u32 s{sT1}, s{sT1}, {WS_KVF}')
    def kvload(hd):
        S(f's_add_u32 s{sT0}, s{sT1}, {hd*4096}')
        for st in range(4):
            S(f'buffer_load_dwordx4 {v(KV+16*(hd%2)+4*st,4)}, v{vL16}, {srd(SRD_WS)}, s{sT0} offen offset:{st*1024} sc1')
    kvload(0); kvload(1)
    def num(t):
        hd = t // 2; kb = KV + 16 * (hd % 2); aP = PN + 32 * (t % 2); aN = aP + 16; ph = PHI + 16 * t
        S(f'v_mfma_f32_32x32x16_bf16 {v(aP,16)}, {v(kb,4)}, {v(ph,4)}, 0')
        S(f'v_mfma_f32_32x32x16_bf16 {v(aN,16)}, {v(kb+8,4)}, {v(ph+8,4)}, 0')
        S(f'v_mfma_f32_32x32x16_bf16 {v(aP,16)}, {v(kb+4,4)}, {v(ph+4,4)}, {v(aP,16)}')
        S(f'v_mfma_f32_32x32x16_bf16 {v(aN,16)}, {v(kb+12,4)}, {v(ph+12,4)}, {v(aN,16)}')
    def onorm(t):
        aP = PN + 32 * (t % 2); aN = aP + 16; ph = PHI + 16 * t
        rP, rN, dn, a, b, am, bm = TT, TT + 1, TT + 2, TT + 3, TT + 4, TT + 5, TT + 6
        S(f'v_rcp_f32 v{rP}, v{aP+13}\nv_rcp_f32 v{rN}, v{aN+13}')
        S(f'v_mov_b32 v{dn}, {hx(f2u(1e-6))}\nv_fmac_f32 v{dn}, v{aP+12}, v{rP}\nv_fmac_f32 v{dn}, v{aN+12}, v{rN}\nv_rcp_f32 v{dn}, v{dn}')
        S(f'v_mul_f32 v{rP}, v{rP}, v{dn}\nv_mul_f32 v{rN}, v{rN}, v{dn}\nv_mov_b32 v{a}, v{rP}\nv_mov_b32 v{b}, v{rN}')
        S(f'v_permlane32_swap_b32 v{rP}, v{a}\nv_permlane32_swap_b32 v{rN}, v{b}')
        for i in range(12): S(f'v_mul_f32 v{aP+i}, v{aP+i}, v{a}')
        for i in range(12): S(f'v_fmac_f32 v{aP+i}, v{aN+i}, v{b}')
        for i in range(12, 16): S(f'v_mul_f32 v{aP+i}, v{aP+i}, v{a}')
        for i in range(12, 16): S(f'v_fmac_f32 v{aP+i}, v{aN+i}, v{b}')
        for i in range(8): S(f'v_cvt_pk_bf16_f32 v{ph+i}, v{aP+2*i}, v{aP+2*i+1}')
        S(f'v_cndmask_b32 v{ph+6}, v{ph+6}, 0, s[{sHI}:{sHI+1}]\nv_cndmask_b32 v{ph+7}, v{ph+7}, 0, s[{sHI}:{sHI+1}]')
    num(0)
    for t in range(8):
        if t + 1 < 8: num(t + 1)
        if t % 2 == 0 and t // 2 + 2 < 4: pass
        onorm(t)
        if t % 2 == 0 and t >= 0 and (t + 1) // 2 == t // 2 and t // 2 + 2 < 4:
            kvload(t // 2 + 2)
    S.wait('wo')
    SA = PN
    def woread(n):
        hd, st = n // 2, n % 2; b = KV + 8 * (n % 4)
        for c in range(2):
            for u in range(2):
                S(f'ds_read_b64_tr_b16 {v(b+4*c+2*u,2)}, v{vVW2[c]} offset:{(28*hd + 16*st + 8*u)*128}')
    woread(0); woread(1)
    for n in range(8):
        if n + 2 < 8: woread(n + 2)
        hd, st = n // 2, n % 2; b = KV + 8 * (n % 4)
        for c in range(2):
            for tt2 in range(2):
                acc = SA + 16 * (2 * c + tt2); ob = PHI + 16 * (2 * hd + tt2) + 4 * st
                S(f'v_mfma_f32_32x32x16_bf16 {v(acc,16)}, {v(b+4*c,4)}, {v(ob,4)}, {"0" if n == 0 else v(acc,16)}')
    for q in range(4):
        for i in range(4):
            S(f'ds_write_b128 v4, {v(SA+16*q+4*i,4)} offset:{q*4096 + i*1024}')
    S('s_waitcnt lgkmcnt(0)\ns_barrier')
    S(f's_lshl_b32 s{sT0}, s{sW4}, 12\nv_add_u32 v8, s{sT0}, v{vL16}\nv_add_u32 v9, {2*F_REG}, v8\nv_add_u32 v10, {A_BASE}, v8')
    G = PHI + 16
    for f in range(4):
        for i in range(4):
            S(f'ds_read_b128 {v(G+16*f+4*i,4)}, v{8 + f//2} offset:{(f%2)*F_REG + i*1024}')
    SP = G + 64
    for i in range(4): S(f'ds_read_b128 {v(PHI+4*i,4)}, v10 offset:{3*A_REG + i*1024}')
    for k in range(3):
        for i in range(4): S(f'ds_read_b128 {v(SP+16*k+4*i,4)}, v10 offset:{k*A_REG + i*1024}')
    S(f'v_permlane32_swap_b32 v{XT}, v{XT+2}\nv_permlane32_swap_b32 v{XT+1}, v{XT+3}\nv_permlane32_swap_b32 v{XT+4}, v{XT+6}\nv_permlane32_swap_b32 v{XT+5}, v{XT+7}')
    for i in range(16): S(f'v_add_f32 v{G+i}, v{G+i}, v{G+16+i}')
    for i in range(16): S(f'v_add_f32 v{G+32+i}, v{G+32+i}, v{G+48+i}')
    for i in range(16): S(f'v_add_f32 v{G+i}, v{G+i}, v{G+32+i}')
    E = G + 16
    for i in range(16): S(f'v_mul_f32 v{E+i}, {hx(f2u(-L2E))}, v{G+i}')
    for i in range(16): S(f'v_exp_f32 v{E+i}, v{E+i}')
    for i in range(16): S(f'v_add_f32 v{PHI+i}, v{PHI+i}, v{SP+i}')
    for i in range(16): S(f'v_add_f32 v{E+i}, 1.0, v{E+i}')
    for i in range(16): S(f'v_rcp_f32 v{E+i}, v{E+i}')
    for i in range(16): S(f'v_add_f32 v{SP+16+i}, v{SP+16+i}, v{SP+32+i}')
    for i in range(16): S(f'v_add_f32 v{PHI+i}, v{PHI+i}, v{SP+16+i}')
    for i in range(16): S(f'v_mul_f32 v{G+i}, v{G+i}, v{E+i}')
    for i in range(8): S(f'v_lshlrev_b32 v{E+2*i}, 16, v{XT+i}\nv_and_b32 v{E+2*i+1}, 0xffff0000, v{XT+i}')
    for i in range(16): S(f'v_fmac_f32 v{E+i}, v{PHI+i}, v{G+i}')
    for i in range(8): S(f'v_cvt_pk_bf16_f32 v{XT+i}, v{E+2*i}, v{E+2*i+1}')
    S(f'v_permlane32_swap_b32 v{XT}, v{XT+2}\nv_permlane32_swap_b32 v{XT+1}, v{XT+3}\nv_permlane32_swap_b32 v{XT+4}, v{XT+6}\nv_permlane32_swap_b32 v{XT+5}, v{XT+7}')
    for hh in range(2):
        S(f'buffer_store_dwordx4 {v(XT+4*hh,4)}, v{vO}, {srd(SRD_OUT)}, s{sFT} offen offset:{32*hh}')

def reducer(S):
    S(f'v_lshlrev_b32 v8, 2, v{vLANE}\ns_lshl_b32 s{sT0}, s{sTB}, 8\ns_add_u32 s{sT0}, s{sT0}, {WS_FP}')
    poll(S, 8, sT0, 16, 9)
    stamp(S, 4)
    S(f's_lshl_b32 s{sT1}, s{sTB}, 16\ns_lshl_b32 s{sT2}, s{sW4}, 10\ns_add_u32 s{sT1}, s{sT1}, s{sT2}\ns_add_u32 s{sT1}, s{sT1}, {WS_KVP}')
    for rb in range(16):
        S(f's_add_u32 s{sT0}, s{sT1}, {rb*4096}')
        S(f'buffer_load_dwordx4 {v(16+4*rb,4)}, v{vL16}, {srd(SRD_WS)}, s{sT0} offen sc1')
    step = 1
    while step < 16:
        for b in range(0, 16, 2 * step):
            for i in range(4): S(f'v_add_f32 v{16+4*b+i}, v{16+4*b+i}, v{16+4*(b+step)+i}')
        step *= 2
    S(f'v_and_b32 v8, 31, v{vLANE}\nv_cmp_eq_u32 vcc, 29, v8')
    for i in range(4): S(f'v_cndmask_b32 v{16+i}, v{16+i}, 1.0, vcc')
    S('v_cvt_pk_bf16_f32 v16, v16, v17\nv_cvt_pk_bf16_f32 v17, v18, v19')
    S(f's_cmp_eq_u32 s{sW4}, 3\ns_cselect_b32 s{sT3}, -1, 0\ns_mov_b32 s{sT2}, 0')
    S(f'v_cndmask_b32 v16, v16, 0, s[{sT2}:{sT3}]\nv_cndmask_b32 v17, v17, 0, s[{sT2}:{sT3}]')
    S(f's_lshl_b32 s{sT0}, s{sTB}, 1\ns_lshr_b32 s{sT1}, s{sW4}, 1\ns_add_u32 s{sT0}, s{sT0}, s{sT1}\ns_lshl_b32 s{sT0}, s{sT0}, 10\ns_and_b32 s{sT1}, s{sW4}, 1\ns_lshl_b32 s{sT1}, s{sT1}, 3\ns_add_u32 s{sT0}, s{sT0}, s{sT1}\ns_add_u32 s{sT0}, s{sT0}, {WS_KVF}')
    S(f'buffer_store_dwordx2 v[16:17], v{vL16}, {srd(SRD_WS)}, s{sT0} offen sc1')
    S('s_waitcnt vmcnt(0)')
    S(f's_lshr_b32 s{sT0}, s{sTB}, 3\ns_lshl_b32 s{sT0}, s{sT0}, 8\ns_and_b32 s{sT1}, s{sTB}, 7\ns_lshl_b32 s{sT1}, s{sT1}, 4\ns_add_u32 s{sT0}, s{sT0}, s{sT1}\ns_lshl_b32 s{sT1}, s{sW4}, 2\ns_add_u32 s{sT0}, s{sT0}, s{sT1}\ns_add_u32 s{sT0}, s{sT0}, {WS_FK}')
    flag_store(S, sT0, 8)
    stamp(S, 5)

def build():
    assert sT2 % 2 == 0 and sT3 == sT2 + 1
    parts = []
    P = Stream(); prologue(P)
    P(f's_cmp_ge_u32 s{sWAVE}, 4\ns_cbranch_scc1 L_lwave')
    P(f's_cmp_ge_u32 s{sROLE}, 8\ns_cbranch_scc1 L_cattn')
    parts.append(finalize(P.l))
    S = Stream(); c_ffn(S); c_publish(S, False); S('s_branch L_aphase'); parts.append(finalize(S.l))
    S = Stream(); S('L_cattn:'); c_attn(S, None); c_publish(S, True)
    S(f's_cmp_eq_u32 s{sCB}, 7\ns_cbranch_scc1 L_fin'); parts.append(finalize(S.l))
    S = Stream(); S('L_aphase:\ns_nop 7\ns_nop 7'); a_phase2(S); S('s_branch L_fin'); parts.append(finalize(S.l))
    S = Stream(); S('L_lwave:')
    S(f's_cmp_ge_u32 s{sROLE}, 8\ns_cbranch_scc1 L_lattn'); l_phase1(S, True, True); S('s_branch L_fphase'); parts.append(finalize(S.l))
    S = Stream(); S('L_lattn:'); S(f's_cmp_eq_u32 s{sCB}, 7\ns_cbranch_scc1 L_lspare'); l_phase1(S, False, True); parts.append(finalize(S.l))
    S = Stream(); S('L_fphase:'); f_phase2(S); S('s_branch L_fin'); parts.append(finalize(S.l))
    S = Stream(); S('L_lspare:'); l_phase1(S, False, False); reducer(S); parts.append(finalize(S.l))
    S = Stream(); S('L_fin:'); diag_out(S); S('L_end:\ns_endpgm'); parts.append(finalize(S.l))
    hdr = open('recurrent_scan__linear_kernel_hedgehog__dense_activation_silu__prompt.s.ref').read().split('\n')
    top = [l for l in hdr[:13] if l.startswith(';') and '@launch' not in l and 'Override' not in l and 'grid=ceil' not in l]
    out = '\n'.join(top) + f'\n; @launch grid=(256,1,1) block=(512,1,1) lds={LDS_TOTAL}\n'
    out += f'.amdgcn_target "amdgcn-amd-amdhsa--gfx950"\n.text\n.globl {NAME}\n.p2align 8\n.type {NAME},@function\n{NAME}:\n'
    for p in parts: out += text(p)
    out += f'''.section .rodata,"a"
.p2align 6
.amdhsa_kernel {NAME}
  .amdhsa_next_free_vgpr 256
  .amdhsa_next_free_sgpr 102
  .amdhsa_accum_offset 256
  .amdhsa_group_segment_fixed_size 0
  .amdhsa_kernarg_size 80
  .amdhsa_user_sgpr_count 2
  .amdhsa_user_sgpr_kernarg_segment_ptr 1
  .amdhsa_system_sgpr_workgroup_id_x 1
.end_amdhsa_kernel
'''
    return out

if __name__ == '__main__':
    for a in sys.argv[2:]:
        k, _, val = a.partition('='); setattr(Opt, k, int(val) if val else True)
    open(sys.argv[1], 'w').write(build())
```

```python
import sys, struct
sys.path.insert(0, "dev")
from asmlib import *

NAME = "recurrent_scan__linear_kernel_hedgehog__dense_activation_silu__prompt_kernel"
K1 = 1024
WS_H   = 0
WS_PQ  = 64 * 112 * K1
WS_KVP = WS_PQ + 64 * 16 * 4096
WS_KVF = WS_KVP + 32 * 16 * 4096
WS_FH  = WS_KVF + 64 * K1
WS_FP  = WS_FH + 256 * 256
WS_FK  = WS_FP + 32 * 256
WS_TAG = WS_FK + 32 * 256
WS_DIAG = WS_TAG + 4096
WS_SIZE = WS_DIAG + 256 * 8 * 64
SLOT = 28 * K1
SPARE = 140 * K1
WPHI_L = 156 * K1
CTL = 160 * K1 - 512
LDS_TOTAL = 160 * K1
F_REG = 24 * K1
A_BASE = 96 * K1
A_REG = 16 * K1
EV_XFREE, EV_C0, EV_C1, EV_PK, EV_END = range(5)
CN_WO, CN_LT = 7, 8
sBND = 70
L2E = 1.4426950408889634
def f2u(x): return struct.unpack('<I', struct.pack('<f', x))[0]
def hx(x): return '0x%08x' % (x & 0xffffffff)

sWAVE, sXCD, sI, sRB, sROLE = 3, 4, 5, 6, 7
SRD_X, SRD_W, SRD_WS, SRD_W2, SRD_WO, SRD_OUT, SRD_DBG, SRD_WPHI = 8, 12, 16, 20, 24, 28, 32, 36
sTB, sCB, sIDX, sTAG, sPITCH = 40, 41, 42, 43, 44
sCOL = [45, 46, 47]
sCOLS = 48
sSEL_LO, sSEL_HI = 49, 63
sT0, sT1, sT2, sT3 = 50, 51, 52, 53
sHI = 54
sROT1, sROT2 = 56, 57
sCNT, sW4, sFT, sFS, sL2E = 58, 59, 60, 61, 62
sU0, sU1, sU2, sU3, sU4, sU5 = 64, 65, 66, 67, 68, 69
STAMP0 = 84
def srd(b): return f's[{b}:{b+3}]'
def v(a, n=1): return f'v{a}' if n == 1 else f'v[{a}:{a+n-1}]'
HI = f's[{sHI}:{sHI+1}]'

class Opt:
    diag = False
    ncen = 18
    sleep = 8
    early = False
    rot = 1
    lprio = 1
    lsleep = 1
    nodma = 0
    nosc1 = 0
    nowo = 0
    xcc = 0
    fdiag = 0
    nophi = 0
    notr = 0
    cprio = 0
    predelay = 0
    ksleep = 12

def stamp(S, k):
    if not Opt.diag: return
    if isinstance(k, str):
        if not Opt.early: return
        k = int(k[1:])
    elif Opt.early and 3 <= k < 15: return
    S(f'{"s_memtime" if Opt.diag == 2 else "s_memrealtime"} s[100:101]\ns_waitcnt lgkmcnt(0)\ns_mov_b32 s{STAMP0+k}, s100')

def diag_out(S):
    if not Opt.diag: return
    S('s_waitcnt vmcnt(0) lgkmcnt(0)')
    stamp(S, 15)
    if Opt.xcc: S(f's_getreg_b32 s{STAMP0+11}, hwreg(HW_REG_XCC_ID)\ns_getreg_b32 s{STAMP0+12}, hwreg(HW_REG_HW_ID)')
    for k in range(16): S(f'v_mov_b32 v{16+k}, s{STAMP0+k}')
    S(f's_lshl_b32 s{sT0}, s2, 3\ns_add_u32 s{sT0}, s{sT0}, s{sWAVE}\ns_lshl_b32 s{sT0}, s{sT0}, 6\ns_add_u32 s{sT0}, s{sT0}, {WS_DIAG}')
    S('v_mov_b32 v40, 0\ns_mov_b64 exec, 1')
    for k in range(4): S(f'buffer_store_dwordx4 v[{16+4*k}:{19+4*k}], v40, {srd(SRD_WS)}, s{sT0} offen offset:{16*k}')

def half_base(h): return ((h + 4) % 5) * SLOT

_lab = [0]
def newlab(p):
    _lab[0] += 1; return f'L_{p}{_lab[0]}'
def RAW(t):
    i = Ins(t); i.kind = 'salu'; i.rd = set(); i.wr = set(); return i
def raw(S, t):
    for l in t.split('\n'):
        S.l.append(Ins(l) if l.endswith(':') else RAW(l))

vCTL, vLANE, vL16 = 0, 1, 2
def prologue(S):
    S(f's_cmp_ge_u32 s2, 256\ns_cbranch_scc1 L_end')
    if Opt.diag:
        for k in range(16): S(f's_mov_b32 s{STAMP0+k}, 0')
    stamp(S, 0)
    S('s_load_dwordx16 s[64:79], s[0:1], 0\ns_load_dwordx4 s[80:83], s[0:1], 64')
    S(f'v_lshrrev_b32 v3, 6, v0\nv_and_b32 v{vLANE}, 63, v0\nv_readfirstlane_b32 s{sWAVE}, v3\nv_lshlrev_b32 v{vL16}, 4, v{vLANE}')
    S(f'v_lshlrev_b32 v4, 3, v{vLANE}\nv_add_u32 v4, {CTL}, v4\nv_mov_b32 v6, 0\nv_mov_b32 v7, 0\nds_write_b64 v4, v[6:7]')
    S(f's_and_b32 s{sXCD}, s2, 7\ns_lshr_b32 s{sI}, s2, 3')
    S(f's_lshr_b32 s{sRB}, s{sXCD}, 1\ns_lshl_b32 s{sRB}, s{sRB}, 2\ns_and_b32 s{sT3}, s{sI}, 3\ns_add_u32 s{sRB}, s{sRB}, s{sT3}')
    S(f's_lshl_b32 s{sTB}, s{sXCD}, 2\ns_add_u32 s{sTB}, s{sTB}, s{sT3}\ns_lshr_b32 s{sCB}, s{sI}, 2')
    S(f's_and_b32 s{sIDX}, s{sXCD}, 1\ns_lshl_b32 s{sIDX}, s{sIDX}, 2\ns_and_b32 s{sT0}, s{sCB}, 3\ns_add_u32 s{sIDX}, s{sIDX}, s{sT0}')
    S(f's_and_b32 s{sT0}, s{sCB}, 4\ns_lshl_b32 s{sT0}, s{sT0}, 1\ns_add_u32 s{sROLE}, s{sIDX}, s{sT0}')
    S(f's_and_b32 s{sW4}, s{sWAVE}, 3')
    S(f's_lshl_b32 s{sT0}, s{sW4}, 2\ns_add_u32 s{sT0}, s{sT0}, {CTL}\nv_mov_b32 v{vCTL}, s{sT0}')
    if Opt.rot:
        S(f's_lshl_b32 s{sROT1}, s{sT3}, 1\ns_add_u32 s{sROT1}, s{sROT1}, s{sCB}\ns_sub_u32 s{sT0}, s{sROT1}, 7\ns_cmp_ge_u32 s{sROT1}, 7\ns_cselect_b32 s{sROT1}, s{sT0}, s{sROT1}')
        S(f's_mul_i32 s{sROT2}, s{sT3}, 7\ns_lshl_b32 s{sT0}, s{sCB}, 2\ns_add_u32 s{sROT2}, s{sROT2}, s{sT0}\ns_sub_u32 s{sT0}, s{sROT2}, 28\ns_cmp_ge_u32 s{sROT2}, 28\ns_cselect_b32 s{sROT2}, s{sT0}, s{sROT2}')
    else:
        S(f's_mov_b32 s{sROT1}, 0\ns_mov_b32 s{sROT2}, 0')
    S(f's_mov_b32 s{sHI}, 0\ns_mov_b32 s{sHI+1}, -1\ns_mov_b32 s{sL2E}, {hx(f2u(L2E))}')
    S(f's_mul_i32 s{sT0}, s{sIDX}, 448\ns_and_b32 s{sT1}, s{sIDX}, 1\ns_lshl_b32 s{sT2}, s{sT1}, 6\ns_add_u32 s{sT2}, s{sT2}, s{sT0}')
    S(f's_mul_i32 s{sT1}, s{sT1}, 384\ns_sub_u32 s{sCOLS}, s{sT0}, s{sT1}\ns_add_u32 s{sCOLS}, s{sCOLS}, 384')
    S(f's_mul_i32 s{sT0}, s{sIDX}, 112')
    S(f's_add_u32 s{sT1}, s{sT0}, 896\ns_add_u32 s{sT3}, s{sT0}, 1792\ns_add_u32 s{sCOL[1]}, s{sT2}, 128\ns_add_u32 s{sCOL[2]}, s{sT2}, 256')
    S(f's_movk_i32 s{sPITCH}, 3584\ns_cmp_ge_u32 s{sROLE}, 8')
    S(f's_cselect_b32 s{sCOL[0]}, s{sT1}, s{sT2}\ns_cselect_b32 s{sPITCH}, 2688, s{sPITCH}')
    S(f's_cselect_b32 s{sCOL[1]}, s{sT3}, s{sCOL[1]}\ns_cselect_b32 s{sCOL[2]}, s{sT0}, s{sCOL[2]}')
    for b, size in ((SRD_X, 2048 * 896), (SRD_WS, WS_SIZE), (SRD_W2, 1792 * 896), (SRD_WO, 448 * 896), (SRD_OUT, 2048 * 896), (SRD_DBG, 256), (SRD_WPHI, 16 * 1568)):
        S(f's_mov_b32 s{b+2}, {size}\ns_mov_b32 s{b+3}, 0x20000')
    S(f's_mul_i32 s{SRD_W+2}, s{sPITCH}, 448\ns_mov_b32 s{SRD_W+3}, 0x20000')
    stamp(S, 'e3')
    S('s_waitcnt lgkmcnt(0)')
    stamp(S, 'e4')
    for b, lo in ((SRD_X, 64), (SRD_WS, 82), (SRD_W2, 76), (SRD_WO, 70), (SRD_OUT, 78), (SRD_DBG, 80), (SRD_WPHI, 68)):
        S(f's_mov_b64 s[{b}:{b+1}], s[{lo}:{lo+1}]')
    S(f's_cmp_ge_u32 s{sROLE}, 8\ns_cselect_b64 s[{SRD_W}:{SRD_W+1}], s[66:67], s[74:75]')
    S('s_barrier')

TAGW = 320
def tag_fetch_l0(S):
    a, b = newlab('tf'), newlab('tf')
    S(f's_cmp_lg_u32 s{sW4}, 0\ns_cbranch_scc1 {b}')
    raw(S, f's_mov_b32 s{sBND}, 0\nv_mov_b32 v15, 0\n{a}:\nbuffer_load_dword v14, v15, {srd(SRD_DBG)}, 0 offen sc1\ns_waitcnt vmcnt(0)\nv_readfirstlane_b32 s{sTAG}, v14\ns_add_u32 s{sBND}, s{sBND}, 1\n'
           f's_max_u32 s{sCNT}, s{sBND}, 0x20000\ns_sub_u32 s{sCNT}, s{sCNT}, 0x20000\ns_or_b32 s{sTAG}, s{sTAG}, s{sCNT}\ns_cmp_eq_u32 s{sTAG}, 0\ns_cbranch_scc1 {a}\n'
           f'v_mov_b32 v14, s{sTAG}\ns_mov_b64 exec, 15\nds_write_b32 v{vLC}, v14 offset:{TAGW}\ns_mov_b64 exec, -1\ns_waitcnt lgkmcnt(0)\n{b}:')
def tag_prefetch(S, vt):
    S(f'ds_read_b32 v{vt}, v{vCTL} offset:{TAGW}')
def tag_get(S, vt):
    a, b = newlab('tg'), newlab('tg')
    S(f'v_readfirstlane_b32 s{sTAG}, v{vt}')
    S(f's_cmp_lg_u32 s{sTAG}, 0\ns_cbranch_scc1 {b}')
    raw(S, f'{a}:\nds_read_b32 v{vt}, v{vCTL} offset:{TAGW}\ns_sleep 1\ns_waitcnt lgkmcnt(0)\nv_readfirstlane_b32 s{sTAG}, v{vt}\ns_nop 0\ns_cmp_eq_u32 s{sTAG}, 0\ns_cbranch_scc1 {a}\n{b}:')

def poll(S, voff, soff, nl, vt, sleep=None):
    a, b = newlab('pl'), newlab('pl')
    S(f's_mov_b64 exec, {hex((1 << nl) - 1)}\ns_mov_b32 s{sCNT}, 0')
    S(f'{a}:')
    S(f'buffer_load_dword v{vt}, v{voff}, {srd(SRD_WS)}, s{soff} offen sc1')
    S('s_waitcnt vmcnt(0)')
    S(f'v_cmp_ne_u32 vcc, s{sTAG}, v{vt}')
    S(f's_add_u32 s{sCNT}, s{sCNT}, 1\ns_cbranch_vccz {b}\ns_cmp_gt_u32 s{sCNT}, 0x20000\ns_cbranch_scc1 {b}\ns_sleep {sleep or Opt.sleep}\ns_branch {a}')
    S(f'{b}:')
    S('s_mov_b64 exec, -1')

def flag_store(S, soff, vt, n=1, shift=8):
    S(f'v_mov_b32 v{vt}, s{sTAG}\nv_lshlrev_b32 v{vt+1}, {shift}, v{vLANE}\ns_mov_b64 exec, {(1 << n) - 1}')
    S(f'buffer_store_dword v{vt}, v{vt+1}, {srd(SRD_WS)}, s{soff} offen sc1')
    S('s_mov_b64 exec, -1')

def c_signal(ev):
    return [Ins(f'ds_write_b32 v{vCTL}, v{vCTL} offset:{16*ev}')]
def cnt_read(idx, vt):
    return [Ins(f'ds_read_b32 v{vt}, v{vCTL} offset:{128 + 16*idx}')]
def cnt_check(idx, vt, sleep=0):
    S = Stream(); a, b = newlab('ck'), newlab('ck')
    S(f'v_readfirstlane_b32 s{sCNT}, v{vt}\ns_cmp_ge_u32 s{sCNT}, 4\ns_cbranch_scc1 {b}')
    raw(S, f's_mov_b32 s{sBND}, 0\n{a}:\nds_read_b32 v{vt}, v{vCTL} offset:{128 + 16*idx}\ns_add_u32 s{sBND}, s{sBND}, 1\ns_cmp_gt_u32 s{sBND}, 0x40000\ns_cbranch_scc1 {b}\ns_sleep {sleep}\ns_waitcnt lgkmcnt(0)\nv_readfirstlane_b32 s{sCNT}, v{vt}\ns_nop 0\ns_cmp_lt_u32 s{sCNT}, 4\ns_cbranch_scc1 {a}\n{b}:')
    return S.l
vLC, vLONE, vLP = 11, 12, 188
def l_signal(S, idx):
    S(f's_mov_b64 exec, 15\nds_add_u32 v{vLC}, v{vLONE} offset:{128 + 16*idx}\ns_mov_b64 exec, -1')
def l_wait(S, ev):
    a, b = newlab('lw'), newlab('lw')
    S('s_waitcnt lgkmcnt(0)')
    raw(S, f's_mov_b32 s{sBND}, 0\n{a}:\nds_read_b128 v[{vLP}:{vLP+3}], v{vLP+4} offset:{16*ev}\ns_add_u32 s{sBND}, s{sBND}, 1\ns_cmp_gt_u32 s{sBND}, 0x40000\ns_cbranch_scc1 {b}\ns_sleep {Opt.lsleep}\ns_waitcnt lgkmcnt(0)\nv_min3_u32 v{vLP}, v{vLP}, v{vLP+1}, v{vLP+2}\nv_min_u32 v{vLP}, v{vLP}, v{vLP+3}\ns_nop 0\nv_readfirstlane_b32 s{sCNT}, v{vLP}\ns_nop 0\ns_cmp_eq_u32 s{sCNT}, 0\ns_cbranch_scc1 {a}\n{b}:\ns_waitcnt lgkmcnt(0)')

X0 = 16; ACC = [[128, 144], [160, 176]]; AF = 192; WPHI = 216; T = 232; U = 240; TT = 248
vVA = [3, 4]; vWA = [5, 6]; vVS = 7; vR, vRM, vNRL, vSD, vCT, vNM = 8, 9, 10, 11, 12, 13; vTAG = 14

def lane_consts_tr(S, dst, tmp, cstride, rowmap):
    t0, t1, t2 = tmp, tmp + 1, tmp + 2
    S(f'v_bfe_u32 v{t0}, v{vLANE}, 2, 2')
    S(f'v_lshrrev_b32 v{t1}, 5, v{vLANE}')
    S(f'v_lshlrev_b32 v{t1}, {10 if rowmap == "A" else 9}, v{t1}\nv_lshl_add_u32 v{t1}, v{t0}, 7, v{t1}')
    S(f'v_bfe_u32 v{t0}, v{vLANE}, 3, 1\nv_lshlrev_b32 v{t0}, 6, v{t0}')
    S(f'v_bfe_u32 v{t2}, v{vLANE}, 4, 1\nv_lshlrev_b32 v{t2}, 5, v{t2}\nv_and_b32 v{dst[0]}, 3, v{vLANE}\nv_lshl_add_u32 v{t2}, v{dst[0]}, 3, v{t2}')
    S(f'v_xor_b32 v{dst[0]}, v{t2}, v{t0}\nv_add_u32 v{dst[0]}, v{dst[0]}, v{t1}')
    S(f'v_add_u32 v{t2}, {cstride}, v{t2}\nv_xor_b32 v{dst[1]}, v{t2}, v{t0}\nv_add_u32 v{dst[1]}, v{dst[1]}, v{t1}')

def trb(St, dst, hfshift, pitch, tmp):
    St(f'v_lshrrev_b32 v{tmp}, 5, v{vLANE}\nv_lshlrev_b32 v{tmp}, {hfshift}, v{tmp}\nv_bfe_u32 v{dst}, v{vLANE}, 2, 2\nv_add_u32 v{tmp}, v{tmp}, v{dst}\nv_mul_u32_u24 v{dst}, {pitch}, v{tmp}')
    St(f'v_bfe_u32 v{tmp}, v{vLANE}, 4, 1\nv_lshl_add_u32 v{dst}, v{tmp}, 5, v{dst}\nv_and_b32 v{tmp}, 3, v{vLANE}\nv_lshl_add_u32 v{dst}, v{tmp}, 3, v{dst}')

def wrap_inc(S, reg, inc, lim):
    S(f's_add_u32 s{reg}, s{reg}, {inc}\ns_cmp_eq_u32 s{reg}, {lim}\ns_cselect_b32 s{reg}, 0, s{reg}')

def c_load_x(S):
    a, b = T, T + 1
    S(f'v_lshrrev_b32 v{T+2}, 3, v{vLANE}\nv_mul_u32_u24 v{a}, 896, v{T+2}')
    S(f'v_lshrrev_b32 v{T+2}, 4, v{vLANE}\nv_and_b32 v{T+3}, 7, v{vLANE}\nv_xor_b32 v{T+2}, v{T+2}, v{T+3}\nv_lshl_add_u32 v{a}, v{T+2}, 4, v{a}\nv_xor_b32 v{b}, 64, v{a}')
    S(f'v_add_u32 v{b}, {8*896}, v{b}\nv_add_u32 v{T+2}, {16*896}, v{a}\nv_add_u32 v{T+3}, {16*896}, v{b}')
    S(f's_lshl_b32 s{sT0}, s{sRB}, 2\ns_add_u32 s{sT0}, s{sT0}, s{sWAVE}\ns_mul_i32 s{sT0}, s{sT0}, {32*896}')
    S(f's_mul_i32 s{sT1}, s{sWAVE}, {SLOT}\ns_lshl_b32 s{sT3}, s{sROT1}, 7')
    for lc in range(7):
        S(f's_add_u32 s{sT2}, s{sT0}, s{sT3}')
        for g in range(4):
            S(f's_add_u32 m0, s{sT1}, {lc*4096 + g*1024}')
            if g == 0 and lc < 6: wrap_inc(S, sT3, 128, 896)
            S(f'buffer_load_dwordx4 v{T+g}, {srd(SRD_X)}, s{sT2} offen lds', tok=('x', lc))
    stamp(S, 'e5')
    xa = T + 4
    S(f'v_and_b32 v{TT}, 31, v{vLANE}\nv_bfe_u32 v{TT+1}, v{vLANE}, 1, 3\nv_lshrrev_b32 v{xa}, 5, v{vLANE}\nv_xor_b32 v{TT+1}, v{TT+1}, v{xa}')
    S(f'v_lshlrev_b32 v{TT+1}, 4, v{TT+1}\nv_lshl_add_u32 v{xa}, v{TT}, 7, v{TT+1}\nv_add_u32 v{xa}, s{sT1}, v{xa}')
    for q in range(1, 4): S(f'v_xor_b32 v{xa+q}, {q*32}, v{xa}')
    S(f's_mov_b32 s{sSEL_LO}, 0x00003f80\ns_mov_b32 s{sSEL_HI}, 0x3f800000')
    S(f's_cmp_ge_u32 s{sROLE}, 8\ns_cselect_b32 s{sT0}, 56, 64')
    lane_consts_tr(S, vVA, TT, f's{sT0}', 'A')
    sA, sB, qA, qB, one = U, U + 1, U + 2, U + 3, U + 4
    S(f'v_mov_b32 v{sA}, 0\nv_mov_b32 v{sB}, 0\nv_mov_b32 v{qA}, 0\nv_mov_b32 v{qB}, 0\nv_mov_b32 v{one}, 0x3f803f80')
    def stats(lc):
        for q in range(4):
            for j in range(4):
                r = X0 + (lc * 4 + q) * 4 + j
                S(f'v_dot2c_f32_bf16 v{sA + (j & 1)}, v{r}, v{one}\nv_dot2c_f32_bf16 v{qA + (j & 1)}, v{r}, v{r}')
    for lc in range(7):
        S.wait(('x', lc))
        if lc in (0, 3, 6): stamp(S, 'e%d' % (6 + lc // 3))
        for q in range(4):
            S(f'ds_read_b128 {v(X0 + (lc*4+q)*4, 4)}, v{xa+q} offset:{lc*4096}')
        if lc == 6: S.ext(c_signal(EV_XFREE))
        if lc > 0: stats(lc - 1)
    stamp(S, 1)
    stats(6)
    t = U + 5
    S(f'v_add_f32 v{sA}, v{sA}, v{sB}\nv_add_f32 v{qA}, v{qA}, v{qB}\nv_mov_b32 v{sB}, v{sA}\nv_mov_b32 v{qB}, v{qA}')
    S(f'v_permlane32_swap_b32 v{sA}, v{sB}\nv_permlane32_swap_b32 v{qA}, v{qB}')
    S(f'v_add_f32 v{sA}, v{sA}, v{sB}\nv_add_f32 v{qA}, v{qA}, v{qB}')
    inv = hx(f2u(1.0 / 448))
    S(f'v_mul_f32 v{sA}, {inv}, v{sA}\nv_mul_f32 v{qA}, {inv}, v{qA}')
    S(f'v_fma_f32 v{qA}, -v{sA}, v{sA}, v{qA}\nv_max_f32 v{qA}, 0, v{qA}')
    S(f'v_cvt_pk_bf16_f32 v{t}, v{sA}, v{qA}')
    S(f'v_lshlrev_b32 v{vNM}, 16, v{t}\nv_xor_b32 v{vNM}, 0x80000000, v{vNM}')
    R = Stream()
    R(f'v_and_b32 v{qA}, 0xffff0000, v{t}\nv_add_f32 v{qA}, {hx(f2u(1e-5))}, v{qA}')
    R(f'v_cvt_pk_bf16_f32 v{t}, v{qA}, v{qA}\nv_and_b32 v{qA}, 0xffff0000, v{t}\nv_sqrt_f32 v{qA}, v{qA}')
    R(f'v_nop\nv_cvt_pk_bf16_f32 v{t}, v{qA}, v{qA}\nv_and_b32 v{vSD}, 0xffff0000, v{t}\nv_rcp_f32 v{vR}, v{vSD}')
    R(f'v_nop\nv_mul_f32 v{vNRL}, {hx(f2u(-L2E))}, v{vR}\nv_cndmask_b32 v{vRM}, v{vR}, 0, {HI}')
    return R.l

def center(s):
    S = Stream()
    for j in range(4):
        r = X0 + s * 4 + j
        a, b = TT + 2 * j, TT + 2 * j + 1
        S(f'v_dot2_f32_bf16 v{a}, v{r}, s{sSEL_LO}, v{vNM}\nv_dot2_f32_bf16 v{b}, v{r}, s{sSEL_HI}, v{vNM}')
    for j in range(4):
        r = X0 + s * 4 + j
        S(f'v_cvt_pk_bf16_f32 v{r}, v{TT+2*j}, v{TT+2*j+1}')
    return S.l
def center5(s):
    S = Stream()
    for j in range(4):
        r = X0 + s * 4 + j
        a, b = TT + 2 * j, TT + 2 * j + 1
        S(f'v_lshlrev_b32 v{a}, 16, v{r}\nv_and_b32 v{b}, 0xffff0000, v{r}\nv_add_f32 v{a}, v{a}, v{vNM}\nv_add_f32 v{b}, v{b}, v{vNM}')
        S(f'v_cvt_pk_bf16_f32 v{r}, v{a}, v{b}')
    return S.l

def silu_tile(acc, u, soff, tok):
    S = Stream()
    for g in range(4):
        a = acc + 4 * g
        for i in range(4): S(f'v_mul_f32 v{TT+i}, v{a+i}, v{vNRL}')
        for i in range(4): S(f'v_exp_f32 v{TT+i}, v{TT+i}')
        for i in range(4): S(f'v_fma_f32 v{TT+i}, v{TT+i}, v{vSD}, v{vSD}')
        for i in range(4): S(f'v_rcp_f32 v{TT+i}, v{TT+i}')
        for i in range(4): S(f'v_mul_f32 v{TT+4+i}, v{a+i}, v{TT+i}')
        S(f'v_cvt_pk_bf16_f32 v{u+2*g}, v{TT+4}, v{TT+5}\nv_cvt_pk_bf16_f32 v{u+2*g+1}, v{TT+6}, v{TT+7}')
        if g % 2 == 1:
            S(f'buffer_store_dwordx4 {v(u + 4*(g//2), 4)}, v{vL16}, {srd(SRD_WS)}, s{soff[0]} offen offset:{soff[1] + 1024*(g//2)} sc1', tok=tok)
    return S.l

def part(f, s, lo, hi):
    n = len(f); k = hi - lo + 1
    return f[(s - lo) * n // k:(s - lo + 1) * n // k]

class Steps:
    def __init__(self, single):
        self.steps = []
        for st in range(3):
            for s in range(28):
                h = st * 2 + s // 14; sp = s % 14
                self.steps.append(dict(st=st, s=s, nt=2, h=h, off=sp * 2048, first=(sp == 0), last=(sp == 13)))
        if single:
            for s in range(28):
                self.steps.append(dict(st=3, s=s, nt=1, h=6, off=s * K1, first=(s == 0), last=False))
    def reads(self, n):
        if n >= len(self.steps): return [], []
        p = self.steps[n]; S = Stream(); pre = Stream()
        ring = AF + (n % 3) * 8
        if p['first']:
            pre.ext(cnt_check(p['h'], vCT))
            if p['nt'] == 2:
                b = half_base(p['h'])
                pre(f'v_add_u32 v{vWA[0]}, {b}, v{vVA[0]}\nv_add_u32 v{vWA[1]}, {b}, v{vVA[1]}')
        if p['nt'] == 2:
            for c in range(2):
                for u in range(2):
                    S(f'ds_read_b64_tr_b16 {v(ring + 4*c + 2*u, 2)}, v{vWA[c]} offset:{p["off"] + 512*u}', tok=('a', n))
        else:
            for u in range(2):
                S(f'ds_read_b64_tr_b16 {v(ring + 2*u, 2)}, v{vVS} offset:{p["off"] + 256*u}', tok=('a', n))
        if p['last'] and p['h'] < 2: S.ext(c_signal(EV_C0 + p['h']))
        if n + 2 < len(self.steps) and self.steps[n + 2]['first']:
            S.ext(cnt_read(self.steps[n + 2]['h'], vCT))
        return pre.l, S.l
    def mfmas(self, n):
        p = self.steps[n]; ring = AF + (n % 3) * 8; out = []
        for c in range(p['nt']):
            acc = ACC[p['st'] % 2][c]
            C = '0' if p['s'] == 0 else v(acc, 16)
            out.append(Ins(f'v_mfma_f32_32x32x16_bf16 {v(acc,16)}, {v(ring+4*c,4)}, {v(X0+4*p["s"],4)}, {C}'))
        return out
    def stage(self, st, fill=None, perstep=None, mid=None):
        idx = [n for n, p in enumerate(self.steps) if p['st'] == st]
        groups = []
        for n in idx:
            p = self.steps[n]
            pre, rd = self.reads(n + 2)
            m = self.mfmas(n)
            g = []
            if mid and p['s'] in mid: g += mid[p['s']]
            on = p['s'] > 0 or perstep
            w = Stream(); w.wait(('a', n + 1))
            if p['nt'] == 2:
                g += [m[0]] + pre + rd + ([None] * 2 if on else []) + [m[1]] + w.l + ([None] * 5 if on else [])
            else:
                g += [m[0]] + pre + rd + ([None] * 3 if on else [])
            if perstep: g = interleave([g], perstep(p['s']))
            groups.append(g)
        if perstep: return [x for g in groups for x in g]
        return interleave(groups, fill)

def c_common(S):
    if Opt.cprio: S('s_setprio 2')
    rest = c_load_x(S)
    S.ext(cnt_read(0, vCT))
    for s in range(Opt.ncen): S.ext(center(s))
    P = Steps(True)
    for n in range(2):
        pre, rd = P.reads(n); S.ext(pre); S.ext(rd)
    stamp(S, 2)
    f = []
    for s in range(Opt.ncen, 28): f += center5(s)
    S.ext(P.stage(0, perstep=lambda s: part(f, s, 0, 25) if s < 26 else (rest if s == 26 else [])))
    stamp(S, 3)

def c_ffn(S):
    P = Steps(True)
    e = Stream(); t = T
    trb(e, vVS, 3, 64, t)
    e(f's_lshl_b32 s{sT0}, s{sRB}, 2\ns_add_u32 s{sT0}, s{sT0}, s{sWAVE}\ns_mul_i32 s{sT0}, s{sT0}, {112*K1}')
    e(f's_mul_i32 s{sT1}, s{sIDX}, 7\ns_and_b32 s{sT2}, s{sIDX}, 1\ns_add_u32 s{sT3}, s{sT1}, s{sT2}\ns_lshl_b32 s{sT3}, s{sT3}, 11\ns_add_u32 s{sFT}, s{sT0}, s{sT3}')
    e(f's_mul_i32 s{sT2}, s{sT2}, 6\ns_sub_u32 s{sT1}, s{sT1}, s{sT2}\ns_add_u32 s{sT1}, s{sT1}, 6\ns_lshl_b32 s{sT1}, s{sT1}, 11\ns_add_u32 s{sFS}, s{sT0}, s{sT1}')
    for st in (1, 2, 3):
        pa = ACC[(st - 1) % 2]
        fill = (e.l if st == 1 else []) + [Ins(f's_add_u32 s{sT0}, s{sFT}, {(st-1)*4096}')]
        fill += silu_tile(pa[0], T, (sT0, 0), 'st') + silu_tile(pa[1], U, (sT0, 2048), 'st')
        if st == 3:
            t = Stream(); tag_prefetch(t, vTAG); fill = fill + t.l
        S.ext(P.stage(st, fill))
        stamp(S, 3 + st)
    S.ext(silu_tile(ACC[1][0], T, (sFS, 0), 'st'))

def minmax(S, X, mx, mn, t0, t1):
    for op, d in (('v_max3_f32', mx), ('v_min3_f32', mn)):
        S(f'{op} v{d}, v{X}, v{X+1}, v{X+2}')
        for i in range(3, 15, 2): S(f'{op} v{d}, v{d}, v{X+i}, v{X+i+1}')
    S(f'v_max_f32 v{mx}, v{mx}, v{X+15}\nv_min_f32 v{mn}, v{mn}, v{X+15}')
    S(f'v_mov_b32 v{t0}, v{mx}\nv_mov_b32 v{t1}, v{mn}\nv_permlane32_swap_b32 v{mx}, v{t0}\nv_permlane32_swap_b32 v{mn}, v{t1}')
    S(f'v_max_f32 v{mx}, v{mx}, v{t0}\nv_min_f32 v{mn}, v{mn}, v{t1}')
    S(f'v_mul_f32 v{mx}, {hx(f2u(-L2E))}, v{mx}\nv_mul_f32 v{mn}, {hx(f2u(L2E))}, v{mn}')

LX, LE, LT = 144, 160, 176
vLPW, vLMK, vLL2E, vLRD = 184, 185, 186, 187
def softmax_k(c):
    S = Stream()
    rw = LE
    S(f'ds_read_b128 {v(rw,4)}, v{vLRD} offset:{c*2048}\nds_read_b128 {v(rw+4,4)}, v{vLRD} offset:{c*2048+1024}')
    for i in range(8): S(f'v_lshlrev_b32 v{LX+2*i}, 16, v{rw+i}\nv_and_b32 v{LX+2*i+1}, 0xffff0000, v{rw+i}')
    mx, mn, t0, t1 = LT, LT + 1, LT + 2, LT + 3
    minmax(S, LX, mx, mn, t0, t1)
    for sign in range(2):
        E = LE if sign == 0 else LX
        for i in range(16):
            if sign == 0: S(f'v_fma_f32 v{E+i}, v{LX+i}, v{vLL2E}, v{mx}')
            else: S(f'v_fma_f32 v{E+i}, -v{LX+i}, v{vLL2E}, v{mn}')
        for i in range(16): S(f'v_exp_f32 v{E+i}, v{E+i}')
        s0, s1 = LT + 4, LT + 5
        S(f'v_add_f32 v{s0}, v{E}, v{E+1}\nv_add_f32 v{s1}, v{E+12}, v{E+13}')
        for i in range(2, 12): S(f'v_add_f32 v{s0}, v{s0}, v{E+i}')
        S(f'v_add_f32 v{s1}, v{s1}, v{E+14}\nv_add_f32 v{s1}, v{s1}, v{E+15}\nv_fmac_f32 v{s0}, v{s1}, v{vLMK}')
        S(f'v_mov_b32 v{s1}, v{s0}\nv_permlane32_swap_b32 v{s0}, v{s1}\nv_add_f32 v{s0}, v{s0}, v{s1}\nv_rcp_f32 v{s0}, v{s0}')
        for i in range(16): S(f'v_mul_f32 v{E+i}, v{E+i}, v{s0}')
        for i in range(8): S(f'v_cvt_pk_bf16_f32 v{E+i}, v{E+2*i}, v{E+2*i+1}')
        for qd in range(4):
            if qd == 3: S(f's_mov_b64 exec, 0xffffffff')
            S(f'ds_write_b64 v{vLPW}, {v(E+2*qd, 2)} offset:{c*14336 + sign*56 + qd*16}')
            if qd == 3: S(f's_mov_b64 exec, -1')
    return S.l

def scale_pack(acc, dst, masked=True):
    S = Stream()
    for i in range(16): S(f'v_mul_f32 v{acc+i}, v{acc+i}, v{vRM if (masked and i >= 12) else vR}')
    for i in range(8): S(f'v_cvt_pk_bf16_f32 v{dst+i}, v{acc+2*i}, v{acc+2*i+1}')
    return S.l

def phi_mfma(acc, c, b):
    return [Ins(f'v_mfma_f32_32x32x16_bf16 {v(acc,16)}, {v(WPHI+8*c,4)}, {v(b,4)}, 0'),
            Ins(f'v_mfma_f32_32x32x16_bf16 {v(acc,16)}, {v(WPHI+8*c+4,4)}, {v(b+4,4)}, {v(acc,16)}')]

def c_attn(S):
    vHO, vVW, vWP = vVS, vNRL, vSD
    P = Steps(False)
    e = Stream(); t = TT
    trb(e, vWP, 2, 56, t)
    e(f'v_add_u32 v{vWP}, {WPHI_L}, v{vWP}')
    for c in range(2):
        for st in range(2):
            for u in range(2):
                e(f'ds_read_b64_tr_b16 {v(WPHI + 8*c + 4*st + 2*u, 2)}, v{vWP} offset:{c*1568 + (16*st + 8*u)*56}')
    e(f's_lshl_b32 s{sT0}, s{sWAVE}, 12\ns_add_u32 s{sT0}, s{sT0}, {SPARE}\nv_add_u32 v{vHO}, s{sT0}, v{vL16}')
    ka = ACC[0]
    f1 = e.l + scale_pack(ka[0], T) + scale_pack(ka[1], T + 8)
    t = Stream()
    for c in range(2):
        d = T + 8 * c
        for i in range(8): t(f'v_cvt_pk_bf16_f32 v{d+i}, v{ka[c]+2*i}, v{ka[c]+2*i+1}')
        t(f'v_cndmask_b32 v{d+6}, v{d+6}, v{d+4}, {HI}\nv_cndmask_b32 v{d+7}, v{d+7}, v{d+5}, {HI}')
        t(f'ds_write_b128 v{vHO}, {v(d,4)} offset:{c*2048}\nds_write_b128 v{vHO}, {v(d+4,4)} offset:{c*2048+1024}')
    f2 = t.l + c_signal(EV_PK)
    kA, kB = TT + 1, TT + 2
    t = Stream()
    trb(t, kA, 3, 112, TT + 3); trb(t, kB, 3, 72, TT + 3)
    t(f's_lshr_b32 s{sT0}, s{sWAVE}, 1\ns_and_b32 s{sT1}, s{sWAVE}, 1\ns_mul_i32 s{sT2}, s{sT0}, 14336\ns_mul_i32 s{sT3}, s{sT1}, 56\ns_add_u32 s{sT2}, s{sT2}, s{sT3}\nv_add_u32 v{kA}, s{sT2}, v{kA}')
    t(f's_mul_i32 s{sT2}, s{sT0}, 9216\ns_add_u32 s{sT2}, s{sT2}, {SLOT}\nv_add_u32 v{kB}, s{sT2}, v{kB}')
    t(f'v_and_b32 v{TT+3}, 31, v{vLANE}\ns_lshl_b32 s{sT0}, s{sWAVE}, 5\nv_add_u32 v{TT+3}, s{sT0}, v{TT+3}\nv_lshrrev_b32 v{TT+4}, 5, v{vLANE}\nv_lshlrev_b32 v{TT+4}, 3, v{TT+4}')
    t(f'v_mul_u32_u24 v{vVW}, 72, v{TT+3}\nv_add_u32 v{vVW}, v{vVW}, v{TT+4}\nv_add_u32 v{vVW}, {SLOT}, v{vVW}')
    t(f'v_mov_b32 v{TT}, 0x3f80')
    t(f's_lshl_b32 s{sFT}, s{sIDX}, 2\ns_add_u32 s{sFT}, s{sFT}, s{sWAVE}\ns_lshl_b32 s{sFS}, s{sFT}, 8\ns_lshl_b32 s{sFT}, s{sFT}, 4\ns_add_u32 s{sFT}, s{sFT}, s{sRB}\ns_lshl_b32 s{sFT}, s{sFT}, 12\ns_add_u32 s{sFT}, s{sFT}, {WS_KVP}')
    t(f's_lshl_b32 s{sT0}, s{sRB}, 2\ns_add_u32 s{sFS}, s{sFS}, s{sT0}\ns_add_u32 s{sFS}, s{sFS}, {WS_FP}')
    f3 = t.l
    def ps1(s):
        if 1 <= s <= 8: return part(f1, s, 1, 8)
        if 11 <= s <= 13: return part(f2, s, 11, 13)
        if 15 <= s <= 24: return part(f3, s, 15, 24)
        return []
    S.ext(P.stage(1, perstep=ps1, mid={9: phi_mfma(ka[0], 0, T) + phi_mfma(ka[1], 1, T + 8)}))
    stamp(S, 4)
    va = ACC[1]
    t = Stream()
    for c in range(2):
        t.ext(scale_pack(va[c], T + 8 * c, masked=False))
        d = T + 8 * c
        t(f'v_cndmask_b32 v{d+6}, v{d+6}, v{TT}, {HI}\nv_cndmask_b32 v{d+7}, v{d+7}, 0, {HI}')
        for qd in range(4): t(f'ds_write_b64 v{vVW}, {v(d+2*qd, 2)} offset:{c*9216 + qd*16}')
    vfill = t.l
    bufs = [va[1], va[1] + 8, T, T + 8]
    def kvread(ts):
        kv = Stream(); b = bufs[ts % 4]
        for u in range(2): kv(f'ds_read_b64_tr_b16 {v(b + 2*u, 2)}, v{kA} offset:{(16*ts + 4*u)*112}')
        for u in range(2): kv(f'ds_read_b64_tr_b16 {v(b + 4 + 2*u, 2)}, v{kB} offset:{(16*ts + 4*u)*72}')
        return kv.l
    def kvm(ts):
        b = bufs[ts % 4]
        return [Ins(f'v_mfma_f32_32x32x16_bf16 {v(va[0],16)}, {v(b,4)}, {v(b+4,4)}, {"0" if ts == 0 else v(va[0],16)}')]
    kvst = Stream()
    for qd in range(4):
        kvst(f'buffer_store_dwordx4 {v(va[0]+4*qd,4)}, v{vL16}, {srd(SRD_WS)}, s{sFT} offen offset:{qd*1024} sc1', tok='kvp')
    k0 = Opt.kvstep
    mid = {}
    mid[k0] = [Ins('s_waitcnt lgkmcnt(0)'), Ins('s_barrier')] + kvread(0) + kvread(1) + kvread(2) + kvread(3)
    mid[k0 + 1] = kvm(0) + kvread(4) + kvm(1) + kvread(5)
    mid[k0 + 2] = kvm(2) + kvread(6) + kvm(3) + kvread(7)
    mid[k0 + 3] = kvm(4) + kvm(5)
    mid[k0 + 4] = kvm(6) + kvm(7)
    def ps2(s):
        if 1 <= s <= 10: return part(vfill, s, 1, 10)
        if s == k0 + 6:
            tp = Stream(); tag_prefetch(tp, vTAG); return kvst.l + tp.l
        return []
    S.ext(P.stage(2, perstep=ps2, mid=mid))
    stamp(S, 5)
    qa = ACC[0]
    S.ext(scale_pack(qa[0], T)); S.ext(phi_mfma(qa[0], 0, T)); S.ext(scale_pack(qa[1], T + 8)); S.ext(phi_mfma(qa[1], 1, T + 8))
    S(f's_lshl_b32 s{sT0}, s{sRB}, 2\ns_add_u32 s{sT0}, s{sT0}, s{sWAVE}\ns_lshl_b32 s{sT0}, s{sT0}, 3\ns_add_u32 s{sT0}, s{sT0}, s{sIDX}\ns_lshl_b32 s{sT0}, s{sT0}, 13\ns_add_u32 s{sT0}, s{sT0}, {WS_PQ}\ns_add_u32 s{sT1}, s{sT0}, 4096')
    for c in range(2):
        X = qa[c]; E = va[c]; d = AF if c == 0 else X0
        for i in range(4): S(f'v_cndmask_b32 v{X+12+i}, v{X+12+i}, v{X+8+i}, {HI}')
        mx, mn = TT + 4, TT + 5
        minmax(S, X, mx, mn, TT + 6, TT + 7)
        for i in range(16): S(f'v_fma_f32 v{E+i}, v{X+i}, s{sL2E}, v{mx}')
        for i in range(16): S(f'v_exp_f32 v{E+i}, v{E+i}')
        for i in range(8): S(f'v_cvt_pk_bf16_f32 v{d+i}, v{E+2*i}, v{E+2*i+1}')
        for hh in range(2):
            S(f'buffer_store_dwordx4 {v(d+4*hh,4)}, v{vL16}, {srd(SRD_WS)}, s{sT0 + c} offen offset:{hh*1024} sc1', tok='st')
        for i in range(16): S(f'v_fma_f32 v{X+i}, -v{X+i}, s{sL2E}, v{mn}')
        for i in range(16): S(f'v_exp_f32 v{X+i}, v{X+i}')
        for i in range(8): S(f'v_cvt_pk_bf16_f32 v{d+8+i}, v{X+2*i}, v{X+2*i+1}')
        for hh in range(2):
            S(f'buffer_store_dwordx4 {v(d+8+4*hh,4)}, v{vL16}, {srd(SRD_WS)}, s{sT0 + c} offen offset:{2048 + hh*1024} sc1', tok='st')
        if c == 0:
            S.wait('kvp'); tag_get(S, vTAG); flag_store(S, sFS, TT)
    stamp(S, 6)

PHI = 16; PN = 144; KV = 208; XT = 240
vO = 3; vVW2 = [6, 7]
def c_publish(S, have_tag, tile):
    if tile:
        S.ext(c_signal(EV_END))
        S(f'v_and_b32 v8, 31, v{vLANE}\nv_mul_u32_u24 v{vO}, 896, v8\nv_lshrrev_b32 v8, 5, v{vLANE}\nv_lshl_add_u32 v{vO}, v8, 4, v{vO}')
        S(f's_and_b32 s{sT0}, s{sW4}, 1\ns_lshl_b32 s{sT1}, s{sTB}, 1\ns_add_u32 s{sT0}, s{sT0}, s{sT1}\ns_mul_i32 s{sFT}, s{sT0}, {32*896}')
        S(f's_lshr_b32 s{sT0}, s{sW4}, 1\ns_lshl_b32 s{sT0}, s{sT0}, 6\ns_add_u32 s{sFT}, s{sFT}, s{sT0}\ns_lshl_b32 s{sT0}, s{sCB}, 7\ns_add_u32 s{sFT}, s{sFT}, s{sT0}')
        for hh in range(2):
            S(f'buffer_load_dwordx4 {v(XT+4*hh,4)}, v{vO}, {srd(SRD_X)}, s{sFT} offen offset:{32*hh}')
        lane_consts_tr(S, vVW2, 8, 64, 'B')
        S(f's_mul_i32 s{sT3}, s{sW4}, {A_REG}\ns_add_u32 s{sT3}, s{sT3}, {A_BASE}')
        S(f's_xor_b32 s{sT0}, s{sW4}, 3\ns_lshr_b32 s{sT1}, s{sT0}, 1\ns_lshl_b32 s{sT1}, s{sT1}, 6\ns_and_b32 s{sT2}, s{sT0}, 1\ns_lshl_b32 s{sT2}, s{sT2}, 16\ns_lshl_b32 s{sT0}, s{sT0}, 12')
        S(f'v_add_u32 v{vVW2[0]}, s{sT3}, v{vVW2[0]}\nv_xor_b32 v{vVW2[0]}, s{sT1}, v{vVW2[0]}\nv_xor_b32 v{vVW2[1]}, 64, v{vVW2[0]}')
        S(f's_add_u32 s{sT0}, s{sT0}, s{sT3}\nv_add_u32 v4, s{sT0}, v{vL16}\nv_add_u32 v10, s{sT2}, v{vL16}\nv_xor_b32 v11, 0x10000, v10')
    S(f's_lshl_b32 s{sT0}, s{sRB}, 1\ns_lshr_b32 s{sT1}, s{sW4}, 1\ns_add_u32 s{sT0}, s{sT0}, s{sT1}\ns_lshl_b32 s{sT0}, s{sT0}, 11\ns_lshl_b32 s{sT1}, s{sROLE}, 3\ns_add_u32 s{sT0}, s{sT0}, s{sT1}')
    S(f's_and_b32 s{sT1}, s{sW4}, 1\ns_lshl_b32 s{sT1}, s{sT1}, 2\ns_add_u32 s{sT0}, s{sT0}, s{sT1}\ns_add_u32 s{sT0}, s{sT0}, {WS_FH}')
    if not have_tag: tag_get(S, vTAG)
    S.wait('st')
    flag_store(S, sT0, TT, 7)
    stamp(S, 7)

W2R = 16; FACC = 144; HR = 208
vLW, vLS, vL2 = 3, 4, 5
def swz_voff(S, dst, pitch, tmp):
    S(f'v_lshrrev_b32 v{tmp}, 3, v{vLANE}\nv_mul_lo_u32 v{dst}, v{tmp}, {pitch}')
    S(f'v_bfe_u32 v{tmp}, v{vLANE}, 4, 1\nv_lshlrev_b32 v{tmp}, 2, v{tmp}\nv_and_b32 v{tmp+1}, 7, v{vLANE}\nv_xor_b32 v{tmp}, v{tmp}, v{tmp+1}\nv_lshl_add_u32 v{dst}, v{tmp}, 4, v{dst}')
def flat(l): return [x for y in l for x in y]
def sprinkle(main, units):
    out = []; n = len(main); k = len(units); j = 0
    for i, x in enumerate(main):
        while j < k and (j + 0.5) * n / max(k, 1) <= i and x.kind in ('valu', 'trans'):
            out += units[j]; j += 1
        out.append(x)
    return out + flat(units[j:])

def l_phase1(S, ffn, tile):
    sBLK, sP64, sP448, sP32, sW2, sK2 = sU0, sU1, sU2, sU3, sU4, sU5
    swz_voff(S, vLW, f's{sPITCH}', 8)
    S(f's_mul_i32 s{sFS}, s{sW4}, s{sPITCH}\ns_lshl_b32 s{sFS}, s{sFS}, 3')
    S(f's_lshl_b32 s{sT3}, s{sW4}, 10\ns_lshl_b32 s{sP64}, s{sPITCH}, 6\ns_lshl_b32 s{sP32}, s{sPITCH}, 5\ns_mul_i32 s{sP448}, s{sPITCH}, 448\ns_mul_i32 s{sBLK}, s{sP64}, s{sROT1}')
    def dma_half(h):
        units = []
        st = h // 2
        for k in range(7):
            St = Stream()
            kk = (h % 2) * 7 + k
            St(f's_add_u32 m0, s{sT3}, {half_base(h) + k*4096}')
            if kk % 2 == 0:
                St(f's_add_u32 s{sT0}, s{sBLK}, s{sFS}\ns_add_u32 s{sT0}, s{sT0}, s{sCOL[st]}')
            else:
                if k == 0: St(f's_add_u32 s{sT0}, s{sBLK}, s{sFS}\ns_add_u32 s{sT0}, s{sT0}, s{sCOL[st]}')
                St(f's_add_u32 s{sT0}, s{sT0}, s{sP32}')
                wrap_inc(St, sBLK, f's{sP64}', f's{sP448}')
            St(f'buffer_load_dwordx4 v{vLW}, {srd(SRD_W)}, s{sT0} offen lds', tok=('h', h))
            units.append(St.l)
        return units
    def sig(h):
        S.wait(('h', h))
        if h < 5: stamp(S, 2 + h)
        l_signal(S, h)
    S.ext(flat(dma_half(0)))
    if not ffn:
        S(f's_add_u32 m0, s{sT3}, {WPHI_L}\ns_mul_i32 s{sT0}, s{sIDX}, 3136\ns_add_u32 s{sT0}, s{sT0}, s{sT3}\ns_cmp_eq_u32 s{sW4}, 3\ns_cselect_b32 exec_hi, 0, -1')
        S(f'buffer_load_dwordx4 v{vL16}, {srd(SRD_WPHI)}, s{sT0} offen lds', tok=('h', 0))
        S('s_mov_b64 exec, -1')
    stamp(S, 'e5')
    lab = newlab('nt')
    S(f's_or_b32 s{sT0}, s2, s{sW4}\ns_cmp_lg_u32 s{sT0}, 0\ns_cbranch_scc1 {lab}')
    raw(S, f's_mov_b32 s{sT0}, {WS_TAG}\nv_mov_b32 v9, 0\ns_mov_b64 exec, 1\nbuffer_load_dword v8, v9, {srd(SRD_WS)}, s{sT0} offen sc1\ns_waitcnt vmcnt(0)\n'
           f'v_add_u32 v8, 1, v8\nv_max_u32 v8, 1, v8\ns_nop 1\nbuffer_store_dword v8, v9, {srd(SRD_WS)}, s{sT0} offen sc1\nbuffer_store_dword v8, v9, {srd(SRD_DBG)}, 0 offen sc1\ns_waitcnt vmcnt(0)\ns_mov_b64 exec, -1\n{lab}:')
    S(f'v_lshlrev_b32 v{vLC}, 2, v{vLANE}\nv_add_u32 v{vLC}, {CTL}, v{vLC}\nv_mov_b32 v{vLONE}, 1\nv_mov_b32 v{vLP+4}, {CTL}')
    if ffn:
        S(f'v_lshrrev_b32 v8, 2, v{vLANE}\nv_mul_u32_u24 v{vLS}, 3584, v8\nv_and_b32 v8, 3, v{vLANE}\nv_lshl_add_u32 v{vLS}, v8, 4, v{vLS}')
    else:
        S(f'v_and_b32 v8, 31, v{vLANE}\ns_lshl_b32 s{sT0}, s{sW4}, 5\nv_add_u32 v8, s{sT0}, v8\nv_lshrrev_b32 v9, 5, v{vLANE}\nv_lshlrev_b32 v9, 3, v9')
        S(f'v_mul_u32_u24 v{vLPW}, 112, v8\nv_add_u32 v{vLPW}, v{vLPW}, v9')
        S(f'v_cndmask_b32 v{vLMK}, 1.0, 0, {HI}\nv_mov_b32 v{vLL2E}, s{sL2E}')
    S(f's_lshl_b32 s{sT0}, s{sW4}, 12\ns_add_u32 s{sT0}, s{sT0}, {SPARE}\nv_add_u32 v{vLRD}, s{sT0}, v{vL16}')
    if tile:
        S(f's_mov_b32 s{sT1}, 896'); swz_voff(S, vL2, f's{sT1}', 8)
        lane_consts_tr(S, vVW2, 8, 64, 'B')
        S(f'v_add_u32 v9, s{sT0}, v{vVW2[0]}\nv_add_u32 v10, s{sT0}, v{vVW2[1]}')
        S(f's_mul_i32 s{sW2}, s{sW4}, {448*896}\ns_lshl_b32 s{sT2}, s{sCB}, 7\ns_add_u32 s{sW2}, s{sW2}, s{sT2}\ns_mul_i32 s{sK2}, s{sROT2}, {16*896}')
        S(f'v_add_u32 v13, {8*896}, v{vL2}')
    def w2raw(lo, hi):
        out = []
        if tile:
            for ks in range(lo, hi):
                t = Stream()
                t(f's_add_u32 s{sT1}, s{sW2}, s{sK2}')
                t(f'buffer_load_dwordx4 {v(W2R+8*ks,4)}, v{vL2}, {srd(SRD_W2)}, s{sT1} offen')
                t(f'buffer_load_dwordx4 {v(W2R+8*ks+4,4)}, v13, {srd(SRD_W2)}, s{sT1} offen')
                wrap_inc(t, sK2, 16 * 896, 448 * 896)
                out.append(t.l)
        return out
    def tr(ks):
        if Opt.notr:
            S('s_waitcnt vmcnt(0)'); return
        o = (ks % 2) * 2048; b = W2R + 8 * ks
        S(f'ds_write_b128 v{vLRD}, {v(b,4)} offset:{o}\nds_write_b128 v{vLRD}, {v(b+4,4)} offset:{o+1024}')
        for c in range(2):
            for u in range(2):
                S(f'ds_read_b64_tr_b16 {v(b + 4*c + 2*u, 2)}, v{9+c} offset:{o + 1024*u}')
    sig(0)
    l_wait(S, EV_XFREE)
    stamp(S, 1)
    S.ext(flat(dma_half(1))); S.ext(flat(dma_half(2))); sig(1)
    S.ext(flat(dma_half(3))); sig(2)
    S.ext(flat(dma_half(4))); sig(3)
    tag_fetch_l0(S)
    if ffn:
        S.ext(flat(w2raw(0, 4)))
        sig(4)
        l_wait(S, EV_C0)
        S.ext(flat(dma_half(5)))
        S.ext(flat(w2raw(4, 8)))
        sig(5)
        l_wait(S, EV_C1)
        S(f's_lshl_b32 s{sFS}, s{sFS}, 1\ns_add_u32 s{sFS}, s{sFS}, s{sCOLS}')
        for k in range(7):
            S(f's_add_u32 m0, s{sT3}, {k*4096}\ns_add_u32 s{sT0}, s{sBLK}, s{sFS}')
            wrap_inc(S, sBLK, f's{sP64}', f's{sP448}')
            S(f'buffer_load_dwordx4 v{vLS}, {srd(SRD_W)}, s{sT0} offen lds', tok=('h', 6))
        S.ext(flat(w2raw(8, 12)))
        sig(6)
        S.ext(flat(w2raw(12, 16)))
        for ks in range(16): tr(ks)
    else:
        l_wait(S, EV_C0)
        S.ext(flat(dma_half(5)))
        l_wait(S, EV_PK)
        sig(4)
        if Opt.lprio: S('s_setprio 1')
        a = softmax_k(0)
        S.ext(a[:60]); sig(5); S.ext(sprinkle(a[60:], w2raw(0, 6)))
        S.ext(sprinkle(softmax_k(1), w2raw(6, 14)))
        S('s_waitcnt lgkmcnt(0)\ns_barrier')
        if Opt.lprio: S('s_setprio 0')
        S.ext(flat(w2raw(14, 16)))
        if tile:
            for ks in range(16): tr(ks)
    tag_prefetch(S, vTAG); tag_get(S, vTAG)
    if tile:
        l_signal(S, CN_LT)
        l_wait(S, EV_END)
        stamp(S, 7)
        S(f's_mul_i32 s{sT3}, s{sW4}, {F_REG}')
        for i in range(0 if Opt.nodma else 12):
            S(f's_add_u32 m0, s{sT3}, {i*2048}\ns_add_u32 s{sT1}, s{sW2}, s{sK2}')
            S(f'buffer_load_dwordx4 v{vL2}, {srd(SRD_W2)}, s{sT1} offen lds', tok='w2')
            S(f's_add_u32 m0, s{sT3}, {i*2048 + 1024}')
            wrap_inc(S, sK2, 16 * 896, 448 * 896)
            S(f'buffer_load_dwordx4 v13, {srd(SRD_W2)}, s{sT1} offen lds', tok='w2')
        S.ext(cnt_read(CN_LT, vLP)); S.ext(cnt_check(CN_LT, vLP))
        S(f's_lshl_b32 s{sT2}, s{sW4}, 14\ns_add_u32 s{sT2}, s{sT2}, {A_BASE}\ns_lshl_b32 s{sU0}, s{sCB}, 7')
        for hd in range(0 if (Opt.nodma or Opt.nowo) else 4):
            S(f's_add_u32 s{sT0}, s{sCB}, {hd}\ns_and_b32 s{sT0}, s{sT0}, 3\ns_lshl_b32 s{sT1}, s{sW4}, 2\ns_add_u32 s{sT0}, s{sT0}, s{sT1}\ns_mul_i32 s{sT0}, s{sT0}, {28*896}\ns_add_u32 s{sT0}, s{sT0}, s{sU0}')
            for i in range(4):
                S(f's_add_u32 m0, s{sT2}, {hd*4096 + i*1024}')
                if i == 2: S(f's_add_u32 s{sT0}, s{sT0}, {16*896}')
                if hd == 3 and i == 3: S(f's_cmp_eq_u32 s{sW4}, 3\ns_cselect_b32 exec_hi, 0, -1')
                S(f'buffer_load_dwordx4 v{vL2 if i % 2 == 0 else 13}, {srd(SRD_WO)}, s{sT0} offen lds', tok='wo')
        S('s_mov_b64 exec, -1')

def hflag_poll(S):
    S(f'v_and_b32 v8, 3, v{vLANE}\nv_lshlrev_b32 v8, 2, v8\nv_and_b32 v9, 4, v{vLANE}\nv_lshl_add_u32 v8, v9, 4, v8')
    S(f's_lshl_b32 s{sT0}, s{sTB}, 3\ns_add_u32 s{sT0}, s{sT0}, s{sCB}\ns_lshl_b32 s{sT0}, s{sT0}, 8\ns_lshl_b32 s{sT1}, s{sW4}, 4\ns_add_u32 s{sT0}, s{sT0}, s{sT1}\ns_add_u32 s{sT0}, s{sT0}, {WS_FH}')
    poll(S, 8, sT0, 8, 9)

def f_phase2(S):
    stamp(S, 10)
    hflag_poll(S)
    S(f'v_mov_b32 v9, 4\nds_write_b32 v{vCTL}, v9 offset:{128 + 16*CN_WO}')
    stamp(S, 8)
    if Opt.diag == 2: S(f's_mul_i32 s{STAMP0+12}, s{sCNT}, 1000\ns_add_u32 s{STAMP0+12}, s{STAMP0+12}, s{STAMP0}')
    sK = sU1
    S(f's_mul_i32 s{sT1}, s{sTB}, {224*K1}\ns_mul_i32 s{sT2}, s{sW4}, {28*K1}\ns_add_u32 s{sT1}, s{sT1}, s{sT2}\ns_lshl_b32 s{sK}, s{sROT2}, 10')
    S(f'v_add_u32 v9, s{sT3}, v{vVW2[0]}\nv_add_u32 v10, s{sT3}, v{vVW2[1]}\nv_add_u32 v13, {112*K1}, v{vL16}')
    hdst = {}
    for ks in range(28):
        if ks < 6: hdst[ks] = HR + 8 * ks
        elif ks < 16: hdst[ks] = W2R + 8 * (ks - 6)
        else: hdst[ks] = hdst[ks - 12]
    adst = {ks: (W2R + 8 * ks if ks < 16 else W2R + 8 * (10 + (ks - 16) % 3)) for ks in range(28)}
    def hload(ks):
        S(f's_add_u32 s{sT0}, s{sT1}, s{sK}')
        S(f'buffer_load_dwordx4 {v(hdst[ks],4)}, v{vL16}, {srd(SRD_WS)}, s{sT0} offen sc1')
        S(f'buffer_load_dwordx4 {v(hdst[ks]+4,4)}, v13, {srd(SRD_WS)}, s{sT0} offen sc1')
        if ks < 27: wrap_inc(S, sK, 1024, 28 * K1)
    def aread(ks):
        o = (ks - 16) * 2048; b = adst[ks]
        for c in range(2):
            for u in range(2):
                S(f'ds_read_b64_tr_b16 {v(b + 4*c + 2*u, 2)}, v{9+c} offset:{o + 1024*u}')
    for ks in range(6): hload(ks)
    nxt = 6
    for ks in range(28):
        for c in range(2):
            for tt2 in range(2):
                acc = FACC + 16 * (2 * c + tt2)
                S(f'v_mfma_f32_32x32x16_bf16 {v(acc,16)}, {v(adst[ks]+4*c,4)}, {v(hdst[ks]+4*tt2,4)}, {"0" if ks == 0 else v(acc,16)}')
                if c == 0 and tt2 == 0 and 16 <= ks + 2 < 28: aread(ks + 2)
        if Opt.fdiag and ks in (0, 4, 8, 12, 16, 22): stamp(S, 1 + (0, 4, 8, 12, 16, 22).index(ks))
        while nxt < 28 and ((nxt < 16 and nxt - 6 <= ks) or (nxt >= 16 and nxt - 12 <= ks)):
            hload(nxt); nxt += 1
    stamp(S, 9)
    S(f'v_add_u32 v8, s{sT3}, v{vL16}')
    for q in range(4):
        for i in range(4):
            S(f'ds_write_b128 v8, {v(FACC + 16*q + 4*i, 4)} offset:{q*4096 + i*1024}')
    S('s_waitcnt lgkmcnt(0)\ns_barrier')

def a_phase2(S):
    S.ext(cnt_read(CN_WO, vCT)); S.ext(cnt_check(CN_WO, vCT, 1))
    stamp(S, 8)
    for hd in range(4):
        S(f's_add_u32 s{sU0+hd}, s{sCB}, {hd}\ns_and_b32 s{sU0+hd}, s{sU0+hd}, 3\ns_lshl_b32 s{sU0+hd}, s{sU0+hd}, 12')
    S(f's_lshl_b32 s{sT1}, s{sTB}, 17\ns_lshl_b32 s{sT2}, s{sW4}, 14\ns_add_u32 s{sT1}, s{sT1}, s{sT2}\ns_add_u32 s{sT1}, s{sT1}, {WS_PQ}')
    for hd in range(4):
        S(f's_add_u32 s{sT0}, s{sT1}, s{sU0+hd}')
        for tt2 in range(2):
            t = hd * 2 + tt2
            for st in range(0 if Opt.nophi else 4):
                S(f'buffer_load_dwordx4 {v(PHI+16*t+4*st,4)}, v{10 + tt2}, {srd(SRD_WS)}, s{sT0} offen offset:{st*1024} sc1')
    stamp(S, 9)
    S(f'v_lshlrev_b32 v8, 2, v{vLANE}\ns_lshl_b32 s{sT0}, s{sXCD}, 2\ns_add_u32 s{sT0}, s{sT0}, s{sW4}\ns_lshl_b32 s{sT0}, s{sT0}, 8\ns_add_u32 s{sT0}, s{sT0}, {WS_FK}')
    poll(S, 8, sT0, 32, 9, Opt.ksleep)
    stamp(S, 10)
    if Opt.diag == 2: S(f's_mul_i32 s{STAMP0+14}, s{sCNT}, 1000\ns_add_u32 s{STAMP0+14}, s{STAMP0+14}, s{STAMP0}')
    S(f's_lshl_b32 s{sT1}, s{sW4}, 14\ns_add_u32 s{sT1}, s{sT1}, {WS_KVF}')
    def kvload(hd):
        t = Stream()
        t(f's_add_u32 s{sT0}, s{sT1}, s{sU0+hd}')
        for st in range(4):
            t(f'buffer_load_dwordx4 {v(KV+16*(hd%2)+4*st,4)}, v{vL16}, {srd(SRD_WS)}, s{sT0} offen offset:{st*1024} sc1')
        return t.l
    S.ext(kvload(0)); S.ext(kvload(1))
    def num(t):
        hd = t // 2; kb = KV + 16 * (hd % 2); aP = PN + 32 * (t % 2); aN = aP + 16; ph = PHI + 16 * t
        return [Ins(f'v_mfma_f32_32x32x16_bf16 {v(aP,16)}, {v(kb,4)}, {v(ph,4)}, 0'),
                Ins(f'v_mfma_f32_32x32x16_bf16 {v(aN,16)}, {v(kb+8,4)}, {v(ph+8,4)}, 0'),
                Ins(f'v_mfma_f32_32x32x16_bf16 {v(aP,16)}, {v(kb+4,4)}, {v(ph+4,4)}, {v(aP,16)}'),
                Ins(f'v_mfma_f32_32x32x16_bf16 {v(aN,16)}, {v(kb+12,4)}, {v(ph+12,4)}, {v(aN,16)}')]
    def onorm(t):
        S = Stream()
        aP = PN + 32 * (t % 2); aN = aP + 16; ph = PHI + 16 * t
        rP, rN, dn, a, b = TT, TT + 1, TT + 2, TT + 3, TT + 4
        S(f'v_rcp_f32 v{rP}, v{aP+13}\nv_rcp_f32 v{rN}, v{aN+13}')
        S(f'v_mov_b32 v{dn}, {hx(f2u(1e-6))}\nv_fmac_f32 v{dn}, v{aP+12}, v{rP}\nv_fmac_f32 v{dn}, v{aN+12}, v{rN}\nv_rcp_f32 v{dn}, v{dn}')
        S(f'v_nop\nv_mul_f32 v{rP}, v{rP}, v{dn}\nv_mul_f32 v{rN}, v{rN}, v{dn}\nv_mov_b32 v{a}, v{rP}\nv_mov_b32 v{b}, v{rN}')
        S(f'v_permlane32_swap_b32 v{rP}, v{a}\nv_permlane32_swap_b32 v{rN}, v{b}')
        for i in range(16): S(f'v_mul_f32 v{aP+i}, v{aP+i}, v{a}')
        for i in range(16): S(f'v_fmac_f32 v{aP+i}, v{aN+i}, v{b}')
        for i in range(8): S(f'v_cvt_pk_bf16_f32 v{ph+i}, v{aP+2*i}, v{aP+2*i+1}')
        S(f'v_cndmask_b32 v{ph+6}, v{ph+6}, 0, {HI}\nv_cndmask_b32 v{ph+7}, v{ph+7}, 0, {HI}')
        return S.l
    S.ext(num(0))
    for t in range(8):
        o = onorm(t)
        if Opt.fdiag and t in (0, 1, 2, 4, 6): stamp(S, 1 + (0, 1, 2, 4, 6).index(t))
        if t + 1 < 8:
            m = num(t + 1)
            S.ext(m[0:2]); S.ext(o[0:13]); S.ext(m[2:3]); S.ext(o[13:22]); S.ext(m[3:4])
            if t % 2 == 0 and t // 2 + 2 < 4: S.ext(kvload(t // 2 + 2))
            S.ext(o[22:])
        else:
            S.ext(o)
    stamp(S, 11)
    SA = PN
    def woread(n):
        hd, st = n // 2, n % 2; b = KV + 8 * (n % 4)
        for c in range(2):
            for u in range(2):
                S(f'ds_read_b64_tr_b16 {v(b+4*c+2*u,2)}, v{vVW2[c]} offset:{(32*hd + 16*st + 8*u)*128}')
    woread(0); woread(1)
    for n in range(8):
        hd, st = n // 2, n % 2; b = KV + 8 * (n % 4)
        for c in range(2):
            for tt2 in range(2):
                acc = SA + 16 * (2 * c + tt2); ob = PHI + 16 * (2 * hd + tt2) + 4 * st
                S(f'v_mfma_f32_32x32x16_bf16 {v(acc,16)}, {v(b+4*c,4)}, {v(ob,4)}, {"0" if n == 0 else v(acc,16)}')
                if c == 0 and tt2 == 0 and n + 2 < 8: woread(n + 2)
    stamp(S, 12)
    S(f'v_xor_b32 v5, 0x1000, v4\nv_xor_b32 v13, 0x2000, v4')
    for q, a in ((0, 4), (1, 5), (2, 13)):
        for i in range(4):
            S(f'ds_write_b128 v{a}, {v(SA+16*q+4*i,4)} offset:{i*1024}')
    S(f's_lshl_b32 s{sT0}, s{sW4}, 12\nv_add_u32 v8, s{sT0}, v{vL16}\nv_add_u32 v9, {2*F_REG}, v8')
    for k in range(3):
        S(f's_xor_b32 s{sT1}, s{sW4}, {k+1}\ns_lshl_b32 s{sT1}, s{sT1}, 14\ns_add_u32 s{sT1}, s{sT1}, {A_BASE}\nv_add_u32 v{10+k}, s{sT1}, v8')
    S('s_waitcnt lgkmcnt(0)\ns_barrier')
    stamp(S, 13)
    G = PHI + 16
    for f in range(4):
        for i in range(4):
            S(f'ds_read_b128 {v(G+16*f+4*i,4)}, v{8 + f//2} offset:{(f%2)*F_REG + i*1024}')
    SP = G + 64
    for k in range(3):
        for i in range(4): S(f'ds_read_b128 {v(SP+16*k+4*i,4)}, v{10+k} offset:{i*1024}')
    OWN = SA + 48
    S(f'v_permlane32_swap_b32 v{XT}, v{XT+2}\nv_permlane32_swap_b32 v{XT+1}, v{XT+3}\nv_permlane32_swap_b32 v{XT+4}, v{XT+6}\nv_permlane32_swap_b32 v{XT+5}, v{XT+7}')
    for i in range(16): S(f'v_add_f32 v{G+i}, v{G+i}, v{G+16+i}')
    for i in range(16): S(f'v_add_f32 v{G+32+i}, v{G+32+i}, v{G+48+i}')
    for i in range(16): S(f'v_add_f32 v{G+i}, v{G+i}, v{G+32+i}')
    E = G + 16
    for i in range(16): S(f'v_mul_f32 v{E+i}, {hx(f2u(-L2E))}, v{G+i}')
    for i in range(16): S(f'v_exp_f32 v{E+i}, v{E+i}')
    for i in range(16): S(f'v_add_f32 v{PHI+i}, v{OWN+i}, v{SP+i}')
    for i in range(16): S(f'v_add_f32 v{E+i}, 1.0, v{E+i}')
    for i in range(16): S(f'v_rcp_f32 v{E+i}, v{E+i}')
    for i in range(16): S(f'v_add_f32 v{SP+16+i}, v{SP+16+i}, v{SP+32+i}')
    for i in range(16): S(f'v_add_f32 v{PHI+i}, v{PHI+i}, v{SP+16+i}')
    for i in range(16): S(f'v_mul_f32 v{G+i}, v{G+i}, v{E+i}')
    for i in range(8): S(f'v_lshlrev_b32 v{E+2*i}, 16, v{XT+i}\nv_and_b32 v{E+2*i+1}, 0xffff0000, v{XT+i}')
    for i in range(16): S(f'v_fmac_f32 v{E+i}, v{PHI+i}, v{G+i}')
    for i in range(8): S(f'v_cvt_pk_bf16_f32 v{XT+i}, v{E+2*i}, v{E+2*i+1}')
    S(f'v_permlane32_swap_b32 v{XT}, v{XT+2}\nv_permlane32_swap_b32 v{XT+1}, v{XT+3}\nv_permlane32_swap_b32 v{XT+4}, v{XT+6}\nv_permlane32_swap_b32 v{XT+5}, v{XT+7}')
    for hh in range(2):
        S(f'buffer_store_dwordx4 {v(XT+4*hh,4)}, v{vO}, {srd(SRD_OUT)}, s{sFT} offen offset:{32*hh}')

def reducer(S):
    S(f'v_lshlrev_b32 v8, 2, v{vLANE}\ns_lshl_b32 s{sT0}, s{sTB}, 8\ns_add_u32 s{sT0}, s{sT0}, {WS_FP}')
    poll(S, 8, sT0, 16, 9)
    stamp(S, 8)
    S(f's_lshl_b32 s{sT1}, s{sTB}, 16\ns_lshl_b32 s{sT2}, s{sW4}, 10\ns_add_u32 s{sT1}, s{sT1}, s{sT2}\ns_add_u32 s{sT1}, s{sT1}, {WS_KVP}')
    for rb in range(16):
        S(f's_add_u32 s{sT0}, s{sT1}, {rb*4096}')
        S(f'buffer_load_dwordx4 {v(16+4*rb,4)}, v{vL16}, {srd(SRD_WS)}, s{sT0} offen sc1')
    S(f'v_and_b32 v8, 31, v{vLANE}\nv_cmp_eq_u32 vcc, 29, v8')
    S(f's_lshl_b32 s{sT0}, s{sTB}, 1\ns_lshr_b32 s{sT1}, s{sW4}, 1\ns_add_u32 s{sT0}, s{sT0}, s{sT1}\ns_lshl_b32 s{sT0}, s{sT0}, 10\ns_and_b32 s{sT1}, s{sW4}, 1\ns_lshl_b32 s{sT1}, s{sT1}, 3\ns_add_u32 s{sT0}, s{sT0}, s{sT1}\ns_add_u32 s{sT0}, s{sT0}, {WS_KVF}')
    S(f's_lshr_b32 s{sU0}, s{sTB}, 3\ns_lshl_b32 s{sU0}, s{sU0}, 8\ns_and_b32 s{sT1}, s{sTB}, 7\ns_lshl_b32 s{sT1}, s{sT1}, 4\ns_add_u32 s{sU0}, s{sU0}, s{sT1}\ns_lshl_b32 s{sT1}, s{sW4}, 2\ns_add_u32 s{sU0}, s{sU0}, s{sT1}\ns_add_u32 s{sU0}, s{sU0}, {WS_FK}')
    S(f's_cmp_eq_u32 s{sW4}, 3\ns_cselect_b32 s{sT3}, -1, 0\ns_mov_b32 s{sT2}, 0')
    for rb in range(1, 16):
        d = 16 + 4 * (rb % 2) if rb >= 2 else None
        if rb == 1: continue
        for i in range(4): S(f'v_add_f32 v{d+i}, v{d+i}, v{16+4*rb+i}')
    for i in range(4): S(f'v_add_f32 v{16+i}, v{16+i}, v{20+i}')
    stamp(S, 10)
    for i in range(4): S(f'v_cndmask_b32 v{16+i}, v{16+i}, 1.0, vcc')
    S('v_cvt_pk_bf16_f32 v16, v16, v17\nv_cvt_pk_bf16_f32 v17, v18, v19')
    S(f'v_cndmask_b32 v16, v16, 0, s[{sT2}:{sT3}]\nv_cndmask_b32 v17, v17, 0, s[{sT2}:{sT3}]')
    S(f'buffer_store_dwordx2 v[16:17], v{vL16}, {srd(SRD_WS)}, s{sT0} offen sc1')
    S('s_waitcnt vmcnt(0)')
    flag_store(S, sU0, 8, 8, 10)
    stamp(S, 9)

Opt.kvstep = 14
def fin_after(prefix, body):
    mark = Ins('L_MARK__:')
    o = finalize(prefix + [mark] + body)
    return o[o.index(mark) + 1:]

def build():
    assert sT2 % 2 == 0 and sT3 == sT2 + 1
    parts = []
    P = Stream(); prologue(P)
    P(f's_cmp_ge_u32 s{sWAVE}, 4\ns_cbranch_scc1 L_lwave')
    parts.append(finalize(P.l))
    C = Stream(); c_common(C); C(f's_cmp_ge_u32 s{sROLE}, 8\ns_cbranch_scc1 L_cattn')
    S = Stream(); c_ffn(S); c_publish(S, False, True); S('s_branch L_aphase'); parts.append(finalize(C.l + S.l))
    S = Stream(); S('L_cspare:\ns_waitcnt vmcnt(0)'); c_publish(S, True, False); S('s_branch L_fin'); parts.append(finalize(S.l))
    S = Stream(); S('L_cattn:'); c_attn(S)
    S(f's_cmp_eq_u32 s{sCB}, 7\ns_cbranch_scc1 L_cspare'); c_publish(S, True, True); parts.append(fin_after(C.l, S.l))
    S = Stream(); S('L_aphase:'); a_phase2(S); S('s_branch L_fin'); parts.append(finalize(S.l))
    S = Stream(); S('L_lwave:')
    S(f's_cmp_ge_u32 s{sROLE}, 8\ns_cbranch_scc1 L_lattn'); l_phase1(S, True, True); S('s_branch L_fphase'); parts.append(finalize(S.l))
    S = Stream(); S('L_lattn:'); S(f's_cmp_eq_u32 s{sCB}, 7\ns_cbranch_scc1 L_lspare'); l_phase1(S, False, True); parts.append(finalize(S.l))
    S = Stream(); S('L_fphase:'); f_phase2(S); S('s_branch L_fin'); parts.append(finalize(S.l))
    S = Stream(); S('L_lspare:'); l_phase1(S, False, False); reducer(S); parts.append(finalize(S.l))
    S = Stream(); S('L_fin:'); diag_out(S); S('L_end:\ns_endpgm'); parts.append(finalize(S.l))
    hdr = open('recurrent_scan__linear_kernel_hedgehog__dense_activation_silu__prompt.s.ref').read().split('\n')
    top = [l for l in hdr[:13] if l.startswith(';') and '@launch' not in l and 'Override' not in l and 'grid=ceil' not in l]
    out = '\n'.join(top) + f'\n; @launch grid=(256,1,1) block=(512,1,1) lds={LDS_TOTAL}\n'
    out += f'.amdgcn_target "amdgcn-amd-amdhsa--gfx950"\n.text\n.globl {NAME}\n.p2align 8\n.type {NAME},@function\n{NAME}:\n'
    for p in parts:
        t = text(p)
        if Opt.nosc1: t = '\n'.join(l.replace(' sc1', '') if 'buffer_store_dwordx4' in l else l for l in t.split('\n'))
        out += t
    out += f'''.section .rodata,"a"
.p2align 6
.amdhsa_kernel {NAME}
  .amdhsa_next_free_vgpr 256
  .amdhsa_next_free_sgpr 102
  .amdhsa_accum_offset 256
  .amdhsa_group_segment_fixed_size 0
  .amdhsa_kernarg_size 80
  .amdhsa_user_sgpr_count 2
  .amdhsa_user_sgpr_kernarg_segment_ptr 1
  .amdhsa_system_sgpr_workgroup_id_x 1
.end_amdhsa_kernel
'''
    return out

if __name__ == '__main__':
    for a in sys.argv[2:]:
        k, _, val = a.partition('='); setattr(Opt, k, int(val) if val else True)
    open(sys.argv[1], 'w').write(build())
```

```python
import sys, struct
sys.path.insert(0, "dev")
from asmlib import *

NAME = "recurrent_scan__linear_kernel_hedgehog__dense_activation_silu__prompt_kernel"
K1 = 1024
WS_H   = 0
WS_PQ  = 64 * 112 * K1
WS_KVP = WS_PQ + 64 * 16 * 4096
WS_KVF = WS_KVP + 32 * 16 * 4096
WS_FH  = WS_KVF + 64 * K1
WS_FP  = WS_FH + 256 * 256
WS_FK  = WS_FP + 32 * 256
WS_TAG = WS_FK + 32 * 256
WS_DIAG = WS_TAG + 4096
WS_SIZE = WS_DIAG + 256 * 8 * 64
SLOT = 28 * K1
SPARE = 140 * K1
WPHI_L = 156 * K1
CTL = 160 * K1 - 512
LDS_TOTAL = 160 * K1
F_REG = 24 * K1
A_BASE = 96 * K1
A_REG = 16 * K1
EV_XFREE, EV_C0, EV_C1, EV_PK, EV_END = range(5)
CN_WO, CN_LT = 7, 8
sBND = 70
L2E = 1.4426950408889634
def f2u(x): return struct.unpack('<I', struct.pack('<f', x))[0]
def hx(x): return '0x%08x' % (x & 0xffffffff)

sWAVE, sXCD, sI, sRB, sROLE = 3, 4, 5, 6, 7
SRD_X, SRD_W, SRD_WS, SRD_W2, SRD_WO, SRD_OUT, SRD_DBG, SRD_WPHI = 8, 12, 16, 20, 24, 28, 32, 36
sTB, sCB, sIDX, sTAG, sPITCH = 40, 41, 42, 43, 44
sCOL = [45, 46, 47]
sCOLS = 48
sSEL_LO, sSEL_HI = 49, 63
sT0, sT1, sT2, sT3 = 50, 51, 52, 53
sHI = 54
sROT1, sROT2 = 56, 57
sCNT, sW4, sFT, sFS, sL2E = 58, 59, 60, 61, 62
sU0, sU1, sU2, sU3, sU4, sU5 = 64, 65, 66, 67, 68, 69
STAMP0 = 84
def srd(b): return f's[{b}:{b+3}]'
def v(a, n=1): return f'v{a}' if n == 1 else f'v[{a}:{a+n-1}]'
HI = f's[{sHI}:{sHI+1}]'

class Opt:
    diag = False
    ncen = 18
    sleep = 8
    early = False
    rot = 1
    lprio = 1
    lsleep = 1
    nodma = 0
    nosc1 = 0
    nowo = 0
    outsc = ''
    empty = 0
    xcc = 0
    fdiag = 0
    nophi = 0
    notr = 0
    cprio = 0
    predelay = 0
    ksleep = 12

def stamp(S, k):
    if not Opt.diag: return
    if isinstance(k, str):
        if not Opt.early: return
        k = int(k[1:])
    elif Opt.early and 3 <= k < 15: return
    S(f'{"s_memtime" if Opt.diag == 2 else "s_memrealtime"} s[100:101]\ns_waitcnt lgkmcnt(0)\ns_mov_b32 s{STAMP0+k}, s100')

def diag_out(S):
    if not Opt.diag: return
    S('s_waitcnt vmcnt(0) lgkmcnt(0)')
    stamp(S, 15)
    if Opt.xcc: S(f's_getreg_b32 s{STAMP0+11}, hwreg(HW_REG_XCC_ID)\ns_getreg_b32 s{STAMP0+12}, hwreg(HW_REG_HW_ID)')
    for k in range(16): S(f'v_mov_b32 v{16+k}, s{STAMP0+k}')
    S(f's_lshl_b32 s{sT0}, s2, 3\ns_add_u32 s{sT0}, s{sT0}, s{sWAVE}\ns_lshl_b32 s{sT0}, s{sT0}, 6\ns_add_u32 s{sT0}, s{sT0}, {WS_DIAG}')
    S('v_mov_b32 v40, 0\ns_mov_b64 exec, 1')
    for k in range(4): S(f'buffer_store_dwordx4 v[{16+4*k}:{19+4*k}], v40, {srd(SRD_WS)}, s{sT0} offen offset:{16*k}')

def half_base(h): return ((h + 4) % 5) * SLOT

_lab = [0]
def newlab(p):
    _lab[0] += 1; return f'L_{p}{_lab[0]}'
def RAW(t):
    i = Ins(t); i.kind = 'salu'; i.rd = set(); i.wr = set(); return i
def raw(S, t):
    for l in t.split('\n'):
        S.l.append(Ins(l) if l.endswith(':') else RAW(l))

vCTL, vLANE, vL16 = 0, 1, 2
def prologue(S):
    S(f's_cmp_ge_u32 s2, {0 if Opt.empty else 256}\ns_cbranch_scc1 L_end')
    if Opt.diag:
        for k in range(16): S(f's_mov_b32 s{STAMP0+k}, 0')
    stamp(S, 0)
    S('s_load_dwordx16 s[64:79], s[0:1], 0\ns_load_dwordx4 s[80:83], s[0:1], 64')
    S(f'v_lshrrev_b32 v3, 6, v0\nv_and_b32 v{vLANE}, 63, v0\nv_readfirstlane_b32 s{sWAVE}, v3\nv_lshlrev_b32 v{vL16}, 4, v{vLANE}')
    S(f'v_lshlrev_b32 v4, 3, v{vLANE}\nv_add_u32 v4, {CTL}, v4\nv_mov_b32 v6, 0\nv_mov_b32 v7, 0\nds_write_b64 v4, v[6:7]')
    S(f's_and_b32 s{sXCD}, s2, 7\ns_lshr_b32 s{sI}, s2, 3')
    S(f's_lshr_b32 s{sRB}, s{sXCD}, 1\ns_lshl_b32 s{sRB}, s{sRB}, 2\ns_and_b32 s{sT3}, s{sI}, 3\ns_add_u32 s{sRB}, s{sRB}, s{sT3}')
    S(f's_lshl_b32 s{sTB}, s{sXCD}, 2\ns_add_u32 s{sTB}, s{sTB}, s{sT3}\ns_lshr_b32 s{sCB}, s{sI}, 2')
    S(f's_and_b32 s{sIDX}, s{sXCD}, 1\ns_lshl_b32 s{sIDX}, s{sIDX}, 2\ns_and_b32 s{sT0}, s{sCB}, 3\ns_add_u32 s{sIDX}, s{sIDX}, s{sT0}')
    S(f's_and_b32 s{sT0}, s{sCB}, 4\ns_lshl_b32 s{sT0}, s{sT0}, 1\ns_add_u32 s{sROLE}, s{sIDX}, s{sT0}')
    S(f's_and_b32 s{sW4}, s{sWAVE}, 3')
    S(f's_lshl_b32 s{sT0}, s{sW4}, 2\ns_add_u32 s{sT0}, s{sT0}, {CTL}\nv_mov_b32 v{vCTL}, s{sT0}')
    if Opt.rot:
        S(f's_lshl_b32 s{sROT1}, s{sT3}, 1\ns_add_u32 s{sROT1}, s{sROT1}, s{sCB}\ns_sub_u32 s{sT0}, s{sROT1}, 7\ns_cmp_ge_u32 s{sROT1}, 7\ns_cselect_b32 s{sROT1}, s{sT0}, s{sROT1}')
        S(f's_mul_i32 s{sROT2}, s{sT3}, 7\ns_lshl_b32 s{sT0}, s{sCB}, 2\ns_add_u32 s{sROT2}, s{sROT2}, s{sT0}\ns_sub_u32 s{sT0}, s{sROT2}, 28\ns_cmp_ge_u32 s{sROT2}, 28\ns_cselect_b32 s{sROT2}, s{sT0}, s{sROT2}')
    else:
        S(f's_mov_b32 s{sROT1}, 0\ns_mov_b32 s{sROT2}, 0')
    S(f's_mov_b32 s{sHI}, 0\ns_mov_b32 s{sHI+1}, -1\ns_mov_b32 s{sL2E}, {hx(f2u(L2E))}')
    S(f's_mul_i32 s{sT0}, s{sIDX}, 448\ns_and_b32 s{sT1}, s{sIDX}, 1\ns_lshl_b32 s{sT2}, s{sT1}, 6\ns_add_u32 s{sT2}, s{sT2}, s{sT0}')
    S(f's_mul_i32 s{sT1}, s{sT1}, 384\ns_sub_u32 s{sCOLS}, s{sT0}, s{sT1}\ns_add_u32 s{sCOLS}, s{sCOLS}, 384')
    S(f's_mul_i32 s{sT0}, s{sIDX}, 112')
    S(f's_add_u32 s{sT1}, s{sT0}, 896\ns_add_u32 s{sT3}, s{sT0}, 1792\ns_add_u32 s{sCOL[1]}, s{sT2}, 128\ns_add_u32 s{sCOL[2]}, s{sT2}, 256')
    S(f's_movk_i32 s{sPITCH}, 3584\ns_cmp_ge_u32 s{sROLE}, 8')
    S(f's_cselect_b32 s{sCOL[0]}, s{sT1}, s{sT2}\ns_cselect_b32 s{sPITCH}, 2688, s{sPITCH}')
    S(f's_cselect_b32 s{sCOL[1]}, s{sT3}, s{sCOL[1]}\ns_cselect_b32 s{sCOL[2]}, s{sT0}, s{sCOL[2]}')
    for b, size in ((SRD_X, 2048 * 896), (SRD_WS, WS_SIZE), (SRD_W2, 1792 * 896), (SRD_WO, 448 * 896), (SRD_OUT, 2048 * 896), (SRD_DBG, 256), (SRD_WPHI, 16 * 1568)):
        S(f's_mov_b32 s{b+2}, {size}\ns_mov_b32 s{b+3}, 0x20000')
    S(f's_mul_i32 s{SRD_W+2}, s{sPITCH}, 448\ns_mov_b32 s{SRD_W+3}, 0x20000')
    stamp(S, 'e3')
    S('s_waitcnt lgkmcnt(0)')
    stamp(S, 'e4')
    for b, lo in ((SRD_X, 64), (SRD_WS, 82), (SRD_W2, 76), (SRD_WO, 70), (SRD_OUT, 78), (SRD_DBG, 80), (SRD_WPHI, 68)):
        S(f's_mov_b64 s[{b}:{b+1}], s[{lo}:{lo+1}]')
    S(f's_cmp_ge_u32 s{sROLE}, 8\ns_cselect_b64 s[{SRD_W}:{SRD_W+1}], s[66:67], s[74:75]')
    S('s_barrier')

TAGW = 320
def tag_fetch_l0(S):
    a, b = newlab('tf'), newlab('tf')
    S(f's_cmp_lg_u32 s{sW4}, 0\ns_cbranch_scc1 {b}')
    raw(S, f's_mov_b32 s{sBND}, 0\nv_mov_b32 v15, 0\n{a}:\nbuffer_load_dword v14, v15, {srd(SRD_DBG)}, 0 offen sc1\ns_waitcnt vmcnt(0)\nv_readfirstlane_b32 s{sTAG}, v14\ns_add_u32 s{sBND}, s{sBND}, 1\n'
           f's_max_u32 s{sCNT}, s{sBND}, 0x20000\ns_sub_u32 s{sCNT}, s{sCNT}, 0x20000\ns_or_b32 s{sTAG}, s{sTAG}, s{sCNT}\ns_cmp_eq_u32 s{sTAG}, 0\ns_cbranch_scc1 {a}\n'
           f'v_mov_b32 v14, s{sTAG}\ns_mov_b64 exec, 15\nds_write_b32 v{vLC}, v14 offset:{TAGW}\ns_mov_b64 exec, -1\ns_waitcnt lgkmcnt(0)\n{b}:')
def tag_prefetch(S, vt):
    S(f'ds_read_b32 v{vt}, v{vCTL} offset:{TAGW}')
def tag_get(S, vt):
    a, b = newlab('tg'), newlab('tg')
    S(f'v_readfirstlane_b32 s{sTAG}, v{vt}')
    S(f's_cmp_lg_u32 s{sTAG}, 0\ns_cbranch_scc1 {b}')
    raw(S, f'{a}:\nds_read_b32 v{vt}, v{vCTL} offset:{TAGW}\ns_sleep 1\ns_waitcnt lgkmcnt(0)\nv_readfirstlane_b32 s{sTAG}, v{vt}\ns_nop 0\ns_cmp_eq_u32 s{sTAG}, 0\ns_cbranch_scc1 {a}\n{b}:')

def poll(S, voff, soff, nl, vt, sleep=None):
    a, b = newlab('pl'), newlab('pl')
    S(f's_mov_b64 exec, {hex((1 << nl) - 1)}\ns_mov_b32 s{sCNT}, 0')
    S(f'{a}:')
    S(f'buffer_load_dword v{vt}, v{voff}, {srd(SRD_WS)}, s{soff} offen sc1')
    S('s_waitcnt vmcnt(0)')
    S(f'v_cmp_ne_u32 vcc, s{sTAG}, v{vt}')
    S(f's_add_u32 s{sCNT}, s{sCNT}, 1\ns_cbranch_vccz {b}\ns_cmp_gt_u32 s{sCNT}, 0x20000\ns_cbranch_scc1 {b}\ns_sleep {sleep or Opt.sleep}\ns_branch {a}')
    S(f'{b}:')
    S('s_mov_b64 exec, -1')

def flag_store(S, soff, vt, n=1, shift=8):
    S(f'v_mov_b32 v{vt}, s{sTAG}\nv_lshlrev_b32 v{vt+1}, {shift}, v{vLANE}\ns_mov_b64 exec, {(1 << n) - 1}')
    S(f'buffer_store_dword v{vt}, v{vt+1}, {srd(SRD_WS)}, s{soff} offen sc1')
    S('s_mov_b64 exec, -1')

def c_signal(ev):
    return [Ins(f'ds_write_b32 v{vCTL}, v{vCTL} offset:{16*ev}')]
def cnt_read(idx, vt):
    return [Ins(f'ds_read_b32 v{vt}, v{vCTL} offset:{128 + 16*idx}')]
def cnt_check(idx, vt, sleep=0):
    S = Stream(); a, b = newlab('ck'), newlab('ck')
    S(f'v_readfirstlane_b32 s{sCNT}, v{vt}\ns_cmp_ge_u32 s{sCNT}, 4\ns_cbranch_scc1 {b}')
    raw(S, f's_mov_b32 s{sBND}, 0\n{a}:\nds_read_b32 v{vt}, v{vCTL} offset:{128 + 16*idx}\ns_add_u32 s{sBND}, s{sBND}, 1\ns_cmp_gt_u32 s{sBND}, 0x40000\ns_cbranch_scc1 {b}\ns_sleep {sleep}\ns_waitcnt lgkmcnt(0)\nv_readfirstlane_b32 s{sCNT}, v{vt}\ns_nop 0\ns_cmp_lt_u32 s{sCNT}, 4\ns_cbranch_scc1 {a}\n{b}:')
    return S.l
vLC, vLONE, vLP = 11, 12, 188
def l_signal(S, idx):
    S(f's_mov_b64 exec, 15\nds_add_u32 v{vLC}, v{vLONE} offset:{128 + 16*idx}\ns_mov_b64 exec, -1')
def l_wait(S, ev):
    a, b = newlab('lw'), newlab('lw')
    S('s_waitcnt lgkmcnt(0)')
    raw(S, f's_mov_b32 s{sBND}, 0\n{a}:\nds_read_b128 v[{vLP}:{vLP+3}], v{vLP+4} offset:{16*ev}\ns_add_u32 s{sBND}, s{sBND}, 1\ns_cmp_gt_u32 s{sBND}, 0x40000\ns_cbranch_scc1 {b}\ns_sleep {Opt.lsleep}\ns_waitcnt lgkmcnt(0)\nv_min3_u32 v{vLP}, v{vLP}, v{vLP+1}, v{vLP+2}\nv_min_u32 v{vLP}, v{vLP}, v{vLP+3}\ns_nop 0\nv_readfirstlane_b32 s{sCNT}, v{vLP}\ns_nop 0\ns_cmp_eq_u32 s{sCNT}, 0\ns_cbranch_scc1 {a}\n{b}:\ns_waitcnt lgkmcnt(0)')

X0 = 16; ACC = [[128, 144], [160, 176]]; AF = 192; WPHI = 216; T = 232; U = 240; TT = 248
vVA = [3, 4]; vWA = [5, 6]; vVS = 7; vR, vRM, vNRL, vSD, vCT, vNM = 8, 9, 10, 11, 12, 13; vTAG = 14

def lane_consts_tr(S, dst, tmp, cstride, rowmap):
    t0, t1, t2 = tmp, tmp + 1, tmp + 2
    S(f'v_bfe_u32 v{t0}, v{vLANE}, 2, 2')
    S(f'v_lshrrev_b32 v{t1}, 5, v{vLANE}')
    S(f'v_lshlrev_b32 v{t1}, {10 if rowmap == "A" else 9}, v{t1}\nv_lshl_add_u32 v{t1}, v{t0}, 7, v{t1}')
    S(f'v_bfe_u32 v{t0}, v{vLANE}, 3, 1\nv_lshlrev_b32 v{t0}, 6, v{t0}')
    S(f'v_bfe_u32 v{t2}, v{vLANE}, 4, 1\nv_lshlrev_b32 v{t2}, 5, v{t2}\nv_and_b32 v{dst[0]}, 3, v{vLANE}\nv_lshl_add_u32 v{t2}, v{dst[0]}, 3, v{t2}')
    S(f'v_xor_b32 v{dst[0]}, v{t2}, v{t0}\nv_add_u32 v{dst[0]}, v{dst[0]}, v{t1}')
    S(f'v_add_u32 v{t2}, {cstride}, v{t2}\nv_xor_b32 v{dst[1]}, v{t2}, v{t0}\nv_add_u32 v{dst[1]}, v{dst[1]}, v{t1}')

def trb(St, dst, hfshift, pitch, tmp):
    St(f'v_lshrrev_b32 v{tmp}, 5, v{vLANE}\nv_lshlrev_b32 v{tmp}, {hfshift}, v{tmp}\nv_bfe_u32 v{dst}, v{vLANE}, 2, 2\nv_add_u32 v{tmp}, v{tmp}, v{dst}\nv_mul_u32_u24 v{dst}, {pitch}, v{tmp}')
    St(f'v_bfe_u32 v{tmp}, v{vLANE}, 4, 1\nv_lshl_add_u32 v{dst}, v{tmp}, 5, v{dst}\nv_and_b32 v{tmp}, 3, v{vLANE}\nv_lshl_add_u32 v{dst}, v{tmp}, 3, v{dst}')

def wrap_inc(S, reg, inc, lim):
    S(f's_add_u32 s{reg}, s{reg}, {inc}\ns_cmp_eq_u32 s{reg}, {lim}\ns_cselect_b32 s{reg}, 0, s{reg}')

def c_load_x(S):
    a, b = T, T + 1
    S(f'v_lshrrev_b32 v{T+2}, 3, v{vLANE}\nv_mul_u32_u24 v{a}, 896, v{T+2}')
    S(f'v_lshrrev_b32 v{T+2}, 4, v{vLANE}\nv_and_b32 v{T+3}, 7, v{vLANE}\nv_xor_b32 v{T+2}, v{T+2}, v{T+3}\nv_lshl_add_u32 v{a}, v{T+2}, 4, v{a}\nv_xor_b32 v{b}, 64, v{a}')
    S(f'v_add_u32 v{b}, {8*896}, v{b}\nv_add_u32 v{T+2}, {16*896}, v{a}\nv_add_u32 v{T+3}, {16*896}, v{b}')
    S(f's_lshl_b32 s{sT0}, s{sRB}, 2\ns_add_u32 s{sT0}, s{sT0}, s{sWAVE}\ns_mul_i32 s{sT0}, s{sT0}, {32*896}')
    S(f's_mul_i32 s{sT1}, s{sWAVE}, {SLOT}\ns_lshl_b32 s{sT3}, s{sROT1}, 7')
    for lc in range(7):
        S(f's_add_u32 s{sT2}, s{sT0}, s{sT3}')
        for g in range(4):
            S(f's_add_u32 m0, s{sT1}, {lc*4096 + g*1024}')
            if g == 0 and lc < 6: wrap_inc(S, sT3, 128, 896)
            S(f'buffer_load_dwordx4 v{T+g}, {srd(SRD_X)}, s{sT2} offen lds', tok=('x', lc))
    stamp(S, 'e5')
    xa = T + 4
    S(f'v_and_b32 v{TT}, 31, v{vLANE}\nv_bfe_u32 v{TT+1}, v{vLANE}, 1, 3\nv_lshrrev_b32 v{xa}, 5, v{vLANE}\nv_xor_b32 v{TT+1}, v{TT+1}, v{xa}')
    S(f'v_lshlrev_b32 v{TT+1}, 4, v{TT+1}\nv_lshl_add_u32 v{xa}, v{TT}, 7, v{TT+1}\nv_add_u32 v{xa}, s{sT1}, v{xa}')
    for q in range(1, 4): S(f'v_xor_b32 v{xa+q}, {q*32}, v{xa}')
    S(f's_mov_b32 s{sSEL_LO}, 0x00003f80\ns_mov_b32 s{sSEL_HI}, 0x3f800000')
    S(f's_cmp_ge_u32 s{sROLE}, 8\ns_cselect_b32 s{sT0}, 56, 64')
    lane_consts_tr(S, vVA, TT, f's{sT0}', 'A')
    sA, sB, qA, qB, one = U, U + 1, U + 2, U + 3, U + 4
    S(f'v_mov_b32 v{sA}, 0\nv_mov_b32 v{sB}, 0\nv_mov_b32 v{qA}, 0\nv_mov_b32 v{qB}, 0\nv_mov_b32 v{one}, 0x3f803f80')
    def stats(lc):
        for q in range(4):
            for j in range(4):
                r = X0 + (lc * 4 + q) * 4 + j
                S(f'v_dot2c_f32_bf16 v{sA + (j & 1)}, v{r}, v{one}\nv_dot2c_f32_bf16 v{qA + (j & 1)}, v{r}, v{r}')
    for lc in range(7):
        S.wait(('x', lc))
        if lc in (0, 3, 6): stamp(S, 'e%d' % (6 + lc // 3))
        for q in range(4):
            S(f'ds_read_b128 {v(X0 + (lc*4+q)*4, 4)}, v{xa+q} offset:{lc*4096}')
        if lc == 6: S.ext(c_signal(EV_XFREE))
        if lc > 0: stats(lc - 1)
    stamp(S, 1)
    stats(6)
    t = U + 5
    S(f'v_add_f32 v{sA}, v{sA}, v{sB}\nv_add_f32 v{qA}, v{qA}, v{qB}\nv_mov_b32 v{sB}, v{sA}\nv_mov_b32 v{qB}, v{qA}')
    S(f'v_permlane32_swap_b32 v{sA}, v{sB}\nv_permlane32_swap_b32 v{qA}, v{qB}')
    S(f'v_add_f32 v{sA}, v{sA}, v{sB}\nv_add_f32 v{qA}, v{qA}, v{qB}')
    inv = hx(f2u(1.0 / 448))
    S(f'v_mul_f32 v{sA}, {inv}, v{sA}\nv_mul_f32 v{qA}, {inv}, v{qA}')
    S(f'v_fma_f32 v{qA}, -v{sA}, v{sA}, v{qA}\nv_max_f32 v{qA}, 0, v{qA}')
    S(f'v_cvt_pk_bf16_f32 v{t}, v{sA}, v{qA}')
    S(f'v_lshlrev_b32 v{vNM}, 16, v{t}\nv_xor_b32 v{vNM}, 0x80000000, v{vNM}')
    R = Stream()
    R(f'v_and_b32 v{qA}, 0xffff0000, v{t}\nv_add_f32 v{qA}, {hx(f2u(1e-5))}, v{qA}')
    R(f'v_cvt_pk_bf16_f32 v{t}, v{qA}, v{qA}\nv_and_b32 v{qA}, 0xffff0000, v{t}\nv_sqrt_f32 v{qA}, v{qA}')
    R(f'v_nop\nv_cvt_pk_bf16_f32 v{t}, v{qA}, v{qA}\nv_and_b32 v{vSD}, 0xffff0000, v{t}\nv_rcp_f32 v{vR}, v{vSD}')
    R(f'v_nop\nv_mul_f32 v{vNRL}, {hx(f2u(-L2E))}, v{vR}\nv_cndmask_b32 v{vRM}, v{vR}, 0, {HI}')
    return R.l

def center(s):
    S = Stream()
    for j in range(4):
        r = X0 + s * 4 + j
        a, b = TT + 2 * j, TT + 2 * j + 1
        S(f'v_dot2_f32_bf16 v{a}, v{r}, s{sSEL_LO}, v{vNM}\nv_dot2_f32_bf16 v{b}, v{r}, s{sSEL_HI}, v{vNM}')
    for j in range(4):
        r = X0 + s * 4 + j
        S(f'v_cvt_pk_bf16_f32 v{r}, v{TT+2*j}, v{TT+2*j+1}')
    return S.l
def center5(s):
    S = Stream()
    for j in range(4):
        r = X0 + s * 4 + j
        a, b = TT + 2 * j, TT + 2 * j + 1
        S(f'v_lshlrev_b32 v{a}, 16, v{r}\nv_and_b32 v{b}, 0xffff0000, v{r}\nv_add_f32 v{a}, v{a}, v{vNM}\nv_add_f32 v{b}, v{b}, v{vNM}')
        S(f'v_cvt_pk_bf16_f32 v{r}, v{a}, v{b}')
    return S.l

def silu_tile(acc, u, soff, tok):
    S = Stream()
    for g in range(4):
        a = acc + 4 * g
        for i in range(4): S(f'v_mul_f32 v{TT+i}, v{a+i}, v{vNRL}')
        for i in range(4): S(f'v_exp_f32 v{TT+i}, v{TT+i}')
        for i in range(4): S(f'v_fma_f32 v{TT+i}, v{TT+i}, v{vSD}, v{vSD}')
        for i in range(4): S(f'v_rcp_f32 v{TT+i}, v{TT+i}')
        for i in range(4): S(f'v_mul_f32 v{TT+4+i}, v{a+i}, v{TT+i}')
        S(f'v_cvt_pk_bf16_f32 v{u+2*g}, v{TT+4}, v{TT+5}\nv_cvt_pk_bf16_f32 v{u+2*g+1}, v{TT+6}, v{TT+7}')
        if g % 2 == 1:
            S(f'buffer_store_dwordx4 {v(u + 4*(g//2), 4)}, v{vL16}, {srd(SRD_WS)}, s{soff[0]} offen offset:{soff[1] + 1024*(g//2)} sc1', tok=tok)
    return S.l

def part(f, s, lo, hi):
    n = len(f); k = hi - lo + 1
    return f[(s - lo) * n // k:(s - lo + 1) * n // k]

class Steps:
    def __init__(self, single):
        self.steps = []
        for st in range(3):
            for s in range(28):
                h = st * 2 + s // 14; sp = s % 14
                self.steps.append(dict(st=st, s=s, nt=2, h=h, off=sp * 2048, first=(sp == 0), last=(sp == 13)))
        if single:
            for s in range(28):
                self.steps.append(dict(st=3, s=s, nt=1, h=6, off=s * K1, first=(s == 0), last=False))
    def reads(self, n):
        if n >= len(self.steps): return [], []
        p = self.steps[n]; S = Stream(); pre = Stream()
        ring = AF + (n % 3) * 8
        if p['first']:
            pre.ext(cnt_check(p['h'], vCT))
            if p['nt'] == 2:
                b = half_base(p['h'])
                pre(f'v_add_u32 v{vWA[0]}, {b}, v{vVA[0]}\nv_add_u32 v{vWA[1]}, {b}, v{vVA[1]}')
        if p['nt'] == 2:
            for c in range(2):
                for u in range(2):
                    S(f'ds_read_b64_tr_b16 {v(ring + 4*c + 2*u, 2)}, v{vWA[c]} offset:{p["off"] + 512*u}', tok=('a', n))
        else:
            for u in range(2):
                S(f'ds_read_b64_tr_b16 {v(ring + 2*u, 2)}, v{vVS} offset:{p["off"] + 256*u}', tok=('a', n))
        if p['last'] and p['h'] < 2: S.ext(c_signal(EV_C0 + p['h']))
        if n + 2 < len(self.steps) and self.steps[n + 2]['first']:
            S.ext(cnt_read(self.steps[n + 2]['h'], vCT))
        return pre.l, S.l
    def mfmas(self, n):
        p = self.steps[n]; ring = AF + (n % 3) * 8; out = []
        for c in range(p['nt']):
            acc = ACC[p['st'] % 2][c]
            C = '0' if p['s'] == 0 else v(acc, 16)
            out.append(Ins(f'v_mfma_f32_32x32x16_bf16 {v(acc,16)}, {v(ring+4*c,4)}, {v(X0+4*p["s"],4)}, {C}'))
        return out
    def stage(self, st, fill=None, perstep=None, mid=None):
        idx = [n for n, p in enumerate(self.steps) if p['st'] == st]
        groups = []
        for n in idx:
            p = self.steps[n]
            pre, rd = self.reads(n + 2)
            m = self.mfmas(n)
            g = []
            if mid and p['s'] in mid: g += mid[p['s']]
            on = p['s'] > 0 or perstep
            w = Stream(); w.wait(('a', n + 1))
            if p['nt'] == 2:
                g += [m[0]] + pre + rd + ([None] * 2 if on else []) + [m[1]] + w.l + ([None] * 5 if on else [])
            else:
                g += [m[0]] + pre + rd + ([None] * 3 if on else [])
            if perstep: g = interleave([g], perstep(p['s']))
            groups.append(g)
        if perstep: return [x for g in groups for x in g]
        return interleave(groups, fill)

def c_common(S):
    if Opt.cprio: S('s_setprio 2')
    rest = c_load_x(S)
    S.ext(cnt_read(0, vCT))
    for s in range(Opt.ncen): S.ext(center(s))
    P = Steps(True)
    for n in range(2):
        pre, rd = P.reads(n); S.ext(pre); S.ext(rd)
    stamp(S, 2)
    f = []
    for s in range(Opt.ncen, 28): f += center5(s)
    S.ext(P.stage(0, perstep=lambda s: part(f, s, 0, 25) if s < 26 else (rest if s == 26 else [])))
    stamp(S, 3)

def c_ffn(S):
    P = Steps(True)
    e = Stream(); t = T
    trb(e, vVS, 3, 64, t)
    e(f's_lshl_b32 s{sT0}, s{sRB}, 2\ns_add_u32 s{sT0}, s{sT0}, s{sWAVE}\ns_mul_i32 s{sT0}, s{sT0}, {112*K1}')
    e(f's_mul_i32 s{sT1}, s{sIDX}, 7\ns_and_b32 s{sT2}, s{sIDX}, 1\ns_add_u32 s{sT3}, s{sT1}, s{sT2}\ns_lshl_b32 s{sT3}, s{sT3}, 11\ns_add_u32 s{sFT}, s{sT0}, s{sT3}')
    e(f's_mul_i32 s{sT2}, s{sT2}, 6\ns_sub_u32 s{sT1}, s{sT1}, s{sT2}\ns_add_u32 s{sT1}, s{sT1}, 6\ns_lshl_b32 s{sT1}, s{sT1}, 11\ns_add_u32 s{sFS}, s{sT0}, s{sT1}')
    for st in (1, 2, 3):
        pa = ACC[(st - 1) % 2]
        fill = (e.l if st == 1 else []) + [Ins(f's_add_u32 s{sT0}, s{sFT}, {(st-1)*4096}')]
        fill += silu_tile(pa[0], T, (sT0, 0), 'st') + silu_tile(pa[1], U, (sT0, 2048), 'st')
        if st == 3:
            t = Stream(); tag_prefetch(t, vTAG); fill = fill + t.l
        S.ext(P.stage(st, fill))
        stamp(S, 3 + st)
    S.ext(silu_tile(ACC[1][0], T, (sFS, 0), 'st'))

def minmax(S, X, mx, mn, t0, t1):
    for op, d in (('v_max3_f32', mx), ('v_min3_f32', mn)):
        S(f'{op} v{d}, v{X}, v{X+1}, v{X+2}')
        for i in range(3, 15, 2): S(f'{op} v{d}, v{d}, v{X+i}, v{X+i+1}')
    S(f'v_max_f32 v{mx}, v{mx}, v{X+15}\nv_min_f32 v{mn}, v{mn}, v{X+15}')
    S(f'v_mov_b32 v{t0}, v{mx}\nv_mov_b32 v{t1}, v{mn}\nv_permlane32_swap_b32 v{mx}, v{t0}\nv_permlane32_swap_b32 v{mn}, v{t1}')
    S(f'v_max_f32 v{mx}, v{mx}, v{t0}\nv_min_f32 v{mn}, v{mn}, v{t1}')
    S(f'v_mul_f32 v{mx}, {hx(f2u(-L2E))}, v{mx}\nv_mul_f32 v{mn}, {hx(f2u(L2E))}, v{mn}')

LX, LE, LT = 144, 160, 176
vLPW, vLMK, vLL2E, vLRD = 184, 185, 186, 187
def softmax_k(c):
    S = Stream()
    rw = LE
    S(f'ds_read_b128 {v(rw,4)}, v{vLRD} offset:{c*2048}\nds_read_b128 {v(rw+4,4)}, v{vLRD} offset:{c*2048+1024}')
    for i in range(8): S(f'v_lshlrev_b32 v{LX+2*i}, 16, v{rw+i}\nv_and_b32 v{LX+2*i+1}, 0xffff0000, v{rw+i}')
    mx, mn, t0, t1 = LT, LT + 1, LT + 2, LT + 3
    minmax(S, LX, mx, mn, t0, t1)
    for sign in range(2):
        E = LE if sign == 0 else LX
        for i in range(16):
            if sign == 0: S(f'v_fma_f32 v{E+i}, v{LX+i}, v{vLL2E}, v{mx}')
            else: S(f'v_fma_f32 v{E+i}, -v{LX+i}, v{vLL2E}, v{mn}')
        for i in range(16): S(f'v_exp_f32 v{E+i}, v{E+i}')
        s0, s1 = LT + 4, LT + 5
        S(f'v_add_f32 v{s0}, v{E}, v{E+1}\nv_add_f32 v{s1}, v{E+12}, v{E+13}')
        for i in range(2, 12): S(f'v_add_f32 v{s0}, v{s0}, v{E+i}')
        S(f'v_add_f32 v{s1}, v{s1}, v{E+14}\nv_add_f32 v{s1}, v{s1}, v{E+15}\nv_fmac_f32 v{s0}, v{s1}, v{vLMK}')
        S(f'v_mov_b32 v{s1}, v{s0}\nv_permlane32_swap_b32 v{s0}, v{s1}\nv_add_f32 v{s0}, v{s0}, v{s1}\nv_rcp_f32 v{s0}, v{s0}')
        for i in range(16): S(f'v_mul_f32 v{E+i}, v{E+i}, v{s0}')
        for i in range(8): S(f'v_cvt_pk_bf16_f32 v{E+i}, v{E+2*i}, v{E+2*i+1}')
        for qd in range(4):
            if qd == 3: S(f's_mov_b64 exec, 0xffffffff')
            S(f'ds_write_b64 v{vLPW}, {v(E+2*qd, 2)} offset:{c*14336 + sign*56 + qd*16}')
            if qd == 3: S(f's_mov_b64 exec, -1')
    return S.l

def scale_pack(acc, dst, masked=True):
    S = Stream()
    for i in range(16): S(f'v_mul_f32 v{acc+i}, v{acc+i}, v{vRM if (masked and i >= 12) else vR}')
    for i in range(8): S(f'v_cvt_pk_bf16_f32 v{dst+i}, v{acc+2*i}, v{acc+2*i+1}')
    return S.l

def phi_mfma(acc, c, b):
    return [Ins(f'v_mfma_f32_32x32x16_bf16 {v(acc,16)}, {v(WPHI+8*c,4)}, {v(b,4)}, 0'),
            Ins(f'v_mfma_f32_32x32x16_bf16 {v(acc,16)}, {v(WPHI+8*c+4,4)}, {v(b+4,4)}, {v(acc,16)}')]

def c_attn(S):
    vHO, vVW, vWP = vVS, vNRL, vSD
    P = Steps(False)
    e = Stream(); t = TT
    trb(e, vWP, 2, 56, t)
    e(f'v_add_u32 v{vWP}, {WPHI_L}, v{vWP}')
    for c in range(2):
        for st in range(2):
            for u in range(2):
                e(f'ds_read_b64_tr_b16 {v(WPHI + 8*c + 4*st + 2*u, 2)}, v{vWP} offset:{c*1568 + (16*st + 8*u)*56}')
    e(f's_lshl_b32 s{sT0}, s{sWAVE}, 12\ns_add_u32 s{sT0}, s{sT0}, {SPARE}\nv_add_u32 v{vHO}, s{sT0}, v{vL16}')
    ka = ACC[0]
    f1 = e.l + scale_pack(ka[0], T) + scale_pack(ka[1], T + 8)
    t = Stream()
    for c in range(2):
        d = T + 8 * c
        for i in range(8): t(f'v_cvt_pk_bf16_f32 v{d+i}, v{ka[c]+2*i}, v{ka[c]+2*i+1}')
        t(f'v_cndmask_b32 v{d+6}, v{d+6}, v{d+4}, {HI}\nv_cndmask_b32 v{d+7}, v{d+7}, v{d+5}, {HI}')
        t(f'ds_write_b128 v{vHO}, {v(d,4)} offset:{c*2048}\nds_write_b128 v{vHO}, {v(d+4,4)} offset:{c*2048+1024}')
    f2 = t.l + c_signal(EV_PK)
    kA, kB = TT + 1, TT + 2
    t = Stream()
    trb(t, kA, 3, 112, TT + 3); trb(t, kB, 3, 72, TT + 3)
    t(f's_lshr_b32 s{sT0}, s{sWAVE}, 1\ns_and_b32 s{sT1}, s{sWAVE}, 1\ns_mul_i32 s{sT2}, s{sT0}, 14336\ns_mul_i32 s{sT3}, s{sT1}, 56\ns_add_u32 s{sT2}, s{sT2}, s{sT3}\nv_add_u32 v{kA}, s{sT2}, v{kA}')
    t(f's_mul_i32 s{sT2}, s{sT0}, 9216\ns_add_u32 s{sT2}, s{sT2}, {SLOT}\nv_add_u32 v{kB}, s{sT2}, v{kB}')
    t(f'v_and_b32 v{TT+3}, 31, v{vLANE}\ns_lshl_b32 s{sT0}, s{sWAVE}, 5\nv_add_u32 v{TT+3}, s{sT0}, v{TT+3}\nv_lshrrev_b32 v{TT+4}, 5, v{vLANE}\nv_lshlrev_b32 v{TT+4}, 3, v{TT+4}')
    t(f'v_mul_u32_u24 v{vVW}, 72, v{TT+3}\nv_add_u32 v{vVW}, v{vVW}, v{TT+4}\nv_add_u32 v{vVW}, {SLOT}, v{vVW}')
    t(f'v_mov_b32 v{TT}, 0x3f80')
    t(f's_lshl_b32 s{sFT}, s{sIDX}, 2\ns_add_u32 s{sFT}, s{sFT}, s{sWAVE}\ns_lshl_b32 s{sFS}, s{sFT}, 8\ns_lshl_b32 s{sFT}, s{sFT}, 4\ns_add_u32 s{sFT}, s{sFT}, s{sRB}\ns_lshl_b32 s{sFT}, s{sFT}, 12\ns_add_u32 s{sFT}, s{sFT}, {WS_KVP}')
    t(f's_lshl_b32 s{sT0}, s{sRB}, 2\ns_add_u32 s{sFS}, s{sFS}, s{sT0}\ns_add_u32 s{sFS}, s{sFS}, {WS_FP}')
    f3 = t.l
    def ps1(s):
        if 1 <= s <= 8: return part(f1, s, 1, 8)
        if 11 <= s <= 13: return part(f2, s, 11, 13)
        if 15 <= s <= 24: return part(f3, s, 15, 24)
        return []
    S.ext(P.stage(1, perstep=ps1, mid={9: phi_mfma(ka[0], 0, T) + phi_mfma(ka[1], 1, T + 8)}))
    stamp(S, 4)
    va = ACC[1]
    t = Stream()
    for c in range(2):
        t.ext(scale_pack(va[c], T + 8 * c, masked=False))
        d = T + 8 * c
        t(f'v_cndmask_b32 v{d+6}, v{d+6}, v{TT}, {HI}\nv_cndmask_b32 v{d+7}, v{d+7}, 0, {HI}')
        for qd in range(4): t(f'ds_write_b64 v{vVW}, {v(d+2*qd, 2)} offset:{c*9216 + qd*16}')
    vfill = t.l
    bufs = [va[1], va[1] + 8, T, T + 8]
    def kvread(ts):
        kv = Stream(); b = bufs[ts % 4]
        for u in range(2): kv(f'ds_read_b64_tr_b16 {v(b + 2*u, 2)}, v{kA} offset:{(16*ts + 4*u)*112}')
        for u in range(2): kv(f'ds_read_b64_tr_b16 {v(b + 4 + 2*u, 2)}, v{kB} offset:{(16*ts + 4*u)*72}')
        return kv.l
    def kvm(ts):
        b = bufs[ts % 4]
        return [Ins(f'v_mfma_f32_32x32x16_bf16 {v(va[0],16)}, {v(b,4)}, {v(b+4,4)}, {"0" if ts == 0 else v(va[0],16)}')]
    kvst = Stream()
    for qd in range(4):
        kvst(f'buffer_store_dwordx4 {v(va[0]+4*qd,4)}, v{vL16}, {srd(SRD_WS)}, s{sFT} offen offset:{qd*1024} sc1', tok='kvp')
    k0 = Opt.kvstep
    mid = {}
    mid[k0] = [Ins('s_waitcnt lgkmcnt(0)'), Ins('s_barrier')] + kvread(0) + kvread(1) + kvread(2) + kvread(3)
    mid[k0 + 1] = kvm(0) + kvread(4) + kvm(1) + kvread(5)
    mid[k0 + 2] = kvm(2) + kvread(6) + kvm(3) + kvread(7)
    mid[k0 + 3] = kvm(4) + kvm(5)
    mid[k0 + 4] = kvm(6) + kvm(7)
    def ps2(s):
        if 1 <= s <= 10: return part(vfill, s, 1, 10)
        if s == k0 + 6:
            tp = Stream(); tag_prefetch(tp, vTAG); return kvst.l + tp.l
        return []
    S.ext(P.stage(2, perstep=ps2, mid=mid))
    stamp(S, 5)
    qa = ACC[0]
    S.ext(scale_pack(qa[0], T)); S.ext(phi_mfma(qa[0], 0, T)); S.ext(scale_pack(qa[1], T + 8)); S.ext(phi_mfma(qa[1], 1, T + 8))
    S(f's_lshl_b32 s{sT0}, s{sRB}, 2\ns_add_u32 s{sT0}, s{sT0}, s{sWAVE}\ns_lshl_b32 s{sT0}, s{sT0}, 3\ns_add_u32 s{sT0}, s{sT0}, s{sIDX}\ns_lshl_b32 s{sT0}, s{sT0}, 13\ns_add_u32 s{sT0}, s{sT0}, {WS_PQ}\ns_add_u32 s{sT1}, s{sT0}, 4096')
    for c in range(2):
        X = qa[c]; E = va[c]; d = AF if c == 0 else X0
        for i in range(4): S(f'v_cndmask_b32 v{X+12+i}, v{X+12+i}, v{X+8+i}, {HI}')
        mx, mn = TT + 4, TT + 5
        minmax(S, X, mx, mn, TT + 6, TT + 7)
        for i in range(16): S(f'v_fma_f32 v{E+i}, v{X+i}, s{sL2E}, v{mx}')
        for i in range(16): S(f'v_exp_f32 v{E+i}, v{E+i}')
        for i in range(8): S(f'v_cvt_pk_bf16_f32 v{d+i}, v{E+2*i}, v{E+2*i+1}')
        for hh in range(2):
            S(f'buffer_store_dwordx4 {v(d+4*hh,4)}, v{vL16}, {srd(SRD_WS)}, s{sT0 + c} offen offset:{hh*1024} sc1', tok='st')
        for i in range(16): S(f'v_fma_f32 v{X+i}, -v{X+i}, s{sL2E}, v{mn}')
        for i in range(16): S(f'v_exp_f32 v{X+i}, v{X+i}')
        for i in range(8): S(f'v_cvt_pk_bf16_f32 v{d+8+i}, v{X+2*i}, v{X+2*i+1}')
        for hh in range(2):
            S(f'buffer_store_dwordx4 {v(d+8+4*hh,4)}, v{vL16}, {srd(SRD_WS)}, s{sT0 + c} offen offset:{2048 + hh*1024} sc1', tok='st')
        if c == 0:
            S.wait('kvp'); tag_get(S, vTAG); flag_store(S, sFS, TT)
    stamp(S, 6)

PHI = 16; PN = 144; KV = 208; XT = 240
vO = 3; vVW2 = [6, 7]
def c_publish(S, have_tag, tile):
    if tile:
        S.ext(c_signal(EV_END))
        S(f'v_and_b32 v8, 31, v{vLANE}\nv_mul_u32_u24 v{vO}, 896, v8\nv_lshrrev_b32 v8, 5, v{vLANE}\nv_lshl_add_u32 v{vO}, v8, 4, v{vO}')
        S(f's_and_b32 s{sT0}, s{sW4}, 1\ns_lshl_b32 s{sT1}, s{sTB}, 1\ns_add_u32 s{sT0}, s{sT0}, s{sT1}\ns_mul_i32 s{sFT}, s{sT0}, {32*896}')
        S(f's_lshr_b32 s{sT0}, s{sW4}, 1\ns_lshl_b32 s{sT0}, s{sT0}, 6\ns_add_u32 s{sFT}, s{sFT}, s{sT0}\ns_lshl_b32 s{sT0}, s{sCB}, 7\ns_add_u32 s{sFT}, s{sFT}, s{sT0}')
        for hh in range(2):
            S(f'buffer_load_dwordx4 {v(XT+4*hh,4)}, v{vO}, {srd(SRD_X)}, s{sFT} offen offset:{32*hh}')
        lane_consts_tr(S, vVW2, 8, 64, 'B')
        S(f's_mul_i32 s{sT3}, s{sW4}, {A_REG}\ns_add_u32 s{sT3}, s{sT3}, {A_BASE}')
        S(f's_xor_b32 s{sT0}, s{sW4}, 3\ns_lshr_b32 s{sT1}, s{sT0}, 1\ns_lshl_b32 s{sT1}, s{sT1}, 6\ns_and_b32 s{sT2}, s{sT0}, 1\ns_lshl_b32 s{sT2}, s{sT2}, 16\ns_lshl_b32 s{sT0}, s{sT0}, 12')
        S(f'v_add_u32 v{vVW2[0]}, s{sT3}, v{vVW2[0]}\nv_xor_b32 v{vVW2[0]}, s{sT1}, v{vVW2[0]}\nv_xor_b32 v{vVW2[1]}, 64, v{vVW2[0]}')
        S(f's_add_u32 s{sT0}, s{sT0}, s{sT3}\nv_add_u32 v4, s{sT0}, v{vL16}\nv_add_u32 v10, s{sT2}, v{vL16}\nv_xor_b32 v11, 0x10000, v10')
    S(f's_lshl_b32 s{sT0}, s{sRB}, 1\ns_lshr_b32 s{sT1}, s{sW4}, 1\ns_add_u32 s{sT0}, s{sT0}, s{sT1}\ns_lshl_b32 s{sT0}, s{sT0}, 11\ns_lshl_b32 s{sT1}, s{sROLE}, 3\ns_add_u32 s{sT0}, s{sT0}, s{sT1}')
    S(f's_and_b32 s{sT1}, s{sW4}, 1\ns_lshl_b32 s{sT1}, s{sT1}, 2\ns_add_u32 s{sT0}, s{sT0}, s{sT1}\ns_add_u32 s{sT0}, s{sT0}, {WS_FH}')
    if not have_tag: tag_get(S, vTAG)
    S.wait('st')
    flag_store(S, sT0, TT, 7)
    stamp(S, 7)

W2R = 16; FACC = 144; HR = 208
vLW, vLS, vL2 = 3, 4, 5
def swz_voff(S, dst, pitch, tmp):
    S(f'v_lshrrev_b32 v{tmp}, 3, v{vLANE}\nv_mul_lo_u32 v{dst}, v{tmp}, {pitch}')
    S(f'v_bfe_u32 v{tmp}, v{vLANE}, 4, 1\nv_lshlrev_b32 v{tmp}, 2, v{tmp}\nv_and_b32 v{tmp+1}, 7, v{vLANE}\nv_xor_b32 v{tmp}, v{tmp}, v{tmp+1}\nv_lshl_add_u32 v{dst}, v{tmp}, 4, v{dst}')
def flat(l): return [x for y in l for x in y]
def sprinkle(main, units):
    out = []; n = len(main); k = len(units); j = 0
    for i, x in enumerate(main):
        while j < k and (j + 0.5) * n / max(k, 1) <= i and x.kind in ('valu', 'trans'):
            out += units[j]; j += 1
        out.append(x)
    return out + flat(units[j:])

def l_phase1(S, ffn, tile):
    sBLK, sP64, sP448, sP32, sW2, sK2 = sU0, sU1, sU2, sU3, sU4, sU5
    swz_voff(S, vLW, f's{sPITCH}', 8)
    S(f's_mul_i32 s{sFS}, s{sW4}, s{sPITCH}\ns_lshl_b32 s{sFS}, s{sFS}, 3')
    S(f's_lshl_b32 s{sT3}, s{sW4}, 10\ns_lshl_b32 s{sP64}, s{sPITCH}, 6\ns_lshl_b32 s{sP32}, s{sPITCH}, 5\ns_mul_i32 s{sP448}, s{sPITCH}, 448\ns_mul_i32 s{sBLK}, s{sP64}, s{sROT1}')
    def dma_half(h):
        units = []
        st = h // 2
        for k in range(7):
            St = Stream()
            kk = (h % 2) * 7 + k
            St(f's_add_u32 m0, s{sT3}, {half_base(h) + k*4096}')
            if kk % 2 == 0:
                St(f's_add_u32 s{sT0}, s{sBLK}, s{sFS}\ns_add_u32 s{sT0}, s{sT0}, s{sCOL[st]}')
            else:
                if k == 0: St(f's_add_u32 s{sT0}, s{sBLK}, s{sFS}\ns_add_u32 s{sT0}, s{sT0}, s{sCOL[st]}')
                St(f's_add_u32 s{sT0}, s{sT0}, s{sP32}')
                wrap_inc(St, sBLK, f's{sP64}', f's{sP448}')
            St(f'buffer_load_dwordx4 v{vLW}, {srd(SRD_W)}, s{sT0} offen lds', tok=('h', h))
            units.append(St.l)
        return units
    def sig(h):
        S.wait(('h', h))
        if h < 5: stamp(S, 2 + h)
        l_signal(S, h)
    S.ext(flat(dma_half(0)))
    if not ffn:
        S(f's_add_u32 m0, s{sT3}, {WPHI_L}\ns_mul_i32 s{sT0}, s{sIDX}, 3136\ns_add_u32 s{sT0}, s{sT0}, s{sT3}\ns_cmp_eq_u32 s{sW4}, 3\ns_cselect_b32 exec_hi, 0, -1')
        S(f'buffer_load_dwordx4 v{vL16}, {srd(SRD_WPHI)}, s{sT0} offen lds', tok=('h', 0))
        S('s_mov_b64 exec, -1')
    stamp(S, 'e5')
    lab = newlab('nt')
    S(f's_or_b32 s{sT0}, s2, s{sW4}\ns_cmp_lg_u32 s{sT0}, 0\ns_cbranch_scc1 {lab}')
    raw(S, f's_mov_b32 s{sT0}, {WS_TAG}\nv_mov_b32 v9, 0\ns_mov_b64 exec, 1\nbuffer_load_dword v8, v9, {srd(SRD_WS)}, s{sT0} offen sc1\ns_waitcnt vmcnt(0)\n'
           f'v_add_u32 v8, 1, v8\nv_max_u32 v8, 1, v8\ns_nop 1\nbuffer_store_dword v8, v9, {srd(SRD_WS)}, s{sT0} offen sc1\nbuffer_store_dword v8, v9, {srd(SRD_DBG)}, 0 offen sc1\ns_waitcnt vmcnt(0)\ns_mov_b64 exec, -1\n{lab}:')
    S(f'v_lshlrev_b32 v{vLC}, 2, v{vLANE}\nv_add_u32 v{vLC}, {CTL}, v{vLC}\nv_mov_b32 v{vLONE}, 1\nv_mov_b32 v{vLP+4}, {CTL}')
    if ffn:
        S(f'v_lshrrev_b32 v8, 2, v{vLANE}\nv_mul_u32_u24 v{vLS}, 3584, v8\nv_and_b32 v8, 3, v{vLANE}\nv_lshl_add_u32 v{vLS}, v8, 4, v{vLS}')
    else:
        S(f'v_and_b32 v8, 31, v{vLANE}\ns_lshl_b32 s{sT0}, s{sW4}, 5\nv_add_u32 v8, s{sT0}, v8\nv_lshrrev_b32 v9, 5, v{vLANE}\nv_lshlrev_b32 v9, 3, v9')
        S(f'v_mul_u32_u24 v{vLPW}, 112, v8\nv_add_u32 v{vLPW}, v{vLPW}, v9')
        S(f'v_cndmask_b32 v{vLMK}, 1.0, 0, {HI}\nv_mov_b32 v{vLL2E}, s{sL2E}')
    S(f's_lshl_b32 s{sT0}, s{sW4}, 12\ns_add_u32 s{sT0}, s{sT0}, {SPARE}\nv_add_u32 v{vLRD}, s{sT0}, v{vL16}')
    if tile:
        S(f's_mov_b32 s{sT1}, 896'); swz_voff(S, vL2, f's{sT1}', 8)
        lane_consts_tr(S, vVW2, 8, 64, 'B')
        S(f'v_add_u32 v9, s{sT0}, v{vVW2[0]}\nv_add_u32 v10, s{sT0}, v{vVW2[1]}')
        S(f's_mul_i32 s{sW2}, s{sW4}, {448*896}\ns_lshl_b32 s{sT2}, s{sCB}, 7\ns_add_u32 s{sW2}, s{sW2}, s{sT2}\ns_mul_i32 s{sK2}, s{sROT2}, {16*896}')
        S(f'v_add_u32 v13, {8*896}, v{vL2}')
    def w2raw(lo, hi):
        out = []
        if tile:
            for ks in range(lo, hi):
                t = Stream()
                t(f's_add_u32 s{sT1}, s{sW2}, s{sK2}')
                t(f'buffer_load_dwordx4 {v(W2R+8*ks,4)}, v{vL2}, {srd(SRD_W2)}, s{sT1} offen')
                t(f'buffer_load_dwordx4 {v(W2R+8*ks+4,4)}, v13, {srd(SRD_W2)}, s{sT1} offen')
                wrap_inc(t, sK2, 16 * 896, 448 * 896)
                out.append(t.l)
        return out
    def tr(ks):
        if Opt.notr:
            S('s_waitcnt vmcnt(0)'); return
        o = (ks % 2) * 2048; b = W2R + 8 * ks
        S(f'ds_write_b128 v{vLRD}, {v(b,4)} offset:{o}\nds_write_b128 v{vLRD}, {v(b+4,4)} offset:{o+1024}')
        for c in range(2):
            for u in range(2):
                S(f'ds_read_b64_tr_b16 {v(b + 4*c + 2*u, 2)}, v{9+c} offset:{o + 1024*u}')
    sig(0)
    l_wait(S, EV_XFREE)
    stamp(S, 1)
    S.ext(flat(dma_half(1))); S.ext(flat(dma_half(2))); sig(1)
    S.ext(flat(dma_half(3))); sig(2)
    S.ext(flat(dma_half(4))); sig(3)
    tag_fetch_l0(S)
    if ffn:
        S.ext(flat(w2raw(0, 4)))
        sig(4)
        l_wait(S, EV_C0)
        S.ext(flat(dma_half(5)))
        S.ext(flat(w2raw(4, 8)))
        sig(5)
        l_wait(S, EV_C1)
        S(f's_lshl_b32 s{sFS}, s{sFS}, 1\ns_add_u32 s{sFS}, s{sFS}, s{sCOLS}')
        for k in range(7):
            S(f's_add_u32 m0, s{sT3}, {k*4096}\ns_add_u32 s{sT0}, s{sBLK}, s{sFS}')
            wrap_inc(S, sBLK, f's{sP64}', f's{sP448}')
            S(f'buffer_load_dwordx4 v{vLS}, {srd(SRD_W)}, s{sT0} offen lds', tok=('h', 6))
        S.ext(flat(w2raw(8, 12)))
        sig(6)
        S.ext(flat(w2raw(12, 16)))
        for ks in range(16): tr(ks)
    else:
        l_wait(S, EV_C0)
        S.ext(flat(dma_half(5)))
        l_wait(S, EV_PK)
        sig(4)
        if Opt.lprio: S('s_setprio 1')
        a = softmax_k(0)
        S.ext(a[:60]); sig(5); S.ext(sprinkle(a[60:], w2raw(0, 6)))
        S.ext(sprinkle(softmax_k(1), w2raw(6, 14)))
        S('s_waitcnt lgkmcnt(0)\ns_barrier')
        if Opt.lprio: S('s_setprio 0')
        S.ext(flat(w2raw(14, 16)))
        if tile:
            for ks in range(16): tr(ks)
    tag_prefetch(S, vTAG); tag_get(S, vTAG)
    if tile:
        l_signal(S, CN_LT)
        l_wait(S, EV_END)
        stamp(S, 7)
        S(f's_mul_i32 s{sT3}, s{sW4}, {F_REG}')
        for i in range(0 if Opt.nodma else 12):
            S(f's_add_u32 m0, s{sT3}, {i*2048}\ns_add_u32 s{sT1}, s{sW2}, s{sK2}')
            S(f'buffer_load_dwordx4 v{vL2}, {srd(SRD_W2)}, s{sT1} offen lds', tok='w2')
            S(f's_add_u32 m0, s{sT3}, {i*2048 + 1024}')
            wrap_inc(S, sK2, 16 * 896, 448 * 896)
            S(f'buffer_load_dwordx4 v13, {srd(SRD_W2)}, s{sT1} offen lds', tok='w2')
        S.ext(cnt_read(CN_LT, vLP)); S.ext(cnt_check(CN_LT, vLP))
        S(f's_lshl_b32 s{sT2}, s{sW4}, 14\ns_add_u32 s{sT2}, s{sT2}, {A_BASE}\ns_lshl_b32 s{sU0}, s{sCB}, 7')
        for hd in range(0 if (Opt.nodma or Opt.nowo) else 4):
            S(f's_add_u32 s{sT0}, s{sCB}, {hd}\ns_and_b32 s{sT0}, s{sT0}, 3\ns_lshl_b32 s{sT1}, s{sW4}, 2\ns_add_u32 s{sT0}, s{sT0}, s{sT1}\ns_mul_i32 s{sT0}, s{sT0}, {28*896}\ns_add_u32 s{sT0}, s{sT0}, s{sU0}')
            for i in range(4):
                S(f's_add_u32 m0, s{sT2}, {hd*4096 + i*1024}')
                if i == 2: S(f's_add_u32 s{sT0}, s{sT0}, {16*896}')
                if hd == 3 and i == 3: S(f's_cmp_eq_u32 s{sW4}, 3\ns_cselect_b32 exec_hi, 0, -1')
                S(f'buffer_load_dwordx4 v{vL2 if i % 2 == 0 else 13}, {srd(SRD_WO)}, s{sT0} offen lds', tok='wo')
        S('s_mov_b64 exec, -1')

def hflag_poll(S):
    S(f'v_and_b32 v8, 3, v{vLANE}\nv_lshlrev_b32 v8, 2, v8\nv_and_b32 v9, 4, v{vLANE}\nv_lshl_add_u32 v8, v9, 4, v8')
    S(f's_lshl_b32 s{sT0}, s{sTB}, 3\ns_add_u32 s{sT0}, s{sT0}, s{sCB}\ns_lshl_b32 s{sT0}, s{sT0}, 8\ns_lshl_b32 s{sT1}, s{sW4}, 4\ns_add_u32 s{sT0}, s{sT0}, s{sT1}\ns_add_u32 s{sT0}, s{sT0}, {WS_FH}')
    poll(S, 8, sT0, 8, 9)

def f_phase2(S):
    stamp(S, 10)
    hflag_poll(S)
    S(f'v_mov_b32 v9, 4\nds_write_b32 v{vCTL}, v9 offset:{128 + 16*CN_WO}')
    stamp(S, 8)
    if Opt.diag == 2: S(f's_mul_i32 s{STAMP0+12}, s{sCNT}, 1000\ns_add_u32 s{STAMP0+12}, s{STAMP0+12}, s{STAMP0}')
    sK = sU1
    S(f's_mul_i32 s{sT1}, s{sTB}, {224*K1}\ns_mul_i32 s{sT2}, s{sW4}, {28*K1}\ns_add_u32 s{sT1}, s{sT1}, s{sT2}\ns_lshl_b32 s{sK}, s{sROT2}, 10')
    S(f'v_add_u32 v9, s{sT3}, v{vVW2[0]}\nv_add_u32 v10, s{sT3}, v{vVW2[1]}\nv_add_u32 v13, {112*K1}, v{vL16}')
    hdst = {}
    for ks in range(28):
        if ks < 6: hdst[ks] = HR + 8 * ks
        elif ks < 16: hdst[ks] = W2R + 8 * (ks - 6)
        else: hdst[ks] = hdst[ks - 12]
    adst = {ks: (W2R + 8 * ks if ks < 16 else W2R + 8 * (10 + (ks - 16) % 3)) for ks in range(28)}
    def hload(ks):
        S(f's_add_u32 s{sT0}, s{sT1}, s{sK}')
        S(f'buffer_load_dwordx4 {v(hdst[ks],4)}, v{vL16}, {srd(SRD_WS)}, s{sT0} offen sc1')
        S(f'buffer_load_dwordx4 {v(hdst[ks]+4,4)}, v13, {srd(SRD_WS)}, s{sT0} offen sc1')
        if ks < 27: wrap_inc(S, sK, 1024, 28 * K1)
    def aread(ks):
        o = (ks - 16) * 2048; b = adst[ks]
        for c in range(2):
            for u in range(2):
                S(f'ds_read_b64_tr_b16 {v(b + 4*c + 2*u, 2)}, v{9+c} offset:{o + 1024*u}')
    for ks in range(6): hload(ks)
    nxt = 6
    for ks in range(28):
        for c in range(2):
            for tt2 in range(2):
                acc = FACC + 16 * (2 * c + tt2)
                S(f'v_mfma_f32_32x32x16_bf16 {v(acc,16)}, {v(adst[ks]+4*c,4)}, {v(hdst[ks]+4*tt2,4)}, {"0" if ks == 0 else v(acc,16)}')
                if c == 0 and tt2 == 0 and 16 <= ks + 2 < 28: aread(ks + 2)
        if Opt.fdiag and ks in (0, 4, 8, 12, 16, 22): stamp(S, 1 + (0, 4, 8, 12, 16, 22).index(ks))
        while nxt < 28 and ((nxt < 16 and nxt - 6 <= ks) or (nxt >= 16 and nxt - 12 <= ks)):
            hload(nxt); nxt += 1
    stamp(S, 9)
    S(f'v_add_u32 v8, s{sT3}, v{vL16}')
    for q in range(4):
        for i in range(4):
            S(f'ds_write_b128 v8, {v(FACC + 16*q + 4*i, 4)} offset:{q*4096 + i*1024}')
    S('s_waitcnt lgkmcnt(0)\ns_barrier')

def a_phase2(S):
    S.ext(cnt_read(CN_WO, vCT)); S.ext(cnt_check(CN_WO, vCT, 1))
    stamp(S, 8)
    for hd in range(4):
        S(f's_add_u32 s{sU0+hd}, s{sCB}, {hd}\ns_and_b32 s{sU0+hd}, s{sU0+hd}, 3\ns_lshl_b32 s{sU0+hd}, s{sU0+hd}, 12')
    S(f's_lshl_b32 s{sT1}, s{sTB}, 17\ns_lshl_b32 s{sT2}, s{sW4}, 14\ns_add_u32 s{sT1}, s{sT1}, s{sT2}\ns_add_u32 s{sT1}, s{sT1}, {WS_PQ}')
    for hd in range(4):
        S(f's_add_u32 s{sT0}, s{sT1}, s{sU0+hd}')
        for tt2 in range(2):
            t = hd * 2 + tt2
            for st in range(0 if Opt.nophi else 4):
                S(f'buffer_load_dwordx4 {v(PHI+16*t+4*st,4)}, v{10 + tt2}, {srd(SRD_WS)}, s{sT0} offen offset:{st*1024} sc1')
    stamp(S, 9)
    S(f'v_lshlrev_b32 v8, 2, v{vLANE}\ns_lshl_b32 s{sT0}, s{sXCD}, 2\ns_add_u32 s{sT0}, s{sT0}, s{sW4}\ns_lshl_b32 s{sT0}, s{sT0}, 8\ns_add_u32 s{sT0}, s{sT0}, {WS_FK}')
    poll(S, 8, sT0, 32, 9, Opt.ksleep)
    stamp(S, 10)
    if Opt.diag == 2: S(f's_mul_i32 s{STAMP0+14}, s{sCNT}, 1000\ns_add_u32 s{STAMP0+14}, s{STAMP0+14}, s{STAMP0}')
    S(f's_lshl_b32 s{sT1}, s{sW4}, 14\ns_add_u32 s{sT1}, s{sT1}, {WS_KVF}')
    def kvload(hd):
        t = Stream()
        t(f's_add_u32 s{sT0}, s{sT1}, s{sU0+hd}')
        for st in range(4):
            t(f'buffer_load_dwordx4 {v(KV+16*(hd%2)+4*st,4)}, v{vL16}, {srd(SRD_WS)}, s{sT0} offen offset:{st*1024} sc1')
        return t.l
    S.ext(kvload(0)); S.ext(kvload(1))
    def num(t):
        hd = t // 2; kb = KV + 16 * (hd % 2); aP = PN + 32 * (t % 2); aN = aP + 16; ph = PHI + 16 * t
        return [Ins(f'v_mfma_f32_32x32x16_bf16 {v(aP,16)}, {v(kb,4)}, {v(ph,4)}, 0'),
                Ins(f'v_mfma_f32_32x32x16_bf16 {v(aN,16)}, {v(kb+8,4)}, {v(ph+8,4)}, 0'),
                Ins(f'v_mfma_f32_32x32x16_bf16 {v(aP,16)}, {v(kb+4,4)}, {v(ph+4,4)}, {v(aP,16)}'),
                Ins(f'v_mfma_f32_32x32x16_bf16 {v(aN,16)}, {v(kb+12,4)}, {v(ph+12,4)}, {v(aN,16)}')]
    def onorm(t):
        S = Stream()
        aP = PN + 32 * (t % 2); aN = aP + 16; ph = PHI + 16 * t
        rP, rN, dn, a, b = TT, TT + 1, TT + 2, TT + 3, TT + 4
        S(f'v_rcp_f32 v{rP}, v{aP+13}\nv_rcp_f32 v{rN}, v{aN+13}')
        S(f'v_mov_b32 v{dn}, {hx(f2u(1e-6))}\nv_fmac_f32 v{dn}, v{aP+12}, v{rP}\nv_fmac_f32 v{dn}, v{aN+12}, v{rN}\nv_rcp_f32 v{dn}, v{dn}')
        S(f'v_nop\nv_mul_f32 v{rP}, v{rP}, v{dn}\nv_mul_f32 v{rN}, v{rN}, v{dn}\nv_mov_b32 v{a}, v{rP}\nv_mov_b32 v{b}, v{rN}')
        S(f'v_permlane32_swap_b32 v{rP}, v{a}\nv_permlane32_swap_b32 v{rN}, v{b}')
        for i in range(16): S(f'v_mul_f32 v{aP+i}, v{aP+i}, v{a}')
        for i in range(16): S(f'v_fmac_f32 v{aP+i}, v{aN+i}, v{b}')
        for i in range(8): S(f'v_cvt_pk_bf16_f32 v{ph+i}, v{aP+2*i}, v{aP+2*i+1}')
        S(f'v_cndmask_b32 v{ph+6}, v{ph+6}, 0, {HI}\nv_cndmask_b32 v{ph+7}, v{ph+7}, 0, {HI}')
        return S.l
    S.ext(num(0))
    for t in range(8):
        o = onorm(t)
        if Opt.fdiag and t in (0, 1, 2, 4, 6): stamp(S, 1 + (0, 1, 2, 4, 6).index(t))
        if t + 1 < 8:
            m = num(t + 1)
            S.ext(m[0:2]); S.ext(o[0:13]); S.ext(m[2:3]); S.ext(o[13:22]); S.ext(m[3:4])
            if t % 2 == 0 and t // 2 + 2 < 4: S.ext(kvload(t // 2 + 2))
            S.ext(o[22:])
        else:
            S.ext(o)
    stamp(S, 11)
    SA = PN
    def woread(n):
        hd, st = n // 2, n % 2; b = KV + 8 * (n % 4)
        for c in range(2):
            for u in range(2):
                S(f'ds_read_b64_tr_b16 {v(b+4*c+2*u,2)}, v{vVW2[c]} offset:{(32*hd + 16*st + 8*u)*128}')
    woread(0); woread(1)
    for n in range(8):
        hd, st = n // 2, n % 2; b = KV + 8 * (n % 4)
        for c in range(2):
            for tt2 in range(2):
                acc = SA + 16 * (2 * c + tt2); ob = PHI + 16 * (2 * hd + tt2) + 4 * st
                S(f'v_mfma_f32_32x32x16_bf16 {v(acc,16)}, {v(b+4*c,4)}, {v(ob,4)}, {"0" if n == 0 else v(acc,16)}')
                if c == 0 and tt2 == 0 and n + 2 < 8: woread(n + 2)
    stamp(S, 12)
    S(f'v_xor_b32 v5, 0x1000, v4\nv_xor_b32 v13, 0x2000, v4')
    for q, a in ((0, 4), (1, 5), (2, 13)):
        for i in range(4):
            S(f'ds_write_b128 v{a}, {v(SA+16*q+4*i,4)} offset:{i*1024}')
    S(f's_lshl_b32 s{sT0}, s{sW4}, 12\nv_add_u32 v8, s{sT0}, v{vL16}\nv_add_u32 v9, {2*F_REG}, v8')
    for k in range(3):
        S(f's_xor_b32 s{sT1}, s{sW4}, {k+1}\ns_lshl_b32 s{sT1}, s{sT1}, 14\ns_add_u32 s{sT1}, s{sT1}, {A_BASE}\nv_add_u32 v{10+k}, s{sT1}, v8')
    S('s_waitcnt lgkmcnt(0)\ns_barrier')
    stamp(S, 13)
    G = PHI + 16
    for f in range(4):
        for i in range(4):
            S(f'ds_read_b128 {v(G+16*f+4*i,4)}, v{8 + f//2} offset:{(f%2)*F_REG + i*1024}')
    SP = G + 64
    for k in range(3):
        for i in range(4): S(f'ds_read_b128 {v(SP+16*k+4*i,4)}, v{10+k} offset:{i*1024}')
    OWN = SA + 48
    S(f'v_permlane32_swap_b32 v{XT}, v{XT+2}\nv_permlane32_swap_b32 v{XT+1}, v{XT+3}\nv_permlane32_swap_b32 v{XT+4}, v{XT+6}\nv_permlane32_swap_b32 v{XT+5}, v{XT+7}')
    for i in range(16): S(f'v_add_f32 v{G+i}, v{G+i}, v{G+16+i}')
    for i in range(16): S(f'v_add_f32 v{G+32+i}, v{G+32+i}, v{G+48+i}')
    for i in range(16): S(f'v_add_f32 v{G+i}, v{G+i}, v{G+32+i}')
    E = G + 16
    for i in range(16): S(f'v_mul_f32 v{E+i}, {hx(f2u(-L2E))}, v{G+i}')
    for i in range(16): S(f'v_exp_f32 v{E+i}, v{E+i}')
    for i in range(16): S(f'v_add_f32 v{PHI+i}, v{OWN+i}, v{SP+i}')
    for i in range(16): S(f'v_add_f32 v{E+i}, 1.0, v{E+i}')
    for i in range(16): S(f'v_rcp_f32 v{E+i}, v{E+i}')
    for i in range(16): S(f'v_add_f32 v{SP+16+i}, v{SP+16+i}, v{SP+32+i}')
    for i in range(16): S(f'v_add_f32 v{PHI+i}, v{PHI+i}, v{SP+16+i}')
    for i in range(16): S(f'v_mul_f32 v{G+i}, v{G+i}, v{E+i}')
    for i in range(8): S(f'v_lshlrev_b32 v{E+2*i}, 16, v{XT+i}\nv_and_b32 v{E+2*i+1}, 0xffff0000, v{XT+i}')
    for i in range(16): S(f'v_fmac_f32 v{E+i}, v{PHI+i}, v{G+i}')
    for i in range(8): S(f'v_cvt_pk_bf16_f32 v{XT+i}, v{E+2*i}, v{E+2*i+1}')
    S(f'v_permlane32_swap_b32 v{XT}, v{XT+2}\nv_permlane32_swap_b32 v{XT+1}, v{XT+3}\nv_permlane32_swap_b32 v{XT+4}, v{XT+6}\nv_permlane32_swap_b32 v{XT+5}, v{XT+7}')
    for hh in range(2):
        S(f'buffer_store_dwordx4 {v(XT+4*hh,4)}, v{vO}, {srd(SRD_OUT)}, s{sFT} offen offset:{32*hh}' + (' sc1' if Opt.outsc == 1 else (' nt' if Opt.outsc == 2 else '')))

def reducer(S):
    S(f'v_lshlrev_b32 v8, 2, v{vLANE}\ns_lshl_b32 s{sT0}, s{sTB}, 8\ns_add_u32 s{sT0}, s{sT0}, {WS_FP}')
    poll(S, 8, sT0, 16, 9)
    stamp(S, 8)
    S(f's_lshl_b32 s{sT1}, s{sTB}, 16\ns_lshl_b32 s{sT2}, s{sW4}, 10\ns_add_u32 s{sT1}, s{sT1}, s{sT2}\ns_add_u32 s{sT1}, s{sT1}, {WS_KVP}')
    for rb in range(16):
        S(f's_add_u32 s{sT0}, s{sT1}, {rb*4096}')
        S(f'buffer_load_dwordx4 {v(16+4*rb,4)}, v{vL16}, {srd(SRD_WS)}, s{sT0} offen sc1')
    S(f'v_and_b32 v8, 31, v{vLANE}\nv_cmp_eq_u32 vcc, 29, v8')
    S(f's_lshl_b32 s{sT0}, s{sTB}, 1\ns_lshr_b32 s{sT1}, s{sW4}, 1\ns_add_u32 s{sT0}, s{sT0}, s{sT1}\ns_lshl_b32 s{sT0}, s{sT0}, 10\ns_and_b32 s{sT1}, s{sW4}, 1\ns_lshl_b32 s{sT1}, s{sT1}, 3\ns_add_u32 s{sT0}, s{sT0}, s{sT1}\ns_add_u32 s{sT0}, s{sT0}, {WS_KVF}')
    S(f's_lshr_b32 s{sU0}, s{sTB}, 3\ns_lshl_b32 s{sU0}, s{sU0}, 8\ns_and_b32 s{sT1}, s{sTB}, 7\ns_lshl_b32 s{sT1}, s{sT1}, 4\ns_add_u32 s{sU0}, s{sU0}, s{sT1}\ns_lshl_b32 s{sT1}, s{sW4}, 2\ns_add_u32 s{sU0}, s{sU0}, s{sT1}\ns_add_u32 s{sU0}, s{sU0}, {WS_FK}')
    S(f's_cmp_eq_u32 s{sW4}, 3\ns_cselect_b32 s{sT3}, -1, 0\ns_mov_b32 s{sT2}, 0')
    for rb in range(1, 16):
        d = 16 + 4 * (rb % 2) if rb >= 2 else None
        if rb == 1: continue
        for i in range(4): S(f'v_add_f32 v{d+i}, v{d+i}, v{16+4*rb+i}')
    for i in range(4): S(f'v_add_f32 v{16+i}, v{16+i}, v{20+i}')
    stamp(S, 10)
    for i in range(4): S(f'v_cndmask_b32 v{16+i}, v{16+i}, 1.0, vcc')
    S('v_cvt_pk_bf16_f32 v16, v16, v17\nv_cvt_pk_bf16_f32 v17, v18, v19')
    S(f'v_cndmask_b32 v16, v16, 0, s[{sT2}:{sT3}]\nv_cndmask_b32 v17, v17, 0, s[{sT2}:{sT3}]')
    S(f'buffer_store_dwordx2 v[16:17], v{vL16}, {srd(SRD_WS)}, s{sT0} offen sc1')
    S('s_waitcnt vmcnt(0)')
    flag_store(S, sU0, 8, 8, 10)
    stamp(S, 9)

Opt.kvstep = 14
def fin_after(prefix, body):
    mark = Ins('L_MARK__:')
    o = finalize(prefix + [mark] + body)
    return o[o.index(mark) + 1:]

def build():
    assert sT2 % 2 == 0 and sT3 == sT2 + 1
    parts = []
    P = Stream(); prologue(P)
    P(f's_cmp_ge_u32 s{sWAVE}, 4\ns_cbranch_scc1 L_lwave')
    parts.append(finalize(P.l))
    C = Stream(); c_common(C); C(f's_cmp_ge_u32 s{sROLE}, 8\ns_cbranch_scc1 L_cattn')
    S = Stream(); c_ffn(S); c_publish(S, False, True); S('s_branch L_aphase'); parts.append(finalize(C.l + S.l))
    S = Stream(); S('L_cspare:\ns_waitcnt vmcnt(0)'); c_publish(S, True, False); S('s_branch L_fin'); parts.append(finalize(S.l))
    S = Stream(); S('L_cattn:'); c_attn(S)
    S(f's_cmp_eq_u32 s{sCB}, 7\ns_cbranch_scc1 L_cspare'); c_publish(S, True, True); parts.append(fin_after(C.l, S.l))
    S = Stream(); S('L_aphase:'); a_phase2(S); S('s_branch L_fin'); parts.append(finalize(S.l))
    S = Stream(); S('L_lwave:')
    S(f's_cmp_ge_u32 s{sROLE}, 8\ns_cbranch_scc1 L_lattn'); l_phase1(S, True, True); S('s_branch L_fphase'); parts.append(finalize(S.l))
    S = Stream(); S('L_lattn:'); S(f's_cmp_eq_u32 s{sCB}, 7\ns_cbranch_scc1 L_lspare'); l_phase1(S, False, True); parts.append(finalize(S.l))
    S = Stream(); S('L_fphase:'); f_phase2(S); S('s_branch L_fin'); parts.append(finalize(S.l))
    S = Stream(); S('L_lspare:'); l_phase1(S, False, False); reducer(S); parts.append(finalize(S.l))
    S = Stream(); S('L_fin:'); diag_out(S); S('L_end:\ns_endpgm'); parts.append(finalize(S.l))
    hdr = open('recurrent_scan__linear_kernel_hedgehog__dense_activation_silu__prompt.s.ref').read().split('\n')
    top = [l for l in hdr[:13] if l.startswith(';') and '@launch' not in l and 'Override' not in l and 'grid=ceil' not in l]
    out = '\n'.join(top) + f'\n; @launch grid=(256,1,1) block=(512,1,1) lds={LDS_TOTAL}\n'
    out += f'.amdgcn_target "amdgcn-amd-amdhsa--gfx950"\n.text\n.globl {NAME}\n.p2align 8\n.type {NAME},@function\n{NAME}:\n'
    for p in parts:
        t = text(p)
        if Opt.nosc1: t = '\n'.join(l.replace(' sc1', '') if 'buffer_store_dwordx4' in l else l for l in t.split('\n'))
        out += t
    out += f'''.section .rodata,"a"
.p2align 6
.amdhsa_kernel {NAME}
  .amdhsa_next_free_vgpr 256
  .amdhsa_next_free_sgpr 102
  .amdhsa_accum_offset 256
  .amdhsa_group_segment_fixed_size 0
  .amdhsa_kernarg_size 80
  .amdhsa_user_sgpr_count 2
  .amdhsa_user_sgpr_kernarg_segment_ptr 1
  .amdhsa_system_sgpr_workgroup_id_x 1
.end_amdhsa_kernel
'''
    return out

if __name__ == '__main__':
    for a in sys.argv[2:]:
        k, _, val = a.partition('='); setattr(Opt, k, int(val) if val else True)
    open(sys.argv[1], 'w').write(build())
```

```python
import sys, struct
sys.path.insert(0, "dev")
from asmlib import *

NAME = "recurrent_scan__linear_kernel_hedgehog__dense_activation_silu__prompt_kernel"
K1 = 1024
WS_H   = 0
WS_PQ  = 64 * 112 * K1
WS_KVP = WS_PQ + 64 * 16 * 4096
WS_KVF = WS_KVP + 32 * 16 * 4096
WS_FH  = WS_KVF + 64 * K1
WS_FP  = WS_FH + 256 * 256
WS_FK  = WS_FP + 32 * 256
WS_TAG = WS_FK + 32 * 256
WS_DIAG = WS_TAG + 4096
WS_SIZE = WS_DIAG + 256 * 8 * 64
SLOT = 28 * K1
SPARE = 140 * K1
WPHI_L = 156 * K1
CTL = 160 * K1 - 512
LDS_TOTAL = 160 * K1
F_REG = 24 * K1
A_BASE = 96 * K1
A_REG = 16 * K1
EV_XFREE, EV_C0, EV_C1, EV_PK, EV_END = range(5)
CN_WO, CN_LT = 7, 8
sBND = 70
L2E = 1.4426950408889634
def f2u(x): return struct.unpack('<I', struct.pack('<f', x))[0]
def hx(x): return '0x%08x' % (x & 0xffffffff)

sWAVE, sXCD, sI, sRB, sROLE = 3, 4, 5, 6, 7
SRD_X, SRD_W, SRD_WS, SRD_W2, SRD_WO, SRD_OUT, SRD_DBG, SRD_WPHI = 8, 12, 16, 20, 24, 28, 32, 36
sTB, sCB, sIDX, sTAG, sPITCH = 40, 41, 42, 43, 44
sCOL = [45, 46, 47]
sCOLS = 48
sSEL_LO, sSEL_HI = 49, 63
sT0, sT1, sT2, sT3 = 50, 51, 52, 53
sHI = 54
sROT1, sROT2 = 56, 57
sCNT, sW4, sFT, sFS, sL2E = 58, 59, 60, 61, 62
sU0, sU1, sU2, sU3, sU4, sU5 = 64, 65, 66, 67, 68, 69
STAMP0 = 84
def srd(b): return f's[{b}:{b+3}]'
def v(a, n=1): return f'v{a}' if n == 1 else f'v[{a}:{a+n-1}]'
HI = f's[{sHI}:{sHI+1}]'

class Opt:
    diag = False
    ncen = 18
    sleep = 8
    early = False
    rot = 1
    lprio = 1
    lsleep = 1
    nodma = 0
    nosc1 = 0
    nowo = 0
    dbgout = 0
    outsc = ''
    empty = 0
    xcc = 0
    fdiag = 0
    nophi = 0
    notr = 0
    cprio = 0
    predelay = 0
    ksleep = 12

def stamp(S, k):
    if not Opt.diag: return
    if isinstance(k, str):
        if not Opt.early: return
        k = int(k[1:])
    elif Opt.early and 3 <= k < 15: return
    S(f'{"s_memtime" if Opt.diag == 2 else "s_memrealtime"} s[100:101]\ns_waitcnt lgkmcnt(0)\ns_mov_b32 s{STAMP0+k}, s100')

def diag_out(S):
    if not Opt.diag: return
    S('s_waitcnt vmcnt(0) lgkmcnt(0)')
    stamp(S, 15)
    if Opt.xcc: S(f's_getreg_b32 s{STAMP0+11}, hwreg(HW_REG_XCC_ID)\ns_getreg_b32 s{STAMP0+12}, hwreg(HW_REG_HW_ID)')
    if Opt.dbgout:
        lab = newlab('dg')
        S(f's_not_b32 s{STAMP0+14}, s{STAMP0}')
        if Opt.dbgout == 1: S(f's_cmp_ge_u32 s{sWAVE}, 4')
        else: S(f's_cmp_lt_u32 s{sWAVE}, 4')
        S(f's_cbranch_scc1 {lab}')
        S('v_mov_b32 v16, 0')
        for k in range(1, 16): S(f'v_writelane_b32 v16, s{STAMP0+k}, {k}')
        S(f'v_mbcnt_lo_u32_b32 v17, -1, 0\nv_lshlrev_b32 v17, 2, v17\ns_mov_b64 exec, 0xfffe')
        S(f'buffer_atomic_umax v16, v17, {srd(SRD_DBG)}, 0 offen sc1')
        S(f'{lab}:\ns_endpgm')
    for k in range(16): S(f'v_mov_b32 v{16+k}, s{STAMP0+k}')
    S(f's_lshl_b32 s{sT0}, s2, 3\ns_add_u32 s{sT0}, s{sT0}, s{sWAVE}\ns_lshl_b32 s{sT0}, s{sT0}, 6\ns_add_u32 s{sT0}, s{sT0}, {WS_DIAG}')
    S('v_mov_b32 v40, 0\ns_mov_b64 exec, 1')
    for k in range(4): S(f'buffer_store_dwordx4 v[{16+4*k}:{19+4*k}], v40, {srd(SRD_WS)}, s{sT0} offen offset:{16*k}')

def half_base(h): return ((h + 4) % 5) * SLOT

_lab = [0]
def newlab(p):
    _lab[0] += 1; return f'L_{p}{_lab[0]}'
def RAW(t):
    i = Ins(t); i.kind = 'salu'; i.rd = set(); i.wr = set(); return i
def raw(S, t):
    for l in t.split('\n'):
        S.l.append(Ins(l) if l.endswith(':') else RAW(l))

vCTL, vLANE, vL16 = 0, 1, 2
def prologue(S):
    S(f's_cmp_ge_u32 s2, {0 if Opt.empty else 256}\ns_cbranch_scc1 L_end')
    if Opt.diag:
        for k in range(16): S(f's_mov_b32 s{STAMP0+k}, 0')
    stamp(S, 0)
    S('s_load_dwordx16 s[64:79], s[0:1], 0\ns_load_dwordx4 s[80:83], s[0:1], 64')
    S(f'v_lshrrev_b32 v3, 6, v0\nv_and_b32 v{vLANE}, 63, v0\nv_readfirstlane_b32 s{sWAVE}, v3\nv_lshlrev_b32 v{vL16}, 4, v{vLANE}')
    S(f'v_lshlrev_b32 v4, 3, v{vLANE}\nv_add_u32 v4, {CTL}, v4\nv_mov_b32 v6, 0\nv_mov_b32 v7, 0\nds_write_b64 v4, v[6:7]')
    S(f's_and_b32 s{sXCD}, s2, 7\ns_lshr_b32 s{sI}, s2, 3')
    S(f's_lshr_b32 s{sRB}, s{sXCD}, 1\ns_lshl_b32 s{sRB}, s{sRB}, 2\ns_and_b32 s{sT3}, s{sI}, 3\ns_add_u32 s{sRB}, s{sRB}, s{sT3}')
    S(f's_lshl_b32 s{sTB}, s{sXCD}, 2\ns_add_u32 s{sTB}, s{sTB}, s{sT3}\ns_lshr_b32 s{sCB}, s{sI}, 2')
    S(f's_and_b32 s{sIDX}, s{sXCD}, 1\ns_lshl_b32 s{sIDX}, s{sIDX}, 2\ns_and_b32 s{sT0}, s{sCB}, 3\ns_add_u32 s{sIDX}, s{sIDX}, s{sT0}')
    S(f's_and_b32 s{sT0}, s{sCB}, 4\ns_lshl_b32 s{sT0}, s{sT0}, 1\ns_add_u32 s{sROLE}, s{sIDX}, s{sT0}')
    S(f's_and_b32 s{sW4}, s{sWAVE}, 3')
    S(f's_lshl_b32 s{sT0}, s{sW4}, 2\ns_add_u32 s{sT0}, s{sT0}, {CTL}\nv_mov_b32 v{vCTL}, s{sT0}')
    if Opt.rot:
        S(f's_lshl_b32 s{sROT1}, s{sT3}, 1\ns_add_u32 s{sROT1}, s{sROT1}, s{sCB}\ns_sub_u32 s{sT0}, s{sROT1}, 7\ns_cmp_ge_u32 s{sROT1}, 7\ns_cselect_b32 s{sROT1}, s{sT0}, s{sROT1}')
        S(f's_mul_i32 s{sROT2}, s{sT3}, 7\ns_lshl_b32 s{sT0}, s{sCB}, 2\ns_add_u32 s{sROT2}, s{sROT2}, s{sT0}\ns_sub_u32 s{sT0}, s{sROT2}, 28\ns_cmp_ge_u32 s{sROT2}, 28\ns_cselect_b32 s{sROT2}, s{sT0}, s{sROT2}')
    else:
        S(f's_mov_b32 s{sROT1}, 0\ns_mov_b32 s{sROT2}, 0')
    S(f's_mov_b32 s{sHI}, 0\ns_mov_b32 s{sHI+1}, -1\ns_mov_b32 s{sL2E}, {hx(f2u(L2E))}')
    S(f's_mul_i32 s{sT0}, s{sIDX}, 448\ns_and_b32 s{sT1}, s{sIDX}, 1\ns_lshl_b32 s{sT2}, s{sT1}, 6\ns_add_u32 s{sT2}, s{sT2}, s{sT0}')
    S(f's_mul_i32 s{sT1}, s{sT1}, 384\ns_sub_u32 s{sCOLS}, s{sT0}, s{sT1}\ns_add_u32 s{sCOLS}, s{sCOLS}, 384')
    S(f's_mul_i32 s{sT0}, s{sIDX}, 112')
    S(f's_add_u32 s{sT1}, s{sT0}, 896\ns_add_u32 s{sT3}, s{sT0}, 1792\ns_add_u32 s{sCOL[1]}, s{sT2}, 128\ns_add_u32 s{sCOL[2]}, s{sT2}, 256')
    S(f's_movk_i32 s{sPITCH}, 3584\ns_cmp_ge_u32 s{sROLE}, 8')
    S(f's_cselect_b32 s{sCOL[0]}, s{sT1}, s{sT2}\ns_cselect_b32 s{sPITCH}, 2688, s{sPITCH}')
    S(f's_cselect_b32 s{sCOL[1]}, s{sT3}, s{sCOL[1]}\ns_cselect_b32 s{sCOL[2]}, s{sT0}, s{sCOL[2]}')
    for b, size in ((SRD_X, 2048 * 896), (SRD_WS, WS_SIZE), (SRD_W2, 1792 * 896), (SRD_WO, 448 * 896), (SRD_OUT, 2048 * 896), (SRD_DBG, 256), (SRD_WPHI, 16 * 1568)):
        S(f's_mov_b32 s{b+2}, {size}\ns_mov_b32 s{b+3}, 0x20000')
    S(f's_mul_i32 s{SRD_W+2}, s{sPITCH}, 448\ns_mov_b32 s{SRD_W+3}, 0x20000')
    stamp(S, 'e3')
    S('s_waitcnt lgkmcnt(0)')
    stamp(S, 'e4')
    for b, lo in ((SRD_X, 64), (SRD_WS, 82), (SRD_W2, 76), (SRD_WO, 70), (SRD_OUT, 78), (SRD_DBG, 80), (SRD_WPHI, 68)):
        S(f's_mov_b64 s[{b}:{b+1}], s[{lo}:{lo+1}]')
    S(f's_cmp_ge_u32 s{sROLE}, 8\ns_cselect_b64 s[{SRD_W}:{SRD_W+1}], s[66:67], s[74:75]')
    S('s_barrier')

TAGW = 320
def tag_fetch_l0(S):
    a, b = newlab('tf'), newlab('tf')
    S(f's_cmp_lg_u32 s{sW4}, 0\ns_cbranch_scc1 {b}')
    raw(S, f's_mov_b32 s{sBND}, 0\nv_mov_b32 v15, 0\n{a}:\nbuffer_load_dword v14, v15, {srd(SRD_DBG)}, 0 offen sc1\ns_waitcnt vmcnt(0)\nv_readfirstlane_b32 s{sTAG}, v14\ns_add_u32 s{sBND}, s{sBND}, 1\n'
           f's_max_u32 s{sCNT}, s{sBND}, 0x20000\ns_sub_u32 s{sCNT}, s{sCNT}, 0x20000\ns_or_b32 s{sTAG}, s{sTAG}, s{sCNT}\ns_cmp_eq_u32 s{sTAG}, 0\ns_cbranch_scc1 {a}\n'
           f'v_mov_b32 v14, s{sTAG}\ns_mov_b64 exec, 15\nds_write_b32 v{vLC}, v14 offset:{TAGW}\ns_mov_b64 exec, -1\ns_waitcnt lgkmcnt(0)\n{b}:')
def tag_prefetch(S, vt):
    S(f'ds_read_b32 v{vt}, v{vCTL} offset:{TAGW}')
def tag_get(S, vt):
    a, b = newlab('tg'), newlab('tg')
    S(f'v_readfirstlane_b32 s{sTAG}, v{vt}')
    S(f's_cmp_lg_u32 s{sTAG}, 0\ns_cbranch_scc1 {b}')
    raw(S, f'{a}:\nds_read_b32 v{vt}, v{vCTL} offset:{TAGW}\ns_sleep 1\ns_waitcnt lgkmcnt(0)\nv_readfirstlane_b32 s{sTAG}, v{vt}\ns_nop 0\ns_cmp_eq_u32 s{sTAG}, 0\ns_cbranch_scc1 {a}\n{b}:')

def poll(S, voff, soff, nl, vt, sleep=None):
    a, b = newlab('pl'), newlab('pl')
    S(f's_mov_b64 exec, {hex((1 << nl) - 1)}\ns_mov_b32 s{sCNT}, 0')
    S(f'{a}:')
    S(f'buffer_load_dword v{vt}, v{voff}, {srd(SRD_WS)}, s{soff} offen sc1')
    S('s_waitcnt vmcnt(0)')
    S(f'v_cmp_ne_u32 vcc, s{sTAG}, v{vt}')
    S(f's_add_u32 s{sCNT}, s{sCNT}, 1\ns_cbranch_vccz {b}\ns_cmp_gt_u32 s{sCNT}, 0x20000\ns_cbranch_scc1 {b}\ns_sleep {sleep or Opt.sleep}\ns_branch {a}')
    S(f'{b}:')
    S('s_mov_b64 exec, -1')

def flag_store(S, soff, vt, n=1, shift=8):
    S(f'v_mov_b32 v{vt}, s{sTAG}\nv_lshlrev_b32 v{vt+1}, {shift}, v{vLANE}\ns_mov_b64 exec, {(1 << n) - 1}')
    S(f'buffer_store_dword v{vt}, v{vt+1}, {srd(SRD_WS)}, s{soff} offen sc1')
    S('s_mov_b64 exec, -1')

def c_signal(ev):
    return [Ins(f'ds_write_b32 v{vCTL}, v{vCTL} offset:{16*ev}')]
def cnt_read(idx, vt):
    return [Ins(f'ds_read_b32 v{vt}, v{vCTL} offset:{128 + 16*idx}')]
def cnt_check(idx, vt, sleep=0):
    S = Stream(); a, b = newlab('ck'), newlab('ck')
    S(f'v_readfirstlane_b32 s{sCNT}, v{vt}\ns_cmp_ge_u32 s{sCNT}, 4\ns_cbranch_scc1 {b}')
    raw(S, f's_mov_b32 s{sBND}, 0\n{a}:\nds_read_b32 v{vt}, v{vCTL} offset:{128 + 16*idx}\ns_add_u32 s{sBND}, s{sBND}, 1\ns_cmp_gt_u32 s{sBND}, 0x40000\ns_cbranch_scc1 {b}\ns_sleep {sleep}\ns_waitcnt lgkmcnt(0)\nv_readfirstlane_b32 s{sCNT}, v{vt}\ns_nop 0\ns_cmp_lt_u32 s{sCNT}, 4\ns_cbranch_scc1 {a}\n{b}:')
    return S.l
vLC, vLONE, vLP = 11, 12, 188
def l_signal(S, idx):
    S(f's_mov_b64 exec, 15\nds_add_u32 v{vLC}, v{vLONE} offset:{128 + 16*idx}\ns_mov_b64 exec, -1')
def l_wait(S, ev):
    a, b = newlab('lw'), newlab('lw')
    S('s_waitcnt lgkmcnt(0)')
    raw(S, f's_mov_b32 s{sBND}, 0\n{a}:\nds_read_b128 v[{vLP}:{vLP+3}], v{vLP+4} offset:{16*ev}\ns_add_u32 s{sBND}, s{sBND}, 1\ns_cmp_gt_u32 s{sBND}, 0x40000\ns_cbranch_scc1 {b}\ns_sleep {Opt.lsleep}\ns_waitcnt lgkmcnt(0)\nv_min3_u32 v{vLP}, v{vLP}, v{vLP+1}, v{vLP+2}\nv_min_u32 v{vLP}, v{vLP}, v{vLP+3}\ns_nop 0\nv_readfirstlane_b32 s{sCNT}, v{vLP}\ns_nop 0\ns_cmp_eq_u32 s{sCNT}, 0\ns_cbranch_scc1 {a}\n{b}:\ns_waitcnt lgkmcnt(0)')

X0 = 16; ACC = [[128, 144], [160, 176]]; AF = 192; WPHI = 216; T = 232; U = 240; TT = 248
vVA = [3, 4]; vWA = [5, 6]; vVS = 7; vR, vRM, vNRL, vSD, vCT, vNM = 8, 9, 10, 11, 12, 13; vTAG = 14

def lane_consts_tr(S, dst, tmp, cstride, rowmap):
    t0, t1, t2 = tmp, tmp + 1, tmp + 2
    S(f'v_bfe_u32 v{t0}, v{vLANE}, 2, 2')
    S(f'v_lshrrev_b32 v{t1}, 5, v{vLANE}')
    S(f'v_lshlrev_b32 v{t1}, {10 if rowmap == "A" else 9}, v{t1}\nv_lshl_add_u32 v{t1}, v{t0}, 7, v{t1}')
    S(f'v_bfe_u32 v{t0}, v{vLANE}, 3, 1\nv_lshlrev_b32 v{t0}, 6, v{t0}')
    S(f'v_bfe_u32 v{t2}, v{vLANE}, 4, 1\nv_lshlrev_b32 v{t2}, 5, v{t2}\nv_and_b32 v{dst[0]}, 3, v{vLANE}\nv_lshl_add_u32 v{t2}, v{dst[0]}, 3, v{t2}')
    S(f'v_xor_b32 v{dst[0]}, v{t2}, v{t0}\nv_add_u32 v{dst[0]}, v{dst[0]}, v{t1}')
    S(f'v_add_u32 v{t2}, {cstride}, v{t2}\nv_xor_b32 v{dst[1]}, v{t2}, v{t0}\nv_add_u32 v{dst[1]}, v{dst[1]}, v{t1}')

def trb(St, dst, hfshift, pitch, tmp):
    St(f'v_lshrrev_b32 v{tmp}, 5, v{vLANE}\nv_lshlrev_b32 v{tmp}, {hfshift}, v{tmp}\nv_bfe_u32 v{dst}, v{vLANE}, 2, 2\nv_add_u32 v{tmp}, v{tmp}, v{dst}\nv_mul_u32_u24 v{dst}, {pitch}, v{tmp}')
    St(f'v_bfe_u32 v{tmp}, v{vLANE}, 4, 1\nv_lshl_add_u32 v{dst}, v{tmp}, 5, v{dst}\nv_and_b32 v{tmp}, 3, v{vLANE}\nv_lshl_add_u32 v{dst}, v{tmp}, 3, v{dst}')

def wrap_inc(S, reg, inc, lim):
    S(f's_add_u32 s{reg}, s{reg}, {inc}\ns_cmp_eq_u32 s{reg}, {lim}\ns_cselect_b32 s{reg}, 0, s{reg}')

def c_load_x(S):
    a, b = T, T + 1
    S(f'v_lshrrev_b32 v{T+2}, 3, v{vLANE}\nv_mul_u32_u24 v{a}, 896, v{T+2}')
    S(f'v_lshrrev_b32 v{T+2}, 4, v{vLANE}\nv_and_b32 v{T+3}, 7, v{vLANE}\nv_xor_b32 v{T+2}, v{T+2}, v{T+3}\nv_lshl_add_u32 v{a}, v{T+2}, 4, v{a}\nv_xor_b32 v{b}, 64, v{a}')
    S(f'v_add_u32 v{b}, {8*896}, v{b}\nv_add_u32 v{T+2}, {16*896}, v{a}\nv_add_u32 v{T+3}, {16*896}, v{b}')
    S(f's_lshl_b32 s{sT0}, s{sRB}, 2\ns_add_u32 s{sT0}, s{sT0}, s{sWAVE}\ns_mul_i32 s{sT0}, s{sT0}, {32*896}')
    S(f's_mul_i32 s{sT1}, s{sWAVE}, {SLOT}\ns_lshl_b32 s{sT3}, s{sROT1}, 7')
    for lc in range(7):
        S(f's_add_u32 s{sT2}, s{sT0}, s{sT3}')
        for g in range(4):
            S(f's_add_u32 m0, s{sT1}, {lc*4096 + g*1024}')
            if g == 0 and lc < 6: wrap_inc(S, sT3, 128, 896)
            S(f'buffer_load_dwordx4 v{T+g}, {srd(SRD_X)}, s{sT2} offen lds', tok=('x', lc))
    stamp(S, 'e5')
    xa = T + 4
    S(f'v_and_b32 v{TT}, 31, v{vLANE}\nv_bfe_u32 v{TT+1}, v{vLANE}, 1, 3\nv_lshrrev_b32 v{xa}, 5, v{vLANE}\nv_xor_b32 v{TT+1}, v{TT+1}, v{xa}')
    S(f'v_lshlrev_b32 v{TT+1}, 4, v{TT+1}\nv_lshl_add_u32 v{xa}, v{TT}, 7, v{TT+1}\nv_add_u32 v{xa}, s{sT1}, v{xa}')
    for q in range(1, 4): S(f'v_xor_b32 v{xa+q}, {q*32}, v{xa}')
    S(f's_mov_b32 s{sSEL_LO}, 0x00003f80\ns_mov_b32 s{sSEL_HI}, 0x3f800000')
    S(f's_cmp_ge_u32 s{sROLE}, 8\ns_cselect_b32 s{sT0}, 56, 64')
    lane_consts_tr(S, vVA, TT, f's{sT0}', 'A')
    sA, sB, qA, qB, one = U, U + 1, U + 2, U + 3, U + 4
    S(f'v_mov_b32 v{sA}, 0\nv_mov_b32 v{sB}, 0\nv_mov_b32 v{qA}, 0\nv_mov_b32 v{qB}, 0\nv_mov_b32 v{one}, 0x3f803f80')
    def stats(lc):
        for q in range(4):
            for j in range(4):
                r = X0 + (lc * 4 + q) * 4 + j
                S(f'v_dot2c_f32_bf16 v{sA + (j & 1)}, v{r}, v{one}\nv_dot2c_f32_bf16 v{qA + (j & 1)}, v{r}, v{r}')
    for lc in range(7):
        S.wait(('x', lc))
        if lc in (0, 3, 6): stamp(S, 'e%d' % (6 + lc // 3))
        for q in range(4):
            S(f'ds_read_b128 {v(X0 + (lc*4+q)*4, 4)}, v{xa+q} offset:{lc*4096}')
        if lc == 6: S.ext(c_signal(EV_XFREE))
        if lc > 0: stats(lc - 1)
    stamp(S, 1)
    stats(6)
    t = U + 5
    S(f'v_add_f32 v{sA}, v{sA}, v{sB}\nv_add_f32 v{qA}, v{qA}, v{qB}\nv_mov_b32 v{sB}, v{sA}\nv_mov_b32 v{qB}, v{qA}')
    S(f'v_permlane32_swap_b32 v{sA}, v{sB}\nv_permlane32_swap_b32 v{qA}, v{qB}')
    S(f'v_add_f32 v{sA}, v{sA}, v{sB}\nv_add_f32 v{qA}, v{qA}, v{qB}')
    inv = hx(f2u(1.0 / 448))
    S(f'v_mul_f32 v{sA}, {inv}, v{sA}\nv_mul_f32 v{qA}, {inv}, v{qA}')
    S(f'v_fma_f32 v{qA}, -v{sA}, v{sA}, v{qA}\nv_max_f32 v{qA}, 0, v{qA}')
    S(f'v_cvt_pk_bf16_f32 v{t}, v{sA}, v{qA}')
    S(f'v_lshlrev_b32 v{vNM}, 16, v{t}\nv_xor_b32 v{vNM}, 0x80000000, v{vNM}')
    R = Stream()
    R(f'v_and_b32 v{qA}, 0xffff0000, v{t}\nv_add_f32 v{qA}, {hx(f2u(1e-5))}, v{qA}')
    R(f'v_cvt_pk_bf16_f32 v{t}, v{qA}, v{qA}\nv_and_b32 v{qA}, 0xffff0000, v{t}\nv_sqrt_f32 v{qA}, v{qA}')
    R(f'v_nop\nv_cvt_pk_bf16_f32 v{t}, v{qA}, v{qA}\nv_and_b32 v{vSD}, 0xffff0000, v{t}\nv_rcp_f32 v{vR}, v{vSD}')
    R(f'v_nop\nv_mul_f32 v{vNRL}, {hx(f2u(-L2E))}, v{vR}\nv_cndmask_b32 v{vRM}, v{vR}, 0, {HI}')
    return R.l

def center(s):
    S = Stream()
    for j in range(4):
        r = X0 + s * 4 + j
        a, b = TT + 2 * j, TT + 2 * j + 1
        S(f'v_dot2_f32_bf16 v{a}, v{r}, s{sSEL_LO}, v{vNM}\nv_dot2_f32_bf16 v{b}, v{r}, s{sSEL_HI}, v{vNM}')
    for j in range(4):
        r = X0 + s * 4 + j
        S(f'v_cvt_pk_bf16_f32 v{r}, v{TT+2*j}, v{TT+2*j+1}')
    return S.l
def center5(s):
    S = Stream()
    for j in range(4):
        r = X0 + s * 4 + j
        a, b = TT + 2 * j, TT + 2 * j + 1
        S(f'v_lshlrev_b32 v{a}, 16, v{r}\nv_and_b32 v{b}, 0xffff0000, v{r}\nv_add_f32 v{a}, v{a}, v{vNM}\nv_add_f32 v{b}, v{b}, v{vNM}')
        S(f'v_cvt_pk_bf16_f32 v{r}, v{a}, v{b}')
    return S.l

def silu_tile(acc, u, soff, tok):
    S = Stream()
    for g in range(4):
        a = acc + 4 * g
        for i in range(4): S(f'v_mul_f32 v{TT+i}, v{a+i}, v{vNRL}')
        for i in range(4): S(f'v_exp_f32 v{TT+i}, v{TT+i}')
        for i in range(4): S(f'v_fma_f32 v{TT+i}, v{TT+i}, v{vSD}, v{vSD}')
        for i in range(4): S(f'v_rcp_f32 v{TT+i}, v{TT+i}')
        for i in range(4): S(f'v_mul_f32 v{TT+4+i}, v{a+i}, v{TT+i}')
        S(f'v_cvt_pk_bf16_f32 v{u+2*g}, v{TT+4}, v{TT+5}\nv_cvt_pk_bf16_f32 v{u+2*g+1}, v{TT+6}, v{TT+7}')
        if g % 2 == 1:
            S(f'buffer_store_dwordx4 {v(u + 4*(g//2), 4)}, v{vL16}, {srd(SRD_WS)}, s{soff[0]} offen offset:{soff[1] + 1024*(g//2)} sc1', tok=tok)
    return S.l

def part(f, s, lo, hi):
    n = len(f); k = hi - lo + 1
    return f[(s - lo) * n // k:(s - lo + 1) * n // k]

class Steps:
    def __init__(self, single):
        self.steps = []
        for st in range(3):
            for s in range(28):
                h = st * 2 + s // 14; sp = s % 14
                self.steps.append(dict(st=st, s=s, nt=2, h=h, off=sp * 2048, first=(sp == 0), last=(sp == 13)))
        if single:
            for s in range(28):
                self.steps.append(dict(st=3, s=s, nt=1, h=6, off=s * K1, first=(s == 0), last=False))
    def reads(self, n):
        if n >= len(self.steps): return [], []
        p = self.steps[n]; S = Stream(); pre = Stream()
        ring = AF + (n % 3) * 8
        if p['first']:
            pre.ext(cnt_check(p['h'], vCT))
            if p['nt'] == 2:
                b = half_base(p['h'])
                pre(f'v_add_u32 v{vWA[0]}, {b}, v{vVA[0]}\nv_add_u32 v{vWA[1]}, {b}, v{vVA[1]}')
        if p['nt'] == 2:
            for c in range(2):
                for u in range(2):
                    S(f'ds_read_b64_tr_b16 {v(ring + 4*c + 2*u, 2)}, v{vWA[c]} offset:{p["off"] + 512*u}', tok=('a', n))
        else:
            for u in range(2):
                S(f'ds_read_b64_tr_b16 {v(ring + 2*u, 2)}, v{vVS} offset:{p["off"] + 256*u}', tok=('a', n))
        if p['last'] and p['h'] < 2: S.ext(c_signal(EV_C0 + p['h']))
        if n + 2 < len(self.steps) and self.steps[n + 2]['first']:
            S.ext(cnt_read(self.steps[n + 2]['h'], vCT))
        return pre.l, S.l
    def mfmas(self, n):
        p = self.steps[n]; ring = AF + (n % 3) * 8; out = []
        for c in range(p['nt']):
            acc = ACC[p['st'] % 2][c]
            C = '0' if p['s'] == 0 else v(acc, 16)
            out.append(Ins(f'v_mfma_f32_32x32x16_bf16 {v(acc,16)}, {v(ring+4*c,4)}, {v(X0+4*p["s"],4)}, {C}'))
        return out
    def stage(self, st, fill=None, perstep=None, mid=None):
        idx = [n for n, p in enumerate(self.steps) if p['st'] == st]
        groups = []
        for n in idx:
            p = self.steps[n]
            pre, rd = self.reads(n + 2)
            m = self.mfmas(n)
            g = []
            if mid and p['s'] in mid: g += mid[p['s']]
            on = p['s'] > 0 or perstep
            w = Stream(); w.wait(('a', n + 1))
            if p['nt'] == 2:
                g += [m[0]] + pre + rd + ([None] * 2 if on else []) + [m[1]] + w.l + ([None] * 5 if on else [])
            else:
                g += [m[0]] + pre + rd + ([None] * 3 if on else [])
            if perstep: g = interleave([g], perstep(p['s']))
            groups.append(g)
        if perstep: return [x for g in groups for x in g]
        return interleave(groups, fill)

def c_common(S):
    if Opt.cprio: S('s_setprio 2')
    rest = c_load_x(S)
    S.ext(cnt_read(0, vCT))
    for s in range(Opt.ncen): S.ext(center(s))
    P = Steps(True)
    for n in range(2):
        pre, rd = P.reads(n); S.ext(pre); S.ext(rd)
    stamp(S, 2)
    f = []
    for s in range(Opt.ncen, 28): f += center5(s)
    S.ext(P.stage(0, perstep=lambda s: part(f, s, 0, 25) if s < 26 else (rest if s == 26 else [])))
    stamp(S, 3)

def c_ffn(S):
    P = Steps(True)
    e = Stream(); t = T
    trb(e, vVS, 3, 64, t)
    e(f's_lshl_b32 s{sT0}, s{sRB}, 2\ns_add_u32 s{sT0}, s{sT0}, s{sWAVE}\ns_mul_i32 s{sT0}, s{sT0}, {112*K1}')
    e(f's_mul_i32 s{sT1}, s{sIDX}, 7\ns_and_b32 s{sT2}, s{sIDX}, 1\ns_add_u32 s{sT3}, s{sT1}, s{sT2}\ns_lshl_b32 s{sT3}, s{sT3}, 11\ns_add_u32 s{sFT}, s{sT0}, s{sT3}')
    e(f's_mul_i32 s{sT2}, s{sT2}, 6\ns_sub_u32 s{sT1}, s{sT1}, s{sT2}\ns_add_u32 s{sT1}, s{sT1}, 6\ns_lshl_b32 s{sT1}, s{sT1}, 11\ns_add_u32 s{sFS}, s{sT0}, s{sT1}')
    for st in (1, 2, 3):
        pa = ACC[(st - 1) % 2]
        fill = (e.l if st == 1 else []) + [Ins(f's_add_u32 s{sT0}, s{sFT}, {(st-1)*4096}')]
        fill += silu_tile(pa[0], T, (sT0, 0), 'st') + silu_tile(pa[1], U, (sT0, 2048), 'st')
        if st == 3:
            t = Stream(); tag_prefetch(t, vTAG); fill = fill + t.l
        S.ext(P.stage(st, fill))
        stamp(S, 3 + st)
    S.ext(silu_tile(ACC[1][0], T, (sFS, 0), 'st'))

def minmax(S, X, mx, mn, t0, t1):
    for op, d in (('v_max3_f32', mx), ('v_min3_f32', mn)):
        S(f'{op} v{d}, v{X}, v{X+1}, v{X+2}')
        for i in range(3, 15, 2): S(f'{op} v{d}, v{d}, v{X+i}, v{X+i+1}')
    S(f'v_max_f32 v{mx}, v{mx}, v{X+15}\nv_min_f32 v{mn}, v{mn}, v{X+15}')
    S(f'v_mov_b32 v{t0}, v{mx}\nv_mov_b32 v{t1}, v{mn}\nv_permlane32_swap_b32 v{mx}, v{t0}\nv_permlane32_swap_b32 v{mn}, v{t1}')
    S(f'v_max_f32 v{mx}, v{mx}, v{t0}\nv_min_f32 v{mn}, v{mn}, v{t1}')
    S(f'v_mul_f32 v{mx}, {hx(f2u(-L2E))}, v{mx}\nv_mul_f32 v{mn}, {hx(f2u(L2E))}, v{mn}')

LX, LE, LT = 144, 160, 176
vLPW, vLMK, vLL2E, vLRD = 184, 185, 186, 187
def softmax_k(c):
    S = Stream()
    rw = LE
    S(f'ds_read_b128 {v(rw,4)}, v{vLRD} offset:{c*2048}\nds_read_b128 {v(rw+4,4)}, v{vLRD} offset:{c*2048+1024}')
    for i in range(8): S(f'v_lshlrev_b32 v{LX+2*i}, 16, v{rw+i}\nv_and_b32 v{LX+2*i+1}, 0xffff0000, v{rw+i}')
    mx, mn, t0, t1 = LT, LT + 1, LT + 2, LT + 3
    minmax(S, LX, mx, mn, t0, t1)
    for sign in range(2):
        E = LE if sign == 0 else LX
        for i in range(16):
            if sign == 0: S(f'v_fma_f32 v{E+i}, v{LX+i}, v{vLL2E}, v{mx}')
            else: S(f'v_fma_f32 v{E+i}, -v{LX+i}, v{vLL2E}, v{mn}')
        for i in range(16): S(f'v_exp_f32 v{E+i}, v{E+i}')
        s0, s1 = LT + 4, LT + 5
        S(f'v_add_f32 v{s0}, v{E}, v{E+1}\nv_add_f32 v{s1}, v{E+12}, v{E+13}')
        for i in range(2, 12): S(f'v_add_f32 v{s0}, v{s0}, v{E+i}')
        S(f'v_add_f32 v{s1}, v{s1}, v{E+14}\nv_add_f32 v{s1}, v{s1}, v{E+15}\nv_fmac_f32 v{s0}, v{s1}, v{vLMK}')
        S(f'v_mov_b32 v{s1}, v{s0}\nv_permlane32_swap_b32 v{s0}, v{s1}\nv_add_f32 v{s0}, v{s0}, v{s1}\nv_rcp_f32 v{s0}, v{s0}')
        for i in range(16): S(f'v_mul_f32 v{E+i}, v{E+i}, v{s0}')
        for i in range(8): S(f'v_cvt_pk_bf16_f32 v{E+i}, v{E+2*i}, v{E+2*i+1}')
        for qd in range(4):
            if qd == 3: S(f's_mov_b64 exec, 0xffffffff')
            S(f'ds_write_b64 v{vLPW}, {v(E+2*qd, 2)} offset:{c*14336 + sign*56 + qd*16}')
            if qd == 3: S(f's_mov_b64 exec, -1')
    return S.l

def scale_pack(acc, dst, masked=True):
    S = Stream()
    for i in range(16): S(f'v_mul_f32 v{acc+i}, v{acc+i}, v{vRM if (masked and i >= 12) else vR}')
    for i in range(8): S(f'v_cvt_pk_bf16_f32 v{dst+i}, v{acc+2*i}, v{acc+2*i+1}')
    return S.l

def phi_mfma(acc, c, b):
    return [Ins(f'v_mfma_f32_32x32x16_bf16 {v(acc,16)}, {v(WPHI+8*c,4)}, {v(b,4)}, 0'),
            Ins(f'v_mfma_f32_32x32x16_bf16 {v(acc,16)}, {v(WPHI+8*c+4,4)}, {v(b+4,4)}, {v(acc,16)}')]

def c_attn(S):
    vHO, vVW, vWP = vVS, vNRL, vSD
    P = Steps(False)
    e = Stream(); t = TT
    trb(e, vWP, 2, 56, t)
    e(f'v_add_u32 v{vWP}, {WPHI_L}, v{vWP}')
    for c in range(2):
        for st in range(2):
            for u in range(2):
                e(f'ds_read_b64_tr_b16 {v(WPHI + 8*c + 4*st + 2*u, 2)}, v{vWP} offset:{c*1568 + (16*st + 8*u)*56}')
    e(f's_lshl_b32 s{sT0}, s{sWAVE}, 12\ns_add_u32 s{sT0}, s{sT0}, {SPARE}\nv_add_u32 v{vHO}, s{sT0}, v{vL16}')
    ka = ACC[0]
    f1 = e.l + scale_pack(ka[0], T) + scale_pack(ka[1], T + 8)
    t = Stream()
    for c in range(2):
        d = T + 8 * c
        for i in range(8): t(f'v_cvt_pk_bf16_f32 v{d+i}, v{ka[c]+2*i}, v{ka[c]+2*i+1}')
        t(f'v_cndmask_b32 v{d+6}, v{d+6}, v{d+4}, {HI}\nv_cndmask_b32 v{d+7}, v{d+7}, v{d+5}, {HI}')
        t(f'ds_write_b128 v{vHO}, {v(d,4)} offset:{c*2048}\nds_write_b128 v{vHO}, {v(d+4,4)} offset:{c*2048+1024}')
    f2 = t.l + c_signal(EV_PK)
    kA, kB = TT + 1, TT + 2
    t = Stream()
    trb(t, kA, 3, 112, TT + 3); trb(t, kB, 3, 72, TT + 3)
    t(f's_lshr_b32 s{sT0}, s{sWAVE}, 1\ns_and_b32 s{sT1}, s{sWAVE}, 1\ns_mul_i32 s{sT2}, s{sT0}, 14336\ns_mul_i32 s{sT3}, s{sT1}, 56\ns_add_u32 s{sT2}, s{sT2}, s{sT3}\nv_add_u32 v{kA}, s{sT2}, v{kA}')
    t(f's_mul_i32 s{sT2}, s{sT0}, 9216\ns_add_u32 s{sT2}, s{sT2}, {SLOT}\nv_add_u32 v{kB}, s{sT2}, v{kB}')
    t(f'v_and_b32 v{TT+3}, 31, v{vLANE}\ns_lshl_b32 s{sT0}, s{sWAVE}, 5\nv_add_u32 v{TT+3}, s{sT0}, v{TT+3}\nv_lshrrev_b32 v{TT+4}, 5, v{vLANE}\nv_lshlrev_b32 v{TT+4}, 3, v{TT+4}')
    t(f'v_mul_u32_u24 v{vVW}, 72, v{TT+3}\nv_add_u32 v{vVW}, v{vVW}, v{TT+4}\nv_add_u32 v{vVW}, {SLOT}, v{vVW}')
    t(f'v_mov_b32 v{TT}, 0x3f80')
    t(f's_lshl_b32 s{sFT}, s{sIDX}, 2\ns_add_u32 s{sFT}, s{sFT}, s{sWAVE}\ns_lshl_b32 s{sFS}, s{sFT}, 8\ns_lshl_b32 s{sFT}, s{sFT}, 4\ns_add_u32 s{sFT}, s{sFT}, s{sRB}\ns_lshl_b32 s{sFT}, s{sFT}, 12\ns_add_u32 s{sFT}, s{sFT}, {WS_KVP}')
    t(f's_lshl_b32 s{sT0}, s{sRB}, 2\ns_add_u32 s{sFS}, s{sFS}, s{sT0}\ns_add_u32 s{sFS}, s{sFS}, {WS_FP}')
    f3 = t.l
    def ps1(s):
        if 1 <= s <= 8: return part(f1, s, 1, 8)
        if 11 <= s <= 13: return part(f2, s, 11, 13)
        if 15 <= s <= 24: return part(f3, s, 15, 24)
        return []
    S.ext(P.stage(1, perstep=ps1, mid={9: phi_mfma(ka[0], 0, T) + phi_mfma(ka[1], 1, T + 8)}))
    stamp(S, 4)
    va = ACC[1]
    t = Stream()
    for c in range(2):
        t.ext(scale_pack(va[c], T + 8 * c, masked=False))
        d = T + 8 * c
        t(f'v_cndmask_b32 v{d+6}, v{d+6}, v{TT}, {HI}\nv_cndmask_b32 v{d+7}, v{d+7}, 0, {HI}')
        for qd in range(4): t(f'ds_write_b64 v{vVW}, {v(d+2*qd, 2)} offset:{c*9216 + qd*16}')
    vfill = t.l
    bufs = [va[1], va[1] + 8, T, T + 8]
    def kvread(ts):
        kv = Stream(); b = bufs[ts % 4]
        for u in range(2): kv(f'ds_read_b64_tr_b16 {v(b + 2*u, 2)}, v{kA} offset:{(16*ts + 4*u)*112}')
        for u in range(2): kv(f'ds_read_b64_tr_b16 {v(b + 4 + 2*u, 2)}, v{kB} offset:{(16*ts + 4*u)*72}')
        return kv.l
    def kvm(ts):
        b = bufs[ts % 4]
        return [Ins(f'v_mfma_f32_32x32x16_bf16 {v(va[0],16)}, {v(b,4)}, {v(b+4,4)}, {"0" if ts == 0 else v(va[0],16)}')]
    kvst = Stream()
    for qd in range(4):
        kvst(f'buffer_store_dwordx4 {v(va[0]+4*qd,4)}, v{vL16}, {srd(SRD_WS)}, s{sFT} offen offset:{qd*1024} sc1', tok='kvp')
    k0 = Opt.kvstep
    mid = {}
    mid[k0] = [Ins('s_waitcnt lgkmcnt(0)'), Ins('s_barrier')] + kvread(0) + kvread(1) + kvread(2) + kvread(3)
    mid[k0 + 1] = kvm(0) + kvread(4) + kvm(1) + kvread(5)
    mid[k0 + 2] = kvm(2) + kvread(6) + kvm(3) + kvread(7)
    mid[k0 + 3] = kvm(4) + kvm(5)
    mid[k0 + 4] = kvm(6) + kvm(7)
    def ps2(s):
        if 1 <= s <= 10: return part(vfill, s, 1, 10)
        if s == k0 + 6:
            tp = Stream(); tag_prefetch(tp, vTAG); return kvst.l + tp.l
        return []
    S.ext(P.stage(2, perstep=ps2, mid=mid))
    stamp(S, 5)
    qa = ACC[0]
    S.ext(scale_pack(qa[0], T)); S.ext(phi_mfma(qa[0], 0, T)); S.ext(scale_pack(qa[1], T + 8)); S.ext(phi_mfma(qa[1], 1, T + 8))
    S(f's_lshl_b32 s{sT0}, s{sRB}, 2\ns_add_u32 s{sT0}, s{sT0}, s{sWAVE}\ns_lshl_b32 s{sT0}, s{sT0}, 3\ns_add_u32 s{sT0}, s{sT0}, s{sIDX}\ns_lshl_b32 s{sT0}, s{sT0}, 13\ns_add_u32 s{sT0}, s{sT0}, {WS_PQ}\ns_add_u32 s{sT1}, s{sT0}, 4096')
    for c in range(2):
        X = qa[c]; E = va[c]; d = AF if c == 0 else X0
        for i in range(4): S(f'v_cndmask_b32 v{X+12+i}, v{X+12+i}, v{X+8+i}, {HI}')
        mx, mn = TT + 4, TT + 5
        minmax(S, X, mx, mn, TT + 6, TT + 7)
        for i in range(16): S(f'v_fma_f32 v{E+i}, v{X+i}, s{sL2E}, v{mx}')
        for i in range(16): S(f'v_exp_f32 v{E+i}, v{E+i}')
        for i in range(8): S(f'v_cvt_pk_bf16_f32 v{d+i}, v{E+2*i}, v{E+2*i+1}')
        for hh in range(2):
            S(f'buffer_store_dwordx4 {v(d+4*hh,4)}, v{vL16}, {srd(SRD_WS)}, s{sT0 + c} offen offset:{hh*1024} sc1', tok='st')
        for i in range(16): S(f'v_fma_f32 v{X+i}, -v{X+i}, s{sL2E}, v{mn}')
        for i in range(16): S(f'v_exp_f32 v{X+i}, v{X+i}')
        for i in range(8): S(f'v_cvt_pk_bf16_f32 v{d+8+i}, v{X+2*i}, v{X+2*i+1}')
        for hh in range(2):
            S(f'buffer_store_dwordx4 {v(d+8+4*hh,4)}, v{vL16}, {srd(SRD_WS)}, s{sT0 + c} offen offset:{2048 + hh*1024} sc1', tok='st')
        if c == 0:
            S.wait('kvp'); tag_get(S, vTAG); flag_store(S, sFS, TT)
    stamp(S, 6)

PHI = 16; PN = 144; KV = 208; XT = 240
vO = 3; vVW2 = [6, 7]
def c_publish(S, have_tag, tile):
    if tile:
        S.ext(c_signal(EV_END))
        S(f'v_and_b32 v8, 31, v{vLANE}\nv_mul_u32_u24 v{vO}, 896, v8\nv_lshrrev_b32 v8, 5, v{vLANE}\nv_lshl_add_u32 v{vO}, v8, 4, v{vO}')
        S(f's_and_b32 s{sT0}, s{sW4}, 1\ns_lshl_b32 s{sT1}, s{sTB}, 1\ns_add_u32 s{sT0}, s{sT0}, s{sT1}\ns_mul_i32 s{sFT}, s{sT0}, {32*896}')
        S(f's_lshr_b32 s{sT0}, s{sW4}, 1\ns_lshl_b32 s{sT0}, s{sT0}, 6\ns_add_u32 s{sFT}, s{sFT}, s{sT0}\ns_lshl_b32 s{sT0}, s{sCB}, 7\ns_add_u32 s{sFT}, s{sFT}, s{sT0}')
        for hh in range(2):
            S(f'buffer_load_dwordx4 {v(XT+4*hh,4)}, v{vO}, {srd(SRD_X)}, s{sFT} offen offset:{32*hh}')
        lane_consts_tr(S, vVW2, 8, 64, 'B')
        S(f's_mul_i32 s{sT3}, s{sW4}, {A_REG}\ns_add_u32 s{sT3}, s{sT3}, {A_BASE}')
        S(f's_xor_b32 s{sT0}, s{sW4}, 3\ns_lshr_b32 s{sT1}, s{sT0}, 1\ns_lshl_b32 s{sT1}, s{sT1}, 6\ns_and_b32 s{sT2}, s{sT0}, 1\ns_lshl_b32 s{sT2}, s{sT2}, 16\ns_lshl_b32 s{sT0}, s{sT0}, 12')
        S(f'v_add_u32 v{vVW2[0]}, s{sT3}, v{vVW2[0]}\nv_xor_b32 v{vVW2[0]}, s{sT1}, v{vVW2[0]}\nv_xor_b32 v{vVW2[1]}, 64, v{vVW2[0]}')
        S(f's_add_u32 s{sT0}, s{sT0}, s{sT3}\nv_add_u32 v4, s{sT0}, v{vL16}\nv_add_u32 v10, s{sT2}, v{vL16}\nv_xor_b32 v11, 0x10000, v10')
    S(f's_lshl_b32 s{sT0}, s{sRB}, 1\ns_lshr_b32 s{sT1}, s{sW4}, 1\ns_add_u32 s{sT0}, s{sT0}, s{sT1}\ns_lshl_b32 s{sT0}, s{sT0}, 11\ns_lshl_b32 s{sT1}, s{sROLE}, 3\ns_add_u32 s{sT0}, s{sT0}, s{sT1}')
    S(f's_and_b32 s{sT1}, s{sW4}, 1\ns_lshl_b32 s{sT1}, s{sT1}, 2\ns_add_u32 s{sT0}, s{sT0}, s{sT1}\ns_add_u32 s{sT0}, s{sT0}, {WS_FH}')
    if not have_tag: tag_get(S, vTAG)
    S.wait('st')
    flag_store(S, sT0, TT, 7)
    stamp(S, 7)

W2R = 16; FACC = 144; HR = 208
vLW, vLS, vL2 = 3, 4, 5
def swz_voff(S, dst, pitch, tmp):
    S(f'v_lshrrev_b32 v{tmp}, 3, v{vLANE}\nv_mul_lo_u32 v{dst}, v{tmp}, {pitch}')
    S(f'v_bfe_u32 v{tmp}, v{vLANE}, 4, 1\nv_lshlrev_b32 v{tmp}, 2, v{tmp}\nv_and_b32 v{tmp+1}, 7, v{vLANE}\nv_xor_b32 v{tmp}, v{tmp}, v{tmp+1}\nv_lshl_add_u32 v{dst}, v{tmp}, 4, v{dst}')
def flat(l): return [x for y in l for x in y]
def sprinkle(main, units):
    out = []; n = len(main); k = len(units); j = 0
    for i, x in enumerate(main):
        while j < k and (j + 0.5) * n / max(k, 1) <= i and x.kind in ('valu', 'trans'):
            out += units[j]; j += 1
        out.append(x)
    return out + flat(units[j:])

def l_phase1(S, ffn, tile):
    sBLK, sP64, sP448, sP32, sW2, sK2 = sU0, sU1, sU2, sU3, sU4, sU5
    swz_voff(S, vLW, f's{sPITCH}', 8)
    S(f's_mul_i32 s{sFS}, s{sW4}, s{sPITCH}\ns_lshl_b32 s{sFS}, s{sFS}, 3')
    S(f's_lshl_b32 s{sT3}, s{sW4}, 10\ns_lshl_b32 s{sP64}, s{sPITCH}, 6\ns_lshl_b32 s{sP32}, s{sPITCH}, 5\ns_mul_i32 s{sP448}, s{sPITCH}, 448\ns_mul_i32 s{sBLK}, s{sP64}, s{sROT1}')
    def dma_half(h):
        units = []
        st = h // 2
        for k in range(7):
            St = Stream()
            kk = (h % 2) * 7 + k
            St(f's_add_u32 m0, s{sT3}, {half_base(h) + k*4096}')
            if kk % 2 == 0:
                St(f's_add_u32 s{sT0}, s{sBLK}, s{sFS}\ns_add_u32 s{sT0}, s{sT0}, s{sCOL[st]}')
            else:
                if k == 0: St(f's_add_u32 s{sT0}, s{sBLK}, s{sFS}\ns_add_u32 s{sT0}, s{sT0}, s{sCOL[st]}')
                St(f's_add_u32 s{sT0}, s{sT0}, s{sP32}')
                wrap_inc(St, sBLK, f's{sP64}', f's{sP448}')
            St(f'buffer_load_dwordx4 v{vLW}, {srd(SRD_W)}, s{sT0} offen lds', tok=('h', h))
            units.append(St.l)
        return units
    def sig(h):
        S.wait(('h', h))
        if h < 5: stamp(S, 2 + h)
        l_signal(S, h)
    S.ext(flat(dma_half(0)))
    if not ffn:
        S(f's_add_u32 m0, s{sT3}, {WPHI_L}\ns_mul_i32 s{sT0}, s{sIDX}, 3136\ns_add_u32 s{sT0}, s{sT0}, s{sT3}\ns_cmp_eq_u32 s{sW4}, 3\ns_cselect_b32 exec_hi, 0, -1')
        S(f'buffer_load_dwordx4 v{vL16}, {srd(SRD_WPHI)}, s{sT0} offen lds', tok=('h', 0))
        S('s_mov_b64 exec, -1')
    stamp(S, 'e5')
    lab = newlab('nt')
    S(f's_or_b32 s{sT0}, s2, s{sW4}\ns_cmp_lg_u32 s{sT0}, 0\ns_cbranch_scc1 {lab}')
    raw(S, f's_mov_b32 s{sT0}, {WS_TAG}\nv_mov_b32 v9, 0\ns_mov_b64 exec, 1\nbuffer_load_dword v8, v9, {srd(SRD_WS)}, s{sT0} offen sc1\ns_waitcnt vmcnt(0)\n'
           f'v_add_u32 v8, 1, v8\nv_max_u32 v8, 1, v8\ns_nop 1\nbuffer_store_dword v8, v9, {srd(SRD_WS)}, s{sT0} offen sc1\nbuffer_store_dword v8, v9, {srd(SRD_DBG)}, 0 offen sc1\ns_waitcnt vmcnt(0)\ns_mov_b64 exec, -1\n{lab}:')
    S(f'v_lshlrev_b32 v{vLC}, 2, v{vLANE}\nv_add_u32 v{vLC}, {CTL}, v{vLC}\nv_mov_b32 v{vLONE}, 1\nv_mov_b32 v{vLP+4}, {CTL}')
    if ffn:
        S(f'v_lshrrev_b32 v8, 2, v{vLANE}\nv_mul_u32_u24 v{vLS}, 3584, v8\nv_and_b32 v8, 3, v{vLANE}\nv_lshl_add_u32 v{vLS}, v8, 4, v{vLS}')
    else:
        S(f'v_and_b32 v8, 31, v{vLANE}\ns_lshl_b32 s{sT0}, s{sW4}, 5\nv_add_u32 v8, s{sT0}, v8\nv_lshrrev_b32 v9, 5, v{vLANE}\nv_lshlrev_b32 v9, 3, v9')
        S(f'v_mul_u32_u24 v{vLPW}, 112, v8\nv_add_u32 v{vLPW}, v{vLPW}, v9')
        S(f'v_cndmask_b32 v{vLMK}, 1.0, 0, {HI}\nv_mov_b32 v{vLL2E}, s{sL2E}')
    S(f's_lshl_b32 s{sT0}, s{sW4}, 12\ns_add_u32 s{sT0}, s{sT0}, {SPARE}\nv_add_u32 v{vLRD}, s{sT0}, v{vL16}')
    if tile:
        S(f's_mov_b32 s{sT1}, 896'); swz_voff(S, vL2, f's{sT1}', 8)
        lane_consts_tr(S, vVW2, 8, 64, 'B')
        S(f'v_add_u32 v9, s{sT0}, v{vVW2[0]}\nv_add_u32 v10, s{sT0}, v{vVW2[1]}')
        S(f's_mul_i32 s{sW2}, s{sW4}, {448*896}\ns_lshl_b32 s{sT2}, s{sCB}, 7\ns_add_u32 s{sW2}, s{sW2}, s{sT2}\ns_mul_i32 s{sK2}, s{sROT2}, {16*896}')
        S(f'v_add_u32 v13, {8*896}, v{vL2}')
    def w2raw(lo, hi):
        out = []
        if tile:
            for ks in range(lo, hi):
                t = Stream()
                t(f's_add_u32 s{sT1}, s{sW2}, s{sK2}')
                t(f'buffer_load_dwordx4 {v(W2R+8*ks,4)}, v{vL2}, {srd(SRD_W2)}, s{sT1} offen')
                t(f'buffer_load_dwordx4 {v(W2R+8*ks+4,4)}, v13, {srd(SRD_W2)}, s{sT1} offen')
                wrap_inc(t, sK2, 16 * 896, 448 * 896)
                out.append(t.l)
        return out
    def tr(ks):
        if Opt.notr:
            S('s_waitcnt vmcnt(0)'); return
        o = (ks % 2) * 2048; b = W2R + 8 * ks
        S(f'ds_write_b128 v{vLRD}, {v(b,4)} offset:{o}\nds_write_b128 v{vLRD}, {v(b+4,4)} offset:{o+1024}')
        for c in range(2):
            for u in range(2):
                S(f'ds_read_b64_tr_b16 {v(b + 4*c + 2*u, 2)}, v{9+c} offset:{o + 1024*u}')
    sig(0)
    l_wait(S, EV_XFREE)
    stamp(S, 1)
    S.ext(flat(dma_half(1))); S.ext(flat(dma_half(2))); sig(1)
    S.ext(flat(dma_half(3))); sig(2)
    S.ext(flat(dma_half(4))); sig(3)
    tag_fetch_l0(S)
    if ffn:
        S.ext(flat(w2raw(0, 4)))
        sig(4)
        l_wait(S, EV_C0)
        S.ext(flat(dma_half(5)))
        S.ext(flat(w2raw(4, 8)))
        sig(5)
        l_wait(S, EV_C1)
        S(f's_lshl_b32 s{sFS}, s{sFS}, 1\ns_add_u32 s{sFS}, s{sFS}, s{sCOLS}')
        for k in range(7):
            S(f's_add_u32 m0, s{sT3}, {k*4096}\ns_add_u32 s{sT0}, s{sBLK}, s{sFS}')
            wrap_inc(S, sBLK, f's{sP64}', f's{sP448}')
            S(f'buffer_load_dwordx4 v{vLS}, {srd(SRD_W)}, s{sT0} offen lds', tok=('h', 6))
        S.ext(flat(w2raw(8, 12)))
        sig(6)
        S.ext(flat(w2raw(12, 16)))
        for ks in range(16): tr(ks)
    else:
        l_wait(S, EV_C0)
        S.ext(flat(dma_half(5)))
        l_wait(S, EV_PK)
        sig(4)
        if Opt.lprio: S('s_setprio 1')
        a = softmax_k(0)
        S.ext(a[:60]); sig(5); S.ext(sprinkle(a[60:], w2raw(0, 6)))
        S.ext(sprinkle(softmax_k(1), w2raw(6, 14)))
        S('s_waitcnt lgkmcnt(0)\ns_barrier')
        if Opt.lprio: S('s_setprio 0')
        S.ext(flat(w2raw(14, 16)))
        if tile:
            for ks in range(16): tr(ks)
    tag_prefetch(S, vTAG); tag_get(S, vTAG)
    if tile:
        l_signal(S, CN_LT)
        l_wait(S, EV_END)
        stamp(S, 7)
        S(f's_mul_i32 s{sT3}, s{sW4}, {F_REG}')
        for i in range(0 if Opt.nodma else 12):
            S(f's_add_u32 m0, s{sT3}, {i*2048}\ns_add_u32 s{sT1}, s{sW2}, s{sK2}')
            S(f'buffer_load_dwordx4 v{vL2}, {srd(SRD_W2)}, s{sT1} offen lds', tok='w2')
            S(f's_add_u32 m0, s{sT3}, {i*2048 + 1024}')
            wrap_inc(S, sK2, 16 * 896, 448 * 896)
            S(f'buffer_load_dwordx4 v13, {srd(SRD_W2)}, s{sT1} offen lds', tok='w2')
        S.ext(cnt_read(CN_LT, vLP)); S.ext(cnt_check(CN_LT, vLP))
        S(f's_lshl_b32 s{sT2}, s{sW4}, 14\ns_add_u32 s{sT2}, s{sT2}, {A_BASE}\ns_lshl_b32 s{sU0}, s{sCB}, 7')
        for hd in range(0 if (Opt.nodma or Opt.nowo) else 4):
            S(f's_add_u32 s{sT0}, s{sCB}, {hd}\ns_and_b32 s{sT0}, s{sT0}, 3\ns_lshl_b32 s{sT1}, s{sW4}, 2\ns_add_u32 s{sT0}, s{sT0}, s{sT1}\ns_mul_i32 s{sT0}, s{sT0}, {28*896}\ns_add_u32 s{sT0}, s{sT0}, s{sU0}')
            for i in range(4):
                S(f's_add_u32 m0, s{sT2}, {hd*4096 + i*1024}')
                if i == 2: S(f's_add_u32 s{sT0}, s{sT0}, {16*896}')
                if hd == 3 and i == 3: S(f's_cmp_eq_u32 s{sW4}, 3\ns_cselect_b32 exec_hi, 0, -1')
                S(f'buffer_load_dwordx4 v{vL2 if i % 2 == 0 else 13}, {srd(SRD_WO)}, s{sT0} offen lds', tok='wo')
        S('s_mov_b64 exec, -1')

def hflag_poll(S):
    S(f'v_and_b32 v8, 3, v{vLANE}\nv_lshlrev_b32 v8, 2, v8\nv_and_b32 v9, 4, v{vLANE}\nv_lshl_add_u32 v8, v9, 4, v8')
    S(f's_lshl_b32 s{sT0}, s{sTB}, 3\ns_add_u32 s{sT0}, s{sT0}, s{sCB}\ns_lshl_b32 s{sT0}, s{sT0}, 8\ns_lshl_b32 s{sT1}, s{sW4}, 4\ns_add_u32 s{sT0}, s{sT0}, s{sT1}\ns_add_u32 s{sT0}, s{sT0}, {WS_FH}')
    poll(S, 8, sT0, 8, 9)

def f_phase2(S):
    stamp(S, 10)
    hflag_poll(S)
    S(f'v_mov_b32 v9, 4\nds_write_b32 v{vCTL}, v9 offset:{128 + 16*CN_WO}')
    stamp(S, 8)
    if Opt.diag == 2: S(f's_mul_i32 s{STAMP0+12}, s{sCNT}, 1000\ns_add_u32 s{STAMP0+12}, s{STAMP0+12}, s{STAMP0}')
    sK = sU1
    S(f's_mul_i32 s{sT1}, s{sTB}, {224*K1}\ns_mul_i32 s{sT2}, s{sW4}, {28*K1}\ns_add_u32 s{sT1}, s{sT1}, s{sT2}\ns_lshl_b32 s{sK}, s{sROT2}, 10')
    S(f'v_add_u32 v9, s{sT3}, v{vVW2[0]}\nv_add_u32 v10, s{sT3}, v{vVW2[1]}\nv_add_u32 v13, {112*K1}, v{vL16}')
    hdst = {}
    for ks in range(28):
        if ks < 6: hdst[ks] = HR + 8 * ks
        elif ks < 16: hdst[ks] = W2R + 8 * (ks - 6)
        else: hdst[ks] = hdst[ks - 12]
    adst = {ks: (W2R + 8 * ks if ks < 16 else W2R + 8 * (10 + (ks - 16) % 3)) for ks in range(28)}
    def hload(ks):
        S(f's_add_u32 s{sT0}, s{sT1}, s{sK}')
        S(f'buffer_load_dwordx4 {v(hdst[ks],4)}, v{vL16}, {srd(SRD_WS)}, s{sT0} offen sc1')
        S(f'buffer_load_dwordx4 {v(hdst[ks]+4,4)}, v13, {srd(SRD_WS)}, s{sT0} offen sc1')
        if ks < 27: wrap_inc(S, sK, 1024, 28 * K1)
    def aread(ks):
        o = (ks - 16) * 2048; b = adst[ks]
        for c in range(2):
            for u in range(2):
                S(f'ds_read_b64_tr_b16 {v(b + 4*c + 2*u, 2)}, v{9+c} offset:{o + 1024*u}')
    for ks in range(6): hload(ks)
    nxt = 6
    for ks in range(28):
        for c in range(2):
            for tt2 in range(2):
                acc = FACC + 16 * (2 * c + tt2)
                S(f'v_mfma_f32_32x32x16_bf16 {v(acc,16)}, {v(adst[ks]+4*c,4)}, {v(hdst[ks]+4*tt2,4)}, {"0" if ks == 0 else v(acc,16)}')
                if c == 0 and tt2 == 0 and 16 <= ks + 2 < 28: aread(ks + 2)
        if Opt.fdiag and ks in (0, 4, 8, 12, 16, 22): stamp(S, 1 + (0, 4, 8, 12, 16, 22).index(ks))
        while nxt < 28 and ((nxt < 16 and nxt - 6 <= ks) or (nxt >= 16 and nxt - 12 <= ks)):
            hload(nxt); nxt += 1
    stamp(S, 9)
    S(f'v_add_u32 v8, s{sT3}, v{vL16}')
    for q in range(4):
        for i in range(4):
            S(f'ds_write_b128 v8, {v(FACC + 16*q + 4*i, 4)} offset:{q*4096 + i*1024}')
    S('s_waitcnt lgkmcnt(0)\ns_barrier')

def a_phase2(S):
    S.ext(cnt_read(CN_WO, vCT)); S.ext(cnt_check(CN_WO, vCT, 1))
    stamp(S, 8)
    for hd in range(4):
        S(f's_add_u32 s{sU0+hd}, s{sCB}, {hd}\ns_and_b32 s{sU0+hd}, s{sU0+hd}, 3\ns_lshl_b32 s{sU0+hd}, s{sU0+hd}, 12')
    S(f's_lshl_b32 s{sT1}, s{sTB}, 17\ns_lshl_b32 s{sT2}, s{sW4}, 14\ns_add_u32 s{sT1}, s{sT1}, s{sT2}\ns_add_u32 s{sT1}, s{sT1}, {WS_PQ}')
    for hd in range(4):
        S(f's_add_u32 s{sT0}, s{sT1}, s{sU0+hd}')
        for tt2 in range(2):
            t = hd * 2 + tt2
            for st in range(0 if Opt.nophi else 4):
                S(f'buffer_load_dwordx4 {v(PHI+16*t+4*st,4)}, v{10 + tt2}, {srd(SRD_WS)}, s{sT0} offen offset:{st*1024} sc1')
    stamp(S, 9)
    S(f'v_lshlrev_b32 v8, 2, v{vLANE}\ns_lshl_b32 s{sT0}, s{sXCD}, 2\ns_add_u32 s{sT0}, s{sT0}, s{sW4}\ns_lshl_b32 s{sT0}, s{sT0}, 8\ns_add_u32 s{sT0}, s{sT0}, {WS_FK}')
    poll(S, 8, sT0, 32, 9, Opt.ksleep)
    stamp(S, 10)
    if Opt.diag == 2: S(f's_mul_i32 s{STAMP0+14}, s{sCNT}, 1000\ns_add_u32 s{STAMP0+14}, s{STAMP0+14}, s{STAMP0}')
    S(f's_lshl_b32 s{sT1}, s{sW4}, 14\ns_add_u32 s{sT1}, s{sT1}, {WS_KVF}')
    def kvload(hd):
        t = Stream()
        t(f's_add_u32 s{sT0}, s{sT1}, s{sU0+hd}')
        for st in range(4):
            t(f'buffer_load_dwordx4 {v(KV+16*(hd%2)+4*st,4)}, v{vL16}, {srd(SRD_WS)}, s{sT0} offen offset:{st*1024} sc1')
        return t.l
    S.ext(kvload(0)); S.ext(kvload(1))
    def num(t):
        hd = t // 2; kb = KV + 16 * (hd % 2); aP = PN + 32 * (t % 2); aN = aP + 16; ph = PHI + 16 * t
        return [Ins(f'v_mfma_f32_32x32x16_bf16 {v(aP,16)}, {v(kb,4)}, {v(ph,4)}, 0'),
                Ins(f'v_mfma_f32_32x32x16_bf16 {v(aN,16)}, {v(kb+8,4)}, {v(ph+8,4)}, 0'),
                Ins(f'v_mfma_f32_32x32x16_bf16 {v(aP,16)}, {v(kb+4,4)}, {v(ph+4,4)}, {v(aP,16)}'),
                Ins(f'v_mfma_f32_32x32x16_bf16 {v(aN,16)}, {v(kb+12,4)}, {v(ph+12,4)}, {v(aN,16)}')]
    def onorm(t):
        S = Stream()
        aP = PN + 32 * (t % 2); aN = aP + 16; ph = PHI + 16 * t
        rP, rN, dn, a, b = TT, TT + 1, TT + 2, TT + 3, TT + 4
        S(f'v_rcp_f32 v{rP}, v{aP+13}\nv_rcp_f32 v{rN}, v{aN+13}')
        S(f'v_mov_b32 v{dn}, {hx(f2u(1e-6))}\nv_fmac_f32 v{dn}, v{aP+12}, v{rP}\nv_fmac_f32 v{dn}, v{aN+12}, v{rN}\nv_rcp_f32 v{dn}, v{dn}')
        S(f'v_nop\nv_mul_f32 v{rP}, v{rP}, v{dn}\nv_mul_f32 v{rN}, v{rN}, v{dn}\nv_mov_b32 v{a}, v{rP}\nv_mov_b32 v{b}, v{rN}')
        S(f'v_permlane32_swap_b32 v{rP}, v{a}\nv_permlane32_swap_b32 v{rN}, v{b}')
        for i in range(16): S(f'v_mul_f32 v{aP+i}, v{aP+i}, v{a}')
        for i in range(16): S(f'v_fmac_f32 v{aP+i}, v{aN+i}, v{b}')
        for i in range(8): S(f'v_cvt_pk_bf16_f32 v{ph+i}, v{aP+2*i}, v{aP+2*i+1}')
        S(f'v_cndmask_b32 v{ph+6}, v{ph+6}, 0, {HI}\nv_cndmask_b32 v{ph+7}, v{ph+7}, 0, {HI}')
        return S.l
    S.ext(num(0))
    for t in range(8):
        o = onorm(t)
        if Opt.fdiag and t in (0, 1, 2, 4, 6): stamp(S, 1 + (0, 1, 2, 4, 6).index(t))
        if t + 1 < 8:
            m = num(t + 1)
            S.ext(m[0:2]); S.ext(o[0:13]); S.ext(m[2:3]); S.ext(o[13:22]); S.ext(m[3:4])
            if t % 2 == 0 and t // 2 + 2 < 4: S.ext(kvload(t // 2 + 2))
            S.ext(o[22:])
        else:
            S.ext(o)
    stamp(S, 11)
    SA = PN
    def woread(n):
        hd, st = n // 2, n % 2; b = KV + 8 * (n % 4)
        for c in range(2):
            for u in range(2):
                S(f'ds_read_b64_tr_b16 {v(b+4*c+2*u,2)}, v{vVW2[c]} offset:{(32*hd + 16*st + 8*u)*128}')
    woread(0); woread(1)
    for n in range(8):
        hd, st = n // 2, n % 2; b = KV + 8 * (n % 4)
        for c in range(2):
            for tt2 in range(2):
                acc = SA + 16 * (2 * c + tt2); ob = PHI + 16 * (2 * hd + tt2) + 4 * st
                S(f'v_mfma_f32_32x32x16_bf16 {v(acc,16)}, {v(b+4*c,4)}, {v(ob,4)}, {"0" if n == 0 else v(acc,16)}')
                if c == 0 and tt2 == 0 and n + 2 < 8: woread(n + 2)
    stamp(S, 12)
    S(f'v_xor_b32 v5, 0x1000, v4\nv_xor_b32 v13, 0x2000, v4')
    for q, a in ((0, 4), (1, 5), (2, 13)):
        for i in range(4):
            S(f'ds_write_b128 v{a}, {v(SA+16*q+4*i,4)} offset:{i*1024}')
    S(f's_lshl_b32 s{sT0}, s{sW4}, 12\nv_add_u32 v8, s{sT0}, v{vL16}\nv_add_u32 v9, {2*F_REG}, v8')
    for k in range(3):
        S(f's_xor_b32 s{sT1}, s{sW4}, {k+1}\ns_lshl_b32 s{sT1}, s{sT1}, 14\ns_add_u32 s{sT1}, s{sT1}, {A_BASE}\nv_add_u32 v{10+k}, s{sT1}, v8')
    S('s_waitcnt lgkmcnt(0)\ns_barrier')
    stamp(S, 13)
    G = PHI + 16
    for f in range(4):
        for i in range(4):
            S(f'ds_read_b128 {v(G+16*f+4*i,4)}, v{8 + f//2} offset:{(f%2)*F_REG + i*1024}')
    SP = G + 64
    for k in range(3):
        for i in range(4): S(f'ds_read_b128 {v(SP+16*k+4*i,4)}, v{10+k} offset:{i*1024}')
    OWN = SA + 48
    S(f'v_permlane32_swap_b32 v{XT}, v{XT+2}\nv_permlane32_swap_b32 v{XT+1}, v{XT+3}\nv_permlane32_swap_b32 v{XT+4}, v{XT+6}\nv_permlane32_swap_b32 v{XT+5}, v{XT+7}')
    for i in range(16): S(f'v_add_f32 v{G+i}, v{G+i}, v{G+16+i}')
    for i in range(16): S(f'v_add_f32 v{G+32+i}, v{G+32+i}, v{G+48+i}')
    for i in range(16): S(f'v_add_f32 v{G+i}, v{G+i}, v{G+32+i}')
    E = G + 16
    for i in range(16): S(f'v_mul_f32 v{E+i}, {hx(f2u(-L2E))}, v{G+i}')
    for i in range(16): S(f'v_exp_f32 v{E+i}, v{E+i}')
    for i in range(16): S(f'v_add_f32 v{PHI+i}, v{OWN+i}, v{SP+i}')
    for i in range(16): S(f'v_add_f32 v{E+i}, 1.0, v{E+i}')
    for i in range(16): S(f'v_rcp_f32 v{E+i}, v{E+i}')
    for i in range(16): S(f'v_add_f32 v{SP+16+i}, v{SP+16+i}, v{SP+32+i}')
    for i in range(16): S(f'v_add_f32 v{PHI+i}, v{PHI+i}, v{SP+16+i}')
    for i in range(16): S(f'v_mul_f32 v{G+i}, v{G+i}, v{E+i}')
    for i in range(8): S(f'v_lshlrev_b32 v{E+2*i}, 16, v{XT+i}\nv_and_b32 v{E+2*i+1}, 0xffff0000, v{XT+i}')
    for i in range(16): S(f'v_fmac_f32 v{E+i}, v{PHI+i}, v{G+i}')
    for i in range(8): S(f'v_cvt_pk_bf16_f32 v{XT+i}, v{E+2*i}, v{E+2*i+1}')
    S(f'v_permlane32_swap_b32 v{XT}, v{XT+2}\nv_permlane32_swap_b32 v{XT+1}, v{XT+3}\nv_permlane32_swap_b32 v{XT+4}, v{XT+6}\nv_permlane32_swap_b32 v{XT+5}, v{XT+7}')
    for hh in range(2):
        S(f'buffer_store_dwordx4 {v(XT+4*hh,4)}, v{vO}, {srd(SRD_OUT)}, s{sFT} offen offset:{32*hh}' + (' sc1' if Opt.outsc == 1 else (' nt' if Opt.outsc == 2 else '')))

def reducer(S):
    S(f'v_lshlrev_b32 v8, 2, v{vLANE}\ns_lshl_b32 s{sT0}, s{sTB}, 8\ns_add_u32 s{sT0}, s{sT0}, {WS_FP}')
    poll(S, 8, sT0, 16, 9)
    stamp(S, 8)
    S(f's_lshl_b32 s{sT1}, s{sTB}, 16\ns_lshl_b32 s{sT2}, s{sW4}, 10\ns_add_u32 s{sT1}, s{sT1}, s{sT2}\ns_add_u32 s{sT1}, s{sT1}, {WS_KVP}')
    for rb in range(16):
        S(f's_add_u32 s{sT0}, s{sT1}, {rb*4096}')
        S(f'buffer_load_dwordx4 {v(16+4*rb,4)}, v{vL16}, {srd(SRD_WS)}, s{sT0} offen sc1')
    S(f'v_and_b32 v8, 31, v{vLANE}\nv_cmp_eq_u32 vcc, 29, v8')
    S(f's_lshl_b32 s{sT0}, s{sTB}, 1\ns_lshr_b32 s{sT1}, s{sW4}, 1\ns_add_u32 s{sT0}, s{sT0}, s{sT1}\ns_lshl_b32 s{sT0}, s{sT0}, 10\ns_and_b32 s{sT1}, s{sW4}, 1\ns_lshl_b32 s{sT1}, s{sT1}, 3\ns_add_u32 s{sT0}, s{sT0}, s{sT1}\ns_add_u32 s{sT0}, s{sT0}, {WS_KVF}')
    S(f's_lshr_b32 s{sU0}, s{sTB}, 3\ns_lshl_b32 s{sU0}, s{sU0}, 8\ns_and_b32 s{sT1}, s{sTB}, 7\ns_lshl_b32 s{sT1}, s{sT1}, 4\ns_add_u32 s{sU0}, s{sU0}, s{sT1}\ns_lshl_b32 s{sT1}, s{sW4}, 2\ns_add_u32 s{sU0}, s{sU0}, s{sT1}\ns_add_u32 s{sU0}, s{sU0}, {WS_FK}')
    S(f's_cmp_eq_u32 s{sW4}, 3\ns_cselect_b32 s{sT3}, -1, 0\ns_mov_b32 s{sT2}, 0')
    for rb in range(1, 16):
        d = 16 + 4 * (rb % 2) if rb >= 2 else None
        if rb == 1: continue
        for i in range(4): S(f'v_add_f32 v{d+i}, v{d+i}, v{16+4*rb+i}')
    for i in range(4): S(f'v_add_f32 v{16+i}, v{16+i}, v{20+i}')
    stamp(S, 10)
    for i in range(4): S(f'v_cndmask_b32 v{16+i}, v{16+i}, 1.0, vcc')
    S('v_cvt_pk_bf16_f32 v16, v16, v17\nv_cvt_pk_bf16_f32 v17, v18, v19')
    S(f'v_cndmask_b32 v16, v16, 0, s[{sT2}:{sT3}]\nv_cndmask_b32 v17, v17, 0, s[{sT2}:{sT3}]')
    S(f'buffer_store_dwordx2 v[16:17], v{vL16}, {srd(SRD_WS)}, s{sT0} offen sc1')
    S('s_waitcnt vmcnt(0)')
    flag_store(S, sU0, 8, 8, 10)
    stamp(S, 9)

Opt.kvstep = 14
def fin_after(prefix, body):
    mark = Ins('L_MARK__:')
    o = finalize(prefix + [mark] + body)
    return o[o.index(mark) + 1:]

def build():
    assert sT2 % 2 == 0 and sT3 == sT2 + 1
    parts = []
    P = Stream(); prologue(P)
    P(f's_cmp_ge_u32 s{sWAVE}, 4\ns_cbranch_scc1 L_lwave')
    parts.append(finalize(P.l))
    C = Stream(); c_common(C); C(f's_cmp_ge_u32 s{sROLE}, 8\ns_cbranch_scc1 L_cattn')
    S = Stream(); c_ffn(S); c_publish(S, False, True); S('s_branch L_aphase'); parts.append(finalize(C.l + S.l))
    S = Stream(); S('L_cspare:\ns_waitcnt vmcnt(0)'); c_publish(S, True, False); S('s_branch L_fin'); parts.append(finalize(S.l))
    S = Stream(); S('L_cattn:'); c_attn(S)
    S(f's_cmp_eq_u32 s{sCB}, 7\ns_cbranch_scc1 L_cspare'); c_publish(S, True, True); parts.append(fin_after(C.l, S.l))
    S = Stream(); S('L_aphase:'); a_phase2(S); S('s_branch L_fin'); parts.append(finalize(S.l))
    S = Stream(); S('L_lwave:')
    S(f's_cmp_ge_u32 s{sROLE}, 8\ns_cbranch_scc1 L_lattn'); l_phase1(S, True, True); S('s_branch L_fphase'); parts.append(finalize(S.l))
    S = Stream(); S('L_lattn:'); S(f's_cmp_eq_u32 s{sCB}, 7\ns_cbranch_scc1 L_lspare'); l_phase1(S, False, True); parts.append(finalize(S.l))
    S = Stream(); S('L_fphase:'); f_phase2(S); S('s_branch L_fin'); parts.append(finalize(S.l))
    S = Stream(); S('L_lspare:'); l_phase1(S, False, False); reducer(S); parts.append(finalize(S.l))
    S = Stream(); S('L_fin:'); diag_out(S); S('L_end:\ns_endpgm'); parts.append(finalize(S.l))
    hdr = open('recurrent_scan__linear_kernel_hedgehog__dense_activation_silu__prompt.s.ref').read().split('\n')
    top = [l for l in hdr[:13] if l.startswith(';') and '@launch' not in l and 'Override' not in l and 'grid=ceil' not in l]
    out = '\n'.join(top) + f'\n; @launch grid=(256,1,1) block=(512,1,1) lds={LDS_TOTAL}\n'
    out += f'.amdgcn_target "amdgcn-amd-amdhsa--gfx950"\n.text\n.globl {NAME}\n.p2align 8\n.type {NAME},@function\n{NAME}:\n'
    for p in parts:
        t = text(p)
        if Opt.nosc1: t = '\n'.join(l.replace(' sc1', '') if 'buffer_store_dwordx4' in l else l for l in t.split('\n'))
        out += t
    out += f'''.section .rodata,"a"
.p2align 6
.amdhsa_kernel {NAME}
  .amdhsa_next_free_vgpr 256
  .amdhsa_next_free_sgpr 102
  .amdhsa_accum_offset 256
  .amdhsa_group_segment_fixed_size 0
  .amdhsa_kernarg_size 80
  .amdhsa_user_sgpr_count 2
  .amdhsa_user_sgpr_kernarg_segment_ptr 1
  .amdhsa_system_sgpr_workgroup_id_x 1
.end_amdhsa_kernel
'''
    return out

if __name__ == '__main__':
    for a in sys.argv[2:]:
        k, _, val = a.partition('='); setattr(Opt, k, int(val) if val else True)
    open(sys.argv[1], 'w').write(build())
```

```python
import re

def _regs(tok):
    tok = tok.strip()
    tok = tok.lstrip('-')
    m = re.match(r'^abs\((.*)\)$', tok)
    if m: tok = m.group(1)
    m = re.match(r'^\|(.*)\|$', tok)
    if m: tok = m.group(1)
    m = re.match(r'^([vsa])(\d+)$', tok)
    if m: return [(m.group(1), int(m.group(2)))]
    m = re.match(r'^([vsa])\[(\d+):(\d+)\]$', tok)
    if m: return [(m.group(1), i) for i in range(int(m.group(2)), int(m.group(3)) + 1)]
    if tok in ('vcc', 'vcc_lo', 'vcc_hi'): return [('vcc', 0)]
    if tok in ('exec', 'exec_lo', 'exec_hi'): return [('exec', 0)]
    if tok == 'm0': return [('m0', 0)]
    return []

TRANS = ('v_exp_f32', 'v_log_f32', 'v_rcp_f32', 'v_rsq_f32', 'v_sqrt_f32', 'v_sin_f32', 'v_cos_f32')

class Ins:
    __slots__ = ('text', 'op', 'rd', 'wr', 'kind', 'tok', 'srcc', 'ab', 'note', 'cost')
    def __init__(self, text, tok=None):
        self.text = text.strip(); self.tok = tok; self.note = None
        t = self.text.split(';')[0].strip()
        self.rd = set(); self.wr = set(); self.srcc = set(); self.ab = set()
        if t.endswith(':') or t.startswith('.') or not t:
            self.op = t; self.kind = 'label' if t.endswith(':') else 'dir'; self.cost = 0; return
        parts = t.split(None, 1)
        op = parts[0]; self.op = op
        rest = parts[1] if len(parts) > 1 else ''
        ops = [o.strip() for o in rest.split(',')] if rest else []
        mods = ''
        if ops:
            joined = rest
            mm = re.search(r'\s(offen|idxen|offset|offset0|offset1|sc0|sc1|nt|lds|op_sel|op_sel_hi|neg_lo|neg_hi|row_|quad_perm|dst_sel|bitop3|clamp|mul:|div:|cbsz|abid|blgp|glc|wave_|bound_ctrl|row_mask)', ' ' + joined)
            if mm:
                cut = mm.start()
                mods = joined[cut:]
                joined = joined[:cut]
            ops = [o.strip() for o in joined.split(',') if o.strip()]
        R = [_regs(o) for o in ops]
        base = op.replace('_e32', '').replace('_e64', '')
        self.cost = 1
        def rdall(lst):
            for r in lst: self.rd.update(r)
        if op.startswith('v_mfma'):
            self.kind = 'mfma'; self.wr.update(R[0]); rdall(R[1:]); self.srcc = set(R[3]); self.ab = set(R[1]) | set(R[2]); self.rd.add(('exec', 0))
        elif op.startswith('v_cmp'):
            self.kind = 'valu'; self.wr.update(R[0]); rdall(R[1:]); self.rd.add(('exec', 0))
            if op.startswith('v_cmpx'): self.wr.add(('exec', 0))
        elif op.startswith('v_readfirstlane') or op.startswith('v_readlane'):
            self.kind = 'valu'; self.wr.update(R[0]); rdall(R[1:])
        elif op.startswith('v_permlane') and 'swap' in op:
            self.kind = 'valu'; self.wr.update(R[0]); self.wr.update(R[1]); rdall(R)
        elif op.startswith('v_'):
            self.kind = 'valu'
            if base in TRANS: self.kind = 'trans'; self.cost = 2
            if base.startswith('v_dot'): self.kind = 'dot'
            if R: self.wr.update(R[0])
            if base in ('v_add_co_u32', 'v_sub_co_u32', 'v_addc_co_u32', 'v_subb_co_u32', 'v_mad_u64_u32'):
                self.wr.update(R[1]); rdall(R[2:])
            else:
                rdall(R[1:])
            if base in ('v_fmac_f32', 'v_dot2c_f32_bf16', 'v_writelane_b32', 'v_pk_fmac_f16'): self.rd.update(R[0])
            self.rd.add(('exec', 0))
        elif op.startswith('ds_read') or op.startswith('ds_add_rtn') or op.startswith('ds_bpermute') or op.startswith('ds_swizzle'):
            self.kind = 'ds'; self.wr.update(R[0]); rdall(R[1:])
        elif op.startswith('ds_write') or op.startswith('ds_add'):
            self.kind = 'ds'; rdall(R)
        elif op.startswith('buffer_load') or op.startswith('global_load'):
            if re.search(r'\blds\b', mods) or 'load_lds' in op:
                self.kind = 'dma'; rdall(R); self.rd.add(('m0', 0))
            else:
                self.kind = 'vload'; self.wr.update(R[0]); rdall(R[1:])
                if ops[0] in ('v200', 'v199'): self.wr = set()
        elif op.startswith('buffer_store') or op.startswith('global_store') or op.startswith('buffer_atomic') or op.startswith('global_atomic'):
            self.kind = 'vstore'; rdall(R)
            if op.startswith('buffer_store'): self.srcc = set(R[0])
            elif op.startswith('global_store'): self.srcc = set(R[1])
        elif op.startswith('s_load') or op.startswith('s_memrealtime') or op.startswith('s_memtime'):
            self.kind = 'smem'; self.wr.update(R[0]); rdall(R[1:])
        elif op == 's_waitcnt': self.kind = 'wait'
        elif op == 's_barrier': self.kind = 'barrier'
        elif op == 's_nop': self.kind = 'nop'; self.cost = int(rest.strip(), 0) + 1
        elif op.startswith('s_cbranch') or op == 's_branch' or op == 's_endpgm': self.kind = 'branch'
        elif op.startswith('s_cmp') or op.startswith('s_bitcmp'): self.kind = 'salu'; rdall(R)
        elif op in ('s_sleep', 's_setprio'): self.kind = 'salu'
        elif op.startswith('s_'):
            self.kind = 'salu'; self.wr.update(R[0]); rdall(R[1:])
            if 'saveexec' in op: self.wr.add(('exec', 0)); self.rd.add(('exec', 0))
        elif op == 'WAIT':
            self.kind = 'pwait'
        else:
            raise ValueError('unknown op ' + op)
    def __repr__(self): return self.text

class Group:
    def __init__(self, l): self.l = l; self.cost = sum(i.cost for i in l); self.kind = 'group'; self.op = 'group'; self.text = ''
def flatten(ins):
    out = []
    for i in ins:
        if isinstance(i, Group): out += i.l
        else: out.append(i)
    return out

class Stream:
    def __init__(self): self.l = []
    def __call__(self, text, tok=None):
        for line in text.split('\n'):
            if line.strip():
                self.l.append(Ins(line, tok))
        return self
    def wait(self, *toks):
        i = Ins('WAIT'); i.tok = set(toks); self.l.append(i)
    def ext(self, lst): self.l.extend(lst)

def autowait(ins):
    out = []
    vm = []
    lg = []
    smem_pending = False; smem_regs = set()
    def need(q, pred):
        last = -1
        for i, e in enumerate(q):
            if pred(e): last = i
        return last
    for I in ins:
        if I.kind == 'wait':
            m = re.search(r'vmcnt\((\d+)\)', I.text)
            if m:
                n = int(m.group(1)); vm[:] = vm[len(vm) - n:] if n < len(vm) and n > 0 else ([] if n == 0 else vm)
            m = re.search(r'lgkmcnt\((\d+)\)', I.text)
            if m:
                n = int(m.group(1)); lg[:] = lg[len(lg) - n:] if n < len(lg) and n > 0 else ([] if n == 0 else lg)
                if n == 0: smem_pending = False; smem_regs = set()
            out.append(I); continue
        touch = (I.rd | I.wr)
        if I.kind == 'pwait':
            iv = need(vm, lambda e: e[1] in I.tok); il = need(lg, lambda e: e[1] in I.tok)
        else:
            iv = need(vm, lambda e: e[0] & touch); il = need(lg, lambda e: e[0] & touch)
        w = []
        if iv >= 0:
            n = min(len(vm) - 1 - iv, 63); w.append(f'vmcnt({n})'); vm[:] = vm[len(vm) - n:] if n > 0 else []
        if smem_pending and (touch & smem_regs):
            w.append('lgkmcnt(0)'); lg[:] = []; smem_pending = False; smem_regs = set()
        elif il >= 0:
            n = min(len(lg) - 1 - il, 15)
            if smem_pending: n = 0; smem_pending = False; smem_regs = set()
            w.append(f'lgkmcnt({n})'); lg[:] = lg[len(lg) - n:] if n > 0 else []
        if w: out.append(Ins('s_waitcnt ' + ' '.join(w)))
        if I.kind == 'pwait': continue
        if I.kind in ('vload', 'dma', 'vstore') and len(vm) >= 62:
            out.append(Ins('s_waitcnt vmcnt(58)')); vm[:] = vm[len(vm) - 58:]
        if I.kind == 'vload': vm.append((set(I.wr), I.tok))
        elif I.kind in ('dma', 'vstore'): vm.append((set(), I.tok))
        elif I.kind == 'ds': lg.append((set(I.wr), I.tok))
        elif I.kind == 'smem': smem_pending = True; smem_regs |= I.wr
        assert len(vm) <= 63, "too many outstanding vmem: %s" % I.text
        out.append(I)
    return out

def hazards(ins):
    out = []
    hist = []
    def dist_need(I):
        need = 0; d = 0
        isvalu = I.kind in ('valu', 'trans', 'dot')
        vr = {r for r in I.rd if r[0] == 'v'}; vw = {r for r in I.wr if r[0] == 'v'}
        sr = {r for r in I.rd if r[0] in ('s', 'vcc')}
        for P in reversed(hist):
            req = 0
            pv = P.kind in ('valu', 'trans', 'dot')
            pw = {r for r in P.wr if r[0] == 'v'}
            psw = {r for r in P.wr if r[0] in ('s', 'vcc')}
            if P.kind == 'mfma':
                passes = 8 if '32x32' in P.op else 4
                big = {8: 12, 4: 8}[passes]; ovl = {8: 10, 4: 6}[passes]; war = {8: 7, 4: 3}[passes]
                if I.kind == 'mfma':
                    if pw & I.ab: req = max(req, big)
                    if pw & I.srcc and not (pw == I.srcc and P.op == I.op): req = max(req, ovl)
                    if pw & vw and not (pw == vw) and not (pw & I.srcc): req = max(req, big)
                    if pw & vw and pw == vw and not (pw & I.srcc): req = max(req, big)
                else:
                    if pw & (vr | vw): req = max(req, big)
                    if isvalu and (P.srcc & vw): req = max(req, war)
                    if I.kind in ('ds', 'vload') and (P.srcc & vw): req = max(req, war)
            if pv:
                if I.kind == 'mfma' and (pw & vr): req = max(req, 2)
                if I.op.startswith('v_permlane') and (pw & vr): req = max(req, 2)
                if ('dpp' in I.op or 'row_' in I.text or 'quad_perm' in I.text) and (pw & vr): req = max(req, 2)
                if (I.op.startswith('v_readfirstlane') or I.op.startswith('v_readlane')) and (pw & vr): req = max(req, 1)
                if P.kind == 'trans' and isvalu and I.kind != 'trans' and (pw & vr): req = max(req, 1)
                if P.kind == 'trans' and I.kind == 'trans' and (pw & vr): req = max(req, 1)
                if P.kind == 'dot':
                    if pw & (vr | vw):
                        same = (I.op.replace('_e32', '') == P.op.replace('_e32', ''))
                        if same and I.op.startswith('v_dot2c') and (pw & vw) and not (pw & (vr - vw)): pass
                        else: req = max(req, 3)
                if 'sdwa' in P.op and isvalu and (pw & (vr | vw)): req = max(req, 1)
                if psw:
                    if isvalu and (psw & sr): req = max(req, 2)
                    if I.kind in ('vload', 'vstore', 'dma') and (psw & sr): req = max(req, 5)
                    if (I.op.startswith('v_readlane') or I.op.startswith('v_writelane')) and (psw & sr): req = max(req, 4)
                    if I.kind in ('salu', 'branch') and ((psw & sr) or ('vcc' in I.op and ('vcc', 0) in psw)): req = max(req, 1)
                if ('exec', 0) in P.wr:
                    if I.kind == 'mfma' or I.op.startswith('v_permlane') or I.op.startswith('v_read'): req = max(req, 4)
                    if 'dpp' in I.op: req = max(req, 5)
            if P.kind == 'salu' and ('m0', 0) in P.wr and I.kind == 'dma': req = max(req, 1)
            if P.kind == 'vstore' and ('x3' in P.op or 'x4' in P.op) and (P.srcc & vw):
                req = max(req, 2 if isvalu else 1)
            need = max(need, req - d)
            d += P.cost if P.kind == 'nop' else (0 if P.kind in ('label', 'dir') else 1)
            if d > 20: break
        return need
    for I in ins:
        n = dist_need(I)
        while n > 0:
            k = min(n, 16); N = Ins(f's_nop {k - 1}'); out.append(N); hist.append(N); n -= k
        out.append(I); hist.append(I)
        if len(hist) > 40: hist = hist[-40:]
    return out

def finalize(ins):
    return hazards(autowait(flatten(ins)))

def text(ins):
    return '\n'.join(('' if i.kind in ('label', 'dir') else '    ') + i.text for i in ins) + '\n'

def interleave(groups, fill, weights=None):
    slots = sum(1 for g in groups for x in g if x is None)
    total = sum(i.cost for i in fill)
    out = []; k = 0; acc = 0.0; used = 0; si = 0
    for g in groups:
        for x in g:
            if x is None:
                si += 1
                target = total * si / slots
                while k < len(fill) and used + fill[k].cost / 2.0 <= target:
                    out.append(fill[k]); used += fill[k].cost; k += 1
            else:
                out.append(x)
    out.extend(fill[k:])
    return out
```

```python
import sys, struct
sys.path.insert(0, "dev")
from asmlib import *

NAME = "recurrent_scan__linear_kernel_hedgehog__dense_activation_silu__prompt_kernel"
K1 = 1024
WS_H   = 0
WS_PQ  = 64 * 112 * K1
WS_KVP = WS_PQ + 64 * 16 * 4096
WS_KVF = WS_KVP + 32 * 16 * 4096
WS_FH  = WS_KVF + 64 * K1
WS_FP  = WS_FH + 256 * 4096
WS_FK  = WS_FP + 32 * 2048
WS_TAG = WS_FK + 8 * 4096
WS_DIAG = WS_TAG + 4096
WS_SIZE = WS_DIAG + 256 * 8 * 64
SLOT = 28 * K1
SPARE = 140 * K1
WPHI_L = 156 * K1
CTL = 160 * K1 - 512
LDS_TOTAL = 160 * K1
F_REG = 24 * K1
A_BASE = 96 * K1
A_REG = 16 * K1
EV_XFREE, EV_C0, EV_C1, EV_C2, EV_C3, EV_PK, EV_END, EV_V = range(8)
CN_WO, CN_LT, CN_PH, CN_KV, CN_PQ, CN_K2 = 7, 8, 9, 10, 11, 13
sBND = 70
L2E = 1.4426950408889634
def f2u(x): return struct.unpack('<I', struct.pack('<f', x))[0]
def hx(x): return '0x%08x' % (x & 0xffffffff)

sWAVE, sXCD, sI, sRB, sROLE = 3, 4, 5, 6, 7
SRD_X, SRD_W, SRD_WS, SRD_W2, SRD_WO, SRD_OUT, SRD_DBG, SRD_WPHI = 8, 12, 16, 20, 24, 28, 32, 36
sTB, sCB, sIDX, sTAG, sPITCH = 40, 41, 42, 43, 44
sCOL = [45, 46, 47]
sCOLS = 48
sSEL_LO, sSEL_HI = 49, 63
sT0, sT1, sT2, sT3 = 50, 51, 52, 53
sHI = 54
sROT1, sROT2, sM70 = 41, 57, 56
sCNT, sW4, sFT, sFS, sL2E = 58, 59, 60, 61, 62
sU0, sU1, sU2, sU3, sU4, sU5 = 64, 65, 66, 67, 68, 69
sKA_QKV, sKA_W1 = 80, 82
STAMP0 = 84
def srd(b): return f's[{b}:{b+3}]'
def v(a, n=1): return f'v{a}' if n == 1 else f'v[{a}:{a+n-1}]'
HI = f's[{sHI}:{sHI+1}]'

class Opt:
    diag = False
    ncen = 18
    sleep = 8
    early = False
    rot = 1
    lprio = 0
    lsleep = 1
    nodma = 0
    nosc1 = 0
    nowo = 0
    wpf = 0
    xfirst = 3
    w2pf = 0
    gpf = 1
    hint = 1
    athr = 4
    rsleep = 2
    ackdiag = 0
    pk = 0
    pkq = 1
    trpace = 1
    aw2 = 8
    tr1 = 6
    kprio = 1
    aprio = 0
    bthr = 10
    trfirst = 0
    thr = 40
    xpipe = 4
    fine = -1
    cpf = 1
    wopf = 1
    phi1 = 1
    fprio = 1
    dbgout = 0
    outsc = ''
    empty = 0
    xcc = 0
    fdiag = 0
    nophi = 0
    notr = 0
    cprio = 0
    predelay = 0
    ksleep = 2

def stamp(S, k):
    if not Opt.diag: return
    if Opt.fine >= 0:
        if k == 0: S('s_memtime s[100:101]\ns_waitcnt lgkmcnt(0)\ns_mov_b32 s71, s100')
        return
    if isinstance(k, str):
        if not Opt.early: return
        k = int(k[1:])
    elif Opt.early and 3 <= k < 15: return
    S(f'{"s_memtime" if Opt.diag == 2 else "s_memrealtime"} s[100:101]\ns_waitcnt lgkmcnt(0)\ns_mov_b32 s{STAMP0+k}, s100')

def diag_out(S):
    if not Opt.diag: return
    S('s_waitcnt vmcnt(0) lgkmcnt(0)')
    stamp(S, 15)
    if Opt.xcc: S(f's_getreg_b32 s{STAMP0+11}, hwreg(HW_REG_XCC_ID)\ns_getreg_b32 s{STAMP0+12}, hwreg(HW_REG_HW_ID)')
    if Opt.dbgout:
        lab = newlab('dg')
        S(f's_not_b32 s{STAMP0+14}, s{STAMP0}')
        if Opt.dbgout == 1: S(f's_cmp_ge_u32 s{sWAVE}, 4')
        else: S(f's_cmp_lt_u32 s{sWAVE}, 4')
        S(f's_cbranch_scc1 {lab}')
        S('v_mov_b32 v16, 0')
        for k in range(1, 16): S(f'v_writelane_b32 v16, s{STAMP0+k}, {k}')
        S(f'v_mbcnt_lo_u32_b32 v17, -1, 0\nv_lshlrev_b32 v17, 2, v17\ns_mov_b64 exec, 0xfffe')
        S(f'buffer_atomic_umax v16, v17, {srd(SRD_DBG)}, 0 offen sc1')
        S(f'{lab}:\ns_endpgm')
    if Opt.fine >= 0:
        S('v_mov_b32 v16, s71\nv_mov_b32 v31, s71')
        for k in range(14): S(f'v_mov_b32 v{17+k}, s{72+2*k}')
    else:
        for k in range(16): S(f'v_mov_b32 v{16+k}, s{STAMP0+k}')
    S(f's_lshl_b32 s{sT0}, s2, 3\ns_add_u32 s{sT0}, s{sT0}, s{sWAVE}\ns_lshl_b32 s{sT0}, s{sT0}, 6\ns_add_u32 s{sT0}, s{sT0}, {WS_DIAG}')
    S('v_mov_b32 v40, 0\ns_mov_b64 exec, 1')
    for k in range(4): S(f'buffer_store_dwordx4 v[{16+4*k}:{19+4*k}], v40, {srd(SRD_WS)}, s{sT0} offen offset:{16*k}')

def half_base(h): return ((h + 4) % 5) * SLOT

_lab = [0]
def newlab(p):
    _lab[0] += 1; return f'L_{p}{_lab[0]}'
def RAW(t):
    i = Ins(t); i.kind = 'salu'; i.rd = set(); i.wr = set(); return i
def raw(S, t):
    for l in t.split('\n'):
        S.l.append(Ins(l) if l.endswith(':') else RAW(l))

vCTL, vLANE, vL16 = 0, 1, 2
def mk_srd(S, items):
    for b, lo, size in items:
        S(f's_mov_b64 s[{b}:{b+1}], s[{lo}:{lo+1}]\ns_mov_b32 s{b+2}, {size}\ns_mov_b32 s{b+3}, 0x20000')
def prologue(S):
    S(f's_cmp_ge_u32 s2, {0 if Opt.empty else 256}\ns_cbranch_scc1 L_end')
    if Opt.diag:
        for k in range(16): S(f's_mov_b32 s{STAMP0+k}, 0')
        if Opt.fine >= 0: S('s_mov_b32 s84, 1\ns_mov_b32 s86, 1\ns_mov_b32 s88, 1\ns_mov_b32 s90, 1\ns_mov_b32 s92, 1\ns_mov_b32 s94, 1\ns_mov_b32 s96, 1\ns_mov_b32 s98, 1')
    stamp(S, 0)
    S('s_load_dwordx16 s[64:79], s[0:1], 0\ns_load_dwordx4 s[80:83], s[0:1], 64')
    S(f'v_lshrrev_b32 v3, 6, v0\nv_and_b32 v{vLANE}, 63, v0\nv_readfirstlane_b32 s{sWAVE}, v3\nv_lshlrev_b32 v{vL16}, 4, v{vLANE}')
    S(f's_and_b32 s{sXCD}, s2, 7\ns_lshr_b32 s{sI}, s2, 3\ns_and_b32 s{sT3}, s{sI}, 3\ns_lshr_b32 s{sT2}, s{sI}, 2\ns_xor_b32 s{sT2}, s{sT2}, 4')
    S(f's_lshr_b32 s{sRB}, s{sXCD}, 1\ns_lshl_b32 s{sRB}, s{sRB}, 2\ns_add_u32 s{sRB}, s{sRB}, s{sT3}')
    S(f's_lshl_b32 s{sCB}, s{sT3}, 1\ns_add_u32 s{sCB}, s{sCB}, s{sT2}\ns_sub_u32 s{sT0}, s{sCB}, 7\ns_cmp_ge_u32 s{sCB}, 7\ns_cselect_b32 s{sCB}, s{sT0}, s{sCB}')
    S(f's_and_b32 s{sW4}, s{sWAVE}, 3')
def decode2(S):
    S(f's_lshl_b32 s{sTB}, s{sXCD}, 2\ns_add_u32 s{sTB}, s{sTB}, s{sT3}')
    S(f's_and_b32 s{sIDX}, s{sXCD}, 1\ns_lshl_b32 s{sIDX}, s{sIDX}, 2\ns_and_b32 s{sT0}, s{sT2}, 3\ns_add_u32 s{sIDX}, s{sIDX}, s{sT0}')
    S(f's_and_b32 s{sT0}, s{sT2}, 4\ns_lshl_b32 s{sT0}, s{sT0}, 1\ns_add_u32 s{sROLE}, s{sIDX}, s{sT0}')
    S(f's_mul_i32 s{sROT2}, s{sT3}, 7\ns_lshl_b32 s{sT0}, s{sCB}, 2\ns_add_u32 s{sROT2}, s{sROT2}, s{sT0}\ns_sub_u32 s{sT0}, s{sROT2}, 28\ns_cmp_ge_u32 s{sROT2}, 28\ns_cselect_b32 s{sROT2}, s{sT0}, s{sROT2}')
    S(f's_lshl_b32 s{sT0}, s{sW4}, 2\ns_add_u32 s{sT0}, s{sT0}, {CTL}\nv_mov_b32 v{vCTL}, s{sT0}')
    S(f's_mov_b32 s{sHI}, 0\ns_mov_b32 s{sHI+1}, -1\ns_mov_b32 s{sL2E}, {hx(f2u(L2E))}\ns_movk_i32 s{sM70}, 0x70')
def l_decode(S):
    S(f'v_lshlrev_b32 v4, 3, v{vLANE}\nv_add_u32 v4, {CTL}, v4\nv_mov_b32 v6, 0\nv_mov_b32 v7, 0\nds_write_b64 v4, v[6:7]')
    decode2(S)
    S(f's_mul_i32 s{sT0}, s{sIDX}, 448\ns_and_b32 s{sT1}, s{sIDX}, 1\ns_lshl_b32 s{sT2}, s{sT1}, 6\ns_add_u32 s{sT2}, s{sT2}, s{sT0}')
    S(f's_mul_i32 s{sT1}, s{sT1}, 384\ns_sub_u32 s{sCOLS}, s{sT0}, s{sT1}\ns_add_u32 s{sCOLS}, s{sCOLS}, 384')
    S(f's_mul_i32 s{sT0}, s{sIDX}, 112')
    S(f's_add_u32 s{sT1}, s{sT0}, 896\ns_add_u32 s{sT3}, s{sT0}, 1792\ns_add_u32 s{sCOL[1]}, s{sT2}, 128\ns_add_u32 s{sCOL[2]}, s{sT2}, 256')
    S(f's_movk_i32 s{sPITCH}, 3584\ns_cmp_ge_u32 s{sROLE}, 8')
    S(f's_cselect_b32 s{sCOL[0]}, s{sT1}, s{sT2}\ns_cselect_b32 s{sPITCH}, 2688, s{sPITCH}')
    S(f's_cselect_b32 s{sCOL[1]}, s{sT3}, s{sCOL[1]}\ns_cselect_b32 s{sCOL[2]}, s{sT0}, s{sCOL[2]}')
    S(f's_mul_i32 s{SRD_W+2}, s{sPITCH}, 448\ns_mov_b32 s{SRD_W+3}, 0x20000')
    swz_voff(S, vLW, f's{sPITCH}', 8)
    S('s_waitcnt lgkmcnt(0)')
    S(f's_cmp_ge_u32 s{sROLE}, 8\ns_cselect_b64 s[{SRD_W}:{SRD_W+1}], s[66:67], s[74:75]')
    mk_srd(S, ((SRD_X, 64, 2048 * 896), (SRD_WS, 82, WS_SIZE), (SRD_W2, 76, 1792 * 896), (SRD_WO, 70, 448 * 896), (SRD_OUT, 78, 2048 * 896), (SRD_DBG, 80, 256), (SRD_WPHI, 68, 16 * 1568)))
    S(f's_mov_b64 s[{sKA_QKV}:{sKA_QKV+1}], s[66:67]\ns_mov_b64 s[{sKA_W1}:{sKA_W1+1}], s[74:75]')

TAGW = 320
def tag_fetch_l0(S):
    a, b = newlab('tf'), newlab('tf')
    S(f's_cmp_lg_u32 s{sW4}, 0\ns_cbranch_scc1 {b}')
    raw(S, f's_mov_b32 s{sBND}, 0\nv_mov_b32 v15, 0\n{a}:\nbuffer_load_dword v14, v15, {srd(SRD_DBG)}, 0 offen sc1\ns_waitcnt vmcnt(0)\nv_readfirstlane_b32 s{sTAG}, v14\ns_add_u32 s{sBND}, s{sBND}, 1\n'
           f's_max_u32 s{sCNT}, s{sBND}, 0x20000\ns_sub_u32 s{sCNT}, s{sCNT}, 0x20000\ns_or_b32 s{sTAG}, s{sTAG}, s{sCNT}\ns_cmp_eq_u32 s{sTAG}, 0\ns_cbranch_scc1 {a}\n'
           f'v_mov_b32 v14, s{sTAG}\ns_mov_b64 exec, 15\nds_write_b32 v{vLC}, v14 offset:{TAGW}\ns_mov_b64 exec, -1\ns_waitcnt lgkmcnt(0)\n{b}:')
def tag_prefetch(S, vt):
    S(f'ds_read_b32 v{vt}, v{vCTL} offset:{TAGW}')
def tag_get(S, vt):
    a, b = newlab('tg'), newlab('tg')
    S(f'v_readfirstlane_b32 s{sTAG}, v{vt}')
    S(f's_cmp_lg_u32 s{sTAG}, 0\ns_cbranch_scc1 {b}')
    raw(S, f'{a}:\nds_read_b32 v{vt}, v{vCTL} offset:{TAGW}\ns_sleep 1\ns_waitcnt lgkmcnt(0)\nv_readfirstlane_b32 s{sTAG}, v{vt}\ns_nop 0\ns_cmp_eq_u32 s{sTAG}, 0\ns_cbranch_scc1 {a}\n{b}:')

def poll(S, voff, soff, nl, vt, sleep=None):
    a, b = newlab('pl'), newlab('pl')
    S(f's_mov_b64 exec, {hex((1 << nl) - 1)}\ns_mov_b32 s{sCNT}, 0')
    S(f'{a}:')
    S(f'buffer_load_dword v{vt}, v{voff}, {srd(SRD_WS)}, s{soff} offen sc1')
    S('s_waitcnt vmcnt(0)')
    S(f'v_cmp_ne_u32 vcc, s{sTAG}, v{vt}')
    S(f's_add_u32 s{sCNT}, s{sCNT}, 1\ns_cbranch_vccz {b}\ns_cmp_gt_u32 s{sCNT}, 0x20000\ns_cbranch_scc1 {b}\ns_sleep {sleep or Opt.sleep}\ns_branch {a}')
    S(f'{b}:')
    S('s_mov_b64 exec, -1')

def flag_store(S, soff, vt, n=1, shift=8):
    for i in range(4): S(f'v_mov_b32 v{vt+i}, s{sTAG}')
    S(f'v_lshrrev_b32 v{vt+4}, 3, v{vLANE}\nv_lshlrev_b32 v{vt+4}, {shift}, v{vt+4}\nv_and_or_b32 v{vt+4}, v{vL16}, s{sM70}, v{vt+4}')
    m = (1 << (8 * n)) - 1
    if n < 8: S(f's_mov_b32 exec_lo, {hex(m & 0xffffffff)}\ns_mov_b32 exec_hi, {hex(m >> 32)}')
    S(f'buffer_store_dwordx4 {v(vt,4)}, v{vt+4}, {srd(SRD_WS)}, s{soff} offen sc1')
    if n < 8: S('s_mov_b64 exec, -1')

def c_signal(ev):
    return [Ins(f'ds_write_b32 v{vCTL}, v{vCTL} offset:{16*ev}')]
def cnt_read(idx, vt):
    return [Ins(f'ds_read_b32 v{vt}, v{vCTL} offset:{128 + 16*idx}')]
def cnt_check(idx, vt, sleep=0):
    S = Stream(); a, b = newlab('ck'), newlab('ck')
    S(f'v_readfirstlane_b32 s{sCNT}, v{vt}\ns_cmp_ge_u32 s{sCNT}, 4\ns_cbranch_scc1 {b}')
    raw(S, f's_mov_b32 s{sBND}, 0\n{a}:\nds_read_b32 v{vt}, v{vCTL} offset:{128 + 16*idx}\ns_add_u32 s{sBND}, s{sBND}, 1\ns_cmp_gt_u32 s{sBND}, 0x40000\ns_cbranch_scc1 {b}\ns_sleep {sleep}\ns_waitcnt lgkmcnt(0)\nv_readfirstlane_b32 s{sCNT}, v{vt}\ns_nop 0\ns_cmp_lt_u32 s{sCNT}, 4\ns_cbranch_scc1 {a}\n{b}:')
    return S.l
def c_allflags(ev, vt, va):
    S = Stream(); a, b = newlab('cf'), newlab('cf')
    S(f'v_mov_b32 v{va}, {CTL}\nds_read_b128 v[{vt}:{vt+3}], v{va} offset:{16*ev}')
    S2 = Stream()
    S2(f'v_min3_u32 v{vt}, v{vt}, v{vt+1}, v{vt+2}\nv_min_u32 v{vt}, v{vt}, v{vt+3}\nv_readfirstlane_b32 s{sCNT}, v{vt}\ns_cmp_lg_u32 s{sCNT}, 0\ns_cbranch_scc1 {b}')
    raw(S2, f's_mov_b32 s{sBND}, 0\n{a}:\nds_read_b128 v[{vt}:{vt+3}], v{va} offset:{16*ev}\ns_add_u32 s{sBND}, s{sBND}, 1\ns_cmp_gt_u32 s{sBND}, 0x40000\ns_cbranch_scc1 {b}\ns_waitcnt lgkmcnt(0)\n'
            f'v_min3_u32 v{vt}, v{vt}, v{vt+1}, v{vt+2}\nv_min_u32 v{vt}, v{vt}, v{vt+3}\ns_nop 0\nv_readfirstlane_b32 s{sCNT}, v{vt}\ns_nop 0\ns_cmp_eq_u32 s{sCNT}, 0\ns_cbranch_scc1 {a}\n{b}:')
    return S.l, S2.l
vLC, vLONE, vLP = 11, 12, 188
def l_signal(S, idx):
    S(f's_mov_b64 exec, 15\nds_add_u32 v{vLC}, v{vLONE} offset:{128 + 16*idx}\ns_mov_b64 exec, -1')
def l_wait(S, ev):
    a, b = newlab('lw'), newlab('lw')
    S('s_waitcnt lgkmcnt(0)')
    raw(S, f's_mov_b32 s{sBND}, 0\n{a}:\nds_read_b128 v[{vLP}:{vLP+3}], v{vLP+4} offset:{16*ev}\ns_add_u32 s{sBND}, s{sBND}, 1\ns_cmp_gt_u32 s{sBND}, 0x40000\ns_cbranch_scc1 {b}\ns_sleep {Opt.lsleep}\ns_waitcnt lgkmcnt(0)\nv_min3_u32 v{vLP}, v{vLP}, v{vLP+1}, v{vLP+2}\nv_min_u32 v{vLP}, v{vLP}, v{vLP+3}\ns_nop 0\nv_readfirstlane_b32 s{sCNT}, v{vLP}\ns_nop 0\ns_cmp_eq_u32 s{sCNT}, 0\ns_cbranch_scc1 {a}\n{b}:\ns_waitcnt lgkmcnt(0)')

X0 = 16; ACC = [[128, 144], [160, 176]]; AF = 192; WPHI = 224; T = 240; U = 224; TT = 248; NR = 4
vVA = [3, 4]; vWA = [5, 6]; vVS = 7; vR, vRM, vNRL, vSD, vCT, vNM = 8, 9, 10, 11, 12, 13; vTAG = 14

def lane_consts_tr(S, dst, tmp, cstride, rowmap):
    t0, t1, t2 = tmp, tmp + 1, tmp + 2
    S(f'v_bfe_u32 v{t0}, v{vLANE}, 2, 2')
    S(f'v_lshrrev_b32 v{t1}, 5, v{vLANE}')
    S(f'v_lshlrev_b32 v{t1}, {10 if rowmap == "A" else 9}, v{t1}\nv_lshl_add_u32 v{t1}, v{t0}, 7, v{t1}')
    S(f'v_bfe_u32 v{t0}, v{vLANE}, 3, 1\nv_lshlrev_b32 v{t0}, 6, v{t0}')
    S(f'v_bfe_u32 v{t2}, v{vLANE}, 4, 1\nv_lshlrev_b32 v{t2}, 5, v{t2}\nv_and_b32 v{dst[0]}, 3, v{vLANE}\nv_lshl_add_u32 v{t2}, v{dst[0]}, 3, v{t2}')
    S(f'v_xor_b32 v{dst[0]}, v{t2}, v{t0}\nv_add_u32 v{dst[0]}, v{dst[0]}, v{t1}')
    S(f'v_add_u32 v{t2}, {cstride}, v{t2}\nv_xor_b32 v{dst[1]}, v{t2}, v{t0}\nv_add_u32 v{dst[1]}, v{dst[1]}, v{t1}')

def trb(St, dst, hfshift, pitch, tmp):
    St(f'v_lshrrev_b32 v{tmp}, 5, v{vLANE}\nv_lshlrev_b32 v{tmp}, {hfshift}, v{tmp}\nv_bfe_u32 v{dst}, v{vLANE}, 2, 2\nv_add_u32 v{tmp}, v{tmp}, v{dst}\nv_mul_u32_u24 v{dst}, {pitch}, v{tmp}')
    St(f'v_bfe_u32 v{tmp}, v{vLANE}, 4, 1\nv_lshl_add_u32 v{dst}, v{tmp}, 5, v{dst}\nv_and_b32 v{tmp}, 3, v{vLANE}\nv_lshl_add_u32 v{dst}, v{tmp}, 3, v{dst}')

def wrap_inc(S, reg, inc, lim):
    S(f's_add_u32 s{reg}, s{reg}, {inc}\ns_cmp_eq_u32 s{reg}, {lim}\ns_cselect_b32 s{reg}, 0, s{reg}')

def c_load_x(S):
    a, b = T, T + 1
    S(f'v_lshrrev_b32 v{T+2}, 3, v{vLANE}\nv_mul_u32_u24 v{a}, 896, v{T+2}')
    S(f'v_lshrrev_b32 v{T+2}, 4, v{vLANE}\nv_and_b32 v{T+3}, 7, v{vLANE}\nv_xor_b32 v{T+2}, v{T+2}, v{T+3}\nv_lshl_add_u32 v{a}, v{T+2}, 4, v{a}\nv_xor_b32 v{b}, 64, v{a}')
    S(f'v_add_u32 v{b}, {8*896}, v{b}\nv_add_u32 v{T+2}, {16*896}, v{a}\nv_add_u32 v{T+3}, {16*896}, v{b}')
    sXB, sXL, sXR, sXO = sFT, sFS, sCOL[0], sCOL[1]
    S(f's_lshl_b32 s{sXB}, s{sRB}, 2\ns_add_u32 s{sXB}, s{sXB}, s{sWAVE}\ns_mul_i32 s{sXB}, s{sXB}, {32*896}')
    S(f's_mul_i32 s{sXL}, s{sWAVE}, {SLOT}\ns_lshl_b32 s{sXR}, s{sROT1}, 7')
    S(f's_mov_b32 s{SRD_X+2}, {2048*896}\ns_mov_b32 s{SRD_X+3}, 0x20000')
    stamp(S, 'e3')
    S(f's_waitcnt lgkmcnt(0)\ns_mov_b64 s[{SRD_X}:{SRD_X+1}], s[64:65]')
    stamp(S, 'e4')
    def xdma(lc):
        S(f's_add_u32 s{sXO}, s{sXB}, s{sXR}')
        for g in range(4):
            S(f's_add_u32 m0, s{sXL}, {lc*4096 + g*1024}')
            if g == 0 and lc < 6: wrap_inc(S, sXR, 128, 896)
            S(f'buffer_load_dwordx4 v{T+g}, {srd(SRD_X)}, s{sXO} offen lds', tok=('x', lc))
    for lc in range(Opt.xpipe): xdma(lc)
    decode2(S)
    mk_srd(S, ((SRD_WS, 82, WS_SIZE), (SRD_OUT, 78, 2048 * 896), (SRD_DBG, 80, 256)))
    if Opt.xpipe >= 7: S('s_barrier')
    sT1_ = sXL
    stamp(S, 'e5')
    xa = T + 4
    S(f'v_and_b32 v{TT}, 31, v{vLANE}\nv_bfe_u32 v{TT+1}, v{vLANE}, 1, 3\nv_lshrrev_b32 v{xa}, 5, v{vLANE}\nv_xor_b32 v{TT+1}, v{TT+1}, v{xa}')
    S(f'v_lshlrev_b32 v{TT+1}, 4, v{TT+1}\nv_lshl_add_u32 v{xa}, v{TT}, 7, v{TT+1}\nv_add_u32 v{xa}, s{sXL}, v{xa}')
    for q in range(1, 4): S(f'v_xor_b32 v{xa+q}, {q*32}, v{xa}')
    S(f's_mov_b32 s{sSEL_LO}, 0x00003f80\ns_mov_b32 s{sSEL_HI}, 0x3f800000')
    S(f's_cmp_ge_u32 s{sROLE}, 8\ns_cselect_b32 s{sT0}, 56, 64')
    lane_consts_tr(S, vVA, TT, f's{sT0}', 'A')
    sA, sB, qA, qB, one = U, U + 1, U + 2, U + 3, U + 4
    S(f'v_mov_b32 v{sA}, 0\nv_mov_b32 v{sB}, 0\nv_mov_b32 v{qA}, 0\nv_mov_b32 v{qB}, 0\nv_mov_b32 v{one}, 0x3f803f80')
    def stats(lc):
        for q in range(4):
            for j in range(4):
                r = X0 + (lc * 4 + q) * 4 + j
                S(f'v_dot2c_f32_bf16 v{sA + (j & 1)}, v{r}, v{one}\nv_dot2c_f32_bf16 v{qA + (j & 1)}, v{r}, v{r}')
    for lc in range(7):
        S.wait(('x', lc))
        if lc in (0, 3, 6): stamp(S, 'e%d' % (6 + lc // 3))
        for q in range(4):
            S(f'ds_read_b128 {v(X0 + (lc*4+q)*4, 4)}, v{xa+q} offset:{lc*4096}')
        if lc == 6: S.ext(c_signal(EV_XFREE))
        if lc + Opt.xpipe < 7: xdma(lc + Opt.xpipe)
        if lc + Opt.xpipe == 6: S('s_barrier')
        if lc > 0: stats(lc - 1)
    stamp(S, 1)
    stats(6)
    t = U + 5
    S(f'v_add_f32 v{sA}, v{sA}, v{sB}\nv_add_f32 v{qA}, v{qA}, v{qB}\nv_mov_b32 v{sB}, v{sA}\nv_mov_b32 v{qB}, v{qA}')
    S(f'v_permlane32_swap_b32 v{sA}, v{sB}\nv_permlane32_swap_b32 v{qA}, v{qB}')
    S(f'v_add_f32 v{sA}, v{sA}, v{sB}\nv_add_f32 v{qA}, v{qA}, v{qB}')
    inv = hx(f2u(1.0 / 448))
    S(f'v_mul_f32 v{sA}, {inv}, v{sA}\nv_mul_f32 v{qA}, {inv}, v{qA}')
    S(f'v_fma_f32 v{qA}, -v{sA}, v{sA}, v{qA}\nv_max_f32 v{qA}, 0, v{qA}')
    S(f'v_cvt_pk_bf16_f32 v{t}, v{sA}, v{qA}')
    S(f'v_lshlrev_b32 v{vNM}, 16, v{t}\nv_xor_b32 v{vNM}, 0x80000000, v{vNM}')
    R = Stream()
    R(f'v_and_b32 v{qA}, 0xffff0000, v{t}\nv_add_f32 v{qA}, {hx(f2u(1e-5))}, v{qA}')
    R(f'v_cvt_pk_bf16_f32 v{t}, v{qA}, v{qA}\nv_and_b32 v{qA}, 0xffff0000, v{t}\nv_sqrt_f32 v{qA}, v{qA}')
    R(f'v_nop\nv_cvt_pk_bf16_f32 v{t}, v{qA}, v{qA}\nv_and_b32 v{vSD}, 0xffff0000, v{t}\nv_rcp_f32 v{vR}, v{vSD}')
    R(f'v_nop\nv_mul_f32 v{vNRL}, {hx(f2u(-L2E))}, v{vR}\nv_cndmask_b32 v{vRM}, v{vR}, 0, {HI}')
    return R.l

def center(s):
    S = Stream()
    for j in range(4):
        r = X0 + s * 4 + j
        a, b = TT + 2 * j, TT + 2 * j + 1
        S(f'v_dot2_f32_bf16 v{a}, v{r}, s{sSEL_LO}, v{vNM}\nv_dot2_f32_bf16 v{b}, v{r}, s{sSEL_HI}, v{vNM}')
    for j in range(4):
        r = X0 + s * 4 + j
        S(f'v_cvt_pk_bf16_f32 v{r}, v{TT+2*j}, v{TT+2*j+1}')
    return S.l
def center5(s):
    S = Stream()
    for j in range(4):
        r = X0 + s * 4 + j
        a, b = TT + 2 * j, TT + 2 * j + 1
        S(f'v_lshlrev_b32 v{a}, 16, v{r}\nv_and_b32 v{b}, 0xffff0000, v{r}\nv_add_f32 v{a}, v{a}, v{vNM}\nv_add_f32 v{b}, v{b}, v{vNM}')
        S(f'v_cvt_pk_bf16_f32 v{r}, v{a}, v{b}')
    return S.l

def silu_tile(acc, u, soff, tok):
    S = Stream()
    for g in range(4):
        a = acc + 4 * g
        for i in range(4): S(f'v_mul_f32 v{TT+i}, v{a+i}, v{vNRL}')
        for i in range(4): S(f'v_exp_f32 v{TT+i}, v{TT+i}')
        for i in range(4): S(f'v_fma_f32 v{TT+i}, v{TT+i}, v{vSD}, v{vSD}')
        for i in range(4): S(f'v_rcp_f32 v{TT+i}, v{TT+i}')
        for i in range(4): S(f'v_mul_f32 v{TT+4+i}, v{a+i}, v{TT+i}')
        S(f'v_cvt_pk_bf16_f32 v{u+2*g}, v{TT+4}, v{TT+5}\nv_cvt_pk_bf16_f32 v{u+2*g+1}, v{TT+6}, v{TT+7}')
        if g % 2 == 1:
            S(f'buffer_store_dwordx4 {v(u + 4*(g//2), 4)}, v{vL16}, {srd(SRD_WS)}, s{soff[0]} offen offset:{soff[1] + 1024*(g//2)} sc1', tok=tok)
    return S.l

def part(f, s, lo, hi):
    n = len(f); k = hi - lo + 1
    return f[(s - lo) * n // k:(s - lo + 1) * n // k]

CN_H1B = 14
class Steps:
    def __init__(self, single):
        self.steps = []
        for st in range(3):
            for s in range(28):
                h = st * 2 + s // 14; sp = s % 14
                p = dict(st=st, s=s, nt=2, h=h, off=sp * 2048, first=(sp == 0), last=(sp == 13), base=half_base(h), cn=h)
                if h == 1:
                    if sp < 8: p.update(base=SPARE, h1a=(sp == 7))
                    else: p.update(base=0, off=(sp - 8) * 2048, first=(sp == 8), cn=CN_H1B)
                self.steps.append(p)
        if single:
            for s in range(28):
                self.steps.append(dict(st=3, s=s, nt=1, h=6, off=s * K1, first=(s == 0), last=False, cn=6))
    def reads(self, n):
        if n >= len(self.steps): return [], []
        p = self.steps[n]; S = Stream(); pre = Stream()
        ring = AF + (n % NR) * 8
        if p['first']:
            pre.ext(cnt_check(p['cn'], vCT))
            if p['nt'] == 2:
                b = p['base']
                pre(f'v_add_u32 v{vWA[0]}, {b}, v{vVA[0]}\nv_add_u32 v{vWA[1]}, {b}, v{vVA[1]}')
        if p['nt'] == 2:
            for c in range(2):
                for u in range(2):
                    S(f'ds_read_b64_tr_b16 {v(ring + 4*c + 2*u, 2)}, v{vWA[c]} offset:{p["off"] + 512*u}', tok=('a', n))
        else:
            for u in range(2):
                S(f'ds_read_b64_tr_b16 {v(ring + 2*u, 2)}, v{vVS} offset:{p["off"] + 256*u}', tok=('a', n))
        if p['last'] and p['h'] < 4: S.ext(c_signal(EV_C0 + p['h']))
        if n + 3 < len(self.steps) and self.steps[n + 3]['first']:
            S.ext(cnt_read(self.steps[n + 3]['cn'], vCT))
        return pre.l, S.l
    def mfmas(self, n):
        p = self.steps[n]; ring = AF + (n % NR) * 8; out = []
        for c in range(p['nt']):
            acc = ACC[p['st'] % 2][c]
            C = '0' if p['s'] == 0 else v(acc, 16)
            out.append(Ins(f'v_mfma_f32_32x32x16_bf16 {v(acc,16)}, {v(ring+4*c,4)}, {v(X0+4*p["s"],4)}, {C}'))
        return out
    def stage(self, st, fill=None, perstep=None, mid=None):
        idx = [n for n, p in enumerate(self.steps) if p['st'] == st]
        groups = []
        for n in idx:
            p = self.steps[n]
            rd = self.reads(n + NR - 1)[1]
            pre = self.reads(n + NR)[0]
            m = self.mfmas(n)
            g = []
            if Opt.fine == st and p['s'] % 2 == 0 and p['s'] < 26: g.append(RAW(f's_memtime s[{72+p["s"]}:{73+p["s"]}]'))
            if mid and p['s'] in mid: g += mid[p['s']]
            on = p['s'] > 0 or perstep
            w = Stream(); w.wait(('a', n + 1))
            k = 2 if pre else 5
            if p['nt'] == 2:
                g += [m[0]] + rd + ([None] * 2 if on else []) + [m[1]] + w.l + ([None] * k if on else []) + pre
            else:
                g += [m[0]] + rd + ([None] * 3 if on else [])
            if perstep: g = interleave([g], perstep(p['s']))
            if Opt.fine == st and p['s'] == 27: g.append(RAW('s_memtime s[98:99]'))
            groups.append(g)
        if perstep: return [x for g in groups for x in g]
        return interleave(groups, fill)

def c_common(S):
    if Opt.cprio: S('s_setprio 2')
    rest = c_load_x(S)
    S.ext(cnt_read(0, vCT))
    for s in range(Opt.ncen): S.ext(center(s))
    P = Steps(True)
    for n in range(NR - 1):
        pre, rd = P.reads(n); S.ext(pre); S.ext(rd)
    stamp(S, 2)
    f = []
    for s in range(Opt.ncen, 28): f += center5(s)
    S.ext(P.stage(0, perstep=lambda s: part(f, s, 0, 25) if s < 26 else (rest if s == 26 else [])))
    stamp(S, 3)

def c_ffn(S):
    P = Steps(True)
    e = Stream(); t = T
    trb(e, vVS, 3, 64, t)
    e(f's_lshl_b32 s{sT0}, s{sRB}, 2\ns_add_u32 s{sT0}, s{sT0}, s{sWAVE}\ns_mul_i32 s{sT0}, s{sT0}, {112*K1}')
    e(f's_mul_i32 s{sT1}, s{sIDX}, 7\ns_and_b32 s{sT2}, s{sIDX}, 1\ns_add_u32 s{sT3}, s{sT1}, s{sT2}\ns_lshl_b32 s{sT3}, s{sT3}, 11\ns_add_u32 s{sFT}, s{sT0}, s{sT3}')
    e(f's_mul_i32 s{sT2}, s{sT2}, 6\ns_sub_u32 s{sT1}, s{sT1}, s{sT2}\ns_add_u32 s{sT1}, s{sT1}, 6\ns_lshl_b32 s{sT1}, s{sT1}, 11\ns_add_u32 s{sFS}, s{sT0}, s{sT1}')
    for st in (1, 2, 3):
        pa = ACC[(st - 1) % 2]
        fill = (e.l if st == 1 else []) + [Ins(f's_add_u32 s{sT0}, s{sFT}, {(st-1)*4096}')]
        fill += silu_tile(pa[0], T, (sT0, 0), 'st') + silu_tile(pa[1], U, (sT0, 2048), 'st')
        if st == 3:
            t = Stream(); tag_prefetch(t, vTAG); fill = fill + t.l
        S.ext(P.stage(st, fill))
        stamp(S, 3 + st)
    S.ext(silu_tile(ACC[1][0], T, (sFS, 0), 'st'))

def minmax(S, X, mx, mn, t0, t1):
    for op, d in (('v_max3_f32', mx), ('v_min3_f32', mn)):
        S(f'{op} v{d}, v{X}, v{X+1}, v{X+2}')
        for i in range(3, 15, 2): S(f'{op} v{d}, v{d}, v{X+i}, v{X+i+1}')
    S(f'v_max_f32 v{mx}, v{mx}, v{X+15}\nv_min_f32 v{mn}, v{mn}, v{X+15}')
    S(f'v_mov_b32 v{t0}, v{mx}\nv_mov_b32 v{t1}, v{mn}\nv_permlane32_swap_b32 v{mx}, v{t0}\nv_permlane32_swap_b32 v{mn}, v{t1}')
    S(f'v_max_f32 v{mx}, v{mx}, v{t0}\nv_min_f32 v{mn}, v{mn}, v{t1}')
    S(f'v_mul_f32 v{mx}, {hx(f2u(-L2E))}, v{mx}\nv_mul_f32 v{mn}, {hx(f2u(L2E))}, v{mn}')

LX, LE, LT = 144, 160, 176
vLPW, vLMK, vLL2E, vLRD, vLWP = 185, 184, 186, 187, 193
def softmax_body(S, X, E0, tmp, l2e, pw, off, hook0=None):
    for i in range(4): S(f'v_cndmask_b32 v{X+12+i}, v{X+12+i}, v{X+8+i}, {HI}')
    mx, mn, t0, t1 = tmp, tmp + 2, tmp + 1, tmp + 3
    minmax(S, X, mx, mn, t0, t1)
    for sign in range(2):
        E = E0 if sign == 0 else X
        s0, s1 = tmp + 4, tmp + 5
        for i in range(16):
            if sign == 0: S(f'v_fma_f32 v{E+i}, v{X+i}, {l2e}, v{mx}')
            else: S(f'v_fma_f32 v{E+i}, -v{X+i}, {l2e}, v{mn}')
        for i in range(16): S(f'v_exp_f32 v{E+i}, v{E+i}')
        S(f'v_add_f32 v{s1}, v{E+12}, v{E+13}\nv_add_f32 v{s0}, v{E}, v{E+1}\nv_add_f32 v{s1}, v{s1}, v{E+14}')
        S(f'v_add_f32 v{s0}, v{s0}, v{E+2}\nv_add_f32 v{s1}, v{s1}, v{E+15}\nv_add_f32 v{s0}, v{s0}, v{E+3}\nv_cndmask_b32 v{s1}, v{s1}, 0, {HI}')
        for i in range(4, 12): S(f'v_add_f32 v{s0 + (i & 1)}, v{s0 + (i & 1)}, v{E+i}')
        S(f'v_add_f32 v{s0}, v{s0}, v{s1}\nv_mov_b32 v{s1}, v{s0}\nv_permlane32_swap_b32 v{s0}, v{s1}\nv_add_f32 v{s0}, v{s0}, v{s1}\nv_rcp_f32 v{s0}, v{s0}')
        for i in range(16): S(f'v_mul_f32 v{E+i}, v{E+i}, v{s0}')
        for i in range(8): S(f'v_cvt_pk_bf16_f32 v{E+i}, v{E+2*i}, v{E+2*i+1}')
        for qd in range(3):
            S(f'ds_write_b64 v{pw}, {v(E+2*qd, 2)} offset:{off + sign*56 + qd*16}')
        g = Stream(); g(f's_mov_b64 exec, 0xffffffff\nds_write_b64 v{pw}, {v(E+6, 2)} offset:{off + sign*56 + 48}\ns_mov_b64 exec, -1')
        S.l.append(Group(g.l))
        if sign == 0 and hook0: S.ext(hook0)

def softmax_k(hook0):
    S = Stream()
    rw = LE
    S(f'ds_read_b128 {v(rw,4)}, v{vLRD}\nds_read_b128 {v(rw+4,4)}, v{vLRD} offset:1024')
    for st in range(2):
        for u in range(2):
            S(f'ds_read_b64_tr_b16 {v(rw + 8 + 4*st + 2*u, 2)}, v{vLWP} offset:{(16*st + 8*u)*56}')
    S(f'v_mfma_f32_32x32x16_bf16 {v(LX,16)}, {v(rw+8,4)}, {v(rw,4)}, 0')
    S(f'v_mfma_f32_32x32x16_bf16 {v(LX,16)}, {v(rw+12,4)}, {v(rw+4,4)}, {v(LX,16)}')
    softmax_body(S, LX, LE, LT, f'v{vLL2E}', vLPW, 0, hook0)
    return S.l

def scale_pack(acc, dst, masked=True):
    S = Stream()
    for i in range(16): S(f'v_mul_f32 v{acc+i}, v{acc+i}, v{vRM if (masked and i >= 12) else vR}')
    for i in range(8): S(f'v_cvt_pk_bf16_f32 v{dst+i}, v{acc+2*i}, v{acc+2*i+1}')
    return S.l

def phi_mfma(acc, c, b):
    return [Ins(f'v_mfma_f32_32x32x16_bf16 {v(acc,16)}, {v(WPHI+8*c,4)}, {v(b,4)}, 0'),
            Ins(f'v_mfma_f32_32x32x16_bf16 {v(acc,16)}, {v(WPHI+8*c+4,4)}, {v(b+4,4)}, {v(acc,16)}')]

def c_attn(S):
    vHO, vVW, vWP = vVS, vNRL, vSD
    P = Steps(False)
    e = Stream(); t = TT
    trb(e, vWP, 2, 56, t)
    e(f'v_add_u32 v{vWP}, {WPHI_L}, v{vWP}')
    for c in range(2):
        for st in range(2):
            for u in range(2):
                e(f'ds_read_b64_tr_b16 {v(WPHI + 8*c + 4*st + 2*u, 2)}, v{vWP} offset:{c*1568 + (16*st + 8*u)*56}')
    ka = ACC[0]
    vPW = vNM
    h0 = Stream()
    h0(f's_lshl_b32 s{sT0}, s{sWAVE}, 12\ns_add_u32 s{sT0}, s{sT0}, {SPARE}\nv_add_u32 v{vHO}, s{sT0}, v{vL16}')
    h0.ext(scale_pack(ka[0], T))
    h0(f'ds_write_b128 v{vHO}, {v(T,4)}\nds_write_b128 v{vHO}, {v(T+4,4)} offset:1024')
    f1 = h0.l + c_signal(EV_PK)
    f1b = e.l + scale_pack(ka[1], T)
    sm = Stream(); softmax_body(sm, ka[1], ka[0], TT, f's{sL2E}', vPW, 14336)
    t = Stream()
    t(f'v_and_b32 v{TT+3}, 31, v{vLANE}\ns_lshl_b32 s{sT0}, s{sWAVE}, 5\nv_add_u32 v{TT+3}, s{sT0}, v{TT+3}\nv_lshrrev_b32 v{TT+4}, 5, v{vLANE}\nv_lshlrev_b32 v{TT+4}, 3, v{TT+4}')
    t(f'v_mul_u32_u24 v{vVW}, 72, v{TT+3}\nv_add_u32 v{vVW}, v{vVW}, v{TT+4}\nv_add_u32 v{vVW}, {SLOT}, v{vVW}')
    t(f'v_mul_u32_u24 v{vPW}, 112, v{TT+3}\nv_add_u32 v{vPW}, v{vPW}, v{TT+4}')
    f3 = t.l
    g1, g2 = c_allflags(EV_C2, T, T + 4)
    k1, k2 = c_allflags(EV_C1, TT, TT + 4)
    f1 = k1 + f1
    assert all(not x.op.startswith('ds_write') for x in part(f1, 1, 1, 4) + part(f1, 2, 1, 4))
    f2 = f1b + f3
    def ps1(s):
        if 1 <= s <= 4: return part(f1, s, 1, 4)
        if 5 <= s <= 9: return part(f2, s, 5, 9)
        if 11 <= s <= 27: return part(sm.l, s, 11, 27) + (g1 if s == 24 else [])
        return []
    S.ext(P.stage(1, perstep=ps1, mid={3: k2, 10: phi_mfma(ka[1], 1, T), 27: g2}))
    stamp(S, 4)
    va = ACC[1]
    t = Stream()
    for c in range(2):
        t.ext(scale_pack(va[c], T, masked=False))
        d = T
        t(f'v_cndmask_b32 v{d+6}, v{d+6}, v{TT}, {HI}\nv_cndmask_b32 v{d+7}, v{d+7}, 0, {HI}')
        for qd in range(4): t(f'ds_write_b64 v{vVW}, {v(d+2*qd, 2)} offset:{c*9216 + qd*16}')
    vfill = [Ins(f'v_mov_b32 v{TT}, 0x3f80')] + t.l + c_signal(EV_V)
    tp = Stream(); tag_prefetch(tp, vTAG)
    def ps2(s):
        if 1 <= s <= 9: return part(vfill, s, 1, 9)
        if s == 20: return tp.l
        return []
    S.ext(P.stage(2, perstep=ps2))
    stamp(S, 5)
    qa = ACC[0]
    S(f'v_mov_b32 v{TT}, s{sL2E}')
    S.ext(scale_pack(qa[0], T)); S.ext(phi_mfma(qa[0], 0, T)); S.ext(scale_pack(qa[1], AF + 16)); S.ext(phi_mfma(qa[1], 1, AF + 16))
    S(f's_lshl_b32 s{sT0}, s{sRB}, 2\ns_add_u32 s{sT0}, s{sT0}, s{sWAVE}\ns_lshl_b32 s{sT0}, s{sT0}, 3\ns_add_u32 s{sT0}, s{sT0}, s{sIDX}\ns_lshl_b32 s{sT0}, s{sT0}, 13\ns_add_u32 s{sT0}, s{sT0}, {WS_PQ}\ns_add_u32 s{sT1}, s{sT0}, 4096')
    for c in range(2):
        X = qa[c]; E = va[c]; d = AF if c == 0 else X0
        for i in range(4): S(f'v_cndmask_b32 v{X+12+i}, v{X+12+i}, v{X+8+i}, {HI}')
        mx, mn = TT + 4, TT + 6
        minmax(S, X, mx, mn, TT + 5, TT + 7)
        if Opt.pkq:
            for i in range(0, 16, 2): S(f'v_pk_fma_f32 {v(E+i,2)}, {v(X+i,2)}, {v(TT,2)}, {v(mx,2)} op_sel_hi:[1,0,0]')
        else:
            for i in range(16): S(f'v_fma_f32 v{E+i}, v{X+i}, s{sL2E}, v{mx}')
        for i in range(16): S(f'v_exp_f32 v{E+i}, v{E+i}')
        for i in range(8): S(f'v_cvt_pk_bf16_f32 v{d+i}, v{E+2*i}, v{E+2*i+1}')
        for hh in range(2):
            S(f'buffer_store_dwordx4 {v(d+4*hh,4)}, v{vL16}, {srd(SRD_WS)}, s{sT0 + c} offen offset:{hh*1024} sc1', tok='st')
        if Opt.pkq:
            for i in range(0, 16, 2): S(f'v_pk_fma_f32 {v(X+i,2)}, {v(X+i,2)}, {v(TT,2)}, {v(mn,2)} op_sel_hi:[1,0,0] neg_lo:[1,0,0] neg_hi:[1,0,0]')
        else:
            for i in range(16): S(f'v_fma_f32 v{X+i}, -v{X+i}, s{sL2E}, v{mn}')
        for i in range(16): S(f'v_exp_f32 v{X+i}, v{X+i}')
        for i in range(8): S(f'v_cvt_pk_bf16_f32 v{d+8+i}, v{X+2*i}, v{X+2*i+1}')
        for hh in range(2):
            S(f'buffer_store_dwordx4 {v(d+8+4*hh,4)}, v{vL16}, {srd(SRD_WS)}, s{sT0 + c} offen offset:{2048 + hh*1024} sc1', tok='st')
    stamp(S, 6)

PHI = 16; PN = 144; KV = 208; XT = 240
vO = 3; vVW2 = [6, 7]
def out_addr(S, xt, off):
    S(f'v_and_b32 v8, 31, v{vLANE}\nv_mul_u32_u24 v{vO}, 896, v8\nv_lshrrev_b32 v8, 5, v{vLANE}\nv_lshl_add_u32 v{vO}, v8, 4, v{vO}')
    S(f's_and_b32 s{sT0}, s{sW4}, 1\ns_lshl_b32 s{sT1}, s{sTB}, 1\ns_add_u32 s{sT0}, s{sT0}, s{sT1}\ns_mul_i32 s{sFT}, s{sT0}, {32*896}')
    S(f's_lshr_b32 s{sT0}, s{sW4}, 1\ns_lshl_b32 s{sT0}, s{sT0}, 6\ns_add_u32 s{sFT}, s{sFT}, s{sT0}\ns_lshl_b32 s{sT0}, s{sCB}, 7\ns_add_u32 s{sFT}, s{sFT}, s{sT0}')
    S(f'buffer_load_dwordx4 {v(xt,4)}, v{vO}, {srd(SRD_X)}, s{sFT} offen offset:{off}')

def final_half(S, isA, acc, xt):
    own = acc + 48 + (8 if isA else 0)
    oth = acc + 48 + (0 if isA else 8)
    reg = A_REG if isA else F_REG; base = A_BASE if isA else 0
    ho = 2048 if isA else 0
    W = [16, 17, 18, 19]
    S(f's_mul_i32 s{sT3}, s{sW4}, {reg}')
    for vq in range(4):
        S(f's_xor_b32 s{sT0}, s{sW4}, {vq ^ 3}\ns_lshl_b32 s{sT0}, s{sT0}, 12\ns_add_u32 s{sT0}, s{sT0}, s{sT3}\ns_add_u32 s{sT0}, s{sT0}, {base}\nv_add_u32 v{W[vq]}, s{sT0}, v{vL16}')
    for i in range(2):
        S(f'ds_write_b128 v{W[3]}, {v(oth+4*i,4)} offset:{(2048 - ho) + i*1024}')
    for vq in range(3):
        for i in range(4):
            S(f'ds_write_b128 v{W[vq]}, {v(acc+16*vq+4*i,4)} offset:{i*1024}')
    S(f's_lshl_b32 s{sT2}, s{sW4}, 12\ns_add_u32 s{sT2}, s{sT2}, {ho}')
    for k in range(1, 4):
        S(f's_xor_b32 s{sT0}, s{sW4}, {k}\ns_mul_i32 s{sT0}, s{sT0}, {reg}\ns_add_u32 s{sT0}, s{sT0}, s{sT2}\ns_add_u32 s{sT0}, s{sT0}, {base}\nv_add_u32 v{19+k}, s{sT0}, v{vL16}')
    oreg = F_REG if isA else A_REG; obase = 0 if isA else A_BASE
    S(f's_add_u32 s{sT0}, s{sT2}, {obase}\nv_add_u32 v23, s{sT0}, v{vL16}\nv_add_u32 v24, {2*oreg}, v23')
    S(f'v_permlane32_swap_b32 v{xt}, v{xt+2}\nv_permlane32_swap_b32 v{xt+1}, v{xt+3}')
    E = 96
    for i in range(4): S(f'v_lshlrev_b32 v{E+2*i}, 16, v{xt+i}\nv_and_b32 v{E+2*i+1}, 0xffff0000, v{xt+i}')
    S('s_waitcnt lgkmcnt(0)\ns_barrier')
    stamp(S, 13 if isA else 14)
    O, P_ = 32, 64
    rdO = [f'ds_read_b128 {v(O+8*f+4*i,4)}, v{23 + f//2} offset:{(f%2)*oreg + i*1024}' for f in range(4) for i in range(2)]
    rdP = [f'ds_read_b128 {v(P_+8*k+4*i,4)}, v{20+k} offset:{i*1024}' for k in range(3) for i in range(2)]
    for r in (rdO + rdP if isA else rdP + rdO): S(r)
    def sumO():
        for i in range(8): S(f'v_add_f32 v{O+i}, v{O+i}, v{O+8+i}')
        for i in range(8): S(f'v_add_f32 v{O+16+i}, v{O+16+i}, v{O+24+i}')
        for i in range(8): S(f'v_add_f32 v{O+i}, v{O+i}, v{O+16+i}')
    def sumP():
        for i in range(8): S(f'v_add_f32 v{P_+i}, v{P_+i}, v{own+i}')
        for i in range(8): S(f'v_add_f32 v{P_+8+i}, v{P_+8+i}, v{P_+16+i}')
        for i in range(8): S(f'v_add_f32 v{P_+i}, v{P_+i}, v{P_+8+i}')
    G, Sg = (O, P_) if isA else (P_, O)
    (sumO if isA else sumP)()
    Q = 104
    for i in range(8): S(f'v_mul_f32 v{Q+i}, {hx(f2u(-L2E))}, v{G+i}')
    for i in range(8): S(f'v_exp_f32 v{Q+i}, v{Q+i}')
    (sumP if isA else sumO)()
    for i in range(8): S(f'v_add_f32 v{Q+i}, 1.0, v{Q+i}')
    for i in range(8): S(f'v_rcp_f32 v{Q+i}, v{Q+i}')
    for i in range(8): S(f'v_mul_f32 v{G+i}, v{G+i}, v{Sg+i}')
    for i in range(8): S(f'v_fmac_f32 v{E+i}, v{G+i}, v{Q+i}')
    for i in range(4): S(f'v_cvt_pk_bf16_f32 v{xt+i}, v{E+2*i}, v{E+2*i+1}')
    S(f'v_permlane32_swap_b32 v{xt}, v{xt+2}\nv_permlane32_swap_b32 v{xt+1}, v{xt+3}')
    S(f'buffer_store_dwordx4 {v(xt,4)}, v{vO}, {srd(SRD_OUT)}, s{sFT} offen offset:{32 if isA else 0}')

def c_publish(S, have_tag, tile):
    if tile:
        S.ext(c_signal(EV_END))
        out_addr(S, XT, 32)
        lane_consts_tr(S, vVW2, 8, 64, 'B')
        S(f's_mul_i32 s{sT3}, s{sW4}, {A_REG}\ns_add_u32 s{sT3}, s{sT3}, {A_BASE}')
        S(f's_xor_b32 s{sT0}, s{sW4}, 3\ns_lshr_b32 s{sT1}, s{sT0}, 1\ns_lshl_b32 s{sT1}, s{sT1}, 6\ns_and_b32 s{sT2}, s{sT0}, 1\ns_lshl_b32 s{sT2}, s{sT2}, 16')
        S(f'v_add_u32 v{vVW2[0]}, s{sT3}, v{vVW2[0]}\nv_xor_b32 v{vVW2[0]}, s{sT1}, v{vVW2[0]}\nv_xor_b32 v{vVW2[1]}, 64, v{vVW2[0]}')
        S(f'v_add_u32 v10, s{sT2}, v{vL16}\nv_xor_b32 v11, 0x10000, v10')
    S(f's_lshl_b32 s{sT0}, s{sRB}, 1\ns_lshr_b32 s{sT1}, s{sW4}, 1\ns_add_u32 s{sT0}, s{sT0}, s{sT1}\ns_lshl_b32 s{sT0}, s{sT0}, 15\ns_lshl_b32 s{sT1}, s{sROLE}, 8\ns_add_u32 s{sT0}, s{sT0}, s{sT1}')
    S(f's_and_b32 s{sT1}, s{sW4}, 1\ns_lshl_b32 s{sT1}, s{sT1}, 7\ns_add_u32 s{sT0}, s{sT0}, s{sT1}\ns_add_u32 s{sT0}, s{sT0}, {WS_FH}')
    if not have_tag: tag_get(S, vTAG)
    S.wait('st')
    flag_store(S, sT0, TT, 7, 12)
    stamp(S, 7)

W2R = 16; FACC = 144; HR = 208
vLW, vLS, vL2 = 3, 4, 5
def swz_voff(S, dst, pitch, tmp):
    S(f'v_lshrrev_b32 v{tmp}, 3, v{vLANE}\nv_mul_lo_u32 v{dst}, v{tmp}, {pitch}')
    S(f'v_bfe_u32 v{tmp}, v{vLANE}, 4, 1\nv_lshlrev_b32 v{tmp}, 2, v{tmp}\nv_and_b32 v{tmp+1}, 7, v{vLANE}\nv_xor_b32 v{tmp}, v{tmp}, v{tmp+1}\nv_lshl_add_u32 v{dst}, v{tmp}, 4, v{dst}')
def flat(l): return [x for y in l for x in y]
def sprinkle(main, units):
    out = []; n = len(main); k = len(units); j = 0
    for i, x in enumerate(main):
        while j < k and (j + 0.5) * n / max(k, 1) <= i and x.kind in ('valu', 'trans'):
            out += units[j]; j += 1
        out.append(x)
    return out + flat(units[j:])

def l_phase1(S, ffn, tile):
    sBLK, sP64, sP448, sP32, sW2, sK2 = sU0, sU1, sU2, sU3, sU4, sU5
    S(f's_mul_i32 s{sFS}, s{sW4}, s{sPITCH}\ns_lshl_b32 s{sFS}, s{sFS}, 3')
    S(f's_lshl_b32 s{sT3}, s{sW4}, 10\ns_lshl_b32 s{sP64}, s{sPITCH}, 6\ns_lshl_b32 s{sP32}, s{sPITCH}, 5\ns_mul_i32 s{sP448}, s{sPITCH}, 448\ns_mul_i32 s{sBLK}, s{sP64}, s{sROT1}')
    def dma_half(h):
        units = []
        st = h // 2
        for k in range(7):
            St = Stream()
            kk = (h % 2) * 7 + k
            St(f's_add_u32 m0, s{sT3}, {(half_base(h) + k*4096) if h != 1 else (SPARE + k*4096 if k < 4 else (k - 4)*4096)}')
            if kk % 2 == 0:
                St(f's_add_u32 s{sT0}, s{sBLK}, s{sFS}\ns_add_u32 s{sT0}, s{sT0}, s{sCOL[st]}')
            else:
                if k == 0: St(f's_add_u32 s{sT0}, s{sBLK}, s{sFS}\ns_add_u32 s{sT0}, s{sT0}, s{sCOL[st]}')
                St(f's_add_u32 s{sT0}, s{sT0}, s{sP32}')
                wrap_inc(St, sBLK, f's{sP64}', f's{sP448}')
            St(f'buffer_load_dwordx4 v{vLW}, {srd(SRD_W)}, s{sT0} offen lds', tok=('h', h if not (h == 1 and k >= 4) else CN_H1B))
            units.append(St.l)
        return units
    def sig(h):
        S.wait(('h', h))
        if h < 5: stamp(S, 2 + h)
        l_signal(S, h)
    S('s_barrier')
    S.ext(flat(dma_half(0)))
    if not ffn:
        S(f's_add_u32 m0, s{sT3}, {WPHI_L}\ns_mul_i32 s{sT0}, s{sIDX}, 3136\ns_add_u32 s{sT0}, s{sT0}, s{sT3}\ns_cmp_eq_u32 s{sW4}, 3\ns_cselect_b32 exec_hi, 0, -1')
        S(f'buffer_load_dwordx4 v{vL16}, {srd(SRD_WPHI)}, s{sT0} offen lds', tok=('h', 0))
        S('s_mov_b64 exec, -1')
    h1 = dma_half(1)
    S.ext(flat(h1[:4]))
    stamp(S, 'e5')
    if Opt.cpf:
        lab = newlab('pc')
        S(f's_getpc_b64 s[72:73]\n{lab}:\ns_sub_u32 s72, s72, {lab} - {NAME}\ns_subb_u32 s73, s73, 0')
        S(f's_lshl_b32 s{sT0}, s{sI}, 2\ns_add_u32 s{sT0}, s{sT0}, s{sW4}\ns_lshl_b32 s{sT0}, s{sT0}, 2\nv_add_u32 v8, s{sT0}, v{vLANE}\nv_lshlrev_b32 v8, 7, v8\nv_min_u32 v8, L_end - {NAME}, v8')
        S(f's_mov_b64 exec, 15\nglobal_load_dword v200, v8, s[72:73]\ns_mov_b64 exec, -1')
    lab = newlab('nt')
    S(f's_or_b32 s{sT0}, s2, s{sW4}\ns_cmp_lg_u32 s{sT0}, 0\ns_cbranch_scc1 {lab}')
    raw(S, f's_mov_b32 s{sT0}, {WS_TAG}\nv_mov_b32 v9, 0\ns_mov_b64 exec, 1\nbuffer_load_dword v8, v9, {srd(SRD_WS)}, s{sT0} offen sc1\ns_waitcnt vmcnt(0)\n'
           f'v_add_u32 v8, 1, v8\nv_max_u32 v8, 1, v8\ns_nop 1\nbuffer_store_dword v8, v9, {srd(SRD_WS)}, s{sT0} offen sc1\nbuffer_store_dword v8, v9, {srd(SRD_DBG)}, 0 offen sc1\ns_waitcnt vmcnt(0)\ns_mov_b64 exec, -1\n{lab}:')
    S(f'v_lshlrev_b32 v{vLC}, 2, v{vLANE}\nv_add_u32 v{vLC}, {CTL}, v{vLC}\nv_mov_b32 v{vLONE}, 1\nv_mov_b32 v{vLP+4}, {CTL}')
    if ffn:
        S(f'v_lshrrev_b32 v8, 2, v{vLANE}\nv_mul_u32_u24 v{vLS}, 3584, v8\nv_and_b32 v8, 3, v{vLANE}\nv_lshl_add_u32 v{vLS}, v8, 4, v{vLS}')
    else:
        S(f'v_and_b32 v8, 31, v{vLANE}\ns_lshl_b32 s{sT0}, s{sW4}, 5\nv_add_u32 v8, s{sT0}, v8\nv_lshrrev_b32 v9, 5, v{vLANE}\nv_lshlrev_b32 v9, 3, v9')
        S(f'v_mul_u32_u24 v{vLPW}, 112, v8\nv_add_u32 v{vLPW}, v{vLPW}, v9')
        S(f'v_cndmask_b32 v{vLMK}, 1.0, 0, {HI}\nv_mov_b32 v{vLL2E}, s{sL2E}')
        trb(S, vLWP, 2, 56, 8)
        S(f'v_add_u32 v{vLWP}, {WPHI_L}, v{vLWP}')
    S(f's_lshl_b32 s{sT0}, s{sW4}, 12\ns_add_u32 s{sT0}, s{sT0}, {SPARE}\nv_add_u32 v{vLRD}, s{sT0}, v{vL16}')
    if tile:
        S(f's_mov_b32 s{sT1}, 896'); swz_voff(S, vL2, f's{sT1}', 8)
        lane_consts_tr(S, vVW2, 8, 64, 'B')
        S(f's_xor_b32 s{sT1}, s{sW4}, 3\ns_lshr_b32 s{sT1}, s{sT1}, 1\ns_lshl_b32 s{sT1}, s{sT1}, 6\nv_xor_b32 v{vVW2[0]}, s{sT1}, v{vVW2[0]}\nv_xor_b32 v{vVW2[1]}, 64, v{vVW2[0]}')
        S(f's_mul_i32 s{sW2}, s{sW4}, {448*896}\ns_lshl_b32 s{sT2}, s{sCB}, 7\ns_add_u32 s{sW2}, s{sW2}, s{sT2}\ns_mul_i32 s{sK2}, s{sROT2}, {16*896}')
        S(f'v_add_u32 v13, {8*896}, v{vL2}')
    def w2stage(base, stride, ns):
        if not tile: return
        S(f's_mul_i32 s{sT2}, s{sW4}, {stride}\ns_add_u32 s{sT2}, s{sT2}, {base}\nv_add_u32 v9, s{sT2}, v{vVW2[0]}\nv_add_u32 v10, s{sT2}, v{vVW2[1]}')
        def dma(ks):
            o = (ks % ns) * 2048
            S(f's_add_u32 m0, s{sT2}, {o}\ns_add_u32 s{sT1}, s{sW2}, s{sK2}')
            if ks >= ns: S.wait(('wr', ks - ns))
            S(f'buffer_load_dwordx4 v{vL2}, {srd(SRD_W2)}, s{sT1} offen lds', tok=('w', ks))
            S(f's_add_u32 m0, s{sT2}, {o + 1024}')
            wrap_inc(S, sK2, 16 * 896, 448 * 896)
            S(f'buffer_load_dwordx4 v13, {srd(SRD_W2)}, s{sT1} offen lds', tok=('w', ks))
        d = ns - 1
        for ks in range(min(d, 16)): dma(ks)
        for ks in range(16):
            if ks + d < 16: dma(ks + d)
            S.wait(('w', ks))
            o = (ks % ns) * 2048; b = W2R + 8 * ks
            for c in range(2):
                for u in range(2):
                    S(f'ds_read_b64_tr_b16 {v(b + 4*c + 2*u, 2)}, v{9+c} offset:{o + 1024*u}', tok=('wr', ks))
            if not ffn and ks in (0, 8): stamp(S, 3 + ks // 8)
    def w2raw(lo, hi):
        if not tile: return
        for ks in range(lo, hi):
            S(f's_add_u32 s{sT1}, s{sW2}, s{sK2}')
            S(f'buffer_load_dwordx4 {v(W2R+8*ks,4)}, v{vL2}, {srd(SRD_W2)}, s{sT1} offen')
            S(f'buffer_load_dwordx4 {v(W2R+8*ks+4,4)}, v13, {srd(SRD_W2)}, s{sT1} offen')
            wrap_inc(S, sK2, 16 * 896, 448 * 896)
    def tr(lo, hi):
        if not tile: return
        if lo == 0: S(f's_lshl_b32 s{sT0}, s{sW4}, 12\ns_add_u32 s{sT0}, s{sT0}, {SPARE}\nv_add_u32 v9, s{sT0}, v{vVW2[0]}\nv_add_u32 v10, s{sT0}, v{vVW2[1]}')
        for ks in range(lo, hi):
            o = (ks % 2) * 2048; b = W2R + 8 * ks
            S(f'ds_write_b128 v{vLRD}, {v(b,4)} offset:{o}\nds_write_b128 v{vLRD}, {v(b+4,4)} offset:{o+1024}')
            for c in range(2):
                for u in range(2):
                    S(f'ds_read_b64_tr_b16 {v(b + 4*c + 2*u, 2)}, v{9+c} offset:{o + 1024*u}')
    DUM = 200
    def pf(srd_, voff, soff, n):
        S(f's_mov_b32 exec_hi, {hex((1 << (n - 32)) - 1)}\nbuffer_load_dword v{DUM}, v{voff}, {srd(srd_)}, s{soff} offen\ns_mov_b32 exec_hi, -1', tok='pf')
    if Opt.wpf:
        S(f'v_mul_lo_u32 v14, v{vLANE}, s{sPITCH}\ns_and_b32 s{sT0}, s{sI}, 3\ns_mul_i32 s{sT0}, s{sT0}, 112')
        if ffn:
            S(f's_mul_i32 s{sT0}, s{sT0}, s{sPITCH}\ns_lshl_b32 s{sT1}, s{sW4}, 7\ns_add_u32 s{sT1}, s{sT1}, s{sCOL[0]}\ns_cmp_eq_u32 s{sW4}, 3\ns_cselect_b32 s{sT1}, s{sCOLS}, s{sT1}\ns_add_u32 s{sT0}, s{sT0}, s{sT1}')
            pf(SRD_W, 14, sT0, 56)
            S(f's_add_u32 s{sT0}, s{sT0}, {56*3584}')
            pf(SRD_W, 14, sT0, 56)
        else:
            S(f's_lshr_b32 s{sT1}, s{sW4}, 1\ns_mul_i32 s{sT1}, s{sT1}, 56\ns_add_u32 s{sT0}, s{sT0}, s{sT1}\ns_mul_i32 s{sT0}, s{sT0}, s{sPITCH}\ns_and_b32 s{sT1}, s{sW4}, 1\ns_mul_i32 s{sT1}, s{sT1}, 124\ns_add_u32 s{sT0}, s{sT0}, s{sT1}')
            for st in range(3):
                S(f's_add_u32 s{sT1}, s{sT0}, s{sCOL[st]}')
                pf(SRD_W, 14, sT1, 56)
    def w2_prefetch():
        if not Opt.w2pf: return
        S(f'v_lshlrev_b32 v14, 7, v{vLANE}\ns_lshl_b32 s{sT0}, s{sI}, 2\ns_add_u32 s{sT0}, s{sT0}, s{sW4}\ns_mul_i32 s{sT1}, s{sT0}, {98*128}')
        pf(SRD_W2, 14, sT1, 49)
        S(f's_add_u32 s{sT1}, s{sT1}, {49*128}')
        pf(SRD_W2, 14, sT1, 49)
        S(f's_mul_i32 s{sT1}, s{sT0}, {25*128}\ns_mov_b64 exec, 0x1ffffff\nbuffer_load_dword v{DUM}, v14, {srd(SRD_WO)}, s{sT1} offen\ns_mov_b64 exec, -1', tok='pf')
    if Opt.gpf:
        S(f's_lshl_b32 s{sT0}, s2, 2\ns_add_u32 s{sT0}, s{sT0}, s{sW4}\nv_lshlrev_b32 v14, 7, v{vLANE}')
        S(f's_mov_b64 s[72:73], s[66:67]\ns_mov_b32 s74, {448*2688}\ns_mov_b32 s75, 0x20000') if False else None
        for (lo, n, size) in ((sKA_QKV, 10, 448*2688), (sKA_W1, 13, 448*3584), (SRD_W2, 13, None), (SRD_WO, 4, None)):
            if size:
                S(f's_mov_b64 s[76:77], s[{lo}:{lo+1}]\ns_mov_b32 s78, {size}\ns_mov_b32 s79, 0x20000'); d = 76
            else: d = lo
            S(f's_mul_i32 s{sT1}, s{sT0}, {n*128}\ns_mov_b64 exec, {hex((1 << n) - 1)}\nbuffer_load_dword v{DUM}, v14, {srd(d)}, s{sT1} offen\ns_mov_b64 exec, -1', tok='pf')
    def wo_prefetch():
        S(f'v_lshlrev_b32 v14, 7, v{vLANE}\ns_lshl_b32 s{sT0}, s{sI}, 2\ns_add_u32 s{sT0}, s{sT0}, s{sW4}')
        S(f's_mul_i32 s{sT1}, s{sT0}, {25*128}\ns_mov_b64 exec, 0x1ffffff\nbuffer_load_dword v{DUM}, v14, {srd(SRD_WO)}, s{sT1} offen\ns_mov_b64 exec, -1', tok='pf')
    l_wait(S, EV_XFREE)
    stamp(S, 1)
    S(f's_add_u32 s{sT0}, s{sBLK}, s{sFS}\ns_add_u32 s{sT0}, s{sT0}, s{sCOL[0]}')
    S.ext(flat(h1[4:])); sig(0)
    h2 = dma_half(2)
    S.ext(flat(h2[:3])); sig(1); S.ext(flat(h2[3:5])); sig(CN_H1B); S.ext(flat(h2[5:]))
    h3 = dma_half(3)
    S.ext(flat(h3[:3])); sig(2); S.ext(flat(h3[3:]))
    if not ffn: tag_fetch_l0(S)
    h4 = dma_half(4)
    S.ext(flat(h4[:3])); sig(3); S.ext(flat(h4[3:]))
    if ffn:
        sig(4)
        l_wait(S, EV_C0)
        S.ext(flat(dma_half(5)))
        tag_fetch_l0(S)
        sig(5)
        l_wait(S, EV_C1)
        S(f's_lshl_b32 s{sFS}, s{sFS}, 1\ns_add_u32 s{sFS}, s{sFS}, s{sCOLS}')
        for k in range(7):
            S(f's_add_u32 m0, s{sT3}, {k*4096}\ns_add_u32 s{sT0}, s{sBLK}, s{sFS}')
            wrap_inc(S, sBLK, f's{sP64}', f's{sP448}')
            S(f'buffer_load_dwordx4 v{vLS}, {srd(SRD_W)}, s{sT0} offen lds', tok=('h', 6))
        sig(6)
        wo_prefetch()
        l_wait(S, EV_C3)
        w2stage(SLOT, 14 * K1, 7)
        stamp(S, 11)
    else:
        l_wait(S, EV_C0)
        S.ext(flat(dma_half(5)))
        wo_prefetch()
        kA, kB, KA = 194, 195, LX
        trb(S, kA, 3, 112, 8); trb(S, kB, 3, 72, 8)
        S(f's_lshr_b32 s{sT0}, s{sW4}, 1\ns_and_b32 s{sT1}, s{sW4}, 1\ns_mul_i32 s{sT2}, s{sT0}, 14336\ns_mul_i32 s{sT1}, s{sT1}, 56\ns_add_u32 s{sT2}, s{sT2}, s{sT1}\nv_add_u32 v{kA}, s{sT2}, v{kA}')
        S(f's_mul_i32 s{sT2}, s{sT0}, 9216\ns_add_u32 s{sT2}, s{sT2}, {SLOT}\nv_add_u32 v{kB}, s{sT2}, v{kB}')
        S(f's_lshl_b32 s{sFT}, s{sIDX}, 2\ns_add_u32 s{sFT}, s{sFT}, s{sW4}\ns_lshl_b32 s{sFS}, s{sFT}, 11\ns_lshl_b32 s{sFT}, s{sFT}, 4\ns_add_u32 s{sFT}, s{sFT}, s{sRB}\ns_lshl_b32 s{sFT}, s{sFT}, 12\ns_add_u32 s{sFT}, s{sFT}, {WS_KVP}')
        S(f's_lshl_b32 s{sT0}, s{sRB}, 7\ns_add_u32 s{sFS}, s{sFS}, s{sT0}\ns_add_u32 s{sFS}, s{sFS}, {WS_FP}')
        tag_prefetch(S, vTAG); tag_get(S, vTAG)
        w2raw(0, Opt.aw2)
        l_wait(S, EV_PK)
        stamp(S, 12)
        if Opt.lprio: S('s_setprio 1')
        t4 = Stream(); t4.wait(('h', 4)); l_signal(t4, 4)
        S.ext(softmax_k(t4.l))
        l_signal(S, CN_PH)
        stamp(S, 11)
        sig(5)
        w2raw(Opt.aw2, 16)
        tr(0, Opt.tr1)
        stamp(S, 5)
        if Opt.kprio: S('s_setprio 1')
        l_wait(S, EV_V)
        S.ext(cnt_read(CN_PH, vLP)); S.ext(cnt_check(CN_PH, vLP))
        for ts in range(8):
            b = HR + 8 * (ts % 6)
            if ts >= 6: S(f'v_mfma_f32_32x32x16_bf16 {v(KA,16)}, {v(b,4)}, {v(b+4,4)}, {"0" if ts == 6 else v(KA,16)}')
            for u in range(2): S(f'ds_read_b64_tr_b16 {v(b + 2*u, 2)}, v{kA} offset:{(16*ts + 4*u)*112}')
            for u in range(2): S(f'ds_read_b64_tr_b16 {v(b + 4 + 2*u, 2)}, v{kB} offset:{(16*ts + 4*u)*72}')
        for ts in range(2, 8):
            b = HR + 8 * (ts % 6)
            S(f'v_mfma_f32_32x32x16_bf16 {v(KA,16)}, {v(b,4)}, {v(b+4,4)}, {v(KA,16)}')
        G_ = HR
        for i in range(8): S(f'v_mov_b32 v{G_+2*i+1}, s{sTAG}')
        for i in range(8): S(f'v_cvt_pk_bf16_f32 v{G_+2*i}, v{KA+2*i}, v{KA+2*i+1}')
        for j in range(4):
            S(f'buffer_store_dwordx4 {v(G_+4*j,4)}, v{vL16}, {srd(SRD_WS)}, s{sFT} offen offset:{j*1024} sc1', tok='kvp')
        if Opt.hint: flag_store(S, sFS, LE)
        S('s_setprio 0')
        stamp(S, 1)
        if Opt.ackdiag: S.wait('kvp'); stamp(S, 2); S('s_waitcnt vmcnt(0)')
        tr(Opt.tr1, 16)
        stamp(S, 6)
    if ffn: tag_prefetch(S, vTAG); tag_get(S, vTAG)
    if tile:
        l_signal(S, CN_LT)
        l_wait(S, EV_END)
        S.ext(cnt_read(CN_LT, vLP)); S.ext(cnt_check(CN_LT, vLP))
        stamp(S, 7)
        S(f's_mul_i32 s{sT3}, s{sW4}, {F_REG}')
        for i in range(12):
            S(f's_add_u32 m0, s{sT3}, {i*2048}\ns_add_u32 s{sT1}, s{sW2}, s{sK2}\ns_waitcnt vmcnt({Opt.bthr})')
            S(f'buffer_load_dwordx4 v{vL2}, {srd(SRD_W2)}, s{sT1} offen lds', tok='w2')
            S(f's_add_u32 m0, s{sT3}, {i*2048 + 1024}')
            wrap_inc(S, sK2, 16 * 896, 448 * 896)
            S(f'buffer_load_dwordx4 v13, {srd(SRD_W2)}, s{sT1} offen lds', tok='w2')
        stamp(S, 13)
        stamp(S, 14)
        S(f's_lshl_b32 s{sT2}, s{sW4}, 14\ns_add_u32 s{sT2}, s{sT2}, {A_BASE}\ns_lshl_b32 s{sU0}, s{sCB}, 7')
        for hd in range(0 if (Opt.nodma or Opt.nowo) else 4):
            S(f's_add_u32 s{sT0}, s{sCB}, {hd}\ns_and_b32 s{sT0}, s{sT0}, 3\ns_lshl_b32 s{sT1}, s{sW4}, 2\ns_add_u32 s{sT0}, s{sT0}, s{sT1}\ns_mul_i32 s{sT0}, s{sT0}, {28*896}\ns_add_u32 s{sT0}, s{sT0}, s{sU0}')
            for i in range(4):
                S(f's_add_u32 m0, s{sT2}, {hd*4096 + i*1024}\ns_waitcnt vmcnt({Opt.bthr})')
                if i == 2: S(f's_add_u32 s{sT0}, s{sT0}, {16*896}')
                if hd == 3 and i == 3: S(f's_cmp_eq_u32 s{sW4}, 3\ns_cselect_b32 exec_hi, 0, -1')
                S(f'buffer_load_dwordx4 v{vL2 if i % 2 == 0 else 13}, {srd(SRD_WO)}, s{sT0} offen lds', tok='wo')
        S('s_mov_b64 exec, -1')

def hflag_poll(S):
    S(f'v_lshlrev_b32 v8, 7, v{vLANE}')
    S(f's_lshl_b32 s{sT0}, s{sTB}, 3\ns_add_u32 s{sT0}, s{sT0}, s{sCB}\ns_lshl_b32 s{sT0}, s{sT0}, 12\ns_lshl_b32 s{sT1}, s{sW4}, 9\ns_add_u32 s{sT0}, s{sT0}, s{sT1}\ns_add_u32 s{sT0}, s{sT0}, {WS_FH}')
    poll(S, 8, sT0, 4, 9)

def f_phase2(S):
    stamp(S, 10)
    if Opt.fprio: S('s_setprio 1')
    sK = sU1
    S(f'v_add_u32 v10, s{sT3}, v{vVW2[1]}\nv_add_u32 v14, s{sT3}, v{vVW2[0]}')
    out_addr(S, 4, 0)
    S(f's_mul_i32 s{sU2}, s{sTB}, {224*K1}\ns_mul_i32 s{sT2}, s{sW4}, {28*K1}\ns_add_u32 s{sU2}, s{sU2}, s{sT2}\ns_lshl_b32 s{sK}, s{sROT2}, 10')
    S(f's_and_b32 s{sT2}, s{sW4}, 1\ns_mul_i32 s{sT2}, s{sT2}, {112*K1}\nv_add_u32 v13, s{sT2}, v{vL16}\ns_sub_u32 s{sT2}, {112*K1}, s{sT2}\nv_add_u32 v15, s{sT2}, v{vL16}')
    hflag_poll(S)
    S(f'v_mov_b32 v8, 4\nds_write_b32 v{vCTL}, v8 offset:{128 + 16*CN_WO}\nv_mov_b32 v9, v14')
    stamp(S, 8)
    hdst = {}
    for ks in range(28):
        if ks < 6: hdst[ks] = HR + 8 * ks
        elif ks < 16: hdst[ks] = W2R + 8 * (ks - 6)
        else: hdst[ks] = hdst[ks - 12]
    adst = {ks: (W2R + 8 * ks if ks < 16 else W2R + 8 * (10 + (ks - 16) % 3)) for ks in range(28)}
    def hload(ks):
        S(f's_add_u32 s{sT0}, s{sU2}, s{sK}')
        S(f'buffer_load_dwordx4 {v(hdst[ks],4)}, v15, {srd(SRD_WS)}, s{sT0} offen sc1')
        S(f'buffer_load_dwordx4 {v(hdst[ks]+4,4)}, v13, {srd(SRD_WS)}, s{sT0} offen sc1')
        if ks < 27: wrap_inc(S, sK, 1024, 28 * K1)
    def aread(ks):
        o = (ks - 16) * 2048; b = adst[ks]
        for c in range(2):
            for u in range(2):
                S(f'ds_read_b64_tr_b16 {v(b + 4*c + 2*u, 2)}, v{9+c} offset:{o + 1024*u}')
    for ks in range(6): hload(ks)
    nxt = 6
    for ks in range(28):
        for c in range(2):
            for tt2 in range(2):
                acc = FACC + 16 * (2 * c + tt2)
                S(f'v_mfma_f32_32x32x16_bf16 {v(acc,16)}, {v(adst[ks]+4*c,4)}, {v(hdst[ks]+4*tt2,4)}, {"0" if ks == 0 else v(acc,16)}')
                if c == 0 and tt2 == 0 and 16 <= ks + 2 < 28: aread(ks + 2)
        if Opt.fdiag and ks in (0, 4, 8, 12, 16, 22): stamp(S, 1 + (0, 4, 8, 12, 16, 22).index(ks))
        while nxt < 28 and ((nxt < 16 and nxt - 6 <= ks) or (nxt >= 16 and nxt - 12 <= ks)):
            hload(nxt); nxt += 1
    stamp(S, 9)
    final_half(S, False, FACC, 4)

def a_phase2(S):
    for hd in range(4):
        S(f's_add_u32 s{sU0+hd}, s{sCB}, {hd}\ns_and_b32 s{sU0+hd}, s{sU0+hd}, 3\ns_lshl_b32 s{sU0+hd}, s{sU0+hd}, 12')
    S(f's_lshl_b32 s{sU4}, s{sTB}, 17\ns_lshl_b32 s{sT2}, s{sW4}, 14\ns_add_u32 s{sU4}, s{sU4}, s{sT2}\ns_add_u32 s{sU4}, s{sU4}, {WS_PQ}')
    S(f's_add_u32 s{sU5}, s{sT2}, {WS_KVF}')
    S(f'v_lshlrev_b32 v8, 7, v{vLANE}\ns_lshl_b32 s{sT1}, s{sXCD}, 12\ns_add_u32 s{sT1}, s{sT1}, {WS_FK}\nv_lshlrev_b32 v13, 2, v{vLANE}\nv_add_u32 v13, {CTL}, v13\nv_mov_b32 v9, 4\nv_lshlrev_b32 v5, 3, v{vLANE}')
    if Opt.aprio: S('s_setprio 1')
    S('s_waitcnt vmcnt(0)')
    S.ext(cnt_read(CN_WO, vCT)); S.ext(cnt_check(CN_WO, vCT, 1))
    stamp(S, 8)
    def phiload(hd):
        t_ = Stream()
        t_(f's_add_u32 s{sT2}, s{sU4}, s{sU0+hd}')
        for tt2 in range(2):
            t = hd * 2 + tt2
            for st in range(4):
                t_(f'buffer_load_dwordx4 {v(PHI+16*t+4*st,4)}, v{10 + tt2}, {srd(SRD_WS)}, s{sT2} offen offset:{st*1024} sc1')
        return t_.l
    def kvload(hd):
        t = Stream()
        t(f's_add_u32 s{sT0}, s{sU5}, s{sU0+hd}')
        for st in range(4):
            for hh in range(2):
                t(f'buffer_load_dwordx2 {v(KV+16*(hd%2)+4*st+2*hh,2)}, v5, {srd(SRD_WS)}, s{sT0} offen offset:{st*1024 + hh*512} sc1')
        return t.l
    def watch(load, cn, sleep):
        again, oth, done = newlab('kv'), newlab('kv'), newlab('kv')
        S(f's_mov_b32 s{sBND}, 0\ns_cmp_lg_u32 s{sW4}, 0\ns_cbranch_scc1 {oth}')
        raw(S, f'{again}:\n{load}\ns_waitcnt vmcnt(0)\nv_cmp_ne_u32 vcc, s{sTAG}, v4\ns_nop 1\ns_cbranch_vccz {done}\n'
               f's_add_u32 s{sBND}, s{sBND}, 1\ns_cmp_gt_u32 s{sBND}, 0x20000\ns_cbranch_scc1 {done}\ns_sleep {sleep}\ns_branch {again}\n'
               f'{done}:\ns_mov_b64 exec, 15\nds_write_b32 v13, v9 offset:{128 + 16*cn}\ns_mov_b64 exec, -1\n{oth}:')
        S(f's_mov_b32 s{sU0+8}, s{sBND}')
        S.ext(cnt_read(cn, vCT)); S.ext(cnt_check(cn, vCT, 1))
    S(f's_lshl_b32 s{sT0}, s{sTB}, 3\ns_add_u32 s{sT0}, s{sT0}, s{sCB}\ns_lshl_b32 s{sT0}, s{sT0}, 12\ns_add_u32 s{sT0}, s{sT0}, {WS_FH + 2048}')
    watch(f's_mov_b64 exec, 0xffff\nbuffer_load_dword v4, v8, {srd(SRD_WS)}, s{sT0} offen sc1', CN_PQ, Opt.ksleep)
    stamp(S, 9)
    for hd in range(4):
        if hd >= 1 and Opt.athr: S(f's_waitcnt vmcnt({Opt.athr})')
        S.ext(phiload(hd))
    watch(f's_mov_b64 exec, 0xffffffff\nbuffer_load_dword v4, v8, {srd(SRD_WS)}, s{sT1} offen sc1', CN_KV, Opt.ksleep)
    stamp(S, 10)
    if Opt.diag == 2 and Opt.fine < 0: S(f's_mul_i32 s{STAMP0+14}, s{sU0+8}, 1000\ns_add_u32 s{STAMP0+14}, s{STAMP0+14}, s{STAMP0}')
    S.ext(kvload(0)); S.ext(kvload(1))
    def num(t):
        hd = t // 2; kb = KV + 16 * (hd % 2); aP = PN + 32 * (t % 2); aN = aP + 16; ph = PHI + 16 * t
        return [Ins(f'v_mfma_f32_32x32x16_bf16 {v(aP,16)}, {v(kb,4)}, {v(ph,4)}, 0'),
                Ins(f'v_mfma_f32_32x32x16_bf16 {v(aN,16)}, {v(kb+8,4)}, {v(ph+8,4)}, 0'),
                Ins(f'v_mfma_f32_32x32x16_bf16 {v(aP,16)}, {v(kb+4,4)}, {v(ph+4,4)}, {v(aP,16)}'),
                Ins(f'v_mfma_f32_32x32x16_bf16 {v(aN,16)}, {v(kb+12,4)}, {v(ph+12,4)}, {v(aN,16)}')]
    def onorm(t):
        S = Stream()
        aP = PN + 32 * (t % 2); aN = aP + 16; ph = PHI + 16 * t
        rP, rN, dn, a, b = TT, TT + 1, TT + 2, TT + 3, TT + 4
        S(f'v_rcp_f32 v{rP}, v{aP+13}\nv_rcp_f32 v{rN}, v{aN+13}')
        S(f'v_mov_b32 v{dn}, {hx(f2u(1e-6))}\nv_fmac_f32 v{dn}, v{aP+12}, v{rP}\nv_fmac_f32 v{dn}, v{aN+12}, v{rN}\nv_rcp_f32 v{dn}, v{dn}')
        S(f'v_nop\nv_mul_f32 v{rP}, v{rP}, v{dn}\nv_mul_f32 v{rN}, v{rN}, v{dn}\nv_mov_b32 v{a}, v{rP}\nv_mov_b32 v{b}, v{rN}')
        S(f'v_permlane32_swap_b32 v{rP}, v{a}\nv_permlane32_swap_b32 v{rN}, v{b}')
        for i in range(16): S(f'v_mul_f32 v{aP+i}, v{aP+i}, v{a}')
        for i in range(16): S(f'v_fmac_f32 v{aP+i}, v{aN+i}, v{b}')
        for i in range(8): S(f'v_cvt_pk_bf16_f32 v{ph+i}, v{aP+2*i}, v{aP+2*i+1}')
        S(f'v_cndmask_b32 v{ph+6}, v{ph+6}, 0, {HI}\nv_cndmask_b32 v{ph+7}, v{ph+7}, 0, {HI}')
        return S.l
    S.ext(num(0))
    for t in range(8):
        o = onorm(t)
        if Opt.fdiag and t in (0, 1, 2, 4, 6): stamp(S, 1 + (0, 1, 2, 4, 6).index(t))
        if t + 1 < 8:
            m = num(t + 1)
            S.ext(m[0:2]); S.ext(o[0:13]); S.ext(m[2:3]); S.ext(o[13:22]); S.ext(m[3:4])
            if t % 2 == 0 and t // 2 + 2 < 4: S.ext(kvload(t // 2 + 2))
            S.ext(o[22:])
        else:
            S.ext(o)
    stamp(S, 11)
    SA = PN
    def woread(n):
        hd, st = n // 2, n % 2; b = KV + 8 * (n % 4)
        for c in range(2):
            for u in range(2):
                S(f'ds_read_b64_tr_b16 {v(b+4*c+2*u,2)}, v{vVW2[c]} offset:{(32*hd + 16*st + 8*u)*128}')
    woread(0); woread(1)
    for n in range(8):
        hd, st = n // 2, n % 2; b = KV + 8 * (n % 4)
        for c in range(2):
            for tt2 in range(2):
                acc = SA + 16 * (2 * c + tt2); ob = PHI + 16 * (2 * hd + tt2) + 4 * st
                S(f'v_mfma_f32_32x32x16_bf16 {v(acc,16)}, {v(b+4*c,4)}, {v(ob,4)}, {"0" if n == 0 else v(acc,16)}')
                if c == 0 and tt2 == 0 and n + 2 < 8: woread(n + 2)
    stamp(S, 12)
    final_half(S, True, SA, XT)

def reducer(S):
    S(f'v_lshlrev_b32 v8, 7, v{vLANE}\ns_lshl_b32 s{sT0}, s{sTB}, 11\ns_add_u32 s{sT0}, s{sT0}, {WS_FP}')
    S(f's_lshl_b32 s{sU2}, s{sTB}, 16\ns_lshl_b32 s{sT2}, s{sW4}, 10\ns_add_u32 s{sU2}, s{sU2}, s{sT2}\ns_add_u32 s{sU2}, s{sU2}, {WS_KVP}')
    S(f's_lshl_b32 s{sU1}, s{sTB}, 1\ns_lshr_b32 s{sT1}, s{sW4}, 1\ns_add_u32 s{sU1}, s{sU1}, s{sT1}\ns_lshl_b32 s{sU1}, s{sU1}, 10\ns_and_b32 s{sT1}, s{sW4}, 1\ns_lshl_b32 s{sT1}, s{sT1}, 9\ns_add_u32 s{sU1}, s{sU1}, s{sT1}\ns_add_u32 s{sU1}, s{sU1}, {WS_KVF}')
    S(f's_lshl_b32 s{sU0}, s{sTB}, 7\ns_add_u32 s{sU0}, s{sU0}, {WS_FK}')
    if Opt.hint:
        o_ = newlab('ro')
        S(f's_waitcnt vmcnt(0)\ns_cmp_lg_u32 s{sW4}, 0\ns_cbranch_scc1 {o_}')
        poll(S, 8, sT0, 16, 9, Opt.rsleep)
        S(f'v_mov_b32 v9, 4\ns_mov_b64 exec, 15\nds_write_b32 v{vLC}, v9 offset:{128 + 16*CN_KV}\ns_mov_b64 exec, -1\n{o_}:')
        S.ext(cnt_read(CN_KV, vLP)); S.ext(cnt_check(CN_KV, vLP))
    stamp(S, 8)
    again, done = newlab('rd'), newlab('rd')
    S(f's_mov_b32 s{sBND}, 0\n{again}:')
    for rb in range(16):
        S(f's_add_u32 s{sT0}, s{sU2}, {rb*4096}')
        S(f'buffer_load_dwordx4 {v(32+4*rb,4)}, v{vL16}, {srd(SRD_WS)}, s{sT0} offen sc1')
    S(f'v_mov_b32 v8, 0\nv_mov_b32 v16, 0\nv_mov_b32 v17, 0\nv_mov_b32 v18, 0\nv_mov_b32 v19, 0')
    for rb in range(16):
        b = 32 + 4 * rb
        S(f'v_xor_b32 v9, s{sTAG}, v{b+1}\nv_xor_b32 v10, s{sTAG}, v{b+3}\nv_or3_b32 v8, v8, v9, v10')
        S(f'v_lshlrev_b32 v{b+1}, 16, v{b}\nv_and_b32 v{b}, 0xffff0000, v{b}\nv_lshlrev_b32 v{b+3}, 16, v{b+2}\nv_and_b32 v{b+2}, 0xffff0000, v{b+2}')
        S(f'v_add_f32 v16, v16, v{b+1}\nv_add_f32 v17, v17, v{b}\nv_add_f32 v18, v18, v{b+3}\nv_add_f32 v19, v19, v{b+2}')
    S(f'v_cmp_ne_u32 vcc, 0, v8\ns_add_u32 s{sBND}, s{sBND}, 1\ns_cbranch_vccz {done}\ns_sleep {Opt.rsleep}\ns_cmp_lt_u32 s{sBND}, 0x8000\ns_cbranch_scc1 {again}\n{done}:')
    if Opt.diag: S(f's_mul_i32 s{STAMP0+13}, s{sBND}, 100\ns_add_u32 s{STAMP0+13}, s{STAMP0+13}, s{STAMP0}')
    S(f'v_and_b32 v8, 31, v{vLANE}\nv_cmp_eq_u32 vcc, 29, v8')
    S(f's_cmp_eq_u32 s{sW4}, 3\ns_cselect_b32 s{sT3}, -1, 0\ns_mov_b32 s{sT2}, 0')
    stamp(S, 10)
    for i in range(4): S(f'v_cndmask_b32 v{16+i}, v{16+i}, 1.0, vcc')
    S('v_cvt_pk_bf16_f32 v16, v16, v17\nv_cvt_pk_bf16_f32 v17, v18, v19')
    S(f'v_cndmask_b32 v16, v16, 0, s[{sT2}:{sT3}]\nv_cndmask_b32 v17, v17, 0, s[{sT2}:{sT3}]')
    S(f'v_lshlrev_b32 v8, 3, v{vLANE}\nbuffer_store_dwordx2 v[16:17], v8, {srd(SRD_WS)}, s{sU1} offen sc1')
    S('s_waitcnt vmcnt(0)')
    l_ = newlab('rl')
    S(f's_mov_b64 exec, 1\nds_add_rtn_u32 v9, v{vLC}, v{vLONE} offset:{128 + 16*CN_PQ}\ns_waitcnt lgkmcnt(0)\ns_mov_b64 exec, -1\nv_readfirstlane_b32 s{sT0}, v9\ns_cmp_lg_u32 s{sT0}, 3\ns_cbranch_scc1 {l_}')
    flag_store(S, sU0, 24, 8, 12)
    S(f'{l_}:')
    stamp(S, 9)

Opt.kvstep = 14
def fin_after(prefix, body):
    mark = Ins('L_MARK__:')
    o = finalize(prefix + [mark] + body)
    return o[o.index(mark) + 1:]

def build():
    assert sT2 % 2 == 0 and sT3 == sT2 + 1
    parts = []
    P = Stream(); prologue(P)
    P(f's_cmp_ge_u32 s{sWAVE}, 4\ns_cbranch_scc1 L_lwave')
    parts.append(finalize(P.l))
    C = Stream(); c_common(C); C(f's_cmp_ge_u32 s{sROLE}, 8\ns_cbranch_scc1 L_cattn')
    S = Stream(); c_ffn(S); c_publish(S, False, True); S('s_branch L_aphase'); parts.append(finalize(C.l + S.l))
    S = Stream(); S('L_cspare:\ns_waitcnt vmcnt(0)'); c_publish(S, False, False); S('s_branch L_fin'); parts.append(finalize(S.l))
    S = Stream(); S('L_cattn:'); c_attn(S)
    S(f's_cmp_ge_u32 s{sI}, 12\ns_cbranch_scc1 L_cspare'); c_publish(S, False, True); parts.append(fin_after(C.l, S.l))
    S = Stream(); S('L_aphase:'); a_phase2(S); S('s_branch L_fin'); parts.append(finalize(S.l))
    S = Stream(); S('L_lwave:'); l_decode(S)
    S(f's_cmp_ge_u32 s{sROLE}, 8\ns_cbranch_scc1 L_lattn'); l_phase1(S, True, True); S('s_branch L_fphase'); parts.append(finalize(S.l))
    S = Stream(); S('L_lattn:'); S(f's_cmp_ge_u32 s{sI}, 12\ns_cbranch_scc1 L_lspare'); l_phase1(S, False, True); parts.append(finalize(S.l))
    S = Stream(); S('L_fphase:'); f_phase2(S); S('s_branch L_fin'); parts.append(finalize(S.l))
    S = Stream(); S('L_lspare:'); l_phase1(S, False, False); reducer(S); parts.append(finalize(S.l))
    S = Stream(); S('L_fin:'); diag_out(S); S('L_end:\ns_endpgm'); parts.append(finalize(S.l))
    hdr = open('recurrent_scan__linear_kernel_hedgehog__dense_activation_silu__prompt.s.ref').read().split('\n')
    top = [l for l in hdr[:13] if l.startswith(';') and '@launch' not in l and 'Override' not in l and 'grid=ceil' not in l]
    out = '\n'.join(top) + f'\n; @launch grid=(256,1,1) block=(512,1,1) lds={LDS_TOTAL}\n'
    out += f'.amdgcn_target "amdgcn-amd-amdhsa--gfx950"\n.text\n.globl {NAME}\n.p2align 8\n.type {NAME},@function\n{NAME}:\n'
    for p in parts:
        t = text(p)
        if Opt.nosc1 == 2: t = '\n'.join(l.replace(' sc1', ' nt sc1') if 'buffer_store_dwordx4' in l else l for l in t.split('\n'))
        if Opt.nosc1 == 3: t = '\n'.join(l.replace('offen', 'offen idxen').replace(', v2,', ', v[0:1],') if False else l for l in t.split('\n'))
        if Opt.nosc1 == 1: t = '\n'.join(l.replace(' sc1', '') if 'buffer_store_dwordx4' in l else l for l in t.split('\n'))
        out += t
    out += f'''.section .rodata,"a"
.p2align 6
.amdhsa_kernel {NAME}
  .amdhsa_next_free_vgpr 256
  .amdhsa_next_free_sgpr 102
  .amdhsa_accum_offset 256
  .amdhsa_group_segment_fixed_size 0
  .amdhsa_kernarg_size 80
  .amdhsa_user_sgpr_count 2
  .amdhsa_user_sgpr_kernarg_segment_ptr 1
  .amdhsa_system_sgpr_workgroup_id_x 1
.end_amdhsa_kernel
'''
    return out

if __name__ == '__main__':
    for a in sys.argv[2:]:
        k, _, val = a.partition('='); setattr(Opt, k, int(val) if val else True)
    open(sys.argv[1], 'w').write(build())
```

```python
import sys, struct
sys.path.insert(0, "dev")
from asmlib import *

NAME = "recurrent_scan__linear_kernel_hedgehog__dense_activation_silu__prompt_kernel"
K1 = 1024
WS_H   = 0
WS_PQ  = 64 * 112 * K1
WS_KVP = WS_PQ + 64 * 16 * 4096
WS_KVF = WS_KVP + 32 * 16 * 4096
WS_FH  = WS_KVF + 64 * K1
WS_FP  = WS_FH + 256 * 4096
WS_FK  = WS_FP + 32 * 2048
WS_TAG = WS_FK + 8 * 4096
WS_DIAG = WS_TAG + 4096
WS_SIZE = WS_DIAG + 256 * 8 * 64
SLOT = 28 * K1
SPARE = 140 * K1
WPHI_L = 156 * K1
CTL = 160 * K1 - 512
LDS_TOTAL = 160 * K1
F_REG = 24 * K1
A_BASE = 96 * K1
A_REG = 16 * K1
EV_XFREE, EV_C0, EV_C1, EV_C2, EV_C3, EV_PK, EV_END, EV_V = range(8)
CN_WO, CN_LT, CN_PH, CN_KV, CN_PQ, CN_K2 = 7, 8, 9, 10, 11, 13
sBND = 70
L2E = 1.4426950408889634
def f2u(x): return struct.unpack('<I', struct.pack('<f', x))[0]
def hx(x): return '0x%08x' % (x & 0xffffffff)

sWAVE, sXCD, sI, sRB, sROLE = 3, 4, 5, 6, 7
SRD_X, SRD_W, SRD_WS, SRD_W2, SRD_WO, SRD_OUT, SRD_DBG, SRD_WPHI = 8, 12, 16, 20, 24, 28, 32, 36
sTB, sCB, sIDX, sTAG, sPITCH = 40, 41, 42, 43, 44
sCOL = [45, 46, 47]
sCOLS = 48
sSEL_LO, sSEL_HI = 49, 63
sT0, sT1, sT2, sT3 = 50, 51, 52, 53
sHI = 54
sROT1, sROT2, sM70 = 41, 57, 56
sCNT, sW4, sFT, sFS, sL2E = 58, 59, 60, 61, 62
sU0, sU1, sU2, sU3, sU4, sU5 = 64, 65, 66, 67, 68, 69
sKA_QKV, sKA_W1 = 80, 82
STAMP0 = 84
def srd(b): return f's[{b}:{b+3}]'
def v(a, n=1): return f'v{a}' if n == 1 else f'v[{a}:{a+n-1}]'
HI = f's[{sHI}:{sHI+1}]'

class Opt:
    diag = False
    ncen = 18
    sleep = 8
    early = False
    rot = 1
    lprio = 0
    lsleep = 1
    nodma = 0
    nosc1 = 0
    nowo = 0
    wpf = 0
    xfirst = 3
    w2pf = 0
    gpf = 1
    mini = 0
    vsteps = 5
    hint = 1
    athr = 4
    rsleep = 2
    ackdiag = 0
    pk = 0
    pkq = 1
    trpace = 1
    aw2 = 8
    tr1 = 6
    kprio = 1
    aprio = 0
    bthr = 10
    trfirst = 0
    thr = 40
    xpipe = 4
    fine = -1
    cpf = 1
    wopf = 1
    phi1 = 1
    fprio = 1
    dbgout = 0
    outsc = ''
    empty = 0
    xcc = 0
    fdiag = 0
    nophi = 0
    notr = 0
    cprio = 0
    predelay = 0
    ksleep = 2

def stamp(S, k):
    if not Opt.diag: return
    if Opt.mini and k not in (0, 15): return
    if Opt.fine >= 0:
        if k == 0: S('s_memtime s[100:101]\ns_waitcnt lgkmcnt(0)\ns_mov_b32 s71, s100')
        return
    if isinstance(k, str):
        if not Opt.early: return
        k = int(k[1:])
    elif Opt.early and 3 <= k < 15: return
    S(f'{"s_memtime" if Opt.diag == 2 else "s_memrealtime"} s[100:101]\ns_waitcnt lgkmcnt(0)\ns_mov_b32 s{STAMP0+k}, s100')

def diag_out(S):
    if not Opt.diag: return
    S('s_waitcnt vmcnt(0) lgkmcnt(0)')
    stamp(S, 15)
    if Opt.xcc: S(f's_getreg_b32 s{STAMP0+11}, hwreg(HW_REG_XCC_ID)\ns_getreg_b32 s{STAMP0+12}, hwreg(HW_REG_HW_ID)')
    if Opt.dbgout:
        lab = newlab('dg')
        S(f's_not_b32 s{STAMP0+14}, s{STAMP0}')
        if Opt.dbgout == 1: S(f's_cmp_ge_u32 s{sWAVE}, 4')
        else: S(f's_cmp_lt_u32 s{sWAVE}, 4')
        S(f's_cbranch_scc1 {lab}')
        S('v_mov_b32 v16, 0')
        for k in range(1, 16): S(f'v_writelane_b32 v16, s{STAMP0+k}, {k}')
        S(f'v_mbcnt_lo_u32_b32 v17, -1, 0\nv_lshlrev_b32 v17, 2, v17\ns_mov_b64 exec, 0xfffe')
        S(f'buffer_atomic_umax v16, v17, {srd(SRD_DBG)}, 0 offen sc1')
        S(f'{lab}:\ns_endpgm')
    if Opt.fine >= 0:
        S('v_mov_b32 v16, s71\nv_mov_b32 v31, s71')
        for k in range(14): S(f'v_mov_b32 v{17+k}, s{72+2*k}')
    else:
        for k in range(16): S(f'v_mov_b32 v{16+k}, s{STAMP0+k}')
    S(f's_lshl_b32 s{sT0}, s2, 3\ns_add_u32 s{sT0}, s{sT0}, s{sWAVE}\ns_lshl_b32 s{sT0}, s{sT0}, 6\ns_add_u32 s{sT0}, s{sT0}, {WS_DIAG}')
    S('v_mov_b32 v40, 0\ns_mov_b64 exec, 1')
    for k in range(4): S(f'buffer_store_dwordx4 v[{16+4*k}:{19+4*k}], v40, {srd(SRD_WS)}, s{sT0} offen offset:{16*k}')

def half_base(h): return ((h + 4) % 5) * SLOT

_lab = [0]
def newlab(p):
    _lab[0] += 1; return f'L_{p}{_lab[0]}'
def RAW(t):
    i = Ins(t); i.kind = 'salu'; i.rd = set(); i.wr = set(); return i
def raw(S, t):
    for l in t.split('\n'):
        S.l.append(Ins(l) if l.endswith(':') else RAW(l))

vCTL, vLANE, vL16 = 0, 1, 2
def mk_srd(S, items):
    for b, lo, size in items:
        S(f's_mov_b64 s[{b}:{b+1}], s[{lo}:{lo+1}]\ns_mov_b32 s{b+2}, {size}\ns_mov_b32 s{b+3}, 0x20000')
def prologue(S):
    S(f's_cmp_ge_u32 s2, {0 if Opt.empty else 256}\ns_cbranch_scc1 L_end')
    if Opt.diag:
        for k in range(16): S(f's_mov_b32 s{STAMP0+k}, 0')
        if Opt.fine >= 0: S('s_mov_b32 s84, 1\ns_mov_b32 s86, 1\ns_mov_b32 s88, 1\ns_mov_b32 s90, 1\ns_mov_b32 s92, 1\ns_mov_b32 s94, 1\ns_mov_b32 s96, 1\ns_mov_b32 s98, 1')
    stamp(S, 0)
    S('s_load_dwordx16 s[64:79], s[0:1], 0\ns_load_dwordx4 s[80:83], s[0:1], 64')
    S(f'v_lshrrev_b32 v3, 6, v0\nv_and_b32 v{vLANE}, 63, v0\nv_readfirstlane_b32 s{sWAVE}, v3\nv_lshlrev_b32 v{vL16}, 4, v{vLANE}')
    S(f's_and_b32 s{sXCD}, s2, 7\ns_lshr_b32 s{sI}, s2, 3\ns_and_b32 s{sT3}, s{sI}, 3\ns_lshr_b32 s{sT2}, s{sI}, 2\ns_xor_b32 s{sT2}, s{sT2}, 4')
    S(f's_lshr_b32 s{sRB}, s{sXCD}, 1\ns_lshl_b32 s{sRB}, s{sRB}, 2\ns_add_u32 s{sRB}, s{sRB}, s{sT3}')
    S(f's_lshl_b32 s{sCB}, s{sT3}, 1\ns_add_u32 s{sCB}, s{sCB}, s{sT2}\ns_sub_u32 s{sT0}, s{sCB}, 7\ns_cmp_ge_u32 s{sCB}, 7\ns_cselect_b32 s{sCB}, s{sT0}, s{sCB}')
    S(f's_and_b32 s{sW4}, s{sWAVE}, 3')
def decode2(S):
    S(f's_lshl_b32 s{sTB}, s{sXCD}, 2\ns_add_u32 s{sTB}, s{sTB}, s{sT3}')
    S(f's_and_b32 s{sIDX}, s{sXCD}, 1\ns_lshl_b32 s{sIDX}, s{sIDX}, 2\ns_and_b32 s{sT0}, s{sT2}, 3\ns_add_u32 s{sIDX}, s{sIDX}, s{sT0}')
    S(f's_and_b32 s{sT0}, s{sT2}, 4\ns_lshl_b32 s{sT0}, s{sT0}, 1\ns_add_u32 s{sROLE}, s{sIDX}, s{sT0}')
    S(f's_mul_i32 s{sROT2}, s{sT3}, 7\ns_lshl_b32 s{sT0}, s{sCB}, 2\ns_add_u32 s{sROT2}, s{sROT2}, s{sT0}\ns_sub_u32 s{sT0}, s{sROT2}, 28\ns_cmp_ge_u32 s{sROT2}, 28\ns_cselect_b32 s{sROT2}, s{sT0}, s{sROT2}')
    S(f's_lshl_b32 s{sT0}, s{sW4}, 2\ns_add_u32 s{sT0}, s{sT0}, {CTL}\nv_mov_b32 v{vCTL}, s{sT0}')
    S(f's_mov_b32 s{sHI}, 0\ns_mov_b32 s{sHI+1}, -1\ns_mov_b32 s{sL2E}, {hx(f2u(L2E))}\ns_movk_i32 s{sM70}, 0x70')
def l_decode(S):
    S(f'v_lshlrev_b32 v4, 3, v{vLANE}\nv_add_u32 v4, {CTL}, v4\nv_mov_b32 v6, 0\nv_mov_b32 v7, 0\nds_write_b64 v4, v[6:7]')
    decode2(S)
    S(f's_mul_i32 s{sT0}, s{sIDX}, 448\ns_and_b32 s{sT1}, s{sIDX}, 1\ns_lshl_b32 s{sT2}, s{sT1}, 6\ns_add_u32 s{sT2}, s{sT2}, s{sT0}')
    S(f's_mul_i32 s{sT1}, s{sT1}, 384\ns_sub_u32 s{sCOLS}, s{sT0}, s{sT1}\ns_add_u32 s{sCOLS}, s{sCOLS}, 384')
    S(f's_mul_i32 s{sT0}, s{sIDX}, 112')
    S(f's_add_u32 s{sT1}, s{sT0}, 896\ns_add_u32 s{sT3}, s{sT0}, 1792\ns_add_u32 s{sCOL[1]}, s{sT2}, 128\ns_add_u32 s{sCOL[2]}, s{sT2}, 256')
    S(f's_movk_i32 s{sPITCH}, 3584\ns_cmp_ge_u32 s{sROLE}, 8')
    S(f's_cselect_b32 s{sCOL[0]}, s{sT1}, s{sT2}\ns_cselect_b32 s{sPITCH}, 2688, s{sPITCH}')
    S(f's_cselect_b32 s{sCOL[1]}, s{sT3}, s{sCOL[1]}\ns_cselect_b32 s{sCOL[2]}, s{sT0}, s{sCOL[2]}')
    S(f's_mul_i32 s{SRD_W+2}, s{sPITCH}, 448\ns_mov_b32 s{SRD_W+3}, 0x20000')
    swz_voff(S, vLW, f's{sPITCH}', 8)
    S('s_waitcnt lgkmcnt(0)')
    S(f's_cmp_ge_u32 s{sROLE}, 8\ns_cselect_b64 s[{SRD_W}:{SRD_W+1}], s[66:67], s[74:75]')
    mk_srd(S, ((SRD_X, 64, 2048 * 896), (SRD_WS, 82, WS_SIZE), (SRD_W2, 76, 1792 * 896), (SRD_WO, 70, 448 * 896), (SRD_OUT, 78, 2048 * 896), (SRD_DBG, 80, 256), (SRD_WPHI, 68, 16 * 1568)))
    S(f's_mov_b64 s[{sKA_QKV}:{sKA_QKV+1}], s[66:67]\ns_mov_b64 s[{sKA_W1}:{sKA_W1+1}], s[74:75]')

TAGW = 320
def tag_fetch_l0(S):
    a, b = newlab('tf'), newlab('tf')
    S(f's_cmp_lg_u32 s{sW4}, 0\ns_cbranch_scc1 {b}')
    raw(S, f's_mov_b32 s{sBND}, 0\nv_mov_b32 v15, 0\n{a}:\nbuffer_load_dword v14, v15, {srd(SRD_DBG)}, 0 offen sc1\ns_waitcnt vmcnt(0)\nv_readfirstlane_b32 s{sTAG}, v14\ns_add_u32 s{sBND}, s{sBND}, 1\n'
           f's_max_u32 s{sCNT}, s{sBND}, 0x20000\ns_sub_u32 s{sCNT}, s{sCNT}, 0x20000\ns_or_b32 s{sTAG}, s{sTAG}, s{sCNT}\ns_cmp_eq_u32 s{sTAG}, 0\ns_cbranch_scc1 {a}\n'
           f'v_mov_b32 v14, s{sTAG}\ns_mov_b64 exec, 15\nds_write_b32 v{vLC}, v14 offset:{TAGW}\ns_mov_b64 exec, -1\ns_waitcnt lgkmcnt(0)\n{b}:')
def tag_prefetch(S, vt):
    S(f'ds_read_b32 v{vt}, v{vCTL} offset:{TAGW}')
def tag_get(S, vt):
    a, b = newlab('tg'), newlab('tg')
    S(f'v_readfirstlane_b32 s{sTAG}, v{vt}')
    S(f's_cmp_lg_u32 s{sTAG}, 0\ns_cbranch_scc1 {b}')
    raw(S, f'{a}:\nds_read_b32 v{vt}, v{vCTL} offset:{TAGW}\ns_sleep 1\ns_waitcnt lgkmcnt(0)\nv_readfirstlane_b32 s{sTAG}, v{vt}\ns_nop 0\ns_cmp_eq_u32 s{sTAG}, 0\ns_cbranch_scc1 {a}\n{b}:')

def poll(S, voff, soff, nl, vt, sleep=None):
    a, b = newlab('pl'), newlab('pl')
    S(f's_mov_b64 exec, {hex((1 << nl) - 1)}\ns_mov_b32 s{sCNT}, 0')
    S(f'{a}:')
    S(f'buffer_load_dword v{vt}, v{voff}, {srd(SRD_WS)}, s{soff} offen sc1')
    S('s_waitcnt vmcnt(0)')
    S(f'v_cmp_ne_u32 vcc, s{sTAG}, v{vt}')
    S(f's_add_u32 s{sCNT}, s{sCNT}, 1\ns_cbranch_vccz {b}\ns_cmp_gt_u32 s{sCNT}, 0x20000\ns_cbranch_scc1 {b}\ns_sleep {sleep or Opt.sleep}\ns_branch {a}')
    S(f'{b}:')
    S('s_mov_b64 exec, -1')

def flag_store(S, soff, vt, n=1, shift=8):
    for i in range(4): S(f'v_mov_b32 v{vt+i}, s{sTAG}')
    S(f'v_lshrrev_b32 v{vt+4}, 3, v{vLANE}\nv_lshlrev_b32 v{vt+4}, {shift}, v{vt+4}\nv_and_or_b32 v{vt+4}, v{vL16}, s{sM70}, v{vt+4}')
    m = (1 << (8 * n)) - 1
    if n < 8: S(f's_mov_b32 exec_lo, {hex(m & 0xffffffff)}\ns_mov_b32 exec_hi, {hex(m >> 32)}')
    S(f'buffer_store_dwordx4 {v(vt,4)}, v{vt+4}, {srd(SRD_WS)}, s{soff} offen sc1')
    if n < 8: S('s_mov_b64 exec, -1')

def c_signal(ev):
    return [Ins(f'ds_write_b32 v{vCTL}, v{vCTL} offset:{16*ev}')]
def cnt_read(idx, vt):
    return [Ins(f'ds_read_b32 v{vt}, v{vCTL} offset:{128 + 16*idx}')]
def cnt_check(idx, vt, sleep=0):
    S = Stream(); a, b = newlab('ck'), newlab('ck')
    S(f'v_readfirstlane_b32 s{sCNT}, v{vt}\ns_cmp_ge_u32 s{sCNT}, 4\ns_cbranch_scc1 {b}')
    raw(S, f's_mov_b32 s{sBND}, 0\n{a}:\nds_read_b32 v{vt}, v{vCTL} offset:{128 + 16*idx}\ns_add_u32 s{sBND}, s{sBND}, 1\ns_cmp_gt_u32 s{sBND}, 0x40000\ns_cbranch_scc1 {b}\ns_sleep {sleep}\ns_waitcnt lgkmcnt(0)\nv_readfirstlane_b32 s{sCNT}, v{vt}\ns_nop 0\ns_cmp_lt_u32 s{sCNT}, 4\ns_cbranch_scc1 {a}\n{b}:')
    return S.l
def c_allflags(ev, vt, va):
    S = Stream(); a, b = newlab('cf'), newlab('cf')
    S(f'v_mov_b32 v{va}, {CTL}\nds_read_b128 v[{vt}:{vt+3}], v{va} offset:{16*ev}')
    S2 = Stream()
    S2(f'v_min3_u32 v{vt}, v{vt}, v{vt+1}, v{vt+2}\nv_min_u32 v{vt}, v{vt}, v{vt+3}\nv_readfirstlane_b32 s{sCNT}, v{vt}\ns_cmp_lg_u32 s{sCNT}, 0\ns_cbranch_scc1 {b}')
    raw(S2, f's_mov_b32 s{sBND}, 0\n{a}:\nds_read_b128 v[{vt}:{vt+3}], v{va} offset:{16*ev}\ns_add_u32 s{sBND}, s{sBND}, 1\ns_cmp_gt_u32 s{sBND}, 0x40000\ns_cbranch_scc1 {b}\ns_waitcnt lgkmcnt(0)\n'
            f'v_min3_u32 v{vt}, v{vt}, v{vt+1}, v{vt+2}\nv_min_u32 v{vt}, v{vt}, v{vt+3}\ns_nop 0\nv_readfirstlane_b32 s{sCNT}, v{vt}\ns_nop 0\ns_cmp_eq_u32 s{sCNT}, 0\ns_cbranch_scc1 {a}\n{b}:')
    return S.l, S2.l
vLC, vLONE, vLP = 11, 12, 188
def l_signal(S, idx):
    S(f's_mov_b64 exec, 15\nds_add_u32 v{vLC}, v{vLONE} offset:{128 + 16*idx}\ns_mov_b64 exec, -1')
def l_wait(S, ev):
    a, b = newlab('lw'), newlab('lw')
    S('s_waitcnt lgkmcnt(0)')
    raw(S, f's_mov_b32 s{sBND}, 0\n{a}:\nds_read_b128 v[{vLP}:{vLP+3}], v{vLP+4} offset:{16*ev}\ns_add_u32 s{sBND}, s{sBND}, 1\ns_cmp_gt_u32 s{sBND}, 0x40000\ns_cbranch_scc1 {b}\ns_sleep {Opt.lsleep}\ns_waitcnt lgkmcnt(0)\nv_min3_u32 v{vLP}, v{vLP}, v{vLP+1}, v{vLP+2}\nv_min_u32 v{vLP}, v{vLP}, v{vLP+3}\ns_nop 0\nv_readfirstlane_b32 s{sCNT}, v{vLP}\ns_nop 0\ns_cmp_eq_u32 s{sCNT}, 0\ns_cbranch_scc1 {a}\n{b}:\ns_waitcnt lgkmcnt(0)')

X0 = 16; ACC = [[128, 144], [160, 176]]; AF = 192; WPHI = 224; T = 240; U = 224; TT = 248; NR = 4
vVA = [3, 4]; vWA = [5, 6]; vVS = 7; vR, vRM, vNRL, vSD, vCT, vNM = 8, 9, 10, 11, 12, 13; vTAG = 14

def lane_consts_tr(S, dst, tmp, cstride, rowmap):
    t0, t1, t2 = tmp, tmp + 1, tmp + 2
    S(f'v_bfe_u32 v{t0}, v{vLANE}, 2, 2')
    S(f'v_lshrrev_b32 v{t1}, 5, v{vLANE}')
    S(f'v_lshlrev_b32 v{t1}, {10 if rowmap == "A" else 9}, v{t1}\nv_lshl_add_u32 v{t1}, v{t0}, 7, v{t1}')
    S(f'v_bfe_u32 v{t0}, v{vLANE}, 3, 1\nv_lshlrev_b32 v{t0}, 6, v{t0}')
    S(f'v_bfe_u32 v{t2}, v{vLANE}, 4, 1\nv_lshlrev_b32 v{t2}, 5, v{t2}\nv_and_b32 v{dst[0]}, 3, v{vLANE}\nv_lshl_add_u32 v{t2}, v{dst[0]}, 3, v{t2}')
    S(f'v_xor_b32 v{dst[0]}, v{t2}, v{t0}\nv_add_u32 v{dst[0]}, v{dst[0]}, v{t1}')
    S(f'v_add_u32 v{t2}, {cstride}, v{t2}\nv_xor_b32 v{dst[1]}, v{t2}, v{t0}\nv_add_u32 v{dst[1]}, v{dst[1]}, v{t1}')

def trb(St, dst, hfshift, pitch, tmp):
    St(f'v_lshrrev_b32 v{tmp}, 5, v{vLANE}\nv_lshlrev_b32 v{tmp}, {hfshift}, v{tmp}\nv_bfe_u32 v{dst}, v{vLANE}, 2, 2\nv_add_u32 v{tmp}, v{tmp}, v{dst}\nv_mul_u32_u24 v{dst}, {pitch}, v{tmp}')
    St(f'v_bfe_u32 v{tmp}, v{vLANE}, 4, 1\nv_lshl_add_u32 v{dst}, v{tmp}, 5, v{dst}\nv_and_b32 v{tmp}, 3, v{vLANE}\nv_lshl_add_u32 v{dst}, v{tmp}, 3, v{dst}')

def wrap_inc(S, reg, inc, lim):
    S(f's_add_u32 s{reg}, s{reg}, {inc}\ns_cmp_eq_u32 s{reg}, {lim}\ns_cselect_b32 s{reg}, 0, s{reg}')

def c_load_x(S):
    a, b = T, T + 1
    S(f'v_lshrrev_b32 v{T+2}, 3, v{vLANE}\nv_mul_u32_u24 v{a}, 896, v{T+2}')
    S(f'v_lshrrev_b32 v{T+2}, 4, v{vLANE}\nv_and_b32 v{T+3}, 7, v{vLANE}\nv_xor_b32 v{T+2}, v{T+2}, v{T+3}\nv_lshl_add_u32 v{a}, v{T+2}, 4, v{a}\nv_xor_b32 v{b}, 64, v{a}')
    S(f'v_add_u32 v{b}, {8*896}, v{b}\nv_add_u32 v{T+2}, {16*896}, v{a}\nv_add_u32 v{T+3}, {16*896}, v{b}')
    sXB, sXL, sXR, sXO = sFT, sFS, sCOL[0], sCOL[1]
    S(f's_lshl_b32 s{sXB}, s{sRB}, 2\ns_add_u32 s{sXB}, s{sXB}, s{sWAVE}\ns_mul_i32 s{sXB}, s{sXB}, {32*896}')
    S(f's_mul_i32 s{sXL}, s{sWAVE}, {SLOT}\ns_lshl_b32 s{sXR}, s{sROT1}, 7')
    S(f's_mov_b32 s{SRD_X+2}, {2048*896}\ns_mov_b32 s{SRD_X+3}, 0x20000')
    stamp(S, 'e3')
    S(f's_waitcnt lgkmcnt(0)\ns_mov_b64 s[{SRD_X}:{SRD_X+1}], s[64:65]')
    stamp(S, 'e4')
    def xdma(lc):
        S(f's_add_u32 s{sXO}, s{sXB}, s{sXR}')
        for g in range(4):
            S(f's_add_u32 m0, s{sXL}, {lc*4096 + g*1024}')
            if g == 0 and lc < 6: wrap_inc(S, sXR, 128, 896)
            S(f'buffer_load_dwordx4 v{T+g}, {srd(SRD_X)}, s{sXO} offen lds', tok=('x', lc))
    for lc in range(Opt.xpipe): xdma(lc)
    decode2(S)
    mk_srd(S, ((SRD_WS, 82, WS_SIZE), (SRD_OUT, 78, 2048 * 896), (SRD_DBG, 80, 256)))
    if Opt.xpipe >= 7: S('s_barrier')
    sT1_ = sXL
    stamp(S, 'e5')
    xa = T + 4
    S(f'v_and_b32 v{TT}, 31, v{vLANE}\nv_bfe_u32 v{TT+1}, v{vLANE}, 1, 3\nv_lshrrev_b32 v{xa}, 5, v{vLANE}\nv_xor_b32 v{TT+1}, v{TT+1}, v{xa}')
    S(f'v_lshlrev_b32 v{TT+1}, 4, v{TT+1}\nv_lshl_add_u32 v{xa}, v{TT}, 7, v{TT+1}\nv_add_u32 v{xa}, s{sXL}, v{xa}')
    for q in range(1, 4): S(f'v_xor_b32 v{xa+q}, {q*32}, v{xa}')
    S(f's_mov_b32 s{sSEL_LO}, 0x00003f80\ns_mov_b32 s{sSEL_HI}, 0x3f800000')
    S(f's_cmp_ge_u32 s{sROLE}, 8\ns_cselect_b32 s{sT0}, 56, 64')
    lane_consts_tr(S, vVA, TT, f's{sT0}', 'A')
    sA, sB, qA, qB, one = U, U + 1, U + 2, U + 3, U + 4
    S(f'v_mov_b32 v{sA}, 0\nv_mov_b32 v{sB}, 0\nv_mov_b32 v{qA}, 0\nv_mov_b32 v{qB}, 0\nv_mov_b32 v{one}, 0x3f803f80')
    def stats(lc):
        for q in range(4):
            for j in range(4):
                r = X0 + (lc * 4 + q) * 4 + j
                S(f'v_dot2c_f32_bf16 v{sA + (j & 1)}, v{r}, v{one}\nv_dot2c_f32_bf16 v{qA + (j & 1)}, v{r}, v{r}')
    for lc in range(7):
        S.wait(('x', lc))
        if lc in (0, 3, 6): stamp(S, 'e%d' % (6 + lc // 3))
        for q in range(4):
            S(f'ds_read_b128 {v(X0 + (lc*4+q)*4, 4)}, v{xa+q} offset:{lc*4096}')
        if lc == 6: S.ext(c_signal(EV_XFREE))
        if lc + Opt.xpipe < 7: xdma(lc + Opt.xpipe)
        if lc + Opt.xpipe == 6: S('s_barrier')
        if lc > 0: stats(lc - 1)
    stamp(S, 1)
    stats(6)
    t = U + 5
    S(f'v_add_f32 v{sA}, v{sA}, v{sB}\nv_add_f32 v{qA}, v{qA}, v{qB}\nv_mov_b32 v{sB}, v{sA}\nv_mov_b32 v{qB}, v{qA}')
    S(f'v_permlane32_swap_b32 v{sA}, v{sB}\nv_permlane32_swap_b32 v{qA}, v{qB}')
    S(f'v_add_f32 v{sA}, v{sA}, v{sB}\nv_add_f32 v{qA}, v{qA}, v{qB}')
    inv = hx(f2u(1.0 / 448))
    S(f'v_mul_f32 v{sA}, {inv}, v{sA}\nv_mul_f32 v{qA}, {inv}, v{qA}')
    S(f'v_fma_f32 v{qA}, -v{sA}, v{sA}, v{qA}\nv_max_f32 v{qA}, 0, v{qA}')
    S(f'v_cvt_pk_bf16_f32 v{t}, v{sA}, v{qA}')
    S(f'v_lshlrev_b32 v{vNM}, 16, v{t}\nv_xor_b32 v{vNM}, 0x80000000, v{vNM}')
    R = Stream()
    R(f'v_and_b32 v{qA}, 0xffff0000, v{t}\nv_add_f32 v{qA}, {hx(f2u(1e-5))}, v{qA}')
    R(f'v_cvt_pk_bf16_f32 v{t}, v{qA}, v{qA}\nv_and_b32 v{qA}, 0xffff0000, v{t}\nv_sqrt_f32 v{qA}, v{qA}')
    R(f'v_nop\nv_cvt_pk_bf16_f32 v{t}, v{qA}, v{qA}\nv_and_b32 v{vSD}, 0xffff0000, v{t}\nv_rcp_f32 v{vR}, v{vSD}')
    R(f'v_nop\nv_mul_f32 v{vNRL}, {hx(f2u(-L2E))}, v{vR}\nv_cndmask_b32 v{vRM}, v{vR}, 0, {HI}')
    return R.l

def center(s):
    S = Stream()
    for j in range(4):
        r = X0 + s * 4 + j
        a, b = TT + 2 * j, TT + 2 * j + 1
        S(f'v_dot2_f32_bf16 v{a}, v{r}, s{sSEL_LO}, v{vNM}\nv_dot2_f32_bf16 v{b}, v{r}, s{sSEL_HI}, v{vNM}')
    for j in range(4):
        r = X0 + s * 4 + j
        S(f'v_cvt_pk_bf16_f32 v{r}, v{TT+2*j}, v{TT+2*j+1}')
    return S.l
def center5(s):
    S = Stream()
    for j in range(4):
        r = X0 + s * 4 + j
        a, b = TT + 2 * j, TT + 2 * j + 1
        S(f'v_lshlrev_b32 v{a}, 16, v{r}\nv_and_b32 v{b}, 0xffff0000, v{r}\nv_add_f32 v{a}, v{a}, v{vNM}\nv_add_f32 v{b}, v{b}, v{vNM}')
        S(f'v_cvt_pk_bf16_f32 v{r}, v{a}, v{b}')
    return S.l

def silu_tile(acc, u, soff, tok):
    S = Stream()
    for g in range(4):
        a = acc + 4 * g
        for i in range(4): S(f'v_mul_f32 v{TT+i}, v{a+i}, v{vNRL}')
        for i in range(4): S(f'v_exp_f32 v{TT+i}, v{TT+i}')
        for i in range(4): S(f'v_fma_f32 v{TT+i}, v{TT+i}, v{vSD}, v{vSD}')
        for i in range(4): S(f'v_rcp_f32 v{TT+i}, v{TT+i}')
        for i in range(4): S(f'v_mul_f32 v{TT+4+i}, v{a+i}, v{TT+i}')
        S(f'v_cvt_pk_bf16_f32 v{u+2*g}, v{TT+4}, v{TT+5}\nv_cvt_pk_bf16_f32 v{u+2*g+1}, v{TT+6}, v{TT+7}')
        if g % 2 == 1:
            S(f'buffer_store_dwordx4 {v(u + 4*(g//2), 4)}, v{vL16}, {srd(SRD_WS)}, s{soff[0]} offen offset:{soff[1] + 1024*(g//2)} sc1', tok=tok)
    return S.l

def part(f, s, lo, hi):
    n = len(f); k = hi - lo + 1
    return f[(s - lo) * n // k:(s - lo + 1) * n // k]

CN_H1B = 14
class Steps:
    def __init__(self, single):
        self.steps = []
        for st in range(3):
            for s in range(28):
                h = st * 2 + s // 14; sp = s % 14
                p = dict(st=st, s=s, nt=2, h=h, off=sp * 2048, first=(sp == 0), last=(sp == 13), base=half_base(h), cn=h)
                if h == 1:
                    if sp < 8: p.update(base=SPARE, h1a=(sp == 7))
                    else: p.update(base=0, off=(sp - 8) * 2048, first=(sp == 8), cn=CN_H1B)
                self.steps.append(p)
        if single:
            for s in range(28):
                self.steps.append(dict(st=3, s=s, nt=1, h=6, off=s * K1, first=(s == 0), last=False, cn=6))
    def reads(self, n):
        if n >= len(self.steps): return [], []
        p = self.steps[n]; S = Stream(); pre = Stream()
        ring = AF + (n % NR) * 8
        if p['first']:
            pre.ext(cnt_check(p['cn'], vCT))
            if p['nt'] == 2:
                b = p['base']
                pre(f'v_add_u32 v{vWA[0]}, {b}, v{vVA[0]}\nv_add_u32 v{vWA[1]}, {b}, v{vVA[1]}')
        if p['nt'] == 2:
            for c in range(2):
                for u in range(2):
                    S(f'ds_read_b64_tr_b16 {v(ring + 4*c + 2*u, 2)}, v{vWA[c]} offset:{p["off"] + 512*u}', tok=('a', n))
        else:
            for u in range(2):
                S(f'ds_read_b64_tr_b16 {v(ring + 2*u, 2)}, v{vVS} offset:{p["off"] + 256*u}', tok=('a', n))
        if p['last'] and p['h'] < 4: S.ext(c_signal(EV_C0 + p['h']))
        if n + 3 < len(self.steps) and self.steps[n + 3]['first']:
            S.ext(cnt_read(self.steps[n + 3]['cn'], vCT))
        return pre.l, S.l
    def mfmas(self, n):
        p = self.steps[n]; ring = AF + (n % NR) * 8; out = []
        for c in range(p['nt']):
            acc = ACC[p['st'] % 2][c]
            C = '0' if p['s'] == 0 else v(acc, 16)
            out.append(Ins(f'v_mfma_f32_32x32x16_bf16 {v(acc,16)}, {v(ring+4*c,4)}, {v(X0+4*p["s"],4)}, {C}'))
        return out
    def stage(self, st, fill=None, perstep=None, mid=None):
        idx = [n for n, p in enumerate(self.steps) if p['st'] == st]
        groups = []
        for n in idx:
            p = self.steps[n]
            rd = self.reads(n + NR - 1)[1]
            pre = self.reads(n + NR)[0]
            m = self.mfmas(n)
            g = []
            if Opt.fine == st and p['s'] % 2 == 0 and p['s'] < 26: g.append(RAW(f's_memtime s[{72+p["s"]}:{73+p["s"]}]'))
            if mid and p['s'] in mid: g += mid[p['s']]
            on = p['s'] > 0 or perstep
            w = Stream(); w.wait(('a', n + 1))
            k = 2 if pre else 5
            if p['nt'] == 2:
                g += [m[0]] + rd + ([None] * 2 if on else []) + [m[1]] + w.l + ([None] * k if on else []) + pre
            else:
                g += [m[0]] + rd + ([None] * 3 if on else [])
            if perstep: g = interleave([g], perstep(p['s']))
            if Opt.fine == st and p['s'] == 27: g.append(RAW('s_memtime s[98:99]'))
            groups.append(g)
        if perstep: return [x for g in groups for x in g]
        return interleave(groups, fill)

def c_common(S):
    if Opt.cprio: S('s_setprio 2')
    rest = c_load_x(S)
    S.ext(cnt_read(0, vCT))
    for s in range(Opt.ncen): S.ext(center(s))
    P = Steps(True)
    for n in range(NR - 1):
        pre, rd = P.reads(n); S.ext(pre); S.ext(rd)
    stamp(S, 2)
    f = []
    for s in range(Opt.ncen, 28): f += center5(s)
    S.ext(P.stage(0, perstep=lambda s: part(f, s, 0, 25) if s < 26 else (rest if s == 26 else [])))
    stamp(S, 3)

def c_ffn(S):
    P = Steps(True)
    e = Stream(); t = T
    trb(e, vVS, 3, 64, t)
    e(f's_lshl_b32 s{sT0}, s{sRB}, 2\ns_add_u32 s{sT0}, s{sT0}, s{sWAVE}\ns_mul_i32 s{sT0}, s{sT0}, {112*K1}')
    e(f's_mul_i32 s{sT1}, s{sIDX}, 7\ns_and_b32 s{sT2}, s{sIDX}, 1\ns_add_u32 s{sT3}, s{sT1}, s{sT2}\ns_lshl_b32 s{sT3}, s{sT3}, 11\ns_add_u32 s{sFT}, s{sT0}, s{sT3}')
    e(f's_mul_i32 s{sT2}, s{sT2}, 6\ns_sub_u32 s{sT1}, s{sT1}, s{sT2}\ns_add_u32 s{sT1}, s{sT1}, 6\ns_lshl_b32 s{sT1}, s{sT1}, 11\ns_add_u32 s{sFS}, s{sT0}, s{sT1}')
    for st in (1, 2, 3):
        pa = ACC[(st - 1) % 2]
        fill = (e.l if st == 1 else []) + [Ins(f's_add_u32 s{sT0}, s{sFT}, {(st-1)*4096}')]
        fill += silu_tile(pa[0], T, (sT0, 0), 'st') + silu_tile(pa[1], U, (sT0, 2048), 'st')
        if st == 3:
            t = Stream(); tag_prefetch(t, vTAG); fill = fill + t.l
        S.ext(P.stage(st, fill))
        stamp(S, 3 + st)
    S.ext(silu_tile(ACC[1][0], T, (sFS, 0), 'st'))

def minmax(S, X, mx, mn, t0, t1):
    for op, d in (('v_max3_f32', mx), ('v_min3_f32', mn)):
        S(f'{op} v{d}, v{X}, v{X+1}, v{X+2}')
        for i in range(3, 15, 2): S(f'{op} v{d}, v{d}, v{X+i}, v{X+i+1}')
    S(f'v_max_f32 v{mx}, v{mx}, v{X+15}\nv_min_f32 v{mn}, v{mn}, v{X+15}')
    S(f'v_mov_b32 v{t0}, v{mx}\nv_mov_b32 v{t1}, v{mn}\nv_permlane32_swap_b32 v{mx}, v{t0}\nv_permlane32_swap_b32 v{mn}, v{t1}')
    S(f'v_max_f32 v{mx}, v{mx}, v{t0}\nv_min_f32 v{mn}, v{mn}, v{t1}')
    S(f'v_mul_f32 v{mx}, {hx(f2u(-L2E))}, v{mx}\nv_mul_f32 v{mn}, {hx(f2u(L2E))}, v{mn}')

LX, LE, LT = 144, 160, 176
vLPW, vLMK, vLL2E, vLRD, vLWP = 185, 184, 186, 187, 193
def softmax_body(S, X, E0, tmp, l2e, pw, off, hook0=None):
    for i in range(4): S(f'v_cndmask_b32 v{X+12+i}, v{X+12+i}, v{X+8+i}, {HI}')
    mx, mn, t0, t1 = tmp, tmp + 2, tmp + 1, tmp + 3
    minmax(S, X, mx, mn, t0, t1)
    for sign in range(2):
        E = E0 if sign == 0 else X
        s0, s1 = tmp + 4, tmp + 5
        for i in range(16):
            if sign == 0: S(f'v_fma_f32 v{E+i}, v{X+i}, {l2e}, v{mx}')
            else: S(f'v_fma_f32 v{E+i}, -v{X+i}, {l2e}, v{mn}')
        for i in range(16): S(f'v_exp_f32 v{E+i}, v{E+i}')
        S(f'v_add_f32 v{s1}, v{E+12}, v{E+13}\nv_add_f32 v{s0}, v{E}, v{E+1}\nv_add_f32 v{s1}, v{s1}, v{E+14}')
        S(f'v_add_f32 v{s0}, v{s0}, v{E+2}\nv_add_f32 v{s1}, v{s1}, v{E+15}\nv_add_f32 v{s0}, v{s0}, v{E+3}\nv_cndmask_b32 v{s1}, v{s1}, 0, {HI}')
        for i in range(4, 12): S(f'v_add_f32 v{s0 + (i & 1)}, v{s0 + (i & 1)}, v{E+i}')
        S(f'v_add_f32 v{s0}, v{s0}, v{s1}\nv_mov_b32 v{s1}, v{s0}\nv_permlane32_swap_b32 v{s0}, v{s1}\nv_add_f32 v{s0}, v{s0}, v{s1}\nv_rcp_f32 v{s0}, v{s0}')
        for i in range(16): S(f'v_mul_f32 v{E+i}, v{E+i}, v{s0}')
        for i in range(8): S(f'v_cvt_pk_bf16_f32 v{E+i}, v{E+2*i}, v{E+2*i+1}')
        for qd in range(3):
            S(f'ds_write_b64 v{pw}, {v(E+2*qd, 2)} offset:{off + sign*56 + qd*16}')
        g = Stream(); g(f's_mov_b64 exec, 0xffffffff\nds_write_b64 v{pw}, {v(E+6, 2)} offset:{off + sign*56 + 48}\ns_mov_b64 exec, -1')
        S.l.append(Group(g.l))
        if sign == 0 and hook0: S.ext(hook0)

def softmax_k(hook0):
    S = Stream()
    rw = LE
    S(f'ds_read_b128 {v(rw,4)}, v{vLRD}\nds_read_b128 {v(rw+4,4)}, v{vLRD} offset:1024')
    for st in range(2):
        for u in range(2):
            S(f'ds_read_b64_tr_b16 {v(rw + 8 + 4*st + 2*u, 2)}, v{vLWP} offset:{(16*st + 8*u)*56}')
    S(f'v_mfma_f32_32x32x16_bf16 {v(LX,16)}, {v(rw+8,4)}, {v(rw,4)}, 0')
    S(f'v_mfma_f32_32x32x16_bf16 {v(LX,16)}, {v(rw+12,4)}, {v(rw+4,4)}, {v(LX,16)}')
    softmax_body(S, LX, LE, LT, f'v{vLL2E}', vLPW, 0, hook0)
    return S.l

def scale_pack(acc, dst, masked=True):
    S = Stream()
    for i in range(16): S(f'v_mul_f32 v{acc+i}, v{acc+i}, v{vRM if (masked and i >= 12) else vR}')
    for i in range(8): S(f'v_cvt_pk_bf16_f32 v{dst+i}, v{acc+2*i}, v{acc+2*i+1}')
    return S.l

def phi_mfma(acc, c, b):
    return [Ins(f'v_mfma_f32_32x32x16_bf16 {v(acc,16)}, {v(WPHI+8*c,4)}, {v(b,4)}, 0'),
            Ins(f'v_mfma_f32_32x32x16_bf16 {v(acc,16)}, {v(WPHI+8*c+4,4)}, {v(b+4,4)}, {v(acc,16)}')]

def c_attn(S):
    vHO, vVW, vWP = vVS, vNRL, vSD
    P = Steps(False)
    e = Stream(); t = TT
    trb(e, vWP, 2, 56, t)
    e(f'v_add_u32 v{vWP}, {WPHI_L}, v{vWP}')
    for c in range(2):
        for st in range(2):
            for u in range(2):
                e(f'ds_read_b64_tr_b16 {v(WPHI + 8*c + 4*st + 2*u, 2)}, v{vWP} offset:{c*1568 + (16*st + 8*u)*56}')
    ka = ACC[0]
    vPW = vNM
    h0 = Stream()
    h0(f's_lshl_b32 s{sT0}, s{sWAVE}, 12\ns_add_u32 s{sT0}, s{sT0}, {SPARE}\nv_add_u32 v{vHO}, s{sT0}, v{vL16}')
    h0.ext(scale_pack(ka[0], T))
    h0(f'ds_write_b128 v{vHO}, {v(T,4)}\nds_write_b128 v{vHO}, {v(T+4,4)} offset:1024')
    f1 = h0.l + c_signal(EV_PK)
    f1b = e.l + scale_pack(ka[1], T)
    sm = Stream(); softmax_body(sm, ka[1], ka[0], TT, f's{sL2E}', vPW, 14336)
    t = Stream()
    t(f'v_and_b32 v{TT+3}, 31, v{vLANE}\ns_lshl_b32 s{sT0}, s{sWAVE}, 5\nv_add_u32 v{TT+3}, s{sT0}, v{TT+3}\nv_lshrrev_b32 v{TT+4}, 5, v{vLANE}\nv_lshlrev_b32 v{TT+4}, 3, v{TT+4}')
    t(f'v_mul_u32_u24 v{vVW}, 72, v{TT+3}\nv_add_u32 v{vVW}, v{vVW}, v{TT+4}\nv_add_u32 v{vVW}, {SLOT}, v{vVW}')
    t(f'v_mul_u32_u24 v{vPW}, 112, v{TT+3}\nv_add_u32 v{vPW}, v{vPW}, v{TT+4}')
    f3 = t.l
    g1, g2 = c_allflags(EV_C2, T, T + 4)
    k1, k2 = c_allflags(EV_C1, TT, TT + 4)
    f1 = k1 + f1
    assert all(not x.op.startswith('ds_write') for x in part(f1, 1, 1, 4) + part(f1, 2, 1, 4))
    f2 = f1b + f3
    def ps1(s):
        if 1 <= s <= 4: return part(f1, s, 1, 4)
        if 5 <= s <= 9: return part(f2, s, 5, 9)
        if 11 <= s <= 27: return part(sm.l, s, 11, 27) + (g1 if s == 24 else [])
        return []
    S.ext(P.stage(1, perstep=ps1, mid={3: k2, 10: phi_mfma(ka[1], 1, T), 27: g2}))
    stamp(S, 4)
    va = ACC[1]
    t = Stream()
    for c in range(2):
        t.ext(scale_pack(va[c], T, masked=False))
        d = T
        t(f'v_cndmask_b32 v{d+6}, v{d+6}, v{TT}, {HI}\nv_cndmask_b32 v{d+7}, v{d+7}, 0, {HI}')
        for qd in range(4): t(f'ds_write_b64 v{vVW}, {v(d+2*qd, 2)} offset:{c*9216 + qd*16}')
    vfill = [Ins(f'v_mov_b32 v{TT}, 0x3f80')] + t.l + c_signal(EV_V)
    tp = Stream(); tag_prefetch(tp, vTAG)
    def ps2(s):
        if 1 <= s <= Opt.vsteps: return part(vfill, s, 1, Opt.vsteps)
        if s == 20: return tp.l
        return []
    S.ext(P.stage(2, perstep=ps2))
    stamp(S, 5)
    qa = ACC[0]
    S(f'v_mov_b32 v{TT}, s{sL2E}')
    S.ext(scale_pack(qa[0], T)); S.ext(phi_mfma(qa[0], 0, T)); S.ext(scale_pack(qa[1], AF + 16)); S.ext(phi_mfma(qa[1], 1, AF + 16))
    S(f's_lshl_b32 s{sT0}, s{sRB}, 2\ns_add_u32 s{sT0}, s{sT0}, s{sWAVE}\ns_lshl_b32 s{sT0}, s{sT0}, 3\ns_add_u32 s{sT0}, s{sT0}, s{sIDX}\ns_lshl_b32 s{sT0}, s{sT0}, 13\ns_add_u32 s{sT0}, s{sT0}, {WS_PQ}\ns_add_u32 s{sT1}, s{sT0}, 4096')
    for c in range(2):
        X = qa[c]; E = va[c]; d = AF if c == 0 else X0
        for i in range(4): S(f'v_cndmask_b32 v{X+12+i}, v{X+12+i}, v{X+8+i}, {HI}')
        mx, mn = TT + 4, TT + 6
        minmax(S, X, mx, mn, TT + 5, TT + 7)
        if Opt.pkq:
            for i in range(0, 16, 2): S(f'v_pk_fma_f32 {v(E+i,2)}, {v(X+i,2)}, {v(TT,2)}, {v(mx,2)} op_sel_hi:[1,0,0]')
        else:
            for i in range(16): S(f'v_fma_f32 v{E+i}, v{X+i}, s{sL2E}, v{mx}')
        for i in range(16): S(f'v_exp_f32 v{E+i}, v{E+i}')
        for i in range(8): S(f'v_cvt_pk_bf16_f32 v{d+i}, v{E+2*i}, v{E+2*i+1}')
        for hh in range(2):
            S(f'buffer_store_dwordx4 {v(d+4*hh,4)}, v{vL16}, {srd(SRD_WS)}, s{sT0 + c} offen offset:{hh*1024} sc1', tok='st')
        if Opt.pkq:
            for i in range(0, 16, 2): S(f'v_pk_fma_f32 {v(X+i,2)}, {v(X+i,2)}, {v(TT,2)}, {v(mn,2)} op_sel_hi:[1,0,0] neg_lo:[1,0,0] neg_hi:[1,0,0]')
        else:
            for i in range(16): S(f'v_fma_f32 v{X+i}, -v{X+i}, s{sL2E}, v{mn}')
        for i in range(16): S(f'v_exp_f32 v{X+i}, v{X+i}')
        for i in range(8): S(f'v_cvt_pk_bf16_f32 v{d+8+i}, v{X+2*i}, v{X+2*i+1}')
        for hh in range(2):
            S(f'buffer_store_dwordx4 {v(d+8+4*hh,4)}, v{vL16}, {srd(SRD_WS)}, s{sT0 + c} offen offset:{2048 + hh*1024} sc1', tok='st')
    stamp(S, 6)

PHI = 16; PN = 144; KV = 208; XT = 240
vO = 3; vVW2 = [6, 7]
def out_addr(S, xt, off):
    S(f'v_and_b32 v8, 31, v{vLANE}\nv_mul_u32_u24 v{vO}, 896, v8\nv_lshrrev_b32 v8, 5, v{vLANE}\nv_lshl_add_u32 v{vO}, v8, 4, v{vO}')
    S(f's_and_b32 s{sT0}, s{sW4}, 1\ns_lshl_b32 s{sT1}, s{sTB}, 1\ns_add_u32 s{sT0}, s{sT0}, s{sT1}\ns_mul_i32 s{sFT}, s{sT0}, {32*896}')
    S(f's_lshr_b32 s{sT0}, s{sW4}, 1\ns_lshl_b32 s{sT0}, s{sT0}, 6\ns_add_u32 s{sFT}, s{sFT}, s{sT0}\ns_lshl_b32 s{sT0}, s{sCB}, 7\ns_add_u32 s{sFT}, s{sFT}, s{sT0}')
    S(f'buffer_load_dwordx4 {v(xt,4)}, v{vO}, {srd(SRD_X)}, s{sFT} offen offset:{off}')

def final_half(S, isA, acc, xt):
    own = acc + 48 + (8 if isA else 0)
    oth = acc + 48 + (0 if isA else 8)
    reg = A_REG if isA else F_REG; base = A_BASE if isA else 0
    ho = 2048 if isA else 0
    W = [16, 17, 18, 19]
    S(f's_mul_i32 s{sT3}, s{sW4}, {reg}')
    for vq in range(4):
        S(f's_xor_b32 s{sT0}, s{sW4}, {vq ^ 3}\ns_lshl_b32 s{sT0}, s{sT0}, 12\ns_add_u32 s{sT0}, s{sT0}, s{sT3}\ns_add_u32 s{sT0}, s{sT0}, {base}\nv_add_u32 v{W[vq]}, s{sT0}, v{vL16}')
    for i in range(2):
        S(f'ds_write_b128 v{W[3]}, {v(oth+4*i,4)} offset:{(2048 - ho) + i*1024}')
    for vq in range(3):
        for i in range(4):
            S(f'ds_write_b128 v{W[vq]}, {v(acc+16*vq+4*i,4)} offset:{i*1024}')
    S(f's_lshl_b32 s{sT2}, s{sW4}, 12\ns_add_u32 s{sT2}, s{sT2}, {ho}')
    for k in range(1, 4):
        S(f's_xor_b32 s{sT0}, s{sW4}, {k}\ns_mul_i32 s{sT0}, s{sT0}, {reg}\ns_add_u32 s{sT0}, s{sT0}, s{sT2}\ns_add_u32 s{sT0}, s{sT0}, {base}\nv_add_u32 v{19+k}, s{sT0}, v{vL16}')
    oreg = F_REG if isA else A_REG; obase = 0 if isA else A_BASE
    S(f's_add_u32 s{sT0}, s{sT2}, {obase}\nv_add_u32 v23, s{sT0}, v{vL16}\nv_add_u32 v24, {2*oreg}, v23')
    S(f'v_permlane32_swap_b32 v{xt}, v{xt+2}\nv_permlane32_swap_b32 v{xt+1}, v{xt+3}')
    E = 96
    for i in range(4): S(f'v_lshlrev_b32 v{E+2*i}, 16, v{xt+i}\nv_and_b32 v{E+2*i+1}, 0xffff0000, v{xt+i}')
    S('s_waitcnt lgkmcnt(0)\ns_barrier')
    stamp(S, 13 if isA else 14)
    O, P_ = 32, 64
    rdO = [f'ds_read_b128 {v(O+8*f+4*i,4)}, v{23 + f//2} offset:{(f%2)*oreg + i*1024}' for f in range(4) for i in range(2)]
    rdP = [f'ds_read_b128 {v(P_+8*k+4*i,4)}, v{20+k} offset:{i*1024}' for k in range(3) for i in range(2)]
    for r in (rdO + rdP if isA else rdP + rdO): S(r)
    def sumO():
        for i in range(8): S(f'v_add_f32 v{O+i}, v{O+i}, v{O+8+i}')
        for i in range(8): S(f'v_add_f32 v{O+16+i}, v{O+16+i}, v{O+24+i}')
        for i in range(8): S(f'v_add_f32 v{O+i}, v{O+i}, v{O+16+i}')
    def sumP():
        for i in range(8): S(f'v_add_f32 v{P_+i}, v{P_+i}, v{own+i}')
        for i in range(8): S(f'v_add_f32 v{P_+8+i}, v{P_+8+i}, v{P_+16+i}')
        for i in range(8): S(f'v_add_f32 v{P_+i}, v{P_+i}, v{P_+8+i}')
    G, Sg = (O, P_) if isA else (P_, O)
    (sumO if isA else sumP)()
    Q = 104
    for i in range(8): S(f'v_mul_f32 v{Q+i}, {hx(f2u(-L2E))}, v{G+i}')
    for i in range(8): S(f'v_exp_f32 v{Q+i}, v{Q+i}')
    (sumP if isA else sumO)()
    for i in range(8): S(f'v_add_f32 v{Q+i}, 1.0, v{Q+i}')
    for i in range(8): S(f'v_rcp_f32 v{Q+i}, v{Q+i}')
    for i in range(8): S(f'v_mul_f32 v{G+i}, v{G+i}, v{Sg+i}')
    for i in range(8): S(f'v_fmac_f32 v{E+i}, v{G+i}, v{Q+i}')
    for i in range(4): S(f'v_cvt_pk_bf16_f32 v{xt+i}, v{E+2*i}, v{E+2*i+1}')
    S(f'v_permlane32_swap_b32 v{xt}, v{xt+2}\nv_permlane32_swap_b32 v{xt+1}, v{xt+3}')
    S(f'buffer_store_dwordx4 {v(xt,4)}, v{vO}, {srd(SRD_OUT)}, s{sFT} offen offset:{32 if isA else 0}')

def c_publish(S, have_tag, tile):
    if tile:
        S.ext(c_signal(EV_END))
        out_addr(S, XT, 32)
        lane_consts_tr(S, vVW2, 8, 64, 'B')
        S(f's_mul_i32 s{sT3}, s{sW4}, {A_REG}\ns_add_u32 s{sT3}, s{sT3}, {A_BASE}')
        S(f's_xor_b32 s{sT0}, s{sW4}, 3\ns_lshr_b32 s{sT1}, s{sT0}, 1\ns_lshl_b32 s{sT1}, s{sT1}, 6\ns_and_b32 s{sT2}, s{sT0}, 1\ns_lshl_b32 s{sT2}, s{sT2}, 16')
        S(f'v_add_u32 v{vVW2[0]}, s{sT3}, v{vVW2[0]}\nv_xor_b32 v{vVW2[0]}, s{sT1}, v{vVW2[0]}\nv_xor_b32 v{vVW2[1]}, 64, v{vVW2[0]}')
        S(f'v_add_u32 v10, s{sT2}, v{vL16}\nv_xor_b32 v11, 0x10000, v10')
    S(f's_lshl_b32 s{sT0}, s{sRB}, 1\ns_lshr_b32 s{sT1}, s{sW4}, 1\ns_add_u32 s{sT0}, s{sT0}, s{sT1}\ns_lshl_b32 s{sT0}, s{sT0}, 15\ns_lshl_b32 s{sT1}, s{sROLE}, 8\ns_add_u32 s{sT0}, s{sT0}, s{sT1}')
    S(f's_and_b32 s{sT1}, s{sW4}, 1\ns_lshl_b32 s{sT1}, s{sT1}, 7\ns_add_u32 s{sT0}, s{sT0}, s{sT1}\ns_add_u32 s{sT0}, s{sT0}, {WS_FH}')
    if not have_tag: tag_get(S, vTAG)
    S.wait('st')
    flag_store(S, sT0, TT, 7, 12)
    stamp(S, 7)

W2R = 16; FACC = 144; HR = 208
vLW, vLS, vL2 = 3, 4, 5
def swz_voff(S, dst, pitch, tmp):
    S(f'v_lshrrev_b32 v{tmp}, 3, v{vLANE}\nv_mul_lo_u32 v{dst}, v{tmp}, {pitch}')
    S(f'v_bfe_u32 v{tmp}, v{vLANE}, 4, 1\nv_lshlrev_b32 v{tmp}, 2, v{tmp}\nv_and_b32 v{tmp+1}, 7, v{vLANE}\nv_xor_b32 v{tmp}, v{tmp}, v{tmp+1}\nv_lshl_add_u32 v{dst}, v{tmp}, 4, v{dst}')
def flat(l): return [x for y in l for x in y]
def sprinkle(main, units):
    out = []; n = len(main); k = len(units); j = 0
    for i, x in enumerate(main):
        while j < k and (j + 0.5) * n / max(k, 1) <= i and x.kind in ('valu', 'trans'):
            out += units[j]; j += 1
        out.append(x)
    return out + flat(units[j:])

def l_phase1(S, ffn, tile):
    sBLK, sP64, sP448, sP32, sW2, sK2 = sU0, sU1, sU2, sU3, sU4, sU5
    S(f's_mul_i32 s{sFS}, s{sW4}, s{sPITCH}\ns_lshl_b32 s{sFS}, s{sFS}, 3')
    S(f's_lshl_b32 s{sT3}, s{sW4}, 10\ns_lshl_b32 s{sP64}, s{sPITCH}, 6\ns_lshl_b32 s{sP32}, s{sPITCH}, 5\ns_mul_i32 s{sP448}, s{sPITCH}, 448\ns_mul_i32 s{sBLK}, s{sP64}, s{sROT1}')
    def dma_half(h):
        units = []
        st = h // 2
        for k in range(7):
            St = Stream()
            kk = (h % 2) * 7 + k
            St(f's_add_u32 m0, s{sT3}, {(half_base(h) + k*4096) if h != 1 else (SPARE + k*4096 if k < 4 else (k - 4)*4096)}')
            if kk % 2 == 0:
                St(f's_add_u32 s{sT0}, s{sBLK}, s{sFS}\ns_add_u32 s{sT0}, s{sT0}, s{sCOL[st]}')
            else:
                if k == 0: St(f's_add_u32 s{sT0}, s{sBLK}, s{sFS}\ns_add_u32 s{sT0}, s{sT0}, s{sCOL[st]}')
                St(f's_add_u32 s{sT0}, s{sT0}, s{sP32}')
                wrap_inc(St, sBLK, f's{sP64}', f's{sP448}')
            St(f'buffer_load_dwordx4 v{vLW}, {srd(SRD_W)}, s{sT0} offen lds', tok=('h', h if not (h == 1 and k >= 4) else CN_H1B))
            units.append(St.l)
        return units
    def sig(h):
        S.wait(('h', h))
        if h < 5: stamp(S, 2 + h)
        l_signal(S, h)
    if Opt.cpf:
        lab = newlab('pc')
        S(f's_getpc_b64 s[72:73]\n{lab}:\ns_sub_u32 s72, s72, {lab} - {NAME}\ns_subb_u32 s73, s73, 0')
        S(f's_lshl_b32 s{sT0}, s{sI}, 2\ns_add_u32 s{sT0}, s{sT0}, s{sW4}\ns_lshl_b32 s{sT0}, s{sT0}, 2\nv_add_u32 v8, s{sT0}, v{vLANE}\nv_lshlrev_b32 v8, 7, v8\nv_min_u32 v8, L_end - {NAME}, v8')
        S(f's_mov_b64 exec, 15\nglobal_load_dword v200, v8, s[72:73]\ns_mov_b64 exec, -1')
    S('s_barrier')
    S.ext(flat(dma_half(0)))
    if not ffn:
        S(f's_add_u32 m0, s{sT3}, {WPHI_L}\ns_mul_i32 s{sT0}, s{sIDX}, 3136\ns_add_u32 s{sT0}, s{sT0}, s{sT3}\ns_cmp_eq_u32 s{sW4}, 3\ns_cselect_b32 exec_hi, 0, -1')
        S(f'buffer_load_dwordx4 v{vL16}, {srd(SRD_WPHI)}, s{sT0} offen lds', tok=('h', 0))
        S('s_mov_b64 exec, -1')
    h1 = dma_half(1)
    S.ext(flat(h1[:4]))
    stamp(S, 'e5')
    lab = newlab('nt')
    S(f's_or_b32 s{sT0}, s2, s{sW4}\ns_cmp_lg_u32 s{sT0}, 0\ns_cbranch_scc1 {lab}')
    raw(S, f's_mov_b32 s{sT0}, {WS_TAG}\nv_mov_b32 v9, 0\ns_mov_b64 exec, 1\nbuffer_load_dword v8, v9, {srd(SRD_WS)}, s{sT0} offen sc1\ns_waitcnt vmcnt(0)\n'
           f'v_add_u32 v8, 1, v8\nv_max_u32 v8, 1, v8\ns_nop 1\nbuffer_store_dword v8, v9, {srd(SRD_WS)}, s{sT0} offen sc1\nbuffer_store_dword v8, v9, {srd(SRD_DBG)}, 0 offen sc1\ns_waitcnt vmcnt(0)\ns_mov_b64 exec, -1\n{lab}:')
    S(f'v_lshlrev_b32 v{vLC}, 2, v{vLANE}\nv_add_u32 v{vLC}, {CTL}, v{vLC}\nv_mov_b32 v{vLONE}, 1\nv_mov_b32 v{vLP+4}, {CTL}')
    if ffn:
        S(f'v_lshrrev_b32 v8, 2, v{vLANE}\nv_mul_u32_u24 v{vLS}, 3584, v8\nv_and_b32 v8, 3, v{vLANE}\nv_lshl_add_u32 v{vLS}, v8, 4, v{vLS}')
    else:
        S(f'v_and_b32 v8, 31, v{vLANE}\ns_lshl_b32 s{sT0}, s{sW4}, 5\nv_add_u32 v8, s{sT0}, v8\nv_lshrrev_b32 v9, 5, v{vLANE}\nv_lshlrev_b32 v9, 3, v9')
        S(f'v_mul_u32_u24 v{vLPW}, 112, v8\nv_add_u32 v{vLPW}, v{vLPW}, v9')
        S(f'v_cndmask_b32 v{vLMK}, 1.0, 0, {HI}\nv_mov_b32 v{vLL2E}, s{sL2E}')
        trb(S, vLWP, 2, 56, 8)
        S(f'v_add_u32 v{vLWP}, {WPHI_L}, v{vLWP}')
    S(f's_lshl_b32 s{sT0}, s{sW4}, 12\ns_add_u32 s{sT0}, s{sT0}, {SPARE}\nv_add_u32 v{vLRD}, s{sT0}, v{vL16}')
    if tile:
        S(f's_mov_b32 s{sT1}, 896'); swz_voff(S, vL2, f's{sT1}', 8)
        lane_consts_tr(S, vVW2, 8, 64, 'B')
        S(f's_xor_b32 s{sT1}, s{sW4}, 3\ns_lshr_b32 s{sT1}, s{sT1}, 1\ns_lshl_b32 s{sT1}, s{sT1}, 6\nv_xor_b32 v{vVW2[0]}, s{sT1}, v{vVW2[0]}\nv_xor_b32 v{vVW2[1]}, 64, v{vVW2[0]}')
        S(f's_mul_i32 s{sW2}, s{sW4}, {448*896}\ns_lshl_b32 s{sT2}, s{sCB}, 7\ns_add_u32 s{sW2}, s{sW2}, s{sT2}\ns_mul_i32 s{sK2}, s{sROT2}, {16*896}')
        S(f'v_add_u32 v13, {8*896}, v{vL2}')
    def w2stage(base, stride, ns):
        if not tile: return
        S(f's_mul_i32 s{sT2}, s{sW4}, {stride}\ns_add_u32 s{sT2}, s{sT2}, {base}\nv_add_u32 v9, s{sT2}, v{vVW2[0]}\nv_add_u32 v10, s{sT2}, v{vVW2[1]}')
        def dma(ks):
            o = (ks % ns) * 2048
            S(f's_add_u32 m0, s{sT2}, {o}\ns_add_u32 s{sT1}, s{sW2}, s{sK2}')
            if ks >= ns: S.wait(('wr', ks - ns))
            S(f'buffer_load_dwordx4 v{vL2}, {srd(SRD_W2)}, s{sT1} offen lds', tok=('w', ks))
            S(f's_add_u32 m0, s{sT2}, {o + 1024}')
            wrap_inc(S, sK2, 16 * 896, 448 * 896)
            S(f'buffer_load_dwordx4 v13, {srd(SRD_W2)}, s{sT1} offen lds', tok=('w', ks))
        d = ns - 1
        for ks in range(min(d, 16)): dma(ks)
        for ks in range(16):
            if ks + d < 16: dma(ks + d)
            S.wait(('w', ks))
            o = (ks % ns) * 2048; b = W2R + 8 * ks
            for c in range(2):
                for u in range(2):
                    S(f'ds_read_b64_tr_b16 {v(b + 4*c + 2*u, 2)}, v{9+c} offset:{o + 1024*u}', tok=('wr', ks))
            if not ffn and ks in (0, 8): stamp(S, 3 + ks // 8)
    def w2raw(lo, hi):
        if not tile: return
        for ks in range(lo, hi):
            S(f's_add_u32 s{sT1}, s{sW2}, s{sK2}')
            S(f'buffer_load_dwordx4 {v(W2R+8*ks,4)}, v{vL2}, {srd(SRD_W2)}, s{sT1} offen')
            S(f'buffer_load_dwordx4 {v(W2R+8*ks+4,4)}, v13, {srd(SRD_W2)}, s{sT1} offen')
            wrap_inc(S, sK2, 16 * 896, 448 * 896)
    def tr(lo, hi):
        if not tile: return
        if lo == 0: S(f's_lshl_b32 s{sT0}, s{sW4}, 12\ns_add_u32 s{sT0}, s{sT0}, {SPARE}\nv_add_u32 v9, s{sT0}, v{vVW2[0]}\nv_add_u32 v10, s{sT0}, v{vVW2[1]}')
        for ks in range(lo, hi):
            o = (ks % 2) * 2048; b = W2R + 8 * ks
            S(f'ds_write_b128 v{vLRD}, {v(b,4)} offset:{o}\nds_write_b128 v{vLRD}, {v(b+4,4)} offset:{o+1024}')
            for c in range(2):
                for u in range(2):
                    S(f'ds_read_b64_tr_b16 {v(b + 4*c + 2*u, 2)}, v{9+c} offset:{o + 1024*u}')
    DUM = 200
    def pf(srd_, voff, soff, n):
        S(f's_mov_b32 exec_hi, {hex((1 << (n - 32)) - 1)}\nbuffer_load_dword v{DUM}, v{voff}, {srd(srd_)}, s{soff} offen\ns_mov_b32 exec_hi, -1', tok='pf')
    if Opt.wpf:
        S(f'v_mul_lo_u32 v14, v{vLANE}, s{sPITCH}\ns_and_b32 s{sT0}, s{sI}, 3\ns_mul_i32 s{sT0}, s{sT0}, 112')
        if ffn:
            S(f's_mul_i32 s{sT0}, s{sT0}, s{sPITCH}\ns_lshl_b32 s{sT1}, s{sW4}, 7\ns_add_u32 s{sT1}, s{sT1}, s{sCOL[0]}\ns_cmp_eq_u32 s{sW4}, 3\ns_cselect_b32 s{sT1}, s{sCOLS}, s{sT1}\ns_add_u32 s{sT0}, s{sT0}, s{sT1}')
            pf(SRD_W, 14, sT0, 56)
            S(f's_add_u32 s{sT0}, s{sT0}, {56*3584}')
            pf(SRD_W, 14, sT0, 56)
        else:
            S(f's_lshr_b32 s{sT1}, s{sW4}, 1\ns_mul_i32 s{sT1}, s{sT1}, 56\ns_add_u32 s{sT0}, s{sT0}, s{sT1}\ns_mul_i32 s{sT0}, s{sT0}, s{sPITCH}\ns_and_b32 s{sT1}, s{sW4}, 1\ns_mul_i32 s{sT1}, s{sT1}, 124\ns_add_u32 s{sT0}, s{sT0}, s{sT1}')
            for st in range(3):
                S(f's_add_u32 s{sT1}, s{sT0}, s{sCOL[st]}')
                pf(SRD_W, 14, sT1, 56)
    def w2_prefetch():
        if not Opt.w2pf: return
        S(f'v_lshlrev_b32 v14, 7, v{vLANE}\ns_lshl_b32 s{sT0}, s{sI}, 2\ns_add_u32 s{sT0}, s{sT0}, s{sW4}\ns_mul_i32 s{sT1}, s{sT0}, {98*128}')
        pf(SRD_W2, 14, sT1, 49)
        S(f's_add_u32 s{sT1}, s{sT1}, {49*128}')
        pf(SRD_W2, 14, sT1, 49)
        S(f's_mul_i32 s{sT1}, s{sT0}, {25*128}\ns_mov_b64 exec, 0x1ffffff\nbuffer_load_dword v{DUM}, v14, {srd(SRD_WO)}, s{sT1} offen\ns_mov_b64 exec, -1', tok='pf')
    def gpf(which):
        if not Opt.gpf: return
        S(f's_lshl_b32 s{sT0}, s2, 2\ns_add_u32 s{sT0}, s{sT0}, s{sW4}\nv_lshlrev_b32 v14, 7, v{vLANE}')
        S(f's_mov_b64 s[72:73], s[66:67]\ns_mov_b32 s74, {448*2688}\ns_mov_b32 s75, 0x20000') if False else None
        for (lo, n, size) in ((sKA_QKV, 10, 448*2688), (sKA_W1, 13, 448*3584), (SRD_W2, 13, None), (SRD_WO, 4, None))[which]:
            if size:
                S(f's_mov_b64 s[76:77], s[{lo}:{lo+1}]\ns_mov_b32 s78, {size}\ns_mov_b32 s79, 0x20000'); d = 76
            else: d = lo
            S(f's_mul_i32 s{sT1}, s{sT0}, {n*128}\ns_mov_b64 exec, {hex((1 << n) - 1)}\nbuffer_load_dword v{DUM}, v14, {srd(d)}, s{sT1} offen\ns_mov_b64 exec, -1', tok='pf')
    if Opt.gpf == 2: gpf(slice(0, 2))
    def wo_prefetch():
        S(f'v_lshlrev_b32 v14, 7, v{vLANE}\ns_lshl_b32 s{sT0}, s{sI}, 2\ns_add_u32 s{sT0}, s{sT0}, s{sW4}')
        S(f's_mul_i32 s{sT1}, s{sT0}, {25*128}\ns_mov_b64 exec, 0x1ffffff\nbuffer_load_dword v{DUM}, v14, {srd(SRD_WO)}, s{sT1} offen\ns_mov_b64 exec, -1', tok='pf')
    l_wait(S, EV_XFREE)
    stamp(S, 1)
    S(f's_add_u32 s{sT0}, s{sBLK}, s{sFS}\ns_add_u32 s{sT0}, s{sT0}, s{sCOL[0]}')
    S.ext(flat(h1[4:])); sig(0)
    h2 = dma_half(2)
    S.ext(flat(h2[:3])); sig(1); S.ext(flat(h2[3:5])); sig(CN_H1B); S.ext(flat(h2[5:]))
    h3 = dma_half(3)
    S.ext(flat(h3[:3])); sig(2); S.ext(flat(h3[3:]))
    if not ffn: tag_fetch_l0(S)
    h4 = dma_half(4)
    S.ext(flat(h4[:3])); sig(3); S.ext(flat(h4[3:]))
    gpf(slice(2, 4))
    if ffn:
        sig(4)
        l_wait(S, EV_C0)
        S.ext(flat(dma_half(5)))
        tag_fetch_l0(S)
        sig(5)
        l_wait(S, EV_C1)
        S(f's_lshl_b32 s{sFS}, s{sFS}, 1\ns_add_u32 s{sFS}, s{sFS}, s{sCOLS}')
        for k in range(7):
            S(f's_add_u32 m0, s{sT3}, {k*4096}\ns_add_u32 s{sT0}, s{sBLK}, s{sFS}')
            wrap_inc(S, sBLK, f's{sP64}', f's{sP448}')
            S(f'buffer_load_dwordx4 v{vLS}, {srd(SRD_W)}, s{sT0} offen lds', tok=('h', 6))
        sig(6)
        wo_prefetch()
        l_wait(S, EV_C3)
        w2stage(SLOT, 14 * K1, 7)
        stamp(S, 11)
    else:
        l_wait(S, EV_C0)
        S.ext(flat(dma_half(5)))
        wo_prefetch()
        kA, kB, KA = 194, 195, LX
        trb(S, kA, 3, 112, 8); trb(S, kB, 3, 72, 8)
        S(f's_lshr_b32 s{sT0}, s{sW4}, 1\ns_and_b32 s{sT1}, s{sW4}, 1\ns_mul_i32 s{sT2}, s{sT0}, 14336\ns_mul_i32 s{sT1}, s{sT1}, 56\ns_add_u32 s{sT2}, s{sT2}, s{sT1}\nv_add_u32 v{kA}, s{sT2}, v{kA}')
        S(f's_mul_i32 s{sT2}, s{sT0}, 9216\ns_add_u32 s{sT2}, s{sT2}, {SLOT}\nv_add_u32 v{kB}, s{sT2}, v{kB}')
        S(f's_lshl_b32 s{sFT}, s{sIDX}, 2\ns_add_u32 s{sFT}, s{sFT}, s{sW4}\ns_lshl_b32 s{sFS}, s{sFT}, 11\ns_lshl_b32 s{sFT}, s{sFT}, 4\ns_add_u32 s{sFT}, s{sFT}, s{sRB}\ns_lshl_b32 s{sFT}, s{sFT}, 12\ns_add_u32 s{sFT}, s{sFT}, {WS_KVP}')
        S(f's_lshl_b32 s{sT0}, s{sRB}, 7\ns_add_u32 s{sFS}, s{sFS}, s{sT0}\ns_add_u32 s{sFS}, s{sFS}, {WS_FP}')
        tag_prefetch(S, vTAG); tag_get(S, vTAG)
        sig(4)
        w2raw(0, Opt.aw2)
        l_wait(S, EV_PK)
        stamp(S, 12)
        if Opt.lprio: S('s_setprio 1')
        S.ext(softmax_k(None))
        l_signal(S, CN_PH)
        stamp(S, 11)
        sig(5)
        w2raw(Opt.aw2, 16)
        tr(0, Opt.tr1)
        stamp(S, 5)
        if Opt.kprio: S('s_setprio 1')
        l_wait(S, EV_V)
        S.ext(cnt_read(CN_PH, vLP)); S.ext(cnt_check(CN_PH, vLP))
        for ts in range(8):
            b = HR + 8 * (ts % 6)
            if ts >= 6: S(f'v_mfma_f32_32x32x16_bf16 {v(KA,16)}, {v(b,4)}, {v(b+4,4)}, {"0" if ts == 6 else v(KA,16)}')
            for u in range(2): S(f'ds_read_b64_tr_b16 {v(b + 2*u, 2)}, v{kA} offset:{(16*ts + 4*u)*112}')
            for u in range(2): S(f'ds_read_b64_tr_b16 {v(b + 4 + 2*u, 2)}, v{kB} offset:{(16*ts + 4*u)*72}')
        for ts in range(2, 8):
            b = HR + 8 * (ts % 6)
            S(f'v_mfma_f32_32x32x16_bf16 {v(KA,16)}, {v(b,4)}, {v(b+4,4)}, {v(KA,16)}')
        G_ = HR
        for i in range(8): S(f'v_mov_b32 v{G_+2*i+1}, s{sTAG}')
        for i in range(8): S(f'v_cvt_pk_bf16_f32 v{G_+2*i}, v{KA+2*i}, v{KA+2*i+1}')
        for j in range(4):
            S(f'buffer_store_dwordx4 {v(G_+4*j,4)}, v{vL16}, {srd(SRD_WS)}, s{sFT} offen offset:{j*1024} sc1', tok='kvp')
        if Opt.hint: flag_store(S, sFS, LE)
        S('s_setprio 0')
        stamp(S, 1)
        if Opt.ackdiag: S.wait('kvp'); stamp(S, 2); S('s_waitcnt vmcnt(0)')
        tr(Opt.tr1, 16)
        stamp(S, 6)
    if ffn: tag_prefetch(S, vTAG); tag_get(S, vTAG)
    if tile:
        l_signal(S, CN_LT)
        l_wait(S, EV_END)
        S.ext(cnt_read(CN_LT, vLP)); S.ext(cnt_check(CN_LT, vLP))
        stamp(S, 7)
        S(f's_mul_i32 s{sT3}, s{sW4}, {F_REG}')
        for i in range(12):
            S(f's_add_u32 m0, s{sT3}, {i*2048}\ns_add_u32 s{sT1}, s{sW2}, s{sK2}\ns_waitcnt vmcnt({Opt.bthr})')
            S(f'buffer_load_dwordx4 v{vL2}, {srd(SRD_W2)}, s{sT1} offen lds', tok='w2')
            S(f's_add_u32 m0, s{sT3}, {i*2048 + 1024}')
            wrap_inc(S, sK2, 16 * 896, 448 * 896)
            S(f'buffer_load_dwordx4 v13, {srd(SRD_W2)}, s{sT1} offen lds', tok='w2')
        stamp(S, 13)
        stamp(S, 14)
        S(f's_lshl_b32 s{sT2}, s{sW4}, 14\ns_add_u32 s{sT2}, s{sT2}, {A_BASE}\ns_lshl_b32 s{sU0}, s{sCB}, 7')
        for hd in range(0 if (Opt.nodma or Opt.nowo) else 4):
            S(f's_add_u32 s{sT0}, s{sCB}, {hd}\ns_and_b32 s{sT0}, s{sT0}, 3\ns_lshl_b32 s{sT1}, s{sW4}, 2\ns_add_u32 s{sT0}, s{sT0}, s{sT1}\ns_mul_i32 s{sT0}, s{sT0}, {28*896}\ns_add_u32 s{sT0}, s{sT0}, s{sU0}')
            for i in range(4):
                S(f's_add_u32 m0, s{sT2}, {hd*4096 + i*1024}\ns_waitcnt vmcnt({Opt.bthr})')
                if i == 2: S(f's_add_u32 s{sT0}, s{sT0}, {16*896}')
                if hd == 3 and i == 3: S(f's_cmp_eq_u32 s{sW4}, 3\ns_cselect_b32 exec_hi, 0, -1')
                S(f'buffer_load_dwordx4 v{vL2 if i % 2 == 0 else 13}, {srd(SRD_WO)}, s{sT0} offen lds', tok='wo')
        S('s_mov_b64 exec, -1')

def hflag_poll(S):
    S(f'v_lshlrev_b32 v8, 7, v{vLANE}')
    S(f's_lshl_b32 s{sT0}, s{sTB}, 3\ns_add_u32 s{sT0}, s{sT0}, s{sCB}\ns_lshl_b32 s{sT0}, s{sT0}, 12\ns_lshl_b32 s{sT1}, s{sW4}, 9\ns_add_u32 s{sT0}, s{sT0}, s{sT1}\ns_add_u32 s{sT0}, s{sT0}, {WS_FH}')
    poll(S, 8, sT0, 4, 9)

def f_phase2(S):
    stamp(S, 10)
    if Opt.fprio: S('s_setprio 1')
    sK = sU1
    S(f'v_add_u32 v10, s{sT3}, v{vVW2[1]}\nv_add_u32 v14, s{sT3}, v{vVW2[0]}')
    out_addr(S, 4, 0)
    S(f's_mul_i32 s{sU2}, s{sTB}, {224*K1}\ns_mul_i32 s{sT2}, s{sW4}, {28*K1}\ns_add_u32 s{sU2}, s{sU2}, s{sT2}\ns_lshl_b32 s{sK}, s{sROT2}, 10')
    S(f's_and_b32 s{sT2}, s{sW4}, 1\ns_mul_i32 s{sT2}, s{sT2}, {112*K1}\nv_add_u32 v13, s{sT2}, v{vL16}\ns_sub_u32 s{sT2}, {112*K1}, s{sT2}\nv_add_u32 v15, s{sT2}, v{vL16}')
    hflag_poll(S)
    S(f'v_mov_b32 v8, 4\nds_write_b32 v{vCTL}, v8 offset:{128 + 16*CN_WO}\nv_mov_b32 v9, v14')
    stamp(S, 8)
    hdst = {}
    for ks in range(28):
        if ks < 6: hdst[ks] = HR + 8 * ks
        elif ks < 16: hdst[ks] = W2R + 8 * (ks - 6)
        else: hdst[ks] = hdst[ks - 12]
    adst = {ks: (W2R + 8 * ks if ks < 16 else W2R + 8 * (10 + (ks - 16) % 3)) for ks in range(28)}
    def hload(ks):
        S(f's_add_u32 s{sT0}, s{sU2}, s{sK}')
        S(f'buffer_load_dwordx4 {v(hdst[ks],4)}, v15, {srd(SRD_WS)}, s{sT0} offen sc1')
        S(f'buffer_load_dwordx4 {v(hdst[ks]+4,4)}, v13, {srd(SRD_WS)}, s{sT0} offen sc1')
        if ks < 27: wrap_inc(S, sK, 1024, 28 * K1)
    def aread(ks):
        o = (ks - 16) * 2048; b = adst[ks]
        for c in range(2):
            for u in range(2):
                S(f'ds_read_b64_tr_b16 {v(b + 4*c + 2*u, 2)}, v{9+c} offset:{o + 1024*u}')
    for ks in range(6): hload(ks)
    nxt = 6
    for ks in range(28):
        for c in range(2):
            for tt2 in range(2):
                acc = FACC + 16 * (2 * c + tt2)
                S(f'v_mfma_f32_32x32x16_bf16 {v(acc,16)}, {v(adst[ks]+4*c,4)}, {v(hdst[ks]+4*tt2,4)}, {"0" if ks == 0 else v(acc,16)}')
                if c == 0 and tt2 == 0 and 16 <= ks + 2 < 28: aread(ks + 2)
        if Opt.fdiag and ks in (0, 4, 8, 12, 16, 22): stamp(S, 1 + (0, 4, 8, 12, 16, 22).index(ks))
        while nxt < 28 and ((nxt < 16 and nxt - 6 <= ks) or (nxt >= 16 and nxt - 12 <= ks)):
            hload(nxt); nxt += 1
    stamp(S, 9)
    final_half(S, False, FACC, 4)

def a_phase2(S):
    for hd in range(4):
        S(f's_add_u32 s{sU0+hd}, s{sCB}, {hd}\ns_and_b32 s{sU0+hd}, s{sU0+hd}, 3\ns_lshl_b32 s{sU0+hd}, s{sU0+hd}, 12')
    S(f's_lshl_b32 s{sU4}, s{sTB}, 17\ns_lshl_b32 s{sT2}, s{sW4}, 14\ns_add_u32 s{sU4}, s{sU4}, s{sT2}\ns_add_u32 s{sU4}, s{sU4}, {WS_PQ}')
    S(f's_add_u32 s{sU5}, s{sT2}, {WS_KVF}')
    S(f'v_lshlrev_b32 v8, 7, v{vLANE}\ns_lshl_b32 s{sT1}, s{sXCD}, 12\ns_add_u32 s{sT1}, s{sT1}, {WS_FK}\nv_lshlrev_b32 v13, 2, v{vLANE}\nv_add_u32 v13, {CTL}, v13\nv_mov_b32 v9, 4\nv_lshlrev_b32 v5, 3, v{vLANE}')
    if Opt.aprio: S('s_setprio 1')
    S('s_waitcnt vmcnt(0)')
    S.ext(cnt_read(CN_WO, vCT)); S.ext(cnt_check(CN_WO, vCT, 1))
    stamp(S, 8)
    def phiload(hd):
        t_ = Stream()
        t_(f's_add_u32 s{sT2}, s{sU4}, s{sU0+hd}')
        for tt2 in range(2):
            t = hd * 2 + tt2
            for st in range(4):
                t_(f'buffer_load_dwordx4 {v(PHI+16*t+4*st,4)}, v{10 + tt2}, {srd(SRD_WS)}, s{sT2} offen offset:{st*1024} sc1')
        return t_.l
    def kvload(hd):
        t = Stream()
        t(f's_add_u32 s{sT0}, s{sU5}, s{sU0+hd}')
        for st in range(4):
            for hh in range(2):
                t(f'buffer_load_dwordx2 {v(KV+16*(hd%2)+4*st+2*hh,2)}, v5, {srd(SRD_WS)}, s{sT0} offen offset:{st*1024 + hh*512} sc1')
        return t.l
    def watch(load, cn, sleep):
        again, oth, done = newlab('kv'), newlab('kv'), newlab('kv')
        S(f's_mov_b32 s{sBND}, 0\ns_cmp_lg_u32 s{sW4}, 0\ns_cbranch_scc1 {oth}')
        raw(S, f'{again}:\n{load}\ns_waitcnt vmcnt(0)\nv_cmp_ne_u32 vcc, s{sTAG}, v4\ns_nop 1\ns_cbranch_vccz {done}\n'
               f's_add_u32 s{sBND}, s{sBND}, 1\ns_cmp_gt_u32 s{sBND}, 0x20000\ns_cbranch_scc1 {done}\ns_sleep {sleep}\ns_branch {again}\n'
               f'{done}:\ns_mov_b64 exec, 15\nds_write_b32 v13, v9 offset:{128 + 16*cn}\ns_mov_b64 exec, -1\n{oth}:')
        S(f's_mov_b32 s{sU0+8}, s{sBND}')
        S.ext(cnt_read(cn, vCT)); S.ext(cnt_check(cn, vCT, 1))
    S(f's_lshl_b32 s{sT0}, s{sTB}, 3\ns_add_u32 s{sT0}, s{sT0}, s{sCB}\ns_lshl_b32 s{sT0}, s{sT0}, 12\ns_add_u32 s{sT0}, s{sT0}, {WS_FH + 2048}')
    watch(f's_mov_b64 exec, 0xffff\nbuffer_load_dword v4, v8, {srd(SRD_WS)}, s{sT0} offen sc1', CN_PQ, Opt.ksleep)
    stamp(S, 9)
    for hd in range(4):
        if hd >= 1 and Opt.athr: S(f's_waitcnt vmcnt({Opt.athr})')
        S.ext(phiload(hd))
    watch(f's_mov_b64 exec, 0xffffffff\nbuffer_load_dword v4, v8, {srd(SRD_WS)}, s{sT1} offen sc1', CN_KV, Opt.ksleep)
    stamp(S, 10)
    if Opt.diag == 2 and Opt.fine < 0: S(f's_mul_i32 s{STAMP0+14}, s{sU0+8}, 1000\ns_add_u32 s{STAMP0+14}, s{STAMP0+14}, s{STAMP0}')
    S.ext(kvload(0)); S.ext(kvload(1))
    def num(t):
        hd = t // 2; kb = KV + 16 * (hd % 2); aP = PN + 32 * (t % 2); aN = aP + 16; ph = PHI + 16 * t
        return [Ins(f'v_mfma_f32_32x32x16_bf16 {v(aP,16)}, {v(kb,4)}, {v(ph,4)}, 0'),
                Ins(f'v_mfma_f32_32x32x16_bf16 {v(aN,16)}, {v(kb+8,4)}, {v(ph+8,4)}, 0'),
                Ins(f'v_mfma_f32_32x32x16_bf16 {v(aP,16)}, {v(kb+4,4)}, {v(ph+4,4)}, {v(aP,16)}'),
                Ins(f'v_mfma_f32_32x32x16_bf16 {v(aN,16)}, {v(kb+12,4)}, {v(ph+12,4)}, {v(aN,16)}')]
    def onorm(t):
        S = Stream()
        aP = PN + 32 * (t % 2); aN = aP + 16; ph = PHI + 16 * t
        rP, rN, dn, a, b = TT, TT + 1, TT + 2, TT + 3, TT + 4
        S(f'v_rcp_f32 v{rP}, v{aP+13}\nv_rcp_f32 v{rN}, v{aN+13}')
        S(f'v_mov_b32 v{dn}, {hx(f2u(1e-6))}\nv_fmac_f32 v{dn}, v{aP+12}, v{rP}\nv_fmac_f32 v{dn}, v{aN+12}, v{rN}\nv_rcp_f32 v{dn}, v{dn}')
        S(f'v_nop\nv_mul_f32 v{rP}, v{rP}, v{dn}\nv_mul_f32 v{rN}, v{rN}, v{dn}\nv_mov_b32 v{a}, v{rP}\nv_mov_b32 v{b}, v{rN}')
        S(f'v_permlane32_swap_b32 v{rP}, v{a}\nv_permlane32_swap_b32 v{rN}, v{b}')
        for i in range(16): S(f'v_mul_f32 v{aP+i}, v{aP+i}, v{a}')
        for i in range(16): S(f'v_fmac_f32 v{aP+i}, v{aN+i}, v{b}')
        for i in range(8): S(f'v_cvt_pk_bf16_f32 v{ph+i}, v{aP+2*i}, v{aP+2*i+1}')
        S(f'v_cndmask_b32 v{ph+6}, v{ph+6}, 0, {HI}\nv_cndmask_b32 v{ph+7}, v{ph+7}, 0, {HI}')
        return S.l
    S.ext(num(0))
    for t in range(8):
        o = onorm(t)
        if Opt.fdiag and t in (0, 1, 2, 4, 6): stamp(S, 1 + (0, 1, 2, 4, 6).index(t))
        if t + 1 < 8:
            m = num(t + 1)
            S.ext(m[0:2]); S.ext(o[0:13]); S.ext(m[2:3]); S.ext(o[13:22]); S.ext(m[3:4])
            if t % 2 == 0 and t // 2 + 2 < 4: S.ext(kvload(t // 2 + 2))
            S.ext(o[22:])
        else:
            S.ext(o)
    stamp(S, 11)
    SA = PN
    def woread(n):
        hd, st = n // 2, n % 2; b = KV + 8 * (n % 4)
        for c in range(2):
            for u in range(2):
                S(f'ds_read_b64_tr_b16 {v(b+4*c+2*u,2)}, v{vVW2[c]} offset:{(32*hd + 16*st + 8*u)*128}')
    woread(0); woread(1)
    for n in range(8):
        hd, st = n // 2, n % 2; b = KV + 8 * (n % 4)
        for c in range(2):
            for tt2 in range(2):
                acc = SA + 16 * (2 * c + tt2); ob = PHI + 16 * (2 * hd + tt2) + 4 * st
                S(f'v_mfma_f32_32x32x16_bf16 {v(acc,16)}, {v(b+4*c,4)}, {v(ob,4)}, {"0" if n == 0 else v(acc,16)}')
                if c == 0 and tt2 == 0 and n + 2 < 8: woread(n + 2)
    stamp(S, 12)
    final_half(S, True, SA, XT)

def reducer(S):
    S(f'v_lshlrev_b32 v8, 7, v{vLANE}\ns_lshl_b32 s{sT0}, s{sTB}, 11\ns_add_u32 s{sT0}, s{sT0}, {WS_FP}')
    S(f's_lshl_b32 s{sU2}, s{sTB}, 16\ns_lshl_b32 s{sT2}, s{sW4}, 10\ns_add_u32 s{sU2}, s{sU2}, s{sT2}\ns_add_u32 s{sU2}, s{sU2}, {WS_KVP}')
    S(f's_lshl_b32 s{sU1}, s{sTB}, 1\ns_lshr_b32 s{sT1}, s{sW4}, 1\ns_add_u32 s{sU1}, s{sU1}, s{sT1}\ns_lshl_b32 s{sU1}, s{sU1}, 10\ns_and_b32 s{sT1}, s{sW4}, 1\ns_lshl_b32 s{sT1}, s{sT1}, 9\ns_add_u32 s{sU1}, s{sU1}, s{sT1}\ns_add_u32 s{sU1}, s{sU1}, {WS_KVF}')
    S(f's_lshl_b32 s{sU0}, s{sTB}, 7\ns_add_u32 s{sU0}, s{sU0}, {WS_FK}')
    if Opt.hint:
        o_ = newlab('ro')
        S(f's_waitcnt vmcnt(0)\ns_cmp_lg_u32 s{sW4}, 0\ns_cbranch_scc1 {o_}')
        poll(S, 8, sT0, 16, 9, Opt.rsleep)
        S(f'v_mov_b32 v9, 4\ns_mov_b64 exec, 15\nds_write_b32 v{vLC}, v9 offset:{128 + 16*CN_KV}\ns_mov_b64 exec, -1\n{o_}:')
        S.ext(cnt_read(CN_KV, vLP)); S.ext(cnt_check(CN_KV, vLP))
    stamp(S, 8)
    again, done = newlab('rd'), newlab('rd')
    S(f's_mov_b32 s{sBND}, 0\n{again}:')
    for rb in range(16):
        S(f's_add_u32 s{sT0}, s{sU2}, {rb*4096}')
        S(f'buffer_load_dwordx4 {v(32+4*rb,4)}, v{vL16}, {srd(SRD_WS)}, s{sT0} offen sc1')
    S(f'v_mov_b32 v8, 0\nv_mov_b32 v16, 0\nv_mov_b32 v17, 0\nv_mov_b32 v18, 0\nv_mov_b32 v19, 0')
    for rb in range(16):
        b = 32 + 4 * rb
        S(f'v_xor_b32 v9, s{sTAG}, v{b+1}\nv_xor_b32 v10, s{sTAG}, v{b+3}\nv_or3_b32 v8, v8, v9, v10')
        S(f'v_lshlrev_b32 v{b+1}, 16, v{b}\nv_and_b32 v{b}, 0xffff0000, v{b}\nv_lshlrev_b32 v{b+3}, 16, v{b+2}\nv_and_b32 v{b+2}, 0xffff0000, v{b+2}')
        S(f'v_add_f32 v16, v16, v{b+1}\nv_add_f32 v17, v17, v{b}\nv_add_f32 v18, v18, v{b+3}\nv_add_f32 v19, v19, v{b+2}')
    S(f'v_cmp_ne_u32 vcc, 0, v8\ns_add_u32 s{sBND}, s{sBND}, 1\ns_cbranch_vccz {done}\ns_sleep {Opt.rsleep}\ns_cmp_lt_u32 s{sBND}, 0x8000\ns_cbranch_scc1 {again}\n{done}:')
    if Opt.diag: S(f's_mul_i32 s{STAMP0+13}, s{sBND}, 100\ns_add_u32 s{STAMP0+13}, s{STAMP0+13}, s{STAMP0}')
    S(f'v_and_b32 v8, 31, v{vLANE}\nv_cmp_eq_u32 vcc, 29, v8')
    S(f's_cmp_eq_u32 s{sW4}, 3\ns_cselect_b32 s{sT3}, -1, 0\ns_mov_b32 s{sT2}, 0')
    stamp(S, 10)
    for i in range(4): S(f'v_cndmask_b32 v{16+i}, v{16+i}, 1.0, vcc')
    S('v_cvt_pk_bf16_f32 v16, v16, v17\nv_cvt_pk_bf16_f32 v17, v18, v19')
    S(f'v_cndmask_b32 v16, v16, 0, s[{sT2}:{sT3}]\nv_cndmask_b32 v17, v17, 0, s[{sT2}:{sT3}]')
    S(f'v_lshlrev_b32 v8, 3, v{vLANE}\nbuffer_store_dwordx2 v[16:17], v8, {srd(SRD_WS)}, s{sU1} offen sc1')
    S('s_waitcnt vmcnt(0)')
    l_ = newlab('rl')
    S(f's_mov_b64 exec, 1\nds_add_rtn_u32 v9, v{vLC}, v{vLONE} offset:{128 + 16*CN_PQ}\ns_waitcnt lgkmcnt(0)\ns_mov_b64 exec, -1\nv_readfirstlane_b32 s{sT0}, v9\ns_cmp_lg_u32 s{sT0}, 3\ns_cbranch_scc1 {l_}')
    flag_store(S, sU0, 24, 8, 12)
    S(f'{l_}:')
    stamp(S, 9)

Opt.kvstep = 14
def fin_after(prefix, body):
    mark = Ins('L_MARK__:')
    o = finalize(prefix + [mark] + body)
    return o[o.index(mark) + 1:]

def build():
    assert sT2 % 2 == 0 and sT3 == sT2 + 1
    parts = []
    P = Stream(); prologue(P)
    P(f's_cmp_ge_u32 s{sWAVE}, 4\ns_cbranch_scc1 L_lwave')
    parts.append(finalize(P.l))
    C = Stream(); c_common(C); C(f's_cmp_ge_u32 s{sROLE}, 8\ns_cbranch_scc1 L_cattn')
    S = Stream(); c_ffn(S); c_publish(S, False, True); S('s_branch L_aphase'); parts.append(finalize(C.l + S.l))
    S = Stream(); S('L_cspare:\ns_waitcnt vmcnt(0)'); c_publish(S, False, False); S('s_branch L_fin'); parts.append(finalize(S.l))
    S = Stream(); S('L_cattn:'); c_attn(S)
    S(f's_cmp_ge_u32 s{sI}, 12\ns_cbranch_scc1 L_cspare'); c_publish(S, False, True); parts.append(fin_after(C.l, S.l))
    S = Stream(); S('L_aphase:'); a_phase2(S); S('s_branch L_fin'); parts.append(finalize(S.l))
    S = Stream(); S('L_lwave:'); l_decode(S)
    S(f's_cmp_ge_u32 s{sROLE}, 8\ns_cbranch_scc1 L_lattn'); l_phase1(S, True, True); S('s_branch L_fphase'); parts.append(finalize(S.l))
    S = Stream(); S('L_lattn:'); S(f's_cmp_ge_u32 s{sI}, 12\ns_cbranch_scc1 L_lspare'); l_phase1(S, False, True); parts.append(finalize(S.l))
    S = Stream(); S('L_fphase:'); f_phase2(S); S('s_branch L_fin'); parts.append(finalize(S.l))
    S = Stream(); S('L_lspare:'); l_phase1(S, False, False); reducer(S); parts.append(finalize(S.l))
    S = Stream(); S('L_fin:'); diag_out(S); S('L_end:\ns_endpgm'); parts.append(finalize(S.l))
    hdr = open('recurrent_scan__linear_kernel_hedgehog__dense_activation_silu__prompt.s.ref').read().split('\n')
    top = [l for l in hdr[:13] if l.startswith(';') and '@launch' not in l and 'Override' not in l and 'grid=ceil' not in l]
    out = '\n'.join(top) + f'\n; @launch grid=(256,1,1) block=(512,1,1) lds={LDS_TOTAL}\n'
    out += f'.amdgcn_target "amdgcn-amd-amdhsa--gfx950"\n.text\n.globl {NAME}\n.p2align 8\n.type {NAME},@function\n{NAME}:\n'
    for p in parts:
        t = text(p)
        if Opt.nosc1 == 2: t = '\n'.join(l.replace(' sc1', ' nt sc1') if 'buffer_store_dwordx4' in l else l for l in t.split('\n'))
        if Opt.nosc1 == 3: t = '\n'.join(l.replace('offen', 'offen idxen').replace(', v2,', ', v[0:1],') if False else l for l in t.split('\n'))
        if Opt.nosc1 == 1: t = '\n'.join(l.replace(' sc1', '') if 'buffer_store_dwordx4' in l else l for l in t.split('\n'))
        out += t
    out += f'''.section .rodata,"a"
.p2align 6
.amdhsa_kernel {NAME}
  .amdhsa_next_free_vgpr 256
  .amdhsa_next_free_sgpr 102
  .amdhsa_accum_offset 256
  .amdhsa_group_segment_fixed_size 0
  .amdhsa_kernarg_size 80
  .amdhsa_user_sgpr_count 2
  .amdhsa_user_sgpr_kernarg_segment_ptr 1
  .amdhsa_system_sgpr_workgroup_id_x 1
.end_amdhsa_kernel
'''
    return out

if __name__ == '__main__':
    for a in sys.argv[2:]:
        k, _, val = a.partition('='); setattr(Opt, k, int(val) if val else True)
    open(sys.argv[1], 'w').write(build())
```

```python
import sys, struct
sys.path.insert(0, "dev")
from asmlib import *

NAME = "recurrent_scan__linear_kernel_hedgehog__dense_activation_silu__prompt_kernel"
K1 = 1024
WS_H   = 0
WS_PQ  = 64 * 112 * K1
WS_KVP = WS_PQ + 64 * 16 * 4096
WS_KVF = WS_KVP + 32 * 16 * 4096
WS_FH  = WS_KVF + 64 * K1
WS_FP  = WS_FH + 256 * 4096
WS_FK  = WS_FP + 32 * 2048
WS_TAG = WS_FK + 8 * 4096
WS_DIAG = WS_TAG + 4096
WS_SIZE = WS_DIAG + 256 * 8 * 64
SLOT = 28 * K1
SPARE = 140 * K1
WPHI_L = 156 * K1
CTL = 160 * K1 - 512
LDS_TOTAL = 160 * K1
F_REG = 24 * K1
A_BASE = 96 * K1
A_REG = 16 * K1
EV_XFREE, EV_C0, EV_C1, EV_C2, EV_C3, EV_PK, EV_END, EV_V = range(8)
CN_WO, CN_LT, CN_PH, CN_KV, CN_PQ, CN_K2 = 7, 8, 9, 10, 11, 13
sBND = 70
L2E = 1.4426950408889634
def f2u(x): return struct.unpack('<I', struct.pack('<f', x))[0]
def hx(x): return '0x%08x' % (x & 0xffffffff)

sWAVE, sXCD, sI, sRB, sROLE = 3, 4, 5, 6, 7
SRD_X, SRD_W, SRD_WS, SRD_W2, SRD_WO, SRD_OUT, SRD_DBG, SRD_WPHI = 8, 12, 16, 20, 24, 28, 32, 36
sTB, sCB, sIDX, sTAG, sPITCH = 40, 41, 42, 43, 44
sCOL = [45, 46, 47]
sCOLS = 48
sSEL_LO, sSEL_HI = 49, 63
sT0, sT1, sT2, sT3 = 50, 51, 52, 53
sHI = 54
sROT1, sROT2, sM70 = 41, 57, 56
sCNT, sW4, sFT, sFS, sL2E = 58, 59, 60, 61, 62
sU0, sU1, sU2, sU3, sU4, sU5 = 64, 65, 66, 67, 68, 69
sKA_QKV, sKA_W1 = 80, 82
STAMP0 = 84
def srd(b): return f's[{b}:{b+3}]'
def v(a, n=1): return f'v{a}' if n == 1 else f'v[{a}:{a+n-1}]'
HI = f's[{sHI}:{sHI+1}]'

class Opt:
    diag = False
    ncen = 18
    sleep = 8
    early = False
    rot = 1
    lprio = 0
    lsleep = 1
    nodma = 0
    nosc1 = 0
    nowo = 0
    wpf = 0
    xfirst = 3
    w2pf = 0
    gpf = 1
    mini = 0
    vsteps = 5
    hint = 1
    athr = 4
    rsleep = 2
    ackdiag = 0
    pk = 0
    pkq = 1
    trpace = 1
    aw2 = 4
    tr1 = 2
    tlb = 0
    kprio = 1
    aprio = 0
    bthr = 10
    trfirst = 0
    thr = 40
    xpipe = 4
    fine = -1
    cpf = 1
    wopf = 1
    phi1 = 1
    fprio = 1
    dbgout = 0
    outsc = ''
    empty = 0
    xcc = 0
    fdiag = 0
    nophi = 0
    notr = 0
    cprio = 0
    predelay = 0
    ksleep = 2

def stamp(S, k):
    if not Opt.diag: return
    if Opt.mini and k not in (0, 15): return
    if Opt.fine >= 0:
        if k == 0: S('s_memtime s[100:101]\ns_waitcnt lgkmcnt(0)\ns_mov_b32 s71, s100')
        return
    if isinstance(k, str):
        if not Opt.early: return
        k = int(k[1:])
    elif Opt.early and 3 <= k < 15: return
    S(f'{"s_memtime" if Opt.diag == 2 else "s_memrealtime"} s[100:101]\ns_waitcnt lgkmcnt(0)\ns_mov_b32 s{STAMP0+k}, s100')

def diag_out(S):
    if not Opt.diag: return
    S('s_waitcnt vmcnt(0) lgkmcnt(0)')
    stamp(S, 15)
    if Opt.xcc: S(f's_getreg_b32 s{STAMP0+11}, hwreg(HW_REG_XCC_ID)\ns_getreg_b32 s{STAMP0+12}, hwreg(HW_REG_HW_ID)')
    if Opt.dbgout:
        lab = newlab('dg')
        S(f's_not_b32 s{STAMP0+14}, s{STAMP0}')
        if Opt.dbgout == 1: S(f's_cmp_ge_u32 s{sWAVE}, 4')
        else: S(f's_cmp_lt_u32 s{sWAVE}, 4')
        S(f's_cbranch_scc1 {lab}')
        S('v_mov_b32 v16, 0')
        for k in range(1, 16): S(f'v_writelane_b32 v16, s{STAMP0+k}, {k}')
        S(f'v_mbcnt_lo_u32_b32 v17, -1, 0\nv_lshlrev_b32 v17, 2, v17\ns_mov_b64 exec, 0xfffe')
        S(f'buffer_atomic_umax v16, v17, {srd(SRD_DBG)}, 0 offen sc1')
        S(f'{lab}:\ns_endpgm')
    if Opt.fine >= 0:
        S('v_mov_b32 v16, s71\nv_mov_b32 v31, s71')
        for k in range(14): S(f'v_mov_b32 v{17+k}, s{72+2*k}')
    else:
        for k in range(16): S(f'v_mov_b32 v{16+k}, s{STAMP0+k}')
    S(f's_lshl_b32 s{sT0}, s2, 3\ns_add_u32 s{sT0}, s{sT0}, s{sWAVE}\ns_lshl_b32 s{sT0}, s{sT0}, 6\ns_add_u32 s{sT0}, s{sT0}, {WS_DIAG}')
    S('v_mov_b32 v40, 0\ns_mov_b64 exec, 1')
    for k in range(4): S(f'buffer_store_dwordx4 v[{16+4*k}:{19+4*k}], v40, {srd(SRD_WS)}, s{sT0} offen offset:{16*k}')

def half_base(h): return ((h + 4) % 5) * SLOT

_lab = [0]
def newlab(p):
    _lab[0] += 1; return f'L_{p}{_lab[0]}'
def RAW(t):
    i = Ins(t); i.kind = 'salu'; i.rd = set(); i.wr = set(); return i
def raw(S, t):
    for l in t.split('\n'):
        S.l.append(Ins(l) if l.endswith(':') else RAW(l))

vCTL, vLANE, vL16 = 0, 1, 2
def mk_srd(S, items):
    for b, lo, size in items:
        S(f's_mov_b64 s[{b}:{b+1}], s[{lo}:{lo+1}]\ns_mov_b32 s{b+2}, {size}\ns_mov_b32 s{b+3}, 0x20000')
def prologue(S):
    S(f's_cmp_ge_u32 s2, {0 if Opt.empty else 256}\ns_cbranch_scc1 L_end')
    if Opt.diag:
        for k in range(16): S(f's_mov_b32 s{STAMP0+k}, 0')
        if Opt.fine >= 0: S('s_mov_b32 s84, 1\ns_mov_b32 s86, 1\ns_mov_b32 s88, 1\ns_mov_b32 s90, 1\ns_mov_b32 s92, 1\ns_mov_b32 s94, 1\ns_mov_b32 s96, 1\ns_mov_b32 s98, 1')
    stamp(S, 0)
    S('s_load_dwordx16 s[64:79], s[0:1], 0\ns_load_dwordx4 s[80:83], s[0:1], 64')
    S(f'v_lshrrev_b32 v3, 6, v0\nv_and_b32 v{vLANE}, 63, v0\nv_readfirstlane_b32 s{sWAVE}, v3\nv_lshlrev_b32 v{vL16}, 4, v{vLANE}')
    S(f's_and_b32 s{sXCD}, s2, 7\ns_lshr_b32 s{sI}, s2, 3\ns_and_b32 s{sT3}, s{sI}, 3\ns_lshr_b32 s{sT2}, s{sI}, 2\ns_xor_b32 s{sT2}, s{sT2}, 4')
    S(f's_lshr_b32 s{sRB}, s{sXCD}, 1\ns_lshl_b32 s{sRB}, s{sRB}, 2\ns_add_u32 s{sRB}, s{sRB}, s{sT3}')
    S(f's_lshl_b32 s{sCB}, s{sT3}, 1\ns_add_u32 s{sCB}, s{sCB}, s{sT2}\ns_sub_u32 s{sT0}, s{sCB}, 7\ns_cmp_ge_u32 s{sCB}, 7\ns_cselect_b32 s{sCB}, s{sT0}, s{sCB}')
    S(f's_and_b32 s{sW4}, s{sWAVE}, 3')
def decode2(S):
    S(f's_lshl_b32 s{sTB}, s{sXCD}, 2\ns_add_u32 s{sTB}, s{sTB}, s{sT3}')
    S(f's_and_b32 s{sIDX}, s{sXCD}, 1\ns_lshl_b32 s{sIDX}, s{sIDX}, 2\ns_and_b32 s{sT0}, s{sT2}, 3\ns_add_u32 s{sIDX}, s{sIDX}, s{sT0}')
    S(f's_and_b32 s{sT0}, s{sT2}, 4\ns_lshl_b32 s{sT0}, s{sT0}, 1\ns_add_u32 s{sROLE}, s{sIDX}, s{sT0}')
    S(f's_mul_i32 s{sROT2}, s{sT3}, 7\ns_lshl_b32 s{sT0}, s{sCB}, 2\ns_add_u32 s{sROT2}, s{sROT2}, s{sT0}\ns_sub_u32 s{sT0}, s{sROT2}, 28\ns_cmp_ge_u32 s{sROT2}, 28\ns_cselect_b32 s{sROT2}, s{sT0}, s{sROT2}')
    S(f's_lshl_b32 s{sT0}, s{sW4}, 2\ns_add_u32 s{sT0}, s{sT0}, {CTL}\nv_mov_b32 v{vCTL}, s{sT0}')
    S(f's_mov_b32 s{sHI}, 0\ns_mov_b32 s{sHI+1}, -1\ns_mov_b32 s{sL2E}, {hx(f2u(L2E))}\ns_movk_i32 s{sM70}, 0x70')
def l_decode(S):
    S(f'v_lshlrev_b32 v4, 3, v{vLANE}\nv_add_u32 v4, {CTL}, v4\nv_mov_b32 v6, 0\nv_mov_b32 v7, 0\nds_write_b64 v4, v[6:7]')
    decode2(S)
    S(f's_mul_i32 s{sT0}, s{sIDX}, 448\ns_and_b32 s{sT1}, s{sIDX}, 1\ns_lshl_b32 s{sT2}, s{sT1}, 6\ns_add_u32 s{sT2}, s{sT2}, s{sT0}')
    S(f's_mul_i32 s{sT1}, s{sT1}, 384\ns_sub_u32 s{sCOLS}, s{sT0}, s{sT1}\ns_add_u32 s{sCOLS}, s{sCOLS}, 384')
    S(f's_mul_i32 s{sT0}, s{sIDX}, 112')
    S(f's_add_u32 s{sT1}, s{sT0}, 896\ns_add_u32 s{sT3}, s{sT0}, 1792\ns_add_u32 s{sCOL[1]}, s{sT2}, 128\ns_add_u32 s{sCOL[2]}, s{sT2}, 256')
    S(f's_movk_i32 s{sPITCH}, 3584\ns_cmp_ge_u32 s{sROLE}, 8')
    S(f's_cselect_b32 s{sCOL[0]}, s{sT1}, s{sT2}\ns_cselect_b32 s{sPITCH}, 2688, s{sPITCH}')
    S(f's_cselect_b32 s{sCOL[1]}, s{sT3}, s{sCOL[1]}\ns_cselect_b32 s{sCOL[2]}, s{sT0}, s{sCOL[2]}')
    S(f's_mul_i32 s{SRD_W+2}, s{sPITCH}, 448\ns_mov_b32 s{SRD_W+3}, 0x20000')
    swz_voff(S, vLW, f's{sPITCH}', 8)
    S('s_waitcnt lgkmcnt(0)')
    S(f's_cmp_ge_u32 s{sROLE}, 8\ns_cselect_b64 s[{SRD_W}:{SRD_W+1}], s[66:67], s[74:75]')
    mk_srd(S, ((SRD_X, 64, 2048 * 896), (SRD_WS, 82, WS_SIZE), (SRD_W2, 76, 1792 * 896), (SRD_WO, 70, 448 * 896), (SRD_OUT, 78, 2048 * 896), (SRD_DBG, 80, 256), (SRD_WPHI, 68, 16 * 1568)))
    S(f's_mov_b64 s[{sKA_QKV}:{sKA_QKV+1}], s[66:67]\ns_mov_b64 s[{sKA_W1}:{sKA_W1+1}], s[74:75]')

TAGW = 320
def tag_fetch_l0(S):
    a, b = newlab('tf'), newlab('tf')
    S(f's_cmp_lg_u32 s{sW4}, 0\ns_cbranch_scc1 {b}')
    raw(S, f's_mov_b32 s{sBND}, 0\nv_mov_b32 v15, 0\n{a}:\nbuffer_load_dword v14, v15, {srd(SRD_DBG)}, 0 offen sc1\ns_waitcnt vmcnt(0)\nv_readfirstlane_b32 s{sTAG}, v14\ns_add_u32 s{sBND}, s{sBND}, 1\n'
           f's_max_u32 s{sCNT}, s{sBND}, 0x20000\ns_sub_u32 s{sCNT}, s{sCNT}, 0x20000\ns_or_b32 s{sTAG}, s{sTAG}, s{sCNT}\ns_cmp_eq_u32 s{sTAG}, 0\ns_cbranch_scc1 {a}\n'
           f'v_mov_b32 v14, s{sTAG}\ns_mov_b64 exec, 15\nds_write_b32 v{vLC}, v14 offset:{TAGW}\ns_mov_b64 exec, -1\ns_waitcnt lgkmcnt(0)\n{b}:')
def tag_prefetch(S, vt):
    S(f'ds_read_b32 v{vt}, v{vCTL} offset:{TAGW}')
def tag_get(S, vt):
    a, b = newlab('tg'), newlab('tg')
    S(f'v_readfirstlane_b32 s{sTAG}, v{vt}')
    S(f's_cmp_lg_u32 s{sTAG}, 0\ns_cbranch_scc1 {b}')
    raw(S, f'{a}:\nds_read_b32 v{vt}, v{vCTL} offset:{TAGW}\ns_sleep 1\ns_waitcnt lgkmcnt(0)\nv_readfirstlane_b32 s{sTAG}, v{vt}\ns_nop 0\ns_cmp_eq_u32 s{sTAG}, 0\ns_cbranch_scc1 {a}\n{b}:')

def poll(S, voff, soff, nl, vt, sleep=None):
    a, b = newlab('pl'), newlab('pl')
    S(f's_mov_b64 exec, {hex((1 << nl) - 1)}\ns_mov_b32 s{sCNT}, 0')
    S(f'{a}:')
    S(f'buffer_load_dword v{vt}, v{voff}, {srd(SRD_WS)}, s{soff} offen sc1')
    S('s_waitcnt vmcnt(0)')
    S(f'v_cmp_ne_u32 vcc, s{sTAG}, v{vt}')
    S(f's_add_u32 s{sCNT}, s{sCNT}, 1\ns_cbranch_vccz {b}\ns_cmp_gt_u32 s{sCNT}, 0x20000\ns_cbranch_scc1 {b}\ns_sleep {sleep or Opt.sleep}\ns_branch {a}')
    S(f'{b}:')
    S('s_mov_b64 exec, -1')

def flag_store(S, soff, vt, n=1, shift=8):
    for i in range(4): S(f'v_mov_b32 v{vt+i}, s{sTAG}')
    S(f'v_lshrrev_b32 v{vt+4}, 3, v{vLANE}\nv_lshlrev_b32 v{vt+4}, {shift}, v{vt+4}\nv_and_or_b32 v{vt+4}, v{vL16}, s{sM70}, v{vt+4}')
    m = (1 << (8 * n)) - 1
    if n < 8: S(f's_mov_b32 exec_lo, {hex(m & 0xffffffff)}\ns_mov_b32 exec_hi, {hex(m >> 32)}')
    S(f'buffer_store_dwordx4 {v(vt,4)}, v{vt+4}, {srd(SRD_WS)}, s{soff} offen sc1')
    if n < 8: S('s_mov_b64 exec, -1')

def c_signal(ev):
    return [Ins(f'ds_write_b32 v{vCTL}, v{vCTL} offset:{16*ev}')]
def cnt_read(idx, vt):
    return [Ins(f'ds_read_b32 v{vt}, v{vCTL} offset:{128 + 16*idx}')]
def cnt_check(idx, vt, sleep=0):
    S = Stream(); a, b = newlab('ck'), newlab('ck')
    S(f'v_readfirstlane_b32 s{sCNT}, v{vt}\ns_cmp_ge_u32 s{sCNT}, 4\ns_cbranch_scc1 {b}')
    raw(S, f's_mov_b32 s{sBND}, 0\n{a}:\nds_read_b32 v{vt}, v{vCTL} offset:{128 + 16*idx}\ns_add_u32 s{sBND}, s{sBND}, 1\ns_cmp_gt_u32 s{sBND}, 0x40000\ns_cbranch_scc1 {b}\ns_sleep {sleep}\ns_waitcnt lgkmcnt(0)\nv_readfirstlane_b32 s{sCNT}, v{vt}\ns_nop 0\ns_cmp_lt_u32 s{sCNT}, 4\ns_cbranch_scc1 {a}\n{b}:')
    return S.l
def c_allflags(ev, vt, va):
    S = Stream(); a, b = newlab('cf'), newlab('cf')
    S(f'v_mov_b32 v{va}, {CTL}\nds_read_b128 v[{vt}:{vt+3}], v{va} offset:{16*ev}')
    S2 = Stream()
    S2(f'v_min3_u32 v{vt}, v{vt}, v{vt+1}, v{vt+2}\nv_min_u32 v{vt}, v{vt}, v{vt+3}\nv_readfirstlane_b32 s{sCNT}, v{vt}\ns_cmp_lg_u32 s{sCNT}, 0\ns_cbranch_scc1 {b}')
    raw(S2, f's_mov_b32 s{sBND}, 0\n{a}:\nds_read_b128 v[{vt}:{vt+3}], v{va} offset:{16*ev}\ns_add_u32 s{sBND}, s{sBND}, 1\ns_cmp_gt_u32 s{sBND}, 0x40000\ns_cbranch_scc1 {b}\ns_waitcnt lgkmcnt(0)\n'
            f'v_min3_u32 v{vt}, v{vt}, v{vt+1}, v{vt+2}\nv_min_u32 v{vt}, v{vt}, v{vt+3}\ns_nop 0\nv_readfirstlane_b32 s{sCNT}, v{vt}\ns_nop 0\ns_cmp_eq_u32 s{sCNT}, 0\ns_cbranch_scc1 {a}\n{b}:')
    return S.l, S2.l
vLC, vLONE, vLP = 11, 12, 188
def l_signal(S, idx):
    S(f's_mov_b64 exec, 15\nds_add_u32 v{vLC}, v{vLONE} offset:{128 + 16*idx}\ns_mov_b64 exec, -1')
def l_wait(S, ev):
    a, b = newlab('lw'), newlab('lw')
    S('s_waitcnt lgkmcnt(0)')
    raw(S, f's_mov_b32 s{sBND}, 0\n{a}:\nds_read_b128 v[{vLP}:{vLP+3}], v{vLP+4} offset:{16*ev}\ns_add_u32 s{sBND}, s{sBND}, 1\ns_cmp_gt_u32 s{sBND}, 0x40000\ns_cbranch_scc1 {b}\ns_sleep {Opt.lsleep}\ns_waitcnt lgkmcnt(0)\nv_min3_u32 v{vLP}, v{vLP}, v{vLP+1}, v{vLP+2}\nv_min_u32 v{vLP}, v{vLP}, v{vLP+3}\ns_nop 0\nv_readfirstlane_b32 s{sCNT}, v{vLP}\ns_nop 0\ns_cmp_eq_u32 s{sCNT}, 0\ns_cbranch_scc1 {a}\n{b}:\ns_waitcnt lgkmcnt(0)')

X0 = 16; ACC = [[128, 144], [160, 176]]; AF = 192; WPHI = 224; T = 240; U = 224; TT = 248; NR = 4
vVA = [3, 4]; vWA = [5, 6]; vVS = 7; vR, vRM, vNRL, vSD, vCT, vNM = 8, 9, 10, 11, 12, 13; vTAG = 14

def lane_consts_tr(S, dst, tmp, cstride, rowmap):
    t0, t1, t2 = tmp, tmp + 1, tmp + 2
    S(f'v_bfe_u32 v{t0}, v{vLANE}, 2, 2')
    S(f'v_lshrrev_b32 v{t1}, 5, v{vLANE}')
    S(f'v_lshlrev_b32 v{t1}, {10 if rowmap == "A" else 9}, v{t1}\nv_lshl_add_u32 v{t1}, v{t0}, 7, v{t1}')
    S(f'v_bfe_u32 v{t0}, v{vLANE}, 3, 1\nv_lshlrev_b32 v{t0}, 6, v{t0}')
    S(f'v_bfe_u32 v{t2}, v{vLANE}, 4, 1\nv_lshlrev_b32 v{t2}, 5, v{t2}\nv_and_b32 v{dst[0]}, 3, v{vLANE}\nv_lshl_add_u32 v{t2}, v{dst[0]}, 3, v{t2}')
    S(f'v_xor_b32 v{dst[0]}, v{t2}, v{t0}\nv_add_u32 v{dst[0]}, v{dst[0]}, v{t1}')
    S(f'v_add_u32 v{t2}, {cstride}, v{t2}\nv_xor_b32 v{dst[1]}, v{t2}, v{t0}\nv_add_u32 v{dst[1]}, v{dst[1]}, v{t1}')

def trb(St, dst, hfshift, pitch, tmp):
    St(f'v_lshrrev_b32 v{tmp}, 5, v{vLANE}\nv_lshlrev_b32 v{tmp}, {hfshift}, v{tmp}\nv_bfe_u32 v{dst}, v{vLANE}, 2, 2\nv_add_u32 v{tmp}, v{tmp}, v{dst}\nv_mul_u32_u24 v{dst}, {pitch}, v{tmp}')
    St(f'v_bfe_u32 v{tmp}, v{vLANE}, 4, 1\nv_lshl_add_u32 v{dst}, v{tmp}, 5, v{dst}\nv_and_b32 v{tmp}, 3, v{vLANE}\nv_lshl_add_u32 v{dst}, v{tmp}, 3, v{dst}')

def wrap_inc(S, reg, inc, lim):
    S(f's_add_u32 s{reg}, s{reg}, {inc}\ns_cmp_eq_u32 s{reg}, {lim}\ns_cselect_b32 s{reg}, 0, s{reg}')

def c_load_x(S):
    a, b = T, T + 1
    S(f'v_lshrrev_b32 v{T+2}, 3, v{vLANE}\nv_mul_u32_u24 v{a}, 896, v{T+2}')
    S(f'v_lshrrev_b32 v{T+2}, 4, v{vLANE}\nv_and_b32 v{T+3}, 7, v{vLANE}\nv_xor_b32 v{T+2}, v{T+2}, v{T+3}\nv_lshl_add_u32 v{a}, v{T+2}, 4, v{a}\nv_xor_b32 v{b}, 64, v{a}')
    S(f'v_add_u32 v{b}, {8*896}, v{b}\nv_add_u32 v{T+2}, {16*896}, v{a}\nv_add_u32 v{T+3}, {16*896}, v{b}')
    sXB, sXL, sXR, sXO = sFT, sFS, sCOL[0], sCOL[1]
    S(f's_lshl_b32 s{sXB}, s{sRB}, 2\ns_add_u32 s{sXB}, s{sXB}, s{sWAVE}\ns_mul_i32 s{sXB}, s{sXB}, {32*896}')
    S(f's_mul_i32 s{sXL}, s{sWAVE}, {SLOT}\ns_lshl_b32 s{sXR}, s{sROT1}, 7')
    S(f's_mov_b32 s{SRD_X+2}, {2048*896}\ns_mov_b32 s{SRD_X+3}, 0x20000')
    stamp(S, 'e3')
    S(f's_waitcnt lgkmcnt(0)\ns_mov_b64 s[{SRD_X}:{SRD_X+1}], s[64:65]')
    stamp(S, 'e4')
    def xdma(lc):
        S(f's_add_u32 s{sXO}, s{sXB}, s{sXR}')
        for g in range(4):
            S(f's_add_u32 m0, s{sXL}, {lc*4096 + g*1024}')
            if g == 0 and lc < 6: wrap_inc(S, sXR, 128, 896)
            S(f'buffer_load_dwordx4 v{T+g}, {srd(SRD_X)}, s{sXO} offen lds', tok=('x', lc))
    for lc in range(Opt.xpipe): xdma(lc)
    decode2(S)
    mk_srd(S, ((SRD_WS, 82, WS_SIZE), (SRD_OUT, 78, 2048 * 896), (SRD_DBG, 80, 256)))
    if Opt.xpipe >= 7: S('s_barrier')
    sT1_ = sXL
    stamp(S, 'e5')
    xa = T + 4
    S(f'v_and_b32 v{TT}, 31, v{vLANE}\nv_bfe_u32 v{TT+1}, v{vLANE}, 1, 3\nv_lshrrev_b32 v{xa}, 5, v{vLANE}\nv_xor_b32 v{TT+1}, v{TT+1}, v{xa}')
    S(f'v_lshlrev_b32 v{TT+1}, 4, v{TT+1}\nv_lshl_add_u32 v{xa}, v{TT}, 7, v{TT+1}\nv_add_u32 v{xa}, s{sXL}, v{xa}')
    for q in range(1, 4): S(f'v_xor_b32 v{xa+q}, {q*32}, v{xa}')
    S(f's_mov_b32 s{sSEL_LO}, 0x00003f80\ns_mov_b32 s{sSEL_HI}, 0x3f800000')
    S(f's_cmp_ge_u32 s{sROLE}, 8\ns_cselect_b32 s{sT0}, 56, 64')
    lane_consts_tr(S, vVA, TT, f's{sT0}', 'A')
    sA, sB, qA, qB, one = U, U + 1, U + 2, U + 3, U + 4
    S(f'v_mov_b32 v{sA}, 0\nv_mov_b32 v{sB}, 0\nv_mov_b32 v{qA}, 0\nv_mov_b32 v{qB}, 0\nv_mov_b32 v{one}, 0x3f803f80')
    def stats(lc):
        for q in range(4):
            for j in range(4):
                r = X0 + (lc * 4 + q) * 4 + j
                S(f'v_dot2c_f32_bf16 v{sA + (j & 1)}, v{r}, v{one}\nv_dot2c_f32_bf16 v{qA + (j & 1)}, v{r}, v{r}')
    for lc in range(7):
        S.wait(('x', lc))
        if lc in (0, 3, 6): stamp(S, 'e%d' % (6 + lc // 3))
        for q in range(4):
            S(f'ds_read_b128 {v(X0 + (lc*4+q)*4, 4)}, v{xa+q} offset:{lc*4096}')
        if lc == 6: S.ext(c_signal(EV_XFREE))
        if lc + Opt.xpipe < 7: xdma(lc + Opt.xpipe)
        if lc + Opt.xpipe == 6: S('s_barrier')
        if lc > 0: stats(lc - 1)
    stamp(S, 1)
    stats(6)
    t = U + 5
    S(f'v_add_f32 v{sA}, v{sA}, v{sB}\nv_add_f32 v{qA}, v{qA}, v{qB}\nv_mov_b32 v{sB}, v{sA}\nv_mov_b32 v{qB}, v{qA}')
    S(f'v_permlane32_swap_b32 v{sA}, v{sB}\nv_permlane32_swap_b32 v{qA}, v{qB}')
    S(f'v_add_f32 v{sA}, v{sA}, v{sB}\nv_add_f32 v{qA}, v{qA}, v{qB}')
    inv = hx(f2u(1.0 / 448))
    S(f'v_mul_f32 v{sA}, {inv}, v{sA}\nv_mul_f32 v{qA}, {inv}, v{qA}')
    S(f'v_fma_f32 v{qA}, -v{sA}, v{sA}, v{qA}\nv_max_f32 v{qA}, 0, v{qA}')
    S(f'v_cvt_pk_bf16_f32 v{t}, v{sA}, v{qA}')
    S(f'v_lshlrev_b32 v{vNM}, 16, v{t}\nv_xor_b32 v{vNM}, 0x80000000, v{vNM}')
    R = Stream()
    R(f'v_and_b32 v{qA}, 0xffff0000, v{t}\nv_add_f32 v{qA}, {hx(f2u(1e-5))}, v{qA}')
    R(f'v_cvt_pk_bf16_f32 v{t}, v{qA}, v{qA}\nv_and_b32 v{qA}, 0xffff0000, v{t}\nv_sqrt_f32 v{qA}, v{qA}')
    R(f'v_nop\nv_cvt_pk_bf16_f32 v{t}, v{qA}, v{qA}\nv_and_b32 v{vSD}, 0xffff0000, v{t}\nv_rcp_f32 v{vR}, v{vSD}')
    R(f'v_nop\nv_mul_f32 v{vNRL}, {hx(f2u(-L2E))}, v{vR}\nv_cndmask_b32 v{vRM}, v{vR}, 0, {HI}')
    return R.l

def center(s):
    S = Stream()
    for j in range(4):
        r = X0 + s * 4 + j
        a, b = TT + 2 * j, TT + 2 * j + 1
        S(f'v_dot2_f32_bf16 v{a}, v{r}, s{sSEL_LO}, v{vNM}\nv_dot2_f32_bf16 v{b}, v{r}, s{sSEL_HI}, v{vNM}')
    for j in range(4):
        r = X0 + s * 4 + j
        S(f'v_cvt_pk_bf16_f32 v{r}, v{TT+2*j}, v{TT+2*j+1}')
    return S.l
def center5(s):
    S = Stream()
    for j in range(4):
        r = X0 + s * 4 + j
        a, b = TT + 2 * j, TT + 2 * j + 1
        S(f'v_lshlrev_b32 v{a}, 16, v{r}\nv_and_b32 v{b}, 0xffff0000, v{r}\nv_add_f32 v{a}, v{a}, v{vNM}\nv_add_f32 v{b}, v{b}, v{vNM}')
        S(f'v_cvt_pk_bf16_f32 v{r}, v{a}, v{b}')
    return S.l

def silu_tile(acc, u, soff, tok):
    S = Stream()
    for g in range(4):
        a = acc + 4 * g
        for i in range(4): S(f'v_mul_f32 v{TT+i}, v{a+i}, v{vNRL}')
        for i in range(4): S(f'v_exp_f32 v{TT+i}, v{TT+i}')
        for i in range(4): S(f'v_fma_f32 v{TT+i}, v{TT+i}, v{vSD}, v{vSD}')
        for i in range(4): S(f'v_rcp_f32 v{TT+i}, v{TT+i}')
        for i in range(4): S(f'v_mul_f32 v{TT+4+i}, v{a+i}, v{TT+i}')
        S(f'v_cvt_pk_bf16_f32 v{u+2*g}, v{TT+4}, v{TT+5}\nv_cvt_pk_bf16_f32 v{u+2*g+1}, v{TT+6}, v{TT+7}')
        if g % 2 == 1:
            S(f'buffer_store_dwordx4 {v(u + 4*(g//2), 4)}, v{vL16}, {srd(SRD_WS)}, s{soff[0]} offen offset:{soff[1] + 1024*(g//2)} sc1', tok=tok)
    return S.l

def part(f, s, lo, hi):
    n = len(f); k = hi - lo + 1
    return f[(s - lo) * n // k:(s - lo + 1) * n // k]

CN_H1B = 14
class Steps:
    def __init__(self, single):
        self.steps = []
        for st in range(3):
            for s in range(28):
                h = st * 2 + s // 14; sp = s % 14
                p = dict(st=st, s=s, nt=2, h=h, off=sp * 2048, first=(sp == 0), last=(sp == 13), base=half_base(h), cn=h)
                if h == 1:
                    if sp < 8: p.update(base=SPARE, h1a=(sp == 7))
                    else: p.update(base=0, off=(sp - 8) * 2048, first=(sp == 8), cn=CN_H1B)
                self.steps.append(p)
        if single:
            for s in range(28):
                self.steps.append(dict(st=3, s=s, nt=1, h=6, off=s * K1, first=(s == 0), last=False, cn=6))
    def reads(self, n):
        if n >= len(self.steps): return [], []
        p = self.steps[n]; S = Stream(); pre = Stream()
        ring = AF + (n % NR) * 8
        if p['first']:
            pre.ext(cnt_check(p['cn'], vCT))
            if p['nt'] == 2:
                b = p['base']
                pre(f'v_add_u32 v{vWA[0]}, {b}, v{vVA[0]}\nv_add_u32 v{vWA[1]}, {b}, v{vVA[1]}')
        if p['nt'] == 2:
            for c in range(2):
                for u in range(2):
                    S(f'ds_read_b64_tr_b16 {v(ring + 4*c + 2*u, 2)}, v{vWA[c]} offset:{p["off"] + 512*u}', tok=('a', n))
        else:
            for u in range(2):
                S(f'ds_read_b64_tr_b16 {v(ring + 2*u, 2)}, v{vVS} offset:{p["off"] + 256*u}', tok=('a', n))
        if p['last'] and p['h'] < 4: S.ext(c_signal(EV_C0 + p['h']))
        if n + 3 < len(self.steps) and self.steps[n + 3]['first']:
            S.ext(cnt_read(self.steps[n + 3]['cn'], vCT))
        return pre.l, S.l
    def mfmas(self, n):
        p = self.steps[n]; ring = AF + (n % NR) * 8; out = []
        for c in range(p['nt']):
            acc = ACC[p['st'] % 2][c]
            C = '0' if p['s'] == 0 else v(acc, 16)
            out.append(Ins(f'v_mfma_f32_32x32x16_bf16 {v(acc,16)}, {v(ring+4*c,4)}, {v(X0+4*p["s"],4)}, {C}'))
        return out
    def stage(self, st, fill=None, perstep=None, mid=None):
        idx = [n for n, p in enumerate(self.steps) if p['st'] == st]
        groups = []
        for n in idx:
            p = self.steps[n]
            rd = self.reads(n + NR - 1)[1]
            pre = self.reads(n + NR)[0]
            m = self.mfmas(n)
            g = []
            if Opt.fine == st and p['s'] % 2 == 0 and p['s'] < 26: g.append(RAW(f's_memtime s[{72+p["s"]}:{73+p["s"]}]'))
            if mid and p['s'] in mid: g += mid[p['s']]
            on = p['s'] > 0 or perstep
            w = Stream(); w.wait(('a', n + 1))
            k = 2 if pre else 5
            if p['nt'] == 2:
                g += [m[0]] + rd + ([None] * 2 if on else []) + [m[1]] + w.l + ([None] * k if on else []) + pre
            else:
                g += [m[0]] + rd + ([None] * 3 if on else [])
            if perstep: g = interleave([g], perstep(p['s']))
            if Opt.fine == st and p['s'] == 27: g.append(RAW('s_memtime s[98:99]'))
            groups.append(g)
        if perstep: return [x for g in groups for x in g]
        return interleave(groups, fill)

def c_common(S):
    if Opt.cprio: S('s_setprio 2')
    rest = c_load_x(S)
    S.ext(cnt_read(0, vCT))
    for s in range(Opt.ncen): S.ext(center(s))
    P = Steps(True)
    for n in range(NR - 1):
        pre, rd = P.reads(n); S.ext(pre); S.ext(rd)
    stamp(S, 2)
    f = []
    for s in range(Opt.ncen, 28): f += center5(s)
    S.ext(P.stage(0, perstep=lambda s: part(f, s, 0, 25) if s < 26 else (rest if s == 26 else [])))
    stamp(S, 3)

def c_ffn(S):
    P = Steps(True)
    e = Stream(); t = T
    trb(e, vVS, 3, 64, t)
    e(f's_lshl_b32 s{sT0}, s{sRB}, 2\ns_add_u32 s{sT0}, s{sT0}, s{sWAVE}\ns_mul_i32 s{sT0}, s{sT0}, {112*K1}')
    e(f's_mul_i32 s{sT1}, s{sIDX}, 7\ns_and_b32 s{sT2}, s{sIDX}, 1\ns_add_u32 s{sT3}, s{sT1}, s{sT2}\ns_lshl_b32 s{sT3}, s{sT3}, 11\ns_add_u32 s{sFT}, s{sT0}, s{sT3}')
    e(f's_mul_i32 s{sT2}, s{sT2}, 6\ns_sub_u32 s{sT1}, s{sT1}, s{sT2}\ns_add_u32 s{sT1}, s{sT1}, 6\ns_lshl_b32 s{sT1}, s{sT1}, 11\ns_add_u32 s{sFS}, s{sT0}, s{sT1}')
    for st in (1, 2, 3):
        pa = ACC[(st - 1) % 2]
        fill = (e.l if st == 1 else []) + [Ins(f's_add_u32 s{sT0}, s{sFT}, {(st-1)*4096}')]
        fill += silu_tile(pa[0], T, (sT0, 0), 'st') + silu_tile(pa[1], U, (sT0, 2048), 'st')
        if st == 3:
            t = Stream(); tag_prefetch(t, vTAG); fill = fill + t.l
        S.ext(P.stage(st, fill))
        stamp(S, 3 + st)
    S.ext(silu_tile(ACC[1][0], T, (sFS, 0), 'st'))

def minmax(S, X, mx, mn, t0, t1):
    for op, d in (('v_max3_f32', mx), ('v_min3_f32', mn)):
        S(f'{op} v{d}, v{X}, v{X+1}, v{X+2}')
        for i in range(3, 15, 2): S(f'{op} v{d}, v{d}, v{X+i}, v{X+i+1}')
    S(f'v_max_f32 v{mx}, v{mx}, v{X+15}\nv_min_f32 v{mn}, v{mn}, v{X+15}')
    S(f'v_mov_b32 v{t0}, v{mx}\nv_mov_b32 v{t1}, v{mn}\nv_permlane32_swap_b32 v{mx}, v{t0}\nv_permlane32_swap_b32 v{mn}, v{t1}')
    S(f'v_max_f32 v{mx}, v{mx}, v{t0}\nv_min_f32 v{mn}, v{mn}, v{t1}')
    S(f'v_mul_f32 v{mx}, {hx(f2u(-L2E))}, v{mx}\nv_mul_f32 v{mn}, {hx(f2u(L2E))}, v{mn}')

LX, LE, LT = 144, 160, 176
vLPW, vLMK, vLL2E, vLRD, vLWP = 185, 184, 186, 187, 193
def softmax_body(S, X, E0, tmp, l2e, pw, off, hook0=None):
    for i in range(4): S(f'v_cndmask_b32 v{X+12+i}, v{X+12+i}, v{X+8+i}, {HI}')
    mx, mn, t0, t1 = tmp, tmp + 2, tmp + 1, tmp + 3
    minmax(S, X, mx, mn, t0, t1)
    for sign in range(2):
        E = E0 if sign == 0 else X
        s0, s1 = tmp + 4, tmp + 5
        for i in range(16):
            if sign == 0: S(f'v_fma_f32 v{E+i}, v{X+i}, {l2e}, v{mx}')
            else: S(f'v_fma_f32 v{E+i}, -v{X+i}, {l2e}, v{mn}')
        for i in range(16): S(f'v_exp_f32 v{E+i}, v{E+i}')
        S(f'v_add_f32 v{s1}, v{E+12}, v{E+13}\nv_add_f32 v{s0}, v{E}, v{E+1}\nv_add_f32 v{s1}, v{s1}, v{E+14}')
        S(f'v_add_f32 v{s0}, v{s0}, v{E+2}\nv_add_f32 v{s1}, v{s1}, v{E+15}\nv_add_f32 v{s0}, v{s0}, v{E+3}\nv_cndmask_b32 v{s1}, v{s1}, 0, {HI}')
        for i in range(4, 12): S(f'v_add_f32 v{s0 + (i & 1)}, v{s0 + (i & 1)}, v{E+i}')
        S(f'v_add_f32 v{s0}, v{s0}, v{s1}\nv_mov_b32 v{s1}, v{s0}\nv_permlane32_swap_b32 v{s0}, v{s1}\nv_add_f32 v{s0}, v{s0}, v{s1}\nv_rcp_f32 v{s0}, v{s0}')
        for i in range(16): S(f'v_mul_f32 v{E+i}, v{E+i}, v{s0}')
        for i in range(8): S(f'v_cvt_pk_bf16_f32 v{E+i}, v{E+2*i}, v{E+2*i+1}')
        for qd in range(3):
            S(f'ds_write_b64 v{pw}, {v(E+2*qd, 2)} offset:{off + sign*56 + qd*16}')
        g = Stream(); g(f's_mov_b64 exec, 0xffffffff\nds_write_b64 v{pw}, {v(E+6, 2)} offset:{off + sign*56 + 48}\ns_mov_b64 exec, -1')
        S.l.append(Group(g.l))
        if sign == 0 and hook0: S.ext(hook0)

def softmax_k(hook0):
    S = Stream()
    rw = LE
    S(f'ds_read_b128 {v(rw,4)}, v{vLRD}\nds_read_b128 {v(rw+4,4)}, v{vLRD} offset:1024')
    for st in range(2):
        for u in range(2):
            S(f'ds_read_b64_tr_b16 {v(rw + 8 + 4*st + 2*u, 2)}, v{vLWP} offset:{(16*st + 8*u)*56}')
    S(f'v_mfma_f32_32x32x16_bf16 {v(LX,16)}, {v(rw+8,4)}, {v(rw,4)}, 0')
    S(f'v_mfma_f32_32x32x16_bf16 {v(LX,16)}, {v(rw+12,4)}, {v(rw+4,4)}, {v(LX,16)}')
    softmax_body(S, LX, LE, LT, f'v{vLL2E}', vLPW, 0, hook0)
    return S.l

def scale_pack(acc, dst, masked=True):
    S = Stream()
    for i in range(16): S(f'v_mul_f32 v{acc+i}, v{acc+i}, v{vRM if (masked and i >= 12) else vR}')
    for i in range(8): S(f'v_cvt_pk_bf16_f32 v{dst+i}, v{acc+2*i}, v{acc+2*i+1}')
    return S.l

def phi_mfma(acc, c, b):
    return [Ins(f'v_mfma_f32_32x32x16_bf16 {v(acc,16)}, {v(WPHI+8*c,4)}, {v(b,4)}, 0'),
            Ins(f'v_mfma_f32_32x32x16_bf16 {v(acc,16)}, {v(WPHI+8*c+4,4)}, {v(b+4,4)}, {v(acc,16)}')]

def c_attn(S):
    vHO, vVW, vWP = vVS, vNRL, vSD
    P = Steps(False)
    e = Stream(); t = TT
    trb(e, vWP, 2, 56, t)
    e(f'v_add_u32 v{vWP}, {WPHI_L}, v{vWP}')
    for c in range(2):
        for st in range(2):
            for u in range(2):
                e(f'ds_read_b64_tr_b16 {v(WPHI + 8*c + 4*st + 2*u, 2)}, v{vWP} offset:{c*1568 + (16*st + 8*u)*56}')
    ka = ACC[0]
    vPW = vNM
    h0 = Stream()
    h0(f's_lshl_b32 s{sT0}, s{sWAVE}, 12\ns_add_u32 s{sT0}, s{sT0}, {SPARE}\nv_add_u32 v{vHO}, s{sT0}, v{vL16}')
    h0.ext(scale_pack(ka[0], T))
    h0(f'ds_write_b128 v{vHO}, {v(T,4)}\nds_write_b128 v{vHO}, {v(T+4,4)} offset:1024')
    f1 = h0.l + c_signal(EV_PK)
    f1b = e.l + scale_pack(ka[1], T)
    sm = Stream(); softmax_body(sm, ka[1], ka[0], TT, f's{sL2E}', vPW, 14336)
    t = Stream()
    t(f'v_and_b32 v{TT+3}, 31, v{vLANE}\ns_lshl_b32 s{sT0}, s{sWAVE}, 5\nv_add_u32 v{TT+3}, s{sT0}, v{TT+3}\nv_lshrrev_b32 v{TT+4}, 5, v{vLANE}\nv_lshlrev_b32 v{TT+4}, 3, v{TT+4}')
    t(f'v_mul_u32_u24 v{vVW}, 72, v{TT+3}\nv_add_u32 v{vVW}, v{vVW}, v{TT+4}\nv_add_u32 v{vVW}, {SLOT}, v{vVW}')
    t(f'v_mul_u32_u24 v{vPW}, 112, v{TT+3}\nv_add_u32 v{vPW}, v{vPW}, v{TT+4}')
    f3 = t.l
    g1, g2 = c_allflags(EV_C2, T, T + 4)
    k1, k2 = c_allflags(EV_C1, TT, TT + 4)
    f1 = k1 + f1
    assert all(not x.op.startswith('ds_write') for x in part(f1, 1, 1, 4) + part(f1, 2, 1, 4))
    f2 = f1b + f3
    def ps1(s):
        if 1 <= s <= 4: return part(f1, s, 1, 4)
        if 5 <= s <= 9: return part(f2, s, 5, 9)
        if 11 <= s <= 27: return part(sm.l, s, 11, 27) + (g1 if s == 24 else [])
        return []
    S.ext(P.stage(1, perstep=ps1, mid={3: k2, 10: phi_mfma(ka[1], 1, T), 27: g2}))
    stamp(S, 4)
    va = ACC[1]
    t = Stream()
    for c in range(2):
        t.ext(scale_pack(va[c], T, masked=False))
        d = T
        t(f'v_cndmask_b32 v{d+6}, v{d+6}, v{TT}, {HI}\nv_cndmask_b32 v{d+7}, v{d+7}, 0, {HI}')
        for qd in range(4): t(f'ds_write_b64 v{vVW}, {v(d+2*qd, 2)} offset:{c*9216 + qd*16}')
    vfill = [Ins(f'v_mov_b32 v{TT}, 0x3f80')] + t.l + c_signal(EV_V)
    tp = Stream(); tag_prefetch(tp, vTAG)
    def ps2(s):
        if 1 <= s <= Opt.vsteps: return part(vfill, s, 1, Opt.vsteps)
        if s == 20: return tp.l
        return []
    S.ext(P.stage(2, perstep=ps2))
    stamp(S, 5)
    qa = ACC[0]
    S(f'v_mov_b32 v{TT}, s{sL2E}')
    S.ext(scale_pack(qa[0], T)); S.ext(phi_mfma(qa[0], 0, T)); S.ext(scale_pack(qa[1], AF + 16)); S.ext(phi_mfma(qa[1], 1, AF + 16))
    S(f's_lshl_b32 s{sT0}, s{sRB}, 2\ns_add_u32 s{sT0}, s{sT0}, s{sWAVE}\ns_lshl_b32 s{sT0}, s{sT0}, 3\ns_add_u32 s{sT0}, s{sT0}, s{sIDX}\ns_lshl_b32 s{sT0}, s{sT0}, 13\ns_add_u32 s{sT0}, s{sT0}, {WS_PQ}\ns_add_u32 s{sT1}, s{sT0}, 4096')
    for c in range(2):
        X = qa[c]; E = va[c]; d = AF if c == 0 else X0
        for i in range(4): S(f'v_cndmask_b32 v{X+12+i}, v{X+12+i}, v{X+8+i}, {HI}')
        mx, mn = TT + 4, TT + 6
        minmax(S, X, mx, mn, TT + 5, TT + 7)
        if Opt.pkq:
            for i in range(0, 16, 2): S(f'v_pk_fma_f32 {v(E+i,2)}, {v(X+i,2)}, {v(TT,2)}, {v(mx,2)} op_sel_hi:[1,0,0]')
        else:
            for i in range(16): S(f'v_fma_f32 v{E+i}, v{X+i}, s{sL2E}, v{mx}')
        for i in range(16): S(f'v_exp_f32 v{E+i}, v{E+i}')
        for i in range(8): S(f'v_cvt_pk_bf16_f32 v{d+i}, v{E+2*i}, v{E+2*i+1}')
        for hh in range(2):
            S(f'buffer_store_dwordx4 {v(d+4*hh,4)}, v{vL16}, {srd(SRD_WS)}, s{sT0 + c} offen offset:{hh*1024} sc1', tok='st')
        if Opt.pkq:
            for i in range(0, 16, 2): S(f'v_pk_fma_f32 {v(X+i,2)}, {v(X+i,2)}, {v(TT,2)}, {v(mn,2)} op_sel_hi:[1,0,0] neg_lo:[1,0,0] neg_hi:[1,0,0]')
        else:
            for i in range(16): S(f'v_fma_f32 v{X+i}, -v{X+i}, s{sL2E}, v{mn}')
        for i in range(16): S(f'v_exp_f32 v{X+i}, v{X+i}')
        for i in range(8): S(f'v_cvt_pk_bf16_f32 v{d+8+i}, v{X+2*i}, v{X+2*i+1}')
        for hh in range(2):
            S(f'buffer_store_dwordx4 {v(d+8+4*hh,4)}, v{vL16}, {srd(SRD_WS)}, s{sT0 + c} offen offset:{2048 + hh*1024} sc1', tok='st')
    stamp(S, 6)

PHI = 16; PN = 144; KV = 208; XT = 240
vO = 3; vVW2 = [6, 7]
def out_addr(S, xt, off):
    S(f'v_and_b32 v8, 31, v{vLANE}\nv_mul_u32_u24 v{vO}, 896, v8\nv_lshrrev_b32 v8, 5, v{vLANE}\nv_lshl_add_u32 v{vO}, v8, 4, v{vO}')
    S(f's_and_b32 s{sT0}, s{sW4}, 1\ns_lshl_b32 s{sT1}, s{sTB}, 1\ns_add_u32 s{sT0}, s{sT0}, s{sT1}\ns_mul_i32 s{sFT}, s{sT0}, {32*896}')
    S(f's_lshr_b32 s{sT0}, s{sW4}, 1\ns_lshl_b32 s{sT0}, s{sT0}, 6\ns_add_u32 s{sFT}, s{sFT}, s{sT0}\ns_lshl_b32 s{sT0}, s{sCB}, 7\ns_add_u32 s{sFT}, s{sFT}, s{sT0}')
    S(f'buffer_load_dwordx4 {v(xt,4)}, v{vO}, {srd(SRD_X)}, s{sFT} offen offset:{off}')

def final_half(S, isA, acc, xt):
    own = acc + 48 + (8 if isA else 0)
    oth = acc + 48 + (0 if isA else 8)
    reg = A_REG if isA else F_REG; base = A_BASE if isA else 0
    ho = 2048 if isA else 0
    W = [16, 17, 18, 19]
    S(f's_mul_i32 s{sT3}, s{sW4}, {reg}')
    for vq in range(4):
        S(f's_xor_b32 s{sT0}, s{sW4}, {vq ^ 3}\ns_lshl_b32 s{sT0}, s{sT0}, 12\ns_add_u32 s{sT0}, s{sT0}, s{sT3}\ns_add_u32 s{sT0}, s{sT0}, {base}\nv_add_u32 v{W[vq]}, s{sT0}, v{vL16}')
    for i in range(2):
        S(f'ds_write_b128 v{W[3]}, {v(oth+4*i,4)} offset:{(2048 - ho) + i*1024}')
    for vq in range(3):
        for i in range(4):
            S(f'ds_write_b128 v{W[vq]}, {v(acc+16*vq+4*i,4)} offset:{i*1024}')
    S(f's_lshl_b32 s{sT2}, s{sW4}, 12\ns_add_u32 s{sT2}, s{sT2}, {ho}')
    for k in range(1, 4):
        S(f's_xor_b32 s{sT0}, s{sW4}, {k}\ns_mul_i32 s{sT0}, s{sT0}, {reg}\ns_add_u32 s{sT0}, s{sT0}, s{sT2}\ns_add_u32 s{sT0}, s{sT0}, {base}\nv_add_u32 v{19+k}, s{sT0}, v{vL16}')
    oreg = F_REG if isA else A_REG; obase = 0 if isA else A_BASE
    S(f's_add_u32 s{sT0}, s{sT2}, {obase}\nv_add_u32 v23, s{sT0}, v{vL16}\nv_add_u32 v24, {2*oreg}, v23')
    S(f'v_permlane32_swap_b32 v{xt}, v{xt+2}\nv_permlane32_swap_b32 v{xt+1}, v{xt+3}')
    E = 96
    for i in range(4): S(f'v_lshlrev_b32 v{E+2*i}, 16, v{xt+i}\nv_and_b32 v{E+2*i+1}, 0xffff0000, v{xt+i}')
    S('s_waitcnt lgkmcnt(0)\ns_barrier')
    stamp(S, 13 if isA else 14)
    O, P_ = 32, 64
    rdO = [f'ds_read_b128 {v(O+8*f+4*i,4)}, v{23 + f//2} offset:{(f%2)*oreg + i*1024}' for f in range(4) for i in range(2)]
    rdP = [f'ds_read_b128 {v(P_+8*k+4*i,4)}, v{20+k} offset:{i*1024}' for k in range(3) for i in range(2)]
    for r in (rdO + rdP if isA else rdP + rdO): S(r)
    def sumO():
        for i in range(8): S(f'v_add_f32 v{O+i}, v{O+i}, v{O+8+i}')
        for i in range(8): S(f'v_add_f32 v{O+16+i}, v{O+16+i}, v{O+24+i}')
        for i in range(8): S(f'v_add_f32 v{O+i}, v{O+i}, v{O+16+i}')
    def sumP():
        for i in range(8): S(f'v_add_f32 v{P_+i}, v{P_+i}, v{own+i}')
        for i in range(8): S(f'v_add_f32 v{P_+8+i}, v{P_+8+i}, v{P_+16+i}')
        for i in range(8): S(f'v_add_f32 v{P_+i}, v{P_+i}, v{P_+8+i}')
    G, Sg = (O, P_) if isA else (P_, O)
    (sumO if isA else sumP)()
    Q = 104
    for i in range(8): S(f'v_mul_f32 v{Q+i}, {hx(f2u(-L2E))}, v{G+i}')
    for i in range(8): S(f'v_exp_f32 v{Q+i}, v{Q+i}')
    (sumP if isA else sumO)()
    for i in range(8): S(f'v_add_f32 v{Q+i}, 1.0, v{Q+i}')
    for i in range(8): S(f'v_rcp_f32 v{Q+i}, v{Q+i}')
    for i in range(8): S(f'v_mul_f32 v{G+i}, v{G+i}, v{Sg+i}')
    for i in range(8): S(f'v_fmac_f32 v{E+i}, v{G+i}, v{Q+i}')
    for i in range(4): S(f'v_cvt_pk_bf16_f32 v{xt+i}, v{E+2*i}, v{E+2*i+1}')
    S(f'v_permlane32_swap_b32 v{xt}, v{xt+2}\nv_permlane32_swap_b32 v{xt+1}, v{xt+3}')
    S(f'buffer_store_dwordx4 {v(xt,4)}, v{vO}, {srd(SRD_OUT)}, s{sFT} offen offset:{32 if isA else 0}')

def c_publish(S, have_tag, tile):
    if tile:
        S.ext(c_signal(EV_END))
        out_addr(S, XT, 32)
        lane_consts_tr(S, vVW2, 8, 64, 'B')
        S(f's_mul_i32 s{sT3}, s{sW4}, {A_REG}\ns_add_u32 s{sT3}, s{sT3}, {A_BASE}')
        S(f's_xor_b32 s{sT0}, s{sW4}, 3\ns_lshr_b32 s{sT1}, s{sT0}, 1\ns_lshl_b32 s{sT1}, s{sT1}, 6\ns_and_b32 s{sT2}, s{sT0}, 1\ns_lshl_b32 s{sT2}, s{sT2}, 16')
        S(f'v_add_u32 v{vVW2[0]}, s{sT3}, v{vVW2[0]}\nv_xor_b32 v{vVW2[0]}, s{sT1}, v{vVW2[0]}\nv_xor_b32 v{vVW2[1]}, 64, v{vVW2[0]}')
        S(f'v_add_u32 v10, s{sT2}, v{vL16}\nv_xor_b32 v11, 0x10000, v10')
    S(f's_lshl_b32 s{sT0}, s{sRB}, 1\ns_lshr_b32 s{sT1}, s{sW4}, 1\ns_add_u32 s{sT0}, s{sT0}, s{sT1}\ns_lshl_b32 s{sT0}, s{sT0}, 15\ns_lshl_b32 s{sT1}, s{sROLE}, 8\ns_add_u32 s{sT0}, s{sT0}, s{sT1}')
    S(f's_and_b32 s{sT1}, s{sW4}, 1\ns_lshl_b32 s{sT1}, s{sT1}, 7\ns_add_u32 s{sT0}, s{sT0}, s{sT1}\ns_add_u32 s{sT0}, s{sT0}, {WS_FH}')
    if not have_tag: tag_get(S, vTAG)
    S.wait('st')
    flag_store(S, sT0, TT, 7, 12)
    stamp(S, 7)

W2R = 16; FACC = 144; HR = 208
vLW, vLS, vL2 = 3, 4, 5
def swz_voff(S, dst, pitch, tmp):
    S(f'v_lshrrev_b32 v{tmp}, 3, v{vLANE}\nv_mul_lo_u32 v{dst}, v{tmp}, {pitch}')
    S(f'v_bfe_u32 v{tmp}, v{vLANE}, 4, 1\nv_lshlrev_b32 v{tmp}, 2, v{tmp}\nv_and_b32 v{tmp+1}, 7, v{vLANE}\nv_xor_b32 v{tmp}, v{tmp}, v{tmp+1}\nv_lshl_add_u32 v{dst}, v{tmp}, 4, v{dst}')
def flat(l): return [x for y in l for x in y]
def sprinkle(main, units):
    out = []; n = len(main); k = len(units); j = 0
    for i, x in enumerate(main):
        while j < k and (j + 0.5) * n / max(k, 1) <= i and x.kind in ('valu', 'trans'):
            out += units[j]; j += 1
        out.append(x)
    return out + flat(units[j:])

def l_phase1(S, ffn, tile):
    sBLK, sP64, sP448, sP32, sW2, sK2 = sU0, sU1, sU2, sU3, sU4, sU5
    S(f's_mul_i32 s{sFS}, s{sW4}, s{sPITCH}\ns_lshl_b32 s{sFS}, s{sFS}, 3')
    S(f's_lshl_b32 s{sT3}, s{sW4}, 10\ns_lshl_b32 s{sP64}, s{sPITCH}, 6\ns_lshl_b32 s{sP32}, s{sPITCH}, 5\ns_mul_i32 s{sP448}, s{sPITCH}, 448\ns_mul_i32 s{sBLK}, s{sP64}, s{sROT1}')
    def dma_half(h):
        units = []
        st = h // 2
        for k in range(7):
            St = Stream()
            kk = (h % 2) * 7 + k
            St(f's_add_u32 m0, s{sT3}, {(half_base(h) + k*4096) if h != 1 else (SPARE + k*4096 if k < 4 else (k - 4)*4096)}')
            if kk % 2 == 0:
                St(f's_add_u32 s{sT0}, s{sBLK}, s{sFS}\ns_add_u32 s{sT0}, s{sT0}, s{sCOL[st]}')
            else:
                if k == 0: St(f's_add_u32 s{sT0}, s{sBLK}, s{sFS}\ns_add_u32 s{sT0}, s{sT0}, s{sCOL[st]}')
                St(f's_add_u32 s{sT0}, s{sT0}, s{sP32}')
                wrap_inc(St, sBLK, f's{sP64}', f's{sP448}')
            St(f'buffer_load_dwordx4 v{vLW}, {srd(SRD_W)}, s{sT0} offen lds', tok=('h', h if not (h == 1 and k >= 4) else CN_H1B))
            units.append(St.l)
        return units
    def sig(h):
        S.wait(('h', h))
        if h < 5: stamp(S, 2 + h)
        l_signal(S, h)
    if Opt.cpf:
        lab = newlab('pc')
        S(f's_getpc_b64 s[72:73]\n{lab}:\ns_sub_u32 s72, s72, {lab} - {NAME}\ns_subb_u32 s73, s73, 0')
        S(f's_lshl_b32 s{sT0}, s{sI}, 2\ns_add_u32 s{sT0}, s{sT0}, s{sW4}\ns_lshl_b32 s{sT0}, s{sT0}, 2\nv_add_u32 v8, s{sT0}, v{vLANE}\nv_lshlrev_b32 v8, 7, v8\nv_min_u32 v8, L_end - {NAME}, v8')
        S(f's_mov_b64 exec, 15\nglobal_load_dword v200, v8, s[72:73]\ns_mov_b64 exec, -1')
    S('s_barrier')
    S.ext(flat(dma_half(0)))
    if not ffn:
        S(f's_add_u32 m0, s{sT3}, {WPHI_L}\ns_mul_i32 s{sT0}, s{sIDX}, 3136\ns_add_u32 s{sT0}, s{sT0}, s{sT3}\ns_cmp_eq_u32 s{sW4}, 3\ns_cselect_b32 exec_hi, 0, -1')
        S(f'buffer_load_dwordx4 v{vL16}, {srd(SRD_WPHI)}, s{sT0} offen lds', tok=('h', 0))
        S('s_mov_b64 exec, -1')
    h1 = dma_half(1)
    S.ext(flat(h1[:4]))
    if Opt.tlb:
        st_ = Opt.tlb
        S(f'v_lshlrev_b32 v8, {st_}, v{vLANE}')
        S(f's_mul_i32 s{sT0}, s{sTB}, {224*K1}\ns_lshl_b32 s{sT1}, s{sTB}, 17\ns_add_u32 s{sT1}, s{sT1}, {WS_PQ}\ns_cmp_eq_u32 s{sW4}, 1\ns_cselect_b32 s{sT0}, s{sT1}, s{sT0}')
        S(f's_mov_b32 s{sT1}, {WS_KVF}\ns_cmp_eq_u32 s{sW4}, 2\ns_cselect_b32 s{sT0}, s{sT1}, s{sT0}')
        S(f's_mul_i32 s{sT1}, s{sRB}, {448*K1}\ns_cmp_eq_u32 s{sW4}, 3\ns_cselect_b32 s{sT0}, s{sT1}, s{sT0}')
        n_ = min(64, (448 * K1) >> st_)
        S(f's_mov_b32 exec_lo, {hex(((1 << n_) - 1) & 0xffffffff)}\ns_mov_b32 exec_hi, {hex(((1 << n_) - 1) >> 32)}')
        S(f'buffer_load_dword v200, v8, {srd(SRD_WS)}, s{sT0} offen sc1\ns_mul_i32 s{sT1}, s{sTB}, {64*896}\ns_mov_b64 exec, 3\nbuffer_load_dword v200, v8, {srd(SRD_OUT)}, s{sT1} offen\nbuffer_load_dword v200, v8, {srd(SRD_W2)}, 0 offen\nbuffer_load_dword v200, v8, {srd(SRD_WO)}, 0 offen\ns_mov_b64 exec, -1')
    stamp(S, 'e5')
    lab = newlab('nt')
    S(f's_or_b32 s{sT0}, s2, s{sW4}\ns_cmp_lg_u32 s{sT0}, 0\ns_cbranch_scc1 {lab}')
    raw(S, f's_mov_b32 s{sT0}, {WS_TAG}\nv_mov_b32 v9, 0\ns_mov_b64 exec, 1\nbuffer_load_dword v8, v9, {srd(SRD_WS)}, s{sT0} offen sc1\ns_waitcnt vmcnt(0)\n'
           f'v_add_u32 v8, 1, v8\nv_max_u32 v8, 1, v8\ns_nop 1\nbuffer_store_dword v8, v9, {srd(SRD_WS)}, s{sT0} offen sc1\nbuffer_store_dword v8, v9, {srd(SRD_DBG)}, 0 offen sc1\ns_waitcnt vmcnt(0)\ns_mov_b64 exec, -1\n{lab}:')
    S(f'v_lshlrev_b32 v{vLC}, 2, v{vLANE}\nv_add_u32 v{vLC}, {CTL}, v{vLC}\nv_mov_b32 v{vLONE}, 1\nv_mov_b32 v{vLP+4}, {CTL}')
    if ffn:
        S(f'v_lshrrev_b32 v8, 2, v{vLANE}\nv_mul_u32_u24 v{vLS}, 3584, v8\nv_and_b32 v8, 3, v{vLANE}\nv_lshl_add_u32 v{vLS}, v8, 4, v{vLS}')
    else:
        S(f'v_and_b32 v8, 31, v{vLANE}\ns_lshl_b32 s{sT0}, s{sW4}, 5\nv_add_u32 v8, s{sT0}, v8\nv_lshrrev_b32 v9, 5, v{vLANE}\nv_lshlrev_b32 v9, 3, v9')
        S(f'v_mul_u32_u24 v{vLPW}, 112, v8\nv_add_u32 v{vLPW}, v{vLPW}, v9')
        S(f'v_cndmask_b32 v{vLMK}, 1.0, 0, {HI}\nv_mov_b32 v{vLL2E}, s{sL2E}')
        trb(S, vLWP, 2, 56, 8)
        S(f'v_add_u32 v{vLWP}, {WPHI_L}, v{vLWP}')
    S(f's_lshl_b32 s{sT0}, s{sW4}, 12\ns_add_u32 s{sT0}, s{sT0}, {SPARE}\nv_add_u32 v{vLRD}, s{sT0}, v{vL16}')
    if tile:
        S(f's_mov_b32 s{sT1}, 896'); swz_voff(S, vL2, f's{sT1}', 8)
        lane_consts_tr(S, vVW2, 8, 64, 'B')
        S(f's_xor_b32 s{sT1}, s{sW4}, 3\ns_lshr_b32 s{sT1}, s{sT1}, 1\ns_lshl_b32 s{sT1}, s{sT1}, 6\nv_xor_b32 v{vVW2[0]}, s{sT1}, v{vVW2[0]}\nv_xor_b32 v{vVW2[1]}, 64, v{vVW2[0]}')
        S(f's_mul_i32 s{sW2}, s{sW4}, {448*896}\ns_lshl_b32 s{sT2}, s{sCB}, 7\ns_add_u32 s{sW2}, s{sW2}, s{sT2}\ns_mul_i32 s{sK2}, s{sROT2}, {16*896}')
        S(f'v_add_u32 v13, {8*896}, v{vL2}')
    def w2stage(base, stride, ns):
        if not tile: return
        S(f's_mul_i32 s{sT2}, s{sW4}, {stride}\ns_add_u32 s{sT2}, s{sT2}, {base}\nv_add_u32 v9, s{sT2}, v{vVW2[0]}\nv_add_u32 v10, s{sT2}, v{vVW2[1]}')
        def dma(ks):
            o = (ks % ns) * 2048
            S(f's_add_u32 m0, s{sT2}, {o}\ns_add_u32 s{sT1}, s{sW2}, s{sK2}')
            if ks >= ns: S.wait(('wr', ks - ns))
            S(f'buffer_load_dwordx4 v{vL2}, {srd(SRD_W2)}, s{sT1} offen lds', tok=('w', ks))
            S(f's_add_u32 m0, s{sT2}, {o + 1024}')
            wrap_inc(S, sK2, 16 * 896, 448 * 896)
            S(f'buffer_load_dwordx4 v13, {srd(SRD_W2)}, s{sT1} offen lds', tok=('w', ks))
        d = ns - 1
        for ks in range(min(d, 16)): dma(ks)
        for ks in range(16):
            if ks + d < 16: dma(ks + d)
            S.wait(('w', ks))
            o = (ks % ns) * 2048; b = W2R + 8 * ks
            for c in range(2):
                for u in range(2):
                    S(f'ds_read_b64_tr_b16 {v(b + 4*c + 2*u, 2)}, v{9+c} offset:{o + 1024*u}', tok=('wr', ks))
            if not ffn and ks in (0, 8): stamp(S, 3 + ks // 8)
    def w2raw(lo, hi):
        if not tile: return
        for ks in range(lo, hi):
            S(f's_add_u32 s{sT1}, s{sW2}, s{sK2}')
            S(f'buffer_load_dwordx4 {v(W2R+8*ks,4)}, v{vL2}, {srd(SRD_W2)}, s{sT1} offen')
            S(f'buffer_load_dwordx4 {v(W2R+8*ks+4,4)}, v13, {srd(SRD_W2)}, s{sT1} offen')
            wrap_inc(S, sK2, 16 * 896, 448 * 896)
    def tr(lo, hi):
        if not tile: return
        if lo == 0: S(f's_lshl_b32 s{sT0}, s{sW4}, 12\ns_add_u32 s{sT0}, s{sT0}, {SPARE}\nv_add_u32 v9, s{sT0}, v{vVW2[0]}\nv_add_u32 v10, s{sT0}, v{vVW2[1]}')
        for ks in range(lo, hi):
            o = (ks % 2) * 2048; b = W2R + 8 * ks
            S(f'ds_write_b128 v{vLRD}, {v(b,4)} offset:{o}\nds_write_b128 v{vLRD}, {v(b+4,4)} offset:{o+1024}')
            for c in range(2):
                for u in range(2):
                    S(f'ds_read_b64_tr_b16 {v(b + 4*c + 2*u, 2)}, v{9+c} offset:{o + 1024*u}')
    DUM = 200
    def pf(srd_, voff, soff, n):
        S(f's_mov_b32 exec_hi, {hex((1 << (n - 32)) - 1)}\nbuffer_load_dword v{DUM}, v{voff}, {srd(srd_)}, s{soff} offen\ns_mov_b32 exec_hi, -1', tok='pf')
    if Opt.wpf:
        S(f'v_mul_lo_u32 v14, v{vLANE}, s{sPITCH}\ns_and_b32 s{sT0}, s{sI}, 3\ns_mul_i32 s{sT0}, s{sT0}, 112')
        if ffn:
            S(f's_mul_i32 s{sT0}, s{sT0}, s{sPITCH}\ns_lshl_b32 s{sT1}, s{sW4}, 7\ns_add_u32 s{sT1}, s{sT1}, s{sCOL[0]}\ns_cmp_eq_u32 s{sW4}, 3\ns_cselect_b32 s{sT1}, s{sCOLS}, s{sT1}\ns_add_u32 s{sT0}, s{sT0}, s{sT1}')
            pf(SRD_W, 14, sT0, 56)
            S(f's_add_u32 s{sT0}, s{sT0}, {56*3584}')
            pf(SRD_W, 14, sT0, 56)
        else:
            S(f's_lshr_b32 s{sT1}, s{sW4}, 1\ns_mul_i32 s{sT1}, s{sT1}, 56\ns_add_u32 s{sT0}, s{sT0}, s{sT1}\ns_mul_i32 s{sT0}, s{sT0}, s{sPITCH}\ns_and_b32 s{sT1}, s{sW4}, 1\ns_mul_i32 s{sT1}, s{sT1}, 124\ns_add_u32 s{sT0}, s{sT0}, s{sT1}')
            for st in range(3):
                S(f's_add_u32 s{sT1}, s{sT0}, s{sCOL[st]}')
                pf(SRD_W, 14, sT1, 56)
    def w2_prefetch():
        if not Opt.w2pf: return
        S(f'v_lshlrev_b32 v14, 7, v{vLANE}\ns_lshl_b32 s{sT0}, s{sI}, 2\ns_add_u32 s{sT0}, s{sT0}, s{sW4}\ns_mul_i32 s{sT1}, s{sT0}, {98*128}')
        pf(SRD_W2, 14, sT1, 49)
        S(f's_add_u32 s{sT1}, s{sT1}, {49*128}')
        pf(SRD_W2, 14, sT1, 49)
        S(f's_mul_i32 s{sT1}, s{sT0}, {25*128}\ns_mov_b64 exec, 0x1ffffff\nbuffer_load_dword v{DUM}, v14, {srd(SRD_WO)}, s{sT1} offen\ns_mov_b64 exec, -1', tok='pf')
    def gpf(which):
        if not Opt.gpf: return
        S(f's_lshl_b32 s{sT0}, s2, 2\ns_add_u32 s{sT0}, s{sT0}, s{sW4}\nv_lshlrev_b32 v14, 7, v{vLANE}')
        S(f's_mov_b64 s[72:73], s[66:67]\ns_mov_b32 s74, {448*2688}\ns_mov_b32 s75, 0x20000') if False else None
        for (lo, n, size) in ((sKA_QKV, 10, 448*2688), (sKA_W1, 13, 448*3584), (SRD_W2, 13, None), (SRD_WO, 4, None))[which]:
            if size:
                S(f's_mov_b64 s[76:77], s[{lo}:{lo+1}]\ns_mov_b32 s78, {size}\ns_mov_b32 s79, 0x20000'); d = 76
            else: d = lo
            S(f's_mul_i32 s{sT1}, s{sT0}, {n*128}\ns_mov_b64 exec, {hex((1 << n) - 1)}\nbuffer_load_dword v{DUM}, v14, {srd(d)}, s{sT1} offen\ns_mov_b64 exec, -1', tok='pf')
    if Opt.gpf == 2: gpf(slice(0, 2))
    def wo_prefetch():
        S(f'v_lshlrev_b32 v14, 7, v{vLANE}\ns_lshl_b32 s{sT0}, s{sI}, 2\ns_add_u32 s{sT0}, s{sT0}, s{sW4}')
        S(f's_mul_i32 s{sT1}, s{sT0}, {25*128}\ns_mov_b64 exec, 0x1ffffff\nbuffer_load_dword v{DUM}, v14, {srd(SRD_WO)}, s{sT1} offen\ns_mov_b64 exec, -1', tok='pf')
    l_wait(S, EV_XFREE)
    stamp(S, 1)
    S(f's_add_u32 s{sT0}, s{sBLK}, s{sFS}\ns_add_u32 s{sT0}, s{sT0}, s{sCOL[0]}')
    S.ext(flat(h1[4:])); sig(0)
    h2 = dma_half(2)
    S.ext(flat(h2[:3])); sig(1); S.ext(flat(h2[3:5])); sig(CN_H1B); S.ext(flat(h2[5:]))
    h3 = dma_half(3)
    S.ext(flat(h3[:3])); sig(2); S.ext(flat(h3[3:]))
    if not ffn: tag_fetch_l0(S)
    h4 = dma_half(4)
    S.ext(flat(h4[:3])); sig(3); S.ext(flat(h4[3:]))
    gpf(slice(2, 4))
    if ffn:
        sig(4)
        l_wait(S, EV_C0)
        S.ext(flat(dma_half(5)))
        tag_fetch_l0(S)
        sig(5)
        l_wait(S, EV_C1)
        S(f's_lshl_b32 s{sFS}, s{sFS}, 1\ns_add_u32 s{sFS}, s{sFS}, s{sCOLS}')
        for k in range(7):
            S(f's_add_u32 m0, s{sT3}, {k*4096}\ns_add_u32 s{sT0}, s{sBLK}, s{sFS}')
            wrap_inc(S, sBLK, f's{sP64}', f's{sP448}')
            S(f'buffer_load_dwordx4 v{vLS}, {srd(SRD_W)}, s{sT0} offen lds', tok=('h', 6))
        sig(6)
        wo_prefetch()
        l_wait(S, EV_C3)
        w2stage(SLOT, 14 * K1, 7)
        stamp(S, 11)
    else:
        l_wait(S, EV_C0)
        S.ext(flat(dma_half(5)))
        wo_prefetch()
        kA, kB, KA = 194, 195, LX
        trb(S, kA, 3, 112, 8); trb(S, kB, 3, 72, 8)
        S(f's_lshr_b32 s{sT0}, s{sW4}, 1\ns_and_b32 s{sT1}, s{sW4}, 1\ns_mul_i32 s{sT2}, s{sT0}, 14336\ns_mul_i32 s{sT1}, s{sT1}, 56\ns_add_u32 s{sT2}, s{sT2}, s{sT1}\nv_add_u32 v{kA}, s{sT2}, v{kA}')
        S(f's_mul_i32 s{sT2}, s{sT0}, 9216\ns_add_u32 s{sT2}, s{sT2}, {SLOT}\nv_add_u32 v{kB}, s{sT2}, v{kB}')
        S(f's_lshl_b32 s{sFT}, s{sIDX}, 2\ns_add_u32 s{sFT}, s{sFT}, s{sW4}\ns_lshl_b32 s{sFS}, s{sFT}, 11\ns_lshl_b32 s{sFT}, s{sFT}, 4\ns_add_u32 s{sFT}, s{sFT}, s{sRB}\ns_lshl_b32 s{sFT}, s{sFT}, 12\ns_add_u32 s{sFT}, s{sFT}, {WS_KVP}')
        S(f's_lshl_b32 s{sT0}, s{sRB}, 7\ns_add_u32 s{sFS}, s{sFS}, s{sT0}\ns_add_u32 s{sFS}, s{sFS}, {WS_FP}')
        tag_prefetch(S, vTAG); tag_get(S, vTAG)
        sig(4)
        w2raw(0, Opt.aw2)
        l_wait(S, EV_PK)
        stamp(S, 12)
        if Opt.lprio: S('s_setprio 1')
        S.ext(softmax_k(None))
        l_signal(S, CN_PH)
        stamp(S, 11)
        sig(5)
        w2raw(Opt.aw2, 16)
        tr(0, Opt.tr1)
        stamp(S, 5)
        if Opt.kprio: S('s_setprio 1')
        l_wait(S, EV_V)
        S.ext(cnt_read(CN_PH, vLP)); S.ext(cnt_check(CN_PH, vLP))
        for ts in range(8):
            b = HR + 8 * (ts % 6)
            if ts >= 6: S(f'v_mfma_f32_32x32x16_bf16 {v(KA,16)}, {v(b,4)}, {v(b+4,4)}, {"0" if ts == 6 else v(KA,16)}')
            for u in range(2): S(f'ds_read_b64_tr_b16 {v(b + 2*u, 2)}, v{kA} offset:{(16*ts + 4*u)*112}')
            for u in range(2): S(f'ds_read_b64_tr_b16 {v(b + 4 + 2*u, 2)}, v{kB} offset:{(16*ts + 4*u)*72}')
        for ts in range(2, 8):
            b = HR + 8 * (ts % 6)
            S(f'v_mfma_f32_32x32x16_bf16 {v(KA,16)}, {v(b,4)}, {v(b+4,4)}, {v(KA,16)}')
        G_ = HR
        for i in range(8): S(f'v_mov_b32 v{G_+2*i+1}, s{sTAG}')
        for i in range(8): S(f'v_cvt_pk_bf16_f32 v{G_+2*i}, v{KA+2*i}, v{KA+2*i+1}')
        for j in range(4):
            S(f'buffer_store_dwordx4 {v(G_+4*j,4)}, v{vL16}, {srd(SRD_WS)}, s{sFT} offen offset:{j*1024} sc1', tok='kvp')
        if Opt.hint: flag_store(S, sFS, LE)
        S('s_setprio 0')
        stamp(S, 1)
        if Opt.ackdiag: S.wait('kvp'); stamp(S, 2); S('s_waitcnt vmcnt(0)')
        tr(Opt.tr1, 16)
        stamp(S, 6)
    if ffn: tag_prefetch(S, vTAG); tag_get(S, vTAG)
    if tile:
        l_signal(S, CN_LT)
        l_wait(S, EV_END)
        S.ext(cnt_read(CN_LT, vLP)); S.ext(cnt_check(CN_LT, vLP))
        stamp(S, 7)
        S(f's_mul_i32 s{sT3}, s{sW4}, {F_REG}')
        for i in range(12):
            S(f's_add_u32 m0, s{sT3}, {i*2048}\ns_add_u32 s{sT1}, s{sW2}, s{sK2}\ns_waitcnt vmcnt({Opt.bthr})')
            S(f'buffer_load_dwordx4 v{vL2}, {srd(SRD_W2)}, s{sT1} offen lds', tok='w2')
            S(f's_add_u32 m0, s{sT3}, {i*2048 + 1024}')
            wrap_inc(S, sK2, 16 * 896, 448 * 896)
            S(f'buffer_load_dwordx4 v13, {srd(SRD_W2)}, s{sT1} offen lds', tok='w2')
        stamp(S, 13)
        stamp(S, 14)
        S(f's_lshl_b32 s{sT2}, s{sW4}, 14\ns_add_u32 s{sT2}, s{sT2}, {A_BASE}\ns_lshl_b32 s{sU0}, s{sCB}, 7')
        for hd in range(0 if (Opt.nodma or Opt.nowo) else 4):
            S(f's_add_u32 s{sT0}, s{sCB}, {hd}\ns_and_b32 s{sT0}, s{sT0}, 3\ns_lshl_b32 s{sT1}, s{sW4}, 2\ns_add_u32 s{sT0}, s{sT0}, s{sT1}\ns_mul_i32 s{sT0}, s{sT0}, {28*896}\ns_add_u32 s{sT0}, s{sT0}, s{sU0}')
            for i in range(4):
                S(f's_add_u32 m0, s{sT2}, {hd*4096 + i*1024}\ns_waitcnt vmcnt({Opt.bthr})')
                if i == 2: S(f's_add_u32 s{sT0}, s{sT0}, {16*896}')
                if hd == 3 and i == 3: S(f's_cmp_eq_u32 s{sW4}, 3\ns_cselect_b32 exec_hi, 0, -1')
                S(f'buffer_load_dwordx4 v{vL2 if i % 2 == 0 else 13}, {srd(SRD_WO)}, s{sT0} offen lds', tok='wo')
        S('s_mov_b64 exec, -1')

def hflag_poll(S):
    S(f'v_lshlrev_b32 v8, 7, v{vLANE}')
    S(f's_lshl_b32 s{sT0}, s{sTB}, 3\ns_add_u32 s{sT0}, s{sT0}, s{sCB}\ns_lshl_b32 s{sT0}, s{sT0}, 12\ns_lshl_b32 s{sT1}, s{sW4}, 9\ns_add_u32 s{sT0}, s{sT0}, s{sT1}\ns_add_u32 s{sT0}, s{sT0}, {WS_FH}')
    poll(S, 8, sT0, 4, 9)

def f_phase2(S):
    stamp(S, 10)
    if Opt.fprio: S('s_setprio 1')
    sK = sU1
    S(f'v_add_u32 v10, s{sT3}, v{vVW2[1]}\nv_add_u32 v14, s{sT3}, v{vVW2[0]}')
    out_addr(S, 4, 0)
    S(f's_mul_i32 s{sU2}, s{sTB}, {224*K1}\ns_mul_i32 s{sT2}, s{sW4}, {28*K1}\ns_add_u32 s{sU2}, s{sU2}, s{sT2}\ns_lshl_b32 s{sK}, s{sROT2}, 10')
    S(f's_and_b32 s{sT2}, s{sW4}, 1\ns_mul_i32 s{sT2}, s{sT2}, {112*K1}\nv_add_u32 v13, s{sT2}, v{vL16}\ns_sub_u32 s{sT2}, {112*K1}, s{sT2}\nv_add_u32 v15, s{sT2}, v{vL16}')
    hflag_poll(S)
    S(f'v_mov_b32 v8, 4\nds_write_b32 v{vCTL}, v8 offset:{128 + 16*CN_WO}\nv_mov_b32 v9, v14')
    stamp(S, 8)
    hdst = {}
    for ks in range(28):
        if ks < 6: hdst[ks] = HR + 8 * ks
        elif ks < 16: hdst[ks] = W2R + 8 * (ks - 6)
        else: hdst[ks] = hdst[ks - 12]
    adst = {ks: (W2R + 8 * ks if ks < 16 else W2R + 8 * (10 + (ks - 16) % 3)) for ks in range(28)}
    def hload(ks):
        S(f's_add_u32 s{sT0}, s{sU2}, s{sK}')
        S(f'buffer_load_dwordx4 {v(hdst[ks],4)}, v15, {srd(SRD_WS)}, s{sT0} offen sc1')
        S(f'buffer_load_dwordx4 {v(hdst[ks]+4,4)}, v13, {srd(SRD_WS)}, s{sT0} offen sc1')
        if ks < 27: wrap_inc(S, sK, 1024, 28 * K1)
    def aread(ks):
        o = (ks - 16) * 2048; b = adst[ks]
        for c in range(2):
            for u in range(2):
                S(f'ds_read_b64_tr_b16 {v(b + 4*c + 2*u, 2)}, v{9+c} offset:{o + 1024*u}')
    for ks in range(6): hload(ks)
    nxt = 6
    for ks in range(28):
        for c in range(2):
            for tt2 in range(2):
                acc = FACC + 16 * (2 * c + tt2)
                S(f'v_mfma_f32_32x32x16_bf16 {v(acc,16)}, {v(adst[ks]+4*c,4)}, {v(hdst[ks]+4*tt2,4)}, {"0" if ks == 0 else v(acc,16)}')
                if c == 0 and tt2 == 0 and 16 <= ks + 2 < 28: aread(ks + 2)
        if Opt.fdiag and ks in (0, 4, 8, 12, 16, 22): stamp(S, 1 + (0, 4, 8, 12, 16, 22).index(ks))
        while nxt < 28 and ((nxt < 16 and nxt - 6 <= ks) or (nxt >= 16 and nxt - 12 <= ks)):
            hload(nxt); nxt += 1
    stamp(S, 9)
    final_half(S, False, FACC, 4)

def a_phase2(S):
    for hd in range(4):
        S(f's_add_u32 s{sU0+hd}, s{sCB}, {hd}\ns_and_b32 s{sU0+hd}, s{sU0+hd}, 3\ns_lshl_b32 s{sU0+hd}, s{sU0+hd}, 12')
    S(f's_lshl_b32 s{sU4}, s{sTB}, 17\ns_lshl_b32 s{sT2}, s{sW4}, 14\ns_add_u32 s{sU4}, s{sU4}, s{sT2}\ns_add_u32 s{sU4}, s{sU4}, {WS_PQ}')
    S(f's_add_u32 s{sU5}, s{sT2}, {WS_KVF}')
    S(f'v_lshlrev_b32 v8, 7, v{vLANE}\ns_lshl_b32 s{sT1}, s{sXCD}, 12\ns_add_u32 s{sT1}, s{sT1}, {WS_FK}\nv_lshlrev_b32 v13, 2, v{vLANE}\nv_add_u32 v13, {CTL}, v13\nv_mov_b32 v9, 4\nv_lshlrev_b32 v5, 3, v{vLANE}')
    if Opt.aprio: S('s_setprio 1')
    S('s_waitcnt vmcnt(0)')
    S.ext(cnt_read(CN_WO, vCT)); S.ext(cnt_check(CN_WO, vCT, 1))
    stamp(S, 8)
    def phiload(hd):
        t_ = Stream()
        t_(f's_add_u32 s{sT2}, s{sU4}, s{sU0+hd}')
        for tt2 in range(2):
            t = hd * 2 + tt2
            for st in range(4):
                t_(f'buffer_load_dwordx4 {v(PHI+16*t+4*st,4)}, v{10 + tt2}, {srd(SRD_WS)}, s{sT2} offen offset:{st*1024} sc1')
        return t_.l
    def kvload(hd):
        t = Stream()
        t(f's_add_u32 s{sT0}, s{sU5}, s{sU0+hd}')
        for st in range(4):
            for hh in range(2):
                t(f'buffer_load_dwordx2 {v(KV+16*(hd%2)+4*st+2*hh,2)}, v5, {srd(SRD_WS)}, s{sT0} offen offset:{st*1024 + hh*512} sc1')
        return t.l
    def watch(load, cn, sleep):
        again, oth, done = newlab('kv'), newlab('kv'), newlab('kv')
        S(f's_mov_b32 s{sBND}, 0\ns_cmp_lg_u32 s{sW4}, 0\ns_cbranch_scc1 {oth}')
        raw(S, f'{again}:\n{load}\ns_waitcnt vmcnt(0)\nv_cmp_ne_u32 vcc, s{sTAG}, v4\ns_nop 1\ns_cbranch_vccz {done}\n'
               f's_add_u32 s{sBND}, s{sBND}, 1\ns_cmp_gt_u32 s{sBND}, 0x20000\ns_cbranch_scc1 {done}\ns_sleep {sleep}\ns_branch {again}\n'
               f'{done}:\ns_mov_b64 exec, 15\nds_write_b32 v13, v9 offset:{128 + 16*cn}\ns_mov_b64 exec, -1\n{oth}:')
        S(f's_mov_b32 s{sU0+8}, s{sBND}')
        S.ext(cnt_read(cn, vCT)); S.ext(cnt_check(cn, vCT, 1))
    S(f's_lshl_b32 s{sT0}, s{sTB}, 3\ns_add_u32 s{sT0}, s{sT0}, s{sCB}\ns_lshl_b32 s{sT0}, s{sT0}, 12\ns_add_u32 s{sT0}, s{sT0}, {WS_FH + 2048}')
    watch(f's_mov_b64 exec, 0xffff\nbuffer_load_dword v4, v8, {srd(SRD_WS)}, s{sT0} offen sc1', CN_PQ, Opt.ksleep)
    stamp(S, 9)
    for hd in range(4):
        if hd >= 1 and Opt.athr: S(f's_waitcnt vmcnt({Opt.athr})')
        S.ext(phiload(hd))
    watch(f's_mov_b64 exec, 0xffffffff\nbuffer_load_dword v4, v8, {srd(SRD_WS)}, s{sT1} offen sc1', CN_KV, Opt.ksleep)
    stamp(S, 10)
    if Opt.diag == 2 and Opt.fine < 0: S(f's_mul_i32 s{STAMP0+14}, s{sU0+8}, 1000\ns_add_u32 s{STAMP0+14}, s{STAMP0+14}, s{STAMP0}')
    S.ext(kvload(0)); S.ext(kvload(1))
    def num(t):
        hd = t // 2; kb = KV + 16 * (hd % 2); aP = PN + 32 * (t % 2); aN = aP + 16; ph = PHI + 16 * t
        return [Ins(f'v_mfma_f32_32x32x16_bf16 {v(aP,16)}, {v(kb,4)}, {v(ph,4)}, 0'),
                Ins(f'v_mfma_f32_32x32x16_bf16 {v(aN,16)}, {v(kb+8,4)}, {v(ph+8,4)}, 0'),
                Ins(f'v_mfma_f32_32x32x16_bf16 {v(aP,16)}, {v(kb+4,4)}, {v(ph+4,4)}, {v(aP,16)}'),
                Ins(f'v_mfma_f32_32x32x16_bf16 {v(aN,16)}, {v(kb+12,4)}, {v(ph+12,4)}, {v(aN,16)}')]
    def onorm(t):
        S = Stream()
        aP = PN + 32 * (t % 2); aN = aP + 16; ph = PHI + 16 * t
        rP, rN, dn, a, b = TT, TT + 1, TT + 2, TT + 3, TT + 4
        S(f'v_rcp_f32 v{rP}, v{aP+13}\nv_rcp_f32 v{rN}, v{aN+13}')
        S(f'v_mov_b32 v{dn}, {hx(f2u(1e-6))}\nv_fmac_f32 v{dn}, v{aP+12}, v{rP}\nv_fmac_f32 v{dn}, v{aN+12}, v{rN}\nv_rcp_f32 v{dn}, v{dn}')
        S(f'v_nop\nv_mul_f32 v{rP}, v{rP}, v{dn}\nv_mul_f32 v{rN}, v{rN}, v{dn}\nv_mov_b32 v{a}, v{rP}\nv_mov_b32 v{b}, v{rN}')
        S(f'v_permlane32_swap_b32 v{rP}, v{a}\nv_permlane32_swap_b32 v{rN}, v{b}')
        for i in range(16): S(f'v_mul_f32 v{aP+i}, v{aP+i}, v{a}')
        for i in range(16): S(f'v_fmac_f32 v{aP+i}, v{aN+i}, v{b}')
        for i in range(8): S(f'v_cvt_pk_bf16_f32 v{ph+i}, v{aP+2*i}, v{aP+2*i+1}')
        S(f'v_cndmask_b32 v{ph+6}, v{ph+6}, 0, {HI}\nv_cndmask_b32 v{ph+7}, v{ph+7}, 0, {HI}')
        return S.l
    S.ext(num(0))
    for t in range(8):
        o = onorm(t)
        if Opt.fdiag and t in (0, 1, 2, 4, 6): stamp(S, 1 + (0, 1, 2, 4, 6).index(t))
        if t + 1 < 8:
            m = num(t + 1)
            S.ext(m[0:2]); S.ext(o[0:13]); S.ext(m[2:3]); S.ext(o[13:22]); S.ext(m[3:4])
            if t % 2 == 0 and t // 2 + 2 < 4: S.ext(kvload(t // 2 + 2))
            S.ext(o[22:])
        else:
            S.ext(o)
    stamp(S, 11)
    SA = PN
    def woread(n):
        hd, st = n // 2, n % 2; b = KV + 8 * (n % 4)
        for c in range(2):
            for u in range(2):
                S(f'ds_read_b64_tr_b16 {v(b+4*c+2*u,2)}, v{vVW2[c]} offset:{(32*hd + 16*st + 8*u)*128}')
    woread(0); woread(1)
    for n in range(8):
        hd, st = n // 2, n % 2; b = KV + 8 * (n % 4)
        for c in range(2):
            for tt2 in range(2):
                acc = SA + 16 * (2 * c + tt2); ob = PHI + 16 * (2 * hd + tt2) + 4 * st
                S(f'v_mfma_f32_32x32x16_bf16 {v(acc,16)}, {v(b+4*c,4)}, {v(ob,4)}, {"0" if n == 0 else v(acc,16)}')
                if c == 0 and tt2 == 0 and n + 2 < 8: woread(n + 2)
    stamp(S, 12)
    final_half(S, True, SA, XT)

def reducer(S):
    S(f'v_lshlrev_b32 v8, 7, v{vLANE}\ns_lshl_b32 s{sT0}, s{sTB}, 11\ns_add_u32 s{sT0}, s{sT0}, {WS_FP}')
    S(f's_lshl_b32 s{sU2}, s{sTB}, 16\ns_lshl_b32 s{sT2}, s{sW4}, 10\ns_add_u32 s{sU2}, s{sU2}, s{sT2}\ns_add_u32 s{sU2}, s{sU2}, {WS_KVP}')
    S(f's_lshl_b32 s{sU1}, s{sTB}, 1\ns_lshr_b32 s{sT1}, s{sW4}, 1\ns_add_u32 s{sU1}, s{sU1}, s{sT1}\ns_lshl_b32 s{sU1}, s{sU1}, 10\ns_and_b32 s{sT1}, s{sW4}, 1\ns_lshl_b32 s{sT1}, s{sT1}, 9\ns_add_u32 s{sU1}, s{sU1}, s{sT1}\ns_add_u32 s{sU1}, s{sU1}, {WS_KVF}')
    S(f's_lshl_b32 s{sU0}, s{sTB}, 7\ns_add_u32 s{sU0}, s{sU0}, {WS_FK}')
    if Opt.hint:
        o_ = newlab('ro')
        S(f's_waitcnt vmcnt(0)\ns_cmp_lg_u32 s{sW4}, 0\ns_cbranch_scc1 {o_}')
        poll(S, 8, sT0, 16, 9, Opt.rsleep)
        S(f'v_mov_b32 v9, 4\ns_mov_b64 exec, 15\nds_write_b32 v{vLC}, v9 offset:{128 + 16*CN_KV}\ns_mov_b64 exec, -1\n{o_}:')
        S.ext(cnt_read(CN_KV, vLP)); S.ext(cnt_check(CN_KV, vLP))
    stamp(S, 8)
    again, done = newlab('rd'), newlab('rd')
    S(f's_mov_b32 s{sBND}, 0\n{again}:')
    for rb in range(16):
        S(f's_add_u32 s{sT0}, s{sU2}, {rb*4096}')
        S(f'buffer_load_dwordx4 {v(32+4*rb,4)}, v{vL16}, {srd(SRD_WS)}, s{sT0} offen sc1')
    S(f'v_mov_b32 v8, 0\nv_mov_b32 v16, 0\nv_mov_b32 v17, 0\nv_mov_b32 v18, 0\nv_mov_b32 v19, 0')
    for rb in range(16):
        b = 32 + 4 * rb
        S(f'v_xor_b32 v9, s{sTAG}, v{b+1}\nv_xor_b32 v10, s{sTAG}, v{b+3}\nv_or3_b32 v8, v8, v9, v10')
        S(f'v_lshlrev_b32 v{b+1}, 16, v{b}\nv_and_b32 v{b}, 0xffff0000, v{b}\nv_lshlrev_b32 v{b+3}, 16, v{b+2}\nv_and_b32 v{b+2}, 0xffff0000, v{b+2}')
        S(f'v_add_f32 v16, v16, v{b+1}\nv_add_f32 v17, v17, v{b}\nv_add_f32 v18, v18, v{b+3}\nv_add_f32 v19, v19, v{b+2}')
    S(f'v_cmp_ne_u32 vcc, 0, v8\ns_add_u32 s{sBND}, s{sBND}, 1\ns_cbranch_vccz {done}\ns_sleep {Opt.rsleep}\ns_cmp_lt_u32 s{sBND}, 0x8000\ns_cbranch_scc1 {again}\n{done}:')
    if Opt.diag: S(f's_mul_i32 s{STAMP0+13}, s{sBND}, 100\ns_add_u32 s{STAMP0+13}, s{STAMP0+13}, s{STAMP0}')
    S(f'v_and_b32 v8, 31, v{vLANE}\nv_cmp_eq_u32 vcc, 29, v8')
    S(f's_cmp_eq_u32 s{sW4}, 3\ns_cselect_b32 s{sT3}, -1, 0\ns_mov_b32 s{sT2}, 0')
    stamp(S, 10)
    for i in range(4): S(f'v_cndmask_b32 v{16+i}, v{16+i}, 1.0, vcc')
    S('v_cvt_pk_bf16_f32 v16, v16, v17\nv_cvt_pk_bf16_f32 v17, v18, v19')
    S(f'v_cndmask_b32 v16, v16, 0, s[{sT2}:{sT3}]\nv_cndmask_b32 v17, v17, 0, s[{sT2}:{sT3}]')
    S(f'v_lshlrev_b32 v8, 3, v{vLANE}\nbuffer_store_dwordx2 v[16:17], v8, {srd(SRD_WS)}, s{sU1} offen sc1')
    S('s_waitcnt vmcnt(0)')
    l_ = newlab('rl')
    S(f's_mov_b64 exec, 1\nds_add_rtn_u32 v9, v{vLC}, v{vLONE} offset:{128 + 16*CN_PQ}\ns_waitcnt lgkmcnt(0)\ns_mov_b64 exec, -1\nv_readfirstlane_b32 s{sT0}, v9\ns_cmp_lg_u32 s{sT0}, 3\ns_cbranch_scc1 {l_}')
    flag_store(S, sU0, 24, 8, 12)
    S(f'{l_}:')
    stamp(S, 9)

Opt.kvstep = 14
def fin_after(prefix, body):
    mark = Ins('L_MARK__:')
    o = finalize(prefix + [mark] + body)
    return o[o.index(mark) + 1:]

def build():
    assert sT2 % 2 == 0 and sT3 == sT2 + 1
    parts = []
    P = Stream(); prologue(P)
    P(f's_cmp_ge_u32 s{sWAVE}, 4\ns_cbranch_scc1 L_lwave')
    parts.append(finalize(P.l))
    C = Stream(); c_common(C); C(f's_cmp_ge_u32 s{sROLE}, 8\ns_cbranch_scc1 L_cattn')
    S = Stream(); c_ffn(S); c_publish(S, False, True); S('s_branch L_aphase'); parts.append(finalize(C.l + S.l))
    S = Stream(); S('L_cspare:\ns_waitcnt vmcnt(0)'); c_publish(S, False, False); S('s_branch L_fin'); parts.append(finalize(S.l))
    S = Stream(); S('L_cattn:'); c_attn(S)
    S(f's_cmp_ge_u32 s{sI}, 12\ns_cbranch_scc1 L_cspare'); c_publish(S, False, True); parts.append(fin_after(C.l, S.l))
    S = Stream(); S('L_aphase:'); a_phase2(S); S('s_branch L_fin'); parts.append(finalize(S.l))
    S = Stream(); S('L_lwave:'); l_decode(S)
    S(f's_cmp_ge_u32 s{sROLE}, 8\ns_cbranch_scc1 L_lattn'); l_phase1(S, True, True); S('s_branch L_fphase'); parts.append(finalize(S.l))
    S = Stream(); S('L_lattn:'); S(f's_cmp_ge_u32 s{sI}, 12\ns_cbranch_scc1 L_lspare'); l_phase1(S, False, True); parts.append(finalize(S.l))
    S = Stream(); S('L_fphase:'); f_phase2(S); S('s_branch L_fin'); parts.append(finalize(S.l))
    S = Stream(); S('L_lspare:'); l_phase1(S, False, False); reducer(S); parts.append(finalize(S.l))
    S = Stream(); S('L_fin:'); diag_out(S); S('L_end:\ns_endpgm'); parts.append(finalize(S.l))
    hdr = open('recurrent_scan__linear_kernel_hedgehog__dense_activation_silu__prompt.s.ref').read().split('\n')
    top = [l for l in hdr[:13] if l.startswith(';') and '@launch' not in l and 'Override' not in l and 'grid=ceil' not in l]
    out = '\n'.join(top) + f'\n; @launch grid=(256,1,1) block=(512,1,1) lds={LDS_TOTAL}\n'
    out += f'.amdgcn_target "amdgcn-amd-amdhsa--gfx950"\n.text\n.globl {NAME}\n.p2align 8\n.type {NAME},@function\n{NAME}:\n'
    for p in parts:
        t = text(p)
        if Opt.nosc1 == 2: t = '\n'.join(l.replace(' sc1', ' nt sc1') if 'buffer_store_dwordx4' in l else l for l in t.split('\n'))
        if Opt.nosc1 == 3: t = '\n'.join(l.replace('offen', 'offen idxen').replace(', v2,', ', v[0:1],') if False else l for l in t.split('\n'))
        if Opt.nosc1 == 1: t = '\n'.join(l.replace(' sc1', '') if 'buffer_store_dwordx4' in l else l for l in t.split('\n'))
        out += t
    out += f'''.section .rodata,"a"
.p2align 6
.amdhsa_kernel {NAME}
  .amdhsa_next_free_vgpr 256
  .amdhsa_next_free_sgpr 102
  .amdhsa_accum_offset 256
  .amdhsa_group_segment_fixed_size 0
  .amdhsa_kernarg_size 80
  .amdhsa_user_sgpr_count 2
  .amdhsa_user_sgpr_kernarg_segment_ptr 1
  .amdhsa_system_sgpr_workgroup_id_x 1
.end_amdhsa_kernel
'''
    return out

if __name__ == '__main__':
    for a in sys.argv[2:]:
        k, _, val = a.partition('='); setattr(Opt, k, int(val) if val else True)
    open(sys.argv[1], 'w').write(build())
```

```python
import sys, struct
sys.path.insert(0, "dev")
from asmlib import *

NAME = "recurrent_scan__linear_kernel_hedgehog__dense_activation_silu__prompt_kernel"
K1 = 1024
import os
WS_H   = int(os.environ.get('WSOFF', '0')) << 20
WS_PQ  = WS_H + 64 * 112 * K1
WS_KVP = WS_PQ + 64 * 16 * 4096
WS_KVF = WS_KVP + 32 * 16 * 4096
WS_FH  = WS_KVF + 64 * K1
WS_FP  = WS_FH + 256 * 4096
WS_FK  = WS_FP + 32 * 2048
WS_TAG = WS_FK + 8 * 4096
WS_DIAG = WS_TAG + 4096
WS_SIZE = WS_DIAG + 256 * 8 * 64
SLOT = 28 * K1
SPARE = 140 * K1
WPHI_L = 156 * K1
CTL = 160 * K1 - 512
LDS_TOTAL = 160 * K1
F_REG = 24 * K1
A_BASE = 96 * K1
A_REG = 16 * K1
EV_XFREE, EV_C0, EV_C1, EV_C2, EV_C3, EV_PK, EV_END, EV_V = range(8)
CN_WO, CN_LT, CN_PH, CN_KV, CN_PQ, CN_K2 = 7, 8, 9, 10, 11, 13
sBND = 70
L2E = 1.4426950408889634
def f2u(x): return struct.unpack('<I', struct.pack('<f', x))[0]
def hx(x): return '0x%08x' % (x & 0xffffffff)

sWAVE, sXCD, sI, sRB, sROLE = 3, 4, 5, 6, 7
SRD_X, SRD_W, SRD_WS, SRD_W2, SRD_WO, SRD_OUT, SRD_DBG, SRD_WPHI = 8, 12, 16, 20, 24, 28, 32, 36
sTB, sCB, sIDX, sTAG, sPITCH = 40, 41, 42, 43, 44
sCOL = [45, 46, 47]
sCOLS = 48
sSEL_LO, sSEL_HI = 49, 63
sT0, sT1, sT2, sT3 = 50, 51, 52, 53
sHI = 54
sROT1, sROT2, sM70 = 41, 57, 56
sCNT, sW4, sFT, sFS, sL2E = 58, 59, 60, 61, 62
sU0, sU1, sU2, sU3, sU4, sU5 = 64, 65, 66, 67, 68, 69
sKA_QKV, sKA_W1 = 80, 82
STAMP0 = 84
def srd(b): return f's[{b}:{b+3}]'
def v(a, n=1): return f'v{a}' if n == 1 else f'v[{a}:{a+n-1}]'
HI = f's[{sHI}:{sHI+1}]'

class Opt:
    diag = False
    ncen = 18
    sleep = 8
    early = False
    rot = 1
    lprio = 0
    lsleep = 1
    nodma = 0
    nosc1 = 0
    nowo = 0
    wpf = 0
    xfirst = 3
    w2pf = 0
    gpf = 1
    mini = 0
    vsteps = 5
    hint = 1
    athr = 4
    rsleep = 2
    ackdiag = 0
    pk = 0
    pkq = 1
    trpace = 1
    aw2 = 4
    tr1 = 2
    tlb = 0
    kprio = 1
    aprio = 0
    bthr = 10
    trfirst = 0
    thr = 40
    xpipe = 4
    fine = -1
    cpf = 1
    wopf = 1
    phi1 = 1
    fprio = 1
    dbgout = 0
    outsc = ''
    empty = 0
    xcc = 0
    fdiag = 0
    nophi = 0
    notr = 0
    cprio = 0
    predelay = 0
    ksleep = 2

def stamp(S, k):
    if not Opt.diag: return
    if Opt.mini and k not in (0, 15): return
    if Opt.fine >= 0:
        if k == 0: S('s_memtime s[100:101]\ns_waitcnt lgkmcnt(0)\ns_mov_b32 s71, s100')
        return
    if isinstance(k, str):
        if not Opt.early: return
        k = int(k[1:])
    elif Opt.early and 3 <= k < 15: return
    S(f'{"s_memtime" if Opt.diag == 2 else "s_memrealtime"} s[100:101]\ns_waitcnt lgkmcnt(0)\ns_mov_b32 s{STAMP0+k}, s100')

def diag_out(S):
    if not Opt.diag: return
    S('s_waitcnt vmcnt(0) lgkmcnt(0)')
    stamp(S, 15)
    if Opt.xcc: S(f's_getreg_b32 s{STAMP0+11}, hwreg(HW_REG_XCC_ID)\ns_getreg_b32 s{STAMP0+12}, hwreg(HW_REG_HW_ID)')
    if Opt.dbgout:
        lab = newlab('dg')
        S(f's_not_b32 s{STAMP0+14}, s{STAMP0}')
        if Opt.dbgout == 1: S(f's_cmp_ge_u32 s{sWAVE}, 4')
        else: S(f's_cmp_lt_u32 s{sWAVE}, 4')
        S(f's_cbranch_scc1 {lab}')
        S('v_mov_b32 v16, 0')
        for k in range(1, 16): S(f'v_writelane_b32 v16, s{STAMP0+k}, {k}')
        S(f'v_mbcnt_lo_u32_b32 v17, -1, 0\nv_lshlrev_b32 v17, 2, v17\ns_mov_b64 exec, 0xfffe')
        S(f'buffer_atomic_umax v16, v17, {srd(SRD_DBG)}, 0 offen sc1')
        S(f'{lab}:\ns_endpgm')
    if Opt.fine >= 0:
        S('v_mov_b32 v16, s71\nv_mov_b32 v31, s71')
        for k in range(14): S(f'v_mov_b32 v{17+k}, s{72+2*k}')
    else:
        for k in range(16): S(f'v_mov_b32 v{16+k}, s{STAMP0+k}')
    S(f's_lshl_b32 s{sT0}, s2, 3\ns_add_u32 s{sT0}, s{sT0}, s{sWAVE}\ns_lshl_b32 s{sT0}, s{sT0}, 6\ns_add_u32 s{sT0}, s{sT0}, {WS_DIAG}')
    S('v_mov_b32 v40, 0\ns_mov_b64 exec, 1')
    for k in range(4): S(f'buffer_store_dwordx4 v[{16+4*k}:{19+4*k}], v40, {srd(SRD_WS)}, s{sT0} offen offset:{16*k}')

def half_base(h): return ((h + 4) % 5) * SLOT

_lab = [0]
def newlab(p):
    _lab[0] += 1; return f'L_{p}{_lab[0]}'
def RAW(t):
    i = Ins(t); i.kind = 'salu'; i.rd = set(); i.wr = set(); return i
def raw(S, t):
    for l in t.split('\n'):
        S.l.append(Ins(l) if l.endswith(':') else RAW(l))

vCTL, vLANE, vL16 = 0, 1, 2
def mk_srd(S, items):
    for b, lo, size in items:
        S(f's_mov_b64 s[{b}:{b+1}], s[{lo}:{lo+1}]\ns_mov_b32 s{b+2}, {size}\ns_mov_b32 s{b+3}, 0x20000')
def prologue(S):
    S(f's_cmp_ge_u32 s2, {0 if Opt.empty else 256}\ns_cbranch_scc1 L_end')
    if Opt.diag:
        for k in range(16): S(f's_mov_b32 s{STAMP0+k}, 0')
        if Opt.fine >= 0: S('s_mov_b32 s84, 1\ns_mov_b32 s86, 1\ns_mov_b32 s88, 1\ns_mov_b32 s90, 1\ns_mov_b32 s92, 1\ns_mov_b32 s94, 1\ns_mov_b32 s96, 1\ns_mov_b32 s98, 1')
    stamp(S, 0)
    S('s_load_dwordx16 s[64:79], s[0:1], 0\ns_load_dwordx4 s[80:83], s[0:1], 64')
    S(f'v_lshrrev_b32 v3, 6, v0\nv_and_b32 v{vLANE}, 63, v0\nv_readfirstlane_b32 s{sWAVE}, v3\nv_lshlrev_b32 v{vL16}, 4, v{vLANE}')
    S(f's_and_b32 s{sXCD}, s2, 7\ns_lshr_b32 s{sI}, s2, 3\ns_and_b32 s{sT3}, s{sI}, 3\ns_lshr_b32 s{sT2}, s{sI}, 2\ns_xor_b32 s{sT2}, s{sT2}, 4')
    S(f's_lshr_b32 s{sRB}, s{sXCD}, 1\ns_lshl_b32 s{sRB}, s{sRB}, 2\ns_add_u32 s{sRB}, s{sRB}, s{sT3}')
    S(f's_lshl_b32 s{sCB}, s{sT3}, 1\ns_add_u32 s{sCB}, s{sCB}, s{sT2}\ns_sub_u32 s{sT0}, s{sCB}, 7\ns_cmp_ge_u32 s{sCB}, 7\ns_cselect_b32 s{sCB}, s{sT0}, s{sCB}')
    S(f's_and_b32 s{sW4}, s{sWAVE}, 3')
def decode2(S):
    S(f's_lshl_b32 s{sTB}, s{sXCD}, 2\ns_add_u32 s{sTB}, s{sTB}, s{sT3}')
    S(f's_and_b32 s{sIDX}, s{sXCD}, 1\ns_lshl_b32 s{sIDX}, s{sIDX}, 2\ns_and_b32 s{sT0}, s{sT2}, 3\ns_add_u32 s{sIDX}, s{sIDX}, s{sT0}')
    S(f's_and_b32 s{sT0}, s{sT2}, 4\ns_lshl_b32 s{sT0}, s{sT0}, 1\ns_add_u32 s{sROLE}, s{sIDX}, s{sT0}')
    S(f's_mul_i32 s{sROT2}, s{sT3}, 7\ns_lshl_b32 s{sT0}, s{sCB}, 2\ns_add_u32 s{sROT2}, s{sROT2}, s{sT0}\ns_sub_u32 s{sT0}, s{sROT2}, 28\ns_cmp_ge_u32 s{sROT2}, 28\ns_cselect_b32 s{sROT2}, s{sT0}, s{sROT2}')
    S(f's_lshl_b32 s{sT0}, s{sW4}, 2\ns_add_u32 s{sT0}, s{sT0}, {CTL}\nv_mov_b32 v{vCTL}, s{sT0}')
    S(f's_mov_b32 s{sHI}, 0\ns_mov_b32 s{sHI+1}, -1\ns_mov_b32 s{sL2E}, {hx(f2u(L2E))}\ns_movk_i32 s{sM70}, 0x70')
def l_decode(S):
    S(f'v_lshlrev_b32 v4, 3, v{vLANE}\nv_add_u32 v4, {CTL}, v4\nv_mov_b32 v6, 0\nv_mov_b32 v7, 0\nds_write_b64 v4, v[6:7]')
    decode2(S)
    S(f's_mul_i32 s{sT0}, s{sIDX}, 448\ns_and_b32 s{sT1}, s{sIDX}, 1\ns_lshl_b32 s{sT2}, s{sT1}, 6\ns_add_u32 s{sT2}, s{sT2}, s{sT0}')
    S(f's_mul_i32 s{sT1}, s{sT1}, 384\ns_sub_u32 s{sCOLS}, s{sT0}, s{sT1}\ns_add_u32 s{sCOLS}, s{sCOLS}, 384')
    S(f's_mul_i32 s{sT0}, s{sIDX}, 112')
    S(f's_add_u32 s{sT1}, s{sT0}, 896\ns_add_u32 s{sT3}, s{sT0}, 1792\ns_add_u32 s{sCOL[1]}, s{sT2}, 128\ns_add_u32 s{sCOL[2]}, s{sT2}, 256')
    S(f's_movk_i32 s{sPITCH}, 3584\ns_cmp_ge_u32 s{sROLE}, 8')
    S(f's_cselect_b32 s{sCOL[0]}, s{sT1}, s{sT2}\ns_cselect_b32 s{sPITCH}, 2688, s{sPITCH}')
    S(f's_cselect_b32 s{sCOL[1]}, s{sT3}, s{sCOL[1]}\ns_cselect_b32 s{sCOL[2]}, s{sT0}, s{sCOL[2]}')
    S(f's_mul_i32 s{SRD_W+2}, s{sPITCH}, 448\ns_mov_b32 s{SRD_W+3}, 0x20000')
    swz_voff(S, vLW, f's{sPITCH}', 8)
    S('s_waitcnt lgkmcnt(0)')
    S(f's_cmp_ge_u32 s{sROLE}, 8\ns_cselect_b64 s[{SRD_W}:{SRD_W+1}], s[66:67], s[74:75]')
    mk_srd(S, ((SRD_X, 64, 2048 * 896), (SRD_WS, 82, WS_SIZE), (SRD_W2, 76, 1792 * 896), (SRD_WO, 70, 448 * 896), (SRD_OUT, 78, 2048 * 896), (SRD_DBG, 80, 256), (SRD_WPHI, 68, 16 * 1568)))
    S(f's_mov_b64 s[{sKA_QKV}:{sKA_QKV+1}], s[66:67]\ns_mov_b64 s[{sKA_W1}:{sKA_W1+1}], s[74:75]')

TAGW = 320
def tag_fetch_l0(S):
    a, b = newlab('tf'), newlab('tf')
    S(f's_cmp_lg_u32 s{sW4}, 0\ns_cbranch_scc1 {b}')
    raw(S, f's_mov_b32 s{sBND}, 0\nv_mov_b32 v15, 0\n{a}:\nbuffer_load_dword v14, v15, {srd(SRD_DBG)}, 0 offen sc1\ns_waitcnt vmcnt(0)\nv_readfirstlane_b32 s{sTAG}, v14\ns_add_u32 s{sBND}, s{sBND}, 1\n'
           f's_max_u32 s{sCNT}, s{sBND}, 0x20000\ns_sub_u32 s{sCNT}, s{sCNT}, 0x20000\ns_or_b32 s{sTAG}, s{sTAG}, s{sCNT}\ns_cmp_eq_u32 s{sTAG}, 0\ns_cbranch_scc1 {a}\n'
           f'v_mov_b32 v14, s{sTAG}\ns_mov_b64 exec, 15\nds_write_b32 v{vLC}, v14 offset:{TAGW}\ns_mov_b64 exec, -1\ns_waitcnt lgkmcnt(0)\n{b}:')
def tag_prefetch(S, vt):
    S(f'ds_read_b32 v{vt}, v{vCTL} offset:{TAGW}')
def tag_get(S, vt):
    a, b = newlab('tg'), newlab('tg')
    S(f'v_readfirstlane_b32 s{sTAG}, v{vt}')
    S(f's_cmp_lg_u32 s{sTAG}, 0\ns_cbranch_scc1 {b}')
    raw(S, f'{a}:\nds_read_b32 v{vt}, v{vCTL} offset:{TAGW}\ns_sleep 1\ns_waitcnt lgkmcnt(0)\nv_readfirstlane_b32 s{sTAG}, v{vt}\ns_nop 0\ns_cmp_eq_u32 s{sTAG}, 0\ns_cbranch_scc1 {a}\n{b}:')

def poll(S, voff, soff, nl, vt, sleep=None):
    a, b = newlab('pl'), newlab('pl')
    S(f's_mov_b64 exec, {hex((1 << nl) - 1)}\ns_mov_b32 s{sCNT}, 0')
    S(f'{a}:')
    S(f'buffer_load_dword v{vt}, v{voff}, {srd(SRD_WS)}, s{soff} offen sc1')
    S('s_waitcnt vmcnt(0)')
    S(f'v_cmp_ne_u32 vcc, s{sTAG}, v{vt}')
    S(f's_add_u32 s{sCNT}, s{sCNT}, 1\ns_cbranch_vccz {b}\ns_cmp_gt_u32 s{sCNT}, 0x20000\ns_cbranch_scc1 {b}\ns_sleep {sleep or Opt.sleep}\ns_branch {a}')
    S(f'{b}:')
    S('s_mov_b64 exec, -1')

def flag_store(S, soff, vt, n=1, shift=8):
    for i in range(4): S(f'v_mov_b32 v{vt+i}, s{sTAG}')
    S(f'v_lshrrev_b32 v{vt+4}, 3, v{vLANE}\nv_lshlrev_b32 v{vt+4}, {shift}, v{vt+4}\nv_and_or_b32 v{vt+4}, v{vL16}, s{sM70}, v{vt+4}')
    m = (1 << (8 * n)) - 1
    if n < 8: S(f's_mov_b32 exec_lo, {hex(m & 0xffffffff)}\ns_mov_b32 exec_hi, {hex(m >> 32)}')
    S(f'buffer_store_dwordx4 {v(vt,4)}, v{vt+4}, {srd(SRD_WS)}, s{soff} offen sc1')
    if n < 8: S('s_mov_b64 exec, -1')

def c_signal(ev):
    return [Ins(f'ds_write_b32 v{vCTL}, v{vCTL} offset:{16*ev}')]
def cnt_read(idx, vt):
    return [Ins(f'ds_read_b32 v{vt}, v{vCTL} offset:{128 + 16*idx}')]
def cnt_check(idx, vt, sleep=0):
    S = Stream(); a, b = newlab('ck'), newlab('ck')
    S(f'v_readfirstlane_b32 s{sCNT}, v{vt}\ns_cmp_ge_u32 s{sCNT}, 4\ns_cbranch_scc1 {b}')
    raw(S, f's_mov_b32 s{sBND}, 0\n{a}:\nds_read_b32 v{vt}, v{vCTL} offset:{128 + 16*idx}\ns_add_u32 s{sBND}, s{sBND}, 1\ns_cmp_gt_u32 s{sBND}, 0x40000\ns_cbranch_scc1 {b}\ns_sleep {sleep}\ns_waitcnt lgkmcnt(0)\nv_readfirstlane_b32 s{sCNT}, v{vt}\ns_nop 0\ns_cmp_lt_u32 s{sCNT}, 4\ns_cbranch_scc1 {a}\n{b}:')
    return S.l
def c_allflags(ev, vt, va):
    S = Stream(); a, b = newlab('cf'), newlab('cf')
    S(f'v_mov_b32 v{va}, {CTL}\nds_read_b128 v[{vt}:{vt+3}], v{va} offset:{16*ev}')
    S2 = Stream()
    S2(f'v_min3_u32 v{vt}, v{vt}, v{vt+1}, v{vt+2}\nv_min_u32 v{vt}, v{vt}, v{vt+3}\nv_readfirstlane_b32 s{sCNT}, v{vt}\ns_cmp_lg_u32 s{sCNT}, 0\ns_cbranch_scc1 {b}')
    raw(S2, f's_mov_b32 s{sBND}, 0\n{a}:\nds_read_b128 v[{vt}:{vt+3}], v{va} offset:{16*ev}\ns_add_u32 s{sBND}, s{sBND}, 1\ns_cmp_gt_u32 s{sBND}, 0x40000\ns_cbranch_scc1 {b}\ns_waitcnt lgkmcnt(0)\n'
            f'v_min3_u32 v{vt}, v{vt}, v{vt+1}, v{vt+2}\nv_min_u32 v{vt}, v{vt}, v{vt+3}\ns_nop 0\nv_readfirstlane_b32 s{sCNT}, v{vt}\ns_nop 0\ns_cmp_eq_u32 s{sCNT}, 0\ns_cbranch_scc1 {a}\n{b}:')
    return S.l, S2.l
vLC, vLONE, vLP = 11, 12, 188
def l_signal(S, idx):
    S(f's_mov_b64 exec, 15\nds_add_u32 v{vLC}, v{vLONE} offset:{128 + 16*idx}\ns_mov_b64 exec, -1')
def l_wait(S, ev):
    a, b = newlab('lw'), newlab('lw')
    S('s_waitcnt lgkmcnt(0)')
    raw(S, f's_mov_b32 s{sBND}, 0\n{a}:\nds_read_b128 v[{vLP}:{vLP+3}], v{vLP+4} offset:{16*ev}\ns_add_u32 s{sBND}, s{sBND}, 1\ns_cmp_gt_u32 s{sBND}, 0x40000\ns_cbranch_scc1 {b}\ns_sleep {Opt.lsleep}\ns_waitcnt lgkmcnt(0)\nv_min3_u32 v{vLP}, v{vLP}, v{vLP+1}, v{vLP+2}\nv_min_u32 v{vLP}, v{vLP}, v{vLP+3}\ns_nop 0\nv_readfirstlane_b32 s{sCNT}, v{vLP}\ns_nop 0\ns_cmp_eq_u32 s{sCNT}, 0\ns_cbranch_scc1 {a}\n{b}:\ns_waitcnt lgkmcnt(0)')

X0 = 16; ACC = [[128, 144], [160, 176]]; AF = 192; WPHI = 224; T = 240; U = 224; TT = 248; NR = 4
vVA = [3, 4]; vWA = [5, 6]; vVS = 7; vR, vRM, vNRL, vSD, vCT, vNM = 8, 9, 10, 11, 12, 13; vTAG = 14

def lane_consts_tr(S, dst, tmp, cstride, rowmap):
    t0, t1, t2 = tmp, tmp + 1, tmp + 2
    S(f'v_bfe_u32 v{t0}, v{vLANE}, 2, 2')
    S(f'v_lshrrev_b32 v{t1}, 5, v{vLANE}')
    S(f'v_lshlrev_b32 v{t1}, {10 if rowmap == "A" else 9}, v{t1}\nv_lshl_add_u32 v{t1}, v{t0}, 7, v{t1}')
    S(f'v_bfe_u32 v{t0}, v{vLANE}, 3, 1\nv_lshlrev_b32 v{t0}, 6, v{t0}')
    S(f'v_bfe_u32 v{t2}, v{vLANE}, 4, 1\nv_lshlrev_b32 v{t2}, 5, v{t2}\nv_and_b32 v{dst[0]}, 3, v{vLANE}\nv_lshl_add_u32 v{t2}, v{dst[0]}, 3, v{t2}')
    S(f'v_xor_b32 v{dst[0]}, v{t2}, v{t0}\nv_add_u32 v{dst[0]}, v{dst[0]}, v{t1}')
    S(f'v_add_u32 v{t2}, {cstride}, v{t2}\nv_xor_b32 v{dst[1]}, v{t2}, v{t0}\nv_add_u32 v{dst[1]}, v{dst[1]}, v{t1}')

def trb(St, dst, hfshift, pitch, tmp):
    St(f'v_lshrrev_b32 v{tmp}, 5, v{vLANE}\nv_lshlrev_b32 v{tmp}, {hfshift}, v{tmp}\nv_bfe_u32 v{dst}, v{vLANE}, 2, 2\nv_add_u32 v{tmp}, v{tmp}, v{dst}\nv_mul_u32_u24 v{dst}, {pitch}, v{tmp}')
    St(f'v_bfe_u32 v{tmp}, v{vLANE}, 4, 1\nv_lshl_add_u32 v{dst}, v{tmp}, 5, v{dst}\nv_and_b32 v{tmp}, 3, v{vLANE}\nv_lshl_add_u32 v{dst}, v{tmp}, 3, v{dst}')

def wrap_inc(S, reg, inc, lim):
    S(f's_add_u32 s{reg}, s{reg}, {inc}\ns_cmp_eq_u32 s{reg}, {lim}\ns_cselect_b32 s{reg}, 0, s{reg}')

def c_load_x(S):
    a, b = T, T + 1
    S(f'v_lshrrev_b32 v{T+2}, 3, v{vLANE}\nv_mul_u32_u24 v{a}, 896, v{T+2}')
    S(f'v_lshrrev_b32 v{T+2}, 4, v{vLANE}\nv_and_b32 v{T+3}, 7, v{vLANE}\nv_xor_b32 v{T+2}, v{T+2}, v{T+3}\nv_lshl_add_u32 v{a}, v{T+2}, 4, v{a}\nv_xor_b32 v{b}, 64, v{a}')
    S(f'v_add_u32 v{b}, {8*896}, v{b}\nv_add_u32 v{T+2}, {16*896}, v{a}\nv_add_u32 v{T+3}, {16*896}, v{b}')
    sXB, sXL, sXR, sXO = sFT, sFS, sCOL[0], sCOL[1]
    S(f's_lshl_b32 s{sXB}, s{sRB}, 2\ns_add_u32 s{sXB}, s{sXB}, s{sWAVE}\ns_mul_i32 s{sXB}, s{sXB}, {32*896}')
    S(f's_mul_i32 s{sXL}, s{sWAVE}, {SLOT}\ns_lshl_b32 s{sXR}, s{sROT1}, 7')
    S(f's_mov_b32 s{SRD_X+2}, {2048*896}\ns_mov_b32 s{SRD_X+3}, 0x20000')
    stamp(S, 'e3')
    S(f's_waitcnt lgkmcnt(0)\ns_mov_b64 s[{SRD_X}:{SRD_X+1}], s[64:65]')
    stamp(S, 'e4')
    def xdma(lc):
        S(f's_add_u32 s{sXO}, s{sXB}, s{sXR}')
        for g in range(4):
            S(f's_add_u32 m0, s{sXL}, {lc*4096 + g*1024}')
            if g == 0 and lc < 6: wrap_inc(S, sXR, 128, 896)
            S(f'buffer_load_dwordx4 v{T+g}, {srd(SRD_X)}, s{sXO} offen lds', tok=('x', lc))
    for lc in range(Opt.xpipe): xdma(lc)
    decode2(S)
    mk_srd(S, ((SRD_WS, 82, WS_SIZE), (SRD_OUT, 78, 2048 * 896), (SRD_DBG, 80, 256)))
    if Opt.xpipe >= 7: S('s_barrier')
    sT1_ = sXL
    stamp(S, 'e5')
    xa = T + 4
    S(f'v_and_b32 v{TT}, 31, v{vLANE}\nv_bfe_u32 v{TT+1}, v{vLANE}, 1, 3\nv_lshrrev_b32 v{xa}, 5, v{vLANE}\nv_xor_b32 v{TT+1}, v{TT+1}, v{xa}')
    S(f'v_lshlrev_b32 v{TT+1}, 4, v{TT+1}\nv_lshl_add_u32 v{xa}, v{TT}, 7, v{TT+1}\nv_add_u32 v{xa}, s{sXL}, v{xa}')
    for q in range(1, 4): S(f'v_xor_b32 v{xa+q}, {q*32}, v{xa}')
    S(f's_mov_b32 s{sSEL_LO}, 0x00003f80\ns_mov_b32 s{sSEL_HI}, 0x3f800000')
    S(f's_cmp_ge_u32 s{sROLE}, 8\ns_cselect_b32 s{sT0}, 56, 64')
    lane_consts_tr(S, vVA, TT, f's{sT0}', 'A')
    sA, sB, qA, qB, one = U, U + 1, U + 2, U + 3, U + 4
    S(f'v_mov_b32 v{sA}, 0\nv_mov_b32 v{sB}, 0\nv_mov_b32 v{qA}, 0\nv_mov_b32 v{qB}, 0\nv_mov_b32 v{one}, 0x3f803f80')
    def stats(lc):
        for q in range(4):
            for j in range(4):
                r = X0 + (lc * 4 + q) * 4 + j
                S(f'v_dot2c_f32_bf16 v{sA + (j & 1)}, v{r}, v{one}\nv_dot2c_f32_bf16 v{qA + (j & 1)}, v{r}, v{r}')
    for lc in range(7):
        S.wait(('x', lc))
        if lc in (0, 3, 6): stamp(S, 'e%d' % (6 + lc // 3))
        for q in range(4):
            S(f'ds_read_b128 {v(X0 + (lc*4+q)*4, 4)}, v{xa+q} offset:{lc*4096}')
        if lc == 6: S.ext(c_signal(EV_XFREE))
        if lc + Opt.xpipe < 7: xdma(lc + Opt.xpipe)
        if lc + Opt.xpipe == 6: S('s_barrier')
        if lc > 0: stats(lc - 1)
    stamp(S, 1)
    stats(6)
    t = U + 5
    S(f'v_add_f32 v{sA}, v{sA}, v{sB}\nv_add_f32 v{qA}, v{qA}, v{qB}\nv_mov_b32 v{sB}, v{sA}\nv_mov_b32 v{qB}, v{qA}')
    S(f'v_permlane32_swap_b32 v{sA}, v{sB}\nv_permlane32_swap_b32 v{qA}, v{qB}')
    S(f'v_add_f32 v{sA}, v{sA}, v{sB}\nv_add_f32 v{qA}, v{qA}, v{qB}')
    inv = hx(f2u(1.0 / 448))
    S(f'v_mul_f32 v{sA}, {inv}, v{sA}\nv_mul_f32 v{qA}, {inv}, v{qA}')
    S(f'v_fma_f32 v{qA}, -v{sA}, v{sA}, v{qA}\nv_max_f32 v{qA}, 0, v{qA}')
    S(f'v_cvt_pk_bf16_f32 v{t}, v{sA}, v{qA}')
    S(f'v_lshlrev_b32 v{vNM}, 16, v{t}\nv_xor_b32 v{vNM}, 0x80000000, v{vNM}')
    R = Stream()
    R(f'v_and_b32 v{qA}, 0xffff0000, v{t}\nv_add_f32 v{qA}, {hx(f2u(1e-5))}, v{qA}')
    R(f'v_cvt_pk_bf16_f32 v{t}, v{qA}, v{qA}\nv_and_b32 v{qA}, 0xffff0000, v{t}\nv_sqrt_f32 v{qA}, v{qA}')
    R(f'v_nop\nv_cvt_pk_bf16_f32 v{t}, v{qA}, v{qA}\nv_and_b32 v{vSD}, 0xffff0000, v{t}\nv_rcp_f32 v{vR}, v{vSD}')
    R(f'v_nop\nv_mul_f32 v{vNRL}, {hx(f2u(-L2E))}, v{vR}\nv_cndmask_b32 v{vRM}, v{vR}, 0, {HI}')
    return R.l

def center(s):
    S = Stream()
    for j in range(4):
        r = X0 + s * 4 + j
        a, b = TT + 2 * j, TT + 2 * j + 1
        S(f'v_dot2_f32_bf16 v{a}, v{r}, s{sSEL_LO}, v{vNM}\nv_dot2_f32_bf16 v{b}, v{r}, s{sSEL_HI}, v{vNM}')
    for j in range(4):
        r = X0 + s * 4 + j
        S(f'v_cvt_pk_bf16_f32 v{r}, v{TT+2*j}, v{TT+2*j+1}')
    return S.l
def center5(s):
    S = Stream()
    for j in range(4):
        r = X0 + s * 4 + j
        a, b = TT + 2 * j, TT + 2 * j + 1
        S(f'v_lshlrev_b32 v{a}, 16, v{r}\nv_and_b32 v{b}, 0xffff0000, v{r}\nv_add_f32 v{a}, v{a}, v{vNM}\nv_add_f32 v{b}, v{b}, v{vNM}')
        S(f'v_cvt_pk_bf16_f32 v{r}, v{a}, v{b}')
    return S.l

def silu_tile(acc, u, soff, tok):
    S = Stream()
    for g in range(4):
        a = acc + 4 * g
        for i in range(4): S(f'v_mul_f32 v{TT+i}, v{a+i}, v{vNRL}')
        for i in range(4): S(f'v_exp_f32 v{TT+i}, v{TT+i}')
        for i in range(4): S(f'v_fma_f32 v{TT+i}, v{TT+i}, v{vSD}, v{vSD}')
        for i in range(4): S(f'v_rcp_f32 v{TT+i}, v{TT+i}')
        for i in range(4): S(f'v_mul_f32 v{TT+4+i}, v{a+i}, v{TT+i}')
        S(f'v_cvt_pk_bf16_f32 v{u+2*g}, v{TT+4}, v{TT+5}\nv_cvt_pk_bf16_f32 v{u+2*g+1}, v{TT+6}, v{TT+7}')
        if g % 2 == 1:
            S(f'buffer_store_dwordx4 {v(u + 4*(g//2), 4)}, v{vL16}, {srd(SRD_WS)}, s{soff[0]} offen offset:{soff[1] + 1024*(g//2)} sc1', tok=tok)
    return S.l

def part(f, s, lo, hi):
    n = len(f); k = hi - lo + 1
    return f[(s - lo) * n // k:(s - lo + 1) * n // k]

CN_H1B = 14
class Steps:
    def __init__(self, single):
        self.steps = []
        for st in range(3):
            for s in range(28):
                h = st * 2 + s // 14; sp = s % 14
                p = dict(st=st, s=s, nt=2, h=h, off=sp * 2048, first=(sp == 0), last=(sp == 13), base=half_base(h), cn=h)
                if h == 1:
                    if sp < 8: p.update(base=SPARE, h1a=(sp == 7))
                    else: p.update(base=0, off=(sp - 8) * 2048, first=(sp == 8), cn=CN_H1B)
                self.steps.append(p)
        if single:
            for s in range(28):
                self.steps.append(dict(st=3, s=s, nt=1, h=6, off=s * K1, first=(s == 0), last=False, cn=6))
    def reads(self, n):
        if n >= len(self.steps): return [], []
        p = self.steps[n]; S = Stream(); pre = Stream()
        ring = AF + (n % NR) * 8
        if p['first']:
            pre.ext(cnt_check(p['cn'], vCT))
            if p['nt'] == 2:
                b = p['base']
                pre(f'v_add_u32 v{vWA[0]}, {b}, v{vVA[0]}\nv_add_u32 v{vWA[1]}, {b}, v{vVA[1]}')
        if p['nt'] == 2:
            for c in range(2):
                for u in range(2):
                    S(f'ds_read_b64_tr_b16 {v(ring + 4*c + 2*u, 2)}, v{vWA[c]} offset:{p["off"] + 512*u}', tok=('a', n))
        else:
            for u in range(2):
                S(f'ds_read_b64_tr_b16 {v(ring + 2*u, 2)}, v{vVS} offset:{p["off"] + 256*u}', tok=('a', n))
        if p['last'] and p['h'] < 4: S.ext(c_signal(EV_C0 + p['h']))
        if n + 3 < len(self.steps) and self.steps[n + 3]['first']:
            S.ext(cnt_read(self.steps[n + 3]['cn'], vCT))
        return pre.l, S.l
    def mfmas(self, n):
        p = self.steps[n]; ring = AF + (n % NR) * 8; out = []
        for c in range(p['nt']):
            acc = ACC[p['st'] % 2][c]
            C = '0' if p['s'] == 0 else v(acc, 16)
            out.append(Ins(f'v_mfma_f32_32x32x16_bf16 {v(acc,16)}, {v(ring+4*c,4)}, {v(X0+4*p["s"],4)}, {C}'))
        return out
    def stage(self, st, fill=None, perstep=None, mid=None):
        idx = [n for n, p in enumerate(self.steps) if p['st'] == st]
        groups = []
        for n in idx:
            p = self.steps[n]
            rd = self.reads(n + NR - 1)[1]
            pre = self.reads(n + NR)[0]
            m = self.mfmas(n)
            g = []
            if Opt.fine == st and p['s'] % 2 == 0 and p['s'] < 26: g.append(RAW(f's_memtime s[{72+p["s"]}:{73+p["s"]}]'))
            if mid and p['s'] in mid: g += mid[p['s']]
            on = p['s'] > 0 or perstep
            w = Stream(); w.wait(('a', n + 1))
            k = 2 if pre else 5
            if p['nt'] == 2:
                g += [m[0]] + rd + ([None] * 2 if on else []) + [m[1]] + w.l + ([None] * k if on else []) + pre
            else:
                g += [m[0]] + rd + ([None] * 3 if on else [])
            if perstep: g = interleave([g], perstep(p['s']))
            if Opt.fine == st and p['s'] == 27: g.append(RAW('s_memtime s[98:99]'))
            groups.append(g)
        if perstep: return [x for g in groups for x in g]
        return interleave(groups, fill)

def c_common(S):
    if Opt.cprio: S('s_setprio 2')
    rest = c_load_x(S)
    S.ext(cnt_read(0, vCT))
    for s in range(Opt.ncen): S.ext(center(s))
    P = Steps(True)
    for n in range(NR - 1):
        pre, rd = P.reads(n); S.ext(pre); S.ext(rd)
    stamp(S, 2)
    f = []
    for s in range(Opt.ncen, 28): f += center5(s)
    S.ext(P.stage(0, perstep=lambda s: part(f, s, 0, 25) if s < 26 else (rest if s == 26 else [])))
    stamp(S, 3)

def c_ffn(S):
    P = Steps(True)
    e = Stream(); t = T
    trb(e, vVS, 3, 64, t)
    e(f's_lshl_b32 s{sT0}, s{sRB}, 2\ns_add_u32 s{sT0}, s{sT0}, s{sWAVE}\ns_mul_i32 s{sT0}, s{sT0}, {112*K1}\ns_add_u32 s{sT0}, s{sT0}, {WS_H}')
    e(f's_mul_i32 s{sT1}, s{sIDX}, 7\ns_and_b32 s{sT2}, s{sIDX}, 1\ns_add_u32 s{sT3}, s{sT1}, s{sT2}\ns_lshl_b32 s{sT3}, s{sT3}, 11\ns_add_u32 s{sFT}, s{sT0}, s{sT3}')
    e(f's_mul_i32 s{sT2}, s{sT2}, 6\ns_sub_u32 s{sT1}, s{sT1}, s{sT2}\ns_add_u32 s{sT1}, s{sT1}, 6\ns_lshl_b32 s{sT1}, s{sT1}, 11\ns_add_u32 s{sFS}, s{sT0}, s{sT1}')
    for st in (1, 2, 3):
        pa = ACC[(st - 1) % 2]
        fill = (e.l if st == 1 else []) + [Ins(f's_add_u32 s{sT0}, s{sFT}, {(st-1)*4096}')]
        fill += silu_tile(pa[0], T, (sT0, 0), 'st') + silu_tile(pa[1], U, (sT0, 2048), 'st')
        if st == 3:
            t = Stream(); tag_prefetch(t, vTAG); fill = fill + t.l
        S.ext(P.stage(st, fill))
        stamp(S, 3 + st)
    S.ext(silu_tile(ACC[1][0], T, (sFS, 0), 'st'))

def minmax(S, X, mx, mn, t0, t1):
    for op, d in (('v_max3_f32', mx), ('v_min3_f32', mn)):
        S(f'{op} v{d}, v{X}, v{X+1}, v{X+2}')
        for i in range(3, 15, 2): S(f'{op} v{d}, v{d}, v{X+i}, v{X+i+1}')
    S(f'v_max_f32 v{mx}, v{mx}, v{X+15}\nv_min_f32 v{mn}, v{mn}, v{X+15}')
    S(f'v_mov_b32 v{t0}, v{mx}\nv_mov_b32 v{t1}, v{mn}\nv_permlane32_swap_b32 v{mx}, v{t0}\nv_permlane32_swap_b32 v{mn}, v{t1}')
    S(f'v_max_f32 v{mx}, v{mx}, v{t0}\nv_min_f32 v{mn}, v{mn}, v{t1}')
    S(f'v_mul_f32 v{mx}, {hx(f2u(-L2E))}, v{mx}\nv_mul_f32 v{mn}, {hx(f2u(L2E))}, v{mn}')

LX, LE, LT = 144, 160, 176
vLPW, vLMK, vLL2E, vLRD, vLWP = 185, 184, 186, 187, 193
def softmax_body(S, X, E0, tmp, l2e, pw, off, hook0=None):
    for i in range(4): S(f'v_cndmask_b32 v{X+12+i}, v{X+12+i}, v{X+8+i}, {HI}')
    mx, mn, t0, t1 = tmp, tmp + 2, tmp + 1, tmp + 3
    minmax(S, X, mx, mn, t0, t1)
    for sign in range(2):
        E = E0 if sign == 0 else X
        s0, s1 = tmp + 4, tmp + 5
        for i in range(16):
            if sign == 0: S(f'v_fma_f32 v{E+i}, v{X+i}, {l2e}, v{mx}')
            else: S(f'v_fma_f32 v{E+i}, -v{X+i}, {l2e}, v{mn}')
        for i in range(16): S(f'v_exp_f32 v{E+i}, v{E+i}')
        S(f'v_add_f32 v{s1}, v{E+12}, v{E+13}\nv_add_f32 v{s0}, v{E}, v{E+1}\nv_add_f32 v{s1}, v{s1}, v{E+14}')
        S(f'v_add_f32 v{s0}, v{s0}, v{E+2}\nv_add_f32 v{s1}, v{s1}, v{E+15}\nv_add_f32 v{s0}, v{s0}, v{E+3}\nv_cndmask_b32 v{s1}, v{s1}, 0, {HI}')
        for i in range(4, 12): S(f'v_add_f32 v{s0 + (i & 1)}, v{s0 + (i & 1)}, v{E+i}')
        S(f'v_add_f32 v{s0}, v{s0}, v{s1}\nv_mov_b32 v{s1}, v{s0}\nv_permlane32_swap_b32 v{s0}, v{s1}\nv_add_f32 v{s0}, v{s0}, v{s1}\nv_rcp_f32 v{s0}, v{s0}')
        for i in range(16): S(f'v_mul_f32 v{E+i}, v{E+i}, v{s0}')
        for i in range(8): S(f'v_cvt_pk_bf16_f32 v{E+i}, v{E+2*i}, v{E+2*i+1}')
        for qd in range(3):
            S(f'ds_write_b64 v{pw}, {v(E+2*qd, 2)} offset:{off + sign*56 + qd*16}')
        g = Stream(); g(f's_mov_b64 exec, 0xffffffff\nds_write_b64 v{pw}, {v(E+6, 2)} offset:{off + sign*56 + 48}\ns_mov_b64 exec, -1')
        S.l.append(Group(g.l))
        if sign == 0 and hook0: S.ext(hook0)

def softmax_k(hook0):
    S = Stream()
    rw = LE
    S(f'ds_read_b128 {v(rw,4)}, v{vLRD}\nds_read_b128 {v(rw+4,4)}, v{vLRD} offset:1024')
    for st in range(2):
        for u in range(2):
            S(f'ds_read_b64_tr_b16 {v(rw + 8 + 4*st + 2*u, 2)}, v{vLWP} offset:{(16*st + 8*u)*56}')
    S(f'v_mfma_f32_32x32x16_bf16 {v(LX,16)}, {v(rw+8,4)}, {v(rw,4)}, 0')
    S(f'v_mfma_f32_32x32x16_bf16 {v(LX,16)}, {v(rw+12,4)}, {v(rw+4,4)}, {v(LX,16)}')
    softmax_body(S, LX, LE, LT, f'v{vLL2E}', vLPW, 0, hook0)
    return S.l

def scale_pack(acc, dst, masked=True):
    S = Stream()
    for i in range(16): S(f'v_mul_f32 v{acc+i}, v{acc+i}, v{vRM if (masked and i >= 12) else vR}')
    for i in range(8): S(f'v_cvt_pk_bf16_f32 v{dst+i}, v{acc+2*i}, v{acc+2*i+1}')
    return S.l

def phi_mfma(acc, c, b):
    return [Ins(f'v_mfma_f32_32x32x16_bf16 {v(acc,16)}, {v(WPHI+8*c,4)}, {v(b,4)}, 0'),
            Ins(f'v_mfma_f32_32x32x16_bf16 {v(acc,16)}, {v(WPHI+8*c+4,4)}, {v(b+4,4)}, {v(acc,16)}')]

def c_attn(S):
    vHO, vVW, vWP = vVS, vNRL, vSD
    P = Steps(False)
    e = Stream(); t = TT
    trb(e, vWP, 2, 56, t)
    e(f'v_add_u32 v{vWP}, {WPHI_L}, v{vWP}')
    for c in range(2):
        for st in range(2):
            for u in range(2):
                e(f'ds_read_b64_tr_b16 {v(WPHI + 8*c + 4*st + 2*u, 2)}, v{vWP} offset:{c*1568 + (16*st + 8*u)*56}')
    ka = ACC[0]
    vPW = vNM
    h0 = Stream()
    h0(f's_lshl_b32 s{sT0}, s{sWAVE}, 12\ns_add_u32 s{sT0}, s{sT0}, {SPARE}\nv_add_u32 v{vHO}, s{sT0}, v{vL16}')
    h0.ext(scale_pack(ka[0], T))
    h0(f'ds_write_b128 v{vHO}, {v(T,4)}\nds_write_b128 v{vHO}, {v(T+4,4)} offset:1024')
    f1 = h0.l + c_signal(EV_PK)
    f1b = e.l + scale_pack(ka[1], T)
    sm = Stream(); softmax_body(sm, ka[1], ka[0], TT, f's{sL2E}', vPW, 14336)
    t = Stream()
    t(f'v_and_b32 v{TT+3}, 31, v{vLANE}\ns_lshl_b32 s{sT0}, s{sWAVE}, 5\nv_add_u32 v{TT+3}, s{sT0}, v{TT+3}\nv_lshrrev_b32 v{TT+4}, 5, v{vLANE}\nv_lshlrev_b32 v{TT+4}, 3, v{TT+4}')
    t(f'v_mul_u32_u24 v{vVW}, 72, v{TT+3}\nv_add_u32 v{vVW}, v{vVW}, v{TT+4}\nv_add_u32 v{vVW}, {SLOT}, v{vVW}')
    t(f'v_mul_u32_u24 v{vPW}, 112, v{TT+3}\nv_add_u32 v{vPW}, v{vPW}, v{TT+4}')
    f3 = t.l
    g1, g2 = c_allflags(EV_C2, T, T + 4)
    k1, k2 = c_allflags(EV_C1, TT, TT + 4)
    f1 = k1 + f1
    assert all(not x.op.startswith('ds_write') for x in part(f1, 1, 1, 4) + part(f1, 2, 1, 4))
    f2 = f1b + f3
    def ps1(s):
        if 1 <= s <= 4: return part(f1, s, 1, 4)
        if 5 <= s <= 9: return part(f2, s, 5, 9)
        if 11 <= s <= 27: return part(sm.l, s, 11, 27) + (g1 if s == 24 else [])
        return []
    S.ext(P.stage(1, perstep=ps1, mid={3: k2, 10: phi_mfma(ka[1], 1, T), 27: g2}))
    stamp(S, 4)
    va = ACC[1]
    t = Stream()
    for c in range(2):
        t.ext(scale_pack(va[c], T, masked=False))
        d = T
        t(f'v_cndmask_b32 v{d+6}, v{d+6}, v{TT}, {HI}\nv_cndmask_b32 v{d+7}, v{d+7}, 0, {HI}')
        for qd in range(4): t(f'ds_write_b64 v{vVW}, {v(d+2*qd, 2)} offset:{c*9216 + qd*16}')
    vfill = [Ins(f'v_mov_b32 v{TT}, 0x3f80')] + t.l + c_signal(EV_V)
    tp = Stream(); tag_prefetch(tp, vTAG)
    def ps2(s):
        if 1 <= s <= Opt.vsteps: return part(vfill, s, 1, Opt.vsteps)
        if s == 20: return tp.l
        return []
    S.ext(P.stage(2, perstep=ps2))
    stamp(S, 5)
    qa = ACC[0]
    S(f'v_mov_b32 v{TT}, s{sL2E}')
    S.ext(scale_pack(qa[0], T)); S.ext(phi_mfma(qa[0], 0, T)); S.ext(scale_pack(qa[1], AF + 16)); S.ext(phi_mfma(qa[1], 1, AF + 16))
    S(f's_lshl_b32 s{sT0}, s{sRB}, 2\ns_add_u32 s{sT0}, s{sT0}, s{sWAVE}\ns_lshl_b32 s{sT0}, s{sT0}, 3\ns_add_u32 s{sT0}, s{sT0}, s{sIDX}\ns_lshl_b32 s{sT0}, s{sT0}, 13\ns_add_u32 s{sT0}, s{sT0}, {WS_PQ}\ns_add_u32 s{sT1}, s{sT0}, 4096')
    for c in range(2):
        X = qa[c]; E = va[c]; d = AF if c == 0 else X0
        for i in range(4): S(f'v_cndmask_b32 v{X+12+i}, v{X+12+i}, v{X+8+i}, {HI}')
        mx, mn = TT + 4, TT + 6
        minmax(S, X, mx, mn, TT + 5, TT + 7)
        if Opt.pkq:
            for i in range(0, 16, 2): S(f'v_pk_fma_f32 {v(E+i,2)}, {v(X+i,2)}, {v(TT,2)}, {v(mx,2)} op_sel_hi:[1,0,0]')
        else:
            for i in range(16): S(f'v_fma_f32 v{E+i}, v{X+i}, s{sL2E}, v{mx}')
        for i in range(16): S(f'v_exp_f32 v{E+i}, v{E+i}')
        for i in range(8): S(f'v_cvt_pk_bf16_f32 v{d+i}, v{E+2*i}, v{E+2*i+1}')
        for hh in range(2):
            S(f'buffer_store_dwordx4 {v(d+4*hh,4)}, v{vL16}, {srd(SRD_WS)}, s{sT0 + c} offen offset:{hh*1024} sc1', tok='st')
        if Opt.pkq:
            for i in range(0, 16, 2): S(f'v_pk_fma_f32 {v(X+i,2)}, {v(X+i,2)}, {v(TT,2)}, {v(mn,2)} op_sel_hi:[1,0,0] neg_lo:[1,0,0] neg_hi:[1,0,0]')
        else:
            for i in range(16): S(f'v_fma_f32 v{X+i}, -v{X+i}, s{sL2E}, v{mn}')
        for i in range(16): S(f'v_exp_f32 v{X+i}, v{X+i}')
        for i in range(8): S(f'v_cvt_pk_bf16_f32 v{d+8+i}, v{X+2*i}, v{X+2*i+1}')
        for hh in range(2):
            S(f'buffer_store_dwordx4 {v(d+8+4*hh,4)}, v{vL16}, {srd(SRD_WS)}, s{sT0 + c} offen offset:{2048 + hh*1024} sc1', tok='st')
    stamp(S, 6)

PHI = 16; PN = 144; KV = 208; XT = 240
vO = 3; vVW2 = [6, 7]
def out_addr(S, xt, off):
    S(f'v_and_b32 v8, 31, v{vLANE}\nv_mul_u32_u24 v{vO}, 896, v8\nv_lshrrev_b32 v8, 5, v{vLANE}\nv_lshl_add_u32 v{vO}, v8, 4, v{vO}')
    S(f's_and_b32 s{sT0}, s{sW4}, 1\ns_lshl_b32 s{sT1}, s{sTB}, 1\ns_add_u32 s{sT0}, s{sT0}, s{sT1}\ns_mul_i32 s{sFT}, s{sT0}, {32*896}')
    S(f's_lshr_b32 s{sT0}, s{sW4}, 1\ns_lshl_b32 s{sT0}, s{sT0}, 6\ns_add_u32 s{sFT}, s{sFT}, s{sT0}\ns_lshl_b32 s{sT0}, s{sCB}, 7\ns_add_u32 s{sFT}, s{sFT}, s{sT0}')
    S(f'buffer_load_dwordx4 {v(xt,4)}, v{vO}, {srd(SRD_X)}, s{sFT} offen offset:{off}')

def final_half(S, isA, acc, xt):
    own = acc + 48 + (8 if isA else 0)
    oth = acc + 48 + (0 if isA else 8)
    reg = A_REG if isA else F_REG; base = A_BASE if isA else 0
    ho = 2048 if isA else 0
    W = [16, 17, 18, 19]
    S(f's_mul_i32 s{sT3}, s{sW4}, {reg}')
    for vq in range(4):
        S(f's_xor_b32 s{sT0}, s{sW4}, {vq ^ 3}\ns_lshl_b32 s{sT0}, s{sT0}, 12\ns_add_u32 s{sT0}, s{sT0}, s{sT3}\ns_add_u32 s{sT0}, s{sT0}, {base}\nv_add_u32 v{W[vq]}, s{sT0}, v{vL16}')
    for i in range(2):
        S(f'ds_write_b128 v{W[3]}, {v(oth+4*i,4)} offset:{(2048 - ho) + i*1024}')
    for vq in range(3):
        for i in range(4):
            S(f'ds_write_b128 v{W[vq]}, {v(acc+16*vq+4*i,4)} offset:{i*1024}')
    S(f's_lshl_b32 s{sT2}, s{sW4}, 12\ns_add_u32 s{sT2}, s{sT2}, {ho}')
    for k in range(1, 4):
        S(f's_xor_b32 s{sT0}, s{sW4}, {k}\ns_mul_i32 s{sT0}, s{sT0}, {reg}\ns_add_u32 s{sT0}, s{sT0}, s{sT2}\ns_add_u32 s{sT0}, s{sT0}, {base}\nv_add_u32 v{19+k}, s{sT0}, v{vL16}')
    oreg = F_REG if isA else A_REG; obase = 0 if isA else A_BASE
    S(f's_add_u32 s{sT0}, s{sT2}, {obase}\nv_add_u32 v23, s{sT0}, v{vL16}\nv_add_u32 v24, {2*oreg}, v23')
    S(f'v_permlane32_swap_b32 v{xt}, v{xt+2}\nv_permlane32_swap_b32 v{xt+1}, v{xt+3}')
    E = 96
    for i in range(4): S(f'v_lshlrev_b32 v{E+2*i}, 16, v{xt+i}\nv_and_b32 v{E+2*i+1}, 0xffff0000, v{xt+i}')
    S('s_waitcnt lgkmcnt(0)\ns_barrier')
    stamp(S, 13 if isA else 14)
    O, P_ = 32, 64
    rdO = [f'ds_read_b128 {v(O+8*f+4*i,4)}, v{23 + f//2} offset:{(f%2)*oreg + i*1024}' for f in range(4) for i in range(2)]
    rdP = [f'ds_read_b128 {v(P_+8*k+4*i,4)}, v{20+k} offset:{i*1024}' for k in range(3) for i in range(2)]
    for r in (rdO + rdP if isA else rdP + rdO): S(r)
    def sumO():
        for i in range(8): S(f'v_add_f32 v{O+i}, v{O+i}, v{O+8+i}')
        for i in range(8): S(f'v_add_f32 v{O+16+i}, v{O+16+i}, v{O+24+i}')
        for i in range(8): S(f'v_add_f32 v{O+i}, v{O+i}, v{O+16+i}')
    def sumP():
        for i in range(8): S(f'v_add_f32 v{P_+i}, v{P_+i}, v{own+i}')
        for i in range(8): S(f'v_add_f32 v{P_+8+i}, v{P_+8+i}, v{P_+16+i}')
        for i in range(8): S(f'v_add_f32 v{P_+i}, v{P_+i}, v{P_+8+i}')
    G, Sg = (O, P_) if isA else (P_, O)
    (sumO if isA else sumP)()
    Q = 104
    for i in range(8): S(f'v_mul_f32 v{Q+i}, {hx(f2u(-L2E))}, v{G+i}')
    for i in range(8): S(f'v_exp_f32 v{Q+i}, v{Q+i}')
    (sumP if isA else sumO)()
    for i in range(8): S(f'v_add_f32 v{Q+i}, 1.0, v{Q+i}')
    for i in range(8): S(f'v_rcp_f32 v{Q+i}, v{Q+i}')
    for i in range(8): S(f'v_mul_f32 v{G+i}, v{G+i}, v{Sg+i}')
    for i in range(8): S(f'v_fmac_f32 v{E+i}, v{G+i}, v{Q+i}')
    for i in range(4): S(f'v_cvt_pk_bf16_f32 v{xt+i}, v{E+2*i}, v{E+2*i+1}')
    S(f'v_permlane32_swap_b32 v{xt}, v{xt+2}\nv_permlane32_swap_b32 v{xt+1}, v{xt+3}')
    S(f'buffer_store_dwordx4 {v(xt,4)}, v{vO}, {srd(SRD_OUT)}, s{sFT} offen offset:{32 if isA else 0}')

def c_publish(S, have_tag, tile):
    if tile:
        S.ext(c_signal(EV_END))
        out_addr(S, XT, 32)
        lane_consts_tr(S, vVW2, 8, 64, 'B')
        S(f's_mul_i32 s{sT3}, s{sW4}, {A_REG}\ns_add_u32 s{sT3}, s{sT3}, {A_BASE}')
        S(f's_xor_b32 s{sT0}, s{sW4}, 3\ns_lshr_b32 s{sT1}, s{sT0}, 1\ns_lshl_b32 s{sT1}, s{sT1}, 6\ns_and_b32 s{sT2}, s{sT0}, 1\ns_lshl_b32 s{sT2}, s{sT2}, 16')
        S(f'v_add_u32 v{vVW2[0]}, s{sT3}, v{vVW2[0]}\nv_xor_b32 v{vVW2[0]}, s{sT1}, v{vVW2[0]}\nv_xor_b32 v{vVW2[1]}, 64, v{vVW2[0]}')
        S(f'v_add_u32 v10, s{sT2}, v{vL16}\nv_xor_b32 v11, 0x10000, v10')
    S(f's_lshl_b32 s{sT0}, s{sRB}, 1\ns_lshr_b32 s{sT1}, s{sW4}, 1\ns_add_u32 s{sT0}, s{sT0}, s{sT1}\ns_lshl_b32 s{sT0}, s{sT0}, 15\ns_lshl_b32 s{sT1}, s{sROLE}, 8\ns_add_u32 s{sT0}, s{sT0}, s{sT1}')
    S(f's_and_b32 s{sT1}, s{sW4}, 1\ns_lshl_b32 s{sT1}, s{sT1}, 7\ns_add_u32 s{sT0}, s{sT0}, s{sT1}\ns_add_u32 s{sT0}, s{sT0}, {WS_FH}')
    if not have_tag: tag_get(S, vTAG)
    S.wait('st')
    flag_store(S, sT0, TT, 7, 12)
    stamp(S, 7)

W2R = 16; FACC = 144; HR = 208
vLW, vLS, vL2 = 3, 4, 5
def swz_voff(S, dst, pitch, tmp):
    S(f'v_lshrrev_b32 v{tmp}, 3, v{vLANE}\nv_mul_lo_u32 v{dst}, v{tmp}, {pitch}')
    S(f'v_bfe_u32 v{tmp}, v{vLANE}, 4, 1\nv_lshlrev_b32 v{tmp}, 2, v{tmp}\nv_and_b32 v{tmp+1}, 7, v{vLANE}\nv_xor_b32 v{tmp}, v{tmp}, v{tmp+1}\nv_lshl_add_u32 v{dst}, v{tmp}, 4, v{dst}')
def flat(l): return [x for y in l for x in y]
def sprinkle(main, units):
    out = []; n = len(main); k = len(units); j = 0
    for i, x in enumerate(main):
        while j < k and (j + 0.5) * n / max(k, 1) <= i and x.kind in ('valu', 'trans'):
            out += units[j]; j += 1
        out.append(x)
    return out + flat(units[j:])

def l_phase1(S, ffn, tile):
    sBLK, sP64, sP448, sP32, sW2, sK2 = sU0, sU1, sU2, sU3, sU4, sU5
    S(f's_mul_i32 s{sFS}, s{sW4}, s{sPITCH}\ns_lshl_b32 s{sFS}, s{sFS}, 3')
    S(f's_lshl_b32 s{sT3}, s{sW4}, 10\ns_lshl_b32 s{sP64}, s{sPITCH}, 6\ns_lshl_b32 s{sP32}, s{sPITCH}, 5\ns_mul_i32 s{sP448}, s{sPITCH}, 448\ns_mul_i32 s{sBLK}, s{sP64}, s{sROT1}')
    def dma_half(h):
        units = []
        st = h // 2
        for k in range(7):
            St = Stream()
            kk = (h % 2) * 7 + k
            St(f's_add_u32 m0, s{sT3}, {(half_base(h) + k*4096) if h != 1 else (SPARE + k*4096 if k < 4 else (k - 4)*4096)}')
            if kk % 2 == 0:
                St(f's_add_u32 s{sT0}, s{sBLK}, s{sFS}\ns_add_u32 s{sT0}, s{sT0}, s{sCOL[st]}')
            else:
                if k == 0: St(f's_add_u32 s{sT0}, s{sBLK}, s{sFS}\ns_add_u32 s{sT0}, s{sT0}, s{sCOL[st]}')
                St(f's_add_u32 s{sT0}, s{sT0}, s{sP32}')
                wrap_inc(St, sBLK, f's{sP64}', f's{sP448}')
            St(f'buffer_load_dwordx4 v{vLW}, {srd(SRD_W)}, s{sT0} offen lds', tok=('h', h if not (h == 1 and k >= 4) else CN_H1B))
            units.append(St.l)
        return units
    def sig(h):
        S.wait(('h', h))
        if h < 5: stamp(S, 2 + h)
        l_signal(S, h)
    if Opt.cpf:
        lab = newlab('pc')
        S(f's_getpc_b64 s[72:73]\n{lab}:\ns_sub_u32 s72, s72, {lab} - {NAME}\ns_subb_u32 s73, s73, 0')
        S(f's_lshl_b32 s{sT0}, s{sI}, 2\ns_add_u32 s{sT0}, s{sT0}, s{sW4}\ns_lshl_b32 s{sT0}, s{sT0}, 2\nv_add_u32 v8, s{sT0}, v{vLANE}\nv_lshlrev_b32 v8, 7, v8\nv_min_u32 v8, L_end - {NAME}, v8')
        S(f's_mov_b64 exec, 15\nglobal_load_dword v200, v8, s[72:73]\ns_mov_b64 exec, -1')
    S('s_barrier')
    S.ext(flat(dma_half(0)))
    if not ffn:
        S(f's_add_u32 m0, s{sT3}, {WPHI_L}\ns_mul_i32 s{sT0}, s{sIDX}, 3136\ns_add_u32 s{sT0}, s{sT0}, s{sT3}\ns_cmp_eq_u32 s{sW4}, 3\ns_cselect_b32 exec_hi, 0, -1')
        S(f'buffer_load_dwordx4 v{vL16}, {srd(SRD_WPHI)}, s{sT0} offen lds', tok=('h', 0))
        S('s_mov_b64 exec, -1')
    h1 = dma_half(1)
    S.ext(flat(h1[:4]))
    if Opt.tlb:
        st_ = Opt.tlb
        S(f'v_lshlrev_b32 v8, {st_}, v{vLANE}')
        S(f's_mul_i32 s{sT0}, s{sTB}, {224*K1}\ns_lshl_b32 s{sT1}, s{sTB}, 17\ns_add_u32 s{sT1}, s{sT1}, {WS_PQ}\ns_cmp_eq_u32 s{sW4}, 1\ns_cselect_b32 s{sT0}, s{sT1}, s{sT0}')
        S(f's_mov_b32 s{sT1}, {WS_KVF}\ns_cmp_eq_u32 s{sW4}, 2\ns_cselect_b32 s{sT0}, s{sT1}, s{sT0}')
        S(f's_mul_i32 s{sT1}, s{sRB}, {448*K1}\ns_cmp_eq_u32 s{sW4}, 3\ns_cselect_b32 s{sT0}, s{sT1}, s{sT0}')
        n_ = min(64, (448 * K1) >> st_)
        S(f's_mov_b32 exec_lo, {hex(((1 << n_) - 1) & 0xffffffff)}\ns_mov_b32 exec_hi, {hex(((1 << n_) - 1) >> 32)}')
        S(f'buffer_load_dword v200, v8, {srd(SRD_WS)}, s{sT0} offen sc1\ns_mul_i32 s{sT1}, s{sTB}, {64*896}\ns_mov_b64 exec, 3\nbuffer_load_dword v200, v8, {srd(SRD_OUT)}, s{sT1} offen\nbuffer_load_dword v200, v8, {srd(SRD_W2)}, 0 offen\nbuffer_load_dword v200, v8, {srd(SRD_WO)}, 0 offen\ns_mov_b64 exec, -1')
    stamp(S, 'e5')
    lab = newlab('nt')
    S(f's_or_b32 s{sT0}, s2, s{sW4}\ns_cmp_lg_u32 s{sT0}, 0\ns_cbranch_scc1 {lab}')
    raw(S, f's_mov_b32 s{sT0}, {WS_TAG}\nv_mov_b32 v9, 0\ns_mov_b64 exec, 1\nbuffer_load_dword v8, v9, {srd(SRD_WS)}, s{sT0} offen sc1\ns_waitcnt vmcnt(0)\n'
           f'v_add_u32 v8, 1, v8\nv_max_u32 v8, 1, v8\ns_nop 1\nbuffer_store_dword v8, v9, {srd(SRD_WS)}, s{sT0} offen sc1\nbuffer_store_dword v8, v9, {srd(SRD_DBG)}, 0 offen sc1\ns_waitcnt vmcnt(0)\ns_mov_b64 exec, -1\n{lab}:')
    S(f'v_lshlrev_b32 v{vLC}, 2, v{vLANE}\nv_add_u32 v{vLC}, {CTL}, v{vLC}\nv_mov_b32 v{vLONE}, 1\nv_mov_b32 v{vLP+4}, {CTL}')
    if ffn:
        S(f'v_lshrrev_b32 v8, 2, v{vLANE}\nv_mul_u32_u24 v{vLS}, 3584, v8\nv_and_b32 v8, 3, v{vLANE}\nv_lshl_add_u32 v{vLS}, v8, 4, v{vLS}')
    else:
        S(f'v_and_b32 v8, 31, v{vLANE}\ns_lshl_b32 s{sT0}, s{sW4}, 5\nv_add_u32 v8, s{sT0}, v8\nv_lshrrev_b32 v9, 5, v{vLANE}\nv_lshlrev_b32 v9, 3, v9')
        S(f'v_mul_u32_u24 v{vLPW}, 112, v8\nv_add_u32 v{vLPW}, v{vLPW}, v9')
        S(f'v_cndmask_b32 v{vLMK}, 1.0, 0, {HI}\nv_mov_b32 v{vLL2E}, s{sL2E}')
        trb(S, vLWP, 2, 56, 8)
        S(f'v_add_u32 v{vLWP}, {WPHI_L}, v{vLWP}')
    S(f's_lshl_b32 s{sT0}, s{sW4}, 12\ns_add_u32 s{sT0}, s{sT0}, {SPARE}\nv_add_u32 v{vLRD}, s{sT0}, v{vL16}')
    if tile:
        S(f's_mov_b32 s{sT1}, 896'); swz_voff(S, vL2, f's{sT1}', 8)
        lane_consts_tr(S, vVW2, 8, 64, 'B')
        S(f's_xor_b32 s{sT1}, s{sW4}, 3\ns_lshr_b32 s{sT1}, s{sT1}, 1\ns_lshl_b32 s{sT1}, s{sT1}, 6\nv_xor_b32 v{vVW2[0]}, s{sT1}, v{vVW2[0]}\nv_xor_b32 v{vVW2[1]}, 64, v{vVW2[0]}')
        S(f's_mul_i32 s{sW2}, s{sW4}, {448*896}\ns_lshl_b32 s{sT2}, s{sCB}, 7\ns_add_u32 s{sW2}, s{sW2}, s{sT2}\ns_mul_i32 s{sK2}, s{sROT2}, {16*896}')
        S(f'v_add_u32 v13, {8*896}, v{vL2}')
    def w2stage(base, stride, ns):
        if not tile: return
        S(f's_mul_i32 s{sT2}, s{sW4}, {stride}\ns_add_u32 s{sT2}, s{sT2}, {base}\nv_add_u32 v9, s{sT2}, v{vVW2[0]}\nv_add_u32 v10, s{sT2}, v{vVW2[1]}')
        def dma(ks):
            o = (ks % ns) * 2048
            S(f's_add_u32 m0, s{sT2}, {o}\ns_add_u32 s{sT1}, s{sW2}, s{sK2}')
            if ks >= ns: S.wait(('wr', ks - ns))
            S(f'buffer_load_dwordx4 v{vL2}, {srd(SRD_W2)}, s{sT1} offen lds', tok=('w', ks))
            S(f's_add_u32 m0, s{sT2}, {o + 1024}')
            wrap_inc(S, sK2, 16 * 896, 448 * 896)
            S(f'buffer_load_dwordx4 v13, {srd(SRD_W2)}, s{sT1} offen lds', tok=('w', ks))
        d = ns - 1
        for ks in range(min(d, 16)): dma(ks)
        for ks in range(16):
            if ks + d < 16: dma(ks + d)
            S.wait(('w', ks))
            o = (ks % ns) * 2048; b = W2R + 8 * ks
            for c in range(2):
                for u in range(2):
                    S(f'ds_read_b64_tr_b16 {v(b + 4*c + 2*u, 2)}, v{9+c} offset:{o + 1024*u}', tok=('wr', ks))
            if not ffn and ks in (0, 8): stamp(S, 3 + ks // 8)
    def w2raw(lo, hi):
        if not tile: return
        for ks in range(lo, hi):
            S(f's_add_u32 s{sT1}, s{sW2}, s{sK2}')
            S(f'buffer_load_dwordx4 {v(W2R+8*ks,4)}, v{vL2}, {srd(SRD_W2)}, s{sT1} offen')
            S(f'buffer_load_dwordx4 {v(W2R+8*ks+4,4)}, v13, {srd(SRD_W2)}, s{sT1} offen')
            wrap_inc(S, sK2, 16 * 896, 448 * 896)
    def tr(lo, hi):
        if not tile: return
        if lo == 0: S(f's_lshl_b32 s{sT0}, s{sW4}, 12\ns_add_u32 s{sT0}, s{sT0}, {SPARE}\nv_add_u32 v9, s{sT0}, v{vVW2[0]}\nv_add_u32 v10, s{sT0}, v{vVW2[1]}')
        for ks in range(lo, hi):
            o = (ks % 2) * 2048; b = W2R + 8 * ks
            S(f'ds_write_b128 v{vLRD}, {v(b,4)} offset:{o}\nds_write_b128 v{vLRD}, {v(b+4,4)} offset:{o+1024}')
            for c in range(2):
                for u in range(2):
                    S(f'ds_read_b64_tr_b16 {v(b + 4*c + 2*u, 2)}, v{9+c} offset:{o + 1024*u}')
    DUM = 200
    def pf(srd_, voff, soff, n):
        S(f's_mov_b32 exec_hi, {hex((1 << (n - 32)) - 1)}\nbuffer_load_dword v{DUM}, v{voff}, {srd(srd_)}, s{soff} offen\ns_mov_b32 exec_hi, -1', tok='pf')
    if Opt.wpf:
        S(f'v_mul_lo_u32 v14, v{vLANE}, s{sPITCH}\ns_and_b32 s{sT0}, s{sI}, 3\ns_mul_i32 s{sT0}, s{sT0}, 112')
        if ffn:
            S(f's_mul_i32 s{sT0}, s{sT0}, s{sPITCH}\ns_lshl_b32 s{sT1}, s{sW4}, 7\ns_add_u32 s{sT1}, s{sT1}, s{sCOL[0]}\ns_cmp_eq_u32 s{sW4}, 3\ns_cselect_b32 s{sT1}, s{sCOLS}, s{sT1}\ns_add_u32 s{sT0}, s{sT0}, s{sT1}')
            pf(SRD_W, 14, sT0, 56)
            S(f's_add_u32 s{sT0}, s{sT0}, {56*3584}')
            pf(SRD_W, 14, sT0, 56)
        else:
            S(f's_lshr_b32 s{sT1}, s{sW4}, 1\ns_mul_i32 s{sT1}, s{sT1}, 56\ns_add_u32 s{sT0}, s{sT0}, s{sT1}\ns_mul_i32 s{sT0}, s{sT0}, s{sPITCH}\ns_and_b32 s{sT1}, s{sW4}, 1\ns_mul_i32 s{sT1}, s{sT1}, 124\ns_add_u32 s{sT0}, s{sT0}, s{sT1}')
            for st in range(3):
                S(f's_add_u32 s{sT1}, s{sT0}, s{sCOL[st]}')
                pf(SRD_W, 14, sT1, 56)
    def w2_prefetch():
        if not Opt.w2pf: return
        S(f'v_lshlrev_b32 v14, 7, v{vLANE}\ns_lshl_b32 s{sT0}, s{sI}, 2\ns_add_u32 s{sT0}, s{sT0}, s{sW4}\ns_mul_i32 s{sT1}, s{sT0}, {98*128}')
        pf(SRD_W2, 14, sT1, 49)
        S(f's_add_u32 s{sT1}, s{sT1}, {49*128}')
        pf(SRD_W2, 14, sT1, 49)
        S(f's_mul_i32 s{sT1}, s{sT0}, {25*128}\ns_mov_b64 exec, 0x1ffffff\nbuffer_load_dword v{DUM}, v14, {srd(SRD_WO)}, s{sT1} offen\ns_mov_b64 exec, -1', tok='pf')
    def gpf(which):
        if not Opt.gpf: return
        S(f's_lshl_b32 s{sT0}, s2, 2\ns_add_u32 s{sT0}, s{sT0}, s{sW4}\nv_lshlrev_b32 v14, 7, v{vLANE}')
        S(f's_mov_b64 s[72:73], s[66:67]\ns_mov_b32 s74, {448*2688}\ns_mov_b32 s75, 0x20000') if False else None
        for (lo, n, size) in ((sKA_QKV, 10, 448*2688), (sKA_W1, 13, 448*3584), (SRD_W2, 13, None), (SRD_WO, 4, None))[which]:
            if size:
                S(f's_mov_b64 s[76:77], s[{lo}:{lo+1}]\ns_mov_b32 s78, {size}\ns_mov_b32 s79, 0x20000'); d = 76
            else: d = lo
            S(f's_mul_i32 s{sT1}, s{sT0}, {n*128}\ns_mov_b64 exec, {hex((1 << n) - 1)}\nbuffer_load_dword v{DUM}, v14, {srd(d)}, s{sT1} offen\ns_mov_b64 exec, -1', tok='pf')
    if Opt.gpf == 2: gpf(slice(0, 2))
    def wo_prefetch():
        S(f'v_lshlrev_b32 v14, 7, v{vLANE}\ns_lshl_b32 s{sT0}, s{sI}, 2\ns_add_u32 s{sT0}, s{sT0}, s{sW4}')
        S(f's_mul_i32 s{sT1}, s{sT0}, {25*128}\ns_mov_b64 exec, 0x1ffffff\nbuffer_load_dword v{DUM}, v14, {srd(SRD_WO)}, s{sT1} offen\ns_mov_b64 exec, -1', tok='pf')
    l_wait(S, EV_XFREE)
    stamp(S, 1)
    S(f's_add_u32 s{sT0}, s{sBLK}, s{sFS}\ns_add_u32 s{sT0}, s{sT0}, s{sCOL[0]}')
    S.ext(flat(h1[4:])); sig(0)
    h2 = dma_half(2)
    S.ext(flat(h2[:3])); sig(1); S.ext(flat(h2[3:5])); sig(CN_H1B); S.ext(flat(h2[5:]))
    h3 = dma_half(3)
    S.ext(flat(h3[:3])); sig(2); S.ext(flat(h3[3:]))
    if not ffn: tag_fetch_l0(S)
    h4 = dma_half(4)
    S.ext(flat(h4[:3])); sig(3); S.ext(flat(h4[3:]))
    gpf(slice(2, 4))
    if ffn:
        sig(4)
        l_wait(S, EV_C0)
        S.ext(flat(dma_half(5)))
        tag_fetch_l0(S)
        sig(5)
        l_wait(S, EV_C1)
        S(f's_lshl_b32 s{sFS}, s{sFS}, 1\ns_add_u32 s{sFS}, s{sFS}, s{sCOLS}')
        for k in range(7):
            S(f's_add_u32 m0, s{sT3}, {k*4096}\ns_add_u32 s{sT0}, s{sBLK}, s{sFS}')
            wrap_inc(S, sBLK, f's{sP64}', f's{sP448}')
            S(f'buffer_load_dwordx4 v{vLS}, {srd(SRD_W)}, s{sT0} offen lds', tok=('h', 6))
        sig(6)
        wo_prefetch()
        l_wait(S, EV_C3)
        w2stage(SLOT, 14 * K1, 7)
        stamp(S, 11)
    else:
        l_wait(S, EV_C0)
        S.ext(flat(dma_half(5)))
        wo_prefetch()
        kA, kB, KA = 194, 195, LX
        trb(S, kA, 3, 112, 8); trb(S, kB, 3, 72, 8)
        S(f's_lshr_b32 s{sT0}, s{sW4}, 1\ns_and_b32 s{sT1}, s{sW4}, 1\ns_mul_i32 s{sT2}, s{sT0}, 14336\ns_mul_i32 s{sT1}, s{sT1}, 56\ns_add_u32 s{sT2}, s{sT2}, s{sT1}\nv_add_u32 v{kA}, s{sT2}, v{kA}')
        S(f's_mul_i32 s{sT2}, s{sT0}, 9216\ns_add_u32 s{sT2}, s{sT2}, {SLOT}\nv_add_u32 v{kB}, s{sT2}, v{kB}')
        S(f's_lshl_b32 s{sFT}, s{sIDX}, 2\ns_add_u32 s{sFT}, s{sFT}, s{sW4}\ns_lshl_b32 s{sFS}, s{sFT}, 11\ns_lshl_b32 s{sFT}, s{sFT}, 4\ns_add_u32 s{sFT}, s{sFT}, s{sRB}\ns_lshl_b32 s{sFT}, s{sFT}, 12\ns_add_u32 s{sFT}, s{sFT}, {WS_KVP}')
        S(f's_lshl_b32 s{sT0}, s{sRB}, 7\ns_add_u32 s{sFS}, s{sFS}, s{sT0}\ns_add_u32 s{sFS}, s{sFS}, {WS_FP}')
        tag_prefetch(S, vTAG); tag_get(S, vTAG)
        sig(4)
        w2raw(0, Opt.aw2)
        l_wait(S, EV_PK)
        stamp(S, 12)
        if Opt.lprio: S('s_setprio 1')
        S.ext(softmax_k(None))
        l_signal(S, CN_PH)
        stamp(S, 11)
        sig(5)
        w2raw(Opt.aw2, 16)
        tr(0, Opt.tr1)
        stamp(S, 5)
        if Opt.kprio: S('s_setprio 1')
        l_wait(S, EV_V)
        S.ext(cnt_read(CN_PH, vLP)); S.ext(cnt_check(CN_PH, vLP))
        for ts in range(8):
            b = HR + 8 * (ts % 6)
            if ts >= 6: S(f'v_mfma_f32_32x32x16_bf16 {v(KA,16)}, {v(b,4)}, {v(b+4,4)}, {"0" if ts == 6 else v(KA,16)}')
            for u in range(2): S(f'ds_read_b64_tr_b16 {v(b + 2*u, 2)}, v{kA} offset:{(16*ts + 4*u)*112}')
            for u in range(2): S(f'ds_read_b64_tr_b16 {v(b + 4 + 2*u, 2)}, v{kB} offset:{(16*ts + 4*u)*72}')
        for ts in range(2, 8):
            b = HR + 8 * (ts % 6)
            S(f'v_mfma_f32_32x32x16_bf16 {v(KA,16)}, {v(b,4)}, {v(b+4,4)}, {v(KA,16)}')
        G_ = HR
        for i in range(8): S(f'v_mov_b32 v{G_+2*i+1}, s{sTAG}')
        for i in range(8): S(f'v_cvt_pk_bf16_f32 v{G_+2*i}, v{KA+2*i}, v{KA+2*i+1}')
        for j in range(4):
            S(f'buffer_store_dwordx4 {v(G_+4*j,4)}, v{vL16}, {srd(SRD_WS)}, s{sFT} offen offset:{j*1024} sc1', tok='kvp')
        if Opt.hint: flag_store(S, sFS, LE)
        S('s_setprio 0')
        stamp(S, 1)
        if Opt.ackdiag: S.wait('kvp'); stamp(S, 2); S('s_waitcnt vmcnt(0)')
        tr(Opt.tr1, 16)
        stamp(S, 6)
    if ffn: tag_prefetch(S, vTAG); tag_get(S, vTAG)
    if tile:
        l_signal(S, CN_LT)
        l_wait(S, EV_END)
        S.ext(cnt_read(CN_LT, vLP)); S.ext(cnt_check(CN_LT, vLP))
        stamp(S, 7)
        S(f's_mul_i32 s{sT3}, s{sW4}, {F_REG}')
        for i in range(12):
            S(f's_add_u32 m0, s{sT3}, {i*2048}\ns_add_u32 s{sT1}, s{sW2}, s{sK2}\ns_waitcnt vmcnt({Opt.bthr})')
            S(f'buffer_load_dwordx4 v{vL2}, {srd(SRD_W2)}, s{sT1} offen lds', tok='w2')
            S(f's_add_u32 m0, s{sT3}, {i*2048 + 1024}')
            wrap_inc(S, sK2, 16 * 896, 448 * 896)
            S(f'buffer_load_dwordx4 v13, {srd(SRD_W2)}, s{sT1} offen lds', tok='w2')
        stamp(S, 13)
        stamp(S, 14)
        S(f's_lshl_b32 s{sT2}, s{sW4}, 14\ns_add_u32 s{sT2}, s{sT2}, {A_BASE}\ns_lshl_b32 s{sU0}, s{sCB}, 7')
        for hd in range(0 if (Opt.nodma or Opt.nowo) else 4):
            S(f's_add_u32 s{sT0}, s{sCB}, {hd}\ns_and_b32 s{sT0}, s{sT0}, 3\ns_lshl_b32 s{sT1}, s{sW4}, 2\ns_add_u32 s{sT0}, s{sT0}, s{sT1}\ns_mul_i32 s{sT0}, s{sT0}, {28*896}\ns_add_u32 s{sT0}, s{sT0}, s{sU0}')
            for i in range(4):
                S(f's_add_u32 m0, s{sT2}, {hd*4096 + i*1024}\ns_waitcnt vmcnt({Opt.bthr})')
                if i == 2: S(f's_add_u32 s{sT0}, s{sT0}, {16*896}')
                if hd == 3 and i == 3: S(f's_cmp_eq_u32 s{sW4}, 3\ns_cselect_b32 exec_hi, 0, -1')
                S(f'buffer_load_dwordx4 v{vL2 if i % 2 == 0 else 13}, {srd(SRD_WO)}, s{sT0} offen lds', tok='wo')
        S('s_mov_b64 exec, -1')

def hflag_poll(S):
    S(f'v_lshlrev_b32 v8, 7, v{vLANE}')
    S(f's_lshl_b32 s{sT0}, s{sTB}, 3\ns_add_u32 s{sT0}, s{sT0}, s{sCB}\ns_lshl_b32 s{sT0}, s{sT0}, 12\ns_lshl_b32 s{sT1}, s{sW4}, 9\ns_add_u32 s{sT0}, s{sT0}, s{sT1}\ns_add_u32 s{sT0}, s{sT0}, {WS_FH}')
    poll(S, 8, sT0, 4, 9)

def f_phase2(S):
    stamp(S, 10)
    if Opt.fprio: S('s_setprio 1')
    sK = sU1
    S(f'v_add_u32 v10, s{sT3}, v{vVW2[1]}\nv_add_u32 v14, s{sT3}, v{vVW2[0]}')
    out_addr(S, 4, 0)
    S(f's_mul_i32 s{sU2}, s{sTB}, {224*K1}\ns_mul_i32 s{sT2}, s{sW4}, {28*K1}\ns_add_u32 s{sU2}, s{sU2}, s{sT2}\ns_add_u32 s{sU2}, s{sU2}, {WS_H}\ns_lshl_b32 s{sK}, s{sROT2}, 10')
    S(f's_and_b32 s{sT2}, s{sW4}, 1\ns_mul_i32 s{sT2}, s{sT2}, {112*K1}\nv_add_u32 v13, s{sT2}, v{vL16}\ns_sub_u32 s{sT2}, {112*K1}, s{sT2}\nv_add_u32 v15, s{sT2}, v{vL16}')
    hflag_poll(S)
    S(f'v_mov_b32 v8, 4\nds_write_b32 v{vCTL}, v8 offset:{128 + 16*CN_WO}\nv_mov_b32 v9, v14')
    stamp(S, 8)
    hdst = {}
    for ks in range(28):
        if ks < 6: hdst[ks] = HR + 8 * ks
        elif ks < 16: hdst[ks] = W2R + 8 * (ks - 6)
        else: hdst[ks] = hdst[ks - 12]
    adst = {ks: (W2R + 8 * ks if ks < 16 else W2R + 8 * (10 + (ks - 16) % 3)) for ks in range(28)}
    def hload(ks):
        S(f's_add_u32 s{sT0}, s{sU2}, s{sK}')
        S(f'buffer_load_dwordx4 {v(hdst[ks],4)}, v15, {srd(SRD_WS)}, s{sT0} offen sc1')
        S(f'buffer_load_dwordx4 {v(hdst[ks]+4,4)}, v13, {srd(SRD_WS)}, s{sT0} offen sc1')
        if ks < 27: wrap_inc(S, sK, 1024, 28 * K1)
    def aread(ks):
        o = (ks - 16) * 2048; b = adst[ks]
        for c in range(2):
            for u in range(2):
                S(f'ds_read_b64_tr_b16 {v(b + 4*c + 2*u, 2)}, v{9+c} offset:{o + 1024*u}')
    for ks in range(6): hload(ks)
    nxt = 6
    for ks in range(28):
        for c in range(2):
            for tt2 in range(2):
                acc = FACC + 16 * (2 * c + tt2)
                S(f'v_mfma_f32_32x32x16_bf16 {v(acc,16)}, {v(adst[ks]+4*c,4)}, {v(hdst[ks]+4*tt2,4)}, {"0" if ks == 0 else v(acc,16)}')
                if c == 0 and tt2 == 0 and 16 <= ks + 2 < 28: aread(ks + 2)
        if Opt.fdiag and ks in (0, 4, 8, 12, 16, 22): stamp(S, 1 + (0, 4, 8, 12, 16, 22).index(ks))
        while nxt < 28 and ((nxt < 16 and nxt - 6 <= ks) or (nxt >= 16 and nxt - 12 <= ks)):
            hload(nxt); nxt += 1
    stamp(S, 9)
    final_half(S, False, FACC, 4)

def a_phase2(S):
    for hd in range(4):
        S(f's_add_u32 s{sU0+hd}, s{sCB}, {hd}\ns_and_b32 s{sU0+hd}, s{sU0+hd}, 3\ns_lshl_b32 s{sU0+hd}, s{sU0+hd}, 12')
    S(f's_lshl_b32 s{sU4}, s{sTB}, 17\ns_lshl_b32 s{sT2}, s{sW4}, 14\ns_add_u32 s{sU4}, s{sU4}, s{sT2}\ns_add_u32 s{sU4}, s{sU4}, {WS_PQ}')
    S(f's_add_u32 s{sU5}, s{sT2}, {WS_KVF}')
    S(f'v_lshlrev_b32 v8, 7, v{vLANE}\ns_lshl_b32 s{sT1}, s{sXCD}, 12\ns_add_u32 s{sT1}, s{sT1}, {WS_FK}\nv_lshlrev_b32 v13, 2, v{vLANE}\nv_add_u32 v13, {CTL}, v13\nv_mov_b32 v9, 4\nv_lshlrev_b32 v5, 3, v{vLANE}')
    if Opt.aprio: S('s_setprio 1')
    S('s_waitcnt vmcnt(0)')
    S.ext(cnt_read(CN_WO, vCT)); S.ext(cnt_check(CN_WO, vCT, 1))
    stamp(S, 8)
    def phiload(hd):
        t_ = Stream()
        t_(f's_add_u32 s{sT2}, s{sU4}, s{sU0+hd}')
        for tt2 in range(2):
            t = hd * 2 + tt2
            for st in range(4):
                t_(f'buffer_load_dwordx4 {v(PHI+16*t+4*st,4)}, v{10 + tt2}, {srd(SRD_WS)}, s{sT2} offen offset:{st*1024} sc1')
        return t_.l
    def kvload(hd):
        t = Stream()
        t(f's_add_u32 s{sT0}, s{sU5}, s{sU0+hd}')
        for st in range(4):
            for hh in range(2):
                t(f'buffer_load_dwordx2 {v(KV+16*(hd%2)+4*st+2*hh,2)}, v5, {srd(SRD_WS)}, s{sT0} offen offset:{st*1024 + hh*512} sc1')
        return t.l
    def watch(load, cn, sleep):
        again, oth, done = newlab('kv'), newlab('kv'), newlab('kv')
        S(f's_mov_b32 s{sBND}, 0\ns_cmp_lg_u32 s{sW4}, 0\ns_cbranch_scc1 {oth}')
        raw(S, f'{again}:\n{load}\ns_waitcnt vmcnt(0)\nv_cmp_ne_u32 vcc, s{sTAG}, v4\ns_nop 1\ns_cbranch_vccz {done}\n'
               f's_add_u32 s{sBND}, s{sBND}, 1\ns_cmp_gt_u32 s{sBND}, 0x20000\ns_cbranch_scc1 {done}\ns_sleep {sleep}\ns_branch {again}\n'
               f'{done}:\ns_mov_b64 exec, 15\nds_write_b32 v13, v9 offset:{128 + 16*cn}\ns_mov_b64 exec, -1\n{oth}:')
        S(f's_mov_b32 s{sU0+8}, s{sBND}')
        S.ext(cnt_read(cn, vCT)); S.ext(cnt_check(cn, vCT, 1))
    S(f's_lshl_b32 s{sT0}, s{sTB}, 3\ns_add_u32 s{sT0}, s{sT0}, s{sCB}\ns_lshl_b32 s{sT0}, s{sT0}, 12\ns_add_u32 s{sT0}, s{sT0}, {WS_FH + 2048}')
    watch(f's_mov_b64 exec, 0xffff\nbuffer_load_dword v4, v8, {srd(SRD_WS)}, s{sT0} offen sc1', CN_PQ, Opt.ksleep)
    stamp(S, 9)
    for hd in range(4):
        if hd >= 1 and Opt.athr: S(f's_waitcnt vmcnt({Opt.athr})')
        S.ext(phiload(hd))
    watch(f's_mov_b64 exec, 0xffffffff\nbuffer_load_dword v4, v8, {srd(SRD_WS)}, s{sT1} offen sc1', CN_KV, Opt.ksleep)
    stamp(S, 10)
    if Opt.diag == 2 and Opt.fine < 0: S(f's_mul_i32 s{STAMP0+14}, s{sU0+8}, 1000\ns_add_u32 s{STAMP0+14}, s{STAMP0+14}, s{STAMP0}')
    S.ext(kvload(0)); S.ext(kvload(1))
    def num(t):
        hd = t // 2; kb = KV + 16 * (hd % 2); aP = PN + 32 * (t % 2); aN = aP + 16; ph = PHI + 16 * t
        return [Ins(f'v_mfma_f32_32x32x16_bf16 {v(aP,16)}, {v(kb,4)}, {v(ph,4)}, 0'),
                Ins(f'v_mfma_f32_32x32x16_bf16 {v(aN,16)}, {v(kb+8,4)}, {v(ph+8,4)}, 0'),
                Ins(f'v_mfma_f32_32x32x16_bf16 {v(aP,16)}, {v(kb+4,4)}, {v(ph+4,4)}, {v(aP,16)}'),
                Ins(f'v_mfma_f32_32x32x16_bf16 {v(aN,16)}, {v(kb+12,4)}, {v(ph+12,4)}, {v(aN,16)}')]
    def onorm(t):
        S = Stream()
        aP = PN + 32 * (t % 2); aN = aP + 16; ph = PHI + 16 * t
        rP, rN, dn, a, b = TT, TT + 1, TT + 2, TT + 3, TT + 4
        S(f'v_rcp_f32 v{rP}, v{aP+13}\nv_rcp_f32 v{rN}, v{aN+13}')
        S(f'v_mov_b32 v{dn}, {hx(f2u(1e-6))}\nv_fmac_f32 v{dn}, v{aP+12}, v{rP}\nv_fmac_f32 v{dn}, v{aN+12}, v{rN}\nv_rcp_f32 v{dn}, v{dn}')
        S(f'v_nop\nv_mul_f32 v{rP}, v{rP}, v{dn}\nv_mul_f32 v{rN}, v{rN}, v{dn}\nv_mov_b32 v{a}, v{rP}\nv_mov_b32 v{b}, v{rN}')
        S(f'v_permlane32_swap_b32 v{rP}, v{a}\nv_permlane32_swap_b32 v{rN}, v{b}')
        for i in range(16): S(f'v_mul_f32 v{aP+i}, v{aP+i}, v{a}')
        for i in range(16): S(f'v_fmac_f32 v{aP+i}, v{aN+i}, v{b}')
        for i in range(8): S(f'v_cvt_pk_bf16_f32 v{ph+i}, v{aP+2*i}, v{aP+2*i+1}')
        S(f'v_cndmask_b32 v{ph+6}, v{ph+6}, 0, {HI}\nv_cndmask_b32 v{ph+7}, v{ph+7}, 0, {HI}')
        return S.l
    S.ext(num(0))
    for t in range(8):
        o = onorm(t)
        if Opt.fdiag and t in (0, 1, 2, 4, 6): stamp(S, 1 + (0, 1, 2, 4, 6).index(t))
        if t + 1 < 8:
            m = num(t + 1)
            S.ext(m[0:2]); S.ext(o[0:13]); S.ext(m[2:3]); S.ext(o[13:22]); S.ext(m[3:4])
            if t % 2 == 0 and t // 2 + 2 < 4: S.ext(kvload(t // 2 + 2))
            S.ext(o[22:])
        else:
            S.ext(o)
    stamp(S, 11)
    SA = PN
    def woread(n):
        hd, st = n // 2, n % 2; b = KV + 8 * (n % 4)
        for c in range(2):
            for u in range(2):
                S(f'ds_read_b64_tr_b16 {v(b+4*c+2*u,2)}, v{vVW2[c]} offset:{(32*hd + 16*st + 8*u)*128}')
    woread(0); woread(1)
    for n in range(8):
        hd, st = n // 2, n % 2; b = KV + 8 * (n % 4)
        for c in range(2):
            for tt2 in range(2):
                acc = SA + 16 * (2 * c + tt2); ob = PHI + 16 * (2 * hd + tt2) + 4 * st
                S(f'v_mfma_f32_32x32x16_bf16 {v(acc,16)}, {v(b+4*c,4)}, {v(ob,4)}, {"0" if n == 0 else v(acc,16)}')
                if c == 0 and tt2 == 0 and n + 2 < 8: woread(n + 2)
    stamp(S, 12)
    final_half(S, True, SA, XT)

def reducer(S):
    S(f'v_lshlrev_b32 v8, 7, v{vLANE}\ns_lshl_b32 s{sT0}, s{sTB}, 11\ns_add_u32 s{sT0}, s{sT0}, {WS_FP}')
    S(f's_lshl_b32 s{sU2}, s{sTB}, 16\ns_lshl_b32 s{sT2}, s{sW4}, 10\ns_add_u32 s{sU2}, s{sU2}, s{sT2}\ns_add_u32 s{sU2}, s{sU2}, {WS_KVP}')
    S(f's_lshl_b32 s{sU1}, s{sTB}, 1\ns_lshr_b32 s{sT1}, s{sW4}, 1\ns_add_u32 s{sU1}, s{sU1}, s{sT1}\ns_lshl_b32 s{sU1}, s{sU1}, 10\ns_and_b32 s{sT1}, s{sW4}, 1\ns_lshl_b32 s{sT1}, s{sT1}, 9\ns_add_u32 s{sU1}, s{sU1}, s{sT1}\ns_add_u32 s{sU1}, s{sU1}, {WS_KVF}')
    S(f's_lshl_b32 s{sU0}, s{sTB}, 7\ns_add_u32 s{sU0}, s{sU0}, {WS_FK}')
    if Opt.hint:
        o_ = newlab('ro')
        S(f's_waitcnt vmcnt(0)\ns_cmp_lg_u32 s{sW4}, 0\ns_cbranch_scc1 {o_}')
        poll(S, 8, sT0, 16, 9, Opt.rsleep)
        S(f'v_mov_b32 v9, 4\ns_mov_b64 exec, 15\nds_write_b32 v{vLC}, v9 offset:{128 + 16*CN_KV}\ns_mov_b64 exec, -1\n{o_}:')
        S.ext(cnt_read(CN_KV, vLP)); S.ext(cnt_check(CN_KV, vLP))
    stamp(S, 8)
    again, done = newlab('rd'), newlab('rd')
    S(f's_mov_b32 s{sBND}, 0\n{again}:')
    for rb in range(16):
        S(f's_add_u32 s{sT0}, s{sU2}, {rb*4096}')
        S(f'buffer_load_dwordx4 {v(32+4*rb,4)}, v{vL16}, {srd(SRD_WS)}, s{sT0} offen sc1')
    S(f'v_mov_b32 v8, 0\nv_mov_b32 v16, 0\nv_mov_b32 v17, 0\nv_mov_b32 v18, 0\nv_mov_b32 v19, 0')
    for rb in range(16):
        b = 32 + 4 * rb
        S(f'v_xor_b32 v9, s{sTAG}, v{b+1}\nv_xor_b32 v10, s{sTAG}, v{b+3}\nv_or3_b32 v8, v8, v9, v10')
        S(f'v_lshlrev_b32 v{b+1}, 16, v{b}\nv_and_b32 v{b}, 0xffff0000, v{b}\nv_lshlrev_b32 v{b+3}, 16, v{b+2}\nv_and_b32 v{b+2}, 0xffff0000, v{b+2}')
        S(f'v_add_f32 v16, v16, v{b+1}\nv_add_f32 v17, v17, v{b}\nv_add_f32 v18, v18, v{b+3}\nv_add_f32 v19, v19, v{b+2}')
    S(f'v_cmp_ne_u32 vcc, 0, v8\ns_add_u32 s{sBND}, s{sBND}, 1\ns_cbranch_vccz {done}\ns_sleep {Opt.rsleep}\ns_cmp_lt_u32 s{sBND}, 0x8000\ns_cbranch_scc1 {again}\n{done}:')
    if Opt.diag: S(f's_mul_i32 s{STAMP0+13}, s{sBND}, 100\ns_add_u32 s{STAMP0+13}, s{STAMP0+13}, s{STAMP0}')
    S(f'v_and_b32 v8, 31, v{vLANE}\nv_cmp_eq_u32 vcc, 29, v8')
    S(f's_cmp_eq_u32 s{sW4}, 3\ns_cselect_b32 s{sT3}, -1, 0\ns_mov_b32 s{sT2}, 0')
    stamp(S, 10)
    for i in range(4): S(f'v_cndmask_b32 v{16+i}, v{16+i}, 1.0, vcc')
    S('v_cvt_pk_bf16_f32 v16, v16, v17\nv_cvt_pk_bf16_f32 v17, v18, v19')
    S(f'v_cndmask_b32 v16, v16, 0, s[{sT2}:{sT3}]\nv_cndmask_b32 v17, v17, 0, s[{sT2}:{sT3}]')
    S(f'v_lshlrev_b32 v8, 3, v{vLANE}\nbuffer_store_dwordx2 v[16:17], v8, {srd(SRD_WS)}, s{sU1} offen sc1')
    S('s_waitcnt vmcnt(0)')
    l_ = newlab('rl')
    S(f's_mov_b64 exec, 1\nds_add_rtn_u32 v9, v{vLC}, v{vLONE} offset:{128 + 16*CN_PQ}\ns_waitcnt lgkmcnt(0)\ns_mov_b64 exec, -1\nv_readfirstlane_b32 s{sT0}, v9\ns_cmp_lg_u32 s{sT0}, 3\ns_cbranch_scc1 {l_}')
    flag_store(S, sU0, 24, 8, 12)
    S(f'{l_}:')
    stamp(S, 9)

Opt.kvstep = 14
def fin_after(prefix, body):
    mark = Ins('L_MARK__:')
    o = finalize(prefix + [mark] + body)
    return o[o.index(mark) + 1:]

def build():
    assert sT2 % 2 == 0 and sT3 == sT2 + 1
    parts = []
    P = Stream(); prologue(P)
    P(f's_cmp_ge_u32 s{sWAVE}, 4\ns_cbranch_scc1 L_lwave')
    parts.append(finalize(P.l))
    C = Stream(); c_common(C); C(f's_cmp_ge_u32 s{sROLE}, 8\ns_cbranch_scc1 L_cattn')
    S = Stream(); c_ffn(S); c_publish(S, False, True); S('s_branch L_aphase'); parts.append(finalize(C.l + S.l))
    S = Stream(); S('L_cspare:\ns_waitcnt vmcnt(0)'); c_publish(S, False, False); S('s_branch L_fin'); parts.append(finalize(S.l))
    S = Stream(); S('L_cattn:'); c_attn(S)
    S(f's_cmp_ge_u32 s{sI}, 12\ns_cbranch_scc1 L_cspare'); c_publish(S, False, True); parts.append(fin_after(C.l, S.l))
    S = Stream(); S('L_aphase:'); a_phase2(S); S('s_branch L_fin'); parts.append(finalize(S.l))
    S = Stream(); S('L_lwave:'); l_decode(S)
    S(f's_cmp_ge_u32 s{sROLE}, 8\ns_cbranch_scc1 L_lattn'); l_phase1(S, True, True); S('s_branch L_fphase'); parts.append(finalize(S.l))
    S = Stream(); S('L_lattn:'); S(f's_cmp_ge_u32 s{sI}, 12\ns_cbranch_scc1 L_lspare'); l_phase1(S, False, True); parts.append(finalize(S.l))
    S = Stream(); S('L_fphase:'); f_phase2(S); S('s_branch L_fin'); parts.append(finalize(S.l))
    S = Stream(); S('L_lspare:'); l_phase1(S, False, False); reducer(S); parts.append(finalize(S.l))
    S = Stream(); S('L_fin:'); diag_out(S); S('L_end:\ns_endpgm'); parts.append(finalize(S.l))
    hdr = open('recurrent_scan__linear_kernel_hedgehog__dense_activation_silu__prompt.s.ref').read().split('\n')
    top = [l for l in hdr[:13] if l.startswith(';') and '@launch' not in l and 'Override' not in l and 'grid=ceil' not in l]
    out = '\n'.join(top) + f'\n; @launch grid=(256,1,1) block=(512,1,1) lds={LDS_TOTAL}\n'
    out += f'.amdgcn_target "amdgcn-amd-amdhsa--gfx950"\n.text\n.globl {NAME}\n.p2align 8\n.type {NAME},@function\n{NAME}:\n'
    for p in parts:
        t = text(p)
        if Opt.nosc1 == 2: t = '\n'.join(l.replace(' sc1', ' nt sc1') if 'buffer_store_dwordx4' in l else l for l in t.split('\n'))
        if Opt.nosc1 == 3: t = '\n'.join(l.replace('offen', 'offen idxen').replace(', v2,', ', v[0:1],') if False else l for l in t.split('\n'))
        if Opt.nosc1 == 1: t = '\n'.join(l.replace(' sc1', '') if 'buffer_store_dwordx4' in l else l for l in t.split('\n'))
        out += t
    out += f'''.section .rodata,"a"
.p2align 6
.amdhsa_kernel {NAME}
  .amdhsa_next_free_vgpr 256
  .amdhsa_next_free_sgpr 102
  .amdhsa_accum_offset 256
  .amdhsa_group_segment_fixed_size 0
  .amdhsa_kernarg_size 80
  .amdhsa_user_sgpr_count 2
  .amdhsa_user_sgpr_kernarg_segment_ptr 1
  .amdhsa_system_sgpr_workgroup_id_x 1
.end_amdhsa_kernel
'''
    return out

if __name__ == '__main__':
    for a in sys.argv[2:]:
        k, _, val = a.partition('='); setattr(Opt, k, int(val) if val else True)
    open(sys.argv[1], 'w').write(build())
```

```python
import sys, struct
sys.path.insert(0, "dev")
from asmlib import *

NAME = "recurrent_scan__linear_kernel_hedgehog__dense_activation_silu__prompt_kernel"
K1 = 1024
import os
WS_H   = int(os.environ.get('WSOFF', '0')) << 20
WS_PQ  = WS_H + 64 * 112 * K1
WS_KVP = WS_PQ + 64 * 16 * 4096
WS_KVF = WS_KVP + 32 * 16 * 4096
WS_FH  = WS_KVF + 64 * K1
WS_FP  = WS_FH + 256 * 4096
WS_FK  = WS_FP + 32 * 2048
WS_TAG = WS_FK + 8 * 4096
WS_DIAG = WS_TAG + 4096
WS_SIZE = WS_DIAG + 256 * 8 * 64
SLOT = 28 * K1
SPARE = 140 * K1
WPHI_L = 156 * K1
CTL = 160 * K1 - 512
LDS_TOTAL = 160 * K1
F_REG = 24 * K1
A_BASE = 96 * K1
A_REG = 16 * K1
EV_XFREE, EV_C0, EV_C1, EV_C2, EV_C3, EV_PK, EV_END, EV_V = range(8)
CN_WO, CN_LT, CN_PH, CN_KV, CN_PQ, CN_K2, CN_W2 = 7, 8, 9, 10, 11, 13, 15
EV_X1, EV_X2, EV_PL = 24, 25, 26
sBND = 70
L2E = 1.4426950408889634
def f2u(x): return struct.unpack('<I', struct.pack('<f', x))[0]
def hx(x): return '0x%08x' % (x & 0xffffffff)

sWAVE, sXCD, sI, sRB, sROLE = 3, 4, 5, 6, 7
SRD_X, SRD_W, SRD_WS, SRD_W2, SRD_WO, SRD_OUT, SRD_DBG, SRD_WPHI = 8, 12, 16, 20, 24, 28, 32, 36
sTB, sCB, sIDX, sTAG, sPITCH = 40, 41, 42, 43, 44
sCOL = [45, 46, 47]
sCOLS = 48
sSEL_LO, sSEL_HI = 49, 63
sT0, sT1, sT2, sT3 = 50, 51, 52, 53
sHI = 54
sROT1, sROT2, sM70 = 41, 57, 56
sCNT, sW4, sFT, sFS, sL2E = 58, 59, 60, 61, 62
sU0, sU1, sU2, sU3, sU4, sU5 = 64, 65, 66, 67, 68, 69
sKA_QKV, sKA_W1 = 80, 82
STAMP0 = 84
def srd(b): return f's[{b}:{b+3}]'
def v(a, n=1): return f'v{a}' if n == 1 else f'v[{a}:{a+n-1}]'
HI = f's[{sHI}:{sHI+1}]'

class Opt:
    diag = False
    ncen = 18
    sleep = 8
    early = False
    rot = 1
    lprio = 1
    lsleep = 1
    nodma = 0
    nosc1 = 0
    nowo = 0
    wpf = 0
    xfirst = 3
    w2pf = 0
    gpf = 1
    mini = 0
    vsteps = 3
    hint = 1
    athr = 4
    rsleep = 3
    ackdiag = 0
    pk = 0
    pkq = 1
    trpace = 1
    aw2 = 10
    tr1 = 3
    tlb = 0
    s4hook = 1
    afirst = 0
    mixst = 0
    l2pf = 0
    gk0 = 10
    early_f = 0
    oprio = 1
    plwait = 0
    gk1 = 14
    agate = 3
    h5at = 44
    kprio = 1
    aprio = 0
    bthr = 20
    trfirst = 0
    thr = 40
    xpipe = 4
    fine = -1
    cpf = 1
    wopf = 1
    phi1 = 1
    fprio = 1
    dbgout = 0
    outsc = ''
    empty = 0
    xcc = 0
    fdiag = 0
    nophi = 0
    notr = 0
    cprio = 0
    predelay = 0
    ksleep = 6

def stamp(S, k):
    if not Opt.diag: return
    if Opt.mini and k not in (0, 15): return
    if Opt.fine >= 0:
        if k == 0: S('s_memtime s[100:101]\ns_waitcnt lgkmcnt(0)\ns_mov_b32 s71, s100')
        return
    if isinstance(k, str):
        if not Opt.early: return
        k = int(k[1:])
    elif Opt.early and 3 <= k < 15: return
    S(f'{"s_memtime" if Opt.diag == 2 else "s_memrealtime"} s[100:101]\ns_waitcnt lgkmcnt(0)\ns_mov_b32 s{STAMP0+k}, s100')

def diag_out(S):
    if not Opt.diag: return
    S('s_waitcnt vmcnt(0) lgkmcnt(0)')
    stamp(S, 15)
    if Opt.xcc: S(f's_getreg_b32 s{STAMP0+11}, hwreg(HW_REG_XCC_ID)\ns_getreg_b32 s{STAMP0+12}, hwreg(HW_REG_HW_ID)')
    if Opt.dbgout:
        lab = newlab('dg')
        S(f's_not_b32 s{STAMP0+14}, s{STAMP0}')
        if Opt.dbgout == 1: S(f's_cmp_ge_u32 s{sWAVE}, 4')
        else: S(f's_cmp_lt_u32 s{sWAVE}, 4')
        S(f's_cbranch_scc1 {lab}')
        S('v_mov_b32 v16, 0')
        for k in range(1, 16): S(f'v_writelane_b32 v16, s{STAMP0+k}, {k}')
        S(f'v_mbcnt_lo_u32_b32 v17, -1, 0\nv_lshlrev_b32 v17, 2, v17\ns_mov_b64 exec, 0xfffe')
        S(f'buffer_atomic_umax v16, v17, {srd(SRD_DBG)}, 0 offen sc1')
        S(f'{lab}:\ns_endpgm')
    if Opt.fine >= 0:
        S('v_mov_b32 v16, s71\nv_mov_b32 v31, s71')
        for k in range(14): S(f'v_mov_b32 v{17+k}, s{72+2*k}')
    else:
        for k in range(16): S(f'v_mov_b32 v{16+k}, s{STAMP0+k}')
    S(f's_lshl_b32 s{sT0}, s2, 3\ns_add_u32 s{sT0}, s{sT0}, s{sWAVE}\ns_lshl_b32 s{sT0}, s{sT0}, 6\ns_add_u32 s{sT0}, s{sT0}, {WS_DIAG}')
    S('v_mov_b32 v40, 0\ns_mov_b64 exec, 1')
    for k in range(4): S(f'buffer_store_dwordx4 v[{16+4*k}:{19+4*k}], v40, {srd(SRD_WS)}, s{sT0} offen offset:{16*k}')

def half_base(h): return ((h + 4) % 5) * SLOT

_lab = [0]
def newlab(p):
    _lab[0] += 1; return f'L_{p}{_lab[0]}'
def RAW(t):
    i = Ins(t); i.kind = 'salu'; i.rd = set(); i.wr = set(); return i
def raw(S, t):
    for l in t.split('\n'):
        S.l.append(Ins(l) if l.endswith(':') else RAW(l))

vCTL, vLANE, vL16 = 0, 1, 2
def mk_srd(S, items):
    for b, lo, size in items:
        S(f's_mov_b64 s[{b}:{b+1}], s[{lo}:{lo+1}]\ns_mov_b32 s{b+2}, {size}\ns_mov_b32 s{b+3}, 0x20000')
def prologue(S):
    S(f's_cmp_ge_u32 s2, {0 if Opt.empty else 256}\ns_cbranch_scc1 L_end')
    if Opt.diag:
        for k in range(16): S(f's_mov_b32 s{STAMP0+k}, 0')
        if Opt.fine >= 0: S('s_mov_b32 s84, 1\ns_mov_b32 s86, 1\ns_mov_b32 s88, 1\ns_mov_b32 s90, 1\ns_mov_b32 s92, 1\ns_mov_b32 s94, 1\ns_mov_b32 s96, 1\ns_mov_b32 s98, 1')
    stamp(S, 0)
    S('s_load_dwordx16 s[64:79], s[0:1], 0\ns_load_dwordx4 s[80:83], s[0:1], 64')
    S(f'v_lshrrev_b32 v3, 6, v0\nv_and_b32 v{vLANE}, 63, v0\nv_readfirstlane_b32 s{sWAVE}, v3\nv_lshlrev_b32 v{vL16}, 4, v{vLANE}')
    S(f's_and_b32 s{sXCD}, s2, 7\ns_lshr_b32 s{sI}, s2, 3\ns_and_b32 s{sT3}, s{sI}, 3\ns_lshr_b32 s{sT2}, s{sI}, 2\ns_xor_b32 s{sT2}, s{sT2}, 4')
    S(f's_lshr_b32 s{sRB}, s{sXCD}, 1\ns_lshl_b32 s{sRB}, s{sRB}, 2\ns_add_u32 s{sRB}, s{sRB}, s{sT3}')
    S(f's_lshl_b32 s{sCB}, s{sT3}, 1\ns_add_u32 s{sCB}, s{sCB}, s{sT2}\ns_sub_u32 s{sT0}, s{sCB}, 7\ns_cmp_ge_u32 s{sCB}, 7\ns_cselect_b32 s{sCB}, s{sT0}, s{sCB}')
    S(f's_and_b32 s{sW4}, s{sWAVE}, 3')
def decode2(S):
    S(f's_lshl_b32 s{sTB}, s{sXCD}, 2\ns_add_u32 s{sTB}, s{sTB}, s{sT3}')
    S(f's_and_b32 s{sIDX}, s{sXCD}, 1\ns_lshl_b32 s{sIDX}, s{sIDX}, 2\ns_and_b32 s{sT0}, s{sT2}, 3\ns_add_u32 s{sIDX}, s{sIDX}, s{sT0}')
    S(f's_and_b32 s{sT0}, s{sT2}, 4\ns_lshl_b32 s{sT0}, s{sT0}, 1\ns_add_u32 s{sROLE}, s{sIDX}, s{sT0}')
    S(f's_mul_i32 s{sROT2}, s{sT3}, 7\ns_lshl_b32 s{sT0}, s{sCB}, 2\ns_add_u32 s{sROT2}, s{sROT2}, s{sT0}\ns_sub_u32 s{sT0}, s{sROT2}, 28\ns_cmp_ge_u32 s{sROT2}, 28\ns_cselect_b32 s{sROT2}, s{sT0}, s{sROT2}')
    S(f's_lshl_b32 s{sT0}, s{sW4}, 2\ns_add_u32 s{sT0}, s{sT0}, {CTL}\nv_mov_b32 v{vCTL}, s{sT0}')
    S(f's_mov_b32 s{sHI}, 0\ns_mov_b32 s{sHI+1}, -1\ns_mov_b32 s{sL2E}, {hx(f2u(L2E))}\ns_movk_i32 s{sM70}, 0x70')
def l_decode(S):
    S(f'v_lshlrev_b32 v4, 3, v{vLANE}\nv_add_u32 v4, {CTL}, v4\nv_mov_b32 v6, 0\nv_mov_b32 v7, 0\nds_write_b64 v4, v[6:7]')
    decode2(S)
    S(f's_mul_i32 s{sT0}, s{sIDX}, 448\ns_and_b32 s{sT1}, s{sIDX}, 1\ns_lshl_b32 s{sT2}, s{sT1}, 6\ns_add_u32 s{sT2}, s{sT2}, s{sT0}')
    S(f's_mul_i32 s{sT1}, s{sT1}, 384\ns_sub_u32 s{sCOLS}, s{sT0}, s{sT1}\ns_add_u32 s{sCOLS}, s{sCOLS}, 384')
    S(f's_mul_i32 s{sT0}, s{sIDX}, 112')
    S(f's_add_u32 s{sT1}, s{sT0}, 896\ns_add_u32 s{sT3}, s{sT0}, 1792\ns_add_u32 s{sCOL[1]}, s{sT2}, 128\ns_add_u32 s{sCOL[2]}, s{sT2}, 256')
    S(f's_movk_i32 s{sPITCH}, 3584\ns_cmp_ge_u32 s{sROLE}, 8')
    S(f's_cselect_b32 s{sCOL[0]}, s{sT1}, s{sT2}\ns_cselect_b32 s{sPITCH}, 2688, s{sPITCH}')
    S(f's_cselect_b32 s{sCOL[1]}, s{sT3}, s{sCOL[1]}\ns_cselect_b32 s{sCOL[2]}, s{sT0}, s{sCOL[2]}')
    S(f's_mul_i32 s{SRD_W+2}, s{sPITCH}, 448\ns_mov_b32 s{SRD_W+3}, 0x20000')
    swz_voff(S, vLW, f's{sPITCH}', 8)
    S('s_waitcnt lgkmcnt(0)')
    S(f's_cmp_ge_u32 s{sROLE}, 8\ns_cselect_b64 s[{SRD_W}:{SRD_W+1}], s[66:67], s[74:75]')
    mk_srd(S, ((SRD_X, 64, 2048 * 896), (SRD_WS, 82, WS_SIZE), (SRD_W2, 76, 1792 * 896), (SRD_WO, 70, 448 * 896), (SRD_OUT, 78, 2048 * 896), (SRD_DBG, 80, 256), (SRD_WPHI, 68, 16 * 1568)))
    S(f's_mov_b64 s[{sKA_QKV}:{sKA_QKV+1}], s[66:67]\ns_mov_b64 s[{sKA_W1}:{sKA_W1+1}], s[74:75]')

TAGW = 320
def tag_fetch_l0(S):
    a, b = newlab('tf'), newlab('tf')
    S(f's_cmp_lg_u32 s{sW4}, 0\ns_cbranch_scc1 {b}')
    raw(S, f's_mov_b32 s{sBND}, 0\nv_mov_b32 v15, 0\n{a}:\nbuffer_load_dword v14, v15, {srd(SRD_DBG)}, 0 offen sc1\ns_waitcnt vmcnt(0)\nv_readfirstlane_b32 s{sTAG}, v14\ns_add_u32 s{sBND}, s{sBND}, 1\n'
           f's_max_u32 s{sCNT}, s{sBND}, 0x20000\ns_sub_u32 s{sCNT}, s{sCNT}, 0x20000\ns_or_b32 s{sTAG}, s{sTAG}, s{sCNT}\ns_cmp_eq_u32 s{sTAG}, 0\ns_cbranch_scc1 {a}\n'
           f'v_mov_b32 v14, s{sTAG}\ns_mov_b64 exec, 15\nds_write_b32 v{vLC}, v14 offset:{TAGW}\ns_mov_b64 exec, -1\ns_waitcnt lgkmcnt(0)\n{b}:')
def ltag_issue(S):
    S(f'v_mov_b32 v197, 0\nbuffer_load_dword v198, v197, {srd(SRD_DBG)}, 0 offen sc1')
def ltag_get(S):
    a, b = newlab('tf'), newlab('tf')
    S(f'v_readfirstlane_b32 s{sTAG}, v198\ns_cmp_lg_u32 s{sTAG}, 0\ns_cbranch_scc1 {b}')
    raw(S, f's_mov_b32 s{sBND}, 0\n{a}:\nbuffer_load_dword v198, v197, {srd(SRD_DBG)}, 0 offen sc1\ns_waitcnt vmcnt(0)\nv_readfirstlane_b32 s{sTAG}, v198\ns_add_u32 s{sBND}, s{sBND}, 1\n'
           f's_max_u32 s{sCNT}, s{sBND}, 0x20000\ns_sub_u32 s{sCNT}, s{sCNT}, 0x20000\ns_or_b32 s{sTAG}, s{sTAG}, s{sCNT}\ns_cmp_eq_u32 s{sTAG}, 0\ns_cbranch_scc1 {a}\n{b}:')
    S(f'v_mov_b32 v198, s{sTAG}\nds_write_b32 v{vCTL}, v198 offset:{TAGW}')
def tag_prefetch(S, vt):
    S(f'ds_read_b32 v{vt}, v{vCTL} offset:{TAGW}')
def tag_get(S, vt):
    a, b = newlab('tg'), newlab('tg')
    S(f'v_readfirstlane_b32 s{sTAG}, v{vt}')
    S(f's_cmp_lg_u32 s{sTAG}, 0\ns_cbranch_scc1 {b}')
    raw(S, f'{a}:\nds_read_b32 v{vt}, v{vCTL} offset:{TAGW}\ns_sleep 1\ns_waitcnt lgkmcnt(0)\nv_readfirstlane_b32 s{sTAG}, v{vt}\ns_nop 0\ns_cmp_eq_u32 s{sTAG}, 0\ns_cbranch_scc1 {a}\n{b}:')

def poll(S, voff, soff, nl, vt, sleep=None):
    a, b = newlab('pl'), newlab('pl')
    S(f's_mov_b64 exec, {hex((1 << nl) - 1)}\ns_mov_b32 s{sCNT}, 0')
    S(f'{a}:')
    S(f'buffer_load_dword v{vt}, v{voff}, {srd(SRD_WS)}, s{soff} offen sc1')
    S('s_waitcnt vmcnt(0)')
    S(f'v_cmp_ne_u32 vcc, s{sTAG}, v{vt}')
    S(f's_add_u32 s{sCNT}, s{sCNT}, 1\ns_cbranch_vccz {b}\ns_cmp_gt_u32 s{sCNT}, 0x20000\ns_cbranch_scc1 {b}\ns_sleep {sleep or Opt.sleep}\ns_branch {a}')
    S(f'{b}:')
    S('s_mov_b64 exec, -1')

def flag_store(S, soff, vt, n=1, shift=8):
    for i in range(4): S(f'v_mov_b32 v{vt+i}, s{sTAG}')
    S(f'v_lshrrev_b32 v{vt+4}, 3, v{vLANE}\nv_lshlrev_b32 v{vt+4}, {shift}, v{vt+4}\nv_and_or_b32 v{vt+4}, v{vL16}, s{sM70}, v{vt+4}')
    m = (1 << (8 * n)) - 1
    if n < 8: S(f's_mov_b32 exec_lo, {hex(m & 0xffffffff)}\ns_mov_b32 exec_hi, {hex(m >> 32)}')
    S(f'buffer_store_dwordx4 {v(vt,4)}, v{vt+4}, {srd(SRD_WS)}, s{soff} offen sc1')
    if n < 8: S('s_mov_b64 exec, -1')

def c_signal(ev):
    return [Ins(f'ds_write_b32 v{vCTL}, v{vCTL} offset:{16*ev}')]
def cnt_read(idx, vt):
    return [Ins(f'ds_read_b32 v{vt}, v{vCTL} offset:{128 + 16*idx}')]
def cnt_check(idx, vt, sleep=0):
    S = Stream(); a, b = newlab('ck'), newlab('ck')
    S(f'v_readfirstlane_b32 s{sCNT}, v{vt}\ns_cmp_ge_u32 s{sCNT}, 4\ns_cbranch_scc1 {b}')
    raw(S, f's_mov_b32 s{sBND}, 0\n{a}:\nds_read_b32 v{vt}, v{vCTL} offset:{128 + 16*idx}\ns_add_u32 s{sBND}, s{sBND}, 1\ns_cmp_gt_u32 s{sBND}, 0x40000\ns_cbranch_scc1 {b}\ns_sleep {sleep}\ns_waitcnt lgkmcnt(0)\nv_readfirstlane_b32 s{sCNT}, v{vt}\ns_nop 0\ns_cmp_lt_u32 s{sCNT}, 4\ns_cbranch_scc1 {a}\n{b}:')
    return S.l
def c_allflags(ev, vt, va):
    S = Stream(); a, b = newlab('cf'), newlab('cf')
    S(f'v_mov_b32 v{va}, {CTL}\nds_read_b128 v[{vt}:{vt+3}], v{va} offset:{16*ev}')
    S2 = Stream()
    S2(f'v_min3_u32 v{vt}, v{vt}, v{vt+1}, v{vt+2}\nv_min_u32 v{vt}, v{vt}, v{vt+3}\nv_readfirstlane_b32 s{sCNT}, v{vt}\ns_cmp_lg_u32 s{sCNT}, 0\ns_cbranch_scc1 {b}')
    raw(S2, f's_mov_b32 s{sBND}, 0\n{a}:\nds_read_b128 v[{vt}:{vt+3}], v{va} offset:{16*ev}\ns_add_u32 s{sBND}, s{sBND}, 1\ns_cmp_gt_u32 s{sBND}, 0x40000\ns_cbranch_scc1 {b}\ns_waitcnt lgkmcnt(0)\n'
            f'v_min3_u32 v{vt}, v{vt}, v{vt+1}, v{vt+2}\nv_min_u32 v{vt}, v{vt}, v{vt+3}\ns_nop 0\nv_readfirstlane_b32 s{sCNT}, v{vt}\ns_nop 0\ns_cmp_eq_u32 s{sCNT}, 0\ns_cbranch_scc1 {a}\n{b}:')
    return S.l, S2.l
vLC, vLONE, vLP = 11, 12, 188
def l_signal(S, idx):
    S(f's_mov_b64 exec, 15\nds_add_u32 v{vLC}, v{vLONE} offset:{128 + 16*idx}\ns_mov_b64 exec, -1')
def l_wait(S, ev, vLP=vLP):
    a, b = newlab('lw'), newlab('lw')
    S('s_waitcnt lgkmcnt(0)')
    raw(S, f's_mov_b32 s{sBND}, 0\n{a}:\nds_read_b128 v[{vLP}:{vLP+3}], v{vLP+4} offset:{16*ev}\ns_add_u32 s{sBND}, s{sBND}, 1\ns_cmp_gt_u32 s{sBND}, 0x40000\ns_cbranch_scc1 {b}\ns_sleep {Opt.lsleep}\ns_waitcnt lgkmcnt(0)\nv_min3_u32 v{vLP}, v{vLP}, v{vLP+1}, v{vLP+2}\nv_min_u32 v{vLP}, v{vLP}, v{vLP+3}\ns_nop 0\nv_readfirstlane_b32 s{sCNT}, v{vLP}\ns_nop 0\ns_cmp_eq_u32 s{sCNT}, 0\ns_cbranch_scc1 {a}\n{b}:\ns_waitcnt lgkmcnt(0)')

X0 = 16; ACC = [[128, 144], [160, 176]]; AF = 192; WPHI = 224; T = 240; U = 224; TT = 248; NR = 4
vVA = [3, 4]; vWA = [5, 6]; vVS = 7; vR, vRM, vNRL, vSD, vCT, vNM = 8, 9, 10, 11, 12, 13; vTAG = 14

def lane_consts_tr(S, dst, tmp, cstride, rowmap):
    t0, t1, t2 = tmp, tmp + 1, tmp + 2
    S(f'v_bfe_u32 v{t0}, v{vLANE}, 2, 2')
    S(f'v_lshrrev_b32 v{t1}, 5, v{vLANE}')
    S(f'v_lshlrev_b32 v{t1}, {10 if rowmap == "A" else 9}, v{t1}\nv_lshl_add_u32 v{t1}, v{t0}, 7, v{t1}')
    S(f'v_bfe_u32 v{t0}, v{vLANE}, 3, 1\nv_lshlrev_b32 v{t0}, 6, v{t0}')
    S(f'v_bfe_u32 v{t2}, v{vLANE}, 4, 1\nv_lshlrev_b32 v{t2}, 5, v{t2}\nv_and_b32 v{dst[0]}, 3, v{vLANE}\nv_lshl_add_u32 v{t2}, v{dst[0]}, 3, v{t2}')
    S(f'v_xor_b32 v{dst[0]}, v{t2}, v{t0}\nv_add_u32 v{dst[0]}, v{dst[0]}, v{t1}')
    S(f'v_add_u32 v{t2}, {cstride}, v{t2}\nv_xor_b32 v{dst[1]}, v{t2}, v{t0}\nv_add_u32 v{dst[1]}, v{dst[1]}, v{t1}')

def trb(St, dst, hfshift, pitch, tmp):
    St(f'v_lshrrev_b32 v{tmp}, 5, v{vLANE}\nv_lshlrev_b32 v{tmp}, {hfshift}, v{tmp}\nv_bfe_u32 v{dst}, v{vLANE}, 2, 2\nv_add_u32 v{tmp}, v{tmp}, v{dst}\nv_mul_u32_u24 v{dst}, {pitch}, v{tmp}')
    St(f'v_bfe_u32 v{tmp}, v{vLANE}, 4, 1\nv_lshl_add_u32 v{dst}, v{tmp}, 5, v{dst}\nv_and_b32 v{tmp}, 3, v{vLANE}\nv_lshl_add_u32 v{dst}, v{tmp}, 3, v{dst}')

def wrap_inc(S, reg, inc, lim):
    S(f's_add_u32 s{reg}, s{reg}, {inc}\ns_cmp_eq_u32 s{reg}, {lim}\ns_cselect_b32 s{reg}, 0, s{reg}')

def c_load_x(S):
    a, b = T, T + 1
    S(f'v_lshrrev_b32 v{T+2}, 3, v{vLANE}\nv_mul_u32_u24 v{a}, 896, v{T+2}')
    S(f'v_lshrrev_b32 v{T+2}, 4, v{vLANE}\nv_and_b32 v{T+3}, 7, v{vLANE}\nv_xor_b32 v{T+2}, v{T+2}, v{T+3}\nv_lshl_add_u32 v{a}, v{T+2}, 4, v{a}\nv_xor_b32 v{b}, 64, v{a}')
    S(f'v_add_u32 v{b}, {8*896}, v{b}\nv_add_u32 v{T+2}, {16*896}, v{a}\nv_add_u32 v{T+3}, {16*896}, v{b}')
    sXB, sXL, sXR, sXO = sFT, sFS, sCOL[0], sCOL[1]
    S(f's_lshl_b32 s{sXB}, s{sRB}, 2\ns_add_u32 s{sXB}, s{sXB}, s{sWAVE}\ns_mul_i32 s{sXB}, s{sXB}, {32*896}')
    S(f's_mul_i32 s{sXL}, s{sWAVE}, {SLOT}\ns_lshl_b32 s{sXR}, s{sROT1}, 7')
    S(f's_mov_b32 s{SRD_X+2}, {2048*896}\ns_mov_b32 s{SRD_X+3}, 0x20000')
    stamp(S, 'e3')
    S(f's_waitcnt lgkmcnt(0)\ns_mov_b64 s[{SRD_X}:{SRD_X+1}], s[64:65]')
    stamp(S, 'e4')
    def xdma(lc):
        S(f's_add_u32 s{sXO}, s{sXB}, s{sXR}')
        for g in range(4):
            S(f's_add_u32 m0, s{sXL}, {lc*4096 + g*1024}')
            if g == 0 and lc < 6: wrap_inc(S, sXR, 128, 896)
            S(f'buffer_load_dwordx4 v{T+g}, {srd(SRD_X)}, s{sXO} offen lds', tok=('x', lc))
    for lc in range(Opt.xpipe): xdma(lc)
    decode2(S)
    mk_srd(S, ((SRD_WS, 82, WS_SIZE), (SRD_OUT, 78, 2048 * 896), (SRD_WO, 70, 448 * 896)))
    if Opt.xpipe >= 7: S('s_barrier')
    sT1_ = sXL
    stamp(S, 'e5')
    xa = T + 4
    S(f'v_and_b32 v{TT}, 31, v{vLANE}\nv_bfe_u32 v{TT+1}, v{vLANE}, 1, 3\nv_lshrrev_b32 v{xa}, 5, v{vLANE}\nv_xor_b32 v{TT+1}, v{TT+1}, v{xa}')
    S(f'v_lshlrev_b32 v{TT+1}, 4, v{TT+1}\nv_lshl_add_u32 v{xa}, v{TT}, 7, v{TT+1}\nv_add_u32 v{xa}, s{sXL}, v{xa}')
    for q in range(1, 4): S(f'v_xor_b32 v{xa+q}, {q*32}, v{xa}')
    S(f's_mov_b32 s{sSEL_LO}, 0x00003f80\ns_mov_b32 s{sSEL_HI}, 0x3f800000')
    S(f's_cmp_ge_u32 s{sROLE}, 8\ns_cselect_b32 s{sT0}, 56, 64')
    lane_consts_tr(S, vVA, TT, f's{sT0}', 'A')
    sA, sB, qA, qB, one = U, U + 1, U + 2, U + 3, U + 4
    S(f'v_mov_b32 v{sA}, 0\nv_mov_b32 v{sB}, 0\nv_mov_b32 v{qA}, 0\nv_mov_b32 v{qB}, 0\nv_mov_b32 v{one}, 0x3f803f80')
    def stats(lc):
        for q in range(4):
            for j in range(4):
                r = X0 + (lc * 4 + q) * 4 + j
                S(f'v_dot2c_f32_bf16 v{sA + (j & 1)}, v{r}, v{one}\nv_dot2c_f32_bf16 v{qA + (j & 1)}, v{r}, v{r}')
    for lc in range(7):
        S.wait(('x', lc))
        if lc in (0, 3, 6): stamp(S, 'e%d' % (6 + lc // 3))
        for q in range(4):
            S(f'ds_read_b128 {v(X0 + (lc*4+q)*4, 4)}, v{xa+q} offset:{lc*4096}')
        if lc == 6: S.ext(c_signal(EV_XFREE))
        if lc + Opt.xpipe < 7: xdma(lc + Opt.xpipe)
        if lc + Opt.xpipe == 6: S('s_barrier')
        if lc > 0: stats(lc - 1)
    stamp(S, 1)
    stats(6)
    t = U + 5
    S(f'v_add_f32 v{sA}, v{sA}, v{sB}\nv_add_f32 v{qA}, v{qA}, v{qB}\nv_mov_b32 v{sB}, v{sA}\nv_mov_b32 v{qB}, v{qA}')
    S(f'v_permlane32_swap_b32 v{sA}, v{sB}\nv_permlane32_swap_b32 v{qA}, v{qB}')
    S(f'v_add_f32 v{sA}, v{sA}, v{sB}\nv_add_f32 v{qA}, v{qA}, v{qB}')
    inv = hx(f2u(1.0 / 448))
    S(f'v_mul_f32 v{sA}, {inv}, v{sA}\nv_mul_f32 v{qA}, {inv}, v{qA}')
    S(f'v_fma_f32 v{qA}, -v{sA}, v{sA}, v{qA}\nv_max_f32 v{qA}, 0, v{qA}')
    S(f'v_cvt_pk_bf16_f32 v{t}, v{sA}, v{qA}')
    S(f'v_lshlrev_b32 v{vNM}, 16, v{t}\nv_xor_b32 v{vNM}, 0x80000000, v{vNM}')
    R = Stream()
    R(f'v_and_b32 v{qA}, 0xffff0000, v{t}\nv_add_f32 v{qA}, {hx(f2u(1e-5))}, v{qA}')
    R(f'v_cvt_pk_bf16_f32 v{t}, v{qA}, v{qA}\nv_and_b32 v{qA}, 0xffff0000, v{t}\nv_sqrt_f32 v{qA}, v{qA}')
    R(f'v_nop\nv_cvt_pk_bf16_f32 v{t}, v{qA}, v{qA}\nv_and_b32 v{vSD}, 0xffff0000, v{t}\nv_rcp_f32 v{vR}, v{vSD}')
    R(f'v_nop\nv_mul_f32 v{vNRL}, {hx(f2u(-L2E))}, v{vR}\nv_cndmask_b32 v{vRM}, v{vR}, 0, {HI}')
    return R.l

def center(s):
    S = Stream()
    for j in range(4):
        r = X0 + s * 4 + j
        a, b = TT + 2 * j, TT + 2 * j + 1
        S(f'v_dot2_f32_bf16 v{a}, v{r}, s{sSEL_LO}, v{vNM}\nv_dot2_f32_bf16 v{b}, v{r}, s{sSEL_HI}, v{vNM}')
    for j in range(4):
        r = X0 + s * 4 + j
        S(f'v_cvt_pk_bf16_f32 v{r}, v{TT+2*j}, v{TT+2*j+1}')
    return S.l
def center5(s):
    S = Stream()
    for j in range(4):
        r = X0 + s * 4 + j
        a, b = TT + 2 * j, TT + 2 * j + 1
        S(f'v_lshlrev_b32 v{a}, 16, v{r}\nv_and_b32 v{b}, 0xffff0000, v{r}\nv_add_f32 v{a}, v{a}, v{vNM}\nv_add_f32 v{b}, v{b}, v{vNM}')
        S(f'v_cvt_pk_bf16_f32 v{r}, v{a}, v{b}')
    return S.l

def silu_tile(acc, u, soff, tok):
    S = Stream()
    for g in range(4):
        a = acc + 4 * g
        for i in range(4): S(f'v_mul_f32 v{TT+i}, v{a+i}, v{vNRL}')
        for i in range(4): S(f'v_exp_f32 v{TT+i}, v{TT+i}')
        for i in range(4): S(f'v_fma_f32 v{TT+i}, v{TT+i}, v{vSD}, v{vSD}')
        for i in range(4): S(f'v_rcp_f32 v{TT+i}, v{TT+i}')
        for i in range(4): S(f'v_mul_f32 v{TT+4+i}, v{a+i}, v{TT+i}')
        S(f'v_cvt_pk_bf16_f32 v{u+2*g}, v{TT+4}, v{TT+5}\nv_cvt_pk_bf16_f32 v{u+2*g+1}, v{TT+6}, v{TT+7}')
        if g % 2 == 1:
            S(f'buffer_store_dwordx4 {v(u + 4*(g//2), 4)}, v{vL16}, {srd(SRD_WS)}, s{soff[0]} offen offset:{soff[1] + 1024*(g//2)} sc1', tok=tok)
    return S.l

def part(f, s, lo, hi):
    n = len(f); k = hi - lo + 1
    return f[(s - lo) * n // k:(s - lo + 1) * n // k]

CN_H1B = 14
class Steps:
    def __init__(self, single):
        self.steps = []
        for st in range(3):
            for s in range(28):
                h = st * 2 + s // 14; sp = s % 14
                p = dict(st=st, s=s, nt=2, h=h, off=sp * 2048, first=(sp == 0), last=(sp == 13), base=half_base(h), cn=h)
                if h == 1:
                    if sp < 8: p.update(base=SPARE, h1a=(sp == 7))
                    else: p.update(base=0, off=(sp - 8) * 2048, first=(sp == 8), cn=CN_H1B)
                self.steps.append(p)
        if single:
            for s in range(28):
                self.steps.append(dict(st=3, s=s, nt=1, h=6, off=s * K1, first=(s == 0), last=False, cn=6))
    def reads(self, n):
        if n >= len(self.steps): return [], []
        p = self.steps[n]; S = Stream(); pre = Stream()
        ring = AF + (n % NR) * 8
        if p['first']:
            pre.ext(cnt_check(p['cn'], vCT))
            if p['nt'] == 2:
                b = p['base']
                pre(f'v_add_u32 v{vWA[0]}, {b}, v{vVA[0]}\nv_add_u32 v{vWA[1]}, {b}, v{vVA[1]}')
        if p['nt'] == 2:
            for c in range(2):
                for u in range(2):
                    S(f'ds_read_b64_tr_b16 {v(ring + 4*c + 2*u, 2)}, v{vWA[c]} offset:{p["off"] + 512*u}', tok=('a', n))
        else:
            for u in range(2):
                S(f'ds_read_b64_tr_b16 {v(ring + 2*u, 2)}, v{vVS} offset:{p["off"] + 256*u}', tok=('a', n))
        if p['last'] and p['h'] < 4: S.ext(c_signal(EV_C0 + p['h']))
        if n + 3 < len(self.steps) and self.steps[n + 3]['first']:
            S.ext(cnt_read(self.steps[n + 3]['cn'], vCT))
        return pre.l, S.l
    def mfmas(self, n):
        p = self.steps[n]; ring = AF + (n % NR) * 8; out = []
        for c in range(p['nt']):
            acc = ACC[p['st'] % 2][c]
            C = '0' if p['s'] == 0 else v(acc, 16)
            out.append(Ins(f'v_mfma_f32_32x32x16_bf16 {v(acc,16)}, {v(ring+4*c,4)}, {v(X0+4*p["s"],4)}, {C}'))
        return out
    def stage(self, st, fill=None, perstep=None, mid=None):
        idx = [n for n, p in enumerate(self.steps) if p['st'] == st]
        groups = []
        for n in idx:
            p = self.steps[n]
            rd = self.reads(n + NR - 1)[1]
            pre = self.reads(n + NR)[0]
            m = self.mfmas(n)
            g = []
            if Opt.fine == st and p['s'] % 2 == 0 and p['s'] < 26: g.append(RAW(f's_memtime s[{72+p["s"]}:{73+p["s"]}]'))
            if mid and p['s'] in mid: g += mid[p['s']]
            on = p['s'] > 0 or perstep
            w = Stream(); w.wait(('a', n + 1))
            k = 2 if pre else 5
            if p['nt'] == 2:
                g += [m[0]] + rd + ([None] * 2 if on else []) + [m[1]] + w.l + ([None] * k if on else []) + pre
            else:
                g += [m[0]] + rd + ([None] * 3 if on else [])
            if perstep: g = interleave([g], perstep(p['s']))
            if Opt.fine == st and p['s'] == 27: g.append(RAW('s_memtime s[98:99]'))
            groups.append(g)
        if perstep: return [x for g in groups for x in g]
        return interleave(groups, fill)

def c_common(S):
    if Opt.cprio: S('s_setprio 2')
    rest = c_load_x(S)
    S.ext(cnt_read(0, vCT))
    for s in range(Opt.ncen): S.ext(center(s))
    P = Steps(True)
    for n in range(NR - 1):
        pre, rd = P.reads(n); S.ext(pre); S.ext(rd)
    stamp(S, 2)
    f = []
    for s in range(Opt.ncen, 28): f += center5(s)
    S.ext(P.stage(0, perstep=lambda s: part(f, s, 0, 25) if s < 26 else (rest if s == 26 else [])))
    stamp(S, 3)

def c_ffn(S):
    P = Steps(True)
    e = Stream(); t = T
    trb(e, vVS, 3, 64, t)
    e(f's_lshl_b32 s{sT0}, s{sRB}, 2\ns_add_u32 s{sT0}, s{sT0}, s{sWAVE}\ns_mul_i32 s{sT0}, s{sT0}, {112*K1}\ns_add_u32 s{sT0}, s{sT0}, {WS_H}')
    e(f's_mul_i32 s{sT1}, s{sIDX}, 7\ns_and_b32 s{sT2}, s{sIDX}, 1\ns_add_u32 s{sT3}, s{sT1}, s{sT2}\ns_lshl_b32 s{sT3}, s{sT3}, 11\ns_add_u32 s{sFT}, s{sT0}, s{sT3}')
    e(f's_mul_i32 s{sT2}, s{sT2}, 6\ns_sub_u32 s{sT1}, s{sT1}, s{sT2}\ns_add_u32 s{sT1}, s{sT1}, 6\ns_lshl_b32 s{sT1}, s{sT1}, 11\ns_add_u32 s{sFS}, s{sT0}, s{sT1}')
    for st in (1, 2, 3):
        pa = ACC[(st - 1) % 2]
        fill = (e.l if st == 1 else []) + [Ins(f's_add_u32 s{sT0}, s{sFT}, {(st-1)*4096}')]
        fill += silu_tile(pa[0], T, (sT0, 0), 'st') + silu_tile(pa[1], U, (sT0, 2048), 'st')
        if st == 3:
            t = Stream(); tag_prefetch(t, vTAG); fill = fill + t.l
        S.ext(P.stage(st, fill))
        stamp(S, 3 + st)
    S.ext(silu_tile(ACC[1][0], T, (sFS, 0), 'st'))

def minmax(S, X, mx, mn, t0, t1):
    for op, d in (('v_max3_f32', mx), ('v_min3_f32', mn)):
        S(f'{op} v{d}, v{X}, v{X+1}, v{X+2}')
        for i in range(3, 15, 2): S(f'{op} v{d}, v{d}, v{X+i}, v{X+i+1}')
    S(f'v_max_f32 v{mx}, v{mx}, v{X+15}\nv_min_f32 v{mn}, v{mn}, v{X+15}')
    S(f'v_mov_b32 v{t0}, v{mx}\nv_mov_b32 v{t1}, v{mn}\nv_permlane32_swap_b32 v{mx}, v{t0}\nv_permlane32_swap_b32 v{mn}, v{t1}')
    S(f'v_max_f32 v{mx}, v{mx}, v{t0}\nv_min_f32 v{mn}, v{mn}, v{t1}')
    S(f'v_mul_f32 v{mx}, {hx(f2u(-L2E))}, v{mx}\nv_mul_f32 v{mn}, {hx(f2u(L2E))}, v{mn}')

LX, LE, LT = 144, 160, 176
vLPW, vLMK, vLL2E, vLRD, vLWP = 185, 184, 186, 187, 193
def softmax_body(S, X, E0, tmp, l2e, pw, off, hook0=None):
    for i in range(4): S(f'v_cndmask_b32 v{X+12+i}, v{X+12+i}, v{X+8+i}, {HI}')
    mx, mn, t0, t1 = tmp, tmp + 2, tmp + 1, tmp + 3
    minmax(S, X, mx, mn, t0, t1)
    for sign in range(2):
        E = E0 if sign == 0 else X
        s0, s1 = tmp + 4, tmp + 5
        for i in range(16):
            if sign == 0: S(f'v_fma_f32 v{E+i}, v{X+i}, {l2e}, v{mx}')
            else: S(f'v_fma_f32 v{E+i}, -v{X+i}, {l2e}, v{mn}')
        for i in range(16): S(f'v_exp_f32 v{E+i}, v{E+i}')
        S(f'v_add_f32 v{s1}, v{E+12}, v{E+13}\nv_add_f32 v{s0}, v{E}, v{E+1}\nv_add_f32 v{s1}, v{s1}, v{E+14}')
        S(f'v_add_f32 v{s0}, v{s0}, v{E+2}\nv_add_f32 v{s1}, v{s1}, v{E+15}\nv_add_f32 v{s0}, v{s0}, v{E+3}\nv_cndmask_b32 v{s1}, v{s1}, 0, {HI}')
        for i in range(4, 12): S(f'v_add_f32 v{s0 + (i & 1)}, v{s0 + (i & 1)}, v{E+i}')
        S(f'v_add_f32 v{s0}, v{s0}, v{s1}\nv_mov_b32 v{s1}, v{s0}\nv_permlane32_swap_b32 v{s0}, v{s1}\nv_add_f32 v{s0}, v{s0}, v{s1}\nv_rcp_f32 v{s0}, v{s0}')
        for i in range(16): S(f'v_mul_f32 v{E+i}, v{E+i}, v{s0}')
        for i in range(8): S(f'v_cvt_pk_bf16_f32 v{E+i}, v{E+2*i}, v{E+2*i+1}')
        for qd in range(3):
            S(f'ds_write_b64 v{pw}, {v(E+2*qd, 2)} offset:{off + sign*56 + qd*16}')
        g = Stream(); g(f's_mov_b64 exec, 0xffffffff\nds_write_b64 v{pw}, {v(E+6, 2)} offset:{off + sign*56 + 48}\ns_mov_b64 exec, -1')
        S.l.append(Group(g.l))
        if sign == 0 and hook0: S.ext(hook0)

def softmax_k(hook0):
    S = Stream()
    rw = LE
    S(f'ds_read_b128 {v(rw,4)}, v{vLRD}\nds_read_b128 {v(rw+4,4)}, v{vLRD} offset:1024')
    for st in range(2):
        for u in range(2):
            S(f'ds_read_b64_tr_b16 {v(rw + 8 + 4*st + 2*u, 2)}, v{vLWP} offset:{(16*st + 8*u)*56}')
    S(f'v_mfma_f32_32x32x16_bf16 {v(LX,16)}, {v(rw+8,4)}, {v(rw,4)}, 0')
    S(f'v_mfma_f32_32x32x16_bf16 {v(LX,16)}, {v(rw+12,4)}, {v(rw+4,4)}, {v(LX,16)}')
    softmax_body(S, LX, LE, LT, f'v{vLL2E}', vLPW, 0, hook0)
    return S.l

def scale_pack(acc, dst, masked=True):
    S = Stream()
    for i in range(16): S(f'v_mul_f32 v{acc+i}, v{acc+i}, v{vRM if (masked and i >= 12) else vR}')
    for i in range(8): S(f'v_cvt_pk_bf16_f32 v{dst+i}, v{acc+2*i}, v{acc+2*i+1}')
    return S.l

def phi_mfma(acc, c, b):
    return [Ins(f'v_mfma_f32_32x32x16_bf16 {v(acc,16)}, {v(WPHI+8*c,4)}, {v(b,4)}, 0'),
            Ins(f'v_mfma_f32_32x32x16_bf16 {v(acc,16)}, {v(WPHI+8*c+4,4)}, {v(b+4,4)}, {v(acc,16)}')]

def c_attn(S):
    vHO, vVW, vWP = vVS, vNRL, vSD
    P = Steps(False)
    e = Stream(); t = TT
    trb(e, vWP, 2, 56, t)
    e(f'v_add_u32 v{vWP}, {WPHI_L}, v{vWP}')
    for c in range(2):
        for st in range(2):
            for u in range(2):
                e(f'ds_read_b64_tr_b16 {v(WPHI + 8*c + 4*st + 2*u, 2)}, v{vWP} offset:{c*1568 + (16*st + 8*u)*56}')
    ka = ACC[0]
    vPW = vNM
    h0 = Stream()
    h0(f's_lshl_b32 s{sT0}, s{sWAVE}, 12\ns_add_u32 s{sT0}, s{sT0}, {SPARE}\nv_add_u32 v{vHO}, s{sT0}, v{vL16}')
    h0.ext(scale_pack(ka[0], T))
    h0(f'ds_write_b128 v{vHO}, {v(T,4)}\nds_write_b128 v{vHO}, {v(T+4,4)} offset:1024')
    f1 = h0.l + c_signal(EV_PK)
    f1b = e.l + scale_pack(ka[1], T)
    sm = Stream(); softmax_body(sm, ka[1], ka[0], TT, f's{sL2E}', vPW, 14336)
    t = Stream()
    t(f'v_and_b32 v{TT+3}, 31, v{vLANE}\ns_lshl_b32 s{sT0}, s{sWAVE}, 5\nv_add_u32 v{TT+3}, s{sT0}, v{TT+3}\nv_lshrrev_b32 v{TT+4}, 5, v{vLANE}\nv_lshlrev_b32 v{TT+4}, 3, v{TT+4}')
    t(f'v_mul_u32_u24 v{vVW}, 72, v{TT+3}\nv_add_u32 v{vVW}, v{vVW}, v{TT+4}\nv_add_u32 v{vVW}, {SLOT}, v{vVW}')
    t(f'v_mul_u32_u24 v{vPW}, 112, v{TT+3}\nv_add_u32 v{vPW}, v{vPW}, v{TT+4}')
    f3 = t.l
    g1, g2 = c_allflags(EV_C2, T, T + 4)
    k1, k2 = c_allflags(EV_C1, TT, TT + 4)
    f1 = k1 + f1
    assert all(not x.op.startswith('ds_write') for x in part(f1, 1, 1, 4) + part(f1, 2, 1, 4))
    f2 = f1b + f3
    def ps1(s):
        if 1 <= s <= 4: return part(f1, s, 1, 4)
        if 5 <= s <= 9: return part(f2, s, 5, 9)
        if 11 <= s <= 27: return part(sm.l, s, 11, 27) + (g1 if s == 24 else [])
        return []
    S.ext(P.stage(1, perstep=ps1, mid={3: k2, 10: phi_mfma(ka[1], 1, T), 27: g2}))
    stamp(S, 4)
    va = ACC[1]
    t = Stream()
    for c in range(2):
        t.ext(scale_pack(va[c], T, masked=False))
        d = T
        t(f'v_cndmask_b32 v{d+6}, v{d+6}, v{TT}, {HI}\nv_cndmask_b32 v{d+7}, v{d+7}, 0, {HI}')
        for qd in range(4): t(f'ds_write_b64 v{vVW}, {v(d+2*qd, 2)} offset:{c*9216 + qd*16}')
    vfill = [Ins(f'v_mov_b32 v{TT}, 0x3f80')] + t.l + c_signal(EV_V)
    tp = Stream(); tag_prefetch(tp, vTAG)
    def ps2(s):
        if 1 <= s <= Opt.vsteps: return part(vfill, s, 1, Opt.vsteps)
        if s == 20: return tp.l
        return []
    S.ext(P.stage(2, perstep=ps2))
    stamp(S, 5)
    S.ext(c_signal(EV_END))
    qa = ACC[0]
    S(f'v_mov_b32 v{TT}, s{sL2E}')
    S.ext(scale_pack(qa[0], T)); S.ext(phi_mfma(qa[0], 0, T)); S.ext(scale_pack(qa[1], AF + 16)); S.ext(phi_mfma(qa[1], 1, AF + 16))
    for c in range(2):
        X = qa[c]; E = va[c]; d = AF + 16 * c
        for i in range(4): S(f'v_cndmask_b32 v{X+12+i}, v{X+12+i}, v{X+8+i}, {HI}')
        mx, mn = TT + 4, TT + 6
        minmax(S, X, mx, mn, TT + 5, TT + 7)
        for i in range(0, 16, 2): S(f'v_pk_fma_f32 {v(E+i,2)}, {v(X+i,2)}, {v(TT,2)}, {v(mx,2)} op_sel_hi:[1,0,0]')
        for i in range(16): S(f'v_exp_f32 v{E+i}, v{E+i}')
        for i in range(8): S(f'v_cvt_pk_bf16_f32 v{d+i}, v{E+2*i}, v{E+2*i+1}')
        for i in range(0, 16, 2): S(f'v_pk_fma_f32 {v(X+i,2)}, {v(X+i,2)}, {v(TT,2)}, {v(mn,2)} op_sel_hi:[1,0,0] neg_lo:[1,0,0] neg_hi:[1,0,0]')
        for i in range(16): S(f'v_exp_f32 v{X+i}, v{X+i}')
        for i in range(8): S(f'v_cvt_pk_bf16_f32 v{d+8+i}, v{X+2*i}, v{X+2*i+1}')
    stamp(S, 6)
    if Opt.oprio: S('s_setprio 2')
    tag_get(S, vTAG)
    S(f's_lshl_b32 s{sT1}, s{sIDX}, 2\ns_add_u32 s{sT1}, s{sT1}, s{sWAVE}\ns_lshl_b32 s{sT0}, s{sT1}, 11\ns_add_u32 s{sT0}, s{sT0}, {WS_FP}\ns_lshl_b32 s{sT1}, s{sT1}, 15\ns_add_u32 s{sT1}, s{sT1}, {WS_KVP}')
    S(f'v_lshlrev_b32 v8, 7, v{vLANE}')
    S.ext(cnt_read(CN_K2, vCT)); S.ext(cnt_check(CN_K2, vCT, 1))
    poll(S, 8, sT0, 16, 9, Opt.rsleep)
    stamp(S, 8)
    PB, SM, KF = 16, 144, 160
    S(f's_lshl_b32 s{sT2}, s{sRB}, 13\ns_and_b32 s{sT2}, s{sT2}, 0x7fff')
    for rb in range(16):
        if rb % 2 == 0:
            S(f's_add_u32 s{sT0}, s{sT1}, s{sT2}\ns_add_u32 s{sT2}, s{sT2}, 4096\ns_and_b32 s{sT2}, s{sT2}, 0x7fff')
        for hh in range(2):
            S(f'buffer_load_dwordx4 {v(PB+8*rb+4*hh,4)}, v{vL16}, {srd(SRD_WS)}, s{sT0} offen offset:{(rb%2)*2048 + hh*1024} sc1')
    S.ext(c_signal(EV_PL))
    for i in range(16): S(f'v_mov_b32 v{SM+i}, 0')
    e1, e2 = c_allflags(EV_END, T, T + 4)
    S.ext(e1)
    S(f's_mul_i32 s{sT0}, s{sWAVE}, {F_REG}\ns_add_u32 s{sT0}, s{sT0}, {F_REG - 2048}\nv_add_u32 v9, s{sT0}, v{vL16}\nv_add_u32 v10, {F_REG - 2048}, v{vL16}\nv_add_u32 v11, {3*F_REG - 2048}, v{vL16}')
    S(f'v_and_b32 v8, 31, v{vLANE}\nv_cmp_eq_u32 vcc, 29, v8')
    S(f's_lshl_b32 s{sFS}, s{sRB}, 2\ns_add_u32 s{sFS}, s{sFS}, s{sWAVE}\ns_lshl_b32 s{sFS}, s{sFS}, 3\ns_add_u32 s{sFS}, s{sFS}, s{sIDX}\ns_lshl_b32 s{sFS}, s{sFS}, 12\ns_add_u32 s{sFS}, s{sFS}, {WS_PQ}')
    S.ext(e2)
    for rb in range(16):
        for i in range(8):
            S(f'v_dot2c_f32_bf16 v{SM+2*i}, s{sSEL_LO}, v{PB+8*rb+i}\nv_dot2c_f32_bf16 v{SM+2*i+1}, s{sSEL_HI}, v{PB+8*rb+i}')
    stamp(S, 9)
    for i in range(16): S(f'v_cndmask_b32 v{SM+i}, v{SM+i}, 1.0, vcc')
    for i in range(8): S(f'v_cvt_pk_bf16_f32 v{T+i}, v{SM+2*i}, v{SM+2*i+1}')
    S(f'v_cndmask_b32 v{T+6}, v{T+6}, 0, {HI}\nv_cndmask_b32 v{T+7}, v{T+7}, 0, {HI}')
    S(f'ds_write_b128 v9, {v(T,4)}\nds_write_b128 v9, {v(T+4,4)} offset:1024')
    S.ext(c_signal(EV_X1))
    x1, x2 = c_allflags(EV_X1, TT, TT + 4)
    S.ext(x1); S.ext(x2)
    for j in range(8): S(f'ds_read_b128 {v(KF+4*j,4)}, v{10 + j//4} offset:{((j//2)%2)*F_REG + (j%2)*1024}')
    S.ext(c_signal(EV_X2))
    for c in range(2):
        S.ext(num_mfma(PB + 32 * c, KF + 16 * c, AF + 16 * c))
    for c in range(2):
        S.ext(onorm(PB + 32 * c, AF + 16 * c))
        for hh in range(2):
            S(f'buffer_store_dwordx4 {v(AF+16*c+4*hh,4)}, v{vL16}, {srd(SRD_WS)}, s{sFS} offen offset:{c*2048 + hh*1024} sc1', tok='st')
    stamp(S, 10)

def num_mfma(aP, kb, ph):
    aN = aP + 16
    return [Ins(f'v_mfma_f32_32x32x16_bf16 {v(aP,16)}, {v(kb,4)}, {v(ph,4)}, 0'),
            Ins(f'v_mfma_f32_32x32x16_bf16 {v(aN,16)}, {v(kb+8,4)}, {v(ph+8,4)}, 0'),
            Ins(f'v_mfma_f32_32x32x16_bf16 {v(aP,16)}, {v(kb+4,4)}, {v(ph+4,4)}, {v(aP,16)}'),
            Ins(f'v_mfma_f32_32x32x16_bf16 {v(aN,16)}, {v(kb+12,4)}, {v(ph+12,4)}, {v(aN,16)}')]
def onorm(aP, ph):
    S = Stream()
    aN = aP + 16
    rP, rN, dn, a, b = TT, TT + 1, TT + 2, TT + 3, TT + 4
    S(f'v_rcp_f32 v{rP}, v{aP+13}\nv_rcp_f32 v{rN}, v{aN+13}')
    S(f'v_mov_b32 v{dn}, {hx(f2u(1e-6))}\nv_fmac_f32 v{dn}, v{aP+12}, v{rP}\nv_fmac_f32 v{dn}, v{aN+12}, v{rN}\nv_rcp_f32 v{dn}, v{dn}')
    S(f'v_mul_f32 v{rP}, v{rP}, v{dn}\nv_mul_f32 v{rN}, v{rN}, v{dn}\nv_mov_b32 v{a}, v{rP}\nv_mov_b32 v{b}, v{rN}')
    S(f'v_permlane32_swap_b32 v{rP}, v{a}\nv_permlane32_swap_b32 v{rN}, v{b}')
    for i in range(16): S(f'v_mul_f32 v{aP+i}, v{aP+i}, v{a}')
    for i in range(16): S(f'v_fmac_f32 v{aP+i}, v{aN+i}, v{b}')
    for i in range(8): S(f'v_cvt_pk_bf16_f32 v{ph+i}, v{aP+2*i}, v{aP+2*i+1}')
    S(f'v_cndmask_b32 v{ph+6}, v{ph+6}, 0, {HI}\nv_cndmask_b32 v{ph+7}, v{ph+7}, 0, {HI}')
    return S.l

def wo_dma(S, va, vb, thr=None):
    S(f's_lshl_b32 s{sT2}, s{sW4}, 14\ns_add_u32 s{sT2}, s{sT2}, {A_BASE}\ns_lshl_b32 s{sU0}, s{sCB}, 7')
    for hd in range(4):
        S(f's_add_u32 s{sT0}, s{sCB}, {hd}\ns_and_b32 s{sT0}, s{sT0}, 3\ns_lshl_b32 s{sT1}, s{sW4}, 2\ns_add_u32 s{sT0}, s{sT0}, s{sT1}\ns_mul_i32 s{sT0}, s{sT0}, {28*896}\ns_add_u32 s{sT0}, s{sT0}, s{sU0}')
        for i in range(4):
            S(f's_add_u32 m0, s{sT2}, {hd*4096 + i*1024}')
            if thr: S(f's_waitcnt vmcnt({thr})')
            if i == 2: S(f's_add_u32 s{sT0}, s{sT0}, {16*896}')
            if hd == 3 and i == 3: S(f's_cmp_eq_u32 s{sW4}, 3\ns_cselect_b32 exec_hi, 0, -1')
            S(f'buffer_load_dwordx4 v{va if i % 2 == 0 else vb}, {srd(SRD_WO)}, s{sT0} offen lds', tok='wo')
    S('s_mov_b64 exec, -1')

PHI = 16; PN = 144; KV = 208; XT = 240
vO = 3; vVW2 = [6, 7]
def out_addr(S, xt, off):
    S(f'v_and_b32 v8, 31, v{vLANE}\nv_mul_u32_u24 v{vO}, 896, v8\nv_lshrrev_b32 v8, 5, v{vLANE}\nv_lshl_add_u32 v{vO}, v8, 4, v{vO}')
    S(f's_and_b32 s{sT0}, s{sW4}, 1\ns_lshl_b32 s{sT1}, s{sTB}, 1\ns_add_u32 s{sT0}, s{sT0}, s{sT1}\ns_mul_i32 s{sFT}, s{sT0}, {32*896}')
    S(f's_lshr_b32 s{sT0}, s{sW4}, 1\ns_lshl_b32 s{sT0}, s{sT0}, 6\ns_add_u32 s{sFT}, s{sFT}, s{sT0}\ns_lshl_b32 s{sT0}, s{sCB}, 7\ns_add_u32 s{sFT}, s{sFT}, s{sT0}')
    S(f'buffer_load_dwordx4 {v(xt,4)}, v{vO}, {srd(SRD_X)}, s{sFT} offen offset:{off}')

def final_half(S, isA, acc, xt):
    own = acc + 48 + (8 if isA else 0)
    oth = acc + 48 + (0 if isA else 8)
    reg = A_REG if isA else F_REG; base = A_BASE if isA else 0
    ho = 2048 if isA else 0
    W = [16, 17, 18, 19]
    S(f's_mul_i32 s{sT3}, s{sW4}, {reg}')
    for vq in range(4):
        S(f's_xor_b32 s{sT0}, s{sW4}, {vq ^ 3}\ns_lshl_b32 s{sT0}, s{sT0}, 12\ns_add_u32 s{sT0}, s{sT0}, s{sT3}\ns_add_u32 s{sT0}, s{sT0}, {base}\nv_add_u32 v{W[vq]}, s{sT0}, v{vL16}')
    for i in range(2):
        S(f'ds_write_b128 v{W[3]}, {v(oth+4*i,4)} offset:{(2048 - ho) + i*1024}')
    for vq in range(3):
        for i in range(4):
            S(f'ds_write_b128 v{W[vq]}, {v(acc+16*vq+4*i,4)} offset:{i*1024}')
    S(f's_lshl_b32 s{sT2}, s{sW4}, 12\ns_add_u32 s{sT2}, s{sT2}, {ho}')
    for k in range(1, 4):
        S(f's_xor_b32 s{sT0}, s{sW4}, {k}\ns_mul_i32 s{sT0}, s{sT0}, {reg}\ns_add_u32 s{sT0}, s{sT0}, s{sT2}\ns_add_u32 s{sT0}, s{sT0}, {base}\nv_add_u32 v{19+k}, s{sT0}, v{vL16}')
    oreg = F_REG if isA else A_REG; obase = 0 if isA else A_BASE
    S(f's_add_u32 s{sT0}, s{sT2}, {obase}\nv_add_u32 v23, s{sT0}, v{vL16}\nv_add_u32 v24, {2*oreg}, v23')
    S(f'v_permlane32_swap_b32 v{xt}, v{xt+2}\nv_permlane32_swap_b32 v{xt+1}, v{xt+3}')
    E = 96
    for i in range(4): S(f'v_lshlrev_b32 v{E+2*i}, 16, v{xt+i}\nv_and_b32 v{E+2*i+1}, 0xffff0000, v{xt+i}')
    S('s_waitcnt lgkmcnt(0)\ns_barrier')
    stamp(S, 13 if isA else 14)
    O, P_ = 32, 64
    rdO = [f'ds_read_b128 {v(O+8*f+4*i,4)}, v{23 + f//2} offset:{(f%2)*oreg + i*1024}' for f in range(4) for i in range(2)]
    rdP = [f'ds_read_b128 {v(P_+8*k+4*i,4)}, v{20+k} offset:{i*1024}' for k in range(3) for i in range(2)]
    for r in (rdO + rdP if isA else rdP + rdO): S(r)
    def sumO():
        for i in range(8): S(f'v_add_f32 v{O+i}, v{O+i}, v{O+8+i}')
        for i in range(8): S(f'v_add_f32 v{O+16+i}, v{O+16+i}, v{O+24+i}')
        for i in range(8): S(f'v_add_f32 v{O+i}, v{O+i}, v{O+16+i}')
    def sumP():
        for i in range(8): S(f'v_add_f32 v{P_+i}, v{P_+i}, v{own+i}')
        for i in range(8): S(f'v_add_f32 v{P_+8+i}, v{P_+8+i}, v{P_+16+i}')
        for i in range(8): S(f'v_add_f32 v{P_+i}, v{P_+i}, v{P_+8+i}')
    G, Sg = (O, P_) if isA else (P_, O)
    (sumO if isA else sumP)()
    Q = 104
    for i in range(8): S(f'v_mul_f32 v{Q+i}, {hx(f2u(-L2E))}, v{G+i}')
    for i in range(8): S(f'v_exp_f32 v{Q+i}, v{Q+i}')
    (sumP if isA else sumO)()
    for i in range(8): S(f'v_add_f32 v{Q+i}, 1.0, v{Q+i}')
    for i in range(8): S(f'v_rcp_f32 v{Q+i}, v{Q+i}')
    for i in range(8): S(f'v_mul_f32 v{G+i}, v{G+i}, v{Sg+i}')
    for i in range(8): S(f'v_fmac_f32 v{E+i}, v{G+i}, v{Q+i}')
    for i in range(4): S(f'v_cvt_pk_bf16_f32 v{xt+i}, v{E+2*i}, v{E+2*i+1}')
    S(f'v_permlane32_swap_b32 v{xt}, v{xt+2}\nv_permlane32_swap_b32 v{xt+1}, v{xt+3}')
    S(f'buffer_store_dwordx4 {v(xt,4)}, v{vO}, {srd(SRD_OUT)}, s{sFT} offen offset:{32 if isA else 0}')

def c_publish(S, attn, tile):
    if tile and not attn: S.ext(c_signal(EV_END))
    S(f's_lshl_b32 s{sFS}, s{sRB}, 1\ns_lshr_b32 s{sT1}, s{sW4}, 1\ns_add_u32 s{sFS}, s{sFS}, s{sT1}\ns_lshl_b32 s{sFS}, s{sFS}, 15\ns_lshl_b32 s{sT1}, s{sROLE}, 8\ns_add_u32 s{sFS}, s{sFS}, s{sT1}')
    S(f's_and_b32 s{sT1}, s{sW4}, 1\ns_lshl_b32 s{sT1}, s{sT1}, 7\ns_add_u32 s{sFS}, s{sFS}, s{sT1}\ns_add_u32 s{sFS}, s{sFS}, {WS_FH}')
    if tile:
        lane_consts_tr(S, vVW2, 8, 64, 'B')
        S(f's_mul_i32 s{sT3}, s{sW4}, {A_REG}\ns_add_u32 s{sT3}, s{sT3}, {A_BASE}')
        S(f's_xor_b32 s{sT0}, s{sW4}, 3\ns_lshr_b32 s{sT1}, s{sT0}, 1\ns_lshl_b32 s{sT1}, s{sT1}, 6\ns_and_b32 s{sT2}, s{sT0}, 1\ns_lshl_b32 s{sT2}, s{sT2}, 15')
        S(f'v_add_u32 v{vVW2[0]}, s{sT3}, v{vVW2[0]}\nv_xor_b32 v{vVW2[0]}, s{sT1}, v{vVW2[0]}\nv_xor_b32 v{vVW2[1]}, 64, v{vVW2[0]}')
        S(f'v_add_u32 v10, s{sT2}, v{vL16}\nv_xor_b32 v11, 0x8000, v10')
    if not attn: tag_get(S, vTAG)
    S.wait('st')
    flag_store(S, sFS, TT, 7, 12)
    if attn and Opt.oprio: S('s_setprio 0')
    stamp(S, 7)
    if tile:
        out_addr(S, XT, 32)

W2R = 16; FACC = 144; HR = 208
vLW, vLS, vL2 = 3, 4, 5
def swz_voff(S, dst, pitch, tmp):
    S(f'v_lshrrev_b32 v{tmp}, 3, v{vLANE}')
    S(f'v_mul_lo_u32 v{dst}, v{tmp}, {pitch}' if isinstance(pitch, str) else f'v_mul_u32_u24 v{dst}, {pitch}, v{tmp}')
    S(f'v_bfe_u32 v{tmp}, v{vLANE}, 4, 1\nv_lshlrev_b32 v{tmp}, 2, v{tmp}\nv_and_b32 v{tmp+1}, 7, v{vLANE}\nv_xor_b32 v{tmp}, v{tmp}, v{tmp+1}\nv_lshl_add_u32 v{dst}, v{tmp}, 4, v{dst}')
def flat(l): return [x for y in l for x in y]
def sprinkle(main, units, start=0):
    out = []; n = len(main) - start; k = len(units); j = 0
    for i, x in enumerate(main):
        while j < k and i >= start and (j + 0.5) * n / max(k, 1) <= i - start and x.kind in ('valu', 'trans'):
            out += units[j]; j += 1
        out.append(x)
    return out + flat(units[j:])

def l_phase1(S, ffn, tile):
    sBLK, sP64, sP448, sP32, sW2, sK2 = sU0, sU1, sU2, sU3, sU4, sU5
    S(f's_mul_i32 s{sFS}, s{sW4}, s{sPITCH}\ns_lshl_b32 s{sFS}, s{sFS}, 3')
    S(f's_lshl_b32 s{sT3}, s{sW4}, 10\ns_lshl_b32 s{sP64}, s{sPITCH}, 6\ns_lshl_b32 s{sP32}, s{sPITCH}, 5\ns_mul_i32 s{sP448}, s{sPITCH}, 448\ns_mul_i32 s{sBLK}, s{sP64}, s{sROT1}')
    def dma_half(h):
        units = []
        st = h // 2
        for k in range(7):
            St = Stream()
            kk = (h % 2) * 7 + k
            St(f's_add_u32 m0, s{sT3}, {(half_base(h) + k*4096) if h != 1 else (SPARE + k*4096 if k < 4 else (k - 4)*4096)}')
            if kk % 2 == 0:
                St(f's_add_u32 s{sT0}, s{sBLK}, s{sFS}\ns_add_u32 s{sT0}, s{sT0}, s{sCOL[st]}')
            else:
                if k == 0: St(f's_add_u32 s{sT0}, s{sBLK}, s{sFS}\ns_add_u32 s{sT0}, s{sT0}, s{sCOL[st]}')
                St(f's_add_u32 s{sT0}, s{sT0}, s{sP32}')
                wrap_inc(St, sBLK, f's{sP64}', f's{sP448}')
            St(f'buffer_load_dwordx4 v{vLW}, {srd(SRD_W)}, s{sT0} offen lds', tok=('h', h if not (h == 1 and k >= 4) else CN_H1B))
            units.append(St.l)
        return units
    def sig(h):
        S.wait(('h', h))
        if h < 5: stamp(S, 2 + h)
        l_signal(S, h)
    if Opt.cpf:
        lab = newlab('pc')
        S(f's_getpc_b64 s[72:73]\n{lab}:\ns_sub_u32 s72, s72, {lab} - {NAME}\ns_subb_u32 s73, s73, 0')
        S(f's_lshl_b32 s{sT0}, s{sI}, 2\ns_add_u32 s{sT0}, s{sT0}, s{sW4}\ns_lshl_b32 s{sT0}, s{sT0}, 2\nv_add_u32 v8, s{sT0}, v{vLANE}\nv_lshlrev_b32 v8, 7, v8\nv_min_u32 v8, L_end - {NAME}, v8')
        S(f's_mov_b64 exec, 15\nglobal_load_dword v200, v8, s[72:73]\ns_mov_b64 exec, -1')
    S('s_barrier')
    S.ext(flat(dma_half(0)))
    if not ffn:
        S(f's_add_u32 m0, s{sT3}, {WPHI_L}\ns_mul_i32 s{sT0}, s{sIDX}, 3136\ns_add_u32 s{sT0}, s{sT0}, s{sT3}\ns_cmp_eq_u32 s{sW4}, 3\ns_cselect_b32 exec_hi, 0, -1')
        S(f'buffer_load_dwordx4 v{vL16}, {srd(SRD_WPHI)}, s{sT0} offen lds', tok=('h', 0))
        S('s_mov_b64 exec, -1')
    h1 = dma_half(1)
    S.ext(flat(h1[:4]))
    if Opt.tlb:
        st_ = Opt.tlb
        S(f'v_lshlrev_b32 v8, {st_}, v{vLANE}')
        S(f's_mul_i32 s{sT0}, s{sTB}, {224*K1}\ns_lshl_b32 s{sT1}, s{sTB}, 17\ns_add_u32 s{sT1}, s{sT1}, {WS_PQ}\ns_cmp_eq_u32 s{sW4}, 1\ns_cselect_b32 s{sT0}, s{sT1}, s{sT0}')
        S(f's_mov_b32 s{sT1}, {WS_KVF}\ns_cmp_eq_u32 s{sW4}, 2\ns_cselect_b32 s{sT0}, s{sT1}, s{sT0}')
        S(f's_mul_i32 s{sT1}, s{sRB}, {448*K1}\ns_cmp_eq_u32 s{sW4}, 3\ns_cselect_b32 s{sT0}, s{sT1}, s{sT0}')
        n_ = min(64, (448 * K1) >> st_)
        S(f's_mov_b32 exec_lo, {hex(((1 << n_) - 1) & 0xffffffff)}\ns_mov_b32 exec_hi, {hex(((1 << n_) - 1) >> 32)}')
        S(f'buffer_load_dword v200, v8, {srd(SRD_WS)}, s{sT0} offen sc1\ns_mul_i32 s{sT1}, s{sTB}, {64*896}\ns_mov_b64 exec, 3\nbuffer_load_dword v200, v8, {srd(SRD_OUT)}, s{sT1} offen\nbuffer_load_dword v200, v8, {srd(SRD_W2)}, 0 offen\nbuffer_load_dword v200, v8, {srd(SRD_WO)}, 0 offen\ns_mov_b64 exec, -1')
    stamp(S, 'e5')
    lab = newlab('nt')
    S(f's_or_b32 s{sT0}, s2, s{sW4}\ns_cmp_lg_u32 s{sT0}, 0\ns_cbranch_scc1 {lab}')
    raw(S, f's_mov_b32 s{sT0}, {WS_TAG}\nv_mov_b32 v9, 0\ns_mov_b64 exec, 1\nbuffer_load_dword v8, v9, {srd(SRD_WS)}, s{sT0} offen sc1\ns_waitcnt vmcnt(0)\n'
           f'v_add_u32 v8, 1, v8\nv_max_u32 v8, 1, v8\ns_nop 1\nbuffer_store_dword v8, v9, {srd(SRD_WS)}, s{sT0} offen sc1\nbuffer_store_dword v8, v9, {srd(SRD_DBG)}, 0 offen sc1\ns_waitcnt vmcnt(0)\ns_mov_b64 exec, -1\n{lab}:')
    S(f'v_lshlrev_b32 v{vLC}, 2, v{vLANE}\nv_add_u32 v{vLC}, {CTL}, v{vLC}\nv_mov_b32 v{vLONE}, 1\nv_mov_b32 v{vLP+4}, {CTL}')
    if ffn:
        S(f'v_lshrrev_b32 v8, 2, v{vLANE}\nv_mul_u32_u24 v{vLS}, 3584, v8\nv_and_b32 v8, 3, v{vLANE}\nv_lshl_add_u32 v{vLS}, v8, 4, v{vLS}')
    else:
        S(f'v_and_b32 v8, 31, v{vLANE}\ns_lshl_b32 s{sT0}, s{sW4}, 5\nv_add_u32 v8, s{sT0}, v8\nv_lshrrev_b32 v9, 5, v{vLANE}\nv_lshlrev_b32 v9, 3, v9')
        S(f'v_mul_u32_u24 v{vLPW}, 112, v8\nv_add_u32 v{vLPW}, v{vLPW}, v9')
        S(f'v_cndmask_b32 v{vLMK}, 1.0, 0, {HI}\nv_mov_b32 v{vLL2E}, s{sL2E}')
        trb(S, vLWP, 2, 56, 8)
        S(f'v_add_u32 v{vLWP}, {WPHI_L}, v{vLWP}')
    S(f's_lshl_b32 s{sT0}, s{sW4}, 12\ns_add_u32 s{sT0}, s{sT0}, {SPARE}\nv_add_u32 v{vLRD}, s{sT0}, v{vL16}')
    if tile:
        S(f's_mov_b32 s{sT1}, 896'); swz_voff(S, vL2, f's{sT1}', 8)
        lane_consts_tr(S, vVW2, 8, 64, 'B')
        S(f's_xor_b32 s{sT1}, s{sW4}, 3\ns_lshr_b32 s{sT1}, s{sT1}, 1\ns_lshl_b32 s{sT1}, s{sT1}, 6\nv_xor_b32 v{vVW2[0]}, s{sT1}, v{vVW2[0]}\nv_xor_b32 v{vVW2[1]}, 64, v{vVW2[0]}')
        S(f's_mul_i32 s{sW2}, s{sW4}, {448*896}\ns_lshl_b32 s{sT2}, s{sCB}, 7\ns_add_u32 s{sW2}, s{sW2}, s{sT2}\ns_mul_i32 s{sK2}, s{sROT2}, {16*896}')
        S(f'v_add_u32 v13, {8*896}, v{vL2}')
    def w2stage(base, stride, ns):
        if not tile: return
        S(f's_mul_i32 s{sT2}, s{sW4}, {stride}\ns_add_u32 s{sT2}, s{sT2}, {base}\nv_add_u32 v9, s{sT2}, v{vVW2[0]}\nv_add_u32 v10, s{sT2}, v{vVW2[1]}')
        def dma(ks):
            o = (ks % ns) * 2048
            S(f's_add_u32 m0, s{sT2}, {o}\ns_add_u32 s{sT1}, s{sW2}, s{sK2}')
            if ks >= ns: S.wait(('wr', ks - ns))
            S(f'buffer_load_dwordx4 v{vL2}, {srd(SRD_W2)}, s{sT1} offen lds', tok=('w', ks))
            S(f's_add_u32 m0, s{sT2}, {o + 1024}')
            wrap_inc(S, sK2, 16 * 896, 448 * 896)
            S(f'buffer_load_dwordx4 v13, {srd(SRD_W2)}, s{sT1} offen lds', tok=('w', ks))
        d = ns - 1
        for ks in range(min(d, 16)): dma(ks)
        for ks in range(16):
            if ks + d < 16: dma(ks + d)
            S.wait(('w', ks))
            o = (ks % ns) * 2048; b = W2R + 8 * ks
            for c in range(2):
                for u in range(2):
                    S(f'ds_read_b64_tr_b16 {v(b + 4*c + 2*u, 2)}, v{9+c} offset:{o + 1024*u}', tok=('wr', ks))
            if not ffn and ks in (0, 8): stamp(S, 3 + ks // 8)
    def w2raw(lo, hi):
        if not tile: return
        for ks in range(lo, hi):
            S(f's_add_u32 s{sT1}, s{sW2}, s{sK2}')
            S(f'buffer_load_dwordx4 {v(W2R+8*ks,4)}, v{vL2}, {srd(SRD_W2)}, s{sT1} offen')
            S(f'buffer_load_dwordx4 {v(W2R+8*ks+4,4)}, v13, {srd(SRD_W2)}, s{sT1} offen')
            wrap_inc(S, sK2, 16 * 896, 448 * 896)
    def tr(lo, hi):
        if not tile: return
        if lo == 0: S(f's_lshl_b32 s{sT0}, s{sW4}, 12\ns_add_u32 s{sT0}, s{sT0}, {SPARE}\nv_add_u32 v9, s{sT0}, v{vVW2[0]}\nv_add_u32 v10, s{sT0}, v{vVW2[1]}')
        for ks in range(lo, hi):
            o = (ks % 2) * 2048; b = W2R + 8 * ks
            S(f'ds_write_b128 v{vLRD}, {v(b,4)} offset:{o}\nds_write_b128 v{vLRD}, {v(b+4,4)} offset:{o+1024}')
            for c in range(2):
                for u in range(2):
                    S(f'ds_read_b64_tr_b16 {v(b + 4*c + 2*u, 2)}, v{9+c} offset:{o + 1024*u}')
    DUM = 200
    def pf(srd_, voff, soff, n):
        S(f's_mov_b32 exec_hi, {hex((1 << (n - 32)) - 1)}\nbuffer_load_dword v{DUM}, v{voff}, {srd(srd_)}, s{soff} offen\ns_mov_b32 exec_hi, -1', tok='pf')
    if Opt.wpf:
        S(f'v_mul_lo_u32 v14, v{vLANE}, s{sPITCH}\ns_and_b32 s{sT0}, s{sI}, 3\ns_mul_i32 s{sT0}, s{sT0}, 112')
        if ffn:
            S(f's_mul_i32 s{sT0}, s{sT0}, s{sPITCH}\ns_lshl_b32 s{sT1}, s{sW4}, 7\ns_add_u32 s{sT1}, s{sT1}, s{sCOL[0]}\ns_cmp_eq_u32 s{sW4}, 3\ns_cselect_b32 s{sT1}, s{sCOLS}, s{sT1}\ns_add_u32 s{sT0}, s{sT0}, s{sT1}')
            pf(SRD_W, 14, sT0, 56)
            S(f's_add_u32 s{sT0}, s{sT0}, {56*3584}')
            pf(SRD_W, 14, sT0, 56)
        else:
            S(f's_lshr_b32 s{sT1}, s{sW4}, 1\ns_mul_i32 s{sT1}, s{sT1}, 56\ns_add_u32 s{sT0}, s{sT0}, s{sT1}\ns_mul_i32 s{sT0}, s{sT0}, s{sPITCH}\ns_and_b32 s{sT1}, s{sW4}, 1\ns_mul_i32 s{sT1}, s{sT1}, 124\ns_add_u32 s{sT0}, s{sT0}, s{sT1}')
            for st in range(3):
                S(f's_add_u32 s{sT1}, s{sT0}, s{sCOL[st]}')
                pf(SRD_W, 14, sT1, 56)
    def w2_prefetch():
        if not Opt.w2pf: return
        S(f'v_lshlrev_b32 v14, 7, v{vLANE}\ns_lshl_b32 s{sT0}, s{sI}, 2\ns_add_u32 s{sT0}, s{sT0}, s{sW4}\ns_mul_i32 s{sT1}, s{sT0}, {98*128}')
        pf(SRD_W2, 14, sT1, 49)
        S(f's_add_u32 s{sT1}, s{sT1}, {49*128}')
        pf(SRD_W2, 14, sT1, 49)
        S(f's_mul_i32 s{sT1}, s{sT0}, {25*128}\ns_mov_b64 exec, 0x1ffffff\nbuffer_load_dword v{DUM}, v14, {srd(SRD_WO)}, s{sT1} offen\ns_mov_b64 exec, -1', tok='pf')
    def gpf(which):
        if not Opt.gpf: return
        S(f's_sub_u32 s{sT0}, s2, 128\ns_lshl_b32 s{sT0}, s{sT0}, 2\ns_add_u32 s{sT0}, s{sT0}, s{sW4}\nv_lshlrev_b32 v14, 7, v{vLANE}')
        S(f's_mov_b64 s[72:73], s[66:67]\ns_mov_b32 s74, {448*2688}\ns_mov_b32 s75, 0x20000') if False else None
        for (lo, n, size) in ((sKA_QKV, 10, 448*2688), (sKA_W1, 13, 448*3584), (SRD_W2, 25, None), (SRD_WO, 7, None))[which]:
            if size:
                S(f's_mov_b64 s[76:77], s[{lo}:{lo+1}]\ns_mov_b32 s78, {size}\ns_mov_b32 s79, 0x20000'); d = 76
            else: d = lo
            S(f's_mul_i32 s{sT1}, s{sT0}, {n*128}\ns_mov_b64 exec, {hex((1 << n) - 1)}\nbuffer_load_dword v{DUM}, v14, {srd(d)}, s{sT1} offen\ns_mov_b64 exec, -1', tok='pf')
    if Opt.gpf == 2: gpf(slice(0, 2))
    def wo_prefetch():
        S(f'v_lshlrev_b32 v14, 7, v{vLANE}\ns_lshl_b32 s{sT0}, s{sI}, 2\ns_add_u32 s{sT0}, s{sT0}, s{sW4}')
        S(f's_mul_i32 s{sT1}, s{sT0}, {25*128}\ns_mov_b64 exec, 0x1ffffff\nbuffer_load_dword v{DUM}, v14, {srd(SRD_WO)}, s{sT1} offen\ns_mov_b64 exec, -1', tok='pf')
    l_wait(S, EV_XFREE)
    stamp(S, 1)
    S(f's_add_u32 s{sT0}, s{sBLK}, s{sFS}\ns_add_u32 s{sT0}, s{sT0}, s{sCOL[0]}')
    S.ext(flat(h1[4:])); sig(0)
    h2 = dma_half(2)
    S.ext(flat(h2[:3])); sig(1); S.ext(flat(h2[3:5])); sig(CN_H1B); S.ext(flat(h2[5:]))
    h3 = dma_half(3)
    S.ext(flat(h3[:3])); sig(2); S.ext(flat(h3[3:]))
    ltag_issue(S)
    h4 = dma_half(4)
    S.ext(flat(h4[:3])); sig(3); S.ext(flat(h4[3:]))
    if ffn:
        gpf(slice(2, 4))
    if ffn:
        sig(4)
        l_wait(S, EV_C0)
        S.ext(flat(dma_half(5)))
        sig(5)
        ltag_get(S)
        l_wait(S, EV_C1)
        S(f's_lshl_b32 s{sFS}, s{sFS}, 1\ns_add_u32 s{sFS}, s{sFS}, s{sCOLS}')
        for k in range(7):
            S(f's_add_u32 m0, s{sT3}, {k*4096}\ns_add_u32 s{sT0}, s{sBLK}, s{sFS}')
            wrap_inc(S, sBLK, f's{sP64}', f's{sP448}')
            S(f'buffer_load_dwordx4 v{vLS}, {srd(SRD_W)}, s{sT0} offen lds', tok=('h', 6))
        if Opt.l2pf:
            S(f'v_lshlrev_b32 v14, 7, v{vLANE}\ns_sub_u32 s{sT0}, s{sI}, 16\ns_lshl_b32 s{sT0}, s{sT0}, 2\ns_add_u32 s{sT0}, s{sT0}, s{sW4}\ns_mul_i32 s{sT1}, s{sT0}, {196*128}\ns_mov_b32 exec_hi, 0x1ffff')
            for i in range(4):
                S(f'buffer_load_dword v{DUM}, v14, {srd(SRD_W2)}, s{sT1} offen\ns_add_u32 s{sT1}, s{sT1}, {49*128}', tok='pf')
            S(f's_mul_i32 s{sT1}, s{sT0}, {49*128}\nbuffer_load_dword v{DUM}, v14, {srd(SRD_WO)}, s{sT1} offen\ns_mov_b64 exec, -1', tok='pf')
        sig(6)
        if not Opt.l2pf: wo_prefetch()
        l_wait(S, EV_C3)
        w2stage(SLOT, 14 * K1, 7)
        stamp(S, 11)
    else:
        l_wait(S, EV_C0)
        S.ext(flat(dma_half(5)))
        kA, kB, KA = 194, 195, LX
        trb(S, kA, 3, 112, 8); trb(S, kB, 3, 72, 8)
        S(f's_lshr_b32 s{sT0}, s{sW4}, 1\ns_and_b32 s{sT1}, s{sW4}, 1\ns_mul_i32 s{sT2}, s{sT0}, 14336\ns_mul_i32 s{sT1}, s{sT1}, 56\ns_add_u32 s{sT2}, s{sT2}, s{sT1}\nv_add_u32 v{kA}, s{sT2}, v{kA}')
        S(f's_mul_i32 s{sT2}, s{sT0}, 9216\ns_add_u32 s{sT2}, s{sT2}, {SLOT}\nv_add_u32 v{kB}, s{sT2}, v{kB}')
        S(f's_lshl_b32 s{74}, s{sIDX}, 2\ns_add_u32 s{74}, s{74}, s{sW4}\ns_lshl_b32 s{75}, s{74}, 11\ns_lshl_b32 s{74}, s{74}, 4\ns_add_u32 s{74}, s{74}, s{sRB}\ns_lshl_b32 s{74}, s{74}, 11\ns_add_u32 s{74}, s{74}, {WS_KVP}')
        S(f's_lshl_b32 s{sT0}, s{sRB}, 7\ns_add_u32 s{75}, s{75}, s{sT0}\ns_add_u32 s{75}, s{75}, {WS_FP}')
        l_wait(S, EV_PK)
        stamp(S, 12)
        if Opt.lprio: S('s_setprio 1')
        sm = softmax_k(None)
        S.ext(sm[:8]); sig(4); S.ext(sm[8:Opt.h5at]); sig(5); S.ext(sm[Opt.h5at:])
        l_signal(S, CN_PH)
        stamp(S, 11)
        ltag_get(S)
        w2raw(0, Opt.aw2)
        stamp(S, 5)
        if Opt.kprio: S('s_setprio 1')
        l_wait(S, EV_V)
        S.ext(cnt_read(CN_PH, vLP)); S.ext(cnt_check(CN_PH, vLP))
        for ts in range(8):
            b = HR + 8 * (ts % 6)
            if ts >= 6: S(f'v_mfma_f32_32x32x16_bf16 {v(KA,16)}, {v(b,4)}, {v(b+4,4)}, {"0" if ts == 6 else v(KA,16)}')
            for u in range(2): S(f'ds_read_b64_tr_b16 {v(b + 2*u, 2)}, v{kA} offset:{(16*ts + 4*u)*112}')
            for u in range(2): S(f'ds_read_b64_tr_b16 {v(b + 4 + 2*u, 2)}, v{kB} offset:{(16*ts + 4*u)*72}')
        for ts in range(2, 8):
            b = HR + 8 * (ts % 6)
            S(f'v_mfma_f32_32x32x16_bf16 {v(KA,16)}, {v(b,4)}, {v(b+4,4)}, {v(KA,16)}')
        G_ = HR
        for i in range(8): S(f'v_cvt_pk_bf16_f32 v{G_+i}, v{KA+2*i}, v{KA+2*i+1}')
        for j in range(2):
            S(f'buffer_store_dwordx4 {v(G_+4*j,4)}, v{vL16}, {srd(SRD_WS)}, s{74} offen offset:{j*1024} sc1', tok='kvp')
        tr(0, Opt.tr1)
        S.wait('kvp')
        flag_store(S, 75, LE)
        l_signal(S, CN_K2)
        S('s_setprio 0')
        stamp(S, 1)
        if Opt.ackdiag: S.wait('kvp'); stamp(S, 2); S('s_waitcnt vmcnt(0)')
        w2raw(Opt.aw2, 16)
        wo_prefetch()
        tr(Opt.tr1, 16)
        stamp(S, 6)
    if tile:
        l_signal(S, CN_LT)
        if not (Opt.early_f and not ffn):
            l_wait(S, EV_END)
            S.ext(cnt_read(CN_LT, vLP)); S.ext(cnt_check(CN_LT, vLP))
            stamp(S, 7)
            S.ext(flat(bubble_units(Opt.bthr)))

def bubble_units(thr):
    sW2, sK2 = sU4, sU5
    u = []
    for i in range(11):
        t = Stream()
        if i == 0: t(f's_mul_i32 s{sT3}, s{sW4}, {F_REG}')
        t(f's_add_u32 m0, s{sT3}, {i*2048}\ns_add_u32 s{sT1}, s{sW2}, s{sK2}')
        if thr: t(f's_waitcnt vmcnt({thr})')
        t(f'buffer_load_dwordx4 v{vL2}, {srd(SRD_W2)}, s{sT1} offen lds', tok=('w2', 16 + i))
        t(f's_add_u32 m0, s{sT3}, {i*2048 + 1024}')
        wrap_inc(t, sK2, 16 * 896, 448 * 896)
        t(f'buffer_load_dwordx4 v13, {srd(SRD_W2)}, s{sT1} offen lds', tok=('w2', 16 + i))
        if i == 10: t(f's_add_u32 s{sU3}, s{sW2}, s{sK2}')
        u.append(t.l)
    for hd in range(4):
        for half in range(2):
            t = Stream()
            t(f's_lshl_b32 s{sT2}, s{sW4}, 14\ns_add_u32 s{sT2}, s{sT2}, {A_BASE}')
            t(f's_add_u32 s{sT1}, s{sCB}, {hd}\ns_and_b32 s{sT1}, s{sT1}, 3\ns_lshl_b32 s{sCNT}, s{sW4}, 2\ns_add_u32 s{sT1}, s{sT1}, s{sCNT}\ns_mul_i32 s{sT1}, s{sT1}, {28*896}\ns_lshl_b32 s{sCNT}, s{sCB}, 7\ns_add_u32 s{sT1}, s{sT1}, s{sCNT}')
            if half: t(f's_add_u32 s{sT1}, s{sT1}, {16*896}')
            for i in range(2):
                t(f's_add_u32 m0, s{sT2}, {hd*4096 + half*2048 + i*1024}')
                if thr: t(f's_waitcnt vmcnt({thr})')
                if hd == 3 and half == 1 and i == 1: t(f's_cmp_eq_u32 s{sW4}, 3\ns_cselect_b32 exec_hi, 0, -1')
                else: t('s_nop 0')
                t(f'buffer_load_dwordx4 v{vL2 if i == 0 else 13}, {srd(SRD_WO)}, s{sT1} offen lds', tok='wo')
            if hd == 3 and half == 1: t('s_mov_b64 exec, -1')
            u.append(t.l)
    return u

def hflag_poll(S):
    S(f'v_lshlrev_b32 v8, 7, v{vLANE}')
    S(f's_lshl_b32 s{sT0}, s{sTB}, 3\ns_add_u32 s{sT0}, s{sT0}, s{sCB}\ns_lshl_b32 s{sT0}, s{sT0}, 12\ns_lshl_b32 s{sT1}, s{sW4}, 9\ns_add_u32 s{sT0}, s{sT0}, s{sT1}\ns_add_u32 s{sT0}, s{sT0}, {WS_FH}')
    poll(S, 8, sT0, 4, 9)

def f_phase2(S, attn):
    inl = attn and Opt.early_f
    stamp(S, 10)
    if Opt.fprio: S('s_setprio 1')
    sK = sU1
    vH0, vH1 = 14, 15
    S(f's_mul_i32 s{sT3}, s{sW4}, {F_REG}\nv_add_u32 v10, s{sT3}, v{vVW2[1]}\nv_add_u32 v11, s{sT3}, v{vVW2[0]}')
    S(f's_mul_i32 s{sU2}, s{sTB}, {224*K1}\ns_mul_i32 s{sT2}, s{sW4}, {28*K1}\ns_add_u32 s{sU2}, s{sU2}, s{sT2}\ns_add_u32 s{sU2}, s{sU2}, {WS_H}\ns_lshl_b32 s{sK}, s{sROT2}, 10')
    S(f's_and_b32 s{sT2}, s{sW4}, 1\ns_mul_i32 s{sT2}, s{sT2}, {112*K1}\nv_add_u32 v{vH1}, s{sT2}, v{vL16}\ns_sub_u32 s{sT2}, {112*K1}, s{sT2}\nv_add_u32 v{vH0}, s{sT2}, v{vL16}')
    S('s_waitcnt lgkmcnt(0)')
    hflag_poll(S)
    S(f'v_mov_b32 v9, v11\nv_mov_b32 v12, 4')
    if not inl: S(f'ds_write_b32 v{vCTL}, v12 offset:{128 + 16*CN_WO}')
    stamp(S, 8)
    hdst = {}
    for ks in range(28):
        if ks < 6: hdst[ks] = HR + 8 * ks
        elif ks < 16: hdst[ks] = W2R + 8 * (ks - 6)
        else: hdst[ks] = hdst[ks - 12]
    adst = {ks: (W2R + 8 * ks if ks < 16 else W2R + 8 * (10 + (ks - 16) % 3)) for ks in range(28)}
    def hload(ks):
        S(f's_add_u32 s{sT0}, s{sU2}, s{sK}')
        S(f'buffer_load_dwordx4 {v(hdst[ks],4)}, v{vH0}, {srd(SRD_WS)}, s{sT0} offen sc1')
        S(f'buffer_load_dwordx4 {v(hdst[ks]+4,4)}, v{vH1}, {srd(SRD_WS)}, s{sT0} offen sc1')
        if ks < 27: wrap_inc(S, sK, 1024, 28 * K1)
    def aread(ks):
        o = (ks - 16) * 2048; b = adst[ks]
        S.wait(('w2', ks))
        for c in range(2):
            for u in range(2):
                S(f'ds_read_b64_tr_b16 {v(b + 4*c + 2*u, 2)}, v{9+c} offset:{o + 1024*u}')
    def lds_wait(ev, tmp):
        t_ = Stream(); t_(f'v_mov_b32 v{tmp+4}, {CTL}'); l_wait(t_, ev, tmp)
        for x in t_.l: S.l.append(x if x.kind == 'label' else RAW(x.text))
    bu = bubble_units(0) if inl else []
    for ks in range(6): hload(ks)
    nxt = 6
    for ks in range(28):
        for c in range(2):
            for tt2 in range(2):
                acc = FACC + 16 * (2 * c + tt2)
                S(f'v_mfma_f32_32x32x16_bf16 {v(acc,16)}, {v(adst[ks]+4*c,4)}, {v(hdst[ks]+4*tt2,4)}, {"0" if ks == 0 else v(acc,16)}')
                if c == 0 and tt2 == 0 and 16 <= ks + 2 < 28: aread(ks + 2)
        if ks == (Opt.gk0 if attn else Opt.gk1): S(f'ds_write_b32 v{vCTL}, v12 offset:{128 + 16*CN_W2}')
        if inl and ks == 0:
            lds_wait(EV_END, HR); S.ext(cnt_read(CN_LT, HR)); S.ext(cnt_check(CN_LT, HR))
            stamp(S, 7)
        if ks == 17:
            if attn: lds_wait(EV_X2, W2R + 8 * 14)
            S(f's_add_u32 m0, s{sT3}, {11*2048}\ns_nop 0')
            S(f'buffer_load_dwordx4 v{vL2}, {srd(SRD_W2)}, s{sU3} offen lds', tok=('w2', 27))
            S(f's_add_u32 m0, s{sT3}, {11*2048 + 1024}\ns_nop 0')
            S(f'buffer_load_dwordx4 v13, {srd(SRD_W2)}, s{sU3} offen lds', tok=('w2', 27))
            out_addr(S, 4, 0)
        while nxt < 28 and ((nxt < 16 and nxt - 6 <= ks and not (inl and ks == 0)) or (nxt >= 16 and nxt - 12 <= ks)):
            hload(nxt); nxt += 1
        if inl:
            n_ = {0: 1}.get(ks, 1 if ks < 11 else 2)
            for _ in range(n_):
                if bu: S.ext(bu.pop(0))
            if ks == 21: S.wait('wo'); S(f'ds_write_b32 v{vCTL}, v12 offset:{128 + 16*CN_WO}')
    assert not bu
    stamp(S, 9)
    final_half(S, False, FACC, 4)

def a_phase2(S):
    for hd in range(4):
        S(f's_add_u32 s{sU0+hd}, s{sCB}, {hd}\ns_and_b32 s{sU0+hd}, s{sU0+hd}, 3\ns_lshl_b32 s{sU0+hd}, s{sU0+hd}, 11')
    S(f's_lshl_b32 s{sU4}, s{sTB}, 16\ns_lshl_b32 s{sT2}, s{sW4}, 13\ns_add_u32 s{sU4}, s{sU4}, s{sT2}\ns_add_u32 s{sU4}, s{sU4}, {WS_PQ}')
    S(f'v_lshlrev_b32 v8, 7, v{vLANE}')
    S(f's_lshl_b32 s{sT0}, s{sTB}, 3\ns_add_u32 s{sT0}, s{sT0}, s{sCB}\ns_lshl_b32 s{sT0}, s{sT0}, 12\ns_lshl_b32 s{sT1}, s{sW4}, 9\ns_add_u32 s{sT0}, s{sT0}, s{sT1}\ns_add_u32 s{sT0}, s{sT0}, {WS_FH + 2048}')
    if Opt.aprio: S('s_setprio 1')
    S.ext(cnt_read(CN_W2, vCT)); S.ext(cnt_check(CN_W2, vCT, 1))
    stamp(S, 11)
    poll(S, 8, sT0, 4, 9, Opt.ksleep)
    stamp(S, 14)
    for hd in range(4):
        S(f's_add_u32 s{sT2}, s{sU4}, s{sU0+hd}')
        for tt2 in range(2):
            for st in range(2):
                S(f'buffer_load_dwordx4 {v(PHI+16*(2*hd+tt2)+4*st,4)}, v{10 + tt2}, {srd(SRD_WS)}, s{sT2} offen offset:{st*1024} sc1')
    S.ext(cnt_read(CN_WO, vCT)); S.ext(cnt_check(CN_WO, vCT, 1))
    SA = PN
    def woread(n):
        hd, st = n // 2, n % 2; b = KV + 8 * (n % 4)
        for c in range(2):
            for u in range(2):
                S(f'ds_read_b64_tr_b16 {v(b+4*c+2*u,2)}, v{vVW2[c]} offset:{(32*hd + 16*st + 8*u)*128}')
    woread(0); woread(1)
    for n in range(8):
        hd, st = n // 2, n % 2; b = KV + 8 * (n % 4)
        for c in range(2):
            for tt2 in range(2):
                acc = SA + 16 * (2 * c + tt2); ob = PHI + 16 * (2 * hd + tt2) + 4 * st
                S(f'v_mfma_f32_32x32x16_bf16 {v(acc,16)}, {v(b+4*c,4)}, {v(ob,4)}, {"0" if n == 0 else v(acc,16)}')
                if c == 0 and tt2 == 0 and n + 2 < 8: woread(n + 2)
    stamp(S, 12)
    final_half(S, True, SA, XT)

def reducer(S):
    S(f'v_lshlrev_b32 v8, 7, v{vLANE}\ns_lshl_b32 s{sT0}, s{sTB}, 11\ns_add_u32 s{sT0}, s{sT0}, {WS_FP}')
    S(f's_lshl_b32 s{sU2}, s{sTB}, 16\ns_lshl_b32 s{sT2}, s{sW4}, 10\ns_add_u32 s{sU2}, s{sU2}, s{sT2}\ns_add_u32 s{sU2}, s{sU2}, {WS_KVP}')
    S(f's_lshl_b32 s{sU1}, s{sTB}, 1\ns_lshr_b32 s{sT1}, s{sW4}, 1\ns_add_u32 s{sU1}, s{sU1}, s{sT1}\ns_lshl_b32 s{sU1}, s{sU1}, 10\ns_and_b32 s{sT1}, s{sW4}, 1\ns_lshl_b32 s{sT1}, s{sT1}, 9\ns_add_u32 s{sU1}, s{sU1}, s{sT1}\ns_add_u32 s{sU1}, s{sU1}, {WS_KVF}')
    S(f's_lshl_b32 s{sU0}, s{sTB}, 7\ns_add_u32 s{sU0}, s{sU0}, {WS_FK}')
    if Opt.hint:
        o_ = newlab('ro')
        S(f's_waitcnt vmcnt(0)\ns_cmp_lg_u32 s{sW4}, 0\ns_cbranch_scc1 {o_}')
        poll(S, 8, sT0, 16, 9, Opt.rsleep)
        S(f'v_mov_b32 v9, 4\ns_mov_b64 exec, 15\nds_write_b32 v{vLC}, v9 offset:{128 + 16*CN_KV}\ns_mov_b64 exec, -1\n{o_}:')
        S.ext(cnt_read(CN_KV, vLP)); S.ext(cnt_check(CN_KV, vLP))
    stamp(S, 8)
    again, done = newlab('rd'), newlab('rd')
    S(f's_mov_b32 s{sBND}, 0\n{again}:')
    for rb in range(16):
        S(f's_add_u32 s{sT0}, s{sU2}, {rb*4096}')
        S(f'buffer_load_dwordx4 {v(32+4*rb,4)}, v{vL16}, {srd(SRD_WS)}, s{sT0} offen sc1')
    S(f'v_mov_b32 v8, 0\nv_mov_b32 v16, 0\nv_mov_b32 v17, 0\nv_mov_b32 v18, 0\nv_mov_b32 v19, 0')
    for rb in range(16):
        b = 32 + 4 * rb
        S(f'v_xor_b32 v9, s{sTAG}, v{b+1}\nv_xor_b32 v10, s{sTAG}, v{b+3}\nv_or3_b32 v8, v8, v9, v10')
        S(f'v_lshlrev_b32 v{b+1}, 16, v{b}\nv_and_b32 v{b}, 0xffff0000, v{b}\nv_lshlrev_b32 v{b+3}, 16, v{b+2}\nv_and_b32 v{b+2}, 0xffff0000, v{b+2}')
        S(f'v_add_f32 v16, v16, v{b+1}\nv_add_f32 v17, v17, v{b}\nv_add_f32 v18, v18, v{b+3}\nv_add_f32 v19, v19, v{b+2}')
    S(f'v_cmp_ne_u32 vcc, 0, v8\ns_add_u32 s{sBND}, s{sBND}, 1\ns_cbranch_vccz {done}\ns_sleep {Opt.rsleep}\ns_cmp_lt_u32 s{sBND}, 0x8000\ns_cbranch_scc1 {again}\n{done}:')
    if Opt.diag: S(f's_mul_i32 s{STAMP0+13}, s{sBND}, 100\ns_add_u32 s{STAMP0+13}, s{STAMP0+13}, s{STAMP0}')
    S(f'v_and_b32 v8, 31, v{vLANE}\nv_cmp_eq_u32 vcc, 29, v8')
    S(f's_cmp_eq_u32 s{sW4}, 3\ns_cselect_b32 s{sT3}, -1, 0\ns_mov_b32 s{sT2}, 0')
    stamp(S, 10)
    for i in range(4): S(f'v_cndmask_b32 v{16+i}, v{16+i}, 1.0, vcc')
    S('v_cvt_pk_bf16_f32 v16, v16, v17\nv_cvt_pk_bf16_f32 v17, v18, v19')
    S(f'v_cndmask_b32 v16, v16, 0, s[{sT2}:{sT3}]\nv_cndmask_b32 v17, v17, 0, s[{sT2}:{sT3}]')
    S(f'v_lshlrev_b32 v8, 3, v{vLANE}\nbuffer_store_dwordx2 v[16:17], v8, {srd(SRD_WS)}, s{sU1} offen sc1')
    S('s_waitcnt vmcnt(0)')
    l_ = newlab('rl')
    S(f's_mov_b64 exec, 1\nds_add_rtn_u32 v9, v{vLC}, v{vLONE} offset:{128 + 16*CN_PQ}\ns_waitcnt lgkmcnt(0)\ns_mov_b64 exec, -1\nv_readfirstlane_b32 s{sT0}, v9\ns_cmp_lg_u32 s{sT0}, 3\ns_cbranch_scc1 {l_}')
    flag_store(S, sU0, 24, 8, 12)
    S(f'{l_}:')
    stamp(S, 9)

Opt.kvstep = 14
def fin_after(prefix, body):
    mark = Ins('L_MARK__:')
    o = finalize(prefix + [mark] + body)
    return o[o.index(mark) + 1:]

def build():
    assert sT2 % 2 == 0 and sT3 == sT2 + 1
    parts = []
    P = Stream(); prologue(P)
    P(f's_cmp_ge_u32 s{sWAVE}, 4\ns_cbranch_scc1 L_lwave')
    parts.append(finalize(P.l))
    C = Stream(); c_common(C); C(f's_cmp_ge_u32 s{sROLE}, 8\ns_cbranch_scc1 L_cattn')
    S = Stream(); c_ffn(S); c_publish(S, False, True); S('s_branch L_aphase'); parts.append(finalize(C.l + S.l))
    S = Stream(); S('L_cspare:\ns_waitcnt vmcnt(0)'); c_publish(S, True, False); S('s_branch L_fin'); parts.append(finalize(S.l))
    S = Stream(); S('L_cattn:'); c_attn(S)
    S(f's_cmp_ge_u32 s{sI}, 12\ns_cbranch_scc1 L_cspare'); c_publish(S, True, True); parts.append(fin_after(C.l, S.l))
    S = Stream(); S('L_aphase:'); a_phase2(S); S('s_branch L_fin'); parts.append(finalize(S.l))
    S = Stream(); S('L_lwave:'); l_decode(S)
    S(f's_cmp_ge_u32 s{sROLE}, 8\ns_cbranch_scc1 L_lattn'); l_phase1(S, True, True); f_phase2(S, False); S('s_branch L_fin'); parts.append(finalize(S.l))
    S = Stream(); S('L_lattn:'); S(f's_cmp_ge_u32 s{sI}, 12\ns_cbranch_scc1 L_lspare'); l_phase1(S, False, True); f_phase2(S, True); S('s_branch L_fin'); parts.append(finalize(S.l))
    S = Stream(); S('L_lspare:'); l_phase1(S, False, False); parts.append(finalize(S.l))
    S = Stream(); S('L_fin:'); diag_out(S); S('L_end:\ns_endpgm'); parts.append(finalize(S.l))
    hdr = open('recurrent_scan__linear_kernel_hedgehog__dense_activation_silu__prompt.s.ref').read().split('\n')
    top = [l for l in hdr[:13] if l.startswith(';') and '@launch' not in l and 'Override' not in l and 'grid=ceil' not in l]
    out = '\n'.join(top) + f'\n; @launch grid=(256,1,1) block=(512,1,1) lds={LDS_TOTAL}\n'
    out += f'.amdgcn_target "amdgcn-amd-amdhsa--gfx950"\n.text\n.globl {NAME}\n.p2align 8\n.type {NAME},@function\n{NAME}:\n'
    for p in parts:
        t = text(p)
        if Opt.nosc1 == 2: t = '\n'.join(l.replace(' sc1', ' nt sc1') if 'buffer_store_dwordx4' in l else l for l in t.split('\n'))
        if Opt.nosc1 == 3: t = '\n'.join(l.replace('offen', 'offen idxen').replace(', v2,', ', v[0:1],') if False else l for l in t.split('\n'))
        if Opt.nosc1 == 1: t = '\n'.join(l.replace(' sc1', '') if 'buffer_store_dwordx4' in l else l for l in t.split('\n'))
        out += t
    out += f'''.section .rodata,"a"
.p2align 6
.amdhsa_kernel {NAME}
  .amdhsa_next_free_vgpr 256
  .amdhsa_next_free_sgpr 102
  .amdhsa_accum_offset 256
  .amdhsa_group_segment_fixed_size 0
  .amdhsa_kernarg_size 80
  .amdhsa_user_sgpr_count 2
  .amdhsa_user_sgpr_kernarg_segment_ptr 1
  .amdhsa_system_sgpr_workgroup_id_x 1
.end_amdhsa_kernel
'''
    return out

if __name__ == '__main__':
    for a in sys.argv[2:]:
        k, _, val = a.partition('='); setattr(Opt, k, int(val) if val else True)
    open(sys.argv[1], 'w').write(build())
```

```python
import sys, struct
sys.path.insert(0, "dev")
from asmlib import *

NAME = "recurrent_scan__linear_kernel_hedgehog__dense_activation_silu__prompt_kernel"
K1 = 1024
import os
WS_H   = int(os.environ.get('WSOFF', '0')) << 20
WS_PQ  = WS_H + 64 * 112 * K1
WS_KVP = WS_PQ + 64 * 16 * 4096
WS_KVF = WS_KVP + 32 * 16 * 4096
WS_FH  = WS_KVF + 64 * K1
WS_FP  = WS_FH + 256 * 4096
WS_FK  = WS_FP + 32 * 2048
WS_TAG = WS_FK + 8 * 4096
WS_DIAG = WS_TAG + 4096
WS_SIZE = WS_DIAG + 256 * 8 * 64
SLOT = 28 * K1
SPARE = 140 * K1
WPHI_L = 156 * K1
CTL = 160 * K1 - 512
LDS_TOTAL = 160 * K1
F_REG = 24 * K1
A_BASE = 96 * K1
A_REG = 16 * K1
EV_XFREE, EV_C0, EV_C1, EV_C2, EV_C3, EV_PK, EV_END, EV_V = range(8)
CN_WO, CN_LT, CN_PH, CN_KV, CN_PQ, CN_K2, CN_W2, CN_KG, CN_G = 7, 8, 9, 10, 11, 13, 15, 16, 17
EV_X1, EV_X2, EV_PL = 25, 26, 27
sBND = 70
L2E = 1.4426950408889634
def f2u(x): return struct.unpack('<I', struct.pack('<f', x))[0]
def hx(x): return '0x%08x' % (x & 0xffffffff)

sWAVE, sXCD, sI, sRB, sROLE = 3, 4, 5, 6, 7
SRD_X, SRD_W, SRD_WS, SRD_W2, SRD_WO, SRD_OUT, SRD_DBG, SRD_WPHI = 8, 12, 16, 20, 24, 28, 32, 36
sTB, sCB, sIDX, sTAG, sPITCH = 40, 41, 42, 43, 44
sCOL = [45, 46, 47]
sCOLS = 48
sSEL_LO, sSEL_HI = 49, 63
sT0, sT1, sT2, sT3 = 50, 51, 52, 53
sHI = 54
sROT1, sROT2, sM70 = 1, 57, 56
sCNT, sW4, sFT, sFS, sL2E = 58, 59, 60, 61, 62
sU0, sU1, sU2, sU3, sU4, sU5 = 64, 65, 66, 67, 68, 69
sKA_QKV, sKA_W1 = 80, 82
STAMP0 = 84
def srd(b): return f's[{b}:{b+3}]'
def v(a, n=1): return f'v{a}' if n == 1 else f'v[{a}:{a+n-1}]'
HI = f's[{sHI}:{sHI+1}]'

class Opt:
    diag = False
    ncen = 18
    sleep = 8
    early = False
    rot = 1
    lprio = 1
    lsleep = 1
    nodma = 0
    nosc1 = 0
    nowo = 0
    wpf = 0
    xfirst = 3
    w2pf = 0
    gpf = 1
    mini = 0
    vsteps = 3
    hint = 1
    athr = 4
    rsleep = 3
    ackdiag = 0
    pk = 0
    pkq = 1
    trpace = 1
    aw2 = 10
    tr1 = 3
    tlb = 0
    s4hook = 1
    afirst = 0
    mixst = 0
    l2pf = 0
    gk0 = 18
    early_f = 0
    oprio = 1
    nreg = 12
    xbar = 6
    kgat = 20
    wolate = 0
    wostep = 9
    map2 = 0
    ppf = 0
    pps = 3
    ppw = 4
    tr0 = 0
    plwait = 0
    gk1 = 18
    agate = 3
    h5at = 44
    kprio = 1
    aprio = 0
    bthr = 20
    trfirst = 0
    thr = 40
    xpipe = 4
    fine = -1
    cpf = 1
    wopf = 1
    phi1 = 1
    fprio = 1
    dbgout = 0
    outsc = ''
    empty = 0
    xcc = 0
    fdiag = 0
    nophi = 0
    notr = 0
    cprio = 0
    predelay = 0
    ksleep = 6

def stamp(S, k):
    if not Opt.diag: return
    if Opt.mini and k not in (0, 15): return
    if Opt.fine >= 0:
        if k == 0: S('s_memtime s[100:101]\ns_waitcnt lgkmcnt(0)\ns_mov_b32 s71, s100')
        return
    if isinstance(k, str):
        if not Opt.early: return
        k = int(k[1:])
    elif Opt.early and 3 <= k < 15: return
    S(f'{"s_memtime" if Opt.diag == 2 else "s_memrealtime"} s[100:101]\ns_waitcnt lgkmcnt(0)\ns_mov_b32 s{STAMP0+k}, s100')

def diag_out(S):
    if not Opt.diag: return
    S('s_waitcnt vmcnt(0) lgkmcnt(0)')
    stamp(S, 15)
    if Opt.xcc: S(f's_getreg_b32 s{STAMP0+11}, hwreg(HW_REG_XCC_ID)\ns_getreg_b32 s{STAMP0+12}, hwreg(HW_REG_HW_ID)')
    if Opt.dbgout:
        lab = newlab('dg')
        S(f's_not_b32 s{STAMP0+14}, s{STAMP0}')
        if Opt.dbgout == 1: S(f's_cmp_ge_u32 s{sWAVE}, 4')
        else: S(f's_cmp_lt_u32 s{sWAVE}, 4')
        S(f's_cbranch_scc1 {lab}')
        S('v_mov_b32 v16, 0')
        for k in range(1, 16): S(f'v_writelane_b32 v16, s{STAMP0+k}, {k}')
        S(f'v_mbcnt_lo_u32_b32 v17, -1, 0\nv_lshlrev_b32 v17, 2, v17\ns_mov_b64 exec, 0xfffe')
        S(f'buffer_atomic_umax v16, v17, {srd(SRD_DBG)}, 0 offen sc1')
        S(f'{lab}:\ns_endpgm')
    if Opt.fine >= 0:
        S('v_mov_b32 v16, s71\nv_mov_b32 v31, s71')
        for k in range(14): S(f'v_mov_b32 v{17+k}, s{72+2*k}')
    else:
        for k in range(16): S(f'v_mov_b32 v{16+k}, s{STAMP0+k}')
    S(f's_lshl_b32 s{sT0}, s2, 3\ns_add_u32 s{sT0}, s{sT0}, s{sWAVE}\ns_lshl_b32 s{sT0}, s{sT0}, 6\ns_add_u32 s{sT0}, s{sT0}, {WS_DIAG}')
    S('v_mov_b32 v40, 0\ns_mov_b64 exec, 1')
    for k in range(4): S(f'buffer_store_dwordx4 v[{16+4*k}:{19+4*k}], v40, {srd(SRD_WS)}, s{sT0} offen offset:{16*k}')

def half_base(h): return ((h + 4) % 5) * SLOT

_lab = [0]
def newlab(p):
    _lab[0] += 1; return f'L_{p}{_lab[0]}'
def RAW(t):
    i = Ins(t); i.kind = 'salu'; i.rd = set(); i.wr = set(); return i
def raw(S, t):
    for l in t.split('\n'):
        S.l.append(Ins(l) if l.endswith(':') else RAW(l))

vCTL, vLANE, vL16 = 0, 1, 2
def mk_srd(S, items):
    for b, lo, size in items:
        S(f's_mov_b64 s[{b}:{b+1}], s[{lo}:{lo+1}]\ns_mov_b32 s{b+2}, {size}\ns_mov_b32 s{b+3}, 0x20000')
def prologue(S):
    S(f's_cmp_ge_u32 s2, {0 if Opt.empty else 256}\ns_cbranch_scc1 L_end')
    if Opt.diag:
        for k in range(16): S(f's_mov_b32 s{STAMP0+k}, 0')
        if Opt.fine >= 0: S('s_mov_b32 s84, 1\ns_mov_b32 s86, 1\ns_mov_b32 s88, 1\ns_mov_b32 s90, 1\ns_mov_b32 s92, 1\ns_mov_b32 s94, 1\ns_mov_b32 s96, 1\ns_mov_b32 s98, 1')
    stamp(S, 0)
    S('s_load_dwordx16 s[64:79], s[0:1], 0\ns_load_dwordx4 s[80:83], s[0:1], 64')
    S(f'v_lshrrev_b32 v3, 6, v0\nv_and_b32 v{vLANE}, 63, v0\nv_readfirstlane_b32 s{sWAVE}, v3\nv_lshlrev_b32 v{vL16}, 4, v{vLANE}')
    S(f's_and_b32 s{sXCD}, s2, 7\ns_lshr_b32 s{sI}, s2, 3\ns_and_b32 s{sT3}, s{sI}, 3\ns_lshr_b32 s{sT2}, s{sI}, 2\ns_xor_b32 s{sT2}, s{sT2}, 4')
    S(f's_lshr_b32 s{sRB}, s{sXCD}, 1\ns_lshl_b32 s{sRB}, s{sRB}, 2\ns_add_u32 s{sRB}, s{sRB}, s{sT3}')
    S(f's_lshl_b32 s{sROT1}, s{sT3}, 1\ns_add_u32 s{sROT1}, s{sROT1}, s{sT2}\ns_sub_u32 s{sT0}, s{sROT1}, 7\ns_cmp_ge_u32 s{sROT1}, 7\ns_cselect_b32 s{sROT1}, s{sT0}, s{sROT1}')
    S(f's_and_b32 s{sW4}, s{sWAVE}, 3')
def decode2(S):
    if Opt.map2:
        S(f's_and_b32 s{sT1}, s{sXCD}, 1\ns_lshr_b32 s{sCB}, s{sROT1}, 1\ns_and_b32 s{sT0}, s{sROT1}, 1\ns_cmp_eq_u32 s{sROT1}, 6\ns_cselect_b32 s{sT0}, s{sT1}, s{sT0}')
        S(f's_lshl_b32 s{sT0}, s{sT0}, 2\ns_add_u32 s{sTB}, s{sT0}, s{sT3}')
        S(f's_lshl_b32 s{sROT2}, s{sCB}, 3\ns_mul_i32 s{sT0}, s{sTB}, 3\ns_add_u32 s{sROT2}, s{sROT2}, s{sT0}\ns_sub_u32 s{sT0}, s{sROT2}, 28\ns_cmp_ge_u32 s{sROT2}, 28\ns_cselect_b32 s{sROT2}, s{sT0}, s{sROT2}')
        S(f's_lshl_b32 s{sT1}, s{sT1}, 2\ns_add_u32 s{sT1}, s{sT1}, s{sCB}\ns_cmp_eq_u32 s{sROT1}, 6\ns_cselect_b32 s{sCB}, 3, s{sT1}')
        S(f's_lshr_b32 s{sT0}, s{sXCD}, 1\ns_lshl_b32 s{sT0}, s{sT0}, 3\ns_add_u32 s{sTB}, s{sTB}, s{sT0}')
    else:
        S(f's_mov_b32 s{sCB}, s{sROT1}\ns_lshl_b32 s{sTB}, s{sXCD}, 2\ns_add_u32 s{sTB}, s{sTB}, s{sT3}')
    S(f's_and_b32 s{sIDX}, s{sXCD}, 1\ns_lshl_b32 s{sIDX}, s{sIDX}, 2\ns_and_b32 s{sT0}, s{sT2}, 3\ns_add_u32 s{sIDX}, s{sIDX}, s{sT0}')
    S(f's_and_b32 s{sT0}, s{sT2}, 4\ns_lshl_b32 s{sT0}, s{sT0}, 1\ns_add_u32 s{sROLE}, s{sIDX}, s{sT0}')
    if not Opt.map2: S(f's_mul_i32 s{sROT2}, s{sT3}, 7\ns_lshl_b32 s{sT0}, s{sCB}, 2\ns_add_u32 s{sROT2}, s{sROT2}, s{sT0}\ns_sub_u32 s{sT0}, s{sROT2}, 28\ns_cmp_ge_u32 s{sROT2}, 28\ns_cselect_b32 s{sROT2}, s{sT0}, s{sROT2}')
    S(f's_lshl_b32 s{sT0}, s{sW4}, 2\ns_add_u32 s{sT0}, s{sT0}, {CTL}\nv_mov_b32 v{vCTL}, s{sT0}')
    S(f's_mov_b32 s{sHI}, 0\ns_mov_b32 s{sHI+1}, -1\ns_mov_b32 s{sL2E}, {hx(f2u(L2E))}\ns_movk_i32 s{sM70}, 0x70')
def l_decode(S):
    S(f'v_lshlrev_b32 v4, 3, v{vLANE}\nv_add_u32 v4, {CTL}, v4\nv_mov_b32 v6, 0\nv_mov_b32 v7, 0\nds_write_b64 v4, v[6:7]')
    decode2(S)
    S(f's_mul_i32 s{sT0}, s{sIDX}, 448\ns_and_b32 s{sT1}, s{sIDX}, 1\ns_lshl_b32 s{sT2}, s{sT1}, 6\ns_add_u32 s{sT2}, s{sT2}, s{sT0}')
    S(f's_mul_i32 s{sT1}, s{sT1}, 384\ns_sub_u32 s{sCOLS}, s{sT0}, s{sT1}\ns_add_u32 s{sCOLS}, s{sCOLS}, 384')
    S(f's_mul_i32 s{sT0}, s{sIDX}, 112')
    S(f's_add_u32 s{sT1}, s{sT0}, 896\ns_add_u32 s{sT3}, s{sT0}, 1792\ns_add_u32 s{sCOL[1]}, s{sT2}, 128\ns_add_u32 s{sCOL[2]}, s{sT2}, 256')
    S(f's_movk_i32 s{sPITCH}, 3584\ns_cmp_ge_u32 s{sROLE}, 8')
    S(f's_cselect_b32 s{sCOL[0]}, s{sT1}, s{sT2}\ns_cselect_b32 s{sPITCH}, 2688, s{sPITCH}')
    S(f's_cselect_b32 s{sCOL[1]}, s{sT3}, s{sCOL[1]}\ns_cselect_b32 s{sCOL[2]}, s{sT0}, s{sCOL[2]}')
    S(f's_mul_i32 s{SRD_W+2}, s{sPITCH}, 448\ns_mov_b32 s{SRD_W+3}, 0x20000')
    swz_voff(S, vLW, f's{sPITCH}', 8)
    S('s_waitcnt lgkmcnt(0)')
    S(f's_cmp_ge_u32 s{sROLE}, 8\ns_cselect_b64 s[{SRD_W}:{SRD_W+1}], s[66:67], s[74:75]')
    mk_srd(S, ((SRD_X, 64, 2048 * 896), (SRD_WS, 82, WS_SIZE), (SRD_W2, 76, 1792 * 896), (SRD_WO, 70, 448 * 896), (SRD_OUT, 78, 2048 * 896), (SRD_DBG, 80, 256), (SRD_WPHI, 68, 16 * 1568)))
    S(f's_mov_b64 s[{sKA_QKV}:{sKA_QKV+1}], s[66:67]\ns_mov_b64 s[{sKA_W1}:{sKA_W1+1}], s[74:75]')

TAGW = 320
def tag_fetch_l0(S):
    a, b = newlab('tf'), newlab('tf')
    S(f's_cmp_lg_u32 s{sW4}, 0\ns_cbranch_scc1 {b}')
    raw(S, f's_mov_b32 s{sBND}, 0\nv_mov_b32 v15, 0\n{a}:\nbuffer_load_dword v14, v15, {srd(SRD_DBG)}, 0 offen sc1\ns_waitcnt vmcnt(0)\nv_readfirstlane_b32 s{sTAG}, v14\ns_add_u32 s{sBND}, s{sBND}, 1\n'
           f's_max_u32 s{sCNT}, s{sBND}, 0x20000\ns_sub_u32 s{sCNT}, s{sCNT}, 0x20000\ns_or_b32 s{sTAG}, s{sTAG}, s{sCNT}\ns_cmp_eq_u32 s{sTAG}, 0\ns_cbranch_scc1 {a}\n'
           f'v_mov_b32 v14, s{sTAG}\ns_mov_b64 exec, 15\nds_write_b32 v{vLC}, v14 offset:{TAGW}\ns_mov_b64 exec, -1\ns_waitcnt lgkmcnt(0)\n{b}:')
def ltag_issue(S):
    S(f'v_mov_b32 v197, 0\nbuffer_load_dword v198, v197, {srd(SRD_DBG)}, 0 offen sc1')
def ltag_get(S):
    a, b = newlab('tf'), newlab('tf')
    S(f'v_readfirstlane_b32 s{sTAG}, v198\ns_cmp_lg_u32 s{sTAG}, 0\ns_cbranch_scc1 {b}')
    raw(S, f's_mov_b32 s{sBND}, 0\n{a}:\nbuffer_load_dword v198, v197, {srd(SRD_DBG)}, 0 offen sc1\ns_waitcnt vmcnt(0)\nv_readfirstlane_b32 s{sTAG}, v198\ns_add_u32 s{sBND}, s{sBND}, 1\n'
           f's_max_u32 s{sCNT}, s{sBND}, 0x20000\ns_sub_u32 s{sCNT}, s{sCNT}, 0x20000\ns_or_b32 s{sTAG}, s{sTAG}, s{sCNT}\ns_cmp_eq_u32 s{sTAG}, 0\ns_cbranch_scc1 {a}\n{b}:')
    S(f'v_mov_b32 v198, s{sTAG}\nds_write_b32 v{vCTL}, v198 offset:{TAGW}')
def tag_prefetch(S, vt):
    S(f'ds_read_b32 v{vt}, v{vCTL} offset:{TAGW}')
def tag_get(S, vt):
    a, b = newlab('tg'), newlab('tg')
    S(f'v_readfirstlane_b32 s{sTAG}, v{vt}')
    S(f's_cmp_lg_u32 s{sTAG}, 0\ns_cbranch_scc1 {b}')
    raw(S, f'{a}:\nds_read_b32 v{vt}, v{vCTL} offset:{TAGW}\ns_sleep 1\ns_waitcnt lgkmcnt(0)\nv_readfirstlane_b32 s{sTAG}, v{vt}\ns_nop 0\ns_cmp_eq_u32 s{sTAG}, 0\ns_cbranch_scc1 {a}\n{b}:')

def poll(S, voff, soff, nl, vt, sleep=None):
    a, b = newlab('pl'), newlab('pl')
    S(f's_mov_b64 exec, {hex((1 << nl) - 1)}\ns_mov_b32 s{sCNT}, 0')
    S(f'{a}:')
    S(f'buffer_load_dword v{vt}, v{voff}, {srd(SRD_WS)}, s{soff} offen sc1')
    S('s_waitcnt vmcnt(0)')
    S(f'v_cmp_ne_u32 vcc, s{sTAG}, v{vt}')
    S(f's_add_u32 s{sCNT}, s{sCNT}, 1\ns_cbranch_vccz {b}\ns_cmp_gt_u32 s{sCNT}, 0x20000\ns_cbranch_scc1 {b}\ns_sleep {sleep or Opt.sleep}\ns_branch {a}')
    S(f'{b}:')
    S('s_mov_b64 exec, -1')

def flag_store(S, soff, vt, n=1, shift=8):
    for i in range(4): S(f'v_mov_b32 v{vt+i}, s{sTAG}')
    S(f'v_lshrrev_b32 v{vt+4}, 3, v{vLANE}\nv_lshlrev_b32 v{vt+4}, {shift}, v{vt+4}\nv_and_or_b32 v{vt+4}, v{vL16}, s{sM70}, v{vt+4}')
    m = (1 << (8 * n)) - 1
    if n < 8: S(f's_mov_b32 exec_lo, {hex(m & 0xffffffff)}\ns_mov_b32 exec_hi, {hex(m >> 32)}')
    S(f'buffer_store_dwordx4 {v(vt,4)}, v{vt+4}, {srd(SRD_WS)}, s{soff} offen sc1')
    if n < 8: S('s_mov_b64 exec, -1')

def c_signal(ev):
    return [Ins(f'ds_write_b32 v{vCTL}, v{vCTL} offset:{16*ev}')]
def cnt_read(idx, vt):
    return [Ins(f'ds_read_b32 v{vt}, v{vCTL} offset:{128 + 16*idx}')]
def cnt_check(idx, vt, sleep=0):
    S = Stream(); a, b = newlab('ck'), newlab('ck')
    S(f'v_readfirstlane_b32 s{sCNT}, v{vt}\ns_cmp_ge_u32 s{sCNT}, 4\ns_cbranch_scc1 {b}')
    raw(S, f's_mov_b32 s{sBND}, 0\n{a}:\nds_read_b32 v{vt}, v{vCTL} offset:{128 + 16*idx}\ns_add_u32 s{sBND}, s{sBND}, 1\ns_cmp_gt_u32 s{sBND}, 0x40000\ns_cbranch_scc1 {b}\ns_sleep {sleep}\ns_waitcnt lgkmcnt(0)\nv_readfirstlane_b32 s{sCNT}, v{vt}\ns_nop 0\ns_cmp_lt_u32 s{sCNT}, 4\ns_cbranch_scc1 {a}\n{b}:')
    return S.l
def c_allflags(ev, vt, va):
    S = Stream(); a, b = newlab('cf'), newlab('cf')
    S(f'v_mov_b32 v{va}, {CTL}\nds_read_b128 v[{vt}:{vt+3}], v{va} offset:{16*ev}')
    S2 = Stream()
    S2(f'v_min3_u32 v{vt}, v{vt}, v{vt+1}, v{vt+2}\nv_min_u32 v{vt}, v{vt}, v{vt+3}\nv_readfirstlane_b32 s{sCNT}, v{vt}\ns_cmp_lg_u32 s{sCNT}, 0\ns_cbranch_scc1 {b}')
    raw(S2, f's_mov_b32 s{sBND}, 0\n{a}:\nds_read_b128 v[{vt}:{vt+3}], v{va} offset:{16*ev}\ns_add_u32 s{sBND}, s{sBND}, 1\ns_cmp_gt_u32 s{sBND}, 0x40000\ns_cbranch_scc1 {b}\ns_waitcnt lgkmcnt(0)\n'
            f'v_min3_u32 v{vt}, v{vt}, v{vt+1}, v{vt+2}\nv_min_u32 v{vt}, v{vt}, v{vt+3}\ns_nop 0\nv_readfirstlane_b32 s{sCNT}, v{vt}\ns_nop 0\ns_cmp_eq_u32 s{sCNT}, 0\ns_cbranch_scc1 {a}\n{b}:')
    return S.l, S2.l
vLC, vLONE, vLP = 11, 12, 188
def l_signal(S, idx):
    S(f's_mov_b64 exec, 15\nds_add_u32 v{vLC}, v{vLONE} offset:{128 + 16*idx}\ns_mov_b64 exec, -1')
def l_wait(S, ev, vLP=vLP):
    a, b = newlab('lw'), newlab('lw')
    S('s_waitcnt lgkmcnt(0)')
    raw(S, f's_mov_b32 s{sBND}, 0\n{a}:\nds_read_b128 v[{vLP}:{vLP+3}], v{vLP+4} offset:{16*ev}\ns_add_u32 s{sBND}, s{sBND}, 1\ns_cmp_gt_u32 s{sBND}, 0x40000\ns_cbranch_scc1 {b}\ns_sleep {Opt.lsleep}\ns_waitcnt lgkmcnt(0)\nv_min3_u32 v{vLP}, v{vLP}, v{vLP+1}, v{vLP+2}\nv_min_u32 v{vLP}, v{vLP}, v{vLP+3}\ns_nop 0\nv_readfirstlane_b32 s{sCNT}, v{vLP}\ns_nop 0\ns_cmp_eq_u32 s{sCNT}, 0\ns_cbranch_scc1 {a}\n{b}:\ns_waitcnt lgkmcnt(0)')

X0 = 16; ACC = [[128, 144], [160, 176]]; AF = 192; WPHI = 224; T = 240; U = 224; TT = 248; NR = 4
vVA = [3, 4]; vWA = [5, 6]; vVS = 7; vR, vRM, vNRL, vSD, vCT, vNM = 8, 9, 10, 11, 12, 13; vTAG = 14

def lane_consts_tr(S, dst, tmp, cstride, rowmap):
    t0, t1, t2 = tmp, tmp + 1, tmp + 2
    S(f'v_bfe_u32 v{t0}, v{vLANE}, 2, 2')
    S(f'v_lshrrev_b32 v{t1}, 5, v{vLANE}')
    S(f'v_lshlrev_b32 v{t1}, {10 if rowmap == "A" else 9}, v{t1}\nv_lshl_add_u32 v{t1}, v{t0}, 7, v{t1}')
    S(f'v_bfe_u32 v{t0}, v{vLANE}, 3, 1\nv_lshlrev_b32 v{t0}, 6, v{t0}')
    S(f'v_bfe_u32 v{t2}, v{vLANE}, 4, 1\nv_lshlrev_b32 v{t2}, 5, v{t2}\nv_and_b32 v{dst[0]}, 3, v{vLANE}\nv_lshl_add_u32 v{t2}, v{dst[0]}, 3, v{t2}')
    S(f'v_xor_b32 v{dst[0]}, v{t2}, v{t0}\nv_add_u32 v{dst[0]}, v{dst[0]}, v{t1}')
    S(f'v_add_u32 v{t2}, {cstride}, v{t2}\nv_xor_b32 v{dst[1]}, v{t2}, v{t0}\nv_add_u32 v{dst[1]}, v{dst[1]}, v{t1}')

def trb(St, dst, hfshift, pitch, tmp):
    St(f'v_lshrrev_b32 v{tmp}, 5, v{vLANE}\nv_lshlrev_b32 v{tmp}, {hfshift}, v{tmp}\nv_bfe_u32 v{dst}, v{vLANE}, 2, 2\nv_add_u32 v{tmp}, v{tmp}, v{dst}\nv_mul_u32_u24 v{dst}, {pitch}, v{tmp}')
    St(f'v_bfe_u32 v{tmp}, v{vLANE}, 4, 1\nv_lshl_add_u32 v{dst}, v{tmp}, 5, v{dst}\nv_and_b32 v{tmp}, 3, v{vLANE}\nv_lshl_add_u32 v{dst}, v{tmp}, 3, v{dst}')

def wrap_inc(S, reg, inc, lim):
    S(f's_add_u32 s{reg}, s{reg}, {inc}\ns_cmp_eq_u32 s{reg}, {lim}\ns_cselect_b32 s{reg}, 0, s{reg}')

def c_load_x(S):
    a, b = T, T + 1
    S(f'v_lshrrev_b32 v{T+2}, 3, v{vLANE}\nv_mul_u32_u24 v{a}, 896, v{T+2}')
    S(f'v_lshrrev_b32 v{T+2}, 4, v{vLANE}\nv_and_b32 v{T+3}, 7, v{vLANE}\nv_xor_b32 v{T+2}, v{T+2}, v{T+3}\nv_lshl_add_u32 v{a}, v{T+2}, 4, v{a}\nv_xor_b32 v{b}, 64, v{a}')
    S(f'v_add_u32 v{b}, {8*896}, v{b}\nv_add_u32 v{T+2}, {16*896}, v{a}\nv_add_u32 v{T+3}, {16*896}, v{b}')
    sXB, sXL, sXR, sXO = sFT, sFS, sCOL[0], sCOL[1]
    S(f's_lshl_b32 s{sXB}, s{sRB}, 2\ns_add_u32 s{sXB}, s{sXB}, s{sWAVE}\ns_mul_i32 s{sXB}, s{sXB}, {32*896}')
    S(f's_mul_i32 s{sXL}, s{sWAVE}, {SLOT}\ns_lshl_b32 s{sXR}, s{sROT1}, 7')
    S(f's_mov_b32 s{SRD_X+2}, {2048*896}\ns_mov_b32 s{SRD_X+3}, 0x20000')
    stamp(S, 'e3')
    S(f's_waitcnt lgkmcnt(0)\ns_mov_b64 s[{SRD_X}:{SRD_X+1}], s[64:65]')
    stamp(S, 'e4')
    def xdma(lc):
        S(f's_add_u32 s{sXO}, s{sXB}, s{sXR}')
        for g in range(4):
            S(f's_add_u32 m0, s{sXL}, {lc*4096 + g*1024}')
            if g == 0 and lc < 6: wrap_inc(S, sXR, 128, 896)
            S(f'buffer_load_dwordx4 v{T+g}, {srd(SRD_X)}, s{sXO} offen lds', tok=('x', lc))
    for lc in range(Opt.xpipe): xdma(lc)
    decode2(S)
    mk_srd(S, ((SRD_WS, 82, WS_SIZE), (SRD_OUT, 78, 2048 * 896), (SRD_WO, 70, 448 * 896)))
    if Opt.xpipe >= 7: S('s_barrier')
    sT1_ = sXL
    stamp(S, 'e5')
    xa = T + 4
    S(f'v_and_b32 v{TT}, 31, v{vLANE}\nv_bfe_u32 v{TT+1}, v{vLANE}, 1, 3\nv_lshrrev_b32 v{xa}, 5, v{vLANE}\nv_xor_b32 v{TT+1}, v{TT+1}, v{xa}')
    S(f'v_lshlrev_b32 v{TT+1}, 4, v{TT+1}\nv_lshl_add_u32 v{xa}, v{TT}, 7, v{TT+1}\nv_add_u32 v{xa}, s{sXL}, v{xa}')
    for q in range(1, 4): S(f'v_xor_b32 v{xa+q}, {q*32}, v{xa}')
    S(f's_mov_b32 s{sSEL_LO}, 0x00003f80\ns_mov_b32 s{sSEL_HI}, 0x3f800000')
    S(f's_cmp_ge_u32 s{sROLE}, 8\ns_cselect_b32 s{sT0}, 56, 64')
    lane_consts_tr(S, vVA, TT, f's{sT0}', 'A')
    sA, sB, qA, qB, one = U, U + 1, U + 2, U + 3, U + 4
    S(f'v_mov_b32 v{sA}, 0\nv_mov_b32 v{sB}, 0\nv_mov_b32 v{qA}, 0\nv_mov_b32 v{qB}, 0\nv_mov_b32 v{one}, 0x3f803f80')
    def stats(lc):
        for q in range(4):
            for j in range(4):
                r = X0 + (lc * 4 + q) * 4 + j
                S(f'v_dot2c_f32_bf16 v{sA + (j & 1)}, v{r}, v{one}\nv_dot2c_f32_bf16 v{qA + (j & 1)}, v{r}, v{r}')
    for lc in range(7):
        S.wait(('x', lc))
        if lc in (0, 3, 6): stamp(S, 'e%d' % (6 + lc // 3))
        for q in range(4):
            S(f'ds_read_b128 {v(X0 + (lc*4+q)*4, 4)}, v{xa+q} offset:{lc*4096}')
        if lc == 6: S.ext(c_signal(EV_XFREE))
        if lc + Opt.xpipe < 7: xdma(lc + Opt.xpipe)
        if lc + Opt.xpipe == Opt.xbar: S('s_barrier')
        if lc > 0: stats(lc - 1)
    stamp(S, 1)
    stats(6)
    t = U + 5
    S(f'v_add_f32 v{sA}, v{sA}, v{sB}\nv_add_f32 v{qA}, v{qA}, v{qB}\nv_mov_b32 v{sB}, v{sA}\nv_mov_b32 v{qB}, v{qA}')
    S(f'v_permlane32_swap_b32 v{sA}, v{sB}\nv_permlane32_swap_b32 v{qA}, v{qB}')
    S(f'v_add_f32 v{sA}, v{sA}, v{sB}\nv_add_f32 v{qA}, v{qA}, v{qB}')
    inv = hx(f2u(1.0 / 448))
    S(f'v_mul_f32 v{sA}, {inv}, v{sA}\nv_mul_f32 v{qA}, {inv}, v{qA}')
    S(f'v_fma_f32 v{qA}, -v{sA}, v{sA}, v{qA}\nv_max_f32 v{qA}, 0, v{qA}')
    S(f'v_cvt_pk_bf16_f32 v{t}, v{sA}, v{qA}')
    S(f'v_lshlrev_b32 v{vNM}, 16, v{t}\nv_xor_b32 v{vNM}, 0x80000000, v{vNM}')
    R = Stream()
    R(f'v_and_b32 v{qA}, 0xffff0000, v{t}\nv_add_f32 v{qA}, {hx(f2u(1e-5))}, v{qA}')
    R(f'v_cvt_pk_bf16_f32 v{t}, v{qA}, v{qA}\nv_and_b32 v{qA}, 0xffff0000, v{t}\nv_sqrt_f32 v{qA}, v{qA}')
    R(f'v_nop\nv_cvt_pk_bf16_f32 v{t}, v{qA}, v{qA}\nv_and_b32 v{vSD}, 0xffff0000, v{t}\nv_rcp_f32 v{vR}, v{vSD}')
    R(f'v_nop\nv_mul_f32 v{vNRL}, {hx(f2u(-L2E))}, v{vR}\nv_cndmask_b32 v{vRM}, v{vR}, 0, {HI}')
    return R.l

def center(s):
    S = Stream()
    for j in range(4):
        r = X0 + s * 4 + j
        a, b = TT + 2 * j, TT + 2 * j + 1
        S(f'v_dot2_f32_bf16 v{a}, v{r}, s{sSEL_LO}, v{vNM}\nv_dot2_f32_bf16 v{b}, v{r}, s{sSEL_HI}, v{vNM}')
    for j in range(4):
        r = X0 + s * 4 + j
        S(f'v_cvt_pk_bf16_f32 v{r}, v{TT+2*j}, v{TT+2*j+1}')
    return S.l
def center5(s):
    S = Stream()
    for j in range(4):
        r = X0 + s * 4 + j
        a, b = TT + 2 * j, TT + 2 * j + 1
        S(f'v_lshlrev_b32 v{a}, 16, v{r}\nv_and_b32 v{b}, 0xffff0000, v{r}\nv_add_f32 v{a}, v{a}, v{vNM}\nv_add_f32 v{b}, v{b}, v{vNM}')
        S(f'v_cvt_pk_bf16_f32 v{r}, v{a}, v{b}')
    return S.l

def silu_tile(acc, u, soff, tok):
    S = Stream()
    for g in range(4):
        a = acc + 4 * g
        for i in range(4): S(f'v_mul_f32 v{TT+i}, v{a+i}, v{vNRL}')
        for i in range(4): S(f'v_exp_f32 v{TT+i}, v{TT+i}')
        for i in range(4): S(f'v_fma_f32 v{TT+i}, v{TT+i}, v{vSD}, v{vSD}')
        for i in range(4): S(f'v_rcp_f32 v{TT+i}, v{TT+i}')
        for i in range(4): S(f'v_mul_f32 v{TT+4+i}, v{a+i}, v{TT+i}')
        S(f'v_cvt_pk_bf16_f32 v{u+2*g}, v{TT+4}, v{TT+5}\nv_cvt_pk_bf16_f32 v{u+2*g+1}, v{TT+6}, v{TT+7}')
        if g % 2 == 1:
            S(f'buffer_store_dwordx4 {v(u + 4*(g//2), 4)}, v{vL16}, {srd(SRD_WS)}, s{soff[0]} offen offset:{soff[1] + 1024*(g//2)} sc1', tok=tok)
    return S.l

def part(f, s, lo, hi):
    n = len(f); k = hi - lo + 1
    return f[(s - lo) * n // k:(s - lo + 1) * n // k]

CN_H1B = 14
class Steps:
    def __init__(self, single):
        self.steps = []
        for st in range(3):
            for s in range(28):
                h = st * 2 + s // 14; sp = s % 14
                p = dict(st=st, s=s, nt=2, h=h, off=sp * 2048, first=(sp == 0), last=(sp == 13), base=half_base(h), cn=h)
                if h == 1:
                    if sp < 8: p.update(base=SPARE, h1a=(sp == 7))
                    else: p.update(base=0, off=(sp - 8) * 2048, first=(sp == 8), cn=CN_H1B)
                self.steps.append(p)
        if single:
            for s in range(28):
                self.steps.append(dict(st=3, s=s, nt=1, h=6, off=s * K1, first=(s == 0), last=False, cn=6))
    def reads(self, n):
        if n >= len(self.steps): return [], []
        p = self.steps[n]; S = Stream(); pre = Stream()
        ring = AF + (n % NR) * 8
        if p['first']:
            pre.ext(cnt_check(p['cn'], vCT))
            if p['nt'] == 2:
                b = p['base']
                pre(f'v_add_u32 v{vWA[0]}, {b}, v{vVA[0]}\nv_add_u32 v{vWA[1]}, {b}, v{vVA[1]}')
        if p['nt'] == 2:
            for c in range(2):
                for u in range(2):
                    S(f'ds_read_b64_tr_b16 {v(ring + 4*c + 2*u, 2)}, v{vWA[c]} offset:{p["off"] + 512*u}', tok=('a', n))
        else:
            for u in range(2):
                S(f'ds_read_b64_tr_b16 {v(ring + 2*u, 2)}, v{vVS} offset:{p["off"] + 256*u}', tok=('a', n))
        if p['last'] and p['h'] < 4: S.ext(c_signal(EV_C0 + p['h']))
        if n + 3 < len(self.steps) and self.steps[n + 3]['first']:
            S.ext(cnt_read(self.steps[n + 3]['cn'], vCT))
        return pre.l, S.l
    def mfmas(self, n):
        p = self.steps[n]; ring = AF + (n % NR) * 8; out = []
        for c in range(p['nt']):
            acc = ACC[p['st'] % 2][c]
            C = '0' if p['s'] == 0 else v(acc, 16)
            out.append(Ins(f'v_mfma_f32_32x32x16_bf16 {v(acc,16)}, {v(ring+4*c,4)}, {v(X0+4*p["s"],4)}, {C}'))
        return out
    def stage(self, st, fill=None, perstep=None, mid=None):
        idx = [n for n, p in enumerate(self.steps) if p['st'] == st]
        groups = []
        for n in idx:
            p = self.steps[n]
            rd = self.reads(n + NR - 1)[1]
            pre = self.reads(n + NR)[0]
            m = self.mfmas(n)
            g = []
            if Opt.fine == st and p['s'] % 2 == 0 and p['s'] < 26: g.append(RAW(f's_memtime s[{72+p["s"]}:{73+p["s"]}]'))
            if mid and p['s'] in mid: g += mid[p['s']]
            on = p['s'] > 0 or perstep
            w = Stream(); w.wait(('a', n + 1))
            k = 2 if pre else 5
            if p['nt'] == 2:
                g += [m[0]] + rd + ([None] * 2 if on else []) + [m[1]] + w.l + ([None] * k if on else []) + pre
            else:
                g += [m[0]] + rd + ([None] * 3 if on else [])
            if perstep: g = interleave([g], perstep(p['s']))
            if Opt.fine == st and p['s'] == 27: g.append(RAW('s_memtime s[98:99]'))
            groups.append(g)
        if perstep: return [x for g in groups for x in g]
        return interleave(groups, fill)

def c_common(S):
    if Opt.cprio: S('s_setprio 2')
    rest = c_load_x(S)
    S.ext(cnt_read(0, vCT))
    for s in range(Opt.ncen): S.ext(center(s))
    P = Steps(True)
    for n in range(NR - 1):
        pre, rd = P.reads(n); S.ext(pre); S.ext(rd)
    stamp(S, 2)
    f = []
    for s in range(Opt.ncen, 28): f += center5(s)
    S.ext(P.stage(0, perstep=lambda s: part(f, s, 0, 25) if s < 26 else (rest if s == 26 else [])))
    stamp(S, 3)

def c_ffn(S):
    P = Steps(True)
    e = Stream(); t = T
    trb(e, vVS, 3, 64, t)
    e(f's_lshl_b32 s{sT0}, s{sRB}, 2\ns_add_u32 s{sT0}, s{sT0}, s{sWAVE}\ns_mul_i32 s{sT0}, s{sT0}, {112*K1}\ns_add_u32 s{sT0}, s{sT0}, {WS_H}')
    e(f's_mul_i32 s{sT1}, s{sIDX}, 7\ns_and_b32 s{sT2}, s{sIDX}, 1\ns_add_u32 s{sT3}, s{sT1}, s{sT2}\ns_lshl_b32 s{sT3}, s{sT3}, 11\ns_add_u32 s{sFT}, s{sT0}, s{sT3}')
    e(f's_mul_i32 s{sT2}, s{sT2}, 6\ns_sub_u32 s{sT1}, s{sT1}, s{sT2}\ns_add_u32 s{sT1}, s{sT1}, 6\ns_lshl_b32 s{sT1}, s{sT1}, 11\ns_add_u32 s{sFS}, s{sT0}, s{sT1}')
    for st in (1, 2, 3):
        pa = ACC[(st - 1) % 2]
        fill = (e.l if st == 1 else []) + [Ins(f's_add_u32 s{sT0}, s{sFT}, {(st-1)*4096}')]
        fill += silu_tile(pa[0], T, (sT0, 0), 'st') + silu_tile(pa[1], U, (sT0, 2048), 'st')
        if st == 3:
            t = Stream(); tag_prefetch(t, vTAG); fill = fill + t.l
        S.ext(P.stage(st, fill))
        stamp(S, 3 + st)
    S.ext(silu_tile(ACC[1][0], T, (sFS, 0), 'st'))

def minmax(S, X, mx, mn, t0, t1):
    for op, d in (('v_max3_f32', mx), ('v_min3_f32', mn)):
        S(f'{op} v{d}, v{X}, v{X+1}, v{X+2}')
        for i in range(3, 15, 2): S(f'{op} v{d}, v{d}, v{X+i}, v{X+i+1}')
    S(f'v_max_f32 v{mx}, v{mx}, v{X+15}\nv_min_f32 v{mn}, v{mn}, v{X+15}')
    S(f'v_mov_b32 v{t0}, v{mx}\nv_mov_b32 v{t1}, v{mn}\nv_permlane32_swap_b32 v{mx}, v{t0}\nv_permlane32_swap_b32 v{mn}, v{t1}')
    S(f'v_max_f32 v{mx}, v{mx}, v{t0}\nv_min_f32 v{mn}, v{mn}, v{t1}')
    S(f'v_mul_f32 v{mx}, {hx(f2u(-L2E))}, v{mx}\nv_mul_f32 v{mn}, {hx(f2u(L2E))}, v{mn}')

LX, LE, LT = 144, 160, 176
vLPW, vLMK, vLL2E, vLRD, vLWP = 185, 184, 186, 187, 193
def softmax_body(S, X, E0, tmp, l2e, pw, off, hook0=None):
    for i in range(4): S(f'v_cndmask_b32 v{X+12+i}, v{X+12+i}, v{X+8+i}, {HI}')
    mx, mn, t0, t1 = tmp, tmp + 2, tmp + 1, tmp + 3
    minmax(S, X, mx, mn, t0, t1)
    for sign in range(2):
        E = E0 if sign == 0 else X
        s0, s1 = tmp + 4, tmp + 5
        for i in range(16):
            if sign == 0: S(f'v_fma_f32 v{E+i}, v{X+i}, {l2e}, v{mx}')
            else: S(f'v_fma_f32 v{E+i}, -v{X+i}, {l2e}, v{mn}')
        for i in range(16): S(f'v_exp_f32 v{E+i}, v{E+i}')
        S(f'v_add_f32 v{s1}, v{E+12}, v{E+13}\nv_add_f32 v{s0}, v{E}, v{E+1}\nv_add_f32 v{s1}, v{s1}, v{E+14}')
        S(f'v_add_f32 v{s0}, v{s0}, v{E+2}\nv_add_f32 v{s1}, v{s1}, v{E+15}\nv_add_f32 v{s0}, v{s0}, v{E+3}\nv_cndmask_b32 v{s1}, v{s1}, 0, {HI}')
        for i in range(4, 12): S(f'v_add_f32 v{s0 + (i & 1)}, v{s0 + (i & 1)}, v{E+i}')
        S(f'v_add_f32 v{s0}, v{s0}, v{s1}\nv_mov_b32 v{s1}, v{s0}\nv_permlane32_swap_b32 v{s0}, v{s1}\nv_add_f32 v{s0}, v{s0}, v{s1}\nv_rcp_f32 v{s0}, v{s0}')
        for i in range(16): S(f'v_mul_f32 v{E+i}, v{E+i}, v{s0}')
        for i in range(8): S(f'v_cvt_pk_bf16_f32 v{E+i}, v{E+2*i}, v{E+2*i+1}')
        for qd in range(3):
            S(f'ds_write_b64 v{pw}, {v(E+2*qd, 2)} offset:{off + sign*56 + qd*16}')
        g = Stream(); g(f's_mov_b64 exec, 0xffffffff\nds_write_b64 v{pw}, {v(E+6, 2)} offset:{off + sign*56 + 48}\ns_mov_b64 exec, -1')
        S.l.append(Group(g.l))
        if sign == 0 and hook0: S.ext(hook0)

def softmax_k(hook0):
    S = Stream()
    rw = LE
    S(f'ds_read_b128 {v(rw,4)}, v{vLRD}\nds_read_b128 {v(rw+4,4)}, v{vLRD} offset:1024')
    for st in range(2):
        for u in range(2):
            S(f'ds_read_b64_tr_b16 {v(rw + 8 + 4*st + 2*u, 2)}, v{vLWP} offset:{(16*st + 8*u)*56}')
    S(f'v_mfma_f32_32x32x16_bf16 {v(LX,16)}, {v(rw+8,4)}, {v(rw,4)}, 0')
    S(f'v_mfma_f32_32x32x16_bf16 {v(LX,16)}, {v(rw+12,4)}, {v(rw+4,4)}, {v(LX,16)}')
    softmax_body(S, LX, LE, LT, f'v{vLL2E}', vLPW, 0, hook0)
    return S.l

def scale_pack(acc, dst, masked=True):
    S = Stream()
    for i in range(16): S(f'v_mul_f32 v{acc+i}, v{acc+i}, v{vRM if (masked and i >= 12) else vR}')
    for i in range(8): S(f'v_cvt_pk_bf16_f32 v{dst+i}, v{acc+2*i}, v{acc+2*i+1}')
    return S.l

def phi_mfma(acc, c, b):
    return [Ins(f'v_mfma_f32_32x32x16_bf16 {v(acc,16)}, {v(WPHI+8*c,4)}, {v(b,4)}, 0'),
            Ins(f'v_mfma_f32_32x32x16_bf16 {v(acc,16)}, {v(WPHI+8*c+4,4)}, {v(b+4,4)}, {v(acc,16)}')]

def c_attn(S):
    vHO, vVW, vWP = vVS, vNRL, vSD
    P = Steps(False)
    e = Stream(); t = TT
    trb(e, vWP, 2, 56, t)
    e(f'v_add_u32 v{vWP}, {WPHI_L}, v{vWP}')
    for c in range(2):
        for st in range(2):
            for u in range(2):
                e(f'ds_read_b64_tr_b16 {v(WPHI + 8*c + 4*st + 2*u, 2)}, v{vWP} offset:{c*1568 + (16*st + 8*u)*56}')
    ka = ACC[0]
    vPW = vNM
    h0 = Stream()
    h0(f's_lshl_b32 s{sT0}, s{sWAVE}, 12\ns_add_u32 s{sT0}, s{sT0}, {SPARE}\nv_add_u32 v{vHO}, s{sT0}, v{vL16}')
    h0.ext(scale_pack(ka[0], T))
    h0(f'ds_write_b128 v{vHO}, {v(T,4)}\nds_write_b128 v{vHO}, {v(T+4,4)} offset:1024')
    f1 = h0.l + c_signal(EV_PK)
    f1b = e.l + scale_pack(ka[1], T)
    sm = Stream(); softmax_body(sm, ka[1], ka[0], TT, f's{sL2E}', vPW, 14336)
    t = Stream()
    t(f'v_and_b32 v{TT+3}, 31, v{vLANE}\ns_lshl_b32 s{sT0}, s{sWAVE}, 5\nv_add_u32 v{TT+3}, s{sT0}, v{TT+3}\nv_lshrrev_b32 v{TT+4}, 5, v{vLANE}\nv_lshlrev_b32 v{TT+4}, 3, v{TT+4}')
    t(f'v_mul_u32_u24 v{vVW}, 72, v{TT+3}\nv_add_u32 v{vVW}, v{vVW}, v{TT+4}\nv_add_u32 v{vVW}, {SLOT}, v{vVW}')
    t(f'v_mul_u32_u24 v{vPW}, 112, v{TT+3}\nv_add_u32 v{vPW}, v{vPW}, v{TT+4}')
    f3 = t.l
    g1, g2 = c_allflags(EV_C2, T, T + 4)
    k1, k2 = c_allflags(EV_C1, TT, TT + 4)
    f1 = k1 + f1
    assert all(not x.op.startswith('ds_write') for x in part(f1, 1, 1, 4) + part(f1, 2, 1, 4))
    f2 = f1b + f3
    def ps1(s):
        if 1 <= s <= 4: return part(f1, s, 1, 4)
        if 5 <= s <= 9: return part(f2, s, 5, 9)
        if 11 <= s <= 27: return part(sm.l, s, 11, 27) + (g1 if s == 24 else [])
        return []
    S.ext(P.stage(1, perstep=ps1, mid={3: k2, 10: phi_mfma(ka[1], 1, T), 27: g2}))
    stamp(S, 4)
    va = ACC[1]
    t = Stream()
    for c in range(2):
        t.ext(scale_pack(va[c], T, masked=False))
        d = T
        t(f'v_cndmask_b32 v{d+6}, v{d+6}, v{TT}, {HI}\nv_cndmask_b32 v{d+7}, v{d+7}, 0, {HI}')
        for qd in range(4): t(f'ds_write_b64 v{vVW}, {v(d+2*qd, 2)} offset:{c*9216 + qd*16}')
    vfill = [Ins(f'v_mov_b32 v{TT}, 0x3f80')] + t.l + c_signal(EV_V)
    tp = Stream(); tag_prefetch(tp, vTAG)
    def ps2(s):
        if 1 <= s <= Opt.vsteps: return part(vfill, s, 1, Opt.vsteps)
        if s == 20: return tp.l
        return []
    S.ext(P.stage(2, perstep=ps2))
    stamp(S, 5)
    S.ext(c_signal(EV_END))
    qa = ACC[0]
    S(f'v_mov_b32 v{TT}, s{sL2E}')
    S.ext(scale_pack(qa[0], T)); S.ext(phi_mfma(qa[0], 0, T)); S.ext(scale_pack(qa[1], AF + 16)); S.ext(phi_mfma(qa[1], 1, AF + 16))
    out_addr(S, XT, 32)
    for c in range(2):
        X = qa[c]; E = va[c]; d = AF + 16 * c
        for i in range(4): S(f'v_cndmask_b32 v{X+12+i}, v{X+12+i}, v{X+8+i}, {HI}')
        mx, mn = TT + 4, TT + 6
        minmax(S, X, mx, mn, TT + 5, TT + 7)
        for i in range(0, 16, 2): S(f'v_pk_fma_f32 {v(E+i,2)}, {v(X+i,2)}, {v(TT,2)}, {v(mx,2)} op_sel_hi:[1,0,0]')
        for i in range(16): S(f'v_exp_f32 v{E+i}, v{E+i}')
        for i in range(8): S(f'v_cvt_pk_bf16_f32 v{d+i}, v{E+2*i}, v{E+2*i+1}')
        for i in range(0, 16, 2): S(f'v_pk_fma_f32 {v(X+i,2)}, {v(X+i,2)}, {v(TT,2)}, {v(mn,2)} op_sel_hi:[1,0,0] neg_lo:[1,0,0] neg_hi:[1,0,0]')
        for i in range(16): S(f'v_exp_f32 v{X+i}, v{X+i}')
        for i in range(8): S(f'v_cvt_pk_bf16_f32 v{d+8+i}, v{X+2*i}, v{X+2*i+1}')
    stamp(S, 6)
    if Opt.oprio: S('s_setprio 2')
    tag_get(S, vTAG)
    PB, KF = 16, 160
    S(f's_lshl_b32 s{sT0}, s{sIDX}, 10\ns_add_u32 s{sT0}, s{sT0}, {WS_FK}\ns_lshl_b32 s{sT1}, s{sIDX}, 13\ns_add_u32 s{sT1}, s{sT1}, {WS_KVF}\ns_add_u32 s{sT2}, s{sT1}, 4096')
    S(f's_lshl_b32 s{sFS}, s{sRB}, 2\ns_add_u32 s{sFS}, s{sFS}, s{sWAVE}\ns_lshl_b32 s{sFS}, s{sFS}, 3\ns_add_u32 s{sFS}, s{sFS}, s{sIDX}\ns_lshl_b32 s{sFS}, s{sFS}, 12\ns_add_u32 s{sFS}, s{sFS}, {WS_PQ}')
    S(f'v_lshlrev_b32 v8, 7, v{vLANE}\nv_lshlrev_b32 v13, 2, v{vLANE}\nv_add_u32 v13, {CTL}, v13\nv_mov_b32 v9, 4')
    g_ = CN_W2 if False else CN_KG
    S.ext(cnt_read(g_, vCT)); S.ext(cnt_check(g_, vCT, 1))
    stamp(S, 8)
    again, oth, done = newlab('kv'), newlab('kv'), newlab('kv')
    S(f's_waitcnt vmcnt(0)\ns_mov_b32 s{sBND}, 0\ns_cmp_lg_u32 s{sW4}, 0\ns_cbranch_scc1 {oth}')
    raw(S, f'{again}:\ns_mov_b64 exec, 0xff\nbuffer_load_dword v10, v8, {srd(SRD_WS)}, s{sT0} offen sc1\ns_waitcnt vmcnt(0)\nv_cmp_ne_u32 vcc, s{sTAG}, v10\ns_nop 1\ns_cbranch_vccz {done}\n'
           f's_add_u32 s{sBND}, s{sBND}, 1\ns_cmp_gt_u32 s{sBND}, 0x20000\ns_cbranch_scc1 {done}\ns_sleep {Opt.rsleep}\ns_branch {again}\n'
           f'{done}:\ns_mov_b64 exec, 15\nds_write_b32 v13, v9 offset:{128 + 16*CN_KV}\ns_mov_b64 exec, -1\n{oth}:')
    S.ext(cnt_read(CN_KV, vCT)); S.ext(cnt_check(CN_KV, vCT, 0))
    stamp(S, 9)
    for j in range(8):
        S(f'buffer_load_dwordx4 {v(KF+4*j,4)}, v{vL16}, {srd(SRD_WS)}, s{sT1 + j//4} offen offset:{(j%4)*1024} sc1')
    for c in range(2):
        S.ext(num_mfma(PB + 32 * c, KF + 16 * c, AF + 16 * c))
    for c in range(2):
        S.ext(onorm(PB + 32 * c, AF + 16 * c))
        for hh in range(2):
            S(f'buffer_store_dwordx4 {v(AF+16*c+4*hh,4)}, v{vL16}, {srd(SRD_WS)}, s{sFS} offen offset:{c*2048 + hh*1024} sc1', tok='st')
    stamp(S, 10)

def num_mfma(aP, kb, ph):
    aN = aP + 16
    return [Ins(f'v_mfma_f32_32x32x16_bf16 {v(aP,16)}, {v(kb,4)}, {v(ph,4)}, 0'),
            Ins(f'v_mfma_f32_32x32x16_bf16 {v(aN,16)}, {v(kb+8,4)}, {v(ph+8,4)}, 0'),
            Ins(f'v_mfma_f32_32x32x16_bf16 {v(aP,16)}, {v(kb+4,4)}, {v(ph+4,4)}, {v(aP,16)}'),
            Ins(f'v_mfma_f32_32x32x16_bf16 {v(aN,16)}, {v(kb+12,4)}, {v(ph+12,4)}, {v(aN,16)}')]
def onorm(aP, ph):
    S = Stream()
    aN = aP + 16
    rP, rN, dn, a, b = TT, TT + 1, TT + 2, TT + 3, TT + 4
    S(f'v_rcp_f32 v{rP}, v{aP+13}\nv_rcp_f32 v{rN}, v{aN+13}')
    S(f'v_mov_b32 v{dn}, {hx(f2u(1e-6))}\nv_fmac_f32 v{dn}, v{aP+12}, v{rP}\nv_fmac_f32 v{dn}, v{aN+12}, v{rN}\nv_rcp_f32 v{dn}, v{dn}')
    S(f'v_mul_f32 v{rP}, v{rP}, v{dn}\nv_mul_f32 v{rN}, v{rN}, v{dn}\nv_mov_b32 v{a}, v{rP}\nv_mov_b32 v{b}, v{rN}')
    S(f'v_permlane32_swap_b32 v{rP}, v{a}\nv_permlane32_swap_b32 v{rN}, v{b}')
    for i in range(16): S(f'v_mul_f32 v{aP+i}, v{aP+i}, v{a}')
    for i in range(16): S(f'v_fmac_f32 v{aP+i}, v{aN+i}, v{b}')
    for i in range(8): S(f'v_cvt_pk_bf16_f32 v{ph+i}, v{aP+2*i}, v{aP+2*i+1}')
    S(f'v_cndmask_b32 v{ph+6}, v{ph+6}, 0, {HI}\nv_cndmask_b32 v{ph+7}, v{ph+7}, 0, {HI}')
    return S.l

def wo_dma(S, va, vb, thr=None):
    S(f's_lshl_b32 s{sT2}, s{sW4}, 14\ns_add_u32 s{sT2}, s{sT2}, {A_BASE}\ns_lshl_b32 s{sU0}, s{sCB}, 7')
    for hd in range(4):
        S(f's_add_u32 s{sT0}, s{sCB}, {hd}\ns_and_b32 s{sT0}, s{sT0}, 3\ns_lshl_b32 s{sT1}, s{sW4}, 2\ns_add_u32 s{sT0}, s{sT0}, s{sT1}\ns_mul_i32 s{sT0}, s{sT0}, {28*896}\ns_add_u32 s{sT0}, s{sT0}, s{sU0}')
        for i in range(4):
            S(f's_add_u32 m0, s{sT2}, {hd*4096 + i*1024}')
            if thr: S(f's_waitcnt vmcnt({thr})')
            if i == 2: S(f's_add_u32 s{sT0}, s{sT0}, {16*896}')
            if hd == 3 and i == 3: S(f's_cmp_eq_u32 s{sW4}, 3\ns_cselect_b32 exec_hi, 0, -1')
            S(f'buffer_load_dwordx4 v{va if i % 2 == 0 else vb}, {srd(SRD_WO)}, s{sT0} offen lds', tok='wo')
    S('s_mov_b64 exec, -1')

PHI = 16; PN = 144; XT = 236
vO = 3; vVW2 = [6, 7]
def out_addr(S, xt, off):
    S(f'v_and_b32 v8, 31, v{vLANE}\nv_mul_u32_u24 v{vO}, 896, v8\nv_lshrrev_b32 v8, 5, v{vLANE}\nv_lshl_add_u32 v{vO}, v8, 4, v{vO}')
    S(f's_and_b32 s{sT0}, s{sW4}, 1\ns_lshl_b32 s{sT1}, s{sTB}, 1\ns_add_u32 s{sT0}, s{sT0}, s{sT1}\ns_mul_i32 s{sFT}, s{sT0}, {32*896}')
    S(f's_lshr_b32 s{sT0}, s{sW4}, 1\ns_lshl_b32 s{sT0}, s{sT0}, 6\ns_add_u32 s{sFT}, s{sFT}, s{sT0}\ns_lshl_b32 s{sT0}, s{sCB}, 7\ns_add_u32 s{sFT}, s{sFT}, s{sT0}')
    S(f'buffer_load_dwordx4 {v(xt,4)}, v{vO}, {srd(SRD_X)}, s{sFT} offen offset:{off}')

def final_half(S, isA, acc, xt):
    own = acc + 48 + (8 if isA else 0)
    oth = acc + 48 + (0 if isA else 8)
    reg = A_REG if isA else F_REG; base = A_BASE if isA else 0
    ho = 2048 if isA else 0
    W = [16, 17, 18, 19]
    S(f's_mul_i32 s{sT3}, s{sW4}, {reg}')
    for vq in range(4):
        S(f's_xor_b32 s{sT0}, s{sW4}, {vq ^ 3}\ns_lshl_b32 s{sT0}, s{sT0}, 12\ns_add_u32 s{sT0}, s{sT0}, s{sT3}\ns_add_u32 s{sT0}, s{sT0}, {base}\nv_add_u32 v{W[vq]}, s{sT0}, v{vL16}')
    for i in range(2):
        S(f'ds_write_b128 v{W[3]}, {v(oth+4*i,4)} offset:{(2048 - ho) + i*1024}')
    for vq in range(3):
        for i in range(4):
            S(f'ds_write_b128 v{W[vq]}, {v(acc+16*vq+4*i,4)} offset:{i*1024}')
    S(f's_lshl_b32 s{sT2}, s{sW4}, 12\ns_add_u32 s{sT2}, s{sT2}, {ho}')
    for k in range(1, 4):
        S(f's_xor_b32 s{sT0}, s{sW4}, {k}\ns_mul_i32 s{sT0}, s{sT0}, {reg}\ns_add_u32 s{sT0}, s{sT0}, s{sT2}\ns_add_u32 s{sT0}, s{sT0}, {base}\nv_add_u32 v{19+k}, s{sT0}, v{vL16}')
    oreg = F_REG if isA else A_REG; obase = 0 if isA else A_BASE
    S(f's_add_u32 s{sT0}, s{sT2}, {obase}\nv_add_u32 v23, s{sT0}, v{vL16}\nv_add_u32 v24, {2*oreg}, v23')
    S(f'v_permlane32_swap_b32 v{xt}, v{xt+2}\nv_permlane32_swap_b32 v{xt+1}, v{xt+3}')
    E = 96
    for i in range(4): S(f'v_lshlrev_b32 v{E+2*i}, 16, v{xt+i}\nv_and_b32 v{E+2*i+1}, 0xffff0000, v{xt+i}')
    S('s_waitcnt lgkmcnt(0)\ns_barrier')
    stamp(S, 13 if isA else 14)
    O, P_ = 32, 64
    rdO = [f'ds_read_b128 {v(O+8*f+4*i,4)}, v{23 + f//2} offset:{(f%2)*oreg + i*1024}' for f in range(4) for i in range(2)]
    rdP = [f'ds_read_b128 {v(P_+8*k+4*i,4)}, v{20+k} offset:{i*1024}' for k in range(3) for i in range(2)]
    for r in (rdO + rdP if isA else rdP + rdO): S(r)
    def sumO():
        for i in range(8): S(f'v_add_f32 v{O+i}, v{O+i}, v{O+8+i}')
        for i in range(8): S(f'v_add_f32 v{O+16+i}, v{O+16+i}, v{O+24+i}')
        for i in range(8): S(f'v_add_f32 v{O+i}, v{O+i}, v{O+16+i}')
    def sumP():
        for i in range(8): S(f'v_add_f32 v{P_+i}, v{P_+i}, v{own+i}')
        for i in range(8): S(f'v_add_f32 v{P_+8+i}, v{P_+8+i}, v{P_+16+i}')
        for i in range(8): S(f'v_add_f32 v{P_+i}, v{P_+i}, v{P_+8+i}')
    G, Sg = (O, P_) if isA else (P_, O)
    (sumO if isA else sumP)()
    Q = 104
    for i in range(8): S(f'v_mul_f32 v{Q+i}, {hx(f2u(-L2E))}, v{G+i}')
    for i in range(8): S(f'v_exp_f32 v{Q+i}, v{Q+i}')
    (sumP if isA else sumO)()
    for i in range(8): S(f'v_add_f32 v{Q+i}, 1.0, v{Q+i}')
    for i in range(8): S(f'v_rcp_f32 v{Q+i}, v{Q+i}')
    for i in range(8): S(f'v_mul_f32 v{G+i}, v{G+i}, v{Sg+i}')
    for i in range(8): S(f'v_fmac_f32 v{E+i}, v{G+i}, v{Q+i}')
    for i in range(4): S(f'v_cvt_pk_bf16_f32 v{xt+i}, v{E+2*i}, v{E+2*i+1}')
    S(f'v_permlane32_swap_b32 v{xt}, v{xt+2}\nv_permlane32_swap_b32 v{xt+1}, v{xt+3}')
    S(f'buffer_store_dwordx4 {v(xt,4)}, v{vO}, {srd(SRD_OUT)}, s{sFT} offen offset:{32 if isA else 0}')

def c_publish(S, attn, tile):
    if tile and not attn: S.ext(c_signal(EV_END))
    S(f's_lshl_b32 s{sFS}, s{sRB}, 1\ns_lshr_b32 s{sT1}, s{sW4}, 1\ns_add_u32 s{sFS}, s{sFS}, s{sT1}\ns_lshl_b32 s{sFS}, s{sFS}, 15\ns_lshl_b32 s{sT1}, s{sROLE}, 8\ns_add_u32 s{sFS}, s{sFS}, s{sT1}')
    S(f's_and_b32 s{sT1}, s{sW4}, 1\ns_lshl_b32 s{sT1}, s{sT1}, 7\ns_add_u32 s{sFS}, s{sFS}, s{sT1}\ns_add_u32 s{sFS}, s{sFS}, {WS_FH}')
    if tile:
        lane_consts_tr(S, vVW2, 8, 64, 'B')
        S(f's_lshr_b32 s{sT0}, s{sW4}, 1\ns_lshl_b32 s{sT3}, s{sT0}, 15\ns_add_u32 s{sT3}, s{sT3}, {A_BASE}\ns_xor_b32 s{sT1}, s{sT0}, 1\ns_lshl_b32 s{sT1}, s{sT1}, 6')
        S(f'v_add_u32 v{vVW2[0]}, s{sT3}, v{vVW2[0]}\nv_xor_b32 v{vVW2[0]}, s{sT1}, v{vVW2[0]}\nv_xor_b32 v{vVW2[1]}, 64, v{vVW2[0]}')
    if not attn: tag_get(S, vTAG)
    S.wait('st')
    flag_store(S, sFS, TT, 7, 12)
    if attn and Opt.oprio: S('s_setprio 0')
    stamp(S, 7)
    if tile and not attn:
        out_addr(S, XT, 32)

W2R = 16; FACC = 144; HR = 208
vLW, vLS, vL2 = 3, 4, 5
def swz_voff(S, dst, pitch, tmp):
    S(f'v_lshrrev_b32 v{tmp}, 3, v{vLANE}')
    S(f'v_mul_lo_u32 v{dst}, v{tmp}, {pitch}' if isinstance(pitch, str) else f'v_mul_u32_u24 v{dst}, {pitch}, v{tmp}')
    S(f'v_bfe_u32 v{tmp}, v{vLANE}, 4, 1\nv_lshlrev_b32 v{tmp}, 2, v{tmp}\nv_and_b32 v{tmp+1}, 7, v{vLANE}\nv_xor_b32 v{tmp}, v{tmp}, v{tmp+1}\nv_lshl_add_u32 v{dst}, v{tmp}, 4, v{dst}')
def flat(l): return [x for y in l for x in y]
def sprinkle(main, units, start=0):
    out = []; n = len(main) - start; k = len(units); j = 0
    for i, x in enumerate(main):
        while j < k and i >= start and (j + 0.5) * n / max(k, 1) <= i - start and x.kind in ('valu', 'trans'):
            out += units[j]; j += 1
        out.append(x)
    return out + flat(units[j:])

def l_phase1(S, ffn, tile):
    sBLK, sP64, sP448, sP32, sW2, sK2 = sU0, sU1, sU2, sU3, sU4, sU5
    S(f's_mul_i32 s{sFS}, s{sW4}, s{sPITCH}\ns_lshl_b32 s{sFS}, s{sFS}, 3')
    S(f's_lshl_b32 s{sT3}, s{sW4}, 10\ns_lshl_b32 s{sP64}, s{sPITCH}, 6\ns_lshl_b32 s{sP32}, s{sPITCH}, 5\ns_mul_i32 s{sP448}, s{sPITCH}, 448\ns_mul_i32 s{sBLK}, s{sP64}, s{sROT1}')
    def dma_half(h):
        units = []
        st = h // 2
        for k in range(7):
            St = Stream()
            kk = (h % 2) * 7 + k
            St(f's_add_u32 m0, s{sT3}, {(half_base(h) + k*4096) if h != 1 else (SPARE + k*4096 if k < 4 else (k - 4)*4096)}')
            if kk % 2 == 0:
                St(f's_add_u32 s{sT0}, s{sBLK}, s{sFS}\ns_add_u32 s{sT0}, s{sT0}, s{sCOL[st]}')
            else:
                if k == 0: St(f's_add_u32 s{sT0}, s{sBLK}, s{sFS}\ns_add_u32 s{sT0}, s{sT0}, s{sCOL[st]}')
                St(f's_add_u32 s{sT0}, s{sT0}, s{sP32}')
                wrap_inc(St, sBLK, f's{sP64}', f's{sP448}')
            St(f'buffer_load_dwordx4 v{vLW}, {srd(SRD_W)}, s{sT0} offen lds', tok=('h', h if not (h == 1 and k >= 4) else CN_H1B))
            units.append(St.l)
        return units
    def sig(h):
        S.wait(('h', h))
        if h < 5: stamp(S, 2 + h)
        l_signal(S, h)
    if Opt.cpf:
        lab = newlab('pc')
        S(f's_getpc_b64 s[72:73]\n{lab}:\ns_sub_u32 s72, s72, {lab} - {NAME}\ns_subb_u32 s73, s73, 0')
        S(f's_lshl_b32 s{sT0}, s{sI}, 2\ns_add_u32 s{sT0}, s{sT0}, s{sW4}\ns_lshl_b32 s{sT0}, s{sT0}, 2\nv_add_u32 v8, s{sT0}, v{vLANE}\nv_lshlrev_b32 v8, 7, v8\nv_min_u32 v8, L_end - {NAME}, v8')
        S(f's_mov_b64 exec, 15\nglobal_load_dword v200, v8, s[72:73]\ns_mov_b64 exec, -1')
    S('s_barrier')
    S.ext(flat(dma_half(0)))
    if not ffn:
        S(f's_add_u32 m0, s{sT3}, {WPHI_L}\ns_mul_i32 s{sT0}, s{sIDX}, 3136\ns_add_u32 s{sT0}, s{sT0}, s{sT3}\ns_cmp_eq_u32 s{sW4}, 3\ns_cselect_b32 exec_hi, 0, -1')
        S(f'buffer_load_dwordx4 v{vL16}, {srd(SRD_WPHI)}, s{sT0} offen lds', tok=('h', 0))
        S('s_mov_b64 exec, -1')
    h1 = dma_half(1)
    S.ext(flat(h1[:4]))
    if Opt.tlb:
        st_ = Opt.tlb
        S(f'v_lshlrev_b32 v8, {st_}, v{vLANE}')
        S(f's_mul_i32 s{sT0}, s{sTB}, {224*K1}\ns_lshl_b32 s{sT1}, s{sTB}, 17\ns_add_u32 s{sT1}, s{sT1}, {WS_PQ}\ns_cmp_eq_u32 s{sW4}, 1\ns_cselect_b32 s{sT0}, s{sT1}, s{sT0}')
        S(f's_mov_b32 s{sT1}, {WS_KVF}\ns_cmp_eq_u32 s{sW4}, 2\ns_cselect_b32 s{sT0}, s{sT1}, s{sT0}')
        S(f's_mul_i32 s{sT1}, s{sRB}, {448*K1}\ns_cmp_eq_u32 s{sW4}, 3\ns_cselect_b32 s{sT0}, s{sT1}, s{sT0}')
        n_ = min(64, (448 * K1) >> st_)
        S(f's_mov_b32 exec_lo, {hex(((1 << n_) - 1) & 0xffffffff)}\ns_mov_b32 exec_hi, {hex(((1 << n_) - 1) >> 32)}')
        S(f'buffer_load_dword v200, v8, {srd(SRD_WS)}, s{sT0} offen sc1\ns_mul_i32 s{sT1}, s{sTB}, {64*896}\ns_mov_b64 exec, 3\nbuffer_load_dword v200, v8, {srd(SRD_OUT)}, s{sT1} offen\nbuffer_load_dword v200, v8, {srd(SRD_W2)}, 0 offen\nbuffer_load_dword v200, v8, {srd(SRD_WO)}, 0 offen\ns_mov_b64 exec, -1')
    stamp(S, 'e5')
    lab = newlab('nt')
    S(f's_or_b32 s{sT0}, s2, s{sW4}\ns_cmp_lg_u32 s{sT0}, 0\ns_cbranch_scc1 {lab}')
    raw(S, f's_mov_b32 s{sT0}, {WS_TAG}\nv_mov_b32 v9, 0\ns_mov_b64 exec, 1\nbuffer_load_dword v8, v9, {srd(SRD_WS)}, s{sT0} offen sc1\ns_waitcnt vmcnt(0)\n'
           f'v_add_u32 v8, 1, v8\nv_max_u32 v8, 1, v8\ns_nop 1\nbuffer_store_dword v8, v9, {srd(SRD_WS)}, s{sT0} offen sc1\nbuffer_store_dword v8, v9, {srd(SRD_DBG)}, 0 offen sc1\ns_waitcnt vmcnt(0)\ns_mov_b64 exec, -1\n{lab}:')
    S(f'v_lshlrev_b32 v{vLC}, 2, v{vLANE}\nv_add_u32 v{vLC}, {CTL}, v{vLC}\nv_mov_b32 v{vLONE}, 1\nv_mov_b32 v{vLP+4}, {CTL}')
    if ffn:
        S(f'v_lshrrev_b32 v8, 2, v{vLANE}\nv_mul_u32_u24 v{vLS}, 3584, v8\nv_and_b32 v8, 3, v{vLANE}\nv_lshl_add_u32 v{vLS}, v8, 4, v{vLS}')
    else:
        S(f'v_and_b32 v8, 31, v{vLANE}\ns_lshl_b32 s{sT0}, s{sW4}, 5\nv_add_u32 v8, s{sT0}, v8\nv_lshrrev_b32 v9, 5, v{vLANE}\nv_lshlrev_b32 v9, 3, v9')
        S(f'v_mul_u32_u24 v{vLPW}, 112, v8\nv_add_u32 v{vLPW}, v{vLPW}, v9')
        S(f'v_cndmask_b32 v{vLMK}, 1.0, 0, {HI}\nv_mov_b32 v{vLL2E}, s{sL2E}')
        trb(S, vLWP, 2, 56, 8)
        S(f'v_add_u32 v{vLWP}, {WPHI_L}, v{vLWP}')
    S(f's_lshl_b32 s{sT0}, s{sW4}, 12\ns_add_u32 s{sT0}, s{sT0}, {SPARE}\nv_add_u32 v{vLRD}, s{sT0}, v{vL16}')
    if tile:
        S(f's_mov_b32 s{sT1}, 896'); swz_voff(S, vL2, f's{sT1}', 8)
        lane_consts_tr(S, vVW2, 8, 64, 'B')
        S(f's_xor_b32 s{sT1}, s{sW4}, 3\ns_lshr_b32 s{sT1}, s{sT1}, 1\ns_lshl_b32 s{sT1}, s{sT1}, 6\nv_xor_b32 v{vVW2[0]}, s{sT1}, v{vVW2[0]}\nv_xor_b32 v{vVW2[1]}, 64, v{vVW2[0]}')
        S(f's_mul_i32 s{sW2}, s{sW4}, {448*896}\ns_lshl_b32 s{sT2}, s{sCB}, 7\ns_add_u32 s{sW2}, s{sW2}, s{sT2}\ns_mul_i32 s{sK2}, s{sROT2}, {16*896}')
        S(f'v_add_u32 v13, {8*896}, v{vL2}')
    def w2stage(base, stride, ns):
        if not tile: return
        S(f's_mul_i32 s{sT2}, s{sW4}, {stride}\ns_add_u32 s{sT2}, s{sT2}, {base}\nv_add_u32 v9, s{sT2}, v{vVW2[0]}\nv_add_u32 v10, s{sT2}, v{vVW2[1]}')
        def dma(ks):
            o = (ks % ns) * 2048
            S(f's_add_u32 m0, s{sT2}, {o}\ns_add_u32 s{sT1}, s{sW2}, s{sK2}')
            if ks >= ns: S.wait(('wr', ks - ns))
            S(f'buffer_load_dwordx4 v{vL2}, {srd(SRD_W2)}, s{sT1} offen lds', tok=('w', ks))
            S(f's_add_u32 m0, s{sT2}, {o + 1024}')
            wrap_inc(S, sK2, 16 * 896, 448 * 896)
            S(f'buffer_load_dwordx4 v13, {srd(SRD_W2)}, s{sT1} offen lds', tok=('w', ks))
        d = ns - 1
        for ks in range(min(d, Opt.nreg)): dma(ks)
        for ks in range(Opt.nreg):
            if ks + d < Opt.nreg: dma(ks + d)
            S.wait(('w', ks))
            o = (ks % ns) * 2048; b = W2R + 8 * ks
            for c in range(2):
                for u in range(2):
                    S(f'ds_read_b64_tr_b16 {v(b + 4*c + 2*u, 2)}, v{9+c} offset:{o + 1024*u}', tok=('wr', ks))
            if not ffn and ks in (0, 8): stamp(S, 3 + ks // 8)
    def w2raw(lo, hi):
        if not tile: return
        for ks in range(lo, hi):
            S(f's_add_u32 s{sT1}, s{sW2}, s{sK2}')
            S(f'buffer_load_dwordx4 {v(W2R+8*ks,4)}, v{vL2}, {srd(SRD_W2)}, s{sT1} offen')
            S(f'buffer_load_dwordx4 {v(W2R+8*ks+4,4)}, v13, {srd(SRD_W2)}, s{sT1} offen')
            wrap_inc(S, sK2, 16 * 896, 448 * 896)
    def tr(lo, hi):
        if not tile: return
        if lo == 0: S(f's_lshl_b32 s{sT0}, s{sW4}, 12\ns_add_u32 s{sT0}, s{sT0}, {SPARE}\nv_add_u32 v9, s{sT0}, v{vVW2[0]}\nv_add_u32 v10, s{sT0}, v{vVW2[1]}')
        for ks in range(lo, hi):
            o = (ks % 2) * 2048; b = W2R + 8 * ks
            S(f'ds_write_b128 v{vLRD}, {v(b,4)} offset:{o}\nds_write_b128 v{vLRD}, {v(b+4,4)} offset:{o+1024}')
            for c in range(2):
                for u in range(2):
                    S(f'ds_read_b64_tr_b16 {v(b + 4*c + 2*u, 2)}, v{9+c} offset:{o + 1024*u}')
    DUM = 200
    def pf(srd_, voff, soff, n):
        S(f's_mov_b32 exec_hi, {hex((1 << (n - 32)) - 1)}\nbuffer_load_dword v{DUM}, v{voff}, {srd(srd_)}, s{soff} offen\ns_mov_b32 exec_hi, -1', tok='pf')
    if Opt.wpf:
        S(f'v_mul_lo_u32 v14, v{vLANE}, s{sPITCH}\ns_and_b32 s{sT0}, s{sI}, 3\ns_mul_i32 s{sT0}, s{sT0}, 112')
        if ffn:
            S(f's_mul_i32 s{sT0}, s{sT0}, s{sPITCH}\ns_lshl_b32 s{sT1}, s{sW4}, 7\ns_add_u32 s{sT1}, s{sT1}, s{sCOL[0]}\ns_cmp_eq_u32 s{sW4}, 3\ns_cselect_b32 s{sT1}, s{sCOLS}, s{sT1}\ns_add_u32 s{sT0}, s{sT0}, s{sT1}')
            pf(SRD_W, 14, sT0, 56)
            S(f's_add_u32 s{sT0}, s{sT0}, {56*3584}')
            pf(SRD_W, 14, sT0, 56)
        else:
            S(f's_lshr_b32 s{sT1}, s{sW4}, 1\ns_mul_i32 s{sT1}, s{sT1}, 56\ns_add_u32 s{sT0}, s{sT0}, s{sT1}\ns_mul_i32 s{sT0}, s{sT0}, s{sPITCH}\ns_and_b32 s{sT1}, s{sW4}, 1\ns_mul_i32 s{sT1}, s{sT1}, 124\ns_add_u32 s{sT0}, s{sT0}, s{sT1}')
            for st in range(3):
                S(f's_add_u32 s{sT1}, s{sT0}, s{sCOL[st]}')
                pf(SRD_W, 14, sT1, 56)
    def w2_prefetch():
        if not Opt.w2pf: return
        S(f'v_lshlrev_b32 v14, 7, v{vLANE}\ns_lshl_b32 s{sT0}, s{sI}, 2\ns_add_u32 s{sT0}, s{sT0}, s{sW4}\ns_mul_i32 s{sT1}, s{sT0}, {98*128}')
        pf(SRD_W2, 14, sT1, 49)
        S(f's_add_u32 s{sT1}, s{sT1}, {49*128}')
        pf(SRD_W2, 14, sT1, 49)
        S(f's_mul_i32 s{sT1}, s{sT0}, {25*128}\ns_mov_b64 exec, 0x1ffffff\nbuffer_load_dword v{DUM}, v14, {srd(SRD_WO)}, s{sT1} offen\ns_mov_b64 exec, -1', tok='pf')
    def gpf(which):
        if not Opt.gpf: return
        S(f's_sub_u32 s{sT0}, s2, 128\ns_lshl_b32 s{sT0}, s{sT0}, 2\ns_add_u32 s{sT0}, s{sT0}, s{sW4}\nv_lshlrev_b32 v14, 7, v{vLANE}')
        S(f's_mov_b64 s[72:73], s[66:67]\ns_mov_b32 s74, {448*2688}\ns_mov_b32 s75, 0x20000') if False else None
        for (lo, n, size) in ((sKA_QKV, 10, 448*2688), (sKA_W1, 13, 448*3584), (SRD_W2, 25, None), (SRD_WO, 7, None))[which]:
            if size:
                S(f's_mov_b64 s[76:77], s[{lo}:{lo+1}]\ns_mov_b32 s78, {size}\ns_mov_b32 s79, 0x20000'); d = 76
            else: d = lo
            S(f's_mul_i32 s{sT1}, s{sT0}, {n*128}\ns_mov_b64 exec, {hex((1 << n) - 1)}\nbuffer_load_dword v{DUM}, v14, {srd(d)}, s{sT1} offen\ns_mov_b64 exec, -1', tok='pf')
    if Opt.gpf == 2: gpf(slice(0, 2))
    def wo_prefetch():
        S(f'v_lshlrev_b32 v14, 7, v{vLANE}\ns_lshl_b32 s{sT0}, s{sI}, 2\ns_add_u32 s{sT0}, s{sT0}, s{sW4}')
        S(f's_mul_i32 s{sT1}, s{sT0}, {25*128}\ns_mov_b64 exec, 0x1ffffff\nbuffer_load_dword v{DUM}, v14, {srd(SRD_WO)}, s{sT1} offen\ns_mov_b64 exec, -1', tok='pf')
    l_wait(S, EV_XFREE)
    stamp(S, 1)
    S(f's_add_u32 s{sT0}, s{sBLK}, s{sFS}\ns_add_u32 s{sT0}, s{sT0}, s{sCOL[0]}')
    S.ext(flat(h1[4:])); sig(0)
    h2 = dma_half(2)
    S.ext(flat(h2[:3])); sig(1); S.ext(flat(h2[3:5])); sig(CN_H1B); S.ext(flat(h2[5:]))
    h3 = dma_half(3)
    S.ext(flat(h3[:3])); sig(2); S.ext(flat(h3[3:]))
    ltag_issue(S)
    h4 = dma_half(4)
    S.ext(flat(h4[:3])); sig(3); S.ext(flat(h4[3:]))
    if ffn:
        gpf(slice(2, 4))
    if ffn:
        sig(4)
        l_wait(S, EV_C0)
        S.ext(flat(dma_half(5)))
        sig(5)
        ltag_get(S)
        l_wait(S, EV_C1)
        S(f's_lshl_b32 s{sFS}, s{sFS}, 1\ns_add_u32 s{sFS}, s{sFS}, s{sCOLS}')
        for k in range(7):
            S(f's_add_u32 m0, s{sT3}, {k*4096}\ns_add_u32 s{sT0}, s{sBLK}, s{sFS}')
            wrap_inc(S, sBLK, f's{sP64}', f's{sP448}')
            S(f'buffer_load_dwordx4 v{vLS}, {srd(SRD_W)}, s{sT0} offen lds', tok=('h', 6))
        if Opt.l2pf:
            S(f'v_lshlrev_b32 v14, 7, v{vLANE}\ns_sub_u32 s{sT0}, s{sI}, 16\ns_lshl_b32 s{sT0}, s{sT0}, 2\ns_add_u32 s{sT0}, s{sT0}, s{sW4}\ns_mul_i32 s{sT1}, s{sT0}, {196*128}\ns_mov_b32 exec_hi, 0x1ffff')
            for i in range(4):
                S(f'buffer_load_dword v{DUM}, v14, {srd(SRD_W2)}, s{sT1} offen\ns_add_u32 s{sT1}, s{sT1}, {49*128}', tok='pf')
            S(f's_mul_i32 s{sT1}, s{sT0}, {49*128}\nbuffer_load_dword v{DUM}, v14, {srd(SRD_WO)}, s{sT1} offen\ns_mov_b64 exec, -1', tok='pf')
        sig(6)
        if Opt.ppf:
            n_ = Opt.ppf
            S(f'v_lshlrev_b32 v14, 7, v{vLANE}\ns_sub_u32 s{sT0}, s{sI}, 16\ns_lshl_b32 s{sT0}, s{sT0}, 2\ns_add_u32 s{sT0}, s{sT0}, s{sW4}\ns_mov_b64 exec, {hex((1 << n_) - 1)}')
            for (d, tot) in ((SRD_W2, 196), (SRD_WO, 49)):
                lab = newlab('pp')
                S(f's_mul_i32 s{sT1}, s{sT0}, {tot*128}\ns_mov_b32 s{sT2}, {(tot + n_ - 1) // n_}')
                raw(S, f'{lab}:\nbuffer_load_dword v{DUM}, v14, {srd(d)}, s{sT1} offen\ns_add_u32 s{sT1}, s{sT1}, {n_*128}\ns_sleep {Opt.pps}\ns_waitcnt vmcnt({Opt.ppw})\ns_sub_u32 s{sT2}, s{sT2}, 1\ns_cmp_lg_u32 s{sT2}, 0\ns_cbranch_scc1 {lab}')
            S('s_mov_b64 exec, -1')
        elif not Opt.l2pf: wo_prefetch()
        l_wait(S, EV_C3)
        w2stage(SLOT, 14 * K1, 7)
        stamp(S, 11)
    else:
        l_wait(S, EV_C0)
        S.ext(flat(dma_half(5)))
        kA, kB, KA = 194, 195, LX
        trb(S, kA, 3, 112, 8); trb(S, kB, 3, 72, 8)
        S(f's_lshr_b32 s{sT0}, s{sW4}, 1\ns_and_b32 s{sT1}, s{sW4}, 1\ns_mul_i32 s{sT2}, s{sT0}, 14336\ns_mul_i32 s{sT1}, s{sT1}, 56\ns_add_u32 s{sT2}, s{sT2}, s{sT1}\nv_add_u32 v{kA}, s{sT2}, v{kA}')
        S(f's_mul_i32 s{sT2}, s{sT0}, 9216\ns_add_u32 s{sT2}, s{sT2}, {SLOT}\nv_add_u32 v{kB}, s{sT2}, v{kB}')
        S(f's_lshl_b32 s{74}, s{sIDX}, 2\ns_add_u32 s{74}, s{74}, s{sW4}\ns_lshl_b32 s{75}, s{74}, 11\ns_lshl_b32 s{74}, s{74}, 4\ns_add_u32 s{74}, s{74}, s{sRB}\ns_lshl_b32 s{74}, s{74}, 11\ns_add_u32 s{74}, s{74}, {WS_KVP}')
        S(f's_lshl_b32 s{sT0}, s{sRB}, 7\ns_add_u32 s{75}, s{75}, s{sT0}\ns_add_u32 s{75}, s{75}, {WS_FP}')
        l_wait(S, EV_PK)
        stamp(S, 12)
        if Opt.lprio: S('s_setprio 1')
        sm = softmax_k(None)
        S.ext(sm[:8]); sig(4); S.ext(sm[8:Opt.h5at]); sig(5); S.ext(sm[Opt.h5at:])
        l_signal(S, CN_PH)
        stamp(S, 11)
        ltag_get(S)
        w2raw(0, Opt.aw2)
        if Opt.tr0: tr(0, Opt.tr0)
        stamp(S, 5)
        if Opt.kprio: S('s_setprio 1')
        l_wait(S, EV_V)
        S.ext(cnt_read(CN_PH, vLP)); S.ext(cnt_check(CN_PH, vLP))
        for ts in range(8):
            b = HR + 8 * (ts % 6)
            if ts >= 6: S(f'v_mfma_f32_32x32x16_bf16 {v(KA,16)}, {v(b,4)}, {v(b+4,4)}, {"0" if ts == 6 else v(KA,16)}')
            for u in range(2): S(f'ds_read_b64_tr_b16 {v(b + 2*u, 2)}, v{kA} offset:{(16*ts + 4*u)*112}')
            for u in range(2): S(f'ds_read_b64_tr_b16 {v(b + 4 + 2*u, 2)}, v{kB} offset:{(16*ts + 4*u)*72}')
        for ts in range(2, 8):
            b = HR + 8 * (ts % 6)
            S(f'v_mfma_f32_32x32x16_bf16 {v(KA,16)}, {v(b,4)}, {v(b+4,4)}, {v(KA,16)}')
        G_ = HR
        for i in range(8): S(f'v_cvt_pk_bf16_f32 v{G_+i}, v{KA+2*i}, v{KA+2*i+1}')
        for j in range(2):
            S(f'buffer_store_dwordx4 {v(G_+4*j,4)}, v{vL16}, {srd(SRD_WS)}, s{74} offen offset:{j*1024} sc1', tok='kvp')
        tr(Opt.tr0, Opt.tr0 + Opt.tr1)
        S.wait('kvp')
        flag_store(S, 75, LE)
        if not tile: l_signal(S, CN_KG)
        S('s_setprio 0')
        stamp(S, 1)
        if Opt.ackdiag: S.wait('kvp'); stamp(S, 2); S('s_waitcnt vmcnt(0)')
        w2raw(Opt.aw2, Opt.nreg)
        wo_prefetch()
        tr(Opt.tr0 + Opt.tr1, Opt.nreg)
        stamp(S, 6)
    if tile:
        l_signal(S, CN_LT)
        if not (Opt.early_f and not ffn):
            l_wait(S, EV_END)
            S.ext(cnt_read(CN_LT, vLP)); S.ext(cnt_check(CN_LT, vLP))
            stamp(S, 7)
            bu_ = bubble_units(Opt.bthr)
            S.ext(flat(bu_[:Opt.kgat])); l_signal(S, CN_KG); S.ext(flat(bu_[Opt.kgat:]))

def bubble_units(thr):
    sW2, sK2 = sU4, sU5
    u = []
    for i in range(12):
        t = Stream()
        if i == 0: t(f's_mul_i32 s{sT3}, s{sW4}, {F_REG}')
        t(f's_add_u32 m0, s{sT3}, {i*2048}\ns_add_u32 s{sT1}, s{sW2}, s{sK2}')
        if thr: t(f's_waitcnt vmcnt({thr})')
        t(f'buffer_load_dwordx4 v{vL2}, {srd(SRD_W2)}, s{sT1} offen lds', tok=('w2', Opt.nreg + i))
        t(f's_add_u32 m0, s{sT3}, {i*2048 + 1024}')
        wrap_inc(t, sK2, 16 * 896, 448 * 896)
        t(f'buffer_load_dwordx4 v13, {srd(SRD_W2)}, s{sT1} offen lds', tok=('w2', Opt.nreg + i))
        u.append(t.l)
    for hd in range(4):
        for half in range(2):
            t = Stream()
            t(f's_lshl_b32 s{sT2}, s{sW4}, 14\ns_add_u32 s{sT2}, s{sT2}, {A_BASE}')
            t(f's_lshl_b32 s{sT1}, s{sW4}, 2\ns_add_u32 s{sT1}, s{sT1}, {hd}\ns_mul_i32 s{sT1}, s{sT1}, {28*896}\ns_lshl_b32 s{sCNT}, s{sCB}, 7\ns_add_u32 s{sT1}, s{sT1}, s{sCNT}')
            if half: t(f's_add_u32 s{sT1}, s{sT1}, {16*896}')
            for i in range(2):
                t(f's_add_u32 m0, s{sT2}, {hd*4096 + half*2048 + i*1024}')
                if thr: t(f's_waitcnt vmcnt({thr})')
                if hd == 3 and half == 1 and i == 1: t(f's_cmp_eq_u32 s{sW4}, 3\ns_cselect_b32 exec_hi, 0, -1')
                else: t('s_nop 0')
                t(f'buffer_load_dwordx4 v{vL2 if i == 0 else 13}, {srd(SRD_WO)}, s{sT1} offen lds', tok='wo')
            if hd == 3 and half == 1: t('s_mov_b64 exec, -1')
            u.append(t.l)
    return u

def hflag_poll(S):
    S(f'v_lshlrev_b32 v8, 7, v{vLANE}')
    S(f's_lshl_b32 s{sT0}, s{sTB}, 3\ns_add_u32 s{sT0}, s{sT0}, s{sCB}\ns_lshl_b32 s{sT0}, s{sT0}, 12\ns_lshl_b32 s{sT1}, s{sW4}, 9\ns_add_u32 s{sT0}, s{sT0}, s{sT1}\ns_add_u32 s{sT0}, s{sT0}, {WS_FH}')
    poll(S, 8, sT0, 4, 9)

def f_phase2(S, attn):
    inl = attn and Opt.early_f
    stamp(S, 10)
    if Opt.fprio: S('s_setprio 1')
    sK = sU1
    vH0, vH1 = 14, 15
    S(f's_mul_i32 s{sT3}, s{sW4}, {F_REG}\nv_add_u32 v10, s{sT3}, v{vVW2[1]}\nv_add_u32 v11, s{sT3}, v{vVW2[0]}')
    S(f's_mul_i32 s{sU2}, s{sTB}, {224*K1}\ns_mul_i32 s{sT2}, s{sW4}, {28*K1}\ns_add_u32 s{sU2}, s{sU2}, s{sT2}\ns_add_u32 s{sU2}, s{sU2}, {WS_H}\ns_lshl_b32 s{sK}, s{sROT2}, 10')
    S(f's_and_b32 s{sT2}, s{sW4}, 1\ns_mul_i32 s{sT2}, s{sT2}, {112*K1}\nv_add_u32 v{vH1}, s{sT2}, v{vL16}\ns_sub_u32 s{sT2}, {112*K1}, s{sT2}\nv_add_u32 v{vH0}, s{sT2}, v{vL16}')
    S(f'v_mov_b32 v12, v11\nv_mov_b32 v11, v{vL2}')
    assert not inl and not Opt.wolate
    out_addr(S, 4, 0)
    S('s_waitcnt lgkmcnt(0)')
    hflag_poll(S)
    S(f'v_mov_b32 v9, v12\nv_mov_b32 v12, 4')
    wol = (attn and Opt.wolate) or Opt.wolate == 2
    S(f'v_lshlrev_b32 v8, 2, v{vLANE}\nv_add_u32 v8, {CTL}, v8\nv_mov_b32 v{W2R-3}, v13') if False else None
    S(f'v_lshlrev_b32 v8, 2, v{vLANE}\nv_add_u32 v8, {CTL}, v8\nv_mov_b32 v{HR+47}, 1\ns_mov_b64 exec, 15\nds_add_u32 v8, v{HR+47} offset:{128 + 16*CN_WO}\ns_mov_b64 exec, -1\ns_waitcnt lgkmcnt(0)')
    stamp(S, 8)
    NG = Opt.nreg
    def slot(i): return W2R + 8 * i if i < 16 else HR + 8 * (i - 16)
    free = list(range(NG, 22))
    hdst, adst, when = {}, {}, {}
    for ks in range(NG): adst[ks] = slot(ks)
    ring = [NG - 6, NG - 5, NG - 4]
    for ks in range(NG, 28): adst[ks] = slot(ring[(ks - NG) % 3])
    sched = {ks: [] for ks in range(-1, 28)}
    nxt = 0; hs = {}
    for ks in range(-1, 28):
        if ks >= 0:
            if ks < NG and ks not in ring: free.append(ks)
            free.append(hs[ks])
        while nxt < 28 and free:
            hs[nxt] = free.pop(0); hdst[nxt] = slot(hs[nxt]); sched[ks].append(nxt); nxt += 1
    sW2, sK2 = sU4, sU5
    def hload(ks):
        S(f's_add_u32 s{sT0}, s{sU2}, s{sK}')
        S(f'buffer_load_dwordx4 {v(hdst[ks],4)}, v{vH0}, {srd(SRD_WS)}, s{sT0} offen sc1')
        S(f'buffer_load_dwordx4 {v(hdst[ks]+4,4)}, v{vH1}, {srd(SRD_WS)}, s{sT0} offen sc1')
        if ks < 27: wrap_inc(S, sK, 1024, 28 * K1)
    def aread(ks):
        o = ((ks - NG) % 12) * 2048; b = adst[ks]
        S.wait(('w2', ks))
        for c in range(2):
            for u in range(2):
                S(f'ds_read_b64_tr_b16 {v(b + 4*c + 2*u, 2)}, v{9+c} offset:{o + 1024*u}', tok=('ar', ks))
    for k in sched[-1]: hload(k)
    for ks in range(28):
        for c in range(2):
            for tt2 in range(2):
                acc = FACC + 16 * (2 * c + tt2)
                S(f'v_mfma_f32_32x32x16_bf16 {v(acc,16)}, {v(adst[ks]+4*c,4)}, {v(hdst[ks]+4*tt2,4)}, {"0" if ks == 0 else v(acc,16)}')
                if c == 0 and tt2 == 0 and NG <= ks + 2 < 28: aread(ks + 2)
        if Opt.fdiag and ks in (0, 5, 10, 15, 19, 23): stamp(S, 1 + (0, 5, 10, 15, 19, 23).index(ks))
        if ks == (Opt.gk0 if attn else Opt.gk1): S(f'ds_write_b32 v{vCTL}, v12 offset:{128 + 16*CN_W2}')
        if ks >= NG and ks + 12 < 28:
            o = (ks - NG) * 2048
            S(f's_add_u32 m0, s{sT3}, {o}\ns_add_u32 s{sT1}, s{sW2}, s{sK2}')
            S(f'buffer_load_dwordx4 v11, {srd(SRD_W2)}, s{sT1} offen lds', tok=('w2', ks + 12))
            S(f's_add_u32 m0, s{sT3}, {o + 1024}')
            wrap_inc(S, sK2, 16 * 896, 448 * 896)
            S(f'buffer_load_dwordx4 v13, {srd(SRD_W2)}, s{sT1} offen lds', tok=('w2', ks + 12))
        for k in sched[ks]: hload(k)
    stamp(S, 9)
    final_f(S, FACC, 4)

def a_phase2(S):
    S(f's_lshl_b32 s{sU4}, s{sTB}, 16\ns_and_b32 s{sT2}, s{sW4}, 1\ns_lshl_b32 s{sT1}, s{sT2}, 15\ns_add_u32 s{sU4}, s{sU4}, s{sT1}\ns_lshr_b32 s{sT3}, s{sW4}, 1\ns_lshl_b32 s{sT1}, s{sT3}, 14\ns_add_u32 s{sU4}, s{sU4}, s{sT1}\ns_add_u32 s{sU4}, s{sU4}, {WS_PQ}')
    S(f'v_lshlrev_b32 v8, 8, v{vLANE}')
    S(f's_lshl_b32 s{sT0}, s{sTB}, 3\ns_add_u32 s{sT0}, s{sT0}, s{sCB}\ns_lshl_b32 s{sT0}, s{sT0}, 12\ns_lshl_b32 s{sT1}, s{sT3}, 10\ns_add_u32 s{sT0}, s{sT0}, s{sT1}\ns_lshl_b32 s{sT1}, s{sT2}, 7\ns_add_u32 s{sT0}, s{sT0}, s{sT1}\ns_add_u32 s{sT0}, s{sT0}, {WS_FH + 2048}')
    fa = final_addr(True)
    S.ext(fa)
    if Opt.aprio: S(f's_setprio {Opt.aprio}')
    S.ext(cnt_read(CN_W2, vCT)); S.ext(cnt_check(CN_W2, vCT, 1))
    stamp(S, 11)
    poll(S, 8, sT0, 4, 9, Opt.ksleep)
    stamp(S, 14)
    OB = 32
    for i in range(8):
        if i % 2 == 0: S(f's_add_u32 s{sT2}, s{sU4}, {i*2048}')
        for st in range(2):
            S(f'buffer_load_dwordx4 {v(OB+8*i+4*st,4)}, v{vL16}, {srd(SRD_WS)}, s{sT2} offen offset:{(i%2)*2048 + st*1024} sc1')
    S.ext(cnt_read(CN_WO, vCT)); S.ext(cnt_check(CN_WO, vCT, 1))
    SA, WB = 144, 96
    def woread(n):
        b = WB + 8 * (n % 6)
        for c in range(2):
            for u in range(2):
                S(f'ds_read_b64_tr_b16 {v(b+4*c+2*u,2)}, v{vVW2[c]} offset:{(16*n + 8*u)*128}')
    for n in range(5): woread(n)
    for n in range(16):
        b = WB + 8 * (n % 6)
        for c in range(2):
            acc = SA + 16 * c
            S(f'v_mfma_f32_32x32x16_bf16 {v(acc,16)}, {v(b+4*c,4)}, {v(OB+4*n,4)}, {"0" if n == 0 else v(acc,16)}')
            if c == 0 and n + 5 < 16: woread(n + 5)
    stamp(S, 12)
    final_a(S, SA)

XS = 96 * K1
def final_addr(isA):
    S = Stream()
    if isA:
        S(f's_mul_i32 s{sT1}, s{sW4}, {F_REG}\ns_add_u32 s{sT1}, s{sT1}, {16*K1}\nv_add_u32 v16, s{sT1}, v{vL16}')
        S(f's_xor_b32 s{sT1}, s{sW4}, 2\ns_mul_i32 s{sT1}, s{sT1}, {F_REG}\ns_add_u32 s{sT1}, s{sT1}, {16*K1}\nv_add_u32 v17, s{sT1}, v{vL16}')
    return S.l

def finish(S, xt, E, Sg, G, off):
    for i in range(8): S(f'v_fmac_f32 v{E+i}, v{Sg+i}, v{G+i}')
    for i in range(4): S(f'v_cvt_pk_bf16_f32 v{xt+i}, v{E+2*i}, v{E+2*i+1}')
    S(f'v_permlane32_swap_b32 v{xt}, v{xt+2}\nv_permlane32_swap_b32 v{xt+1}, v{xt+3}')
    S(f'buffer_store_dwordx4 {v(xt,4)}, v{vO}, {srd(SRD_OUT)}, s{sFT} offen offset:{off}')
def unpack_x(S, xt, E):
    S(f'v_permlane32_swap_b32 v{xt}, v{xt+2}\nv_permlane32_swap_b32 v{xt+1}, v{xt+3}')
    for i in range(4): S(f'v_lshlrev_b32 v{E+2*i}, 16, v{xt+i}\nv_and_b32 v{E+2*i+1}, 0xffff0000, v{xt+i}')

def final_a(S, SA):
    E = 20
    unpack_x(S, XT, E)
    S.ext(cnt_read(CN_G, vCT)); S.ext(cnt_check(CN_G, vCT, 1))
    for i in range(4): S(f'ds_write_b128 v17, {v(SA+4*i,4)} offset:{i*1024}')
    for i in range(2): S(f'ds_write_b128 v16, {v(SA+16+4*i,4)} offset:{4096 + i*1024}')
    S('s_waitcnt lgkmcnt(0)\ns_barrier')
    stamp(S, 13)
    for i in range(2): S(f'ds_read_b128 {v(32+4*i,4)}, v16 offset:{2048 + i*1024}')
    for i in range(2): S(f'ds_read_b128 {v(40+4*i,4)}, v16 offset:{6144 + i*1024}')
    for i in range(8): S(f'v_add_f32 v{32+i}, v{32+i}, v{SA+24+i}')
    finish(S, XT, E, 32, 40, 32)

def final_f(S, acc, xt):
    W = [16, 17, 18]
    S(f's_mul_i32 s{sT3}, s{sW4}, {F_REG}')
    for vq in range(3):
        S(f's_xor_b32 s{sT0}, s{sW4}, {vq ^ 3}\ns_lshl_b32 s{sT0}, s{sT0}, 12\ns_add_u32 s{sT0}, s{sT0}, s{sT3}\nv_add_u32 v{W[vq]}, s{sT0}, v{vL16}')
    S(f'v_lshlrev_b32 v24, 2, v{vLANE}\nv_add_u32 v24, {CTL}, v24\nv_mov_b32 v25, 1')
    for vq in range(3):
        for i in range(4):
            S(f'ds_write_b128 v{W[vq]}, {v(acc+16*vq+4*i,4)} offset:{i*1024}')
    S(f's_mov_b64 exec, 15\nds_add_u32 v24, v25 offset:{128 + 16*CN_G}\ns_mov_b64 exec, -1')
    S(f's_lshl_b32 s{sT2}, s{sW4}, 12')
    for k in range(1, 4):
        S(f's_xor_b32 s{sT0}, s{sW4}, {k}\ns_mul_i32 s{sT0}, s{sT0}, {F_REG}\ns_add_u32 s{sT0}, s{sT0}, s{sT2}\nv_add_u32 v{19+k}, s{sT0}, v{vL16}')
    S(f's_add_u32 s{sT3}, s{sT3}, {16*K1}\nv_add_u32 v23, s{sT3}, v{vL16}')
    E = 104
    unpack_x(S, xt, E)
    S.ext(cnt_read(CN_G, 26)); S.ext(cnt_check(CN_G, 26, 0))
    P_ = 32
    for k in range(3):
        for i in range(4): S(f'ds_read_b128 {v(P_+16*k+4*i,4)}, v{20+k} offset:{i*1024}')
    G = acc + 48
    for k in range(3):
        for i in range(16): S(f'v_add_f32 v{G+i}, v{G+i}, v{P_+16*k+i}')
    Q = 80
    for i in range(16): S(f'v_mul_f32 v{Q+i}, {hx(f2u(-L2E))}, v{G+i}')
    for i in range(16): S(f'v_exp_f32 v{Q+i}, v{Q+i}')
    for i in range(16): S(f'v_add_f32 v{Q+i}, 1.0, v{Q+i}')
    for i in range(16): S(f'v_rcp_f32 v{Q+i}, v{Q+i}')
    for i in range(16): S(f'v_mul_f32 v{G+i}, v{G+i}, v{Q+i}')
    for i in range(2): S(f'ds_write_b128 v23, {v(G+8+4*i,4)} offset:{6144 + i*1024}')
    S('s_waitcnt lgkmcnt(0)')
    stamp(S, 13)
    S('s_barrier')
    stamp(S, 14)
    for i in range(2): S(f'ds_read_b128 {v(32+4*i,4)}, v23 offset:{i*1024}')
    for i in range(2): S(f'ds_read_b128 {v(40+4*i,4)}, v23 offset:{4096 + i*1024}')
    for i in range(8): S(f'v_add_f32 v{32+i}, v{32+i}, v{40+i}')
    finish(S, xt, E, 32, G, 0)

def reducer(S):
    S(f's_cmp_ge_u32 s{sW4}, 2\ns_cbranch_scc1 L_fin')
    S(f'v_lshlrev_b32 v8, 7, v{vLANE}\ns_lshl_b32 s{sT0}, s{sTB}, 11\ns_add_u32 s{sT0}, s{sT0}, {WS_FP}')
    S(f's_lshl_b32 s{sU2}, s{sTB}, 15\ns_lshl_b32 s{sT2}, s{sW4}, 10\ns_add_u32 s{sU2}, s{sU2}, s{sT2}\ns_add_u32 s{sU2}, s{sU2}, {WS_KVP}')
    S(f's_lshl_b32 s{sU1}, s{sTB}, 1\ns_add_u32 s{sU1}, s{sU1}, s{sW4}\ns_lshl_b32 s{sU0}, s{sU1}, 7\ns_add_u32 s{sU0}, s{sU0}, {WS_FK}\ns_lshl_b32 s{sU1}, s{sU1}, 10\ns_add_u32 s{sU1}, s{sU1}, {WS_KVF}')
    S(f's_mov_b32 s{sSEL_LO}, 0x00003f80\ns_mov_b32 s{sSEL_HI}, 0x3f800000')
    for i in range(8): S(f'v_mov_b32 v{16+i}, 0')
    S(f's_cmp_eq_u32 s{sW4}, 1\ns_cselect_b32 s{sT3}, -1, 0\ns_mov_b32 s{sT2}, 0')
    poll(S, 8, sT0, 16, 9, 1)
    stamp(S, 8)
    for rb in range(16):
        if rb % 2 == 0: S(f's_add_u32 s{sT0}, s{sU2}, {rb*2048}')
        S(f'buffer_load_dwordx4 {v(32+4*rb,4)}, v{vL16}, {srd(SRD_WS)}, s{sT0} offen offset:{(rb%2)*2048} sc1')
    S(f'v_and_b32 v8, 31, v{vLANE}\nv_cmp_eq_u32 vcc, 29, v8')
    for rb in range(16):
        for i in range(4):
            S(f'v_dot2c_f32_bf16 v{16+2*i}, s{sSEL_LO}, v{32+4*rb+i}\nv_dot2c_f32_bf16 v{17+2*i}, s{sSEL_HI}, v{32+4*rb+i}')
    stamp(S, 10)
    for i in range(8): S(f'v_cndmask_b32 v{16+i}, v{16+i}, 1.0, vcc')
    for i in range(4): S(f'v_cvt_pk_bf16_f32 v{24+i}, v{16+2*i}, v{17+2*i}')
    S(f'v_cndmask_b32 v26, v26, 0, s[{sT2}:{sT3}]\nv_cndmask_b32 v27, v27, 0, s[{sT2}:{sT3}]')
    S(f'buffer_store_dwordx4 v[24:27], v{vL16}, {srd(SRD_WS)}, s{sU1} offen sc1')
    S('s_waitcnt vmcnt(0)')
    flag_store(S, sU0, 28)
    stamp(S, 9)

Opt.kvstep = 14
def fin_after(prefix, body):
    mark = Ins('L_MARK__:')
    o = finalize(prefix + [mark] + body)
    return o[o.index(mark) + 1:]

def build():
    assert sT2 % 2 == 0 and sT3 == sT2 + 1
    parts = []
    P = Stream(); prologue(P)
    P(f's_cmp_ge_u32 s{sWAVE}, 4\ns_cbranch_scc1 L_lwave')
    parts.append(finalize(P.l))
    C = Stream(); c_common(C); C(f's_cmp_ge_u32 s{sROLE}, 8\ns_cbranch_scc1 L_cattn')
    S = Stream(); c_ffn(S); c_publish(S, False, True); S('s_branch L_aphase'); parts.append(finalize(C.l + S.l))
    S = Stream(); S('L_cspare:\ns_waitcnt vmcnt(0)'); c_publish(S, True, False); S('s_branch L_fin'); parts.append(finalize(S.l))
    S = Stream(); S('L_cattn:'); c_attn(S)
    S(f's_cmp_ge_u32 s{sI}, 12\ns_cbranch_scc1 L_cspare'); c_publish(S, True, True); parts.append(fin_after(C.l, S.l))
    S = Stream(); S('L_aphase:'); a_phase2(S); S('s_branch L_fin'); parts.append(finalize(S.l))
    S = Stream(); S('L_lwave:'); l_decode(S)
    S(f's_cmp_ge_u32 s{sROLE}, 8\ns_cbranch_scc1 L_lattn'); l_phase1(S, True, True); f_phase2(S, False); S('s_branch L_fin'); parts.append(finalize(S.l))
    S = Stream(); S('L_lattn:'); S(f's_cmp_ge_u32 s{sI}, 12\ns_cbranch_scc1 L_lspare'); l_phase1(S, False, True); f_phase2(S, True); S('s_branch L_fin'); parts.append(finalize(S.l))
    S = Stream(); S('L_lspare:'); l_phase1(S, False, False); reducer(S); parts.append(finalize(S.l))
    S = Stream(); S('L_fin:'); diag_out(S); S('L_end:\ns_endpgm'); parts.append(finalize(S.l))
    hdr = open('recurrent_scan__linear_kernel_hedgehog__dense_activation_silu__prompt.s.ref').read().split('\n')
    top = [l for l in hdr[:13] if l.startswith(';') and '@launch' not in l and 'Override' not in l and 'grid=ceil' not in l]
    out = '\n'.join(top) + f'\n; @launch grid=(256,1,1) block=(512,1,1) lds={LDS_TOTAL}\n'
    out += f'.amdgcn_target "amdgcn-amd-amdhsa--gfx950"\n.text\n.globl {NAME}\n.p2align 8\n.type {NAME},@function\n{NAME}:\n'
    for p in parts:
        t = text(p)
        if Opt.nosc1 == 2: t = '\n'.join(l.replace(' sc1', ' nt sc1') if 'buffer_store_dwordx4' in l else l for l in t.split('\n'))
        if Opt.nosc1 == 3: t = '\n'.join(l.replace('offen', 'offen idxen').replace(', v2,', ', v[0:1],') if False else l for l in t.split('\n'))
        if Opt.nosc1 == 1: t = '\n'.join(l.replace(' sc1', '') if 'buffer_store_dwordx4' in l else l for l in t.split('\n'))
        out += t
    out += f'''.section .rodata,"a"
.p2align 6
.amdhsa_kernel {NAME}
  .amdhsa_next_free_vgpr 256
  .amdhsa_next_free_sgpr 102
  .amdhsa_accum_offset 256
  .amdhsa_group_segment_fixed_size 0
  .amdhsa_kernarg_size 80
  .amdhsa_user_sgpr_count 2
  .amdhsa_user_sgpr_kernarg_segment_ptr 1
  .amdhsa_system_sgpr_workgroup_id_x 1
.end_amdhsa_kernel
'''
    return out

if __name__ == '__main__':
    for a in sys.argv[2:]:
        k, _, val = a.partition('='); setattr(Opt, k, int(val) if val else True)
    open(sys.argv[1], 'w').write(build())
```

```python
import sys, struct
sys.path.insert(0, "dev")
from asmlib import *

NAME = "recurrent_scan__linear_kernel_hedgehog__dense_activation_silu__prompt_kernel"
K1 = 1024
import os
WS_H   = int(os.environ.get('WSOFF', '0')) << 20
WS_PQ  = WS_H + 64 * 112 * K1
WS_KVP = WS_PQ + 64 * 16 * 4096
WS_KVF = WS_KVP + 32 * 16 * 4096
WS_FH  = WS_KVF + 64 * K1
WS_FP  = WS_FH + 256 * 4096
WS_FK  = WS_FP + 32 * 2048
WS_TAG = WS_FK + 8 * 4096
WS_DIAG = WS_TAG + 4096
WS_SIZE = WS_DIAG + 256 * 8 * 64
SLOT = 28 * K1
SPARE = 140 * K1
WPHI_L = 156 * K1
CTL = 160 * K1 - 512
LDS_TOTAL = 160 * K1
F_REG = 24 * K1
A_BASE = 96 * K1
A_REG = 16 * K1
EV_XFREE, EV_C0, EV_C1, EV_C2, EV_C3, EV_PK, EV_END, EV_V = range(8)
CN_WO, CN_LT, CN_PH, CN_KV, CN_PQ, CN_K2, CN_W2, CN_KG, CN_G = 7, 8, 9, 10, 11, 13, 15, 16, 17
EV_X1, EV_X2, EV_PL = 25, 26, 27
sBND = 70
L2E = 1.4426950408889634
def f2u(x): return struct.unpack('<I', struct.pack('<f', x))[0]
def hx(x): return '0x%08x' % (x & 0xffffffff)

sWAVE, sXCD, sI, sRB, sROLE = 3, 4, 5, 6, 7
SRD_X, SRD_W, SRD_WS, SRD_W2, SRD_WO, SRD_OUT, SRD_DBG, SRD_WPHI = 8, 12, 16, 20, 24, 28, 32, 36
sTB, sCB, sIDX, sTAG, sPITCH = 40, 41, 42, 43, 44
sCOL = [45, 46, 47]
sCOLS = 48
sSEL_LO, sSEL_HI = 49, 63
sT0, sT1, sT2, sT3 = 50, 51, 52, 53
sHI = 54
sROT1, sROT2, sM70 = 1, 57, 56
sCNT, sW4, sFT, sFS, sL2E = 58, 59, 60, 61, 62
sU0, sU1, sU2, sU3, sU4, sU5 = 64, 65, 66, 67, 68, 69
sKA_QKV, sKA_W1 = 80, 82
STAMP0 = 84
def srd(b): return f's[{b}:{b+3}]'
def v(a, n=1): return f'v{a}' if n == 1 else f'v[{a}:{a+n-1}]'
HI = f's[{sHI}:{sHI+1}]'

class Opt:
    diag = False
    ncen = 18
    sleep = 8
    early = False
    rot = 1
    lprio = 1
    lsleep = 1
    nodma = 0
    nosc1 = 0
    nowo = 0
    wpf = 0
    xfirst = 3
    w2pf = 0
    gpf = 1
    mini = 0
    vsteps = 3
    hint = 1
    athr = 4
    rsleep = 3
    ackdiag = 0
    pk = 0
    pkq = 1
    trpace = 1
    aw2 = 10
    tr1 = 3
    tlb = 0
    s4hook = 1
    afirst = 0
    mixst = 0
    l2pf = 0
    gk0 = 14
    early_f = 0
    oprio = 1
    smin = 999
    nreg = 12
    xbar = 6
    kgat = 20
    wolate = 0
    wostep = 9
    map2 = 0
    ppf = 0
    pps = 3
    ppw = 4
    tr0 = 0
    plwait = 0
    gk1 = 22
    agate = 3
    h5at = 44
    kprio = 1
    aprio = 0
    bthr = 20
    trfirst = 0
    thr = 40
    xpipe = 4
    fine = -1
    cpf = 1
    wopf = 1
    phi1 = 1
    fprio = 1
    dbgout = 0
    outsc = ''
    empty = 0
    xcc = 0
    fdiag = 0
    nophi = 0
    notr = 0
    cprio = 0
    predelay = 0
    ksleep = 6

def stamp(S, k):
    if not Opt.diag: return
    if Opt.mini and k not in (0, 15): return
    if Opt.fine >= 0:
        if k == 0: S('s_memtime s[100:101]\ns_waitcnt lgkmcnt(0)\ns_mov_b32 s71, s100')
        return
    if isinstance(k, str):
        if not Opt.early: return
        k = int(k[1:])
    elif Opt.early and 3 <= k < 15: return
    S(f'{"s_memtime" if Opt.diag == 2 else "s_memrealtime"} s[100:101]\ns_waitcnt lgkmcnt(0)\ns_mov_b32 s{STAMP0+k}, s100')

def diag_out(S):
    if not Opt.diag: return
    S('s_waitcnt vmcnt(0) lgkmcnt(0)')
    stamp(S, 15)
    if Opt.xcc: S(f's_getreg_b32 s{STAMP0+11}, hwreg(HW_REG_XCC_ID)\ns_getreg_b32 s{STAMP0+12}, hwreg(HW_REG_HW_ID)')
    if Opt.dbgout:
        lab = newlab('dg')
        S(f's_not_b32 s{STAMP0+14}, s{STAMP0}')
        if Opt.dbgout == 1: S(f's_cmp_ge_u32 s{sWAVE}, 4')
        else: S(f's_cmp_lt_u32 s{sWAVE}, 4')
        S(f's_cbranch_scc1 {lab}')
        S('v_mov_b32 v16, 0')
        for k in range(1, 16): S(f'v_writelane_b32 v16, s{STAMP0+k}, {k}')
        S(f'v_mbcnt_lo_u32_b32 v17, -1, 0\nv_lshlrev_b32 v17, 2, v17\ns_mov_b64 exec, 0xfffe')
        S(f'buffer_atomic_umax v16, v17, {srd(SRD_DBG)}, 0 offen sc1')
        S(f'{lab}:\ns_endpgm')
    if Opt.fine >= 0:
        S('v_mov_b32 v16, s71\nv_mov_b32 v31, s71')
        for k in range(14): S(f'v_mov_b32 v{17+k}, s{72+2*k}')
    else:
        for k in range(16): S(f'v_mov_b32 v{16+k}, s{STAMP0+k}')
    S(f's_lshl_b32 s{sT0}, s2, 3\ns_add_u32 s{sT0}, s{sT0}, s{sWAVE}\ns_lshl_b32 s{sT0}, s{sT0}, 6\ns_add_u32 s{sT0}, s{sT0}, {WS_DIAG}')
    S('v_mov_b32 v40, 0\ns_mov_b64 exec, 1')
    for k in range(4): S(f'buffer_store_dwordx4 v[{16+4*k}:{19+4*k}], v40, {srd(SRD_WS)}, s{sT0} offen offset:{16*k}')

def half_base(h): return ((h + 4) % 5) * SLOT

_lab = [0]
def newlab(p):
    _lab[0] += 1; return f'L_{p}{_lab[0]}'
def RAW(t):
    i = Ins(t); i.kind = 'salu'; i.rd = set(); i.wr = set(); return i
def raw(S, t):
    for l in t.split('\n'):
        S.l.append(Ins(l) if l.endswith(':') else RAW(l))

vCTL, vLANE, vL16 = 0, 1, 2
def mk_srd(S, items):
    for b, lo, size in items:
        S(f's_mov_b64 s[{b}:{b+1}], s[{lo}:{lo+1}]\ns_mov_b32 s{b+2}, {size}\ns_mov_b32 s{b+3}, 0x20000')
def prologue(S):
    S(f's_cmp_ge_u32 s2, {0 if Opt.empty else 256}\ns_cbranch_scc1 L_end')
    if Opt.diag:
        for k in range(16): S(f's_mov_b32 s{STAMP0+k}, 0')
        if Opt.fine >= 0: S('s_mov_b32 s84, 1\ns_mov_b32 s86, 1\ns_mov_b32 s88, 1\ns_mov_b32 s90, 1\ns_mov_b32 s92, 1\ns_mov_b32 s94, 1\ns_mov_b32 s96, 1\ns_mov_b32 s98, 1')
    stamp(S, 0)
    S('s_load_dwordx16 s[64:79], s[0:1], 0\ns_load_dwordx4 s[80:83], s[0:1], 64')
    S(f'v_lshrrev_b32 v3, 6, v0\nv_and_b32 v{vLANE}, 63, v0\nv_readfirstlane_b32 s{sWAVE}, v3\nv_lshlrev_b32 v{vL16}, 4, v{vLANE}')
    S(f's_and_b32 s{sXCD}, s2, 7\ns_lshr_b32 s{sI}, s2, 3\ns_and_b32 s{sT3}, s{sI}, 3\ns_lshr_b32 s{sT2}, s{sI}, 2\ns_xor_b32 s{sT2}, s{sT2}, 4')
    S(f's_lshr_b32 s{sRB}, s{sXCD}, 1\ns_lshl_b32 s{sRB}, s{sRB}, 2\ns_add_u32 s{sRB}, s{sRB}, s{sT3}')
    S(f's_lshl_b32 s{sROT1}, s{sT3}, 1\ns_add_u32 s{sROT1}, s{sROT1}, s{sT2}\ns_sub_u32 s{sT0}, s{sROT1}, 7\ns_cmp_ge_u32 s{sROT1}, 7\ns_cselect_b32 s{sROT1}, s{sT0}, s{sROT1}')
    S(f's_and_b32 s{sW4}, s{sWAVE}, 3')
def decode2(S):
    if Opt.map2:
        S(f's_and_b32 s{sT1}, s{sXCD}, 1\ns_lshr_b32 s{sCB}, s{sROT1}, 1\ns_and_b32 s{sT0}, s{sROT1}, 1\ns_cmp_eq_u32 s{sROT1}, 6\ns_cselect_b32 s{sT0}, s{sT1}, s{sT0}')
        S(f's_lshl_b32 s{sT0}, s{sT0}, 2\ns_add_u32 s{sTB}, s{sT0}, s{sT3}')
        S(f's_lshl_b32 s{sROT2}, s{sCB}, 3\ns_mul_i32 s{sT0}, s{sTB}, 3\ns_add_u32 s{sROT2}, s{sROT2}, s{sT0}\ns_sub_u32 s{sT0}, s{sROT2}, 28\ns_cmp_ge_u32 s{sROT2}, 28\ns_cselect_b32 s{sROT2}, s{sT0}, s{sROT2}')
        S(f's_lshl_b32 s{sT1}, s{sT1}, 2\ns_add_u32 s{sT1}, s{sT1}, s{sCB}\ns_cmp_eq_u32 s{sROT1}, 6\ns_cselect_b32 s{sCB}, 3, s{sT1}')
        S(f's_lshr_b32 s{sT0}, s{sXCD}, 1\ns_lshl_b32 s{sT0}, s{sT0}, 3\ns_add_u32 s{sTB}, s{sTB}, s{sT0}')
    else:
        S(f's_mov_b32 s{sCB}, s{sROT1}\ns_lshl_b32 s{sTB}, s{sXCD}, 2\ns_add_u32 s{sTB}, s{sTB}, s{sT3}')
    S(f's_and_b32 s{sIDX}, s{sXCD}, 1\ns_lshl_b32 s{sIDX}, s{sIDX}, 2\ns_and_b32 s{sT0}, s{sT2}, 3\ns_add_u32 s{sIDX}, s{sIDX}, s{sT0}')
    S(f's_and_b32 s{sT0}, s{sT2}, 4\ns_lshl_b32 s{sT0}, s{sT0}, 1\ns_add_u32 s{sROLE}, s{sIDX}, s{sT0}')
    if not Opt.map2: S(f's_mul_i32 s{sROT2}, s{sT3}, 7\ns_lshl_b32 s{sT0}, s{sCB}, 2\ns_add_u32 s{sROT2}, s{sROT2}, s{sT0}\ns_sub_u32 s{sT0}, s{sROT2}, 28\ns_cmp_ge_u32 s{sROT2}, 28\ns_cselect_b32 s{sROT2}, s{sT0}, s{sROT2}')
    S(f's_lshl_b32 s{sT0}, s{sW4}, 2\ns_add_u32 s{sT0}, s{sT0}, {CTL}\nv_mov_b32 v{vCTL}, s{sT0}')
    S(f's_mov_b32 s{sHI}, 0\ns_mov_b32 s{sHI+1}, -1\ns_mov_b32 s{sL2E}, {hx(f2u(L2E))}\ns_movk_i32 s{sM70}, 0x70')
def l_decode(S):
    S(f'v_lshlrev_b32 v4, 3, v{vLANE}\nv_add_u32 v4, {CTL}, v4\nv_mov_b32 v6, 0\nv_mov_b32 v7, 0\nds_write_b64 v4, v[6:7]')
    decode2(S)
    S(f's_mul_i32 s{sT0}, s{sIDX}, 448\ns_and_b32 s{sT1}, s{sIDX}, 1\ns_lshl_b32 s{sT2}, s{sT1}, 6\ns_add_u32 s{sT2}, s{sT2}, s{sT0}')
    S(f's_mul_i32 s{sT1}, s{sT1}, 384\ns_sub_u32 s{sCOLS}, s{sT0}, s{sT1}\ns_add_u32 s{sCOLS}, s{sCOLS}, 384')
    S(f's_mul_i32 s{sT0}, s{sIDX}, 112')
    S(f's_add_u32 s{sT1}, s{sT0}, 896\ns_add_u32 s{sT3}, s{sT0}, 1792\ns_add_u32 s{sCOL[1]}, s{sT2}, 128\ns_add_u32 s{sCOL[2]}, s{sT2}, 256')
    S(f's_movk_i32 s{sPITCH}, 3584\ns_cmp_ge_u32 s{sROLE}, 8')
    S(f's_cselect_b32 s{sCOL[0]}, s{sT1}, s{sT2}\ns_cselect_b32 s{sPITCH}, 2688, s{sPITCH}')
    S(f's_cselect_b32 s{sCOL[1]}, s{sT3}, s{sCOL[1]}\ns_cselect_b32 s{sCOL[2]}, s{sT0}, s{sCOL[2]}')
    S(f's_mul_i32 s{SRD_W+2}, s{sPITCH}, 448\ns_mov_b32 s{SRD_W+3}, 0x20000')
    swz_voff(S, vLW, f's{sPITCH}', 8)
    S('s_waitcnt lgkmcnt(0)')
    S(f's_cmp_ge_u32 s{sROLE}, 8\ns_cselect_b64 s[{SRD_W}:{SRD_W+1}], s[66:67], s[74:75]')
    mk_srd(S, ((SRD_X, 64, 2048 * 896), (SRD_WS, 82, WS_SIZE), (SRD_W2, 76, 1792 * 896), (SRD_WO, 70, 448 * 896), (SRD_OUT, 78, 2048 * 896), (SRD_DBG, 80, 256), (SRD_WPHI, 68, 16 * 1568)))
    S(f's_mov_b64 s[{sKA_QKV}:{sKA_QKV+1}], s[66:67]\ns_mov_b64 s[{sKA_W1}:{sKA_W1+1}], s[74:75]')

TAGW = 320
def tag_fetch_l0(S):
    a, b = newlab('tf'), newlab('tf')
    S(f's_cmp_lg_u32 s{sW4}, 0\ns_cbranch_scc1 {b}')
    raw(S, f's_mov_b32 s{sBND}, 0\nv_mov_b32 v15, 0\n{a}:\nbuffer_load_dword v14, v15, {srd(SRD_DBG)}, 0 offen sc1\ns_waitcnt vmcnt(0)\nv_readfirstlane_b32 s{sTAG}, v14\ns_add_u32 s{sBND}, s{sBND}, 1\n'
           f's_max_u32 s{sCNT}, s{sBND}, 0x20000\ns_sub_u32 s{sCNT}, s{sCNT}, 0x20000\ns_or_b32 s{sTAG}, s{sTAG}, s{sCNT}\ns_cmp_eq_u32 s{sTAG}, 0\ns_cbranch_scc1 {a}\n'
           f'v_mov_b32 v14, s{sTAG}\ns_mov_b64 exec, 15\nds_write_b32 v{vLC}, v14 offset:{TAGW}\ns_mov_b64 exec, -1\ns_waitcnt lgkmcnt(0)\n{b}:')
def ltag_issue(S):
    S(f'v_mov_b32 v197, 0\nbuffer_load_dword v198, v197, {srd(SRD_DBG)}, 0 offen sc1')
def ltag_get(S):
    a, b = newlab('tf'), newlab('tf')
    S(f'v_readfirstlane_b32 s{sTAG}, v198\ns_cmp_lg_u32 s{sTAG}, 0\ns_cbranch_scc1 {b}')
    raw(S, f's_mov_b32 s{sBND}, 0\n{a}:\nbuffer_load_dword v198, v197, {srd(SRD_DBG)}, 0 offen sc1\ns_waitcnt vmcnt(0)\nv_readfirstlane_b32 s{sTAG}, v198\ns_add_u32 s{sBND}, s{sBND}, 1\n'
           f's_max_u32 s{sCNT}, s{sBND}, 0x20000\ns_sub_u32 s{sCNT}, s{sCNT}, 0x20000\ns_or_b32 s{sTAG}, s{sTAG}, s{sCNT}\ns_cmp_eq_u32 s{sTAG}, 0\ns_cbranch_scc1 {a}\n{b}:')
    S(f'v_mov_b32 v198, s{sTAG}\nds_write_b32 v{vCTL}, v198 offset:{TAGW}')
def tag_prefetch(S, vt):
    S(f'ds_read_b32 v{vt}, v{vCTL} offset:{TAGW}')
def tag_get(S, vt):
    a, b = newlab('tg'), newlab('tg')
    S(f'v_readfirstlane_b32 s{sTAG}, v{vt}')
    S(f's_cmp_lg_u32 s{sTAG}, 0\ns_cbranch_scc1 {b}')
    raw(S, f'{a}:\nds_read_b32 v{vt}, v{vCTL} offset:{TAGW}\ns_sleep 1\ns_waitcnt lgkmcnt(0)\nv_readfirstlane_b32 s{sTAG}, v{vt}\ns_nop 0\ns_cmp_eq_u32 s{sTAG}, 0\ns_cbranch_scc1 {a}\n{b}:')

def poll(S, voff, soff, nl, vt, sleep=None):
    a, b = newlab('pl'), newlab('pl')
    S(f's_mov_b64 exec, {hex((1 << nl) - 1)}\ns_mov_b32 s{sCNT}, 0')
    S(f'{a}:')
    S(f'buffer_load_dword v{vt}, v{voff}, {srd(SRD_WS)}, s{soff} offen sc1')
    S('s_waitcnt vmcnt(0)')
    S(f'v_cmp_ne_u32 vcc, s{sTAG}, v{vt}')
    S(f's_add_u32 s{sCNT}, s{sCNT}, 1\ns_cbranch_vccz {b}\ns_cmp_gt_u32 s{sCNT}, 0x20000\ns_cbranch_scc1 {b}\ns_sleep {sleep or Opt.sleep}\ns_branch {a}')
    S(f'{b}:')
    S('s_mov_b64 exec, -1')

def flag_store(S, soff, vt, n=1, shift=8):
    for i in range(4): S(f'v_mov_b32 v{vt+i}, s{sTAG}')
    S(f'v_lshrrev_b32 v{vt+4}, 3, v{vLANE}\nv_lshlrev_b32 v{vt+4}, {shift}, v{vt+4}\nv_and_or_b32 v{vt+4}, v{vL16}, s{sM70}, v{vt+4}')
    m = (1 << (8 * n)) - 1
    if n < 8: S(f's_mov_b32 exec_lo, {hex(m & 0xffffffff)}\ns_mov_b32 exec_hi, {hex(m >> 32)}')
    S(f'buffer_store_dwordx4 {v(vt,4)}, v{vt+4}, {srd(SRD_WS)}, s{soff} offen sc1')
    if n < 8: S('s_mov_b64 exec, -1')

def c_signal(ev):
    return [Ins(f'ds_write_b32 v{vCTL}, v{vCTL} offset:{16*ev}')]
def cnt_read(idx, vt):
    return [Ins(f'ds_read_b32 v{vt}, v{vCTL} offset:{128 + 16*idx}')]
def cnt_check(idx, vt, sleep=0):
    S = Stream(); a, b = newlab('ck'), newlab('ck')
    S(f'v_readfirstlane_b32 s{sCNT}, v{vt}\ns_cmp_ge_u32 s{sCNT}, 4\ns_cbranch_scc1 {b}')
    raw(S, f's_mov_b32 s{sBND}, 0\n{a}:\nds_read_b32 v{vt}, v{vCTL} offset:{128 + 16*idx}\ns_add_u32 s{sBND}, s{sBND}, 1\ns_cmp_gt_u32 s{sBND}, 0x40000\ns_cbranch_scc1 {b}\ns_sleep {sleep}\ns_waitcnt lgkmcnt(0)\nv_readfirstlane_b32 s{sCNT}, v{vt}\ns_nop 0\ns_cmp_lt_u32 s{sCNT}, 4\ns_cbranch_scc1 {a}\n{b}:')
    return S.l
def c_allflags(ev, vt, va):
    S = Stream(); a, b = newlab('cf'), newlab('cf')
    S(f'v_mov_b32 v{va}, {CTL}\nds_read_b128 v[{vt}:{vt+3}], v{va} offset:{16*ev}')
    S2 = Stream()
    S2(f'v_min3_u32 v{vt}, v{vt}, v{vt+1}, v{vt+2}\nv_min_u32 v{vt}, v{vt}, v{vt+3}\nv_readfirstlane_b32 s{sCNT}, v{vt}\ns_cmp_lg_u32 s{sCNT}, 0\ns_cbranch_scc1 {b}')
    raw(S2, f's_mov_b32 s{sBND}, 0\n{a}:\nds_read_b128 v[{vt}:{vt+3}], v{va} offset:{16*ev}\ns_add_u32 s{sBND}, s{sBND}, 1\ns_cmp_gt_u32 s{sBND}, 0x40000\ns_cbranch_scc1 {b}\ns_waitcnt lgkmcnt(0)\n'
            f'v_min3_u32 v{vt}, v{vt}, v{vt+1}, v{vt+2}\nv_min_u32 v{vt}, v{vt}, v{vt+3}\ns_nop 0\nv_readfirstlane_b32 s{sCNT}, v{vt}\ns_nop 0\ns_cmp_eq_u32 s{sCNT}, 0\ns_cbranch_scc1 {a}\n{b}:')
    return S.l, S2.l
vLC, vLONE, vLP = 11, 12, 188
def l_signal(S, idx):
    S(f's_mov_b64 exec, 15\nds_add_u32 v{vLC}, v{vLONE} offset:{128 + 16*idx}\ns_mov_b64 exec, -1')
def l_wait(S, ev, vLP=vLP):
    a, b = newlab('lw'), newlab('lw')
    S('s_waitcnt lgkmcnt(0)')
    raw(S, f's_mov_b32 s{sBND}, 0\n{a}:\nds_read_b128 v[{vLP}:{vLP+3}], v{vLP+4} offset:{16*ev}\ns_add_u32 s{sBND}, s{sBND}, 1\ns_cmp_gt_u32 s{sBND}, 0x40000\ns_cbranch_scc1 {b}\ns_sleep {Opt.lsleep}\ns_waitcnt lgkmcnt(0)\nv_min3_u32 v{vLP}, v{vLP}, v{vLP+1}, v{vLP+2}\nv_min_u32 v{vLP}, v{vLP}, v{vLP+3}\ns_nop 0\nv_readfirstlane_b32 s{sCNT}, v{vLP}\ns_nop 0\ns_cmp_eq_u32 s{sCNT}, 0\ns_cbranch_scc1 {a}\n{b}:\ns_waitcnt lgkmcnt(0)')

X0 = 16; ACC = [[128, 144], [160, 176]]; AF = 192; WPHI = 224; T = 240; U = 224; TT = 248; NR = 4
vVA = [3, 4]; vWA = [5, 6]; vVS = 7; vR, vRM, vNRL, vSD, vCT, vNM = 8, 9, 10, 11, 12, 13; vTAG = 14

def lane_consts_tr(S, dst, tmp, cstride, rowmap):
    t0, t1, t2 = tmp, tmp + 1, tmp + 2
    S(f'v_bfe_u32 v{t0}, v{vLANE}, 2, 2')
    S(f'v_lshrrev_b32 v{t1}, 5, v{vLANE}')
    S(f'v_lshlrev_b32 v{t1}, {10 if rowmap == "A" else 9}, v{t1}\nv_lshl_add_u32 v{t1}, v{t0}, 7, v{t1}')
    S(f'v_bfe_u32 v{t0}, v{vLANE}, 3, 1\nv_lshlrev_b32 v{t0}, 6, v{t0}')
    S(f'v_bfe_u32 v{t2}, v{vLANE}, 4, 1\nv_lshlrev_b32 v{t2}, 5, v{t2}\nv_and_b32 v{dst[0]}, 3, v{vLANE}\nv_lshl_add_u32 v{t2}, v{dst[0]}, 3, v{t2}')
    S(f'v_xor_b32 v{dst[0]}, v{t2}, v{t0}\nv_add_u32 v{dst[0]}, v{dst[0]}, v{t1}')
    S(f'v_add_u32 v{t2}, {cstride}, v{t2}\nv_xor_b32 v{dst[1]}, v{t2}, v{t0}\nv_add_u32 v{dst[1]}, v{dst[1]}, v{t1}')

def trb(St, dst, hfshift, pitch, tmp):
    St(f'v_lshrrev_b32 v{tmp}, 5, v{vLANE}\nv_lshlrev_b32 v{tmp}, {hfshift}, v{tmp}\nv_bfe_u32 v{dst}, v{vLANE}, 2, 2\nv_add_u32 v{tmp}, v{tmp}, v{dst}\nv_mul_u32_u24 v{dst}, {pitch}, v{tmp}')
    St(f'v_bfe_u32 v{tmp}, v{vLANE}, 4, 1\nv_lshl_add_u32 v{dst}, v{tmp}, 5, v{dst}\nv_and_b32 v{tmp}, 3, v{vLANE}\nv_lshl_add_u32 v{dst}, v{tmp}, 3, v{dst}')

def wrap_inc(S, reg, inc, lim):
    S(f's_add_u32 s{reg}, s{reg}, {inc}\ns_cmp_eq_u32 s{reg}, {lim}\ns_cselect_b32 s{reg}, 0, s{reg}')

def c_load_x(S):
    a, b = T, T + 1
    S(f'v_lshrrev_b32 v{T+2}, 3, v{vLANE}\nv_mul_u32_u24 v{a}, 896, v{T+2}')
    S(f'v_lshrrev_b32 v{T+2}, 4, v{vLANE}\nv_and_b32 v{T+3}, 7, v{vLANE}\nv_xor_b32 v{T+2}, v{T+2}, v{T+3}\nv_lshl_add_u32 v{a}, v{T+2}, 4, v{a}\nv_xor_b32 v{b}, 64, v{a}')
    S(f'v_add_u32 v{b}, {8*896}, v{b}\nv_add_u32 v{T+2}, {16*896}, v{a}\nv_add_u32 v{T+3}, {16*896}, v{b}')
    sXB, sXL, sXR, sXO = sFT, sFS, sCOL[0], sCOL[1]
    S(f's_lshl_b32 s{sXB}, s{sRB}, 2\ns_add_u32 s{sXB}, s{sXB}, s{sWAVE}\ns_mul_i32 s{sXB}, s{sXB}, {32*896}')
    S(f's_mul_i32 s{sXL}, s{sWAVE}, {SLOT}\ns_lshl_b32 s{sXR}, s{sROT1}, 7')
    S(f's_mov_b32 s{SRD_X+2}, {2048*896}\ns_mov_b32 s{SRD_X+3}, 0x20000')
    stamp(S, 'e3')
    S(f's_waitcnt lgkmcnt(0)\ns_mov_b64 s[{SRD_X}:{SRD_X+1}], s[64:65]')
    stamp(S, 'e4')
    def xdma(lc):
        S(f's_add_u32 s{sXO}, s{sXB}, s{sXR}')
        for g in range(4):
            S(f's_add_u32 m0, s{sXL}, {lc*4096 + g*1024}')
            if g == 0 and lc < 6: wrap_inc(S, sXR, 128, 896)
            S(f'buffer_load_dwordx4 v{T+g}, {srd(SRD_X)}, s{sXO} offen lds', tok=('x', lc))
    for lc in range(Opt.xpipe): xdma(lc)
    decode2(S)
    mk_srd(S, ((SRD_WS, 82, WS_SIZE), (SRD_OUT, 78, 2048 * 896), (SRD_WO, 70, 448 * 896)))
    if Opt.xpipe >= 7: S('s_barrier')
    sT1_ = sXL
    stamp(S, 'e5')
    xa = T + 4
    S(f'v_and_b32 v{TT}, 31, v{vLANE}\nv_bfe_u32 v{TT+1}, v{vLANE}, 1, 3\nv_lshrrev_b32 v{xa}, 5, v{vLANE}\nv_xor_b32 v{TT+1}, v{TT+1}, v{xa}')
    S(f'v_lshlrev_b32 v{TT+1}, 4, v{TT+1}\nv_lshl_add_u32 v{xa}, v{TT}, 7, v{TT+1}\nv_add_u32 v{xa}, s{sXL}, v{xa}')
    for q in range(1, 4): S(f'v_xor_b32 v{xa+q}, {q*32}, v{xa}')
    S(f's_mov_b32 s{sSEL_LO}, 0x00003f80\ns_mov_b32 s{sSEL_HI}, 0x3f800000')
    S(f's_cmp_ge_u32 s{sROLE}, 8\ns_cselect_b32 s{sT0}, 56, 64')
    lane_consts_tr(S, vVA, TT, f's{sT0}', 'A')
    sA, sB, qA, qB, one = U, U + 1, U + 2, U + 3, U + 4
    S(f'v_mov_b32 v{sA}, 0\nv_mov_b32 v{sB}, 0\nv_mov_b32 v{qA}, 0\nv_mov_b32 v{qB}, 0\nv_mov_b32 v{one}, 0x3f803f80')
    def stats(lc):
        for q in range(4):
            for j in range(4):
                r = X0 + (lc * 4 + q) * 4 + j
                S(f'v_dot2c_f32_bf16 v{sA + (j & 1)}, v{r}, v{one}\nv_dot2c_f32_bf16 v{qA + (j & 1)}, v{r}, v{r}')
    for lc in range(7):
        S.wait(('x', lc))
        if lc in (0, 3, 6): stamp(S, 'e%d' % (6 + lc // 3))
        for q in range(4):
            S(f'ds_read_b128 {v(X0 + (lc*4+q)*4, 4)}, v{xa+q} offset:{lc*4096}')
        if lc == 6: S.ext(c_signal(EV_XFREE))
        if lc + Opt.xpipe < 7: xdma(lc + Opt.xpipe)
        if lc + Opt.xpipe == Opt.xbar: S('s_barrier')
        if lc > 0: stats(lc - 1)
    stamp(S, 1)
    stats(6)
    t = U + 5
    S(f'v_add_f32 v{sA}, v{sA}, v{sB}\nv_add_f32 v{qA}, v{qA}, v{qB}\nv_mov_b32 v{sB}, v{sA}\nv_mov_b32 v{qB}, v{qA}')
    S(f'v_permlane32_swap_b32 v{sA}, v{sB}\nv_permlane32_swap_b32 v{qA}, v{qB}')
    S(f'v_add_f32 v{sA}, v{sA}, v{sB}\nv_add_f32 v{qA}, v{qA}, v{qB}')
    inv = hx(f2u(1.0 / 448))
    S(f'v_mul_f32 v{sA}, {inv}, v{sA}\nv_mul_f32 v{qA}, {inv}, v{qA}')
    S(f'v_fma_f32 v{qA}, -v{sA}, v{sA}, v{qA}\nv_max_f32 v{qA}, 0, v{qA}')
    S(f'v_cvt_pk_bf16_f32 v{t}, v{sA}, v{qA}')
    S(f'v_lshlrev_b32 v{vNM}, 16, v{t}\nv_xor_b32 v{vNM}, 0x80000000, v{vNM}')
    R = Stream()
    R(f'v_and_b32 v{qA}, 0xffff0000, v{t}\nv_add_f32 v{qA}, {hx(f2u(1e-5))}, v{qA}')
    R(f'v_cvt_pk_bf16_f32 v{t}, v{qA}, v{qA}\nv_and_b32 v{qA}, 0xffff0000, v{t}\nv_sqrt_f32 v{qA}, v{qA}')
    R(f'v_nop\nv_cvt_pk_bf16_f32 v{t}, v{qA}, v{qA}\nv_and_b32 v{vSD}, 0xffff0000, v{t}\nv_rcp_f32 v{vR}, v{vSD}')
    R(f'v_nop\nv_mul_f32 v{vNRL}, {hx(f2u(-L2E))}, v{vR}\nv_cndmask_b32 v{vRM}, v{vR}, 0, {HI}')
    return R.l

def center(s):
    S = Stream()
    for j in range(4):
        r = X0 + s * 4 + j
        a, b = TT + 2 * j, TT + 2 * j + 1
        S(f'v_dot2_f32_bf16 v{a}, v{r}, s{sSEL_LO}, v{vNM}\nv_dot2_f32_bf16 v{b}, v{r}, s{sSEL_HI}, v{vNM}')
    for j in range(4):
        r = X0 + s * 4 + j
        S(f'v_cvt_pk_bf16_f32 v{r}, v{TT+2*j}, v{TT+2*j+1}')
    return S.l
def center5(s):
    S = Stream()
    for j in range(4):
        r = X0 + s * 4 + j
        a, b = TT + 2 * j, TT + 2 * j + 1
        S(f'v_lshlrev_b32 v{a}, 16, v{r}\nv_and_b32 v{b}, 0xffff0000, v{r}\nv_add_f32 v{a}, v{a}, v{vNM}\nv_add_f32 v{b}, v{b}, v{vNM}')
        S(f'v_cvt_pk_bf16_f32 v{r}, v{a}, v{b}')
    return S.l

def silu_tile(acc, u, soff, tok):
    S = Stream()
    for g in range(4):
        a = acc + 4 * g
        for i in range(4): S(f'v_mul_f32 v{TT+i}, v{a+i}, v{vNRL}')
        for i in range(4): S(f'v_exp_f32 v{TT+i}, v{TT+i}')
        for i in range(4): S(f'v_fma_f32 v{TT+i}, v{TT+i}, v{vSD}, v{vSD}')
        for i in range(4): S(f'v_rcp_f32 v{TT+i}, v{TT+i}')
        for i in range(4): S(f'v_mul_f32 v{TT+4+i}, v{a+i}, v{TT+i}')
        S(f'v_cvt_pk_bf16_f32 v{u+2*g}, v{TT+4}, v{TT+5}\nv_cvt_pk_bf16_f32 v{u+2*g+1}, v{TT+6}, v{TT+7}')
        if g % 2 == 1:
            S(f'buffer_store_dwordx4 {v(u + 4*(g//2), 4)}, v{vL16}, {srd(SRD_WS)}, s{soff[0]} offen offset:{soff[1] + 1024*(g//2)} sc1', tok=tok)
    return S.l

def part(f, s, lo, hi):
    n = len(f); k = hi - lo + 1
    return f[(s - lo) * n // k:(s - lo + 1) * n // k]

CN_H1B = 14
class Steps:
    def __init__(self, single):
        self.steps = []
        for st in range(3):
            for s in range(28):
                h = st * 2 + s // 14; sp = s % 14
                p = dict(st=st, s=s, nt=2, h=h, off=sp * 2048, first=(sp == 0), last=(sp == 13), base=half_base(h), cn=h)
                if h == 1:
                    if sp < 8: p.update(base=SPARE, h1a=(sp == 7))
                    else: p.update(base=0, off=(sp - 8) * 2048, first=(sp == 8), cn=CN_H1B)
                self.steps.append(p)
        if single:
            for s in range(28):
                self.steps.append(dict(st=3, s=s, nt=1, h=6, off=s * K1, first=(s == 0), last=False, cn=6))
    def reads(self, n):
        if n >= len(self.steps): return [], []
        p = self.steps[n]; S = Stream(); pre = Stream()
        ring = AF + (n % NR) * 8
        if p['first']:
            pre.ext(cnt_check(p['cn'], vCT))
            if p['nt'] == 2:
                b = p['base']
                pre(f'v_add_u32 v{vWA[0]}, {b}, v{vVA[0]}\nv_add_u32 v{vWA[1]}, {b}, v{vVA[1]}')
        if p['nt'] == 2:
            for c in range(2):
                for u in range(2):
                    S(f'ds_read_b64_tr_b16 {v(ring + 4*c + 2*u, 2)}, v{vWA[c]} offset:{p["off"] + 512*u}', tok=('a', n))
        else:
            for u in range(2):
                S(f'ds_read_b64_tr_b16 {v(ring + 2*u, 2)}, v{vVS} offset:{p["off"] + 256*u}', tok=('a', n))
        if p['last'] and p['h'] < 4: S.ext(c_signal(EV_C0 + p['h']))
        if n + 3 < len(self.steps) and self.steps[n + 3]['first']:
            S.ext(cnt_read(self.steps[n + 3]['cn'], vCT))
        return pre.l, S.l
    def mfmas(self, n):
        p = self.steps[n]; ring = AF + (n % NR) * 8; out = []
        for c in range(p['nt']):
            acc = ACC[p['st'] % 2][c]
            C = '0' if p['s'] == 0 else v(acc, 16)
            out.append(Ins(f'v_mfma_f32_32x32x16_bf16 {v(acc,16)}, {v(ring+4*c,4)}, {v(X0+4*p["s"],4)}, {C}'))
        return out
    def stage(self, st, fill=None, perstep=None, mid=None):
        idx = [n for n, p in enumerate(self.steps) if p['st'] == st]
        groups = []
        for n in idx:
            p = self.steps[n]
            rd = self.reads(n + NR - 1)[1]
            pre = self.reads(n + NR)[0]
            m = self.mfmas(n)
            g = []
            if Opt.fine == st and p['s'] % 2 == 0 and p['s'] < 26: g.append(RAW(f's_memtime s[{72+p["s"]}:{73+p["s"]}]'))
            if mid and p['s'] in mid: g += mid[p['s']]
            on = p['s'] > 0 or perstep
            w = Stream(); w.wait(('a', n + 1))
            k = 2 if pre else 5
            if p['nt'] == 2:
                g += [m[0]] + rd + ([None] * 2 if on else []) + [m[1]] + w.l + ([None] * k if on else []) + pre
            else:
                g += [m[0]] + rd + ([None] * 3 if on else [])
            if perstep: g = interleave([g], perstep(p['s']))
            if Opt.fine == st and p['s'] == 27: g.append(RAW('s_memtime s[98:99]'))
            groups.append(g)
        if perstep: return [x for g in groups for x in g]
        return interleave(groups, fill)

def c_common(S):
    if Opt.cprio: S('s_setprio 2')
    rest = c_load_x(S)
    S.ext(cnt_read(0, vCT))
    for s in range(Opt.ncen): S.ext(center(s))
    P = Steps(True)
    for n in range(NR - 1):
        pre, rd = P.reads(n); S.ext(pre); S.ext(rd)
    stamp(S, 2)
    f = []
    for s in range(Opt.ncen, 28): f += center5(s)
    S.ext(P.stage(0, perstep=lambda s: part(f, s, 0, 25) if s < 26 else (rest if s == 26 else [])))
    stamp(S, 3)

def c_ffn(S):
    P = Steps(True)
    e = Stream(); t = T
    trb(e, vVS, 3, 64, t)
    e(f's_lshl_b32 s{sT0}, s{sRB}, 2\ns_add_u32 s{sT0}, s{sT0}, s{sWAVE}\ns_mul_i32 s{sT0}, s{sT0}, {112*K1}\ns_add_u32 s{sT0}, s{sT0}, {WS_H}')
    e(f's_mul_i32 s{sT1}, s{sIDX}, 7\ns_and_b32 s{sT2}, s{sIDX}, 1\ns_add_u32 s{sT3}, s{sT1}, s{sT2}\ns_lshl_b32 s{sT3}, s{sT3}, 11\ns_add_u32 s{sFT}, s{sT0}, s{sT3}')
    e(f's_mul_i32 s{sT2}, s{sT2}, 6\ns_sub_u32 s{sT1}, s{sT1}, s{sT2}\ns_add_u32 s{sT1}, s{sT1}, 6\ns_lshl_b32 s{sT1}, s{sT1}, 11\ns_add_u32 s{sFS}, s{sT0}, s{sT1}')
    for st in (1, 2, 3):
        pa = ACC[(st - 1) % 2]
        fill = (e.l if st == 1 else []) + [Ins(f's_add_u32 s{sT0}, s{sFT}, {(st-1)*4096}')]
        fill += silu_tile(pa[0], T, (sT0, 0), 'st') + silu_tile(pa[1], U, (sT0, 2048), 'st')
        if st == 3:
            t = Stream(); tag_prefetch(t, vTAG); fill = fill + t.l
        S.ext(P.stage(st, fill))
        stamp(S, 3 + st)
    S.ext(silu_tile(ACC[1][0], T, (sFS, 0), 'st'))

def minmax(S, X, mx, mn, t0, t1):
    for op, d in (('v_max3_f32', mx), ('v_min3_f32', mn)):
        S(f'{op} v{d}, v{X}, v{X+1}, v{X+2}')
        for i in range(3, 15, 2): S(f'{op} v{d}, v{d}, v{X+i}, v{X+i+1}')
    S(f'v_max_f32 v{mx}, v{mx}, v{X+15}\nv_min_f32 v{mn}, v{mn}, v{X+15}')
    S(f'v_mov_b32 v{t0}, v{mx}\nv_mov_b32 v{t1}, v{mn}\nv_permlane32_swap_b32 v{mx}, v{t0}\nv_permlane32_swap_b32 v{mn}, v{t1}')
    S(f'v_max_f32 v{mx}, v{mx}, v{t0}\nv_min_f32 v{mn}, v{mn}, v{t1}')
    S(f'v_mul_f32 v{mx}, {hx(f2u(-L2E))}, v{mx}\nv_mul_f32 v{mn}, {hx(f2u(L2E))}, v{mn}')

LX, LE, LT = 144, 160, 176
vLPW, vLMK, vLL2E, vLRD, vLWP = 185, 184, 186, 187, 193
def softmax_body(S, X, E0, tmp, l2e, pw, off, hook0=None):
    for i in range(4): S(f'v_cndmask_b32 v{X+12+i}, v{X+12+i}, v{X+8+i}, {HI}')
    mx, mn, t0, t1 = tmp, tmp + 2, tmp + 1, tmp + 3
    minmax(S, X, mx, mn, t0, t1)
    for sign in range(2):
        E = E0 if sign == 0 else X
        s0, s1 = tmp + 4, tmp + 5
        for i in range(16):
            if sign == 0: S(f'v_fma_f32 v{E+i}, v{X+i}, {l2e}, v{mx}')
            else: S(f'v_fma_f32 v{E+i}, -v{X+i}, {l2e}, v{mn}')
        for i in range(16): S(f'v_exp_f32 v{E+i}, v{E+i}')
        S(f'v_add_f32 v{s1}, v{E+12}, v{E+13}\nv_add_f32 v{s0}, v{E}, v{E+1}\nv_add_f32 v{s1}, v{s1}, v{E+14}')
        S(f'v_add_f32 v{s0}, v{s0}, v{E+2}\nv_add_f32 v{s1}, v{s1}, v{E+15}\nv_add_f32 v{s0}, v{s0}, v{E+3}\nv_cndmask_b32 v{s1}, v{s1}, 0, {HI}')
        for i in range(4, 12): S(f'v_add_f32 v{s0 + (i & 1)}, v{s0 + (i & 1)}, v{E+i}')
        S(f'v_add_f32 v{s0}, v{s0}, v{s1}\nv_mov_b32 v{s1}, v{s0}\nv_permlane32_swap_b32 v{s0}, v{s1}\nv_add_f32 v{s0}, v{s0}, v{s1}\nv_rcp_f32 v{s0}, v{s0}')
        for i in range(16): S(f'v_mul_f32 v{E+i}, v{E+i}, v{s0}')
        for i in range(8): S(f'v_cvt_pk_bf16_f32 v{E+i}, v{E+2*i}, v{E+2*i+1}')
        for qd in range(3):
            S(f'ds_write_b64 v{pw}, {v(E+2*qd, 2)} offset:{off + sign*56 + qd*16}')
        g = Stream(); g(f's_mov_b64 exec, 0xffffffff\nds_write_b64 v{pw}, {v(E+6, 2)} offset:{off + sign*56 + 48}\ns_mov_b64 exec, -1')
        S.l.append(Group(g.l))
        if sign == 0 and hook0: S.ext(hook0)

def softmax_k(hook0):
    S = Stream()
    rw = LE
    S(f'ds_read_b128 {v(rw,4)}, v{vLRD}\nds_read_b128 {v(rw+4,4)}, v{vLRD} offset:1024')
    for st in range(2):
        for u in range(2):
            S(f'ds_read_b64_tr_b16 {v(rw + 8 + 4*st + 2*u, 2)}, v{vLWP} offset:{(16*st + 8*u)*56}')
    S(f'v_mfma_f32_32x32x16_bf16 {v(LX,16)}, {v(rw+8,4)}, {v(rw,4)}, 0')
    S(f'v_mfma_f32_32x32x16_bf16 {v(LX,16)}, {v(rw+12,4)}, {v(rw+4,4)}, {v(LX,16)}')
    softmax_body(S, LX, LE, LT, f'v{vLL2E}', vLPW, 0, hook0)
    return S.l

def scale_pack(acc, dst, masked=True):
    S = Stream()
    for i in range(16): S(f'v_mul_f32 v{acc+i}, v{acc+i}, v{vRM if (masked and i >= 12) else vR}')
    for i in range(8): S(f'v_cvt_pk_bf16_f32 v{dst+i}, v{acc+2*i}, v{acc+2*i+1}')
    return S.l

def phi_mfma(acc, c, b):
    return [Ins(f'v_mfma_f32_32x32x16_bf16 {v(acc,16)}, {v(WPHI+8*c,4)}, {v(b,4)}, 0'),
            Ins(f'v_mfma_f32_32x32x16_bf16 {v(acc,16)}, {v(WPHI+8*c+4,4)}, {v(b+4,4)}, {v(acc,16)}')]

def c_attn(S):
    vHO, vVW, vWP = vVS, vNRL, vSD
    P = Steps(False)
    e = Stream(); t = TT
    trb(e, vWP, 2, 56, t)
    e(f'v_add_u32 v{vWP}, {WPHI_L}, v{vWP}')
    for c in range(2):
        for st in range(2):
            for u in range(2):
                e(f'ds_read_b64_tr_b16 {v(WPHI + 8*c + 4*st + 2*u, 2)}, v{vWP} offset:{c*1568 + (16*st + 8*u)*56}')
    ka = ACC[0]
    vPW = vNM
    h0 = Stream()
    h0(f's_lshl_b32 s{sT0}, s{sWAVE}, 12\ns_add_u32 s{sT0}, s{sT0}, {SPARE}\nv_add_u32 v{vHO}, s{sT0}, v{vL16}')
    h0.ext(scale_pack(ka[0], T))
    h0(f'ds_write_b128 v{vHO}, {v(T,4)}\nds_write_b128 v{vHO}, {v(T+4,4)} offset:1024')
    f1 = h0.l + c_signal(EV_PK)
    f1b = e.l + scale_pack(ka[1], T)
    sm = Stream(); softmax_body(sm, ka[1], ka[0], TT, f's{sL2E}', vPW, 14336)
    t = Stream()
    t(f'v_and_b32 v{TT+3}, 31, v{vLANE}\ns_lshl_b32 s{sT0}, s{sWAVE}, 5\nv_add_u32 v{TT+3}, s{sT0}, v{TT+3}\nv_lshrrev_b32 v{TT+4}, 5, v{vLANE}\nv_lshlrev_b32 v{TT+4}, 3, v{TT+4}')
    t(f'v_mul_u32_u24 v{vVW}, 72, v{TT+3}\nv_add_u32 v{vVW}, v{vVW}, v{TT+4}\nv_add_u32 v{vVW}, {SLOT}, v{vVW}')
    t(f'v_mul_u32_u24 v{vPW}, 112, v{TT+3}\nv_add_u32 v{vPW}, v{vPW}, v{TT+4}')
    f3 = t.l
    g1, g2 = c_allflags(EV_C2, T, T + 4)
    k1, k2 = c_allflags(EV_C1, TT, TT + 4)
    f1 = k1 + f1
    assert all(not x.op.startswith('ds_write') for x in part(f1, 1, 1, 4) + part(f1, 2, 1, 4))
    f2 = f1b + f3
    def ps1(s):
        if 1 <= s <= 4: return part(f1, s, 1, 4)
        if 5 <= s <= 9: return part(f2, s, 5, 9)
        if 11 <= s <= 27: return part(sm.l[:Opt.smin], s, 11, 27) + (g1 if s == 24 else [])
        return []
    S.ext(P.stage(1, perstep=ps1, mid={3: k2, 10: phi_mfma(ka[1], 1, T), 27: g2}))
    stamp(S, 4)
    va = ACC[1]
    t = Stream()
    for c in range(2):
        t.ext(scale_pack(va[c], T, masked=False))
        d = T
        t(f'v_cndmask_b32 v{d+6}, v{d+6}, v{TT+7}, {HI}\nv_cndmask_b32 v{d+7}, v{d+7}, 0, {HI}')
        for qd in range(4): t(f'ds_write_b64 v{vVW}, {v(d+2*qd, 2)} offset:{c*9216 + qd*16}')
    vfill = [Ins(f'v_mov_b32 v{TT+7}, 0x3f80')] + t.l
    if Opt.smin < len(sm.l):
        S.ext(sm.l[Opt.smin:Opt.smin + 14]); S.ext(vfill); S.ext(sm.l[Opt.smin + 14:]); S.ext(c_signal(EV_V)); vfill = []
        stamp(S, 11)
    else:
        vfill += c_signal(EV_V)
    tp = Stream(); tag_prefetch(tp, vTAG)
    def ps2(s):
        if 1 <= s <= Opt.vsteps: return part(vfill, s, 1, Opt.vsteps)
        if s == 20: return tp.l
        return []
    S.ext(P.stage(2, perstep=ps2))
    stamp(S, 5)
    S.ext(c_signal(EV_END))
    qa = ACC[0]
    S(f'v_mov_b32 v{TT}, s{sL2E}')
    S.ext(scale_pack(qa[0], T)); S.ext(phi_mfma(qa[0], 0, T)); S.ext(scale_pack(qa[1], AF + 16)); S.ext(phi_mfma(qa[1], 1, AF + 16))
    out_addr(S, XT, 32)
    for c in range(2):
        X = qa[c]; E = va[c]; d = AF + 16 * c
        for i in range(4): S(f'v_cndmask_b32 v{X+12+i}, v{X+12+i}, v{X+8+i}, {HI}')
        mx, mn = TT + 4, TT + 6
        minmax(S, X, mx, mn, TT + 5, TT + 7)
        for i in range(0, 16, 2): S(f'v_pk_fma_f32 {v(E+i,2)}, {v(X+i,2)}, {v(TT,2)}, {v(mx,2)} op_sel_hi:[1,0,0]')
        for i in range(16): S(f'v_exp_f32 v{E+i}, v{E+i}')
        for i in range(8): S(f'v_cvt_pk_bf16_f32 v{d+i}, v{E+2*i}, v{E+2*i+1}')
        for i in range(0, 16, 2): S(f'v_pk_fma_f32 {v(X+i,2)}, {v(X+i,2)}, {v(TT,2)}, {v(mn,2)} op_sel_hi:[1,0,0] neg_lo:[1,0,0] neg_hi:[1,0,0]')
        for i in range(16): S(f'v_exp_f32 v{X+i}, v{X+i}')
        for i in range(8): S(f'v_cvt_pk_bf16_f32 v{d+8+i}, v{X+2*i}, v{X+2*i+1}')
    stamp(S, 6)
    if Opt.oprio: S('s_setprio 2')
    tag_get(S, vTAG)
    PB, KF = 16, 160
    S(f's_lshl_b32 s{sT0}, s{sIDX}, 10\ns_add_u32 s{sT0}, s{sT0}, {WS_FK}\ns_lshl_b32 s{sT1}, s{sIDX}, 13\ns_add_u32 s{sT1}, s{sT1}, {WS_KVF}\ns_add_u32 s{sT2}, s{sT1}, 4096')
    S(f's_lshl_b32 s{sFS}, s{sRB}, 2\ns_add_u32 s{sFS}, s{sFS}, s{sWAVE}\ns_lshl_b32 s{sFS}, s{sFS}, 3\ns_add_u32 s{sFS}, s{sFS}, s{sIDX}\ns_lshl_b32 s{sFS}, s{sFS}, 12\ns_add_u32 s{sFS}, s{sFS}, {WS_PQ}')
    S(f'v_lshlrev_b32 v8, 7, v{vLANE}\nv_lshlrev_b32 v13, 2, v{vLANE}\nv_add_u32 v13, {CTL}, v13\nv_mov_b32 v9, 4')
    g_ = CN_W2 if False else CN_KG
    S.ext(cnt_read(g_, vCT)); S.ext(cnt_check(g_, vCT, 1))
    stamp(S, 8)
    again, oth, done = newlab('kv'), newlab('kv'), newlab('kv')
    S(f's_waitcnt vmcnt(0)\ns_mov_b32 s{sBND}, 0\ns_cmp_lg_u32 s{sW4}, 0\ns_cbranch_scc1 {oth}')
    raw(S, f'{again}:\ns_mov_b64 exec, 0xff\nbuffer_load_dword v10, v8, {srd(SRD_WS)}, s{sT0} offen sc1\ns_waitcnt vmcnt(0)\nv_cmp_ne_u32 vcc, s{sTAG}, v10\ns_nop 1\ns_cbranch_vccz {done}\n'
           f's_add_u32 s{sBND}, s{sBND}, 1\ns_cmp_gt_u32 s{sBND}, 0x20000\ns_cbranch_scc1 {done}\ns_sleep {Opt.rsleep}\ns_branch {again}\n'
           f'{done}:\ns_mov_b64 exec, 15\nds_write_b32 v13, v9 offset:{128 + 16*CN_KV}\ns_mov_b64 exec, -1\n{oth}:')
    S.ext(cnt_read(CN_KV, vCT)); S.ext(cnt_check(CN_KV, vCT, 0))
    stamp(S, 9)
    for j in range(8):
        S(f'buffer_load_dwordx4 {v(KF+4*j,4)}, v{vL16}, {srd(SRD_WS)}, s{sT1 + j//4} offen offset:{(j%4)*1024} sc1')
    for c in range(2):
        S.ext(num_mfma(PB + 32 * c, KF + 16 * c, AF + 16 * c))
    for c in range(2):
        S.ext(onorm(PB + 32 * c, AF + 16 * c))
        for hh in range(2):
            S(f'buffer_store_dwordx4 {v(AF+16*c+4*hh,4)}, v{vL16}, {srd(SRD_WS)}, s{sFS} offen offset:{c*2048 + hh*1024} sc1', tok='st')
    stamp(S, 10)

def num_mfma(aP, kb, ph):
    aN = aP + 16
    return [Ins(f'v_mfma_f32_32x32x16_bf16 {v(aP,16)}, {v(kb,4)}, {v(ph,4)}, 0'),
            Ins(f'v_mfma_f32_32x32x16_bf16 {v(aN,16)}, {v(kb+8,4)}, {v(ph+8,4)}, 0'),
            Ins(f'v_mfma_f32_32x32x16_bf16 {v(aP,16)}, {v(kb+4,4)}, {v(ph+4,4)}, {v(aP,16)}'),
            Ins(f'v_mfma_f32_32x32x16_bf16 {v(aN,16)}, {v(kb+12,4)}, {v(ph+12,4)}, {v(aN,16)}')]
def onorm(aP, ph):
    S = Stream()
    aN = aP + 16
    rP, rN, dn, a, b = TT, TT + 1, TT + 2, TT + 3, TT + 4
    S(f'v_rcp_f32 v{rP}, v{aP+13}\nv_rcp_f32 v{rN}, v{aN+13}')
    S(f'v_mov_b32 v{dn}, {hx(f2u(1e-6))}\nv_fmac_f32 v{dn}, v{aP+12}, v{rP}\nv_fmac_f32 v{dn}, v{aN+12}, v{rN}\nv_rcp_f32 v{dn}, v{dn}')
    S(f'v_mul_f32 v{rP}, v{rP}, v{dn}\nv_mul_f32 v{rN}, v{rN}, v{dn}\nv_mov_b32 v{a}, v{rP}\nv_mov_b32 v{b}, v{rN}')
    S(f'v_permlane32_swap_b32 v{rP}, v{a}\nv_permlane32_swap_b32 v{rN}, v{b}')
    for i in range(16): S(f'v_mul_f32 v{aP+i}, v{aP+i}, v{a}')
    for i in range(16): S(f'v_fmac_f32 v{aP+i}, v{aN+i}, v{b}')
    for i in range(8): S(f'v_cvt_pk_bf16_f32 v{ph+i}, v{aP+2*i}, v{aP+2*i+1}')
    S(f'v_cndmask_b32 v{ph+6}, v{ph+6}, 0, {HI}\nv_cndmask_b32 v{ph+7}, v{ph+7}, 0, {HI}')
    return S.l

def wo_dma(S, va, vb, thr=None):
    S(f's_lshl_b32 s{sT2}, s{sW4}, 14\ns_add_u32 s{sT2}, s{sT2}, {A_BASE}\ns_lshl_b32 s{sU0}, s{sCB}, 7')
    for hd in range(4):
        S(f's_add_u32 s{sT0}, s{sCB}, {hd}\ns_and_b32 s{sT0}, s{sT0}, 3\ns_lshl_b32 s{sT1}, s{sW4}, 2\ns_add_u32 s{sT0}, s{sT0}, s{sT1}\ns_mul_i32 s{sT0}, s{sT0}, {28*896}\ns_add_u32 s{sT0}, s{sT0}, s{sU0}')
        for i in range(4):
            S(f's_add_u32 m0, s{sT2}, {hd*4096 + i*1024}')
            if thr: S(f's_waitcnt vmcnt({thr})')
            if i == 2: S(f's_add_u32 s{sT0}, s{sT0}, {16*896}')
            if hd == 3 and i == 3: S(f's_cmp_eq_u32 s{sW4}, 3\ns_cselect_b32 exec_hi, 0, -1')
            S(f'buffer_load_dwordx4 v{va if i % 2 == 0 else vb}, {srd(SRD_WO)}, s{sT0} offen lds', tok='wo')
    S('s_mov_b64 exec, -1')

PHI = 16; PN = 144; XT = 236
vO = 3; vVW2 = [6, 7]
def out_addr(S, xt, off):
    S(f'v_and_b32 v8, 31, v{vLANE}\nv_mul_u32_u24 v{vO}, 896, v8\nv_lshrrev_b32 v8, 5, v{vLANE}\nv_lshl_add_u32 v{vO}, v8, 4, v{vO}')
    S(f's_and_b32 s{sT0}, s{sW4}, 1\ns_lshl_b32 s{sT1}, s{sTB}, 1\ns_add_u32 s{sT0}, s{sT0}, s{sT1}\ns_mul_i32 s{sFT}, s{sT0}, {32*896}')
    S(f's_lshr_b32 s{sT0}, s{sW4}, 1\ns_lshl_b32 s{sT0}, s{sT0}, 6\ns_add_u32 s{sFT}, s{sFT}, s{sT0}\ns_lshl_b32 s{sT0}, s{sCB}, 7\ns_add_u32 s{sFT}, s{sFT}, s{sT0}')
    S(f'buffer_load_dwordx4 {v(xt,4)}, v{vO}, {srd(SRD_X)}, s{sFT} offen offset:{off}')

def final_half(S, isA, acc, xt):
    own = acc + 48 + (8 if isA else 0)
    oth = acc + 48 + (0 if isA else 8)
    reg = A_REG if isA else F_REG; base = A_BASE if isA else 0
    ho = 2048 if isA else 0
    W = [16, 17, 18, 19]
    S(f's_mul_i32 s{sT3}, s{sW4}, {reg}')
    for vq in range(4):
        S(f's_xor_b32 s{sT0}, s{sW4}, {vq ^ 3}\ns_lshl_b32 s{sT0}, s{sT0}, 12\ns_add_u32 s{sT0}, s{sT0}, s{sT3}\ns_add_u32 s{sT0}, s{sT0}, {base}\nv_add_u32 v{W[vq]}, s{sT0}, v{vL16}')
    for i in range(2):
        S(f'ds_write_b128 v{W[3]}, {v(oth+4*i,4)} offset:{(2048 - ho) + i*1024}')
    for vq in range(3):
        for i in range(4):
            S(f'ds_write_b128 v{W[vq]}, {v(acc+16*vq+4*i,4)} offset:{i*1024}')
    S(f's_lshl_b32 s{sT2}, s{sW4}, 12\ns_add_u32 s{sT2}, s{sT2}, {ho}')
    for k in range(1, 4):
        S(f's_xor_b32 s{sT0}, s{sW4}, {k}\ns_mul_i32 s{sT0}, s{sT0}, {reg}\ns_add_u32 s{sT0}, s{sT0}, s{sT2}\ns_add_u32 s{sT0}, s{sT0}, {base}\nv_add_u32 v{19+k}, s{sT0}, v{vL16}')
    oreg = F_REG if isA else A_REG; obase = 0 if isA else A_BASE
    S(f's_add_u32 s{sT0}, s{sT2}, {obase}\nv_add_u32 v23, s{sT0}, v{vL16}\nv_add_u32 v24, {2*oreg}, v23')
    S(f'v_permlane32_swap_b32 v{xt}, v{xt+2}\nv_permlane32_swap_b32 v{xt+1}, v{xt+3}')
    E = 96
    for i in range(4): S(f'v_lshlrev_b32 v{E+2*i}, 16, v{xt+i}\nv_and_b32 v{E+2*i+1}, 0xffff0000, v{xt+i}')
    S('s_waitcnt lgkmcnt(0)\ns_barrier')
    stamp(S, 13 if isA else 14)
    O, P_ = 32, 64
    rdO = [f'ds_read_b128 {v(O+8*f+4*i,4)}, v{23 + f//2} offset:{(f%2)*oreg + i*1024}' for f in range(4) for i in range(2)]
    rdP = [f'ds_read_b128 {v(P_+8*k+4*i,4)}, v{20+k} offset:{i*1024}' for k in range(3) for i in range(2)]
    for r in (rdO + rdP if isA else rdP + rdO): S(r)
    def sumO():
        for i in range(8): S(f'v_add_f32 v{O+i}, v{O+i}, v{O+8+i}')
        for i in range(8): S(f'v_add_f32 v{O+16+i}, v{O+16+i}, v{O+24+i}')
        for i in range(8): S(f'v_add_f32 v{O+i}, v{O+i}, v{O+16+i}')
    def sumP():
        for i in range(8): S(f'v_add_f32 v{P_+i}, v{P_+i}, v{own+i}')
        for i in range(8): S(f'v_add_f32 v{P_+8+i}, v{P_+8+i}, v{P_+16+i}')
        for i in range(8): S(f'v_add_f32 v{P_+i}, v{P_+i}, v{P_+8+i}')
    G, Sg = (O, P_) if isA else (P_, O)
    (sumO if isA else sumP)()
    Q = 104
    for i in range(8): S(f'v_mul_f32 v{Q+i}, {hx(f2u(-L2E))}, v{G+i}')
    for i in range(8): S(f'v_exp_f32 v{Q+i}, v{Q+i}')
    (sumP if isA else sumO)()
    for i in range(8): S(f'v_add_f32 v{Q+i}, 1.0, v{Q+i}')
    for i in range(8): S(f'v_rcp_f32 v{Q+i}, v{Q+i}')
    for i in range(8): S(f'v_mul_f32 v{G+i}, v{G+i}, v{Sg+i}')
    for i in range(8): S(f'v_fmac_f32 v{E+i}, v{G+i}, v{Q+i}')
    for i in range(4): S(f'v_cvt_pk_bf16_f32 v{xt+i}, v{E+2*i}, v{E+2*i+1}')
    S(f'v_permlane32_swap_b32 v{xt}, v{xt+2}\nv_permlane32_swap_b32 v{xt+1}, v{xt+3}')
    S(f'buffer_store_dwordx4 {v(xt,4)}, v{vO}, {srd(SRD_OUT)}, s{sFT} offen offset:{32 if isA else 0}')

def c_publish(S, attn, tile):
    if tile and not attn: S.ext(c_signal(EV_END))
    S(f's_lshl_b32 s{sFS}, s{sRB}, 1\ns_lshr_b32 s{sT1}, s{sW4}, 1\ns_add_u32 s{sFS}, s{sFS}, s{sT1}\ns_lshl_b32 s{sFS}, s{sFS}, 15\ns_lshl_b32 s{sT1}, s{sROLE}, 8\ns_add_u32 s{sFS}, s{sFS}, s{sT1}')
    S(f's_and_b32 s{sT1}, s{sW4}, 1\ns_lshl_b32 s{sT1}, s{sT1}, 7\ns_add_u32 s{sFS}, s{sFS}, s{sT1}\ns_add_u32 s{sFS}, s{sFS}, {WS_FH}')
    if tile:
        lane_consts_tr(S, vVW2, 8, 64, 'B')
        S(f's_lshr_b32 s{sT0}, s{sW4}, 1\ns_lshl_b32 s{sT3}, s{sT0}, 15\ns_add_u32 s{sT3}, s{sT3}, {A_BASE}\ns_xor_b32 s{sT1}, s{sT0}, 1\ns_lshl_b32 s{sT1}, s{sT1}, 6')
        S(f'v_add_u32 v{vVW2[0]}, s{sT3}, v{vVW2[0]}\nv_xor_b32 v{vVW2[0]}, s{sT1}, v{vVW2[0]}\nv_xor_b32 v{vVW2[1]}, 64, v{vVW2[0]}')
    if not attn: tag_get(S, vTAG)
    S.wait('st')
    flag_store(S, sFS, TT, 7, 12)
    if attn and Opt.oprio: S('s_setprio 0')
    stamp(S, 7)
    if tile and not attn:
        out_addr(S, XT, 32)

W2R = 16; FACC = 144; HR = 208
vLW, vLS, vL2 = 3, 4, 5
def swz_voff(S, dst, pitch, tmp):
    S(f'v_lshrrev_b32 v{tmp}, 3, v{vLANE}')
    S(f'v_mul_lo_u32 v{dst}, v{tmp}, {pitch}' if isinstance(pitch, str) else f'v_mul_u32_u24 v{dst}, {pitch}, v{tmp}')
    S(f'v_bfe_u32 v{tmp}, v{vLANE}, 4, 1\nv_lshlrev_b32 v{tmp}, 2, v{tmp}\nv_and_b32 v{tmp+1}, 7, v{vLANE}\nv_xor_b32 v{tmp}, v{tmp}, v{tmp+1}\nv_lshl_add_u32 v{dst}, v{tmp}, 4, v{dst}')
def flat(l): return [x for y in l for x in y]
def sprinkle(main, units, start=0):
    out = []; n = len(main) - start; k = len(units); j = 0
    for i, x in enumerate(main):
        while j < k and i >= start and (j + 0.5) * n / max(k, 1) <= i - start and x.kind in ('valu', 'trans'):
            out += units[j]; j += 1
        out.append(x)
    return out + flat(units[j:])

def l_phase1(S, ffn, tile):
    sBLK, sP64, sP448, sP32, sW2, sK2 = sU0, sU1, sU2, sU3, sU4, sU5
    S(f's_mul_i32 s{sFS}, s{sW4}, s{sPITCH}\ns_lshl_b32 s{sFS}, s{sFS}, 3')
    S(f's_lshl_b32 s{sT3}, s{sW4}, 10\ns_lshl_b32 s{sP64}, s{sPITCH}, 6\ns_lshl_b32 s{sP32}, s{sPITCH}, 5\ns_mul_i32 s{sP448}, s{sPITCH}, 448\ns_mul_i32 s{sBLK}, s{sP64}, s{sROT1}')
    def dma_half(h):
        units = []
        st = h // 2
        for k in range(7):
            St = Stream()
            kk = (h % 2) * 7 + k
            St(f's_add_u32 m0, s{sT3}, {(half_base(h) + k*4096) if h != 1 else (SPARE + k*4096 if k < 4 else (k - 4)*4096)}')
            if kk % 2 == 0:
                St(f's_add_u32 s{sT0}, s{sBLK}, s{sFS}\ns_add_u32 s{sT0}, s{sT0}, s{sCOL[st]}')
            else:
                if k == 0: St(f's_add_u32 s{sT0}, s{sBLK}, s{sFS}\ns_add_u32 s{sT0}, s{sT0}, s{sCOL[st]}')
                St(f's_add_u32 s{sT0}, s{sT0}, s{sP32}')
                wrap_inc(St, sBLK, f's{sP64}', f's{sP448}')
            St(f'buffer_load_dwordx4 v{vLW}, {srd(SRD_W)}, s{sT0} offen lds', tok=('h', h if not (h == 1 and k >= 4) else CN_H1B))
            units.append(St.l)
        return units
    def sig(h):
        S.wait(('h', h))
        if h < 5: stamp(S, 2 + h)
        l_signal(S, h)
    if Opt.cpf:
        lab = newlab('pc')
        S(f's_getpc_b64 s[72:73]\n{lab}:\ns_sub_u32 s72, s72, {lab} - {NAME}\ns_subb_u32 s73, s73, 0')
        S(f's_lshl_b32 s{sT0}, s{sI}, 2\ns_add_u32 s{sT0}, s{sT0}, s{sW4}\ns_lshl_b32 s{sT0}, s{sT0}, 2\nv_add_u32 v8, s{sT0}, v{vLANE}\nv_lshlrev_b32 v8, 7, v8\nv_min_u32 v8, L_end - {NAME}, v8')
        S(f's_mov_b64 exec, 15\nglobal_load_dword v200, v8, s[72:73]\ns_mov_b64 exec, -1')
    S('s_barrier')
    S.ext(flat(dma_half(0)))
    if not ffn:
        S(f's_add_u32 m0, s{sT3}, {WPHI_L}\ns_mul_i32 s{sT0}, s{sIDX}, 3136\ns_add_u32 s{sT0}, s{sT0}, s{sT3}\ns_cmp_eq_u32 s{sW4}, 3\ns_cselect_b32 exec_hi, 0, -1')
        S(f'buffer_load_dwordx4 v{vL16}, {srd(SRD_WPHI)}, s{sT0} offen lds', tok=('h', 0))
        S('s_mov_b64 exec, -1')
    h1 = dma_half(1)
    S.ext(flat(h1[:4]))
    if Opt.tlb:
        st_ = Opt.tlb
        S(f'v_lshlrev_b32 v8, {st_}, v{vLANE}')
        S(f's_mul_i32 s{sT0}, s{sTB}, {224*K1}\ns_lshl_b32 s{sT1}, s{sTB}, 17\ns_add_u32 s{sT1}, s{sT1}, {WS_PQ}\ns_cmp_eq_u32 s{sW4}, 1\ns_cselect_b32 s{sT0}, s{sT1}, s{sT0}')
        S(f's_mov_b32 s{sT1}, {WS_KVF}\ns_cmp_eq_u32 s{sW4}, 2\ns_cselect_b32 s{sT0}, s{sT1}, s{sT0}')
        S(f's_mul_i32 s{sT1}, s{sRB}, {448*K1}\ns_cmp_eq_u32 s{sW4}, 3\ns_cselect_b32 s{sT0}, s{sT1}, s{sT0}')
        n_ = min(64, (448 * K1) >> st_)
        S(f's_mov_b32 exec_lo, {hex(((1 << n_) - 1) & 0xffffffff)}\ns_mov_b32 exec_hi, {hex(((1 << n_) - 1) >> 32)}')
        S(f'buffer_load_dword v200, v8, {srd(SRD_WS)}, s{sT0} offen sc1\ns_mul_i32 s{sT1}, s{sTB}, {64*896}\ns_mov_b64 exec, 3\nbuffer_load_dword v200, v8, {srd(SRD_OUT)}, s{sT1} offen\nbuffer_load_dword v200, v8, {srd(SRD_W2)}, 0 offen\nbuffer_load_dword v200, v8, {srd(SRD_WO)}, 0 offen\ns_mov_b64 exec, -1')
    stamp(S, 'e5')
    lab = newlab('nt')
    S(f's_or_b32 s{sT0}, s2, s{sW4}\ns_cmp_lg_u32 s{sT0}, 0\ns_cbranch_scc1 {lab}')
    raw(S, f's_mov_b32 s{sT0}, {WS_TAG}\nv_mov_b32 v9, 0\ns_mov_b64 exec, 1\nbuffer_load_dword v8, v9, {srd(SRD_WS)}, s{sT0} offen sc1\ns_waitcnt vmcnt(0)\n'
           f'v_add_u32 v8, 1, v8\nv_max_u32 v8, 1, v8\ns_nop 1\nbuffer_store_dword v8, v9, {srd(SRD_WS)}, s{sT0} offen sc1\nbuffer_store_dword v8, v9, {srd(SRD_DBG)}, 0 offen sc1\ns_waitcnt vmcnt(0)\ns_mov_b64 exec, -1\n{lab}:')
    S(f'v_lshlrev_b32 v{vLC}, 2, v{vLANE}\nv_add_u32 v{vLC}, {CTL}, v{vLC}\nv_mov_b32 v{vLONE}, 1\nv_mov_b32 v{vLP+4}, {CTL}')
    if ffn:
        S(f'v_lshrrev_b32 v8, 2, v{vLANE}\nv_mul_u32_u24 v{vLS}, 3584, v8\nv_and_b32 v8, 3, v{vLANE}\nv_lshl_add_u32 v{vLS}, v8, 4, v{vLS}')
    else:
        S(f'v_and_b32 v8, 31, v{vLANE}\ns_lshl_b32 s{sT0}, s{sW4}, 5\nv_add_u32 v8, s{sT0}, v8\nv_lshrrev_b32 v9, 5, v{vLANE}\nv_lshlrev_b32 v9, 3, v9')
        S(f'v_mul_u32_u24 v{vLPW}, 112, v8\nv_add_u32 v{vLPW}, v{vLPW}, v9')
        S(f'v_cndmask_b32 v{vLMK}, 1.0, 0, {HI}\nv_mov_b32 v{vLL2E}, s{sL2E}')
        trb(S, vLWP, 2, 56, 8)
        S(f'v_add_u32 v{vLWP}, {WPHI_L}, v{vLWP}')
    S(f's_lshl_b32 s{sT0}, s{sW4}, 12\ns_add_u32 s{sT0}, s{sT0}, {SPARE}\nv_add_u32 v{vLRD}, s{sT0}, v{vL16}')
    if tile:
        S(f's_mov_b32 s{sT1}, 896'); swz_voff(S, vL2, f's{sT1}', 8)
        lane_consts_tr(S, vVW2, 8, 64, 'B')
        S(f's_xor_b32 s{sT1}, s{sW4}, 3\ns_lshr_b32 s{sT1}, s{sT1}, 1\ns_lshl_b32 s{sT1}, s{sT1}, 6\nv_xor_b32 v{vVW2[0]}, s{sT1}, v{vVW2[0]}\nv_xor_b32 v{vVW2[1]}, 64, v{vVW2[0]}')
        S(f's_mul_i32 s{sW2}, s{sW4}, {448*896}\ns_lshl_b32 s{sT2}, s{sCB}, 7\ns_add_u32 s{sW2}, s{sW2}, s{sT2}\ns_mul_i32 s{sK2}, s{sROT2}, {16*896}')
        S(f'v_add_u32 v13, {8*896}, v{vL2}')
    def w2stage(base, stride, ns):
        if not tile: return
        S(f's_mul_i32 s{sT2}, s{sW4}, {stride}\ns_add_u32 s{sT2}, s{sT2}, {base}\nv_add_u32 v9, s{sT2}, v{vVW2[0]}\nv_add_u32 v10, s{sT2}, v{vVW2[1]}')
        def dma(ks):
            o = (ks % ns) * 2048
            S(f's_add_u32 m0, s{sT2}, {o}\ns_add_u32 s{sT1}, s{sW2}, s{sK2}')
            if ks >= ns: S.wait(('wr', ks - ns))
            S(f'buffer_load_dwordx4 v{vL2}, {srd(SRD_W2)}, s{sT1} offen lds', tok=('w', ks))
            S(f's_add_u32 m0, s{sT2}, {o + 1024}')
            wrap_inc(S, sK2, 16 * 896, 448 * 896)
            S(f'buffer_load_dwordx4 v13, {srd(SRD_W2)}, s{sT1} offen lds', tok=('w', ks))
        d = ns - 1
        for ks in range(min(d, Opt.nreg)): dma(ks)
        for ks in range(Opt.nreg):
            if ks + d < Opt.nreg: dma(ks + d)
            S.wait(('w', ks))
            o = (ks % ns) * 2048; b = W2R + 8 * ks
            for c in range(2):
                for u in range(2):
                    S(f'ds_read_b64_tr_b16 {v(b + 4*c + 2*u, 2)}, v{9+c} offset:{o + 1024*u}', tok=('wr', ks))
            if not ffn and ks in (0, 8): stamp(S, 3 + ks // 8)
    def w2raw(lo, hi):
        if not tile: return
        for ks in range(lo, hi):
            S(f's_add_u32 s{sT1}, s{sW2}, s{sK2}')
            S(f'buffer_load_dwordx4 {v(W2R+8*ks,4)}, v{vL2}, {srd(SRD_W2)}, s{sT1} offen')
            S(f'buffer_load_dwordx4 {v(W2R+8*ks+4,4)}, v13, {srd(SRD_W2)}, s{sT1} offen')
            wrap_inc(S, sK2, 16 * 896, 448 * 896)
    def tr(lo, hi):
        if not tile: return
        if lo == 0: S(f's_lshl_b32 s{sT0}, s{sW4}, 12\ns_add_u32 s{sT0}, s{sT0}, {SPARE}\nv_add_u32 v9, s{sT0}, v{vVW2[0]}\nv_add_u32 v10, s{sT0}, v{vVW2[1]}')
        for ks in range(lo, hi):
            o = (ks % 2) * 2048; b = W2R + 8 * ks
            S(f'ds_write_b128 v{vLRD}, {v(b,4)} offset:{o}\nds_write_b128 v{vLRD}, {v(b+4,4)} offset:{o+1024}')
            for c in range(2):
                for u in range(2):
                    S(f'ds_read_b64_tr_b16 {v(b + 4*c + 2*u, 2)}, v{9+c} offset:{o + 1024*u}')
    DUM = 200
    def pf(srd_, voff, soff, n):
        S(f's_mov_b32 exec_hi, {hex((1 << (n - 32)) - 1)}\nbuffer_load_dword v{DUM}, v{voff}, {srd(srd_)}, s{soff} offen\ns_mov_b32 exec_hi, -1', tok='pf')
    if Opt.wpf:
        S(f'v_mul_lo_u32 v14, v{vLANE}, s{sPITCH}\ns_and_b32 s{sT0}, s{sI}, 3\ns_mul_i32 s{sT0}, s{sT0}, 112')
        if ffn:
            S(f's_mul_i32 s{sT0}, s{sT0}, s{sPITCH}\ns_lshl_b32 s{sT1}, s{sW4}, 7\ns_add_u32 s{sT1}, s{sT1}, s{sCOL[0]}\ns_cmp_eq_u32 s{sW4}, 3\ns_cselect_b32 s{sT1}, s{sCOLS}, s{sT1}\ns_add_u32 s{sT0}, s{sT0}, s{sT1}')
            pf(SRD_W, 14, sT0, 56)
            S(f's_add_u32 s{sT0}, s{sT0}, {56*3584}')
            pf(SRD_W, 14, sT0, 56)
        else:
            S(f's_lshr_b32 s{sT1}, s{sW4}, 1\ns_mul_i32 s{sT1}, s{sT1}, 56\ns_add_u32 s{sT0}, s{sT0}, s{sT1}\ns_mul_i32 s{sT0}, s{sT0}, s{sPITCH}\ns_and_b32 s{sT1}, s{sW4}, 1\ns_mul_i32 s{sT1}, s{sT1}, 124\ns_add_u32 s{sT0}, s{sT0}, s{sT1}')
            for st in range(3):
                S(f's_add_u32 s{sT1}, s{sT0}, s{sCOL[st]}')
                pf(SRD_W, 14, sT1, 56)
    def w2_prefetch():
        if not Opt.w2pf: return
        S(f'v_lshlrev_b32 v14, 7, v{vLANE}\ns_lshl_b32 s{sT0}, s{sI}, 2\ns_add_u32 s{sT0}, s{sT0}, s{sW4}\ns_mul_i32 s{sT1}, s{sT0}, {98*128}')
        pf(SRD_W2, 14, sT1, 49)
        S(f's_add_u32 s{sT1}, s{sT1}, {49*128}')
        pf(SRD_W2, 14, sT1, 49)
        S(f's_mul_i32 s{sT1}, s{sT0}, {25*128}\ns_mov_b64 exec, 0x1ffffff\nbuffer_load_dword v{DUM}, v14, {srd(SRD_WO)}, s{sT1} offen\ns_mov_b64 exec, -1', tok='pf')
    def gpf(which):
        if not Opt.gpf: return
        S(f's_sub_u32 s{sT0}, s2, 128\ns_lshl_b32 s{sT0}, s{sT0}, 2\ns_add_u32 s{sT0}, s{sT0}, s{sW4}\nv_lshlrev_b32 v14, 7, v{vLANE}')
        S(f's_mov_b64 s[72:73], s[66:67]\ns_mov_b32 s74, {448*2688}\ns_mov_b32 s75, 0x20000') if False else None
        for (lo, n, size) in ((sKA_QKV, 10, 448*2688), (sKA_W1, 13, 448*3584), (SRD_W2, 25, None), (SRD_WO, 7, None))[which]:
            if size:
                S(f's_mov_b64 s[76:77], s[{lo}:{lo+1}]\ns_mov_b32 s78, {size}\ns_mov_b32 s79, 0x20000'); d = 76
            else: d = lo
            S(f's_mul_i32 s{sT1}, s{sT0}, {n*128}\ns_mov_b64 exec, {hex((1 << n) - 1)}\nbuffer_load_dword v{DUM}, v14, {srd(d)}, s{sT1} offen\ns_mov_b64 exec, -1', tok='pf')
    if Opt.gpf == 2: gpf(slice(0, 2))
    def wo_prefetch():
        S(f'v_lshlrev_b32 v14, 7, v{vLANE}\ns_lshl_b32 s{sT0}, s{sI}, 2\ns_add_u32 s{sT0}, s{sT0}, s{sW4}')
        S(f's_mul_i32 s{sT1}, s{sT0}, {25*128}\ns_mov_b64 exec, 0x1ffffff\nbuffer_load_dword v{DUM}, v14, {srd(SRD_WO)}, s{sT1} offen\ns_mov_b64 exec, -1', tok='pf')
    l_wait(S, EV_XFREE)
    stamp(S, 1)
    S(f's_add_u32 s{sT0}, s{sBLK}, s{sFS}\ns_add_u32 s{sT0}, s{sT0}, s{sCOL[0]}')
    S.ext(flat(h1[4:])); sig(0)
    h2 = dma_half(2)
    S.ext(flat(h2[:3])); sig(1); S.ext(flat(h2[3:5])); sig(CN_H1B); S.ext(flat(h2[5:]))
    h3 = dma_half(3)
    S.ext(flat(h3[:3])); sig(2); S.ext(flat(h3[3:]))
    ltag_issue(S)
    h4 = dma_half(4)
    S.ext(flat(h4[:3])); sig(3); S.ext(flat(h4[3:]))
    if ffn:
        gpf(slice(2, 4))
    if ffn:
        sig(4)
        l_wait(S, EV_C0)
        S.ext(flat(dma_half(5)))
        sig(5)
        ltag_get(S)
        l_wait(S, EV_C1)
        S(f's_lshl_b32 s{sFS}, s{sFS}, 1\ns_add_u32 s{sFS}, s{sFS}, s{sCOLS}')
        for k in range(7):
            S(f's_add_u32 m0, s{sT3}, {k*4096}\ns_add_u32 s{sT0}, s{sBLK}, s{sFS}')
            wrap_inc(S, sBLK, f's{sP64}', f's{sP448}')
            S(f'buffer_load_dwordx4 v{vLS}, {srd(SRD_W)}, s{sT0} offen lds', tok=('h', 6))
        if Opt.l2pf:
            S(f'v_lshlrev_b32 v14, 7, v{vLANE}\ns_sub_u32 s{sT0}, s{sI}, 16\ns_lshl_b32 s{sT0}, s{sT0}, 2\ns_add_u32 s{sT0}, s{sT0}, s{sW4}\ns_mul_i32 s{sT1}, s{sT0}, {196*128}\ns_mov_b32 exec_hi, 0x1ffff')
            for i in range(4):
                S(f'buffer_load_dword v{DUM}, v14, {srd(SRD_W2)}, s{sT1} offen\ns_add_u32 s{sT1}, s{sT1}, {49*128}', tok='pf')
            S(f's_mul_i32 s{sT1}, s{sT0}, {49*128}\nbuffer_load_dword v{DUM}, v14, {srd(SRD_WO)}, s{sT1} offen\ns_mov_b64 exec, -1', tok='pf')
        sig(6)
        if Opt.ppf:
            n_ = Opt.ppf
            S(f'v_lshlrev_b32 v14, 7, v{vLANE}\ns_sub_u32 s{sT0}, s{sI}, 16\ns_lshl_b32 s{sT0}, s{sT0}, 2\ns_add_u32 s{sT0}, s{sT0}, s{sW4}\ns_mov_b64 exec, {hex((1 << n_) - 1)}')
            for (d, tot) in ((SRD_W2, 196), (SRD_WO, 49)):
                lab = newlab('pp')
                S(f's_mul_i32 s{sT1}, s{sT0}, {tot*128}\ns_mov_b32 s{sT2}, {(tot + n_ - 1) // n_}')
                raw(S, f'{lab}:\nbuffer_load_dword v{DUM}, v14, {srd(d)}, s{sT1} offen\ns_add_u32 s{sT1}, s{sT1}, {n_*128}\ns_sleep {Opt.pps}\ns_waitcnt vmcnt({Opt.ppw})\ns_sub_u32 s{sT2}, s{sT2}, 1\ns_cmp_lg_u32 s{sT2}, 0\ns_cbranch_scc1 {lab}')
            S('s_mov_b64 exec, -1')
        elif not Opt.l2pf: wo_prefetch()
        l_wait(S, EV_C3)
        w2stage(SLOT, 14 * K1, 7)
        stamp(S, 11)
    else:
        l_wait(S, EV_C0)
        S.ext(flat(dma_half(5)))
        kA, kB, KA = 194, 195, LX
        trb(S, kA, 3, 112, 8); trb(S, kB, 3, 72, 8)
        S(f's_lshr_b32 s{sT0}, s{sW4}, 1\ns_and_b32 s{sT1}, s{sW4}, 1\ns_mul_i32 s{sT2}, s{sT0}, 14336\ns_mul_i32 s{sT1}, s{sT1}, 56\ns_add_u32 s{sT2}, s{sT2}, s{sT1}\nv_add_u32 v{kA}, s{sT2}, v{kA}')
        S(f's_mul_i32 s{sT2}, s{sT0}, 9216\ns_add_u32 s{sT2}, s{sT2}, {SLOT}\nv_add_u32 v{kB}, s{sT2}, v{kB}')
        S(f's_lshl_b32 s{74}, s{sIDX}, 2\ns_add_u32 s{74}, s{74}, s{sW4}\ns_lshl_b32 s{75}, s{74}, 11\ns_lshl_b32 s{74}, s{74}, 4\ns_add_u32 s{74}, s{74}, s{sRB}\ns_lshl_b32 s{74}, s{74}, 11\ns_add_u32 s{74}, s{74}, {WS_KVP}')
        S(f's_lshl_b32 s{sT0}, s{sRB}, 7\ns_add_u32 s{75}, s{75}, s{sT0}\ns_add_u32 s{75}, s{75}, {WS_FP}')
        l_wait(S, EV_PK)
        stamp(S, 12)
        if Opt.lprio: S('s_setprio 1')
        sm = softmax_k(None)
        S.ext(sm[:8]); sig(4); S.ext(sm[8:Opt.h5at]); sig(5); S.ext(sm[Opt.h5at:])
        l_signal(S, CN_PH)
        stamp(S, 11)
        ltag_get(S)
        w2raw(0, Opt.aw2)
        if Opt.tr0: tr(0, Opt.tr0)
        stamp(S, 5)
        if Opt.kprio: S('s_setprio 1')
        l_wait(S, EV_V)
        S.ext(cnt_read(CN_PH, vLP)); S.ext(cnt_check(CN_PH, vLP))
        for ts in range(8):
            b = HR + 8 * (ts % 6)
            if ts >= 6: S(f'v_mfma_f32_32x32x16_bf16 {v(KA,16)}, {v(b,4)}, {v(b+4,4)}, {"0" if ts == 6 else v(KA,16)}')
            for u in range(2): S(f'ds_read_b64_tr_b16 {v(b + 2*u, 2)}, v{kA} offset:{(16*ts + 4*u)*112}')
            for u in range(2): S(f'ds_read_b64_tr_b16 {v(b + 4 + 2*u, 2)}, v{kB} offset:{(16*ts + 4*u)*72}')
        for ts in range(2, 8):
            b = HR + 8 * (ts % 6)
            S(f'v_mfma_f32_32x32x16_bf16 {v(KA,16)}, {v(b,4)}, {v(b+4,4)}, {v(KA,16)}')
        G_ = HR
        for i in range(8): S(f'v_cvt_pk_bf16_f32 v{G_+i}, v{KA+2*i}, v{KA+2*i+1}')
        for j in range(2):
            S(f'buffer_store_dwordx4 {v(G_+4*j,4)}, v{vL16}, {srd(SRD_WS)}, s{74} offen offset:{j*1024} sc1', tok='kvp')
        tr(Opt.tr0, Opt.tr0 + Opt.tr1)
        S.wait('kvp')
        flag_store(S, 75, LE)
        if not tile: l_signal(S, CN_KG)
        S('s_setprio 0')
        stamp(S, 1)
        if Opt.ackdiag: S.wait('kvp'); stamp(S, 2); S('s_waitcnt vmcnt(0)')
        w2raw(Opt.aw2, Opt.nreg)
        wo_prefetch()
        tr(Opt.tr0 + Opt.tr1, Opt.nreg)
        stamp(S, 6)
    if tile:
        l_signal(S, CN_LT)
        if not (Opt.early_f and not ffn):
            l_wait(S, EV_END)
            S.ext(cnt_read(CN_LT, vLP)); S.ext(cnt_check(CN_LT, vLP))
            stamp(S, 7)
            bu_ = bubble_units(Opt.bthr)
            S.ext(flat(bu_[:Opt.kgat])); l_signal(S, CN_KG); S.ext(flat(bu_[Opt.kgat:]))

def bubble_units(thr):
    sW2, sK2 = sU4, sU5
    u = []
    for i in range(12):
        t = Stream()
        if i == 0: t(f's_mul_i32 s{sT3}, s{sW4}, {F_REG}')
        t(f's_add_u32 m0, s{sT3}, {i*2048}\ns_add_u32 s{sT1}, s{sW2}, s{sK2}')
        if thr: t(f's_waitcnt vmcnt({thr})')
        t(f'buffer_load_dwordx4 v{vL2}, {srd(SRD_W2)}, s{sT1} offen lds', tok=('w2', Opt.nreg + i))
        t(f's_add_u32 m0, s{sT3}, {i*2048 + 1024}')
        wrap_inc(t, sK2, 16 * 896, 448 * 896)
        t(f'buffer_load_dwordx4 v13, {srd(SRD_W2)}, s{sT1} offen lds', tok=('w2', Opt.nreg + i))
        u.append(t.l)
    for hd in range(4):
        for half in range(2):
            t = Stream()
            t(f's_lshl_b32 s{sT2}, s{sW4}, 14\ns_add_u32 s{sT2}, s{sT2}, {A_BASE}')
            t(f's_lshl_b32 s{sT1}, s{sW4}, 2\ns_add_u32 s{sT1}, s{sT1}, {hd}\ns_mul_i32 s{sT1}, s{sT1}, {28*896}\ns_lshl_b32 s{sCNT}, s{sCB}, 7\ns_add_u32 s{sT1}, s{sT1}, s{sCNT}')
            if half: t(f's_add_u32 s{sT1}, s{sT1}, {16*896}')
            for i in range(2):
                t(f's_add_u32 m0, s{sT2}, {hd*4096 + half*2048 + i*1024}')
                if thr: t(f's_waitcnt vmcnt({thr})')
                if hd == 3 and half == 1 and i == 1: t(f's_cmp_eq_u32 s{sW4}, 3\ns_cselect_b32 exec_hi, 0, -1')
                else: t('s_nop 0')
                t(f'buffer_load_dwordx4 v{vL2 if i == 0 else 13}, {srd(SRD_WO)}, s{sT1} offen lds', tok='wo')
            if hd == 3 and half == 1: t('s_mov_b64 exec, -1')
            u.append(t.l)
    return u

def hflag_poll(S):
    S(f'v_lshlrev_b32 v8, 7, v{vLANE}')
    S(f's_lshl_b32 s{sT0}, s{sTB}, 3\ns_add_u32 s{sT0}, s{sT0}, s{sCB}\ns_lshl_b32 s{sT0}, s{sT0}, 12\ns_lshl_b32 s{sT1}, s{sW4}, 9\ns_add_u32 s{sT0}, s{sT0}, s{sT1}\ns_add_u32 s{sT0}, s{sT0}, {WS_FH}')
    poll(S, 8, sT0, 4, 9)

def f_phase2(S, attn):
    inl = attn and Opt.early_f
    stamp(S, 10)
    if Opt.fprio: S('s_setprio 1')
    sK = sU1
    vH0, vH1 = 14, 15
    S(f's_mul_i32 s{sT3}, s{sW4}, {F_REG}\nv_add_u32 v10, s{sT3}, v{vVW2[1]}\nv_add_u32 v11, s{sT3}, v{vVW2[0]}')
    S(f's_mul_i32 s{sU2}, s{sTB}, {224*K1}\ns_mul_i32 s{sT2}, s{sW4}, {28*K1}\ns_add_u32 s{sU2}, s{sU2}, s{sT2}\ns_add_u32 s{sU2}, s{sU2}, {WS_H}\ns_lshl_b32 s{sK}, s{sROT2}, 10')
    S(f's_and_b32 s{sT2}, s{sW4}, 1\ns_mul_i32 s{sT2}, s{sT2}, {112*K1}\nv_add_u32 v{vH1}, s{sT2}, v{vL16}\ns_sub_u32 s{sT2}, {112*K1}, s{sT2}\nv_add_u32 v{vH0}, s{sT2}, v{vL16}')
    S(f'v_mov_b32 v12, v11\nv_mov_b32 v11, v{vL2}')
    assert not inl and not Opt.wolate
    out_addr(S, 4, 0)
    S('s_waitcnt lgkmcnt(0)')
    hflag_poll(S)
    S(f'v_mov_b32 v9, v12\nv_mov_b32 v12, 4')
    wol = (attn and Opt.wolate) or Opt.wolate == 2
    S(f'v_lshlrev_b32 v8, 2, v{vLANE}\nv_add_u32 v8, {CTL}, v8\nv_mov_b32 v{W2R-3}, v13') if False else None
    S(f'v_lshlrev_b32 v8, 2, v{vLANE}\nv_add_u32 v8, {CTL}, v8\nv_mov_b32 v{HR+47}, 1\ns_mov_b64 exec, 15\nds_add_u32 v8, v{HR+47} offset:{128 + 16*CN_WO}\ns_mov_b64 exec, -1\ns_waitcnt lgkmcnt(0)')
    stamp(S, 8)
    NG = Opt.nreg
    def slot(i): return W2R + 8 * i if i < 16 else HR + 8 * (i - 16)
    free = list(range(NG, 22))
    hdst, adst, when = {}, {}, {}
    for ks in range(NG): adst[ks] = slot(ks)
    ring = [NG - 6, NG - 5, NG - 4]
    for ks in range(NG, 28): adst[ks] = slot(ring[(ks - NG) % 3])
    sched = {ks: [] for ks in range(-1, 28)}
    nxt = 0; hs = {}
    for ks in range(-1, 28):
        if ks >= 0:
            if ks < NG and ks not in ring: free.append(ks)
            free.append(hs[ks])
        while nxt < 28 and free:
            hs[nxt] = free.pop(0); hdst[nxt] = slot(hs[nxt]); sched[ks].append(nxt); nxt += 1
    sW2, sK2 = sU4, sU5
    def hload(ks):
        S(f's_add_u32 s{sT0}, s{sU2}, s{sK}')
        S(f'buffer_load_dwordx4 {v(hdst[ks],4)}, v{vH0}, {srd(SRD_WS)}, s{sT0} offen sc1')
        S(f'buffer_load_dwordx4 {v(hdst[ks]+4,4)}, v{vH1}, {srd(SRD_WS)}, s{sT0} offen sc1')
        if ks < 27: wrap_inc(S, sK, 1024, 28 * K1)
    def aread(ks):
        o = ((ks - NG) % 12) * 2048; b = adst[ks]
        S.wait(('w2', ks))
        for c in range(2):
            for u in range(2):
                S(f'ds_read_b64_tr_b16 {v(b + 4*c + 2*u, 2)}, v{9+c} offset:{o + 1024*u}', tok=('ar', ks))
    for k in sched[-1]: hload(k)
    for ks in range(28):
        for c in range(2):
            for tt2 in range(2):
                acc = FACC + 16 * (2 * c + tt2)
                S(f'v_mfma_f32_32x32x16_bf16 {v(acc,16)}, {v(adst[ks]+4*c,4)}, {v(hdst[ks]+4*tt2,4)}, {"0" if ks == 0 else v(acc,16)}')
                if c == 0 and tt2 == 0 and NG <= ks + 2 < 28: aread(ks + 2)
        if Opt.fdiag and ks in (0, 5, 10, 15, 19, 23): stamp(S, 1 + (0, 5, 10, 15, 19, 23).index(ks))
        if ks == (Opt.gk0 if attn else Opt.gk1): S(f'ds_write_b32 v{vCTL}, v12 offset:{128 + 16*CN_W2}')
        if ks >= NG and ks + 12 < 28:
            o = (ks - NG) * 2048
            S(f's_add_u32 m0, s{sT3}, {o}\ns_add_u32 s{sT1}, s{sW2}, s{sK2}')
            S(f'buffer_load_dwordx4 v11, {srd(SRD_W2)}, s{sT1} offen lds', tok=('w2', ks + 12))
            S(f's_add_u32 m0, s{sT3}, {o + 1024}')
            wrap_inc(S, sK2, 16 * 896, 448 * 896)
            S(f'buffer_load_dwordx4 v13, {srd(SRD_W2)}, s{sT1} offen lds', tok=('w2', ks + 12))
        for k in sched[ks]: hload(k)
    stamp(S, 9)
    final_f(S, FACC, 4)

def a_phase2(S):
    S(f's_lshl_b32 s{sU4}, s{sTB}, 16\ns_and_b32 s{sT2}, s{sW4}, 1\ns_lshl_b32 s{sT1}, s{sT2}, 15\ns_add_u32 s{sU4}, s{sU4}, s{sT1}\ns_lshr_b32 s{sT3}, s{sW4}, 1\ns_lshl_b32 s{sT1}, s{sT3}, 14\ns_add_u32 s{sU4}, s{sU4}, s{sT1}\ns_add_u32 s{sU4}, s{sU4}, {WS_PQ}')
    S(f'v_lshlrev_b32 v8, 8, v{vLANE}')
    S(f's_lshl_b32 s{sT0}, s{sTB}, 3\ns_add_u32 s{sT0}, s{sT0}, s{sCB}\ns_lshl_b32 s{sT0}, s{sT0}, 12\ns_lshl_b32 s{sT1}, s{sT3}, 10\ns_add_u32 s{sT0}, s{sT0}, s{sT1}\ns_lshl_b32 s{sT1}, s{sT2}, 7\ns_add_u32 s{sT0}, s{sT0}, s{sT1}\ns_add_u32 s{sT0}, s{sT0}, {WS_FH + 2048}')
    fa = final_addr(True)
    S.ext(fa)
    if Opt.aprio: S(f's_setprio {Opt.aprio}')
    S.ext(cnt_read(CN_W2, vCT)); S.ext(cnt_check(CN_W2, vCT, 1))
    stamp(S, 11)
    poll(S, 8, sT0, 4, 9, Opt.ksleep)
    stamp(S, 14)
    OB = 32
    for i in range(8):
        if i % 2 == 0: S(f's_add_u32 s{sT2}, s{sU4}, {i*2048}')
        for st in range(2):
            S(f'buffer_load_dwordx4 {v(OB+8*i+4*st,4)}, v{vL16}, {srd(SRD_WS)}, s{sT2} offen offset:{(i%2)*2048 + st*1024} sc1')
    S.ext(cnt_read(CN_WO, vCT)); S.ext(cnt_check(CN_WO, vCT, 1))
    SA, WB = 144, 96
    def woread(n):
        b = WB + 8 * (n % 6)
        for c in range(2):
            for u in range(2):
                S(f'ds_read_b64_tr_b16 {v(b+4*c+2*u,2)}, v{vVW2[c]} offset:{(16*n + 8*u)*128}')
    for n in range(5): woread(n)
    for n in range(16):
        b = WB + 8 * (n % 6)
        for c in range(2):
            acc = SA + 16 * c
            S(f'v_mfma_f32_32x32x16_bf16 {v(acc,16)}, {v(b+4*c,4)}, {v(OB+4*n,4)}, {"0" if n == 0 else v(acc,16)}')
            if c == 0 and n + 5 < 16: woread(n + 5)
    stamp(S, 12)
    final_a(S, SA)

XS = 96 * K1
def final_addr(isA):
    S = Stream()
    if isA:
        S(f's_mul_i32 s{sT1}, s{sW4}, {F_REG}\ns_add_u32 s{sT1}, s{sT1}, {16*K1}\nv_add_u32 v16, s{sT1}, v{vL16}')
        S(f's_xor_b32 s{sT1}, s{sW4}, 2\ns_mul_i32 s{sT1}, s{sT1}, {F_REG}\ns_add_u32 s{sT1}, s{sT1}, {16*K1}\nv_add_u32 v17, s{sT1}, v{vL16}')
    return S.l

def finish(S, xt, E, Sg, G, off):
    for i in range(8): S(f'v_fmac_f32 v{E+i}, v{Sg+i}, v{G+i}')
    for i in range(4): S(f'v_cvt_pk_bf16_f32 v{xt+i}, v{E+2*i}, v{E+2*i+1}')
    S(f'v_permlane32_swap_b32 v{xt}, v{xt+2}\nv_permlane32_swap_b32 v{xt+1}, v{xt+3}')
    S(f'buffer_store_dwordx4 {v(xt,4)}, v{vO}, {srd(SRD_OUT)}, s{sFT} offen offset:{off}')
def unpack_x(S, xt, E):
    S(f'v_permlane32_swap_b32 v{xt}, v{xt+2}\nv_permlane32_swap_b32 v{xt+1}, v{xt+3}')
    for i in range(4): S(f'v_lshlrev_b32 v{E+2*i}, 16, v{xt+i}\nv_and_b32 v{E+2*i+1}, 0xffff0000, v{xt+i}')

def final_a(S, SA):
    E = 20
    unpack_x(S, XT, E)
    S.ext(cnt_read(CN_G, vCT)); S.ext(cnt_check(CN_G, vCT, 1))
    for i in range(4): S(f'ds_write_b128 v17, {v(SA+4*i,4)} offset:{i*1024}')
    for i in range(2): S(f'ds_write_b128 v16, {v(SA+16+4*i,4)} offset:{4096 + i*1024}')
    S('s_waitcnt lgkmcnt(0)\ns_barrier')
    stamp(S, 13)
    for i in range(2): S(f'ds_read_b128 {v(32+4*i,4)}, v16 offset:{2048 + i*1024}')
    for i in range(2): S(f'ds_read_b128 {v(40+4*i,4)}, v16 offset:{6144 + i*1024}')
    for i in range(8): S(f'v_add_f32 v{32+i}, v{32+i}, v{SA+24+i}')
    finish(S, XT, E, 32, 40, 32)

def final_f(S, acc, xt):
    W = [16, 17, 18]
    S(f's_mul_i32 s{sT3}, s{sW4}, {F_REG}')
    for vq in range(3):
        S(f's_xor_b32 s{sT0}, s{sW4}, {vq ^ 3}\ns_lshl_b32 s{sT0}, s{sT0}, 12\ns_add_u32 s{sT0}, s{sT0}, s{sT3}\nv_add_u32 v{W[vq]}, s{sT0}, v{vL16}')
    S(f'v_lshlrev_b32 v24, 2, v{vLANE}\nv_add_u32 v24, {CTL}, v24\nv_mov_b32 v25, 1')
    for vq in range(3):
        for i in range(4):
            S(f'ds_write_b128 v{W[vq]}, {v(acc+16*vq+4*i,4)} offset:{i*1024}')
    S(f's_mov_b64 exec, 15\nds_add_u32 v24, v25 offset:{128 + 16*CN_G}\ns_mov_b64 exec, -1')
    S(f's_lshl_b32 s{sT2}, s{sW4}, 12')
    for k in range(1, 4):
        S(f's_xor_b32 s{sT0}, s{sW4}, {k}\ns_mul_i32 s{sT0}, s{sT0}, {F_REG}\ns_add_u32 s{sT0}, s{sT0}, s{sT2}\nv_add_u32 v{19+k}, s{sT0}, v{vL16}')
    S(f's_add_u32 s{sT3}, s{sT3}, {16*K1}\nv_add_u32 v23, s{sT3}, v{vL16}')
    E = 104
    unpack_x(S, xt, E)
    S.ext(cnt_read(CN_G, 26)); S.ext(cnt_check(CN_G, 26, 0))
    P_ = 32
    for k in range(3):
        for i in range(4): S(f'ds_read_b128 {v(P_+16*k+4*i,4)}, v{20+k} offset:{i*1024}')
    G = acc + 48
    for k in range(3):
        for i in range(16): S(f'v_add_f32 v{G+i}, v{G+i}, v{P_+16*k+i}')
    Q = 80
    for i in range(16): S(f'v_mul_f32 v{Q+i}, {hx(f2u(-L2E))}, v{G+i}')
    for i in range(16): S(f'v_exp_f32 v{Q+i}, v{Q+i}')
    for i in range(16): S(f'v_add_f32 v{Q+i}, 1.0, v{Q+i}')
    for i in range(16): S(f'v_rcp_f32 v{Q+i}, v{Q+i}')
    for i in range(16): S(f'v_mul_f32 v{G+i}, v{G+i}, v{Q+i}')
    for i in range(2): S(f'ds_write_b128 v23, {v(G+8+4*i,4)} offset:{6144 + i*1024}')
    S('s_waitcnt lgkmcnt(0)')
    stamp(S, 13)
    S('s_barrier')
    stamp(S, 14)
    for i in range(2): S(f'ds_read_b128 {v(32+4*i,4)}, v23 offset:{i*1024}')
    for i in range(2): S(f'ds_read_b128 {v(40+4*i,4)}, v23 offset:{4096 + i*1024}')
    for i in range(8): S(f'v_add_f32 v{32+i}, v{32+i}, v{40+i}')
    finish(S, xt, E, 32, G, 0)

def reducer(S):
    S(f's_cmp_ge_u32 s{sW4}, 2\ns_cbranch_scc1 L_fin')
    S(f'v_lshlrev_b32 v8, 7, v{vLANE}\ns_lshl_b32 s{sT0}, s{sTB}, 11\ns_add_u32 s{sT0}, s{sT0}, {WS_FP}')
    S(f's_lshl_b32 s{sU2}, s{sTB}, 15\ns_lshl_b32 s{sT2}, s{sW4}, 10\ns_add_u32 s{sU2}, s{sU2}, s{sT2}\ns_add_u32 s{sU2}, s{sU2}, {WS_KVP}')
    S(f's_lshl_b32 s{sU1}, s{sTB}, 1\ns_add_u32 s{sU1}, s{sU1}, s{sW4}\ns_lshl_b32 s{sU0}, s{sU1}, 7\ns_add_u32 s{sU0}, s{sU0}, {WS_FK}\ns_lshl_b32 s{sU1}, s{sU1}, 10\ns_add_u32 s{sU1}, s{sU1}, {WS_KVF}')
    S(f's_mov_b32 s{sSEL_LO}, 0x00003f80\ns_mov_b32 s{sSEL_HI}, 0x3f800000')
    for i in range(8): S(f'v_mov_b32 v{16+i}, 0')
    S(f's_cmp_eq_u32 s{sW4}, 1\ns_cselect_b32 s{sT3}, -1, 0\ns_mov_b32 s{sT2}, 0')
    poll(S, 8, sT0, 16, 9, 1)
    stamp(S, 8)
    for rb in range(16):
        if rb % 2 == 0: S(f's_add_u32 s{sT0}, s{sU2}, {rb*2048}')
        S(f'buffer_load_dwordx4 {v(32+4*rb,4)}, v{vL16}, {srd(SRD_WS)}, s{sT0} offen offset:{(rb%2)*2048} sc1')
    S(f'v_and_b32 v8, 31, v{vLANE}\nv_cmp_eq_u32 vcc, 29, v8')
    for rb in range(16):
        for i in range(4):
            S(f'v_dot2c_f32_bf16 v{16+2*i}, s{sSEL_LO}, v{32+4*rb+i}\nv_dot2c_f32_bf16 v{17+2*i}, s{sSEL_HI}, v{32+4*rb+i}')
    stamp(S, 10)
    for i in range(8): S(f'v_cndmask_b32 v{16+i}, v{16+i}, 1.0, vcc')
    for i in range(4): S(f'v_cvt_pk_bf16_f32 v{24+i}, v{16+2*i}, v{17+2*i}')
    S(f'v_cndmask_b32 v26, v26, 0, s[{sT2}:{sT3}]\nv_cndmask_b32 v27, v27, 0, s[{sT2}:{sT3}]')
    S(f'buffer_store_dwordx4 v[24:27], v{vL16}, {srd(SRD_WS)}, s{sU1} offen sc1')
    S('s_waitcnt vmcnt(0)')
    flag_store(S, sU0, 28)
    stamp(S, 9)

Opt.kvstep = 14
def fin_after(prefix, body):
    mark = Ins('L_MARK__:')
    o = finalize(prefix + [mark] + body)
    return o[o.index(mark) + 1:]

def build():
    assert sT2 % 2 == 0 and sT3 == sT2 + 1
    parts = []
    P = Stream(); prologue(P)
    P(f's_cmp_ge_u32 s{sWAVE}, 4\ns_cbranch_scc1 L_lwave')
    parts.append(finalize(P.l))
    C = Stream(); c_common(C); C(f's_cmp_ge_u32 s{sROLE}, 8\ns_cbranch_scc1 L_cattn')
    S = Stream(); c_ffn(S); c_publish(S, False, True); S('s_branch L_aphase'); parts.append(finalize(C.l + S.l))
    S = Stream(); S('L_cspare:\ns_waitcnt vmcnt(0)'); c_publish(S, True, False); S('s_branch L_fin'); parts.append(finalize(S.l))
    S = Stream(); S('L_cattn:'); c_attn(S)
    S(f's_cmp_ge_u32 s{sI}, 12\ns_cbranch_scc1 L_cspare'); c_publish(S, True, True); parts.append(fin_after(C.l, S.l))
    S = Stream(); S('L_aphase:'); a_phase2(S); S('s_branch L_fin'); parts.append(finalize(S.l))
    S = Stream(); S('L_lwave:'); l_decode(S)
    S(f's_cmp_ge_u32 s{sROLE}, 8\ns_cbranch_scc1 L_lattn'); l_phase1(S, True, True); f_phase2(S, False); S('s_branch L_fin'); parts.append(finalize(S.l))
    S = Stream(); S('L_lattn:'); S(f's_cmp_ge_u32 s{sI}, 12\ns_cbranch_scc1 L_lspare'); l_phase1(S, False, True); f_phase2(S, True); S('s_branch L_fin'); parts.append(finalize(S.l))
    S = Stream(); S('L_lspare:'); l_phase1(S, False, False); reducer(S); parts.append(finalize(S.l))
    S = Stream(); S('L_fin:'); diag_out(S); S('L_end:\ns_endpgm'); parts.append(finalize(S.l))
    hdr = open('recurrent_scan__linear_kernel_hedgehog__dense_activation_silu__prompt.s.ref').read().split('\n')
    top = [l for l in hdr[:13] if l.startswith(';') and '@launch' not in l and 'Override' not in l and 'grid=ceil' not in l]
    out = '\n'.join(top) + f'\n; @launch grid=(256,1,1) block=(512,1,1) lds={LDS_TOTAL}\n'
    out += f'.amdgcn_target "amdgcn-amd-amdhsa--gfx950"\n.text\n.globl {NAME}\n.p2align 8\n.type {NAME},@function\n{NAME}:\n'
    for p in parts:
        t = text(p)
        if Opt.nosc1 == 2: t = '\n'.join(l.replace(' sc1', ' nt sc1') if 'buffer_store_dwordx4' in l else l for l in t.split('\n'))
        if Opt.nosc1 == 3: t = '\n'.join(l.replace('offen', 'offen idxen').replace(', v2,', ', v[0:1],') if False else l for l in t.split('\n'))
        if Opt.nosc1 == 1: t = '\n'.join(l.replace(' sc1', '') if 'buffer_store_dwordx4' in l else l for l in t.split('\n'))
        out += t
    out += f'''.section .rodata,"a"
.p2align 6
.amdhsa_kernel {NAME}
  .amdhsa_next_free_vgpr 256
  .amdhsa_next_free_sgpr 102
  .amdhsa_accum_offset 256
  .amdhsa_group_segment_fixed_size 0
  .amdhsa_kernarg_size 80
  .amdhsa_user_sgpr_count 2
  .amdhsa_user_sgpr_kernarg_segment_ptr 1
  .amdhsa_system_sgpr_workgroup_id_x 1
.end_amdhsa_kernel
'''
    return out

if __name__ == '__main__':
    for a in sys.argv[2:]:
        k, _, val = a.partition('='); setattr(Opt, k, int(val) if val else True)
    open(sys.argv[1], 'w').write(build())
```

```python
import sys, struct
sys.path.insert(0, "dev")
from asmlib import *

NAME = "recurrent_scan__linear_kernel_hedgehog__dense_activation_silu__prompt_kernel"
K1 = 1024
import os
WS_H   = int(os.environ.get('WSOFF', '0')) << 20
WS_PQ  = WS_H + 64 * 112 * K1
WS_KVP = WS_PQ + 64 * 16 * 4096
WS_KVF = WS_KVP + 32 * 16 * 4096
WS_FH  = WS_KVF + 64 * K1
WS_FP  = WS_FH + 256 * 4096
WS_FK  = WS_FP + 32 * 2048
WS_TAG = WS_FK + 8 * 4096
WS_DIAG = WS_TAG + 4096
WS_SIZE = WS_DIAG + 256 * 8 * 64
SLOT = 28 * K1
SPARE = 140 * K1
WPHI_L = 156 * K1
CTL = 160 * K1 - 512
LDS_TOTAL = 160 * K1
F_REG = 24 * K1
A_BASE = 96 * K1
A_REG = 16 * K1
EV_XFREE, EV_C0, EV_C1, EV_C2, EV_C3, EV_PK, EV_END, EV_V = range(8)
CN_WO, CN_LT, CN_PH, CN_KV, CN_PQ, CN_K2, CN_W2, CN_KG, CN_G = 7, 8, 9, 10, 11, 13, 15, 16, 17
EV_X1, EV_X2, EV_PL = 25, 26, 27
sBND = 70
L2E = 1.4426950408889634
def f2u(x): return struct.unpack('<I', struct.pack('<f', x))[0]
def hx(x): return '0x%08x' % (x & 0xffffffff)

sWAVE, sXCD, sI, sRB, sROLE = 3, 4, 5, 6, 7
SRD_X, SRD_W, SRD_WS, SRD_W2, SRD_WO, SRD_OUT, SRD_DBG, SRD_WPHI = 8, 12, 16, 20, 24, 28, 32, 36
sTB, sCB, sIDX, sTAG, sPITCH = 40, 41, 42, 43, 44
sCOL = [45, 46, 47]
sCOLS = 48
sSEL_LO, sSEL_HI = 49, 63
sT0, sT1, sT2, sT3 = 50, 51, 52, 53
sHI = 54
sROT1, sROT2, sM70 = 1, 57, 56
sCNT, sW4, sFT, sFS, sL2E = 58, 59, 60, 61, 62
sU0, sU1, sU2, sU3, sU4, sU5 = 64, 65, 66, 67, 68, 69
sKA_QKV, sKA_W1 = 80, 82
STAMP0 = 84
def srd(b): return f's[{b}:{b+3}]'
def v(a, n=1): return f'v{a}' if n == 1 else f'v[{a}:{a+n-1}]'
HI = f's[{sHI}:{sHI+1}]'

class Opt:
    diag = False
    ncen = 18
    sleep = 8
    early = False
    rot = 1
    lprio = 1
    lsleep = 1
    nodma = 0
    nosc1 = 0
    nowo = 0
    wpf = 0
    xfirst = 3
    w2pf = 0
    gpf = 0
    mini = 0
    vsteps = 3
    hint = 1
    athr = 4
    rsleep = 3
    ackdiag = 0
    pk = 0
    pkq = 1
    trpace = 1
    aw2 = 10
    tr1 = 3
    tlb = 0
    s4hook = 1
    afirst = 0
    mixst = 0
    l2pf = 0
    gk0 = 14
    early_f = 0
    oprio = 1
    stf = 0
    smin = 999
    nreg = 12
    xbar = 6
    kgat = 20
    wolate = 0
    wostep = 9
    map2 = 0
    ppf = 0
    pps = 3
    ppw = 4
    tr0 = 0
    plwait = 0
    gk1 = 22
    agate = 3
    h5at = 44
    kprio = 1
    aprio = 0
    bthr = 20
    trfirst = 0
    thr = 40
    xpipe = 4
    fine = -1
    cpf = 1
    wopf = 1
    phi1 = 1
    fprio = 1
    dbgout = 0
    outsc = ''
    empty = 0
    xcc = 0
    fdiag = 0
    nophi = 0
    notr = 0
    cprio = 0
    predelay = 0
    ksleep = 6

def stamp(S, k):
    if not Opt.diag: return
    if Opt.mini and k not in (0, 15): return
    if Opt.fine >= 0:
        if k == 0: S('s_memtime s[100:101]\ns_waitcnt lgkmcnt(0)\ns_mov_b32 s71, s100')
        return
    if isinstance(k, str):
        if not Opt.early: return
        k = int(k[1:])
    elif Opt.early and 3 <= k < 15: return
    S(f'{"s_memtime" if Opt.diag == 2 else "s_memrealtime"} s[100:101]\ns_waitcnt lgkmcnt(0)\ns_mov_b32 s{STAMP0+k}, s100')

def diag_out(S):
    if not Opt.diag: return
    S('s_waitcnt vmcnt(0) lgkmcnt(0)')
    stamp(S, 15)
    if Opt.xcc: S(f's_getreg_b32 s{STAMP0+11}, hwreg(HW_REG_XCC_ID)\ns_getreg_b32 s{STAMP0+12}, hwreg(HW_REG_HW_ID)')
    if Opt.dbgout:
        lab = newlab('dg')
        S(f's_not_b32 s{STAMP0+14}, s{STAMP0}')
        if Opt.dbgout == 1: S(f's_cmp_ge_u32 s{sWAVE}, 4')
        else: S(f's_cmp_lt_u32 s{sWAVE}, 4')
        S(f's_cbranch_scc1 {lab}')
        S('v_mov_b32 v16, 0')
        for k in range(1, 16): S(f'v_writelane_b32 v16, s{STAMP0+k}, {k}')
        S(f'v_mbcnt_lo_u32_b32 v17, -1, 0\nv_lshlrev_b32 v17, 2, v17\ns_mov_b64 exec, 0xfffe')
        S(f'buffer_atomic_umax v16, v17, {srd(SRD_DBG)}, 0 offen sc1')
        S(f'{lab}:\ns_endpgm')
    if Opt.fine >= 0:
        S('v_mov_b32 v16, s71\nv_mov_b32 v31, s71')
        for k in range(14): S(f'v_mov_b32 v{17+k}, s{72+2*k}')
    else:
        for k in range(16): S(f'v_mov_b32 v{16+k}, s{STAMP0+k}')
    S(f's_lshl_b32 s{sT0}, s2, 3\ns_add_u32 s{sT0}, s{sT0}, s{sWAVE}\ns_lshl_b32 s{sT0}, s{sT0}, 6\ns_add_u32 s{sT0}, s{sT0}, {WS_DIAG}')
    S('v_mov_b32 v40, 0\ns_mov_b64 exec, 1')
    for k in range(4): S(f'buffer_store_dwordx4 v[{16+4*k}:{19+4*k}], v40, {srd(SRD_WS)}, s{sT0} offen offset:{16*k}')

def half_base(h): return ((h + 4) % 5) * SLOT

_lab = [0]
def newlab(p):
    _lab[0] += 1; return f'L_{p}{_lab[0]}'
def RAW(t):
    i = Ins(t); i.kind = 'salu'; i.rd = set(); i.wr = set(); return i
def raw(S, t):
    for l in t.split('\n'):
        S.l.append(Ins(l) if l.endswith(':') else RAW(l))

vCTL, vLANE, vL16 = 0, 1, 2
def mk_srd(S, items):
    for b, lo, size in items:
        S(f's_mov_b64 s[{b}:{b+1}], s[{lo}:{lo+1}]\ns_mov_b32 s{b+2}, {size}\ns_mov_b32 s{b+3}, 0x20000')
def prologue(S):
    S(f's_cmp_ge_u32 s2, {0 if Opt.empty else 256}\ns_cbranch_scc1 L_end')
    if Opt.diag:
        for k in range(16): S(f's_mov_b32 s{STAMP0+k}, 0')
        if Opt.fine >= 0: S('s_mov_b32 s84, 1\ns_mov_b32 s86, 1\ns_mov_b32 s88, 1\ns_mov_b32 s90, 1\ns_mov_b32 s92, 1\ns_mov_b32 s94, 1\ns_mov_b32 s96, 1\ns_mov_b32 s98, 1')
    stamp(S, 0)
    S('s_load_dwordx16 s[64:79], s[0:1], 0\ns_load_dwordx4 s[80:83], s[0:1], 64')
    S(f'v_lshrrev_b32 v3, 6, v0\nv_and_b32 v{vLANE}, 63, v0\nv_readfirstlane_b32 s{sWAVE}, v3\nv_lshlrev_b32 v{vL16}, 4, v{vLANE}')
    S(f's_and_b32 s{sXCD}, s2, 7\ns_lshr_b32 s{sI}, s2, 3\ns_and_b32 s{sT3}, s{sI}, 3\ns_lshr_b32 s{sT2}, s{sI}, 2\ns_xor_b32 s{sT2}, s{sT2}, 4')
    S(f's_lshr_b32 s{sRB}, s{sXCD}, 1\ns_lshl_b32 s{sRB}, s{sRB}, 2\ns_add_u32 s{sRB}, s{sRB}, s{sT3}')
    S(f's_lshl_b32 s{sROT1}, s{sT3}, 1\ns_add_u32 s{sROT1}, s{sROT1}, s{sT2}\ns_sub_u32 s{sT0}, s{sROT1}, 7\ns_cmp_ge_u32 s{sROT1}, 7\ns_cselect_b32 s{sROT1}, s{sT0}, s{sROT1}')
    S(f's_and_b32 s{sW4}, s{sWAVE}, 3')
def decode2(S):
    if Opt.map2:
        S(f's_and_b32 s{sT1}, s{sXCD}, 1\ns_lshr_b32 s{sCB}, s{sROT1}, 1\ns_and_b32 s{sT0}, s{sROT1}, 1\ns_cmp_eq_u32 s{sROT1}, 6\ns_cselect_b32 s{sT0}, s{sT1}, s{sT0}')
        S(f's_lshl_b32 s{sT0}, s{sT0}, 2\ns_add_u32 s{sTB}, s{sT0}, s{sT3}')
        S(f's_lshl_b32 s{sROT2}, s{sCB}, 3\ns_mul_i32 s{sT0}, s{sTB}, 3\ns_add_u32 s{sROT2}, s{sROT2}, s{sT0}\ns_sub_u32 s{sT0}, s{sROT2}, 28\ns_cmp_ge_u32 s{sROT2}, 28\ns_cselect_b32 s{sROT2}, s{sT0}, s{sROT2}')
        S(f's_lshl_b32 s{sT1}, s{sT1}, 2\ns_add_u32 s{sT1}, s{sT1}, s{sCB}\ns_cmp_eq_u32 s{sROT1}, 6\ns_cselect_b32 s{sCB}, 3, s{sT1}')
        S(f's_lshr_b32 s{sT0}, s{sXCD}, 1\ns_lshl_b32 s{sT0}, s{sT0}, 3\ns_add_u32 s{sTB}, s{sTB}, s{sT0}')
    else:
        S(f's_mov_b32 s{sCB}, s{sROT1}\ns_lshl_b32 s{sTB}, s{sXCD}, 2\ns_add_u32 s{sTB}, s{sTB}, s{sT3}')
    S(f's_and_b32 s{sIDX}, s{sXCD}, 1\ns_lshl_b32 s{sIDX}, s{sIDX}, 2\ns_and_b32 s{sT0}, s{sT2}, 3\ns_add_u32 s{sIDX}, s{sIDX}, s{sT0}')
    S(f's_and_b32 s{sT0}, s{sT2}, 4\ns_lshl_b32 s{sT0}, s{sT0}, 1\ns_add_u32 s{sROLE}, s{sIDX}, s{sT0}')
    if not Opt.map2: S(f's_mul_i32 s{sROT2}, s{sT3}, 7\ns_lshl_b32 s{sT0}, s{sCB}, 2\ns_add_u32 s{sROT2}, s{sROT2}, s{sT0}\ns_sub_u32 s{sT0}, s{sROT2}, 28\ns_cmp_ge_u32 s{sROT2}, 28\ns_cselect_b32 s{sROT2}, s{sT0}, s{sROT2}')
    S(f's_lshl_b32 s{sT0}, s{sW4}, 2\ns_add_u32 s{sT0}, s{sT0}, {CTL}\nv_mov_b32 v{vCTL}, s{sT0}')
    S(f's_mov_b32 s{sHI}, 0\ns_mov_b32 s{sHI+1}, -1\ns_mov_b32 s{sL2E}, {hx(f2u(L2E))}\ns_movk_i32 s{sM70}, 0x70')
def l_decode(S):
    S(f'v_lshlrev_b32 v4, 3, v{vLANE}\nv_add_u32 v4, {CTL}, v4\nv_mov_b32 v6, 0\nv_mov_b32 v7, 0\nds_write_b64 v4, v[6:7]')
    decode2(S)
    S(f's_mul_i32 s{sT0}, s{sIDX}, 448\ns_and_b32 s{sT1}, s{sIDX}, 1\ns_lshl_b32 s{sT2}, s{sT1}, 6\ns_add_u32 s{sT2}, s{sT2}, s{sT0}')
    S(f's_mul_i32 s{sT1}, s{sT1}, 384\ns_sub_u32 s{sCOLS}, s{sT0}, s{sT1}\ns_add_u32 s{sCOLS}, s{sCOLS}, 384')
    S(f's_mul_i32 s{sT0}, s{sIDX}, 112')
    S(f's_add_u32 s{sT1}, s{sT0}, 896\ns_add_u32 s{sT3}, s{sT0}, 1792\ns_add_u32 s{sCOL[1]}, s{sT2}, 128\ns_add_u32 s{sCOL[2]}, s{sT2}, 256')
    S(f's_movk_i32 s{sPITCH}, 3584\ns_cmp_ge_u32 s{sROLE}, 8')
    S(f's_cselect_b32 s{sCOL[0]}, s{sT1}, s{sT2}\ns_cselect_b32 s{sPITCH}, 2688, s{sPITCH}')
    S(f's_cselect_b32 s{sCOL[1]}, s{sT3}, s{sCOL[1]}\ns_cselect_b32 s{sCOL[2]}, s{sT0}, s{sCOL[2]}')
    S(f's_mul_i32 s{SRD_W+2}, s{sPITCH}, 448\ns_mov_b32 s{SRD_W+3}, 0x20000')
    swz_voff(S, vLW, f's{sPITCH}', 8)
    S('s_waitcnt lgkmcnt(0)')
    S(f's_cmp_ge_u32 s{sROLE}, 8\ns_cselect_b64 s[{SRD_W}:{SRD_W+1}], s[66:67], s[74:75]')
    mk_srd(S, ((SRD_X, 64, 2048 * 896), (SRD_WS, 82, WS_SIZE), (SRD_W2, 76, 1792 * 896), (SRD_WO, 70, 448 * 896), (SRD_OUT, 78, 2048 * 896), (SRD_DBG, 80, 256), (SRD_WPHI, 68, 16 * 1568)))
    S(f's_mov_b64 s[{sKA_QKV}:{sKA_QKV+1}], s[66:67]\ns_mov_b64 s[{sKA_W1}:{sKA_W1+1}], s[74:75]')

TAGW = 320
def tag_fetch_l0(S):
    a, b = newlab('tf'), newlab('tf')
    S(f's_cmp_lg_u32 s{sW4}, 0\ns_cbranch_scc1 {b}')
    raw(S, f's_mov_b32 s{sBND}, 0\nv_mov_b32 v15, 0\n{a}:\nbuffer_load_dword v14, v15, {srd(SRD_DBG)}, 0 offen sc1\ns_waitcnt vmcnt(0)\nv_readfirstlane_b32 s{sTAG}, v14\ns_add_u32 s{sBND}, s{sBND}, 1\n'
           f's_max_u32 s{sCNT}, s{sBND}, 0x400000\ns_sub_u32 s{sCNT}, s{sCNT}, 0x400000\ns_or_b32 s{sTAG}, s{sTAG}, s{sCNT}\ns_cmp_eq_u32 s{sTAG}, 0\ns_cbranch_scc1 {a}\n'
           f'v_mov_b32 v14, s{sTAG}\ns_mov_b64 exec, 15\nds_write_b32 v{vLC}, v14 offset:{TAGW}\ns_mov_b64 exec, -1\ns_waitcnt lgkmcnt(0)\n{b}:')
def ltag_issue(S):
    S(f'v_mov_b32 v197, 0\nbuffer_load_dword v198, v197, {srd(SRD_DBG)}, 0 offen sc1')
def ltag_get(S):
    a, b = newlab('tf'), newlab('tf')
    S(f'v_readfirstlane_b32 s{sTAG}, v198\ns_cmp_lg_u32 s{sTAG}, 0\ns_cbranch_scc1 {b}')
    raw(S, f's_mov_b32 s{sBND}, 0\n{a}:\nbuffer_load_dword v198, v197, {srd(SRD_DBG)}, 0 offen sc1\ns_waitcnt vmcnt(0)\nv_readfirstlane_b32 s{sTAG}, v198\ns_add_u32 s{sBND}, s{sBND}, 1\n'
           f's_max_u32 s{sCNT}, s{sBND}, 0x400000\ns_sub_u32 s{sCNT}, s{sCNT}, 0x400000\ns_or_b32 s{sTAG}, s{sTAG}, s{sCNT}\ns_cmp_eq_u32 s{sTAG}, 0\ns_cbranch_scc1 {a}\n{b}:')
    S(f'v_mov_b32 v198, s{sTAG}\nds_write_b32 v{vCTL}, v198 offset:{TAGW}')
def tag_prefetch(S, vt):
    S(f'ds_read_b32 v{vt}, v{vCTL} offset:{TAGW}')
def tag_get(S, vt):
    a, b = newlab('tg'), newlab('tg')
    S(f'v_readfirstlane_b32 s{sTAG}, v{vt}')
    S(f's_cmp_lg_u32 s{sTAG}, 0\ns_cbranch_scc1 {b}')
    raw(S, f'{a}:\nds_read_b32 v{vt}, v{vCTL} offset:{TAGW}\ns_sleep 1\ns_waitcnt lgkmcnt(0)\nv_readfirstlane_b32 s{sTAG}, v{vt}\ns_nop 0\ns_cmp_eq_u32 s{sTAG}, 0\ns_cbranch_scc1 {a}\n{b}:')

def poll(S, voff, soff, nl, vt, sleep=None):
    a, b = newlab('pl'), newlab('pl')
    S(f's_mov_b64 exec, {hex((1 << nl) - 1)}\ns_mov_b32 s{sCNT}, 0')
    S(f'{a}:')
    S(f'buffer_load_dword v{vt}, v{voff}, {srd(SRD_WS)}, s{soff} offen sc1')
    S('s_waitcnt vmcnt(0)')
    S(f'v_cmp_ne_u32 vcc, s{sTAG}, v{vt}')
    S(f's_add_u32 s{sCNT}, s{sCNT}, 1\ns_cbranch_vccz {b}\ns_cmp_gt_u32 s{sCNT}, 0x400000\ns_cbranch_scc1 {b}\ns_sleep {sleep or Opt.sleep}\ns_branch {a}')
    S(f'{b}:')
    S('s_mov_b64 exec, -1')

def flag_store(S, soff, vt, n=1, shift=8):
    for i in range(4): S(f'v_mov_b32 v{vt+i}, s{sTAG}')
    S(f'v_lshrrev_b32 v{vt+4}, 3, v{vLANE}\nv_lshlrev_b32 v{vt+4}, {shift}, v{vt+4}\nv_and_or_b32 v{vt+4}, v{vL16}, s{sM70}, v{vt+4}')
    m = (1 << (8 * n)) - 1
    if n < 8: S(f's_mov_b32 exec_lo, {hex(m & 0xffffffff)}\ns_mov_b32 exec_hi, {hex(m >> 32)}')
    S(f'buffer_store_dwordx4 {v(vt,4)}, v{vt+4}, {srd(SRD_WS)}, s{soff} offen sc1')
    if n < 8: S('s_mov_b64 exec, -1')

def c_signal(ev):
    return [Ins(f'ds_write_b32 v{vCTL}, v{vCTL} offset:{16*ev}')]
def cnt_read(idx, vt):
    return [Ins(f'ds_read_b32 v{vt}, v{vCTL} offset:{128 + 16*idx}')]
def cnt_check(idx, vt, sleep=0):
    S = Stream(); a, b = newlab('ck'), newlab('ck')
    S(f'v_readfirstlane_b32 s{sCNT}, v{vt}\ns_cmp_ge_u32 s{sCNT}, 4\ns_cbranch_scc1 {b}')
    raw(S, f's_mov_b32 s{sBND}, 0\n{a}:\nds_read_b32 v{vt}, v{vCTL} offset:{128 + 16*idx}\ns_add_u32 s{sBND}, s{sBND}, 1\ns_cmp_gt_u32 s{sBND}, 0x1000000\ns_cbranch_scc1 {b}\ns_sleep {sleep}\ns_waitcnt lgkmcnt(0)\nv_readfirstlane_b32 s{sCNT}, v{vt}\ns_nop 0\ns_cmp_lt_u32 s{sCNT}, 4\ns_cbranch_scc1 {a}\n{b}:')
    return S.l
def c_allflags(ev, vt, va):
    S = Stream(); a, b = newlab('cf'), newlab('cf')
    S(f'v_mov_b32 v{va}, {CTL}\nds_read_b128 v[{vt}:{vt+3}], v{va} offset:{16*ev}')
    S2 = Stream()
    S2(f'v_min3_u32 v{vt}, v{vt}, v{vt+1}, v{vt+2}\nv_min_u32 v{vt}, v{vt}, v{vt+3}\nv_readfirstlane_b32 s{sCNT}, v{vt}\ns_cmp_lg_u32 s{sCNT}, 0\ns_cbranch_scc1 {b}')
    raw(S2, f's_mov_b32 s{sBND}, 0\n{a}:\nds_read_b128 v[{vt}:{vt+3}], v{va} offset:{16*ev}\ns_add_u32 s{sBND}, s{sBND}, 1\ns_cmp_gt_u32 s{sBND}, 0x1000000\ns_cbranch_scc1 {b}\ns_waitcnt lgkmcnt(0)\n'
            f'v_min3_u32 v{vt}, v{vt}, v{vt+1}, v{vt+2}\nv_min_u32 v{vt}, v{vt}, v{vt+3}\ns_nop 0\nv_readfirstlane_b32 s{sCNT}, v{vt}\ns_nop 0\ns_cmp_eq_u32 s{sCNT}, 0\ns_cbranch_scc1 {a}\n{b}:')
    return S.l, S2.l
vLC, vLONE, vLP = 11, 12, 188
def l_signal(S, idx):
    S(f's_mov_b64 exec, 15\nds_add_u32 v{vLC}, v{vLONE} offset:{128 + 16*idx}\ns_mov_b64 exec, -1')
def l_wait(S, ev, vLP=vLP):
    a, b = newlab('lw'), newlab('lw')
    S('s_waitcnt lgkmcnt(0)')
    raw(S, f's_mov_b32 s{sBND}, 0\n{a}:\nds_read_b128 v[{vLP}:{vLP+3}], v{vLP+4} offset:{16*ev}\ns_add_u32 s{sBND}, s{sBND}, 1\ns_cmp_gt_u32 s{sBND}, 0x1000000\ns_cbranch_scc1 {b}\ns_sleep {Opt.lsleep}\ns_waitcnt lgkmcnt(0)\nv_min3_u32 v{vLP}, v{vLP}, v{vLP+1}, v{vLP+2}\nv_min_u32 v{vLP}, v{vLP}, v{vLP+3}\ns_nop 0\nv_readfirstlane_b32 s{sCNT}, v{vLP}\ns_nop 0\ns_cmp_eq_u32 s{sCNT}, 0\ns_cbranch_scc1 {a}\n{b}:\ns_waitcnt lgkmcnt(0)')

X0 = 16; ACC = [[128, 144], [160, 176]]; AF = 192; WPHI = 224; T = 240; U = 224; TT = 248; NR = 4
vVA = [3, 4]; vWA = [5, 6]; vVS = 7; vR, vRM, vNRL, vSD, vCT, vNM = 8, 9, 10, 11, 12, 13; vTAG = 14

def lane_consts_tr(S, dst, tmp, cstride, rowmap):
    t0, t1, t2 = tmp, tmp + 1, tmp + 2
    S(f'v_bfe_u32 v{t0}, v{vLANE}, 2, 2')
    S(f'v_lshrrev_b32 v{t1}, 5, v{vLANE}')
    S(f'v_lshlrev_b32 v{t1}, {10 if rowmap == "A" else 9}, v{t1}\nv_lshl_add_u32 v{t1}, v{t0}, 7, v{t1}')
    S(f'v_bfe_u32 v{t0}, v{vLANE}, 3, 1\nv_lshlrev_b32 v{t0}, 6, v{t0}')
    S(f'v_bfe_u32 v{t2}, v{vLANE}, 4, 1\nv_lshlrev_b32 v{t2}, 5, v{t2}\nv_and_b32 v{dst[0]}, 3, v{vLANE}\nv_lshl_add_u32 v{t2}, v{dst[0]}, 3, v{t2}')
    S(f'v_xor_b32 v{dst[0]}, v{t2}, v{t0}\nv_add_u32 v{dst[0]}, v{dst[0]}, v{t1}')
    S(f'v_add_u32 v{t2}, {cstride}, v{t2}\nv_xor_b32 v{dst[1]}, v{t2}, v{t0}\nv_add_u32 v{dst[1]}, v{dst[1]}, v{t1}')

def trb(St, dst, hfshift, pitch, tmp):
    St(f'v_lshrrev_b32 v{tmp}, 5, v{vLANE}\nv_lshlrev_b32 v{tmp}, {hfshift}, v{tmp}\nv_bfe_u32 v{dst}, v{vLANE}, 2, 2\nv_add_u32 v{tmp}, v{tmp}, v{dst}\nv_mul_u32_u24 v{dst}, {pitch}, v{tmp}')
    St(f'v_bfe_u32 v{tmp}, v{vLANE}, 4, 1\nv_lshl_add_u32 v{dst}, v{tmp}, 5, v{dst}\nv_and_b32 v{tmp}, 3, v{vLANE}\nv_lshl_add_u32 v{dst}, v{tmp}, 3, v{dst}')

def wrap_inc(S, reg, inc, lim):
    S(f's_add_u32 s{reg}, s{reg}, {inc}\ns_cmp_eq_u32 s{reg}, {lim}\ns_cselect_b32 s{reg}, 0, s{reg}')

def c_load_x(S):
    a, b = T, T + 1
    S(f'v_lshrrev_b32 v{T+2}, 3, v{vLANE}\nv_mul_u32_u24 v{a}, 896, v{T+2}')
    S(f'v_lshrrev_b32 v{T+2}, 4, v{vLANE}\nv_and_b32 v{T+3}, 7, v{vLANE}\nv_xor_b32 v{T+2}, v{T+2}, v{T+3}\nv_lshl_add_u32 v{a}, v{T+2}, 4, v{a}\nv_xor_b32 v{b}, 64, v{a}')
    S(f'v_add_u32 v{b}, {8*896}, v{b}\nv_add_u32 v{T+2}, {16*896}, v{a}\nv_add_u32 v{T+3}, {16*896}, v{b}')
    sXB, sXL, sXR, sXO = sFT, sFS, sCOL[0], sCOL[1]
    S(f's_lshl_b32 s{sXB}, s{sRB}, 2\ns_add_u32 s{sXB}, s{sXB}, s{sWAVE}\ns_mul_i32 s{sXB}, s{sXB}, {32*896}')
    S(f's_mul_i32 s{sXL}, s{sWAVE}, {SLOT}\ns_lshl_b32 s{sXR}, s{sROT1}, 7')
    S(f's_mov_b32 s{SRD_X+2}, {2048*896}\ns_mov_b32 s{SRD_X+3}, 0x20000')
    stamp(S, 'e3')
    S(f's_waitcnt lgkmcnt(0)\ns_mov_b64 s[{SRD_X}:{SRD_X+1}], s[64:65]')
    stamp(S, 'e4')
    def xdma(lc):
        S(f's_add_u32 s{sXO}, s{sXB}, s{sXR}')
        for g in range(4):
            S(f's_add_u32 m0, s{sXL}, {lc*4096 + g*1024}')
            if g == 0 and lc < 6: wrap_inc(S, sXR, 128, 896)
            S(f'buffer_load_dwordx4 v{T+g}, {srd(SRD_X)}, s{sXO} offen lds', tok=('x', lc))
    for lc in range(Opt.xpipe): xdma(lc)
    decode2(S)
    mk_srd(S, ((SRD_WS, 82, WS_SIZE), (SRD_OUT, 78, 2048 * 896), (SRD_WO, 70, 448 * 896)))
    if Opt.xpipe >= 7: S('s_barrier')
    sT1_ = sXL
    stamp(S, 'e5')
    xa = T + 4
    S(f'v_and_b32 v{TT}, 31, v{vLANE}\nv_bfe_u32 v{TT+1}, v{vLANE}, 1, 3\nv_lshrrev_b32 v{xa}, 5, v{vLANE}\nv_xor_b32 v{TT+1}, v{TT+1}, v{xa}')
    S(f'v_lshlrev_b32 v{TT+1}, 4, v{TT+1}\nv_lshl_add_u32 v{xa}, v{TT}, 7, v{TT+1}\nv_add_u32 v{xa}, s{sXL}, v{xa}')
    for q in range(1, 4): S(f'v_xor_b32 v{xa+q}, {q*32}, v{xa}')
    S(f's_mov_b32 s{sSEL_LO}, 0x00003f80\ns_mov_b32 s{sSEL_HI}, 0x3f800000')
    S(f's_cmp_ge_u32 s{sROLE}, 8\ns_cselect_b32 s{sT0}, 56, 64')
    lane_consts_tr(S, vVA, TT, f's{sT0}', 'A')
    sA, sB, qA, qB, one = U, U + 1, U + 2, U + 3, U + 4
    S(f'v_mov_b32 v{sA}, 0\nv_mov_b32 v{sB}, 0\nv_mov_b32 v{qA}, 0\nv_mov_b32 v{qB}, 0\nv_mov_b32 v{one}, 0x3f803f80')
    def stats(lc):
        for q in range(4):
            for j in range(4):
                r = X0 + (lc * 4 + q) * 4 + j
                S(f'v_dot2c_f32_bf16 v{sA + (j & 1)}, v{r}, v{one}\nv_dot2c_f32_bf16 v{qA + (j & 1)}, v{r}, v{r}')
    for lc in range(7):
        S.wait(('x', lc))
        if lc in (0, 3, 6): stamp(S, 'e%d' % (6 + lc // 3))
        for q in range(4):
            S(f'ds_read_b128 {v(X0 + (lc*4+q)*4, 4)}, v{xa+q} offset:{lc*4096}')
        if lc == 6: S.ext(c_signal(EV_XFREE))
        if lc + Opt.xpipe < 7: xdma(lc + Opt.xpipe)
        if lc + Opt.xpipe == Opt.xbar: S('s_barrier')
        if lc > 0: stats(lc - 1)
    stamp(S, 1)
    stats(6)
    t = U + 5
    S(f'v_add_f32 v{sA}, v{sA}, v{sB}\nv_add_f32 v{qA}, v{qA}, v{qB}\nv_mov_b32 v{sB}, v{sA}\nv_mov_b32 v{qB}, v{qA}')
    S(f'v_permlane32_swap_b32 v{sA}, v{sB}\nv_permlane32_swap_b32 v{qA}, v{qB}')
    S(f'v_add_f32 v{sA}, v{sA}, v{sB}\nv_add_f32 v{qA}, v{qA}, v{qB}')
    inv = hx(f2u(1.0 / 448))
    S(f'v_mul_f32 v{sA}, {inv}, v{sA}\nv_mul_f32 v{qA}, {inv}, v{qA}')
    S(f'v_fma_f32 v{qA}, -v{sA}, v{sA}, v{qA}\nv_max_f32 v{qA}, 0, v{qA}')
    S(f'v_cvt_pk_bf16_f32 v{t}, v{sA}, v{qA}')
    S(f'v_lshlrev_b32 v{vNM}, 16, v{t}\nv_xor_b32 v{vNM}, 0x80000000, v{vNM}')
    R = Stream()
    R(f'v_and_b32 v{qA}, 0xffff0000, v{t}\nv_add_f32 v{qA}, {hx(f2u(1e-5))}, v{qA}')
    R(f'v_cvt_pk_bf16_f32 v{t}, v{qA}, v{qA}\nv_and_b32 v{qA}, 0xffff0000, v{t}\nv_sqrt_f32 v{qA}, v{qA}')
    R(f'v_nop\nv_cvt_pk_bf16_f32 v{t}, v{qA}, v{qA}\nv_and_b32 v{vSD}, 0xffff0000, v{t}\nv_rcp_f32 v{vR}, v{vSD}')
    R(f'v_nop\nv_mul_f32 v{vNRL}, {hx(f2u(-L2E))}, v{vR}\nv_cndmask_b32 v{vRM}, v{vR}, 0, {HI}')
    return R.l

def center(s):
    S = Stream()
    for j in range(4):
        r = X0 + s * 4 + j
        a, b = TT + 2 * j, TT + 2 * j + 1
        S(f'v_dot2_f32_bf16 v{a}, v{r}, s{sSEL_LO}, v{vNM}\nv_dot2_f32_bf16 v{b}, v{r}, s{sSEL_HI}, v{vNM}')
    for j in range(4):
        r = X0 + s * 4 + j
        S(f'v_cvt_pk_bf16_f32 v{r}, v{TT+2*j}, v{TT+2*j+1}')
    return S.l
def center5(s):
    S = Stream()
    for j in range(4):
        r = X0 + s * 4 + j
        a, b = TT + 2 * j, TT + 2 * j + 1
        S(f'v_lshlrev_b32 v{a}, 16, v{r}\nv_and_b32 v{b}, 0xffff0000, v{r}\nv_add_f32 v{a}, v{a}, v{vNM}\nv_add_f32 v{b}, v{b}, v{vNM}')
        S(f'v_cvt_pk_bf16_f32 v{r}, v{a}, v{b}')
    return S.l

def silu_tile(acc, u, soff, tok):
    S = Stream()
    for g in range(4):
        a = acc + 4 * g
        for i in range(4): S(f'v_mul_f32 v{TT+i}, v{a+i}, v{vNRL}')
        for i in range(4): S(f'v_exp_f32 v{TT+i}, v{TT+i}')
        for i in range(4): S(f'v_fma_f32 v{TT+i}, v{TT+i}, v{vSD}, v{vSD}')
        for i in range(4): S(f'v_rcp_f32 v{TT+i}, v{TT+i}')
        for i in range(4): S(f'v_mul_f32 v{TT+4+i}, v{a+i}, v{TT+i}')
        S(f'v_cvt_pk_bf16_f32 v{u+2*g}, v{TT+4}, v{TT+5}\nv_cvt_pk_bf16_f32 v{u+2*g+1}, v{TT+6}, v{TT+7}')
        if g % 2 == 1:
            S(f'buffer_store_dwordx4 {v(u + 4*(g//2), 4)}, v{vL16}, {srd(SRD_WS)}, s{soff[0]} offen offset:{soff[1] + 1024*(g//2)} {("sc1", "sc1 nt", "sc0 sc1", "")[Opt.stf]}', tok=tok)
    return S.l

def part(f, s, lo, hi):
    n = len(f); k = hi - lo + 1
    return f[(s - lo) * n // k:(s - lo + 1) * n // k]

CN_H1B = 14
class Steps:
    def __init__(self, single):
        self.steps = []
        for st in range(3):
            for s in range(28):
                h = st * 2 + s // 14; sp = s % 14
                p = dict(st=st, s=s, nt=2, h=h, off=sp * 2048, first=(sp == 0), last=(sp == 13), base=half_base(h), cn=h)
                if h == 1:
                    if sp < 8: p.update(base=SPARE, h1a=(sp == 7))
                    else: p.update(base=0, off=(sp - 8) * 2048, first=(sp == 8), cn=CN_H1B)
                self.steps.append(p)
        if single:
            for s in range(28):
                self.steps.append(dict(st=3, s=s, nt=1, h=6, off=s * K1, first=(s == 0), last=False, cn=6))
    def reads(self, n):
        if n >= len(self.steps): return [], []
        p = self.steps[n]; S = Stream(); pre = Stream()
        ring = AF + (n % NR) * 8
        if p['first']:
            pre.ext(cnt_check(p['cn'], vCT))
            if p['nt'] == 2:
                b = p['base']
                pre(f'v_add_u32 v{vWA[0]}, {b}, v{vVA[0]}\nv_add_u32 v{vWA[1]}, {b}, v{vVA[1]}')
        if p['nt'] == 2:
            for c in range(2):
                for u in range(2):
                    S(f'ds_read_b64_tr_b16 {v(ring + 4*c + 2*u, 2)}, v{vWA[c]} offset:{p["off"] + 512*u}', tok=('a', n))
        else:
            for u in range(2):
                S(f'ds_read_b64_tr_b16 {v(ring + 2*u, 2)}, v{vVS} offset:{p["off"] + 256*u}', tok=('a', n))
        if p['last'] and p['h'] < 4: S.ext(c_signal(EV_C0 + p['h']))
        if n + 3 < len(self.steps) and self.steps[n + 3]['first']:
            S.ext(cnt_read(self.steps[n + 3]['cn'], vCT))
        return pre.l, S.l
    def mfmas(self, n):
        p = self.steps[n]; ring = AF + (n % NR) * 8; out = []
        for c in range(p['nt']):
            acc = ACC[p['st'] % 2][c]
            C = '0' if p['s'] == 0 else v(acc, 16)
            out.append(Ins(f'v_mfma_f32_32x32x16_bf16 {v(acc,16)}, {v(ring+4*c,4)}, {v(X0+4*p["s"],4)}, {C}'))
        return out
    def stage(self, st, fill=None, perstep=None, mid=None):
        idx = [n for n, p in enumerate(self.steps) if p['st'] == st]
        groups = []
        for n in idx:
            p = self.steps[n]
            rd = self.reads(n + NR - 1)[1]
            pre = self.reads(n + NR)[0]
            m = self.mfmas(n)
            g = []
            if Opt.fine == st and p['s'] % 2 == 0 and p['s'] < 26: g.append(RAW(f's_memtime s[{72+p["s"]}:{73+p["s"]}]'))
            if mid and p['s'] in mid: g += mid[p['s']]
            on = p['s'] > 0 or perstep
            w = Stream(); w.wait(('a', n + 1))
            k = 2 if pre else 5
            if p['nt'] == 2:
                g += [m[0]] + rd + ([None] * 2 if on else []) + [m[1]] + w.l + ([None] * k if on else []) + pre
            else:
                g += [m[0]] + rd + ([None] * 3 if on else [])
            if perstep: g = interleave([g], perstep(p['s']))
            if Opt.fine == st and p['s'] == 27: g.append(RAW('s_memtime s[98:99]'))
            groups.append(g)
        if perstep: return [x for g in groups for x in g]
        return interleave(groups, fill)

def c_common(S):
    if Opt.cprio: S('s_setprio 2')
    rest = c_load_x(S)
    S.ext(cnt_read(0, vCT))
    for s in range(Opt.ncen): S.ext(center(s))
    P = Steps(True)
    for n in range(NR - 1):
        pre, rd = P.reads(n); S.ext(pre); S.ext(rd)
    stamp(S, 2)
    f = []
    for s in range(Opt.ncen, 28): f += center5(s)
    S.ext(P.stage(0, perstep=lambda s: part(f, s, 0, 25) if s < 26 else (rest if s == 26 else [])))
    stamp(S, 3)

def c_ffn(S):
    P = Steps(True)
    e = Stream(); t = T
    trb(e, vVS, 3, 64, t)
    e(f's_lshl_b32 s{sT0}, s{sRB}, 2\ns_add_u32 s{sT0}, s{sT0}, s{sWAVE}\ns_mul_i32 s{sT0}, s{sT0}, {112*K1}\ns_add_u32 s{sT0}, s{sT0}, {WS_H}')
    e(f's_mul_i32 s{sT1}, s{sIDX}, 7\ns_and_b32 s{sT2}, s{sIDX}, 1\ns_add_u32 s{sT3}, s{sT1}, s{sT2}\ns_lshl_b32 s{sT3}, s{sT3}, 11\ns_add_u32 s{sFT}, s{sT0}, s{sT3}')
    e(f's_mul_i32 s{sT2}, s{sT2}, 6\ns_sub_u32 s{sT1}, s{sT1}, s{sT2}\ns_add_u32 s{sT1}, s{sT1}, 6\ns_lshl_b32 s{sT1}, s{sT1}, 11\ns_add_u32 s{sFS}, s{sT0}, s{sT1}')
    for st in (1, 2, 3):
        pa = ACC[(st - 1) % 2]
        fill = (e.l if st == 1 else []) + [Ins(f's_add_u32 s{sT0}, s{sFT}, {(st-1)*4096}')]
        fill += silu_tile(pa[0], T, (sT0, 0), 'st') + silu_tile(pa[1], U, (sT0, 2048), 'st')
        if st == 3:
            t = Stream(); tag_prefetch(t, vTAG); fill = fill + t.l
        S.ext(P.stage(st, fill))
        stamp(S, 3 + st)
    S.ext(silu_tile(ACC[1][0], T, (sFS, 0), 'st'))

def minmax(S, X, mx, mn, t0, t1):
    for op, d in (('v_max3_f32', mx), ('v_min3_f32', mn)):
        S(f'{op} v{d}, v{X}, v{X+1}, v{X+2}')
        for i in range(3, 15, 2): S(f'{op} v{d}, v{d}, v{X+i}, v{X+i+1}')
    S(f'v_max_f32 v{mx}, v{mx}, v{X+15}\nv_min_f32 v{mn}, v{mn}, v{X+15}')
    S(f'v_mov_b32 v{t0}, v{mx}\nv_mov_b32 v{t1}, v{mn}\nv_permlane32_swap_b32 v{mx}, v{t0}\nv_permlane32_swap_b32 v{mn}, v{t1}')
    S(f'v_max_f32 v{mx}, v{mx}, v{t0}\nv_min_f32 v{mn}, v{mn}, v{t1}')
    S(f'v_mul_f32 v{mx}, {hx(f2u(-L2E))}, v{mx}\nv_mul_f32 v{mn}, {hx(f2u(L2E))}, v{mn}')

LX, LE, LT = 144, 160, 176
vLPW, vLMK, vLL2E, vLRD, vLWP = 185, 184, 186, 187, 193
def softmax_body(S, X, E0, tmp, l2e, pw, off, hook0=None):
    for i in range(4): S(f'v_cndmask_b32 v{X+12+i}, v{X+12+i}, v{X+8+i}, {HI}')
    mx, mn, t0, t1 = tmp, tmp + 2, tmp + 1, tmp + 3
    minmax(S, X, mx, mn, t0, t1)
    for sign in range(2):
        E = E0 if sign == 0 else X
        s0, s1 = tmp + 4, tmp + 5
        for i in range(16):
            if sign == 0: S(f'v_fma_f32 v{E+i}, v{X+i}, {l2e}, v{mx}')
            else: S(f'v_fma_f32 v{E+i}, -v{X+i}, {l2e}, v{mn}')
        for i in range(16): S(f'v_exp_f32 v{E+i}, v{E+i}')
        S(f'v_add_f32 v{s1}, v{E+12}, v{E+13}\nv_add_f32 v{s0}, v{E}, v{E+1}\nv_add_f32 v{s1}, v{s1}, v{E+14}')
        S(f'v_add_f32 v{s0}, v{s0}, v{E+2}\nv_add_f32 v{s1}, v{s1}, v{E+15}\nv_add_f32 v{s0}, v{s0}, v{E+3}\nv_cndmask_b32 v{s1}, v{s1}, 0, {HI}')
        for i in range(4, 12): S(f'v_add_f32 v{s0 + (i & 1)}, v{s0 + (i & 1)}, v{E+i}')
        S(f'v_add_f32 v{s0}, v{s0}, v{s1}\nv_mov_b32 v{s1}, v{s0}\nv_permlane32_swap_b32 v{s0}, v{s1}\nv_add_f32 v{s0}, v{s0}, v{s1}\nv_rcp_f32 v{s0}, v{s0}')
        for i in range(16): S(f'v_mul_f32 v{E+i}, v{E+i}, v{s0}')
        for i in range(8): S(f'v_cvt_pk_bf16_f32 v{E+i}, v{E+2*i}, v{E+2*i+1}')
        for qd in range(3):
            S(f'ds_write_b64 v{pw}, {v(E+2*qd, 2)} offset:{off + sign*56 + qd*16}')
        g = Stream(); g(f's_mov_b64 exec, 0xffffffff\nds_write_b64 v{pw}, {v(E+6, 2)} offset:{off + sign*56 + 48}\ns_mov_b64 exec, -1')
        S.l.append(Group(g.l))
        if sign == 0 and hook0: S.ext(hook0)

def softmax_k(hook0):
    S = Stream()
    rw = LE
    S(f'ds_read_b128 {v(rw,4)}, v{vLRD}\nds_read_b128 {v(rw+4,4)}, v{vLRD} offset:1024')
    for st in range(2):
        for u in range(2):
            S(f'ds_read_b64_tr_b16 {v(rw + 8 + 4*st + 2*u, 2)}, v{vLWP} offset:{(16*st + 8*u)*56}')
    S(f'v_mfma_f32_32x32x16_bf16 {v(LX,16)}, {v(rw+8,4)}, {v(rw,4)}, 0')
    S(f'v_mfma_f32_32x32x16_bf16 {v(LX,16)}, {v(rw+12,4)}, {v(rw+4,4)}, {v(LX,16)}')
    softmax_body(S, LX, LE, LT, f'v{vLL2E}', vLPW, 0, hook0)
    return S.l

def scale_pack(acc, dst, masked=True):
    S = Stream()
    for i in range(16): S(f'v_mul_f32 v{acc+i}, v{acc+i}, v{vRM if (masked and i >= 12) else vR}')
    for i in range(8): S(f'v_cvt_pk_bf16_f32 v{dst+i}, v{acc+2*i}, v{acc+2*i+1}')
    return S.l

def phi_mfma(acc, c, b):
    return [Ins(f'v_mfma_f32_32x32x16_bf16 {v(acc,16)}, {v(WPHI+8*c,4)}, {v(b,4)}, 0'),
            Ins(f'v_mfma_f32_32x32x16_bf16 {v(acc,16)}, {v(WPHI+8*c+4,4)}, {v(b+4,4)}, {v(acc,16)}')]

def c_attn(S):
    vHO, vVW, vWP = vVS, vNRL, vSD
    P = Steps(False)
    e = Stream(); t = TT
    trb(e, vWP, 2, 56, t)
    e(f'v_add_u32 v{vWP}, {WPHI_L}, v{vWP}')
    for c in range(2):
        for st in range(2):
            for u in range(2):
                e(f'ds_read_b64_tr_b16 {v(WPHI + 8*c + 4*st + 2*u, 2)}, v{vWP} offset:{c*1568 + (16*st + 8*u)*56}')
    ka = ACC[0]
    vPW = vNM
    h0 = Stream()
    h0(f's_lshl_b32 s{sT0}, s{sWAVE}, 12\ns_add_u32 s{sT0}, s{sT0}, {SPARE}\nv_add_u32 v{vHO}, s{sT0}, v{vL16}')
    h0.ext(scale_pack(ka[0], T))
    h0(f'ds_write_b128 v{vHO}, {v(T,4)}\nds_write_b128 v{vHO}, {v(T+4,4)} offset:1024')
    f1 = h0.l + c_signal(EV_PK)
    f1b = e.l + scale_pack(ka[1], T)
    sm = Stream(); softmax_body(sm, ka[1], ka[0], TT, f's{sL2E}', vPW, 14336)
    t = Stream()
    t(f'v_and_b32 v{TT+3}, 31, v{vLANE}\ns_lshl_b32 s{sT0}, s{sWAVE}, 5\nv_add_u32 v{TT+3}, s{sT0}, v{TT+3}\nv_lshrrev_b32 v{TT+4}, 5, v{vLANE}\nv_lshlrev_b32 v{TT+4}, 3, v{TT+4}')
    t(f'v_mul_u32_u24 v{vVW}, 72, v{TT+3}\nv_add_u32 v{vVW}, v{vVW}, v{TT+4}\nv_add_u32 v{vVW}, {SLOT}, v{vVW}')
    t(f'v_mul_u32_u24 v{vPW}, 112, v{TT+3}\nv_add_u32 v{vPW}, v{vPW}, v{TT+4}')
    f3 = t.l
    g1, g2 = c_allflags(EV_C2, T, T + 4)
    k1, k2 = c_allflags(EV_C1, TT, TT + 4)
    f1 = k1 + f1
    assert all(not x.op.startswith('ds_write') for x in part(f1, 1, 1, 4) + part(f1, 2, 1, 4))
    f2 = f1b + f3
    def ps1(s):
        if 1 <= s <= 4: return part(f1, s, 1, 4)
        if 5 <= s <= 9: return part(f2, s, 5, 9)
        if 11 <= s <= 27: return part(sm.l[:Opt.smin], s, 11, 27) + (g1 if s == 24 else [])
        return []
    S.ext(P.stage(1, perstep=ps1, mid={3: k2, 10: phi_mfma(ka[1], 1, T), 27: g2}))
    stamp(S, 4)
    va = ACC[1]
    t = Stream()
    for c in range(2):
        t.ext(scale_pack(va[c], T, masked=False))
        d = T
        t(f'v_cndmask_b32 v{d+6}, v{d+6}, v{TT+7}, {HI}\nv_cndmask_b32 v{d+7}, v{d+7}, 0, {HI}')
        for qd in range(4): t(f'ds_write_b64 v{vVW}, {v(d+2*qd, 2)} offset:{c*9216 + qd*16}')
    vfill = [Ins(f'v_mov_b32 v{TT+7}, 0x3f80')] + t.l
    if Opt.smin < len(sm.l):
        S.ext(sm.l[Opt.smin:Opt.smin + 14]); S.ext(vfill); S.ext(sm.l[Opt.smin + 14:]); S.ext(c_signal(EV_V)); vfill = []
        stamp(S, 11)
    else:
        vfill += c_signal(EV_V)
    tp = Stream(); tag_prefetch(tp, vTAG)
    def ps2(s):
        if 1 <= s <= Opt.vsteps: return part(vfill, s, 1, Opt.vsteps)
        if s == 20: return tp.l
        return []
    S.ext(P.stage(2, perstep=ps2))
    stamp(S, 5)
    S.ext(c_signal(EV_END))
    qa = ACC[0]
    S(f'v_mov_b32 v{TT}, s{sL2E}')
    S.ext(scale_pack(qa[0], T)); S.ext(phi_mfma(qa[0], 0, T)); S.ext(scale_pack(qa[1], AF + 16)); S.ext(phi_mfma(qa[1], 1, AF + 16))
    out_addr(S, XT, 32)
    for c in range(2):
        X = qa[c]; E = va[c]; d = AF + 16 * c
        for i in range(4): S(f'v_cndmask_b32 v{X+12+i}, v{X+12+i}, v{X+8+i}, {HI}')
        mx, mn = TT + 4, TT + 6
        minmax(S, X, mx, mn, TT + 5, TT + 7)
        for i in range(0, 16, 2): S(f'v_pk_fma_f32 {v(E+i,2)}, {v(X+i,2)}, {v(TT,2)}, {v(mx,2)} op_sel_hi:[1,0,0]')
        for i in range(16): S(f'v_exp_f32 v{E+i}, v{E+i}')
        for i in range(8): S(f'v_cvt_pk_bf16_f32 v{d+i}, v{E+2*i}, v{E+2*i+1}')
        for i in range(0, 16, 2): S(f'v_pk_fma_f32 {v(X+i,2)}, {v(X+i,2)}, {v(TT,2)}, {v(mn,2)} op_sel_hi:[1,0,0] neg_lo:[1,0,0] neg_hi:[1,0,0]')
        for i in range(16): S(f'v_exp_f32 v{X+i}, v{X+i}')
        for i in range(8): S(f'v_cvt_pk_bf16_f32 v{d+8+i}, v{X+2*i}, v{X+2*i+1}')
    stamp(S, 6)
    if Opt.oprio: S('s_setprio 2')
    tag_get(S, vTAG)
    PB, KF = 16, 160
    S(f's_lshl_b32 s{sT0}, s{sIDX}, 10\ns_add_u32 s{sT0}, s{sT0}, {WS_FK}\ns_lshl_b32 s{sT1}, s{sIDX}, 13\ns_add_u32 s{sT1}, s{sT1}, {WS_KVF}\ns_add_u32 s{sT2}, s{sT1}, 4096')
    S(f's_lshl_b32 s{sFS}, s{sRB}, 2\ns_add_u32 s{sFS}, s{sFS}, s{sWAVE}\ns_lshl_b32 s{sFS}, s{sFS}, 3\ns_add_u32 s{sFS}, s{sFS}, s{sIDX}\ns_lshl_b32 s{sFS}, s{sFS}, 12\ns_add_u32 s{sFS}, s{sFS}, {WS_PQ}')
    S(f'v_lshlrev_b32 v8, 7, v{vLANE}\nv_lshlrev_b32 v13, 2, v{vLANE}\nv_add_u32 v13, {CTL}, v13\nv_mov_b32 v9, 4')
    g_ = CN_W2 if False else CN_KG
    S.ext(cnt_read(g_, vCT)); S.ext(cnt_check(g_, vCT, 1))
    stamp(S, 8)
    again, oth, done = newlab('kv'), newlab('kv'), newlab('kv')
    S(f's_waitcnt vmcnt(0)\ns_mov_b32 s{sBND}, 0\ns_cmp_lg_u32 s{sW4}, 0\ns_cbranch_scc1 {oth}')
    raw(S, f'{again}:\ns_mov_b64 exec, 0xff\nbuffer_load_dword v10, v8, {srd(SRD_WS)}, s{sT0} offen sc1\ns_waitcnt vmcnt(0)\nv_cmp_ne_u32 vcc, s{sTAG}, v10\ns_nop 1\ns_cbranch_vccz {done}\n'
           f's_add_u32 s{sBND}, s{sBND}, 1\ns_cmp_gt_u32 s{sBND}, 0x400000\ns_cbranch_scc1 {done}\ns_sleep {Opt.rsleep}\ns_branch {again}\n'
           f'{done}:\ns_mov_b64 exec, 15\nds_write_b32 v13, v9 offset:{128 + 16*CN_KV}\ns_mov_b64 exec, -1\n{oth}:')
    S.ext(cnt_read(CN_KV, vCT)); S.ext(cnt_check(CN_KV, vCT, 0))
    stamp(S, 9)
    for j in range(8):
        S(f'buffer_load_dwordx4 {v(KF+4*j,4)}, v{vL16}, {srd(SRD_WS)}, s{sT1 + j//4} offen offset:{(j%4)*1024} sc1')
    for c in range(2):
        S.ext(num_mfma(PB + 32 * c, KF + 16 * c, AF + 16 * c))
    for c in range(2):
        S.ext(onorm(PB + 32 * c, AF + 16 * c))
        for hh in range(2):
            S(f'buffer_store_dwordx4 {v(AF+16*c+4*hh,4)}, v{vL16}, {srd(SRD_WS)}, s{sFS} offen offset:{c*2048 + hh*1024} sc1', tok='st')
    stamp(S, 10)

def num_mfma(aP, kb, ph):
    aN = aP + 16
    return [Ins(f'v_mfma_f32_32x32x16_bf16 {v(aP,16)}, {v(kb,4)}, {v(ph,4)}, 0'),
            Ins(f'v_mfma_f32_32x32x16_bf16 {v(aN,16)}, {v(kb+8,4)}, {v(ph+8,4)}, 0'),
            Ins(f'v_mfma_f32_32x32x16_bf16 {v(aP,16)}, {v(kb+4,4)}, {v(ph+4,4)}, {v(aP,16)}'),
            Ins(f'v_mfma_f32_32x32x16_bf16 {v(aN,16)}, {v(kb+12,4)}, {v(ph+12,4)}, {v(aN,16)}')]
def onorm(aP, ph):
    S = Stream()
    aN = aP + 16
    rP, rN, dn, a, b = TT, TT + 1, TT + 2, TT + 3, TT + 4
    S(f'v_rcp_f32 v{rP}, v{aP+13}\nv_rcp_f32 v{rN}, v{aN+13}')
    S(f'v_mov_b32 v{dn}, {hx(f2u(1e-6))}\nv_fmac_f32 v{dn}, v{aP+12}, v{rP}\nv_fmac_f32 v{dn}, v{aN+12}, v{rN}\nv_rcp_f32 v{dn}, v{dn}')
    S(f'v_mul_f32 v{rP}, v{rP}, v{dn}\nv_mul_f32 v{rN}, v{rN}, v{dn}\nv_mov_b32 v{a}, v{rP}\nv_mov_b32 v{b}, v{rN}')
    S(f'v_permlane32_swap_b32 v{rP}, v{a}\nv_permlane32_swap_b32 v{rN}, v{b}')
    for i in range(16): S(f'v_mul_f32 v{aP+i}, v{aP+i}, v{a}')
    for i in range(16): S(f'v_fmac_f32 v{aP+i}, v{aN+i}, v{b}')
    for i in range(8): S(f'v_cvt_pk_bf16_f32 v{ph+i}, v{aP+2*i}, v{aP+2*i+1}')
    S(f'v_cndmask_b32 v{ph+6}, v{ph+6}, 0, {HI}\nv_cndmask_b32 v{ph+7}, v{ph+7}, 0, {HI}')
    return S.l

def wo_dma(S, va, vb, thr=None):
    S(f's_lshl_b32 s{sT2}, s{sW4}, 14\ns_add_u32 s{sT2}, s{sT2}, {A_BASE}\ns_lshl_b32 s{sU0}, s{sCB}, 7')
    for hd in range(4):
        S(f's_add_u32 s{sT0}, s{sCB}, {hd}\ns_and_b32 s{sT0}, s{sT0}, 3\ns_lshl_b32 s{sT1}, s{sW4}, 2\ns_add_u32 s{sT0}, s{sT0}, s{sT1}\ns_mul_i32 s{sT0}, s{sT0}, {28*896}\ns_add_u32 s{sT0}, s{sT0}, s{sU0}')
        for i in range(4):
            S(f's_add_u32 m0, s{sT2}, {hd*4096 + i*1024}')
            if thr: S(f's_waitcnt vmcnt({thr})')
            if i == 2: S(f's_add_u32 s{sT0}, s{sT0}, {16*896}')
            if hd == 3 and i == 3: S(f's_cmp_eq_u32 s{sW4}, 3\ns_cselect_b32 exec_hi, 0, -1')
            S(f'buffer_load_dwordx4 v{va if i % 2 == 0 else vb}, {srd(SRD_WO)}, s{sT0} offen lds', tok='wo')
    S('s_mov_b64 exec, -1')

PHI = 16; PN = 144; XT = 236
vO = 3; vVW2 = [6, 7]
def out_addr(S, xt, off):
    S(f'v_and_b32 v8, 31, v{vLANE}\nv_mul_u32_u24 v{vO}, 896, v8\nv_lshrrev_b32 v8, 5, v{vLANE}\nv_lshl_add_u32 v{vO}, v8, 4, v{vO}')
    S(f's_and_b32 s{sT0}, s{sW4}, 1\ns_lshl_b32 s{sT1}, s{sTB}, 1\ns_add_u32 s{sT0}, s{sT0}, s{sT1}\ns_mul_i32 s{sFT}, s{sT0}, {32*896}')
    S(f's_lshr_b32 s{sT0}, s{sW4}, 1\ns_lshl_b32 s{sT0}, s{sT0}, 6\ns_add_u32 s{sFT}, s{sFT}, s{sT0}\ns_lshl_b32 s{sT0}, s{sCB}, 7\ns_add_u32 s{sFT}, s{sFT}, s{sT0}')
    S(f'buffer_load_dwordx4 {v(xt,4)}, v{vO}, {srd(SRD_X)}, s{sFT} offen offset:{off}')

def final_half(S, isA, acc, xt):
    own = acc + 48 + (8 if isA else 0)
    oth = acc + 48 + (0 if isA else 8)
    reg = A_REG if isA else F_REG; base = A_BASE if isA else 0
    ho = 2048 if isA else 0
    W = [16, 17, 18, 19]
    S(f's_mul_i32 s{sT3}, s{sW4}, {reg}')
    for vq in range(4):
        S(f's_xor_b32 s{sT0}, s{sW4}, {vq ^ 3}\ns_lshl_b32 s{sT0}, s{sT0}, 12\ns_add_u32 s{sT0}, s{sT0}, s{sT3}\ns_add_u32 s{sT0}, s{sT0}, {base}\nv_add_u32 v{W[vq]}, s{sT0}, v{vL16}')
    for i in range(2):
        S(f'ds_write_b128 v{W[3]}, {v(oth+4*i,4)} offset:{(2048 - ho) + i*1024}')
    for vq in range(3):
        for i in range(4):
            S(f'ds_write_b128 v{W[vq]}, {v(acc+16*vq+4*i,4)} offset:{i*1024}')
    S(f's_lshl_b32 s{sT2}, s{sW4}, 12\ns_add_u32 s{sT2}, s{sT2}, {ho}')
    for k in range(1, 4):
        S(f's_xor_b32 s{sT0}, s{sW4}, {k}\ns_mul_i32 s{sT0}, s{sT0}, {reg}\ns_add_u32 s{sT0}, s{sT0}, s{sT2}\ns_add_u32 s{sT0}, s{sT0}, {base}\nv_add_u32 v{19+k}, s{sT0}, v{vL16}')
    oreg = F_REG if isA else A_REG; obase = 0 if isA else A_BASE
    S(f's_add_u32 s{sT0}, s{sT2}, {obase}\nv_add_u32 v23, s{sT0}, v{vL16}\nv_add_u32 v24, {2*oreg}, v23')
    S(f'v_permlane32_swap_b32 v{xt}, v{xt+2}\nv_permlane32_swap_b32 v{xt+1}, v{xt+3}')
    E = 96
    for i in range(4): S(f'v_lshlrev_b32 v{E+2*i}, 16, v{xt+i}\nv_and_b32 v{E+2*i+1}, 0xffff0000, v{xt+i}')
    S('s_waitcnt lgkmcnt(0)\ns_barrier')
    stamp(S, 13 if isA else 14)
    O, P_ = 32, 64
    rdO = [f'ds_read_b128 {v(O+8*f+4*i,4)}, v{23 + f//2} offset:{(f%2)*oreg + i*1024}' for f in range(4) for i in range(2)]
    rdP = [f'ds_read_b128 {v(P_+8*k+4*i,4)}, v{20+k} offset:{i*1024}' for k in range(3) for i in range(2)]
    for r in (rdO + rdP if isA else rdP + rdO): S(r)
    def sumO():
        for i in range(8): S(f'v_add_f32 v{O+i}, v{O+i}, v{O+8+i}')
        for i in range(8): S(f'v_add_f32 v{O+16+i}, v{O+16+i}, v{O+24+i}')
        for i in range(8): S(f'v_add_f32 v{O+i}, v{O+i}, v{O+16+i}')
    def sumP():
        for i in range(8): S(f'v_add_f32 v{P_+i}, v{P_+i}, v{own+i}')
        for i in range(8): S(f'v_add_f32 v{P_+8+i}, v{P_+8+i}, v{P_+16+i}')
        for i in range(8): S(f'v_add_f32 v{P_+i}, v{P_+i}, v{P_+8+i}')
    G, Sg = (O, P_) if isA else (P_, O)
    (sumO if isA else sumP)()
    Q = 104
    for i in range(8): S(f'v_mul_f32 v{Q+i}, {hx(f2u(-L2E))}, v{G+i}')
    for i in range(8): S(f'v_exp_f32 v{Q+i}, v{Q+i}')
    (sumP if isA else sumO)()
    for i in range(8): S(f'v_add_f32 v{Q+i}, 1.0, v{Q+i}')
    for i in range(8): S(f'v_rcp_f32 v{Q+i}, v{Q+i}')
    for i in range(8): S(f'v_mul_f32 v{G+i}, v{G+i}, v{Sg+i}')
    for i in range(8): S(f'v_fmac_f32 v{E+i}, v{G+i}, v{Q+i}')
    for i in range(4): S(f'v_cvt_pk_bf16_f32 v{xt+i}, v{E+2*i}, v{E+2*i+1}')
    S(f'v_permlane32_swap_b32 v{xt}, v{xt+2}\nv_permlane32_swap_b32 v{xt+1}, v{xt+3}')
    S(f'buffer_store_dwordx4 {v(xt,4)}, v{vO}, {srd(SRD_OUT)}, s{sFT} offen offset:{32 if isA else 0}')

def c_publish(S, attn, tile):
    if tile and not attn: S.ext(c_signal(EV_END))
    S(f's_lshl_b32 s{sFS}, s{sRB}, 1\ns_lshr_b32 s{sT1}, s{sW4}, 1\ns_add_u32 s{sFS}, s{sFS}, s{sT1}\ns_lshl_b32 s{sFS}, s{sFS}, 15\ns_lshl_b32 s{sT1}, s{sROLE}, 8\ns_add_u32 s{sFS}, s{sFS}, s{sT1}')
    S(f's_and_b32 s{sT1}, s{sW4}, 1\ns_lshl_b32 s{sT1}, s{sT1}, 7\ns_add_u32 s{sFS}, s{sFS}, s{sT1}\ns_add_u32 s{sFS}, s{sFS}, {WS_FH}')
    if tile:
        lane_consts_tr(S, vVW2, 8, 64, 'B')
        S(f's_lshr_b32 s{sT0}, s{sW4}, 1\ns_lshl_b32 s{sT3}, s{sT0}, 15\ns_add_u32 s{sT3}, s{sT3}, {A_BASE}\ns_xor_b32 s{sT1}, s{sT0}, 1\ns_lshl_b32 s{sT1}, s{sT1}, 6')
        S(f'v_add_u32 v{vVW2[0]}, s{sT3}, v{vVW2[0]}\nv_xor_b32 v{vVW2[0]}, s{sT1}, v{vVW2[0]}\nv_xor_b32 v{vVW2[1]}, 64, v{vVW2[0]}')
    if not attn: tag_get(S, vTAG)
    S.wait('st')
    flag_store(S, sFS, TT, 7, 12)
    if attn and Opt.oprio: S('s_setprio 0')
    stamp(S, 7)
    if tile and not attn:
        out_addr(S, XT, 32)

W2R = 16; FACC = 144; HR = 208
vLW, vLS, vL2 = 3, 4, 5
def swz_voff(S, dst, pitch, tmp):
    S(f'v_lshrrev_b32 v{tmp}, 3, v{vLANE}')
    S(f'v_mul_lo_u32 v{dst}, v{tmp}, {pitch}' if isinstance(pitch, str) else f'v_mul_u32_u24 v{dst}, {pitch}, v{tmp}')
    S(f'v_bfe_u32 v{tmp}, v{vLANE}, 4, 1\nv_lshlrev_b32 v{tmp}, 2, v{tmp}\nv_and_b32 v{tmp+1}, 7, v{vLANE}\nv_xor_b32 v{tmp}, v{tmp}, v{tmp+1}\nv_lshl_add_u32 v{dst}, v{tmp}, 4, v{dst}')
def flat(l): return [x for y in l for x in y]
def sprinkle(main, units, start=0):
    out = []; n = len(main) - start; k = len(units); j = 0
    for i, x in enumerate(main):
        while j < k and i >= start and (j + 0.5) * n / max(k, 1) <= i - start and x.kind in ('valu', 'trans'):
            out += units[j]; j += 1
        out.append(x)
    return out + flat(units[j:])

def l_phase1(S, ffn, tile):
    sBLK, sP64, sP448, sP32, sW2, sK2 = sU0, sU1, sU2, sU3, sU4, sU5
    S(f's_mul_i32 s{sFS}, s{sW4}, s{sPITCH}\ns_lshl_b32 s{sFS}, s{sFS}, 3')
    S(f's_lshl_b32 s{sT3}, s{sW4}, 10\ns_lshl_b32 s{sP64}, s{sPITCH}, 6\ns_lshl_b32 s{sP32}, s{sPITCH}, 5\ns_mul_i32 s{sP448}, s{sPITCH}, 448\ns_mul_i32 s{sBLK}, s{sP64}, s{sROT1}')
    def dma_half(h):
        units = []
        st = h // 2
        for k in range(7):
            St = Stream()
            kk = (h % 2) * 7 + k
            St(f's_add_u32 m0, s{sT3}, {(half_base(h) + k*4096) if h != 1 else (SPARE + k*4096 if k < 4 else (k - 4)*4096)}')
            if kk % 2 == 0:
                St(f's_add_u32 s{sT0}, s{sBLK}, s{sFS}\ns_add_u32 s{sT0}, s{sT0}, s{sCOL[st]}')
            else:
                if k == 0: St(f's_add_u32 s{sT0}, s{sBLK}, s{sFS}\ns_add_u32 s{sT0}, s{sT0}, s{sCOL[st]}')
                St(f's_add_u32 s{sT0}, s{sT0}, s{sP32}')
                wrap_inc(St, sBLK, f's{sP64}', f's{sP448}')
            St(f'buffer_load_dwordx4 v{vLW}, {srd(SRD_W)}, s{sT0} offen lds', tok=('h', h if not (h == 1 and k >= 4) else CN_H1B))
            units.append(St.l)
        return units
    def sig(h):
        S.wait(('h', h))
        if h < 5: stamp(S, 2 + h)
        l_signal(S, h)
    if Opt.cpf:
        lab = newlab('pc')
        S(f's_getpc_b64 s[72:73]\n{lab}:\ns_sub_u32 s72, s72, {lab} - {NAME}\ns_subb_u32 s73, s73, 0')
        S(f's_lshl_b32 s{sT0}, s{sI}, 2\ns_add_u32 s{sT0}, s{sT0}, s{sW4}\ns_lshl_b32 s{sT0}, s{sT0}, 2\nv_add_u32 v8, s{sT0}, v{vLANE}\nv_lshlrev_b32 v8, 7, v8\nv_min_u32 v8, L_end - {NAME}, v8')
        S(f's_mov_b64 exec, 15\nglobal_load_dword v200, v8, s[72:73]\ns_mov_b64 exec, -1')
    S('s_barrier')
    S.ext(flat(dma_half(0)))
    if not ffn:
        S(f's_add_u32 m0, s{sT3}, {WPHI_L}\ns_mul_i32 s{sT0}, s{sIDX}, 3136\ns_add_u32 s{sT0}, s{sT0}, s{sT3}\ns_cmp_eq_u32 s{sW4}, 3\ns_cselect_b32 exec_hi, 0, -1')
        S(f'buffer_load_dwordx4 v{vL16}, {srd(SRD_WPHI)}, s{sT0} offen lds', tok=('h', 0))
        S('s_mov_b64 exec, -1')
    h1 = dma_half(1)
    S.ext(flat(h1[:4]))
    if Opt.tlb:
        st_ = Opt.tlb
        S(f'v_lshlrev_b32 v8, {st_}, v{vLANE}')
        S(f's_mul_i32 s{sT0}, s{sTB}, {224*K1}\ns_lshl_b32 s{sT1}, s{sTB}, 17\ns_add_u32 s{sT1}, s{sT1}, {WS_PQ}\ns_cmp_eq_u32 s{sW4}, 1\ns_cselect_b32 s{sT0}, s{sT1}, s{sT0}')
        S(f's_mov_b32 s{sT1}, {WS_KVF}\ns_cmp_eq_u32 s{sW4}, 2\ns_cselect_b32 s{sT0}, s{sT1}, s{sT0}')
        S(f's_mul_i32 s{sT1}, s{sRB}, {448*K1}\ns_cmp_eq_u32 s{sW4}, 3\ns_cselect_b32 s{sT0}, s{sT1}, s{sT0}')
        n_ = min(64, (448 * K1) >> st_)
        S(f's_mov_b32 exec_lo, {hex(((1 << n_) - 1) & 0xffffffff)}\ns_mov_b32 exec_hi, {hex(((1 << n_) - 1) >> 32)}')
        S(f'buffer_load_dword v200, v8, {srd(SRD_WS)}, s{sT0} offen sc1\ns_mul_i32 s{sT1}, s{sTB}, {64*896}\ns_mov_b64 exec, 3\nbuffer_load_dword v200, v8, {srd(SRD_OUT)}, s{sT1} offen\nbuffer_load_dword v200, v8, {srd(SRD_W2)}, 0 offen\nbuffer_load_dword v200, v8, {srd(SRD_WO)}, 0 offen\ns_mov_b64 exec, -1')
    stamp(S, 'e5')
    lab = newlab('nt')
    S(f's_or_b32 s{sT0}, s2, s{sW4}\ns_cmp_lg_u32 s{sT0}, 0\ns_cbranch_scc1 {lab}')
    raw(S, f's_mov_b32 s{sT0}, {WS_TAG}\nv_mov_b32 v9, 0\ns_mov_b64 exec, 1\nbuffer_load_dword v8, v9, {srd(SRD_WS)}, s{sT0} offen sc1\ns_waitcnt vmcnt(0)\n'
           f'v_add_u32 v8, 1, v8\nv_max_u32 v8, 1, v8\ns_nop 1\nbuffer_store_dword v8, v9, {srd(SRD_WS)}, s{sT0} offen sc1\nbuffer_store_dword v8, v9, {srd(SRD_DBG)}, 0 offen sc1\ns_waitcnt vmcnt(0)\ns_mov_b64 exec, -1\n{lab}:')
    S(f'v_lshlrev_b32 v{vLC}, 2, v{vLANE}\nv_add_u32 v{vLC}, {CTL}, v{vLC}\nv_mov_b32 v{vLONE}, 1\nv_mov_b32 v{vLP+4}, {CTL}')
    if ffn:
        S(f'v_lshrrev_b32 v8, 2, v{vLANE}\nv_mul_u32_u24 v{vLS}, 3584, v8\nv_and_b32 v8, 3, v{vLANE}\nv_lshl_add_u32 v{vLS}, v8, 4, v{vLS}')
    else:
        S(f'v_and_b32 v8, 31, v{vLANE}\ns_lshl_b32 s{sT0}, s{sW4}, 5\nv_add_u32 v8, s{sT0}, v8\nv_lshrrev_b32 v9, 5, v{vLANE}\nv_lshlrev_b32 v9, 3, v9')
        S(f'v_mul_u32_u24 v{vLPW}, 112, v8\nv_add_u32 v{vLPW}, v{vLPW}, v9')
        S(f'v_cndmask_b32 v{vLMK}, 1.0, 0, {HI}\nv_mov_b32 v{vLL2E}, s{sL2E}')
        trb(S, vLWP, 2, 56, 8)
        S(f'v_add_u32 v{vLWP}, {WPHI_L}, v{vLWP}')
    S(f's_lshl_b32 s{sT0}, s{sW4}, 12\ns_add_u32 s{sT0}, s{sT0}, {SPARE}\nv_add_u32 v{vLRD}, s{sT0}, v{vL16}')
    if tile:
        S(f's_mov_b32 s{sT1}, 896'); swz_voff(S, vL2, f's{sT1}', 8)
        lane_consts_tr(S, vVW2, 8, 64, 'B')
        S(f's_xor_b32 s{sT1}, s{sW4}, 3\ns_lshr_b32 s{sT1}, s{sT1}, 1\ns_lshl_b32 s{sT1}, s{sT1}, 6\nv_xor_b32 v{vVW2[0]}, s{sT1}, v{vVW2[0]}\nv_xor_b32 v{vVW2[1]}, 64, v{vVW2[0]}')
        S(f's_mul_i32 s{sW2}, s{sW4}, {448*896}\ns_lshl_b32 s{sT2}, s{sCB}, 7\ns_add_u32 s{sW2}, s{sW2}, s{sT2}\ns_mul_i32 s{sK2}, s{sROT2}, {16*896}')
        S(f'v_add_u32 v13, {8*896}, v{vL2}')
    def w2stage(base, stride, ns):
        if not tile: return
        S(f's_mul_i32 s{sT2}, s{sW4}, {stride}\ns_add_u32 s{sT2}, s{sT2}, {base}\nv_add_u32 v9, s{sT2}, v{vVW2[0]}\nv_add_u32 v10, s{sT2}, v{vVW2[1]}')
        def dma(ks):
            o = (ks % ns) * 2048
            S(f's_add_u32 m0, s{sT2}, {o}\ns_add_u32 s{sT1}, s{sW2}, s{sK2}')
            if ks >= ns: S.wait(('wr', ks - ns))
            S(f'buffer_load_dwordx4 v{vL2}, {srd(SRD_W2)}, s{sT1} offen lds', tok=('w', ks))
            S(f's_add_u32 m0, s{sT2}, {o + 1024}')
            wrap_inc(S, sK2, 16 * 896, 448 * 896)
            S(f'buffer_load_dwordx4 v13, {srd(SRD_W2)}, s{sT1} offen lds', tok=('w', ks))
        d = ns - 1
        for ks in range(min(d, Opt.nreg)): dma(ks)
        for ks in range(Opt.nreg):
            if ks + d < Opt.nreg: dma(ks + d)
            S.wait(('w', ks))
            o = (ks % ns) * 2048; b = W2R + 8 * ks
            for c in range(2):
                for u in range(2):
                    S(f'ds_read_b64_tr_b16 {v(b + 4*c + 2*u, 2)}, v{9+c} offset:{o + 1024*u}', tok=('wr', ks))
            if not ffn and ks in (0, 8): stamp(S, 3 + ks // 8)
    def w2raw(lo, hi):
        if not tile: return
        for ks in range(lo, hi):
            S(f's_add_u32 s{sT1}, s{sW2}, s{sK2}')
            S(f'buffer_load_dwordx4 {v(W2R+8*ks,4)}, v{vL2}, {srd(SRD_W2)}, s{sT1} offen')
            S(f'buffer_load_dwordx4 {v(W2R+8*ks+4,4)}, v13, {srd(SRD_W2)}, s{sT1} offen')
            wrap_inc(S, sK2, 16 * 896, 448 * 896)
    def tr(lo, hi):
        if not tile: return
        if lo == 0: S(f's_lshl_b32 s{sT0}, s{sW4}, 12\ns_add_u32 s{sT0}, s{sT0}, {SPARE}\nv_add_u32 v9, s{sT0}, v{vVW2[0]}\nv_add_u32 v10, s{sT0}, v{vVW2[1]}')
        for ks in range(lo, hi):
            o = (ks % 2) * 2048; b = W2R + 8 * ks
            S(f'ds_write_b128 v{vLRD}, {v(b,4)} offset:{o}\nds_write_b128 v{vLRD}, {v(b+4,4)} offset:{o+1024}')
            for c in range(2):
                for u in range(2):
                    S(f'ds_read_b64_tr_b16 {v(b + 4*c + 2*u, 2)}, v{9+c} offset:{o + 1024*u}')
    DUM = 200
    def pf(srd_, voff, soff, n):
        S(f's_mov_b32 exec_hi, {hex((1 << (n - 32)) - 1)}\nbuffer_load_dword v{DUM}, v{voff}, {srd(srd_)}, s{soff} offen\ns_mov_b32 exec_hi, -1', tok='pf')
    if Opt.wpf:
        S(f'v_mul_lo_u32 v14, v{vLANE}, s{sPITCH}\ns_and_b32 s{sT0}, s{sI}, 3\ns_mul_i32 s{sT0}, s{sT0}, 112')
        if ffn:
            S(f's_mul_i32 s{sT0}, s{sT0}, s{sPITCH}\ns_lshl_b32 s{sT1}, s{sW4}, 7\ns_add_u32 s{sT1}, s{sT1}, s{sCOL[0]}\ns_cmp_eq_u32 s{sW4}, 3\ns_cselect_b32 s{sT1}, s{sCOLS}, s{sT1}\ns_add_u32 s{sT0}, s{sT0}, s{sT1}')
            pf(SRD_W, 14, sT0, 56)
            S(f's_add_u32 s{sT0}, s{sT0}, {56*3584}')
            pf(SRD_W, 14, sT0, 56)
        else:
            S(f's_lshr_b32 s{sT1}, s{sW4}, 1\ns_mul_i32 s{sT1}, s{sT1}, 56\ns_add_u32 s{sT0}, s{sT0}, s{sT1}\ns_mul_i32 s{sT0}, s{sT0}, s{sPITCH}\ns_and_b32 s{sT1}, s{sW4}, 1\ns_mul_i32 s{sT1}, s{sT1}, 124\ns_add_u32 s{sT0}, s{sT0}, s{sT1}')
            for st in range(3):
                S(f's_add_u32 s{sT1}, s{sT0}, s{sCOL[st]}')
                pf(SRD_W, 14, sT1, 56)
    def w2_prefetch():
        if not Opt.w2pf: return
        S(f'v_lshlrev_b32 v14, 7, v{vLANE}\ns_lshl_b32 s{sT0}, s{sI}, 2\ns_add_u32 s{sT0}, s{sT0}, s{sW4}\ns_mul_i32 s{sT1}, s{sT0}, {98*128}')
        pf(SRD_W2, 14, sT1, 49)
        S(f's_add_u32 s{sT1}, s{sT1}, {49*128}')
        pf(SRD_W2, 14, sT1, 49)
        S(f's_mul_i32 s{sT1}, s{sT0}, {25*128}\ns_mov_b64 exec, 0x1ffffff\nbuffer_load_dword v{DUM}, v14, {srd(SRD_WO)}, s{sT1} offen\ns_mov_b64 exec, -1', tok='pf')
    def gpf(which):
        if not Opt.gpf: return
        S(f's_sub_u32 s{sT0}, s2, 128\ns_lshl_b32 s{sT0}, s{sT0}, 2\ns_add_u32 s{sT0}, s{sT0}, s{sW4}\nv_lshlrev_b32 v14, 7, v{vLANE}')
        S(f's_mov_b64 s[72:73], s[66:67]\ns_mov_b32 s74, {448*2688}\ns_mov_b32 s75, 0x20000') if False else None
        for (lo, n, size) in ((sKA_QKV, 10, 448*2688), (sKA_W1, 13, 448*3584), (SRD_W2, 25, None), (SRD_WO, 7, None))[which]:
            if size:
                S(f's_mov_b64 s[76:77], s[{lo}:{lo+1}]\ns_mov_b32 s78, {size}\ns_mov_b32 s79, 0x20000'); d = 76
            else: d = lo
            S(f's_mul_i32 s{sT1}, s{sT0}, {n*128}\ns_mov_b64 exec, {hex((1 << n) - 1)}\nbuffer_load_dword v{DUM}, v14, {srd(d)}, s{sT1} offen\ns_mov_b64 exec, -1', tok='pf')
    if Opt.gpf == 2: gpf(slice(0, 2))
    def wo_prefetch():
        if not Opt.wopf: return
        S(f'v_lshlrev_b32 v14, 7, v{vLANE}\ns_lshl_b32 s{sT0}, s{sI}, 2\ns_add_u32 s{sT0}, s{sT0}, s{sW4}')
        S(f's_mul_i32 s{sT1}, s{sT0}, {25*128}\ns_mov_b64 exec, 0x1ffffff\nbuffer_load_dword v{DUM}, v14, {srd(SRD_WO)}, s{sT1} offen\ns_mov_b64 exec, -1', tok='pf')
    l_wait(S, EV_XFREE)
    stamp(S, 1)
    S(f's_add_u32 s{sT0}, s{sBLK}, s{sFS}\ns_add_u32 s{sT0}, s{sT0}, s{sCOL[0]}')
    S.ext(flat(h1[4:])); sig(0)
    h2 = dma_half(2)
    S.ext(flat(h2[:3])); sig(1); S.ext(flat(h2[3:5])); sig(CN_H1B); S.ext(flat(h2[5:]))
    h3 = dma_half(3)
    S.ext(flat(h3[:3])); sig(2); S.ext(flat(h3[3:]))
    ltag_issue(S)
    h4 = dma_half(4)
    S.ext(flat(h4[:3])); sig(3); S.ext(flat(h4[3:]))
    if ffn:
        gpf(slice(2, 4))
    if ffn:
        sig(4)
        l_wait(S, EV_C0)
        S.ext(flat(dma_half(5)))
        sig(5)
        ltag_get(S)
        l_wait(S, EV_C1)
        S(f's_lshl_b32 s{sFS}, s{sFS}, 1\ns_add_u32 s{sFS}, s{sFS}, s{sCOLS}')
        for k in range(7):
            S(f's_add_u32 m0, s{sT3}, {k*4096}\ns_add_u32 s{sT0}, s{sBLK}, s{sFS}')
            wrap_inc(S, sBLK, f's{sP64}', f's{sP448}')
            S(f'buffer_load_dwordx4 v{vLS}, {srd(SRD_W)}, s{sT0} offen lds', tok=('h', 6))
        if Opt.l2pf:
            S(f'v_lshlrev_b32 v14, 7, v{vLANE}\ns_sub_u32 s{sT0}, s{sI}, 16\ns_lshl_b32 s{sT0}, s{sT0}, 2\ns_add_u32 s{sT0}, s{sT0}, s{sW4}\ns_mul_i32 s{sT1}, s{sT0}, {196*128}\ns_mov_b32 exec_hi, 0x1ffff')
            for i in range(4):
                S(f'buffer_load_dword v{DUM}, v14, {srd(SRD_W2)}, s{sT1} offen\ns_add_u32 s{sT1}, s{sT1}, {49*128}', tok='pf')
            S(f's_mul_i32 s{sT1}, s{sT0}, {49*128}\nbuffer_load_dword v{DUM}, v14, {srd(SRD_WO)}, s{sT1} offen\ns_mov_b64 exec, -1', tok='pf')
        sig(6)
        if Opt.ppf:
            n_ = Opt.ppf
            S(f'v_lshlrev_b32 v14, 7, v{vLANE}\ns_sub_u32 s{sT0}, s{sI}, 16\ns_lshl_b32 s{sT0}, s{sT0}, 2\ns_add_u32 s{sT0}, s{sT0}, s{sW4}\ns_mov_b64 exec, {hex((1 << n_) - 1)}')
            for (d, tot) in ((SRD_W2, 196), (SRD_WO, 49)):
                lab = newlab('pp')
                S(f's_mul_i32 s{sT1}, s{sT0}, {tot*128}\ns_mov_b32 s{sT2}, {(tot + n_ - 1) // n_}')
                raw(S, f'{lab}:\nbuffer_load_dword v{DUM}, v14, {srd(d)}, s{sT1} offen\ns_add_u32 s{sT1}, s{sT1}, {n_*128}\ns_sleep {Opt.pps}\ns_waitcnt vmcnt({Opt.ppw})\ns_sub_u32 s{sT2}, s{sT2}, 1\ns_cmp_lg_u32 s{sT2}, 0\ns_cbranch_scc1 {lab}')
            S('s_mov_b64 exec, -1')
        elif not Opt.l2pf: wo_prefetch()
        l_wait(S, EV_C3)
        w2stage(SLOT, 14 * K1, 7)
        stamp(S, 11)
    else:
        l_wait(S, EV_C0)
        S.ext(flat(dma_half(5)))
        kA, kB, KA = 194, 195, LX
        trb(S, kA, 3, 112, 8); trb(S, kB, 3, 72, 8)
        S(f's_lshr_b32 s{sT0}, s{sW4}, 1\ns_and_b32 s{sT1}, s{sW4}, 1\ns_mul_i32 s{sT2}, s{sT0}, 14336\ns_mul_i32 s{sT1}, s{sT1}, 56\ns_add_u32 s{sT2}, s{sT2}, s{sT1}\nv_add_u32 v{kA}, s{sT2}, v{kA}')
        S(f's_mul_i32 s{sT2}, s{sT0}, 9216\ns_add_u32 s{sT2}, s{sT2}, {SLOT}\nv_add_u32 v{kB}, s{sT2}, v{kB}')
        S(f's_lshl_b32 s{74}, s{sIDX}, 2\ns_add_u32 s{74}, s{74}, s{sW4}\ns_lshl_b32 s{75}, s{74}, 11\ns_lshl_b32 s{74}, s{74}, 4\ns_add_u32 s{74}, s{74}, s{sRB}\ns_lshl_b32 s{74}, s{74}, 11\ns_add_u32 s{74}, s{74}, {WS_KVP}')
        S(f's_lshl_b32 s{sT0}, s{sRB}, 7\ns_add_u32 s{75}, s{75}, s{sT0}\ns_add_u32 s{75}, s{75}, {WS_FP}')
        l_wait(S, EV_PK)
        stamp(S, 12)
        if Opt.lprio: S('s_setprio 1')
        sm = softmax_k(None)
        S.ext(sm[:8]); sig(4); S.ext(sm[8:Opt.h5at]); sig(5); S.ext(sm[Opt.h5at:])
        l_signal(S, CN_PH)
        stamp(S, 11)
        ltag_get(S)
        w2raw(0, Opt.aw2)
        if Opt.tr0: tr(0, Opt.tr0)
        stamp(S, 5)
        if Opt.kprio: S('s_setprio 1')
        l_wait(S, EV_V)
        S.ext(cnt_read(CN_PH, vLP)); S.ext(cnt_check(CN_PH, vLP))
        for ts in range(8):
            b = HR + 8 * (ts % 6)
            if ts >= 6: S(f'v_mfma_f32_32x32x16_bf16 {v(KA,16)}, {v(b,4)}, {v(b+4,4)}, {"0" if ts == 6 else v(KA,16)}')
            for u in range(2): S(f'ds_read_b64_tr_b16 {v(b + 2*u, 2)}, v{kA} offset:{(16*ts + 4*u)*112}')
            for u in range(2): S(f'ds_read_b64_tr_b16 {v(b + 4 + 2*u, 2)}, v{kB} offset:{(16*ts + 4*u)*72}')
        for ts in range(2, 8):
            b = HR + 8 * (ts % 6)
            S(f'v_mfma_f32_32x32x16_bf16 {v(KA,16)}, {v(b,4)}, {v(b+4,4)}, {v(KA,16)}')
        G_ = HR
        for i in range(8): S(f'v_cvt_pk_bf16_f32 v{G_+i}, v{KA+2*i}, v{KA+2*i+1}')
        for j in range(2):
            S(f'buffer_store_dwordx4 {v(G_+4*j,4)}, v{vL16}, {srd(SRD_WS)}, s{74} offen offset:{j*1024} sc1', tok='kvp')
        tr(Opt.tr0, Opt.tr0 + Opt.tr1)
        S.wait('kvp')
        flag_store(S, 75, LE)
        if not tile: l_signal(S, CN_KG)
        S('s_setprio 0')
        stamp(S, 1)
        if Opt.ackdiag: S.wait('kvp'); stamp(S, 2); S('s_waitcnt vmcnt(0)')
        w2raw(Opt.aw2, Opt.nreg)
        wo_prefetch()
        tr(Opt.tr0 + Opt.tr1, Opt.nreg)
        stamp(S, 6)
    if tile:
        l_signal(S, CN_LT)
        if not (Opt.early_f and not ffn):
            l_wait(S, EV_END)
            S.ext(cnt_read(CN_LT, vLP)); S.ext(cnt_check(CN_LT, vLP))
            stamp(S, 7)
            bu_ = bubble_units(Opt.bthr)
            S.ext(flat(bu_[:Opt.kgat])); l_signal(S, CN_KG); S.ext(flat(bu_[Opt.kgat:]))

def bubble_units(thr):
    sW2, sK2 = sU4, sU5
    u = []
    for i in range(12):
        t = Stream()
        if i == 0: t(f's_mul_i32 s{sT3}, s{sW4}, {F_REG}')
        t(f's_add_u32 m0, s{sT3}, {i*2048}\ns_add_u32 s{sT1}, s{sW2}, s{sK2}')
        if thr: t(f's_waitcnt vmcnt({thr})')
        t(f'buffer_load_dwordx4 v{vL2}, {srd(SRD_W2)}, s{sT1} offen lds', tok=('w2', Opt.nreg + i))
        t(f's_add_u32 m0, s{sT3}, {i*2048 + 1024}')
        wrap_inc(t, sK2, 16 * 896, 448 * 896)
        t(f'buffer_load_dwordx4 v13, {srd(SRD_W2)}, s{sT1} offen lds', tok=('w2', Opt.nreg + i))
        u.append(t.l)
    for hd in range(4):
        for half in range(2):
            t = Stream()
            t(f's_lshl_b32 s{sT2}, s{sW4}, 14\ns_add_u32 s{sT2}, s{sT2}, {A_BASE}')
            t(f's_lshl_b32 s{sT1}, s{sW4}, 2\ns_add_u32 s{sT1}, s{sT1}, {hd}\ns_mul_i32 s{sT1}, s{sT1}, {28*896}\ns_lshl_b32 s{sCNT}, s{sCB}, 7\ns_add_u32 s{sT1}, s{sT1}, s{sCNT}')
            if half: t(f's_add_u32 s{sT1}, s{sT1}, {16*896}')
            for i in range(2):
                t(f's_add_u32 m0, s{sT2}, {hd*4096 + half*2048 + i*1024}')
                if thr: t(f's_waitcnt vmcnt({thr})')
                if hd == 3 and half == 1 and i == 1: t(f's_cmp_eq_u32 s{sW4}, 3\ns_cselect_b32 exec_hi, 0, -1')
                else: t('s_nop 0')
                t(f'buffer_load_dwordx4 v{vL2 if i == 0 else 13}, {srd(SRD_WO)}, s{sT1} offen lds', tok='wo')
            if hd == 3 and half == 1: t('s_mov_b64 exec, -1')
            u.append(t.l)
    return u

def hflag_poll(S):
    S(f'v_lshlrev_b32 v8, 7, v{vLANE}')
    S(f's_lshl_b32 s{sT0}, s{sTB}, 3\ns_add_u32 s{sT0}, s{sT0}, s{sCB}\ns_lshl_b32 s{sT0}, s{sT0}, 12\ns_lshl_b32 s{sT1}, s{sW4}, 9\ns_add_u32 s{sT0}, s{sT0}, s{sT1}\ns_add_u32 s{sT0}, s{sT0}, {WS_FH}')
    poll(S, 8, sT0, 4, 9)

def f_phase2(S, attn):
    inl = attn and Opt.early_f
    stamp(S, 10)
    if Opt.fprio: S('s_setprio 1')
    sK = sU1
    vH0, vH1 = 14, 15
    S(f's_mul_i32 s{sT3}, s{sW4}, {F_REG}\nv_add_u32 v10, s{sT3}, v{vVW2[1]}\nv_add_u32 v11, s{sT3}, v{vVW2[0]}')
    S(f's_mul_i32 s{sU2}, s{sTB}, {224*K1}\ns_mul_i32 s{sT2}, s{sW4}, {28*K1}\ns_add_u32 s{sU2}, s{sU2}, s{sT2}\ns_add_u32 s{sU2}, s{sU2}, {WS_H}\ns_lshl_b32 s{sK}, s{sROT2}, 10')
    S(f's_and_b32 s{sT2}, s{sW4}, 1\ns_mul_i32 s{sT2}, s{sT2}, {112*K1}\nv_add_u32 v{vH1}, s{sT2}, v{vL16}\ns_sub_u32 s{sT2}, {112*K1}, s{sT2}\nv_add_u32 v{vH0}, s{sT2}, v{vL16}')
    S(f'v_mov_b32 v12, v11\nv_mov_b32 v11, v{vL2}')
    assert not inl and not Opt.wolate
    out_addr(S, 4, 0)
    S('s_waitcnt lgkmcnt(0)')
    hflag_poll(S)
    S(f'v_mov_b32 v9, v12\nv_mov_b32 v12, 4')
    wol = (attn and Opt.wolate) or Opt.wolate == 2
    S(f'v_lshlrev_b32 v8, 2, v{vLANE}\nv_add_u32 v8, {CTL}, v8\nv_mov_b32 v{W2R-3}, v13') if False else None
    S(f'v_lshlrev_b32 v8, 2, v{vLANE}\nv_add_u32 v8, {CTL}, v8\nv_mov_b32 v{HR+47}, 1\ns_mov_b64 exec, 15\nds_add_u32 v8, v{HR+47} offset:{128 + 16*CN_WO}\ns_mov_b64 exec, -1\ns_waitcnt lgkmcnt(0)')
    stamp(S, 8)
    NG = Opt.nreg
    def slot(i): return W2R + 8 * i if i < 16 else HR + 8 * (i - 16)
    free = list(range(NG, 22))
    hdst, adst, when = {}, {}, {}
    for ks in range(NG): adst[ks] = slot(ks)
    ring = [NG - 6, NG - 5, NG - 4]
    for ks in range(NG, 28): adst[ks] = slot(ring[(ks - NG) % 3])
    sched = {ks: [] for ks in range(-1, 28)}
    nxt = 0; hs = {}
    for ks in range(-1, 28):
        if ks >= 0:
            if ks < NG and ks not in ring: free.append(ks)
            free.append(hs[ks])
        while nxt < 28 and free:
            hs[nxt] = free.pop(0); hdst[nxt] = slot(hs[nxt]); sched[ks].append(nxt); nxt += 1
    sW2, sK2 = sU4, sU5
    def hload(ks):
        S(f's_add_u32 s{sT0}, s{sU2}, s{sK}')
        S(f'buffer_load_dwordx4 {v(hdst[ks],4)}, v{vH0}, {srd(SRD_WS)}, s{sT0} offen sc1')
        S(f'buffer_load_dwordx4 {v(hdst[ks]+4,4)}, v{vH1}, {srd(SRD_WS)}, s{sT0} offen sc1')
        if ks < 27: wrap_inc(S, sK, 1024, 28 * K1)
    def aread(ks):
        o = ((ks - NG) % 12) * 2048; b = adst[ks]
        S.wait(('w2', ks))
        for c in range(2):
            for u in range(2):
                S(f'ds_read_b64_tr_b16 {v(b + 4*c + 2*u, 2)}, v{9+c} offset:{o + 1024*u}', tok=('ar', ks))
    for k in sched[-1]: hload(k)
    for ks in range(28):
        for c in range(2):
            for tt2 in range(2):
                acc = FACC + 16 * (2 * c + tt2)
                S(f'v_mfma_f32_32x32x16_bf16 {v(acc,16)}, {v(adst[ks]+4*c,4)}, {v(hdst[ks]+4*tt2,4)}, {"0" if ks == 0 else v(acc,16)}')
                if c == 0 and tt2 == 0 and NG <= ks + 2 < 28: aread(ks + 2)
        if Opt.fdiag and ks in (0, 5, 10, 15, 19, 23): stamp(S, 1 + (0, 5, 10, 15, 19, 23).index(ks))
        if ks == (Opt.gk0 if attn else Opt.gk1): S(f'ds_write_b32 v{vCTL}, v12 offset:{128 + 16*CN_W2}')
        if ks >= NG and ks + 12 < 28:
            o = (ks - NG) * 2048
            S(f's_add_u32 m0, s{sT3}, {o}\ns_add_u32 s{sT1}, s{sW2}, s{sK2}')
            S(f'buffer_load_dwordx4 v11, {srd(SRD_W2)}, s{sT1} offen lds', tok=('w2', ks + 12))
            S(f's_add_u32 m0, s{sT3}, {o + 1024}')
            wrap_inc(S, sK2, 16 * 896, 448 * 896)
            S(f'buffer_load_dwordx4 v13, {srd(SRD_W2)}, s{sT1} offen lds', tok=('w2', ks + 12))
        for k in sched[ks]: hload(k)
    stamp(S, 9)
    final_f(S, FACC, 4)

def a_phase2(S):
    S(f's_lshl_b32 s{sU4}, s{sTB}, 16\ns_and_b32 s{sT2}, s{sW4}, 1\ns_lshl_b32 s{sT1}, s{sT2}, 15\ns_add_u32 s{sU4}, s{sU4}, s{sT1}\ns_lshr_b32 s{sT3}, s{sW4}, 1\ns_lshl_b32 s{sT1}, s{sT3}, 14\ns_add_u32 s{sU4}, s{sU4}, s{sT1}\ns_add_u32 s{sU4}, s{sU4}, {WS_PQ}')
    S(f'v_lshlrev_b32 v8, 8, v{vLANE}')
    S(f's_lshl_b32 s{sT0}, s{sTB}, 3\ns_add_u32 s{sT0}, s{sT0}, s{sCB}\ns_lshl_b32 s{sT0}, s{sT0}, 12\ns_lshl_b32 s{sT1}, s{sT3}, 10\ns_add_u32 s{sT0}, s{sT0}, s{sT1}\ns_lshl_b32 s{sT1}, s{sT2}, 7\ns_add_u32 s{sT0}, s{sT0}, s{sT1}\ns_add_u32 s{sT0}, s{sT0}, {WS_FH + 2048}')
    fa = final_addr(True)
    S.ext(fa)
    if Opt.aprio: S(f's_setprio {Opt.aprio}')
    S.ext(cnt_read(CN_W2, vCT)); S.ext(cnt_check(CN_W2, vCT, 1))
    stamp(S, 11)
    poll(S, 8, sT0, 4, 9, Opt.ksleep)
    stamp(S, 14)
    OB = 32
    for i in range(8):
        if i % 2 == 0: S(f's_add_u32 s{sT2}, s{sU4}, {i*2048}')
        for st in range(2):
            S(f'buffer_load_dwordx4 {v(OB+8*i+4*st,4)}, v{vL16}, {srd(SRD_WS)}, s{sT2} offen offset:{(i%2)*2048 + st*1024} sc1')
    S.ext(cnt_read(CN_WO, vCT)); S.ext(cnt_check(CN_WO, vCT, 1))
    SA, WB = 144, 96
    def woread(n):
        b = WB + 8 * (n % 6)
        for c in range(2):
            for u in range(2):
                S(f'ds_read_b64_tr_b16 {v(b+4*c+2*u,2)}, v{vVW2[c]} offset:{(16*n + 8*u)*128}')
    for n in range(5): woread(n)
    for n in range(16):
        b = WB + 8 * (n % 6)
        for c in range(2):
            acc = SA + 16 * c
            S(f'v_mfma_f32_32x32x16_bf16 {v(acc,16)}, {v(b+4*c,4)}, {v(OB+4*n,4)}, {"0" if n == 0 else v(acc,16)}')
            if c == 0 and n + 5 < 16: woread(n + 5)
    stamp(S, 12)
    final_a(S, SA)

XS = 96 * K1
def final_addr(isA):
    S = Stream()
    if isA:
        S(f's_mul_i32 s{sT1}, s{sW4}, {F_REG}\ns_add_u32 s{sT1}, s{sT1}, {16*K1}\nv_add_u32 v16, s{sT1}, v{vL16}')
        S(f's_xor_b32 s{sT1}, s{sW4}, 2\ns_mul_i32 s{sT1}, s{sT1}, {F_REG}\ns_add_u32 s{sT1}, s{sT1}, {16*K1}\nv_add_u32 v17, s{sT1}, v{vL16}')
    return S.l

def finish(S, xt, E, Sg, G, off):
    for i in range(8): S(f'v_fmac_f32 v{E+i}, v{Sg+i}, v{G+i}')
    for i in range(4): S(f'v_cvt_pk_bf16_f32 v{xt+i}, v{E+2*i}, v{E+2*i+1}')
    S(f'v_permlane32_swap_b32 v{xt}, v{xt+2}\nv_permlane32_swap_b32 v{xt+1}, v{xt+3}')
    S(f'buffer_store_dwordx4 {v(xt,4)}, v{vO}, {srd(SRD_OUT)}, s{sFT} offen offset:{off}')
def unpack_x(S, xt, E):
    S(f'v_permlane32_swap_b32 v{xt}, v{xt+2}\nv_permlane32_swap_b32 v{xt+1}, v{xt+3}')
    for i in range(4): S(f'v_lshlrev_b32 v{E+2*i}, 16, v{xt+i}\nv_and_b32 v{E+2*i+1}, 0xffff0000, v{xt+i}')

def final_a(S, SA):
    E = 20
    unpack_x(S, XT, E)
    S.ext(cnt_read(CN_G, vCT)); S.ext(cnt_check(CN_G, vCT, 1))
    for i in range(4): S(f'ds_write_b128 v17, {v(SA+4*i,4)} offset:{i*1024}')
    for i in range(2): S(f'ds_write_b128 v16, {v(SA+16+4*i,4)} offset:{4096 + i*1024}')
    S('s_waitcnt lgkmcnt(0)\ns_barrier')
    stamp(S, 13)
    for i in range(2): S(f'ds_read_b128 {v(32+4*i,4)}, v16 offset:{2048 + i*1024}')
    for i in range(2): S(f'ds_read_b128 {v(40+4*i,4)}, v16 offset:{6144 + i*1024}')
    for i in range(8): S(f'v_add_f32 v{32+i}, v{32+i}, v{SA+24+i}')
    finish(S, XT, E, 32, 40, 32)

def final_f(S, acc, xt):
    W = [16, 17, 18]
    S(f's_mul_i32 s{sT3}, s{sW4}, {F_REG}')
    for vq in range(3):
        S(f's_xor_b32 s{sT0}, s{sW4}, {vq ^ 3}\ns_lshl_b32 s{sT0}, s{sT0}, 12\ns_add_u32 s{sT0}, s{sT0}, s{sT3}\nv_add_u32 v{W[vq]}, s{sT0}, v{vL16}')
    S(f'v_lshlrev_b32 v24, 2, v{vLANE}\nv_add_u32 v24, {CTL}, v24\nv_mov_b32 v25, 1')
    for vq in range(3):
        for i in range(4):
            S(f'ds_write_b128 v{W[vq]}, {v(acc+16*vq+4*i,4)} offset:{i*1024}')
    S(f's_mov_b64 exec, 15\nds_add_u32 v24, v25 offset:{128 + 16*CN_G}\ns_mov_b64 exec, -1')
    S(f's_lshl_b32 s{sT2}, s{sW4}, 12')
    for k in range(1, 4):
        S(f's_xor_b32 s{sT0}, s{sW4}, {k}\ns_mul_i32 s{sT0}, s{sT0}, {F_REG}\ns_add_u32 s{sT0}, s{sT0}, s{sT2}\nv_add_u32 v{19+k}, s{sT0}, v{vL16}')
    S(f's_add_u32 s{sT3}, s{sT3}, {16*K1}\nv_add_u32 v23, s{sT3}, v{vL16}')
    E = 104
    unpack_x(S, xt, E)
    S.ext(cnt_read(CN_G, 26)); S.ext(cnt_check(CN_G, 26, 0))
    P_ = 32
    for k in range(3):
        for i in range(4): S(f'ds_read_b128 {v(P_+16*k+4*i,4)}, v{20+k} offset:{i*1024}')
    G = acc + 48
    for k in range(3):
        for i in range(16): S(f'v_add_f32 v{G+i}, v{G+i}, v{P_+16*k+i}')
    Q = 80
    for i in range(16): S(f'v_mul_f32 v{Q+i}, {hx(f2u(-L2E))}, v{G+i}')
    for i in range(16): S(f'v_exp_f32 v{Q+i}, v{Q+i}')
    for i in range(16): S(f'v_add_f32 v{Q+i}, 1.0, v{Q+i}')
    for i in range(16): S(f'v_rcp_f32 v{Q+i}, v{Q+i}')
    for i in range(16): S(f'v_mul_f32 v{G+i}, v{G+i}, v{Q+i}')
    for i in range(2): S(f'ds_write_b128 v23, {v(G+8+4*i,4)} offset:{6144 + i*1024}')
    S('s_waitcnt lgkmcnt(0)')
    stamp(S, 13)
    S('s_barrier')
    stamp(S, 14)
    for i in range(2): S(f'ds_read_b128 {v(32+4*i,4)}, v23 offset:{i*1024}')
    for i in range(2): S(f'ds_read_b128 {v(40+4*i,4)}, v23 offset:{4096 + i*1024}')
    for i in range(8): S(f'v_add_f32 v{32+i}, v{32+i}, v{40+i}')
    finish(S, xt, E, 32, G, 0)

def reducer(S):
    S(f's_cmp_ge_u32 s{sW4}, 2\ns_cbranch_scc1 L_fin')
    S(f'v_lshlrev_b32 v8, 7, v{vLANE}\ns_lshl_b32 s{sT0}, s{sTB}, 11\ns_add_u32 s{sT0}, s{sT0}, {WS_FP}')
    S(f's_lshl_b32 s{sU2}, s{sTB}, 15\ns_lshl_b32 s{sT2}, s{sW4}, 10\ns_add_u32 s{sU2}, s{sU2}, s{sT2}\ns_add_u32 s{sU2}, s{sU2}, {WS_KVP}')
    S(f's_lshl_b32 s{sU1}, s{sTB}, 1\ns_add_u32 s{sU1}, s{sU1}, s{sW4}\ns_lshl_b32 s{sU0}, s{sU1}, 7\ns_add_u32 s{sU0}, s{sU0}, {WS_FK}\ns_lshl_b32 s{sU1}, s{sU1}, 10\ns_add_u32 s{sU1}, s{sU1}, {WS_KVF}')
    S(f's_mov_b32 s{sSEL_LO}, 0x00003f80\ns_mov_b32 s{sSEL_HI}, 0x3f800000')
    for i in range(8): S(f'v_mov_b32 v{16+i}, 0')
    S(f's_cmp_eq_u32 s{sW4}, 1\ns_cselect_b32 s{sT3}, -1, 0\ns_mov_b32 s{sT2}, 0')
    poll(S, 8, sT0, 16, 9, 1)
    stamp(S, 8)
    for rb in range(16):
        if rb % 2 == 0: S(f's_add_u32 s{sT0}, s{sU2}, {rb*2048}')
        S(f'buffer_load_dwordx4 {v(32+4*rb,4)}, v{vL16}, {srd(SRD_WS)}, s{sT0} offen offset:{(rb%2)*2048} sc1')
    S(f'v_and_b32 v8, 31, v{vLANE}\nv_cmp_eq_u32 vcc, 29, v8')
    for rb in range(16):
        for i in range(4):
            S(f'v_dot2c_f32_bf16 v{16+2*i}, s{sSEL_LO}, v{32+4*rb+i}\nv_dot2c_f32_bf16 v{17+2*i}, s{sSEL_HI}, v{32+4*rb+i}')
    stamp(S, 10)
    for i in range(8): S(f'v_cndmask_b32 v{16+i}, v{16+i}, 1.0, vcc')
    for i in range(4): S(f'v_cvt_pk_bf16_f32 v{24+i}, v{16+2*i}, v{17+2*i}')
    S(f'v_cndmask_b32 v26, v26, 0, s[{sT2}:{sT3}]\nv_cndmask_b32 v27, v27, 0, s[{sT2}:{sT3}]')
    S(f'buffer_store_dwordx4 v[24:27], v{vL16}, {srd(SRD_WS)}, s{sU1} offen sc1')
    S('s_waitcnt vmcnt(0)')
    flag_store(S, sU0, 28)
    stamp(S, 9)

Opt.kvstep = 14
def fin_after(prefix, body):
    mark = Ins('L_MARK__:')
    o = finalize(prefix + [mark] + body)
    return o[o.index(mark) + 1:]

def build():
    assert sT2 % 2 == 0 and sT3 == sT2 + 1
    parts = []
    P = Stream(); prologue(P)
    P(f's_cmp_ge_u32 s{sWAVE}, 4\ns_cbranch_scc1 L_lwave')
    parts.append(finalize(P.l))
    C = Stream(); c_common(C); C(f's_cmp_ge_u32 s{sROLE}, 8\ns_cbranch_scc1 L_cattn')
    S = Stream(); c_ffn(S); c_publish(S, False, True); S('s_branch L_aphase'); parts.append(finalize(C.l + S.l))
    S = Stream(); S('L_cspare:\ns_waitcnt vmcnt(0)'); c_publish(S, True, False); S('s_branch L_fin'); parts.append(finalize(S.l))
    S = Stream(); S('L_cattn:'); c_attn(S)
    S(f's_cmp_ge_u32 s{sI}, 12\ns_cbranch_scc1 L_cspare'); c_publish(S, True, True); parts.append(fin_after(C.l, S.l))
    S = Stream(); S('L_aphase:'); a_phase2(S); S('s_branch L_fin'); parts.append(finalize(S.l))
    S = Stream(); S('L_lwave:'); l_decode(S)
    S(f's_cmp_ge_u32 s{sROLE}, 8\ns_cbranch_scc1 L_lattn'); l_phase1(S, True, True); f_phase2(S, False); S('s_branch L_fin'); parts.append(finalize(S.l))
    S = Stream(); S('L_lattn:'); S(f's_cmp_ge_u32 s{sI}, 12\ns_cbranch_scc1 L_lspare'); l_phase1(S, False, True); f_phase2(S, True); S('s_branch L_fin'); parts.append(finalize(S.l))
    S = Stream(); S('L_lspare:'); l_phase1(S, False, False); reducer(S); parts.append(finalize(S.l))
    S = Stream(); S('L_fin:'); diag_out(S); S('L_end:\ns_endpgm'); parts.append(finalize(S.l))
    hdr = open('recurrent_scan__linear_kernel_hedgehog__dense_activation_silu__prompt.s.ref').read().split('\n')
    top = [l for l in hdr[:13] if l.startswith(';') and '@launch' not in l and 'Override' not in l and 'grid=ceil' not in l]
    out = '\n'.join(top) + f'\n; @launch grid=(256,1,1) block=(512,1,1) lds={LDS_TOTAL}\n'
    out += f'.amdgcn_target "amdgcn-amd-amdhsa--gfx950"\n.text\n.globl {NAME}\n.p2align 8\n.type {NAME},@function\n{NAME}:\n'
    for p in parts:
        t = text(p)
        if Opt.nosc1 == 2: t = '\n'.join(l.replace(' sc1', ' nt sc1') if 'buffer_store_dwordx4' in l else l for l in t.split('\n'))
        if Opt.nosc1 == 3: t = '\n'.join(l.replace('offen', 'offen idxen').replace(', v2,', ', v[0:1],') if False else l for l in t.split('\n'))
        if Opt.nosc1 == 1: t = '\n'.join(l.replace(' sc1', '') if 'buffer_store_dwordx4' in l else l for l in t.split('\n'))
        out += t
    out += f'''.section .rodata,"a"
.p2align 6
.amdhsa_kernel {NAME}
  .amdhsa_next_free_vgpr 256
  .amdhsa_next_free_sgpr 102
  .amdhsa_accum_offset 256
  .amdhsa_group_segment_fixed_size 0
  .amdhsa_kernarg_size 80
  .amdhsa_user_sgpr_count 2
  .amdhsa_user_sgpr_kernarg_segment_ptr 1
  .amdhsa_system_sgpr_workgroup_id_x 1
.end_amdhsa_kernel
'''
    return out

if __name__ == '__main__':
    for a in sys.argv[2:]:
        k, _, val = a.partition('='); setattr(Opt, k, int(val) if val else True)
    open(sys.argv[1], 'w').write(build())
```

```python
import sys, struct
sys.path.insert(0, "dev")
from asmlib import *

NAME = "recurrent_scan__linear_kernel_hedgehog__dense_activation_silu__prompt_kernel"
K1 = 1024
import os
WS_H   = int(os.environ.get('WSOFF', '0')) << 20
WS_PQ  = WS_H + 64 * 112 * K1
WS_KVP = WS_PQ + 64 * 16 * 4096
WS_KVF = WS_KVP + 32 * 16 * 4096
WS_FH  = WS_KVF + 64 * K1
WS_FP  = WS_FH + 256 * 4096
WS_FK  = WS_FP + 32 * 2048
WS_TAG = WS_FK + 8 * 4096
WS_DIAG = WS_TAG + 4096
WS_SIZE = WS_DIAG + 256 * 8 * 64
SLOT = 28 * K1
SPARE = 140 * K1
WPHI_L = 156 * K1
CTL = 160 * K1 - 512
LDS_TOTAL = 160 * K1
F_REG = 24 * K1
A_BASE = 96 * K1
A_REG = 16 * K1
EV_XFREE, EV_C0, EV_C1, EV_C2, EV_C3, EV_PK, EV_END, EV_V = range(8)
CN_WO, CN_LT, CN_PH, CN_KV, CN_PQ, CN_K2, CN_W2, CN_KG, CN_G = 7, 8, 9, 10, 11, 13, 15, 16, 17
EV_X1, EV_X2, EV_PL = 25, 26, 27
sBND = 70
L2E = 1.4426950408889634
def f2u(x): return struct.unpack('<I', struct.pack('<f', x))[0]
def hx(x): return '0x%08x' % (x & 0xffffffff)

sWAVE, sXCD, sI, sRB, sROLE = 3, 4, 5, 6, 7
SRD_X, SRD_W, SRD_WS, SRD_W2, SRD_WO, SRD_OUT, SRD_DBG, SRD_WPHI = 8, 12, 16, 20, 24, 28, 32, 36
sTB, sCB, sIDX, sTAG, sPITCH = 40, 41, 42, 43, 44
sCOL = [45, 46, 47]
sCOLS = 48
sSEL_LO, sSEL_HI = 49, 63
sT0, sT1, sT2, sT3 = 50, 51, 52, 53
sHI = 54
sROT1, sROT2, sM70 = 1, 57, 56
sCNT, sW4, sFT, sFS, sL2E = 58, 59, 60, 61, 62
sU0, sU1, sU2, sU3, sU4, sU5 = 64, 65, 66, 67, 68, 69
sKA_QKV, sKA_W1 = 80, 82
STAMP0 = 84
def srd(b): return f's[{b}:{b+3}]'
def v(a, n=1): return f'v{a}' if n == 1 else f'v[{a}:{a+n-1}]'
HI = f's[{sHI}:{sHI+1}]'

class Opt:
    diag = False
    ncen = 18
    sleep = 8
    early = False
    rot = 1
    lprio = 1
    lsleep = 1
    nodma = 0
    nosc1 = 0
    nowo = 0
    wpf = 0
    xfirst = 3
    w2pf = 0
    gpf = 0
    mini = 0
    vsteps = 3
    hint = 1
    athr = 4
    rsleep = 3
    ackdiag = 0
    pk = 0
    pkq = 1
    trpace = 1
    aw2 = 10
    tr1 = 3
    tlb = 0
    s4hook = 1
    afirst = 0
    mixst = 0
    l2pf = 0
    gk0 = 14
    early_f = 0
    oprio = 1
    amp = 0
    ampwg = 200
    ampw = 0
    ampf = 10
    osc = 0
    stf = 0
    smin = 999
    nreg = 12
    xbar = 6
    kgat = 20
    wolate = 0
    wostep = 9
    map2 = 0
    ppf = 0
    pps = 3
    ppw = 4
    tr0 = 0
    plwait = 0
    gk1 = 22
    agate = 3
    h5at = 44
    kprio = 1
    aprio = 0
    bthr = 20
    trfirst = 0
    thr = 40
    xpipe = 4
    fine = -1
    cpf = 1
    wopf = 1
    phi1 = 1
    fprio = 1
    dbgout = 0
    outsc = ''
    empty = 0
    xcc = 0
    fdiag = 0
    nophi = 0
    notr = 0
    cprio = 0
    predelay = 0
    ksleep = 6

def stamp(S, k):
    if not Opt.diag: return
    if Opt.mini and k not in (0, 15): return
    if Opt.amp and k not in (0, 15, Opt.amp): return
    if Opt.fine >= 0:
        if k == 0: S('s_memtime s[100:101]\ns_waitcnt lgkmcnt(0)\ns_mov_b32 s71, s100')
        return
    if isinstance(k, str):
        if not Opt.early: return
        k = int(k[1:])
    elif Opt.early and 3 <= k < 15: return
    S(f'{"s_memtime" if Opt.diag == 2 else "s_memrealtime"} s[100:101]\ns_waitcnt lgkmcnt(0)\ns_mov_b32 s{STAMP0+k}, s100')

def diag_out(S):
    if not Opt.diag: return
    S('s_waitcnt vmcnt(0) lgkmcnt(0)')
    stamp(S, 15)
    if Opt.amp:
        lab, a = newlab('am'), newlab('am')
        S(f's_cmp_lg_u32 s2, {Opt.ampwg}\ns_cbranch_scc1 {lab}\ns_cmp_lg_u32 s{sWAVE}, {Opt.ampw}\ns_cbranch_scc1 {lab}')
        S(f's_sub_u32 s{sT0}, s{STAMP0+Opt.amp}, s{STAMP0}\ns_mul_i32 s{sT0}, s{sT0}, {Opt.ampf}\ns_add_u32 s{sT0}, s{sT0}, s{STAMP0}\ns_add_u32 s{sT0}, s{sT0}, 3000')
        S(f'{a}:\ns_memrealtime s[100:101]\ns_waitcnt lgkmcnt(0)\ns_sub_u32 s{sT1}, s{sT0}, s100\ns_cmp_gt_i32 s{sT1}, 0\ns_cbranch_scc1 {a}\n{lab}:\ns_endpgm')
    if Opt.xcc: S(f's_getreg_b32 s{STAMP0+11}, hwreg(HW_REG_XCC_ID)\ns_getreg_b32 s{STAMP0+12}, hwreg(HW_REG_HW_ID)')
    if Opt.dbgout:
        lab = newlab('dg')
        S(f's_not_b32 s{STAMP0+14}, s{STAMP0}')
        if Opt.dbgout == 1: S(f's_cmp_ge_u32 s{sWAVE}, 4')
        else: S(f's_cmp_lt_u32 s{sWAVE}, 4')
        S(f's_cbranch_scc1 {lab}')
        S('v_mov_b32 v16, 0')
        for k in range(1, 16): S(f'v_writelane_b32 v16, s{STAMP0+k}, {k}')
        S(f'v_mbcnt_lo_u32_b32 v17, -1, 0\nv_lshlrev_b32 v17, 2, v17\ns_mov_b64 exec, 0xfffe')
        S(f'buffer_atomic_umax v16, v17, {srd(SRD_DBG)}, 0 offen sc1')
        S(f'{lab}:\ns_endpgm')
    if Opt.fine >= 0:
        S('v_mov_b32 v16, s71\nv_mov_b32 v31, s71')
        for k in range(14): S(f'v_mov_b32 v{17+k}, s{72+2*k}')
    else:
        for k in range(16): S(f'v_mov_b32 v{16+k}, s{STAMP0+k}')
    S(f's_lshl_b32 s{sT0}, s2, 3\ns_add_u32 s{sT0}, s{sT0}, s{sWAVE}\ns_lshl_b32 s{sT0}, s{sT0}, 6\ns_add_u32 s{sT0}, s{sT0}, {WS_DIAG}')
    S('v_mov_b32 v40, 0\ns_mov_b64 exec, 1')
    for k in range(4): S(f'buffer_store_dwordx4 v[{16+4*k}:{19+4*k}], v40, {srd(SRD_WS)}, s{sT0} offen offset:{16*k}')

def half_base(h): return ((h + 4) % 5) * SLOT

_lab = [0]
def newlab(p):
    _lab[0] += 1; return f'L_{p}{_lab[0]}'
def RAW(t):
    i = Ins(t); i.kind = 'salu'; i.rd = set(); i.wr = set(); return i
def raw(S, t):
    for l in t.split('\n'):
        S.l.append(Ins(l) if l.endswith(':') else RAW(l))

vCTL, vLANE, vL16 = 0, 1, 2
def mk_srd(S, items):
    for b, lo, size in items:
        S(f's_mov_b64 s[{b}:{b+1}], s[{lo}:{lo+1}]\ns_mov_b32 s{b+2}, {size}\ns_mov_b32 s{b+3}, 0x20000')
def prologue(S):
    S(f's_cmp_ge_u32 s2, {0 if Opt.empty else 256}\ns_cbranch_scc1 L_end')
    if Opt.diag:
        for k in range(16): S(f's_mov_b32 s{STAMP0+k}, 0')
        if Opt.fine >= 0: S('s_mov_b32 s84, 1\ns_mov_b32 s86, 1\ns_mov_b32 s88, 1\ns_mov_b32 s90, 1\ns_mov_b32 s92, 1\ns_mov_b32 s94, 1\ns_mov_b32 s96, 1\ns_mov_b32 s98, 1')
    stamp(S, 0)
    S('s_load_dwordx16 s[64:79], s[0:1], 0\ns_load_dwordx4 s[80:83], s[0:1], 64')
    S(f'v_lshrrev_b32 v3, 6, v0\nv_and_b32 v{vLANE}, 63, v0\nv_readfirstlane_b32 s{sWAVE}, v3\nv_lshlrev_b32 v{vL16}, 4, v{vLANE}')
    S(f's_and_b32 s{sXCD}, s2, 7\ns_lshr_b32 s{sI}, s2, 3\ns_and_b32 s{sT3}, s{sI}, 3\ns_lshr_b32 s{sT2}, s{sI}, 2\ns_xor_b32 s{sT2}, s{sT2}, 4')
    S(f's_lshr_b32 s{sRB}, s{sXCD}, 1\ns_lshl_b32 s{sRB}, s{sRB}, 2\ns_add_u32 s{sRB}, s{sRB}, s{sT3}')
    S(f's_lshl_b32 s{sROT1}, s{sT3}, 1\ns_add_u32 s{sROT1}, s{sROT1}, s{sT2}\ns_sub_u32 s{sT0}, s{sROT1}, 7\ns_cmp_ge_u32 s{sROT1}, 7\ns_cselect_b32 s{sROT1}, s{sT0}, s{sROT1}')
    S(f's_and_b32 s{sW4}, s{sWAVE}, 3')
def decode2(S):
    if Opt.map2:
        S(f's_and_b32 s{sT1}, s{sXCD}, 1\ns_lshr_b32 s{sCB}, s{sROT1}, 1\ns_and_b32 s{sT0}, s{sROT1}, 1\ns_cmp_eq_u32 s{sROT1}, 6\ns_cselect_b32 s{sT0}, s{sT1}, s{sT0}')
        S(f's_lshl_b32 s{sT0}, s{sT0}, 2\ns_add_u32 s{sTB}, s{sT0}, s{sT3}')
        S(f's_lshl_b32 s{sROT2}, s{sCB}, 3\ns_mul_i32 s{sT0}, s{sTB}, 3\ns_add_u32 s{sROT2}, s{sROT2}, s{sT0}\ns_sub_u32 s{sT0}, s{sROT2}, 28\ns_cmp_ge_u32 s{sROT2}, 28\ns_cselect_b32 s{sROT2}, s{sT0}, s{sROT2}')
        S(f's_lshl_b32 s{sT1}, s{sT1}, 2\ns_add_u32 s{sT1}, s{sT1}, s{sCB}\ns_cmp_eq_u32 s{sROT1}, 6\ns_cselect_b32 s{sCB}, 3, s{sT1}')
        S(f's_lshr_b32 s{sT0}, s{sXCD}, 1\ns_lshl_b32 s{sT0}, s{sT0}, 3\ns_add_u32 s{sTB}, s{sTB}, s{sT0}')
    else:
        S(f's_mov_b32 s{sCB}, s{sROT1}\ns_lshl_b32 s{sTB}, s{sXCD}, 2\ns_add_u32 s{sTB}, s{sTB}, s{sT3}')
    S(f's_and_b32 s{sIDX}, s{sXCD}, 1\ns_lshl_b32 s{sIDX}, s{sIDX}, 2\ns_and_b32 s{sT0}, s{sT2}, 3\ns_add_u32 s{sIDX}, s{sIDX}, s{sT0}')
    S(f's_and_b32 s{sT0}, s{sT2}, 4\ns_lshl_b32 s{sT0}, s{sT0}, 1\ns_add_u32 s{sROLE}, s{sIDX}, s{sT0}')
    if not Opt.map2: S(f's_mul_i32 s{sROT2}, s{sT3}, 7\ns_lshl_b32 s{sT0}, s{sCB}, 2\ns_add_u32 s{sROT2}, s{sROT2}, s{sT0}\ns_sub_u32 s{sT0}, s{sROT2}, 28\ns_cmp_ge_u32 s{sROT2}, 28\ns_cselect_b32 s{sROT2}, s{sT0}, s{sROT2}')
    S(f's_lshl_b32 s{sT0}, s{sW4}, 2\ns_add_u32 s{sT0}, s{sT0}, {CTL}\nv_mov_b32 v{vCTL}, s{sT0}')
    S(f's_mov_b32 s{sHI}, 0\ns_mov_b32 s{sHI+1}, -1\ns_mov_b32 s{sL2E}, {hx(f2u(L2E))}\ns_movk_i32 s{sM70}, 0x70')
def l_decode(S):
    S(f'v_lshlrev_b32 v4, 3, v{vLANE}\nv_add_u32 v4, {CTL}, v4\nv_mov_b32 v6, 0\nv_mov_b32 v7, 0\nds_write_b64 v4, v[6:7]')
    decode2(S)
    S(f's_mul_i32 s{sT0}, s{sIDX}, 448\ns_and_b32 s{sT1}, s{sIDX}, 1\ns_lshl_b32 s{sT2}, s{sT1}, 6\ns_add_u32 s{sT2}, s{sT2}, s{sT0}')
    S(f's_mul_i32 s{sT1}, s{sT1}, 384\ns_sub_u32 s{sCOLS}, s{sT0}, s{sT1}\ns_add_u32 s{sCOLS}, s{sCOLS}, 384')
    S(f's_mul_i32 s{sT0}, s{sIDX}, 112')
    S(f's_add_u32 s{sT1}, s{sT0}, 896\ns_add_u32 s{sT3}, s{sT0}, 1792\ns_add_u32 s{sCOL[1]}, s{sT2}, 128\ns_add_u32 s{sCOL[2]}, s{sT2}, 256')
    S(f's_movk_i32 s{sPITCH}, 3584\ns_cmp_ge_u32 s{sROLE}, 8')
    S(f's_cselect_b32 s{sCOL[0]}, s{sT1}, s{sT2}\ns_cselect_b32 s{sPITCH}, 2688, s{sPITCH}')
    S(f's_cselect_b32 s{sCOL[1]}, s{sT3}, s{sCOL[1]}\ns_cselect_b32 s{sCOL[2]}, s{sT0}, s{sCOL[2]}')
    S(f's_mul_i32 s{SRD_W+2}, s{sPITCH}, 448\ns_mov_b32 s{SRD_W+3}, 0x20000')
    swz_voff(S, vLW, f's{sPITCH}', 8)
    S('s_waitcnt lgkmcnt(0)')
    S(f's_cmp_ge_u32 s{sROLE}, 8\ns_cselect_b64 s[{SRD_W}:{SRD_W+1}], s[66:67], s[74:75]')
    mk_srd(S, ((SRD_X, 64, 2048 * 896), (SRD_WS, 82, WS_SIZE), (SRD_W2, 76, 1792 * 896), (SRD_WO, 70, 448 * 896), (SRD_OUT, 78, 2048 * 896), (SRD_DBG, 80, 256), (SRD_WPHI, 68, 16 * 1568)))
    S(f's_mov_b64 s[{sKA_QKV}:{sKA_QKV+1}], s[66:67]\ns_mov_b64 s[{sKA_W1}:{sKA_W1+1}], s[74:75]')

TAGW = 320
def tag_fetch_l0(S):
    a, b = newlab('tf'), newlab('tf')
    S(f's_cmp_lg_u32 s{sW4}, 0\ns_cbranch_scc1 {b}')
    raw(S, f's_mov_b32 s{sBND}, 0\nv_mov_b32 v15, 0\n{a}:\nbuffer_load_dword v14, v15, {srd(SRD_DBG)}, 0 offen sc1\ns_waitcnt vmcnt(0)\nv_readfirstlane_b32 s{sTAG}, v14\ns_add_u32 s{sBND}, s{sBND}, 1\n'
           f's_max_u32 s{sCNT}, s{sBND}, 0x400000\ns_sub_u32 s{sCNT}, s{sCNT}, 0x400000\ns_or_b32 s{sTAG}, s{sTAG}, s{sCNT}\ns_cmp_eq_u32 s{sTAG}, 0\ns_cbranch_scc1 {a}\n'
           f'v_mov_b32 v14, s{sTAG}\ns_mov_b64 exec, 15\nds_write_b32 v{vLC}, v14 offset:{TAGW}\ns_mov_b64 exec, -1\ns_waitcnt lgkmcnt(0)\n{b}:')
def ltag_issue(S):
    S(f'v_mov_b32 v197, 0\nbuffer_load_dword v198, v197, {srd(SRD_DBG)}, 0 offen sc1')
def ltag_get(S):
    a, b = newlab('tf'), newlab('tf')
    S(f'v_readfirstlane_b32 s{sTAG}, v198\ns_cmp_lg_u32 s{sTAG}, 0\ns_cbranch_scc1 {b}')
    raw(S, f's_mov_b32 s{sBND}, 0\n{a}:\nbuffer_load_dword v198, v197, {srd(SRD_DBG)}, 0 offen sc1\ns_waitcnt vmcnt(0)\nv_readfirstlane_b32 s{sTAG}, v198\ns_add_u32 s{sBND}, s{sBND}, 1\n'
           f's_max_u32 s{sCNT}, s{sBND}, 0x400000\ns_sub_u32 s{sCNT}, s{sCNT}, 0x400000\ns_or_b32 s{sTAG}, s{sTAG}, s{sCNT}\ns_cmp_eq_u32 s{sTAG}, 0\ns_cbranch_scc1 {a}\n{b}:')
    S(f'v_mov_b32 v198, s{sTAG}\nds_write_b32 v{vCTL}, v198 offset:{TAGW}')
def tag_prefetch(S, vt):
    S(f'ds_read_b32 v{vt}, v{vCTL} offset:{TAGW}')
def tag_get(S, vt):
    a, b = newlab('tg'), newlab('tg')
    S(f'v_readfirstlane_b32 s{sTAG}, v{vt}')
    S(f's_cmp_lg_u32 s{sTAG}, 0\ns_cbranch_scc1 {b}')
    raw(S, f'{a}:\nds_read_b32 v{vt}, v{vCTL} offset:{TAGW}\ns_sleep 1\ns_waitcnt lgkmcnt(0)\nv_readfirstlane_b32 s{sTAG}, v{vt}\ns_nop 0\ns_cmp_eq_u32 s{sTAG}, 0\ns_cbranch_scc1 {a}\n{b}:')

def poll(S, voff, soff, nl, vt, sleep=None):
    a, b = newlab('pl'), newlab('pl')
    S(f's_mov_b64 exec, {hex((1 << nl) - 1)}\ns_mov_b32 s{sCNT}, 0')
    S(f'{a}:')
    S(f'buffer_load_dword v{vt}, v{voff}, {srd(SRD_WS)}, s{soff} offen sc1')
    S('s_waitcnt vmcnt(0)')
    S(f'v_cmp_ne_u32 vcc, s{sTAG}, v{vt}')
    S(f's_add_u32 s{sCNT}, s{sCNT}, 1\ns_cbranch_vccz {b}\ns_cmp_gt_u32 s{sCNT}, 0x400000\ns_cbranch_scc1 {b}\ns_sleep {sleep or Opt.sleep}\ns_branch {a}')
    S(f'{b}:')
    S('s_mov_b64 exec, -1')

def flag_store(S, soff, vt, n=1, shift=8):
    for i in range(4): S(f'v_mov_b32 v{vt+i}, s{sTAG}')
    S(f'v_lshrrev_b32 v{vt+4}, 3, v{vLANE}\nv_lshlrev_b32 v{vt+4}, {shift}, v{vt+4}\nv_and_or_b32 v{vt+4}, v{vL16}, s{sM70}, v{vt+4}')
    m = (1 << (8 * n)) - 1
    if n < 8: S(f's_mov_b32 exec_lo, {hex(m & 0xffffffff)}\ns_mov_b32 exec_hi, {hex(m >> 32)}')
    S(f'buffer_store_dwordx4 {v(vt,4)}, v{vt+4}, {srd(SRD_WS)}, s{soff} offen sc1')
    if n < 8: S('s_mov_b64 exec, -1')

def c_signal(ev):
    return [Ins(f'ds_write_b32 v{vCTL}, v{vCTL} offset:{16*ev}')]
def cnt_read(idx, vt):
    return [Ins(f'ds_read_b32 v{vt}, v{vCTL} offset:{128 + 16*idx}')]
def cnt_check(idx, vt, sleep=0):
    S = Stream(); a, b = newlab('ck'), newlab('ck')
    S(f'v_readfirstlane_b32 s{sCNT}, v{vt}\ns_cmp_ge_u32 s{sCNT}, 4\ns_cbranch_scc1 {b}')
    raw(S, f's_mov_b32 s{sBND}, 0\n{a}:\nds_read_b32 v{vt}, v{vCTL} offset:{128 + 16*idx}\ns_add_u32 s{sBND}, s{sBND}, 1\ns_cmp_gt_u32 s{sBND}, 0x1000000\ns_cbranch_scc1 {b}\ns_sleep {sleep}\ns_waitcnt lgkmcnt(0)\nv_readfirstlane_b32 s{sCNT}, v{vt}\ns_nop 0\ns_cmp_lt_u32 s{sCNT}, 4\ns_cbranch_scc1 {a}\n{b}:')
    return S.l
def c_allflags(ev, vt, va):
    S = Stream(); a, b = newlab('cf'), newlab('cf')
    S(f'v_mov_b32 v{va}, {CTL}\nds_read_b128 v[{vt}:{vt+3}], v{va} offset:{16*ev}')
    S2 = Stream()
    S2(f'v_min3_u32 v{vt}, v{vt}, v{vt+1}, v{vt+2}\nv_min_u32 v{vt}, v{vt}, v{vt+3}\nv_readfirstlane_b32 s{sCNT}, v{vt}\ns_cmp_lg_u32 s{sCNT}, 0\ns_cbranch_scc1 {b}')
    raw(S2, f's_mov_b32 s{sBND}, 0\n{a}:\nds_read_b128 v[{vt}:{vt+3}], v{va} offset:{16*ev}\ns_add_u32 s{sBND}, s{sBND}, 1\ns_cmp_gt_u32 s{sBND}, 0x1000000\ns_cbranch_scc1 {b}\ns_waitcnt lgkmcnt(0)\n'
            f'v_min3_u32 v{vt}, v{vt}, v{vt+1}, v{vt+2}\nv_min_u32 v{vt}, v{vt}, v{vt+3}\ns_nop 0\nv_readfirstlane_b32 s{sCNT}, v{vt}\ns_nop 0\ns_cmp_eq_u32 s{sCNT}, 0\ns_cbranch_scc1 {a}\n{b}:')
    return S.l, S2.l
vLC, vLONE, vLP = 11, 12, 188
def l_signal(S, idx):
    S(f's_mov_b64 exec, 15\nds_add_u32 v{vLC}, v{vLONE} offset:{128 + 16*idx}\ns_mov_b64 exec, -1')
def l_wait(S, ev, vLP=vLP):
    a, b = newlab('lw'), newlab('lw')
    S('s_waitcnt lgkmcnt(0)')
    raw(S, f's_mov_b32 s{sBND}, 0\n{a}:\nds_read_b128 v[{vLP}:{vLP+3}], v{vLP+4} offset:{16*ev}\ns_add_u32 s{sBND}, s{sBND}, 1\ns_cmp_gt_u32 s{sBND}, 0x1000000\ns_cbranch_scc1 {b}\ns_sleep {Opt.lsleep}\ns_waitcnt lgkmcnt(0)\nv_min3_u32 v{vLP}, v{vLP}, v{vLP+1}, v{vLP+2}\nv_min_u32 v{vLP}, v{vLP}, v{vLP+3}\ns_nop 0\nv_readfirstlane_b32 s{sCNT}, v{vLP}\ns_nop 0\ns_cmp_eq_u32 s{sCNT}, 0\ns_cbranch_scc1 {a}\n{b}:\ns_waitcnt lgkmcnt(0)')

X0 = 16; ACC = [[128, 144], [160, 176]]; AF = 192; WPHI = 224; T = 240; U = 224; TT = 248; NR = 4
vVA = [3, 4]; vWA = [5, 6]; vVS = 7; vR, vRM, vNRL, vSD, vCT, vNM = 8, 9, 10, 11, 12, 13; vTAG = 14

def lane_consts_tr(S, dst, tmp, cstride, rowmap):
    t0, t1, t2 = tmp, tmp + 1, tmp + 2
    S(f'v_bfe_u32 v{t0}, v{vLANE}, 2, 2')
    S(f'v_lshrrev_b32 v{t1}, 5, v{vLANE}')
    S(f'v_lshlrev_b32 v{t1}, {10 if rowmap == "A" else 9}, v{t1}\nv_lshl_add_u32 v{t1}, v{t0}, 7, v{t1}')
    S(f'v_bfe_u32 v{t0}, v{vLANE}, 3, 1\nv_lshlrev_b32 v{t0}, 6, v{t0}')
    S(f'v_bfe_u32 v{t2}, v{vLANE}, 4, 1\nv_lshlrev_b32 v{t2}, 5, v{t2}\nv_and_b32 v{dst[0]}, 3, v{vLANE}\nv_lshl_add_u32 v{t2}, v{dst[0]}, 3, v{t2}')
    S(f'v_xor_b32 v{dst[0]}, v{t2}, v{t0}\nv_add_u32 v{dst[0]}, v{dst[0]}, v{t1}')
    S(f'v_add_u32 v{t2}, {cstride}, v{t2}\nv_xor_b32 v{dst[1]}, v{t2}, v{t0}\nv_add_u32 v{dst[1]}, v{dst[1]}, v{t1}')

def trb(St, dst, hfshift, pitch, tmp):
    St(f'v_lshrrev_b32 v{tmp}, 5, v{vLANE}\nv_lshlrev_b32 v{tmp}, {hfshift}, v{tmp}\nv_bfe_u32 v{dst}, v{vLANE}, 2, 2\nv_add_u32 v{tmp}, v{tmp}, v{dst}\nv_mul_u32_u24 v{dst}, {pitch}, v{tmp}')
    St(f'v_bfe_u32 v{tmp}, v{vLANE}, 4, 1\nv_lshl_add_u32 v{dst}, v{tmp}, 5, v{dst}\nv_and_b32 v{tmp}, 3, v{vLANE}\nv_lshl_add_u32 v{dst}, v{tmp}, 3, v{dst}')

def wrap_inc(S, reg, inc, lim):
    S(f's_add_u32 s{reg}, s{reg}, {inc}\ns_cmp_eq_u32 s{reg}, {lim}\ns_cselect_b32 s{reg}, 0, s{reg}')

def c_load_x(S):
    a, b = T, T + 1
    S(f'v_lshrrev_b32 v{T+2}, 3, v{vLANE}\nv_mul_u32_u24 v{a}, 896, v{T+2}')
    S(f'v_lshrrev_b32 v{T+2}, 4, v{vLANE}\nv_and_b32 v{T+3}, 7, v{vLANE}\nv_xor_b32 v{T+2}, v{T+2}, v{T+3}\nv_lshl_add_u32 v{a}, v{T+2}, 4, v{a}\nv_xor_b32 v{b}, 64, v{a}')
    S(f'v_add_u32 v{b}, {8*896}, v{b}\nv_add_u32 v{T+2}, {16*896}, v{a}\nv_add_u32 v{T+3}, {16*896}, v{b}')
    sXB, sXL, sXR, sXO = sFT, sFS, sCOL[0], sCOL[1]
    S(f's_lshl_b32 s{sXB}, s{sRB}, 2\ns_add_u32 s{sXB}, s{sXB}, s{sWAVE}\ns_mul_i32 s{sXB}, s{sXB}, {32*896}')
    S(f's_mul_i32 s{sXL}, s{sWAVE}, {SLOT}\ns_lshl_b32 s{sXR}, s{sROT1}, 7')
    S(f's_mov_b32 s{SRD_X+2}, {2048*896}\ns_mov_b32 s{SRD_X+3}, 0x20000')
    stamp(S, 'e3')
    S(f's_waitcnt lgkmcnt(0)\ns_mov_b64 s[{SRD_X}:{SRD_X+1}], s[64:65]')
    stamp(S, 'e4')
    def xdma(lc):
        S(f's_add_u32 s{sXO}, s{sXB}, s{sXR}')
        for g in range(4):
            S(f's_add_u32 m0, s{sXL}, {lc*4096 + g*1024}')
            if g == 0 and lc < 6: wrap_inc(S, sXR, 128, 896)
            S(f'buffer_load_dwordx4 v{T+g}, {srd(SRD_X)}, s{sXO} offen lds', tok=('x', lc))
    for lc in range(Opt.xpipe): xdma(lc)
    decode2(S)
    mk_srd(S, ((SRD_WS, 82, WS_SIZE), (SRD_OUT, 78, 2048 * 896), (SRD_WO, 70, 448 * 896)))
    if Opt.xpipe >= 7: S('s_barrier')
    sT1_ = sXL
    stamp(S, 'e5')
    xa = T + 4
    S(f'v_and_b32 v{TT}, 31, v{vLANE}\nv_bfe_u32 v{TT+1}, v{vLANE}, 1, 3\nv_lshrrev_b32 v{xa}, 5, v{vLANE}\nv_xor_b32 v{TT+1}, v{TT+1}, v{xa}')
    S(f'v_lshlrev_b32 v{TT+1}, 4, v{TT+1}\nv_lshl_add_u32 v{xa}, v{TT}, 7, v{TT+1}\nv_add_u32 v{xa}, s{sXL}, v{xa}')
    for q in range(1, 4): S(f'v_xor_b32 v{xa+q}, {q*32}, v{xa}')
    S(f's_mov_b32 s{sSEL_LO}, 0x00003f80\ns_mov_b32 s{sSEL_HI}, 0x3f800000')
    S(f's_cmp_ge_u32 s{sROLE}, 8\ns_cselect_b32 s{sT0}, 56, 64')
    lane_consts_tr(S, vVA, TT, f's{sT0}', 'A')
    sA, sB, qA, qB, one = U, U + 1, U + 2, U + 3, U + 4
    S(f'v_mov_b32 v{sA}, 0\nv_mov_b32 v{sB}, 0\nv_mov_b32 v{qA}, 0\nv_mov_b32 v{qB}, 0\nv_mov_b32 v{one}, 0x3f803f80')
    def stats(lc):
        for q in range(4):
            for j in range(4):
                r = X0 + (lc * 4 + q) * 4 + j
                S(f'v_dot2c_f32_bf16 v{sA + (j & 1)}, v{r}, v{one}\nv_dot2c_f32_bf16 v{qA + (j & 1)}, v{r}, v{r}')
    for lc in range(7):
        S.wait(('x', lc))
        if lc in (0, 3, 6): stamp(S, 'e%d' % (6 + lc // 3))
        for q in range(4):
            S(f'ds_read_b128 {v(X0 + (lc*4+q)*4, 4)}, v{xa+q} offset:{lc*4096}')
        if lc == 6: S.ext(c_signal(EV_XFREE))
        if lc + Opt.xpipe < 7: xdma(lc + Opt.xpipe)
        if lc + Opt.xpipe == Opt.xbar: S('s_barrier')
        if lc > 0: stats(lc - 1)
    stamp(S, 1)
    stats(6)
    t = U + 5
    S(f'v_add_f32 v{sA}, v{sA}, v{sB}\nv_add_f32 v{qA}, v{qA}, v{qB}\nv_mov_b32 v{sB}, v{sA}\nv_mov_b32 v{qB}, v{qA}')
    S(f'v_permlane32_swap_b32 v{sA}, v{sB}\nv_permlane32_swap_b32 v{qA}, v{qB}')
    S(f'v_add_f32 v{sA}, v{sA}, v{sB}\nv_add_f32 v{qA}, v{qA}, v{qB}')
    inv = hx(f2u(1.0 / 448))
    S(f'v_mul_f32 v{sA}, {inv}, v{sA}\nv_mul_f32 v{qA}, {inv}, v{qA}')
    S(f'v_fma_f32 v{qA}, -v{sA}, v{sA}, v{qA}\nv_max_f32 v{qA}, 0, v{qA}')
    S(f'v_cvt_pk_bf16_f32 v{t}, v{sA}, v{qA}')
    S(f'v_lshlrev_b32 v{vNM}, 16, v{t}\nv_xor_b32 v{vNM}, 0x80000000, v{vNM}')
    R = Stream()
    R(f'v_and_b32 v{qA}, 0xffff0000, v{t}\nv_add_f32 v{qA}, {hx(f2u(1e-5))}, v{qA}')
    R(f'v_cvt_pk_bf16_f32 v{t}, v{qA}, v{qA}\nv_and_b32 v{qA}, 0xffff0000, v{t}\nv_sqrt_f32 v{qA}, v{qA}')
    R(f'v_nop\nv_cvt_pk_bf16_f32 v{t}, v{qA}, v{qA}\nv_and_b32 v{vSD}, 0xffff0000, v{t}\nv_rcp_f32 v{vR}, v{vSD}')
    R(f'v_nop\nv_mul_f32 v{vNRL}, {hx(f2u(-L2E))}, v{vR}\nv_cndmask_b32 v{vRM}, v{vR}, 0, {HI}')
    return R.l

def center(s):
    S = Stream()
    for j in range(4):
        r = X0 + s * 4 + j
        a, b = TT + 2 * j, TT + 2 * j + 1
        S(f'v_dot2_f32_bf16 v{a}, v{r}, s{sSEL_LO}, v{vNM}\nv_dot2_f32_bf16 v{b}, v{r}, s{sSEL_HI}, v{vNM}')
    for j in range(4):
        r = X0 + s * 4 + j
        S(f'v_cvt_pk_bf16_f32 v{r}, v{TT+2*j}, v{TT+2*j+1}')
    return S.l
def center5(s):
    S = Stream()
    for j in range(4):
        r = X0 + s * 4 + j
        a, b = TT + 2 * j, TT + 2 * j + 1
        S(f'v_lshlrev_b32 v{a}, 16, v{r}\nv_and_b32 v{b}, 0xffff0000, v{r}\nv_add_f32 v{a}, v{a}, v{vNM}\nv_add_f32 v{b}, v{b}, v{vNM}')
        S(f'v_cvt_pk_bf16_f32 v{r}, v{a}, v{b}')
    return S.l

def silu_tile(acc, u, soff, tok):
    S = Stream()
    for g in range(4):
        a = acc + 4 * g
        for i in range(4): S(f'v_mul_f32 v{TT+i}, v{a+i}, v{vNRL}')
        for i in range(4): S(f'v_exp_f32 v{TT+i}, v{TT+i}')
        for i in range(4): S(f'v_fma_f32 v{TT+i}, v{TT+i}, v{vSD}, v{vSD}')
        for i in range(4): S(f'v_rcp_f32 v{TT+i}, v{TT+i}')
        for i in range(4): S(f'v_mul_f32 v{TT+4+i}, v{a+i}, v{TT+i}')
        S(f'v_cvt_pk_bf16_f32 v{u+2*g}, v{TT+4}, v{TT+5}\nv_cvt_pk_bf16_f32 v{u+2*g+1}, v{TT+6}, v{TT+7}')
        if g % 2 == 1:
            S(f'buffer_store_dwordx4 {v(u + 4*(g//2), 4)}, v{vL16}, {srd(SRD_WS)}, s{soff[0]} offen offset:{soff[1] + 1024*(g//2)} {("sc1", "sc1 nt", "sc0 sc1", "")[Opt.stf]}', tok=tok)
    return S.l

def part(f, s, lo, hi):
    n = len(f); k = hi - lo + 1
    return f[(s - lo) * n // k:(s - lo + 1) * n // k]

CN_H1B = 14
class Steps:
    def __init__(self, single):
        self.steps = []
        for st in range(3):
            for s in range(28):
                h = st * 2 + s // 14; sp = s % 14
                p = dict(st=st, s=s, nt=2, h=h, off=sp * 2048, first=(sp == 0), last=(sp == 13), base=half_base(h), cn=h)
                if h == 1:
                    if sp < 8: p.update(base=SPARE, h1a=(sp == 7))
                    else: p.update(base=0, off=(sp - 8) * 2048, first=(sp == 8), cn=CN_H1B)
                self.steps.append(p)
        if single:
            for s in range(28):
                self.steps.append(dict(st=3, s=s, nt=1, h=6, off=s * K1, first=(s == 0), last=False, cn=6))
    def reads(self, n):
        if n >= len(self.steps): return [], []
        p = self.steps[n]; S = Stream(); pre = Stream()
        ring = AF + (n % NR) * 8
        if p['first']:
            pre.ext(cnt_check(p['cn'], vCT))
            if p['nt'] == 2:
                b = p['base']
                pre(f'v_add_u32 v{vWA[0]}, {b}, v{vVA[0]}\nv_add_u32 v{vWA[1]}, {b}, v{vVA[1]}')
        if p['nt'] == 2:
            for c in range(2):
                for u in range(2):
                    S(f'ds_read_b64_tr_b16 {v(ring + 4*c + 2*u, 2)}, v{vWA[c]} offset:{p["off"] + 512*u}', tok=('a', n))
        else:
            for u in range(2):
                S(f'ds_read_b64_tr_b16 {v(ring + 2*u, 2)}, v{vVS} offset:{p["off"] + 256*u}', tok=('a', n))
        if p['last'] and p['h'] < 4: S.ext(c_signal(EV_C0 + p['h']))
        if n + 3 < len(self.steps) and self.steps[n + 3]['first']:
            S.ext(cnt_read(self.steps[n + 3]['cn'], vCT))
        return pre.l, S.l
    def mfmas(self, n):
        p = self.steps[n]; ring = AF + (n % NR) * 8; out = []
        for c in range(p['nt']):
            acc = ACC[p['st'] % 2][c]
            C = '0' if p['s'] == 0 else v(acc, 16)
            out.append(Ins(f'v_mfma_f32_32x32x16_bf16 {v(acc,16)}, {v(ring+4*c,4)}, {v(X0+4*p["s"],4)}, {C}'))
        return out
    def stage(self, st, fill=None, perstep=None, mid=None):
        idx = [n for n, p in enumerate(self.steps) if p['st'] == st]
        groups = []
        for n in idx:
            p = self.steps[n]
            rd = self.reads(n + NR - 1)[1]
            pre = self.reads(n + NR)[0]
            m = self.mfmas(n)
            g = []
            if Opt.fine == st and p['s'] % 2 == 0 and p['s'] < 26: g.append(RAW(f's_memtime s[{72+p["s"]}:{73+p["s"]}]'))
            if mid and p['s'] in mid: g += mid[p['s']]
            on = p['s'] > 0 or perstep
            w = Stream(); w.wait(('a', n + 1))
            k = 2 if pre else 5
            if p['nt'] == 2:
                g += [m[0]] + rd + ([None] * 2 if on else []) + [m[1]] + w.l + ([None] * k if on else []) + pre
            else:
                g += [m[0]] + rd + ([None] * 3 if on else [])
            if perstep: g = interleave([g], perstep(p['s']))
            if Opt.fine == st and p['s'] == 27: g.append(RAW('s_memtime s[98:99]'))
            groups.append(g)
        if perstep: return [x for g in groups for x in g]
        return interleave(groups, fill)

def c_common(S):
    if Opt.cprio: S('s_setprio 2')
    rest = c_load_x(S)
    S.ext(cnt_read(0, vCT))
    for s in range(Opt.ncen): S.ext(center(s))
    P = Steps(True)
    for n in range(NR - 1):
        pre, rd = P.reads(n); S.ext(pre); S.ext(rd)
    stamp(S, 2)
    f = []
    for s in range(Opt.ncen, 28): f += center5(s)
    S.ext(P.stage(0, perstep=lambda s: part(f, s, 0, 25) if s < 26 else (rest if s == 26 else [])))
    stamp(S, 3)

def c_ffn(S):
    P = Steps(True)
    e = Stream(); t = T
    trb(e, vVS, 3, 64, t)
    e(f's_lshl_b32 s{sT0}, s{sRB}, 2\ns_add_u32 s{sT0}, s{sT0}, s{sWAVE}\ns_mul_i32 s{sT0}, s{sT0}, {112*K1}\ns_add_u32 s{sT0}, s{sT0}, {WS_H}')
    e(f's_mul_i32 s{sT1}, s{sIDX}, 7\ns_and_b32 s{sT2}, s{sIDX}, 1\ns_add_u32 s{sT3}, s{sT1}, s{sT2}\ns_lshl_b32 s{sT3}, s{sT3}, 11\ns_add_u32 s{sFT}, s{sT0}, s{sT3}')
    e(f's_mul_i32 s{sT2}, s{sT2}, 6\ns_sub_u32 s{sT1}, s{sT1}, s{sT2}\ns_add_u32 s{sT1}, s{sT1}, 6\ns_lshl_b32 s{sT1}, s{sT1}, 11\ns_add_u32 s{sFS}, s{sT0}, s{sT1}')
    for st in (1, 2, 3):
        pa = ACC[(st - 1) % 2]
        fill = (e.l if st == 1 else []) + [Ins(f's_add_u32 s{sT0}, s{sFT}, {(st-1)*4096}')]
        fill += silu_tile(pa[0], T, (sT0, 0), 'st') + silu_tile(pa[1], U, (sT0, 2048), 'st')
        if st == 3:
            t = Stream(); tag_prefetch(t, vTAG); fill = fill + t.l
        S.ext(P.stage(st, fill))
        stamp(S, 3 + st)
    S.ext(silu_tile(ACC[1][0], T, (sFS, 0), 'st'))

def minmax(S, X, mx, mn, t0, t1):
    for op, d in (('v_max3_f32', mx), ('v_min3_f32', mn)):
        S(f'{op} v{d}, v{X}, v{X+1}, v{X+2}')
        for i in range(3, 15, 2): S(f'{op} v{d}, v{d}, v{X+i}, v{X+i+1}')
    S(f'v_max_f32 v{mx}, v{mx}, v{X+15}\nv_min_f32 v{mn}, v{mn}, v{X+15}')
    S(f'v_mov_b32 v{t0}, v{mx}\nv_mov_b32 v{t1}, v{mn}\nv_permlane32_swap_b32 v{mx}, v{t0}\nv_permlane32_swap_b32 v{mn}, v{t1}')
    S(f'v_max_f32 v{mx}, v{mx}, v{t0}\nv_min_f32 v{mn}, v{mn}, v{t1}')
    S(f'v_mul_f32 v{mx}, {hx(f2u(-L2E))}, v{mx}\nv_mul_f32 v{mn}, {hx(f2u(L2E))}, v{mn}')

LX, LE, LT = 144, 160, 176
vLPW, vLMK, vLL2E, vLRD, vLWP = 185, 184, 186, 187, 193
def softmax_body(S, X, E0, tmp, l2e, pw, off, hook0=None):
    for i in range(4): S(f'v_cndmask_b32 v{X+12+i}, v{X+12+i}, v{X+8+i}, {HI}')
    mx, mn, t0, t1 = tmp, tmp + 2, tmp + 1, tmp + 3
    minmax(S, X, mx, mn, t0, t1)
    for sign in range(2):
        E = E0 if sign == 0 else X
        s0, s1 = tmp + 4, tmp + 5
        for i in range(16):
            if sign == 0: S(f'v_fma_f32 v{E+i}, v{X+i}, {l2e}, v{mx}')
            else: S(f'v_fma_f32 v{E+i}, -v{X+i}, {l2e}, v{mn}')
        for i in range(16): S(f'v_exp_f32 v{E+i}, v{E+i}')
        S(f'v_add_f32 v{s1}, v{E+12}, v{E+13}\nv_add_f32 v{s0}, v{E}, v{E+1}\nv_add_f32 v{s1}, v{s1}, v{E+14}')
        S(f'v_add_f32 v{s0}, v{s0}, v{E+2}\nv_add_f32 v{s1}, v{s1}, v{E+15}\nv_add_f32 v{s0}, v{s0}, v{E+3}\nv_cndmask_b32 v{s1}, v{s1}, 0, {HI}')
        for i in range(4, 12): S(f'v_add_f32 v{s0 + (i & 1)}, v{s0 + (i & 1)}, v{E+i}')
        S(f'v_add_f32 v{s0}, v{s0}, v{s1}\nv_mov_b32 v{s1}, v{s0}\nv_permlane32_swap_b32 v{s0}, v{s1}\nv_add_f32 v{s0}, v{s0}, v{s1}\nv_rcp_f32 v{s0}, v{s0}')
        for i in range(16): S(f'v_mul_f32 v{E+i}, v{E+i}, v{s0}')
        for i in range(8): S(f'v_cvt_pk_bf16_f32 v{E+i}, v{E+2*i}, v{E+2*i+1}')
        for qd in range(3):
            S(f'ds_write_b64 v{pw}, {v(E+2*qd, 2)} offset:{off + sign*56 + qd*16}')
        g = Stream(); g(f's_mov_b64 exec, 0xffffffff\nds_write_b64 v{pw}, {v(E+6, 2)} offset:{off + sign*56 + 48}\ns_mov_b64 exec, -1')
        S.l.append(Group(g.l))
        if sign == 0 and hook0: S.ext(hook0)

def softmax_k(hook0):
    S = Stream()
    rw = LE
    S(f'ds_read_b128 {v(rw,4)}, v{vLRD}\nds_read_b128 {v(rw+4,4)}, v{vLRD} offset:1024')
    for st in range(2):
        for u in range(2):
            S(f'ds_read_b64_tr_b16 {v(rw + 8 + 4*st + 2*u, 2)}, v{vLWP} offset:{(16*st + 8*u)*56}')
    S(f'v_mfma_f32_32x32x16_bf16 {v(LX,16)}, {v(rw+8,4)}, {v(rw,4)}, 0')
    S(f'v_mfma_f32_32x32x16_bf16 {v(LX,16)}, {v(rw+12,4)}, {v(rw+4,4)}, {v(LX,16)}')
    softmax_body(S, LX, LE, LT, f'v{vLL2E}', vLPW, 0, hook0)
    return S.l

def scale_pack(acc, dst, masked=True):
    S = Stream()
    for i in range(16): S(f'v_mul_f32 v{acc+i}, v{acc+i}, v{vRM if (masked and i >= 12) else vR}')
    for i in range(8): S(f'v_cvt_pk_bf16_f32 v{dst+i}, v{acc+2*i}, v{acc+2*i+1}')
    return S.l

def phi_mfma(acc, c, b):
    return [Ins(f'v_mfma_f32_32x32x16_bf16 {v(acc,16)}, {v(WPHI+8*c,4)}, {v(b,4)}, 0'),
            Ins(f'v_mfma_f32_32x32x16_bf16 {v(acc,16)}, {v(WPHI+8*c+4,4)}, {v(b+4,4)}, {v(acc,16)}')]

def c_attn(S):
    vHO, vVW, vWP = vVS, vNRL, vSD
    P = Steps(False)
    e = Stream(); t = TT
    trb(e, vWP, 2, 56, t)
    e(f'v_add_u32 v{vWP}, {WPHI_L}, v{vWP}')
    for c in range(2):
        for st in range(2):
            for u in range(2):
                e(f'ds_read_b64_tr_b16 {v(WPHI + 8*c + 4*st + 2*u, 2)}, v{vWP} offset:{c*1568 + (16*st + 8*u)*56}')
    ka = ACC[0]
    vPW = vNM
    h0 = Stream()
    h0(f's_lshl_b32 s{sT0}, s{sWAVE}, 12\ns_add_u32 s{sT0}, s{sT0}, {SPARE}\nv_add_u32 v{vHO}, s{sT0}, v{vL16}')
    h0.ext(scale_pack(ka[0], T))
    h0(f'ds_write_b128 v{vHO}, {v(T,4)}\nds_write_b128 v{vHO}, {v(T+4,4)} offset:1024')
    f1 = h0.l + c_signal(EV_PK)
    f1b = e.l + scale_pack(ka[1], T)
    sm = Stream(); softmax_body(sm, ka[1], ka[0], TT, f's{sL2E}', vPW, 14336)
    t = Stream()
    t(f'v_and_b32 v{TT+3}, 31, v{vLANE}\ns_lshl_b32 s{sT0}, s{sWAVE}, 5\nv_add_u32 v{TT+3}, s{sT0}, v{TT+3}\nv_lshrrev_b32 v{TT+4}, 5, v{vLANE}\nv_lshlrev_b32 v{TT+4}, 3, v{TT+4}')
    t(f'v_mul_u32_u24 v{vVW}, 72, v{TT+3}\nv_add_u32 v{vVW}, v{vVW}, v{TT+4}\nv_add_u32 v{vVW}, {SLOT}, v{vVW}')
    t(f'v_mul_u32_u24 v{vPW}, 112, v{TT+3}\nv_add_u32 v{vPW}, v{vPW}, v{TT+4}')
    f3 = t.l
    g1, g2 = c_allflags(EV_C2, T, T + 4)
    k1, k2 = c_allflags(EV_C1, TT, TT + 4)
    f1 = k1 + f1
    assert all(not x.op.startswith('ds_write') for x in part(f1, 1, 1, 4) + part(f1, 2, 1, 4))
    f2 = f1b + f3
    def ps1(s):
        if 1 <= s <= 4: return part(f1, s, 1, 4)
        if 5 <= s <= 9: return part(f2, s, 5, 9)
        if 11 <= s <= 27: return part(sm.l[:Opt.smin], s, 11, 27) + (g1 if s == 24 else [])
        return []
    S.ext(P.stage(1, perstep=ps1, mid={3: k2, 10: phi_mfma(ka[1], 1, T), 27: g2}))
    stamp(S, 4)
    va = ACC[1]
    t = Stream()
    for c in range(2):
        t.ext(scale_pack(va[c], T, masked=False))
        d = T
        t(f'v_cndmask_b32 v{d+6}, v{d+6}, v{TT+7}, {HI}\nv_cndmask_b32 v{d+7}, v{d+7}, 0, {HI}')
        for qd in range(4): t(f'ds_write_b64 v{vVW}, {v(d+2*qd, 2)} offset:{c*9216 + qd*16}')
    vfill = [Ins(f'v_mov_b32 v{TT+7}, 0x3f80')] + t.l
    if Opt.smin < len(sm.l):
        S.ext(sm.l[Opt.smin:Opt.smin + 14]); S.ext(vfill); S.ext(sm.l[Opt.smin + 14:]); S.ext(c_signal(EV_V)); vfill = []
        stamp(S, 11)
    else:
        vfill += c_signal(EV_V)
    tp = Stream(); tag_prefetch(tp, vTAG)
    def ps2(s):
        if 1 <= s <= Opt.vsteps: return part(vfill, s, 1, Opt.vsteps)
        if s == 20: return tp.l
        return []
    S.ext(P.stage(2, perstep=ps2))
    stamp(S, 5)
    S.ext(c_signal(EV_END))
    qa = ACC[0]
    S(f'v_mov_b32 v{TT}, s{sL2E}')
    S.ext(scale_pack(qa[0], T)); S.ext(phi_mfma(qa[0], 0, T)); S.ext(scale_pack(qa[1], AF + 16)); S.ext(phi_mfma(qa[1], 1, AF + 16))
    out_addr(S, XT, 32)
    for c in range(2):
        X = qa[c]; E = va[c]; d = AF + 16 * c
        for i in range(4): S(f'v_cndmask_b32 v{X+12+i}, v{X+12+i}, v{X+8+i}, {HI}')
        mx, mn = TT + 4, TT + 6
        minmax(S, X, mx, mn, TT + 5, TT + 7)
        for i in range(0, 16, 2): S(f'v_pk_fma_f32 {v(E+i,2)}, {v(X+i,2)}, {v(TT,2)}, {v(mx,2)} op_sel_hi:[1,0,0]')
        for i in range(16): S(f'v_exp_f32 v{E+i}, v{E+i}')
        for i in range(8): S(f'v_cvt_pk_bf16_f32 v{d+i}, v{E+2*i}, v{E+2*i+1}')
        for i in range(0, 16, 2): S(f'v_pk_fma_f32 {v(X+i,2)}, {v(X+i,2)}, {v(TT,2)}, {v(mn,2)} op_sel_hi:[1,0,0] neg_lo:[1,0,0] neg_hi:[1,0,0]')
        for i in range(16): S(f'v_exp_f32 v{X+i}, v{X+i}')
        for i in range(8): S(f'v_cvt_pk_bf16_f32 v{d+8+i}, v{X+2*i}, v{X+2*i+1}')
    stamp(S, 6)
    if Opt.oprio: S('s_setprio 2')
    tag_get(S, vTAG)
    PB, KF = 16, 160
    S(f's_lshl_b32 s{sT0}, s{sIDX}, 10\ns_add_u32 s{sT0}, s{sT0}, {WS_FK}\ns_lshl_b32 s{sT1}, s{sIDX}, 13\ns_add_u32 s{sT1}, s{sT1}, {WS_KVF}\ns_add_u32 s{sT2}, s{sT1}, 4096')
    S(f's_lshl_b32 s{sFS}, s{sRB}, 2\ns_add_u32 s{sFS}, s{sFS}, s{sWAVE}\ns_lshl_b32 s{sFS}, s{sFS}, 3\ns_add_u32 s{sFS}, s{sFS}, s{sIDX}\ns_lshl_b32 s{sFS}, s{sFS}, 12\ns_add_u32 s{sFS}, s{sFS}, {WS_PQ}')
    S(f'v_lshlrev_b32 v8, 7, v{vLANE}\nv_lshlrev_b32 v13, 2, v{vLANE}\nv_add_u32 v13, {CTL}, v13\nv_mov_b32 v9, 4')
    g_ = CN_W2 if False else CN_KG
    S.ext(cnt_read(g_, vCT)); S.ext(cnt_check(g_, vCT, 1))
    stamp(S, 8)
    again, oth, done = newlab('kv'), newlab('kv'), newlab('kv')
    S(f's_waitcnt vmcnt(0)\ns_mov_b32 s{sBND}, 0\ns_cmp_lg_u32 s{sW4}, 0\ns_cbranch_scc1 {oth}')
    raw(S, f'{again}:\ns_mov_b64 exec, 0xff\nbuffer_load_dword v10, v8, {srd(SRD_WS)}, s{sT0} offen sc1\ns_waitcnt vmcnt(0)\nv_cmp_ne_u32 vcc, s{sTAG}, v10\ns_nop 1\ns_cbranch_vccz {done}\n'
           f's_add_u32 s{sBND}, s{sBND}, 1\ns_cmp_gt_u32 s{sBND}, 0x400000\ns_cbranch_scc1 {done}\ns_sleep {Opt.rsleep}\ns_branch {again}\n'
           f'{done}:\ns_mov_b64 exec, 15\nds_write_b32 v13, v9 offset:{128 + 16*CN_KV}\ns_mov_b64 exec, -1\n{oth}:')
    S.ext(cnt_read(CN_KV, vCT)); S.ext(cnt_check(CN_KV, vCT, 0))
    stamp(S, 9)
    for j in range(8):
        S(f'buffer_load_dwordx4 {v(KF+4*j,4)}, v{vL16}, {srd(SRD_WS)}, s{sT1 + j//4} offen offset:{(j%4)*1024} sc1')
    for c in range(2):
        S.ext(num_mfma(PB + 32 * c, KF + 16 * c, AF + 16 * c))
    for c in range(2):
        S.ext(onorm(PB + 32 * c, AF + 16 * c))
        for hh in range(2):
            S(f'buffer_store_dwordx4 {v(AF+16*c+4*hh,4)}, v{vL16}, {srd(SRD_WS)}, s{sFS} offen offset:{c*2048 + hh*1024} sc1', tok='st')
    stamp(S, 10)

def num_mfma(aP, kb, ph):
    aN = aP + 16
    return [Ins(f'v_mfma_f32_32x32x16_bf16 {v(aP,16)}, {v(kb,4)}, {v(ph,4)}, 0'),
            Ins(f'v_mfma_f32_32x32x16_bf16 {v(aN,16)}, {v(kb+8,4)}, {v(ph+8,4)}, 0'),
            Ins(f'v_mfma_f32_32x32x16_bf16 {v(aP,16)}, {v(kb+4,4)}, {v(ph+4,4)}, {v(aP,16)}'),
            Ins(f'v_mfma_f32_32x32x16_bf16 {v(aN,16)}, {v(kb+12,4)}, {v(ph+12,4)}, {v(aN,16)}')]
def onorm(aP, ph):
    S = Stream()
    aN = aP + 16
    rP, rN, dn, a, b = TT, TT + 1, TT + 2, TT + 3, TT + 4
    S(f'v_rcp_f32 v{rP}, v{aP+13}\nv_rcp_f32 v{rN}, v{aN+13}')
    S(f'v_mov_b32 v{dn}, {hx(f2u(1e-6))}\nv_fmac_f32 v{dn}, v{aP+12}, v{rP}\nv_fmac_f32 v{dn}, v{aN+12}, v{rN}\nv_rcp_f32 v{dn}, v{dn}')
    S(f'v_mul_f32 v{rP}, v{rP}, v{dn}\nv_mul_f32 v{rN}, v{rN}, v{dn}\nv_mov_b32 v{a}, v{rP}\nv_mov_b32 v{b}, v{rN}')
    S(f'v_permlane32_swap_b32 v{rP}, v{a}\nv_permlane32_swap_b32 v{rN}, v{b}')
    for i in range(16): S(f'v_mul_f32 v{aP+i}, v{aP+i}, v{a}')
    for i in range(16): S(f'v_fmac_f32 v{aP+i}, v{aN+i}, v{b}')
    for i in range(8): S(f'v_cvt_pk_bf16_f32 v{ph+i}, v{aP+2*i}, v{aP+2*i+1}')
    S(f'v_cndmask_b32 v{ph+6}, v{ph+6}, 0, {HI}\nv_cndmask_b32 v{ph+7}, v{ph+7}, 0, {HI}')
    return S.l

def wo_dma(S, va, vb, thr=None):
    S(f's_lshl_b32 s{sT2}, s{sW4}, 14\ns_add_u32 s{sT2}, s{sT2}, {A_BASE}\ns_lshl_b32 s{sU0}, s{sCB}, 7')
    for hd in range(4):
        S(f's_add_u32 s{sT0}, s{sCB}, {hd}\ns_and_b32 s{sT0}, s{sT0}, 3\ns_lshl_b32 s{sT1}, s{sW4}, 2\ns_add_u32 s{sT0}, s{sT0}, s{sT1}\ns_mul_i32 s{sT0}, s{sT0}, {28*896}\ns_add_u32 s{sT0}, s{sT0}, s{sU0}')
        for i in range(4):
            S(f's_add_u32 m0, s{sT2}, {hd*4096 + i*1024}')
            if thr: S(f's_waitcnt vmcnt({thr})')
            if i == 2: S(f's_add_u32 s{sT0}, s{sT0}, {16*896}')
            if hd == 3 and i == 3: S(f's_cmp_eq_u32 s{sW4}, 3\ns_cselect_b32 exec_hi, 0, -1')
            S(f'buffer_load_dwordx4 v{va if i % 2 == 0 else vb}, {srd(SRD_WO)}, s{sT0} offen lds', tok='wo')
    S('s_mov_b64 exec, -1')

PHI = 16; PN = 144; XT = 236
vO = 3; vVW2 = [6, 7]
def out_addr(S, xt, off):
    S(f'v_and_b32 v8, 31, v{vLANE}\nv_mul_u32_u24 v{vO}, 896, v8\nv_lshrrev_b32 v8, 5, v{vLANE}\nv_lshl_add_u32 v{vO}, v8, 4, v{vO}')
    S(f's_and_b32 s{sT0}, s{sW4}, 1\ns_lshl_b32 s{sT1}, s{sTB}, 1\ns_add_u32 s{sT0}, s{sT0}, s{sT1}\ns_mul_i32 s{sFT}, s{sT0}, {32*896}')
    S(f's_lshr_b32 s{sT0}, s{sW4}, 1\ns_lshl_b32 s{sT0}, s{sT0}, 6\ns_add_u32 s{sFT}, s{sFT}, s{sT0}\ns_lshl_b32 s{sT0}, s{sCB}, 7\ns_add_u32 s{sFT}, s{sFT}, s{sT0}')
    S(f'buffer_load_dwordx4 {v(xt,4)}, v{vO}, {srd(SRD_X)}, s{sFT} offen offset:{off}')

def final_half(S, isA, acc, xt):
    own = acc + 48 + (8 if isA else 0)
    oth = acc + 48 + (0 if isA else 8)
    reg = A_REG if isA else F_REG; base = A_BASE if isA else 0
    ho = 2048 if isA else 0
    W = [16, 17, 18, 19]
    S(f's_mul_i32 s{sT3}, s{sW4}, {reg}')
    for vq in range(4):
        S(f's_xor_b32 s{sT0}, s{sW4}, {vq ^ 3}\ns_lshl_b32 s{sT0}, s{sT0}, 12\ns_add_u32 s{sT0}, s{sT0}, s{sT3}\ns_add_u32 s{sT0}, s{sT0}, {base}\nv_add_u32 v{W[vq]}, s{sT0}, v{vL16}')
    for i in range(2):
        S(f'ds_write_b128 v{W[3]}, {v(oth+4*i,4)} offset:{(2048 - ho) + i*1024}')
    for vq in range(3):
        for i in range(4):
            S(f'ds_write_b128 v{W[vq]}, {v(acc+16*vq+4*i,4)} offset:{i*1024}')
    S(f's_lshl_b32 s{sT2}, s{sW4}, 12\ns_add_u32 s{sT2}, s{sT2}, {ho}')
    for k in range(1, 4):
        S(f's_xor_b32 s{sT0}, s{sW4}, {k}\ns_mul_i32 s{sT0}, s{sT0}, {reg}\ns_add_u32 s{sT0}, s{sT0}, s{sT2}\ns_add_u32 s{sT0}, s{sT0}, {base}\nv_add_u32 v{19+k}, s{sT0}, v{vL16}')
    oreg = F_REG if isA else A_REG; obase = 0 if isA else A_BASE
    S(f's_add_u32 s{sT0}, s{sT2}, {obase}\nv_add_u32 v23, s{sT0}, v{vL16}\nv_add_u32 v24, {2*oreg}, v23')
    S(f'v_permlane32_swap_b32 v{xt}, v{xt+2}\nv_permlane32_swap_b32 v{xt+1}, v{xt+3}')
    E = 96
    for i in range(4): S(f'v_lshlrev_b32 v{E+2*i}, 16, v{xt+i}\nv_and_b32 v{E+2*i+1}, 0xffff0000, v{xt+i}')
    S('s_waitcnt lgkmcnt(0)\ns_barrier')
    stamp(S, 13 if isA else 14)
    O, P_ = 32, 64
    rdO = [f'ds_read_b128 {v(O+8*f+4*i,4)}, v{23 + f//2} offset:{(f%2)*oreg + i*1024}' for f in range(4) for i in range(2)]
    rdP = [f'ds_read_b128 {v(P_+8*k+4*i,4)}, v{20+k} offset:{i*1024}' for k in range(3) for i in range(2)]
    for r in (rdO + rdP if isA else rdP + rdO): S(r)
    def sumO():
        for i in range(8): S(f'v_add_f32 v{O+i}, v{O+i}, v{O+8+i}')
        for i in range(8): S(f'v_add_f32 v{O+16+i}, v{O+16+i}, v{O+24+i}')
        for i in range(8): S(f'v_add_f32 v{O+i}, v{O+i}, v{O+16+i}')
    def sumP():
        for i in range(8): S(f'v_add_f32 v{P_+i}, v{P_+i}, v{own+i}')
        for i in range(8): S(f'v_add_f32 v{P_+8+i}, v{P_+8+i}, v{P_+16+i}')
        for i in range(8): S(f'v_add_f32 v{P_+i}, v{P_+i}, v{P_+8+i}')
    G, Sg = (O, P_) if isA else (P_, O)
    (sumO if isA else sumP)()
    Q = 104
    for i in range(8): S(f'v_mul_f32 v{Q+i}, {hx(f2u(-L2E))}, v{G+i}')
    for i in range(8): S(f'v_exp_f32 v{Q+i}, v{Q+i}')
    (sumP if isA else sumO)()
    for i in range(8): S(f'v_add_f32 v{Q+i}, 1.0, v{Q+i}')
    for i in range(8): S(f'v_rcp_f32 v{Q+i}, v{Q+i}')
    for i in range(8): S(f'v_mul_f32 v{G+i}, v{G+i}, v{Sg+i}')
    for i in range(8): S(f'v_fmac_f32 v{E+i}, v{G+i}, v{Q+i}')
    for i in range(4): S(f'v_cvt_pk_bf16_f32 v{xt+i}, v{E+2*i}, v{E+2*i+1}')
    S(f'v_permlane32_swap_b32 v{xt}, v{xt+2}\nv_permlane32_swap_b32 v{xt+1}, v{xt+3}')
    S(f'buffer_store_dwordx4 {v(xt,4)}, v{vO}, {srd(SRD_OUT)}, s{sFT} offen offset:{32 if isA else 0}')

def c_publish(S, attn, tile):
    if tile and not attn: S.ext(c_signal(EV_END))
    S(f's_lshl_b32 s{sFS}, s{sRB}, 1\ns_lshr_b32 s{sT1}, s{sW4}, 1\ns_add_u32 s{sFS}, s{sFS}, s{sT1}\ns_lshl_b32 s{sFS}, s{sFS}, 15\ns_lshl_b32 s{sT1}, s{sROLE}, 8\ns_add_u32 s{sFS}, s{sFS}, s{sT1}')
    S(f's_and_b32 s{sT1}, s{sW4}, 1\ns_lshl_b32 s{sT1}, s{sT1}, 7\ns_add_u32 s{sFS}, s{sFS}, s{sT1}\ns_add_u32 s{sFS}, s{sFS}, {WS_FH}')
    if tile:
        lane_consts_tr(S, vVW2, 8, 64, 'B')
        S(f's_lshr_b32 s{sT0}, s{sW4}, 1\ns_lshl_b32 s{sT3}, s{sT0}, 15\ns_add_u32 s{sT3}, s{sT3}, {A_BASE}\ns_xor_b32 s{sT1}, s{sT0}, 1\ns_lshl_b32 s{sT1}, s{sT1}, 6')
        S(f'v_add_u32 v{vVW2[0]}, s{sT3}, v{vVW2[0]}\nv_xor_b32 v{vVW2[0]}, s{sT1}, v{vVW2[0]}\nv_xor_b32 v{vVW2[1]}, 64, v{vVW2[0]}')
    if not attn: tag_get(S, vTAG)
    S.wait('st')
    flag_store(S, sFS, TT, 7, 12)
    if attn and Opt.oprio: S('s_setprio 0')
    stamp(S, 7)
    if tile and not attn:
        out_addr(S, XT, 32)

W2R = 16; FACC = 144; HR = 208
vLW, vLS, vL2 = 3, 4, 5
def swz_voff(S, dst, pitch, tmp):
    S(f'v_lshrrev_b32 v{tmp}, 3, v{vLANE}')
    S(f'v_mul_lo_u32 v{dst}, v{tmp}, {pitch}' if isinstance(pitch, str) else f'v_mul_u32_u24 v{dst}, {pitch}, v{tmp}')
    S(f'v_bfe_u32 v{tmp}, v{vLANE}, 4, 1\nv_lshlrev_b32 v{tmp}, 2, v{tmp}\nv_and_b32 v{tmp+1}, 7, v{vLANE}\nv_xor_b32 v{tmp}, v{tmp}, v{tmp+1}\nv_lshl_add_u32 v{dst}, v{tmp}, 4, v{dst}')
def flat(l): return [x for y in l for x in y]
def sprinkle(main, units, start=0):
    out = []; n = len(main) - start; k = len(units); j = 0
    for i, x in enumerate(main):
        while j < k and i >= start and (j + 0.5) * n / max(k, 1) <= i - start and x.kind in ('valu', 'trans'):
            out += units[j]; j += 1
        out.append(x)
    return out + flat(units[j:])

def l_phase1(S, ffn, tile):
    sBLK, sP64, sP448, sP32, sW2, sK2 = sU0, sU1, sU2, sU3, sU4, sU5
    S(f's_mul_i32 s{sFS}, s{sW4}, s{sPITCH}\ns_lshl_b32 s{sFS}, s{sFS}, 3')
    S(f's_lshl_b32 s{sT3}, s{sW4}, 10\ns_lshl_b32 s{sP64}, s{sPITCH}, 6\ns_lshl_b32 s{sP32}, s{sPITCH}, 5\ns_mul_i32 s{sP448}, s{sPITCH}, 448\ns_mul_i32 s{sBLK}, s{sP64}, s{sROT1}')
    def dma_half(h):
        units = []
        st = h // 2
        for k in range(7):
            St = Stream()
            kk = (h % 2) * 7 + k
            St(f's_add_u32 m0, s{sT3}, {(half_base(h) + k*4096) if h != 1 else (SPARE + k*4096 if k < 4 else (k - 4)*4096)}')
            if kk % 2 == 0:
                St(f's_add_u32 s{sT0}, s{sBLK}, s{sFS}\ns_add_u32 s{sT0}, s{sT0}, s{sCOL[st]}')
            else:
                if k == 0: St(f's_add_u32 s{sT0}, s{sBLK}, s{sFS}\ns_add_u32 s{sT0}, s{sT0}, s{sCOL[st]}')
                St(f's_add_u32 s{sT0}, s{sT0}, s{sP32}')
                wrap_inc(St, sBLK, f's{sP64}', f's{sP448}')
            St(f'buffer_load_dwordx4 v{vLW}, {srd(SRD_W)}, s{sT0} offen lds', tok=('h', h if not (h == 1 and k >= 4) else CN_H1B))
            units.append(St.l)
        return units
    def sig(h):
        S.wait(('h', h))
        if h < 5: stamp(S, 2 + h)
        l_signal(S, h)
    if Opt.cpf:
        lab = newlab('pc')
        S(f's_getpc_b64 s[72:73]\n{lab}:\ns_sub_u32 s72, s72, {lab} - {NAME}\ns_subb_u32 s73, s73, 0')
        S(f's_lshl_b32 s{sT0}, s{sI}, 2\ns_add_u32 s{sT0}, s{sT0}, s{sW4}\ns_lshl_b32 s{sT0}, s{sT0}, 2\nv_add_u32 v8, s{sT0}, v{vLANE}\nv_lshlrev_b32 v8, 7, v8\nv_min_u32 v8, L_end - {NAME}, v8')
        S(f's_mov_b64 exec, 15\nglobal_load_dword v200, v8, s[72:73]\ns_mov_b64 exec, -1')
    S('s_barrier')
    S.ext(flat(dma_half(0)))
    if not ffn:
        S(f's_add_u32 m0, s{sT3}, {WPHI_L}\ns_mul_i32 s{sT0}, s{sIDX}, 3136\ns_add_u32 s{sT0}, s{sT0}, s{sT3}\ns_cmp_eq_u32 s{sW4}, 3\ns_cselect_b32 exec_hi, 0, -1')
        S(f'buffer_load_dwordx4 v{vL16}, {srd(SRD_WPHI)}, s{sT0} offen lds', tok=('h', 0))
        S('s_mov_b64 exec, -1')
    h1 = dma_half(1)
    S.ext(flat(h1[:4]))
    if Opt.tlb:
        st_ = Opt.tlb
        S(f'v_lshlrev_b32 v8, {st_}, v{vLANE}')
        S(f's_mul_i32 s{sT0}, s{sTB}, {224*K1}\ns_lshl_b32 s{sT1}, s{sTB}, 17\ns_add_u32 s{sT1}, s{sT1}, {WS_PQ}\ns_cmp_eq_u32 s{sW4}, 1\ns_cselect_b32 s{sT0}, s{sT1}, s{sT0}')
        S(f's_mov_b32 s{sT1}, {WS_KVF}\ns_cmp_eq_u32 s{sW4}, 2\ns_cselect_b32 s{sT0}, s{sT1}, s{sT0}')
        S(f's_mul_i32 s{sT1}, s{sRB}, {448*K1}\ns_cmp_eq_u32 s{sW4}, 3\ns_cselect_b32 s{sT0}, s{sT1}, s{sT0}')
        n_ = min(64, (448 * K1) >> st_)
        S(f's_mov_b32 exec_lo, {hex(((1 << n_) - 1) & 0xffffffff)}\ns_mov_b32 exec_hi, {hex(((1 << n_) - 1) >> 32)}')
        S(f'buffer_load_dword v200, v8, {srd(SRD_WS)}, s{sT0} offen sc1\ns_mul_i32 s{sT1}, s{sTB}, {64*896}\ns_mov_b64 exec, 3\nbuffer_load_dword v200, v8, {srd(SRD_OUT)}, s{sT1} offen\nbuffer_load_dword v200, v8, {srd(SRD_W2)}, 0 offen\nbuffer_load_dword v200, v8, {srd(SRD_WO)}, 0 offen\ns_mov_b64 exec, -1')
    stamp(S, 'e5')
    lab = newlab('nt')
    S(f's_or_b32 s{sT0}, s2, s{sW4}\ns_cmp_lg_u32 s{sT0}, 0\ns_cbranch_scc1 {lab}')
    raw(S, f's_mov_b32 s{sT0}, {WS_TAG}\nv_mov_b32 v9, 0\ns_mov_b64 exec, 1\nbuffer_load_dword v8, v9, {srd(SRD_WS)}, s{sT0} offen sc1\ns_waitcnt vmcnt(0)\n'
           f'v_add_u32 v8, 1, v8\nv_max_u32 v8, 1, v8\ns_nop 1\nbuffer_store_dword v8, v9, {srd(SRD_WS)}, s{sT0} offen sc1\nbuffer_store_dword v8, v9, {srd(SRD_DBG)}, 0 offen sc1\ns_waitcnt vmcnt(0)\ns_mov_b64 exec, -1\n{lab}:')
    S(f'v_lshlrev_b32 v{vLC}, 2, v{vLANE}\nv_add_u32 v{vLC}, {CTL}, v{vLC}\nv_mov_b32 v{vLONE}, 1\nv_mov_b32 v{vLP+4}, {CTL}')
    if ffn:
        S(f'v_lshrrev_b32 v8, 2, v{vLANE}\nv_mul_u32_u24 v{vLS}, 3584, v8\nv_and_b32 v8, 3, v{vLANE}\nv_lshl_add_u32 v{vLS}, v8, 4, v{vLS}')
    else:
        S(f'v_and_b32 v8, 31, v{vLANE}\ns_lshl_b32 s{sT0}, s{sW4}, 5\nv_add_u32 v8, s{sT0}, v8\nv_lshrrev_b32 v9, 5, v{vLANE}\nv_lshlrev_b32 v9, 3, v9')
        S(f'v_mul_u32_u24 v{vLPW}, 112, v8\nv_add_u32 v{vLPW}, v{vLPW}, v9')
        S(f'v_cndmask_b32 v{vLMK}, 1.0, 0, {HI}\nv_mov_b32 v{vLL2E}, s{sL2E}')
        trb(S, vLWP, 2, 56, 8)
        S(f'v_add_u32 v{vLWP}, {WPHI_L}, v{vLWP}')
    S(f's_lshl_b32 s{sT0}, s{sW4}, 12\ns_add_u32 s{sT0}, s{sT0}, {SPARE}\nv_add_u32 v{vLRD}, s{sT0}, v{vL16}')
    if tile:
        S(f's_mov_b32 s{sT1}, 896'); swz_voff(S, vL2, f's{sT1}', 8)
        lane_consts_tr(S, vVW2, 8, 64, 'B')
        S(f's_xor_b32 s{sT1}, s{sW4}, 3\ns_lshr_b32 s{sT1}, s{sT1}, 1\ns_lshl_b32 s{sT1}, s{sT1}, 6\nv_xor_b32 v{vVW2[0]}, s{sT1}, v{vVW2[0]}\nv_xor_b32 v{vVW2[1]}, 64, v{vVW2[0]}')
        S(f's_mul_i32 s{sW2}, s{sW4}, {448*896}\ns_lshl_b32 s{sT2}, s{sCB}, 7\ns_add_u32 s{sW2}, s{sW2}, s{sT2}\ns_mul_i32 s{sK2}, s{sROT2}, {16*896}')
        S(f'v_add_u32 v13, {8*896}, v{vL2}')
    def w2stage(base, stride, ns):
        if not tile: return
        S(f's_mul_i32 s{sT2}, s{sW4}, {stride}\ns_add_u32 s{sT2}, s{sT2}, {base}\nv_add_u32 v9, s{sT2}, v{vVW2[0]}\nv_add_u32 v10, s{sT2}, v{vVW2[1]}')
        def dma(ks):
            o = (ks % ns) * 2048
            S(f's_add_u32 m0, s{sT2}, {o}\ns_add_u32 s{sT1}, s{sW2}, s{sK2}')
            if ks >= ns: S.wait(('wr', ks - ns))
            S(f'buffer_load_dwordx4 v{vL2}, {srd(SRD_W2)}, s{sT1} offen lds', tok=('w', ks))
            S(f's_add_u32 m0, s{sT2}, {o + 1024}')
            wrap_inc(S, sK2, 16 * 896, 448 * 896)
            S(f'buffer_load_dwordx4 v13, {srd(SRD_W2)}, s{sT1} offen lds', tok=('w', ks))
        d = ns - 1
        for ks in range(min(d, Opt.nreg)): dma(ks)
        for ks in range(Opt.nreg):
            if ks + d < Opt.nreg: dma(ks + d)
            S.wait(('w', ks))
            o = (ks % ns) * 2048; b = W2R + 8 * ks
            for c in range(2):
                for u in range(2):
                    S(f'ds_read_b64_tr_b16 {v(b + 4*c + 2*u, 2)}, v{9+c} offset:{o + 1024*u}', tok=('wr', ks))
            if not ffn and ks in (0, 8): stamp(S, 3 + ks // 8)
    def w2raw(lo, hi):
        if not tile: return
        for ks in range(lo, hi):
            S(f's_add_u32 s{sT1}, s{sW2}, s{sK2}')
            S(f'buffer_load_dwordx4 {v(W2R+8*ks,4)}, v{vL2}, {srd(SRD_W2)}, s{sT1} offen')
            S(f'buffer_load_dwordx4 {v(W2R+8*ks+4,4)}, v13, {srd(SRD_W2)}, s{sT1} offen')
            wrap_inc(S, sK2, 16 * 896, 448 * 896)
    def tr(lo, hi):
        if not tile: return
        if lo == 0: S(f's_lshl_b32 s{sT0}, s{sW4}, 12\ns_add_u32 s{sT0}, s{sT0}, {SPARE}\nv_add_u32 v9, s{sT0}, v{vVW2[0]}\nv_add_u32 v10, s{sT0}, v{vVW2[1]}')
        for ks in range(lo, hi):
            o = (ks % 2) * 2048; b = W2R + 8 * ks
            S(f'ds_write_b128 v{vLRD}, {v(b,4)} offset:{o}\nds_write_b128 v{vLRD}, {v(b+4,4)} offset:{o+1024}')
            for c in range(2):
                for u in range(2):
                    S(f'ds_read_b64_tr_b16 {v(b + 4*c + 2*u, 2)}, v{9+c} offset:{o + 1024*u}')
    DUM = 200
    def pf(srd_, voff, soff, n):
        S(f's_mov_b32 exec_hi, {hex((1 << (n - 32)) - 1)}\nbuffer_load_dword v{DUM}, v{voff}, {srd(srd_)}, s{soff} offen\ns_mov_b32 exec_hi, -1', tok='pf')
    if Opt.wpf:
        S(f'v_mul_lo_u32 v14, v{vLANE}, s{sPITCH}\ns_and_b32 s{sT0}, s{sI}, 3\ns_mul_i32 s{sT0}, s{sT0}, 112')
        if ffn:
            S(f's_mul_i32 s{sT0}, s{sT0}, s{sPITCH}\ns_lshl_b32 s{sT1}, s{sW4}, 7\ns_add_u32 s{sT1}, s{sT1}, s{sCOL[0]}\ns_cmp_eq_u32 s{sW4}, 3\ns_cselect_b32 s{sT1}, s{sCOLS}, s{sT1}\ns_add_u32 s{sT0}, s{sT0}, s{sT1}')
            pf(SRD_W, 14, sT0, 56)
            S(f's_add_u32 s{sT0}, s{sT0}, {56*3584}')
            pf(SRD_W, 14, sT0, 56)
        else:
            S(f's_lshr_b32 s{sT1}, s{sW4}, 1\ns_mul_i32 s{sT1}, s{sT1}, 56\ns_add_u32 s{sT0}, s{sT0}, s{sT1}\ns_mul_i32 s{sT0}, s{sT0}, s{sPITCH}\ns_and_b32 s{sT1}, s{sW4}, 1\ns_mul_i32 s{sT1}, s{sT1}, 124\ns_add_u32 s{sT0}, s{sT0}, s{sT1}')
            for st in range(3):
                S(f's_add_u32 s{sT1}, s{sT0}, s{sCOL[st]}')
                pf(SRD_W, 14, sT1, 56)
    def w2_prefetch():
        if not Opt.w2pf: return
        S(f'v_lshlrev_b32 v14, 7, v{vLANE}\ns_lshl_b32 s{sT0}, s{sI}, 2\ns_add_u32 s{sT0}, s{sT0}, s{sW4}\ns_mul_i32 s{sT1}, s{sT0}, {98*128}')
        pf(SRD_W2, 14, sT1, 49)
        S(f's_add_u32 s{sT1}, s{sT1}, {49*128}')
        pf(SRD_W2, 14, sT1, 49)
        S(f's_mul_i32 s{sT1}, s{sT0}, {25*128}\ns_mov_b64 exec, 0x1ffffff\nbuffer_load_dword v{DUM}, v14, {srd(SRD_WO)}, s{sT1} offen\ns_mov_b64 exec, -1', tok='pf')
    def gpf(which):
        if not Opt.gpf: return
        S(f's_sub_u32 s{sT0}, s2, 128\ns_lshl_b32 s{sT0}, s{sT0}, 2\ns_add_u32 s{sT0}, s{sT0}, s{sW4}\nv_lshlrev_b32 v14, 7, v{vLANE}')
        S(f's_mov_b64 s[72:73], s[66:67]\ns_mov_b32 s74, {448*2688}\ns_mov_b32 s75, 0x20000') if False else None
        for (lo, n, size) in ((sKA_QKV, 10, 448*2688), (sKA_W1, 13, 448*3584), (SRD_W2, 25, None), (SRD_WO, 7, None))[which]:
            if size:
                S(f's_mov_b64 s[76:77], s[{lo}:{lo+1}]\ns_mov_b32 s78, {size}\ns_mov_b32 s79, 0x20000'); d = 76
            else: d = lo
            S(f's_mul_i32 s{sT1}, s{sT0}, {n*128}\ns_mov_b64 exec, {hex((1 << n) - 1)}\nbuffer_load_dword v{DUM}, v14, {srd(d)}, s{sT1} offen\ns_mov_b64 exec, -1', tok='pf')
    if Opt.gpf == 2: gpf(slice(0, 2))
    def wo_prefetch():
        if not Opt.wopf: return
        S(f'v_lshlrev_b32 v14, 7, v{vLANE}\ns_lshl_b32 s{sT0}, s{sI}, 2\ns_add_u32 s{sT0}, s{sT0}, s{sW4}')
        S(f's_mul_i32 s{sT1}, s{sT0}, {25*128}\ns_mov_b64 exec, 0x1ffffff\nbuffer_load_dword v{DUM}, v14, {srd(SRD_WO)}, s{sT1} offen\ns_mov_b64 exec, -1', tok='pf')
    l_wait(S, EV_XFREE)
    stamp(S, 1)
    S(f's_add_u32 s{sT0}, s{sBLK}, s{sFS}\ns_add_u32 s{sT0}, s{sT0}, s{sCOL[0]}')
    S.ext(flat(h1[4:])); sig(0)
    h2 = dma_half(2)
    S.ext(flat(h2[:3])); sig(1); S.ext(flat(h2[3:5])); sig(CN_H1B); S.ext(flat(h2[5:]))
    h3 = dma_half(3)
    S.ext(flat(h3[:3])); sig(2); S.ext(flat(h3[3:]))
    ltag_issue(S)
    h4 = dma_half(4)
    S.ext(flat(h4[:3])); sig(3); S.ext(flat(h4[3:]))
    if ffn:
        gpf(slice(2, 4))
    if ffn:
        sig(4)
        l_wait(S, EV_C0)
        S.ext(flat(dma_half(5)))
        sig(5)
        ltag_get(S)
        l_wait(S, EV_C1)
        S(f's_lshl_b32 s{sFS}, s{sFS}, 1\ns_add_u32 s{sFS}, s{sFS}, s{sCOLS}')
        for k in range(7):
            S(f's_add_u32 m0, s{sT3}, {k*4096}\ns_add_u32 s{sT0}, s{sBLK}, s{sFS}')
            wrap_inc(S, sBLK, f's{sP64}', f's{sP448}')
            S(f'buffer_load_dwordx4 v{vLS}, {srd(SRD_W)}, s{sT0} offen lds', tok=('h', 6))
        if Opt.l2pf:
            S(f'v_lshlrev_b32 v14, 7, v{vLANE}\ns_sub_u32 s{sT0}, s{sI}, 16\ns_lshl_b32 s{sT0}, s{sT0}, 2\ns_add_u32 s{sT0}, s{sT0}, s{sW4}\ns_mul_i32 s{sT1}, s{sT0}, {196*128}\ns_mov_b32 exec_hi, 0x1ffff')
            for i in range(4):
                S(f'buffer_load_dword v{DUM}, v14, {srd(SRD_W2)}, s{sT1} offen\ns_add_u32 s{sT1}, s{sT1}, {49*128}', tok='pf')
            S(f's_mul_i32 s{sT1}, s{sT0}, {49*128}\nbuffer_load_dword v{DUM}, v14, {srd(SRD_WO)}, s{sT1} offen\ns_mov_b64 exec, -1', tok='pf')
        sig(6)
        if Opt.ppf:
            n_ = Opt.ppf
            S(f'v_lshlrev_b32 v14, 7, v{vLANE}\ns_sub_u32 s{sT0}, s{sI}, 16\ns_lshl_b32 s{sT0}, s{sT0}, 2\ns_add_u32 s{sT0}, s{sT0}, s{sW4}\ns_mov_b64 exec, {hex((1 << n_) - 1)}')
            for (d, tot) in ((SRD_W2, 196), (SRD_WO, 49)):
                lab = newlab('pp')
                S(f's_mul_i32 s{sT1}, s{sT0}, {tot*128}\ns_mov_b32 s{sT2}, {(tot + n_ - 1) // n_}')
                raw(S, f'{lab}:\nbuffer_load_dword v{DUM}, v14, {srd(d)}, s{sT1} offen\ns_add_u32 s{sT1}, s{sT1}, {n_*128}\ns_sleep {Opt.pps}\ns_waitcnt vmcnt({Opt.ppw})\ns_sub_u32 s{sT2}, s{sT2}, 1\ns_cmp_lg_u32 s{sT2}, 0\ns_cbranch_scc1 {lab}')
            S('s_mov_b64 exec, -1')
        elif not Opt.l2pf: wo_prefetch()
        l_wait(S, EV_C3)
        w2stage(SLOT, 14 * K1, 7)
        stamp(S, 11)
    else:
        l_wait(S, EV_C0)
        S.ext(flat(dma_half(5)))
        kA, kB, KA = 194, 195, LX
        trb(S, kA, 3, 112, 8); trb(S, kB, 3, 72, 8)
        S(f's_lshr_b32 s{sT0}, s{sW4}, 1\ns_and_b32 s{sT1}, s{sW4}, 1\ns_mul_i32 s{sT2}, s{sT0}, 14336\ns_mul_i32 s{sT1}, s{sT1}, 56\ns_add_u32 s{sT2}, s{sT2}, s{sT1}\nv_add_u32 v{kA}, s{sT2}, v{kA}')
        S(f's_mul_i32 s{sT2}, s{sT0}, 9216\ns_add_u32 s{sT2}, s{sT2}, {SLOT}\nv_add_u32 v{kB}, s{sT2}, v{kB}')
        S(f's_lshl_b32 s{74}, s{sIDX}, 2\ns_add_u32 s{74}, s{74}, s{sW4}\ns_lshl_b32 s{75}, s{74}, 11\ns_lshl_b32 s{74}, s{74}, 4\ns_add_u32 s{74}, s{74}, s{sRB}\ns_lshl_b32 s{74}, s{74}, 11\ns_add_u32 s{74}, s{74}, {WS_KVP}')
        S(f's_lshl_b32 s{sT0}, s{sRB}, 7\ns_add_u32 s{75}, s{75}, s{sT0}\ns_add_u32 s{75}, s{75}, {WS_FP}')
        l_wait(S, EV_PK)
        stamp(S, 12)
        if Opt.lprio: S('s_setprio 1')
        sm = softmax_k(None)
        S.ext(sm[:8]); sig(4); S.ext(sm[8:Opt.h5at]); sig(5); S.ext(sm[Opt.h5at:])
        l_signal(S, CN_PH)
        stamp(S, 11)
        ltag_get(S)
        w2raw(0, Opt.aw2)
        if Opt.tr0: tr(0, Opt.tr0)
        stamp(S, 5)
        if Opt.kprio: S('s_setprio 1')
        l_wait(S, EV_V)
        S.ext(cnt_read(CN_PH, vLP)); S.ext(cnt_check(CN_PH, vLP))
        for ts in range(8):
            b = HR + 8 * (ts % 6)
            if ts >= 6: S(f'v_mfma_f32_32x32x16_bf16 {v(KA,16)}, {v(b,4)}, {v(b+4,4)}, {"0" if ts == 6 else v(KA,16)}')
            for u in range(2): S(f'ds_read_b64_tr_b16 {v(b + 2*u, 2)}, v{kA} offset:{(16*ts + 4*u)*112}')
            for u in range(2): S(f'ds_read_b64_tr_b16 {v(b + 4 + 2*u, 2)}, v{kB} offset:{(16*ts + 4*u)*72}')
        for ts in range(2, 8):
            b = HR + 8 * (ts % 6)
            S(f'v_mfma_f32_32x32x16_bf16 {v(KA,16)}, {v(b,4)}, {v(b+4,4)}, {v(KA,16)}')
        G_ = HR
        for i in range(8): S(f'v_cvt_pk_bf16_f32 v{G_+i}, v{KA+2*i}, v{KA+2*i+1}')
        for j in range(2):
            S(f'buffer_store_dwordx4 {v(G_+4*j,4)}, v{vL16}, {srd(SRD_WS)}, s{74} offen offset:{j*1024} sc1', tok='kvp')
        tr(Opt.tr0, Opt.tr0 + Opt.tr1)
        S.wait('kvp')
        flag_store(S, 75, LE)
        if not tile: l_signal(S, CN_KG)
        S('s_setprio 0')
        stamp(S, 1)
        if Opt.ackdiag: S.wait('kvp'); stamp(S, 2); S('s_waitcnt vmcnt(0)')
        w2raw(Opt.aw2, Opt.nreg)
        wo_prefetch()
        tr(Opt.tr0 + Opt.tr1, Opt.nreg)
        stamp(S, 6)
    if tile:
        l_signal(S, CN_LT)
        if not (Opt.early_f and not ffn):
            l_wait(S, EV_END)
            S.ext(cnt_read(CN_LT, vLP)); S.ext(cnt_check(CN_LT, vLP))
            stamp(S, 7)
            bu_ = bubble_units(Opt.bthr)
            S.ext(flat(bu_[:Opt.kgat])); l_signal(S, CN_KG); S.ext(flat(bu_[Opt.kgat:]))

def bubble_units(thr):
    sW2, sK2 = sU4, sU5
    u = []
    for i in range(12):
        t = Stream()
        if i == 0: t(f's_mul_i32 s{sT3}, s{sW4}, {F_REG}')
        t(f's_add_u32 m0, s{sT3}, {i*2048}\ns_add_u32 s{sT1}, s{sW2}, s{sK2}')
        if thr: t(f's_waitcnt vmcnt({thr})')
        t(f'buffer_load_dwordx4 v{vL2}, {srd(SRD_W2)}, s{sT1} offen lds', tok=('w2', Opt.nreg + i))
        t(f's_add_u32 m0, s{sT3}, {i*2048 + 1024}')
        wrap_inc(t, sK2, 16 * 896, 448 * 896)
        t(f'buffer_load_dwordx4 v13, {srd(SRD_W2)}, s{sT1} offen lds', tok=('w2', Opt.nreg + i))
        u.append(t.l)
    for hd in range(4):
        for half in range(2):
            t = Stream()
            t(f's_lshl_b32 s{sT2}, s{sW4}, 14\ns_add_u32 s{sT2}, s{sT2}, {A_BASE}')
            t(f's_lshl_b32 s{sT1}, s{sW4}, 2\ns_add_u32 s{sT1}, s{sT1}, {hd}\ns_mul_i32 s{sT1}, s{sT1}, {28*896}\ns_lshl_b32 s{sCNT}, s{sCB}, 7\ns_add_u32 s{sT1}, s{sT1}, s{sCNT}')
            if half: t(f's_add_u32 s{sT1}, s{sT1}, {16*896}')
            for i in range(2):
                t(f's_add_u32 m0, s{sT2}, {hd*4096 + half*2048 + i*1024}')
                if thr: t(f's_waitcnt vmcnt({thr})')
                if hd == 3 and half == 1 and i == 1: t(f's_cmp_eq_u32 s{sW4}, 3\ns_cselect_b32 exec_hi, 0, -1')
                else: t('s_nop 0')
                t(f'buffer_load_dwordx4 v{vL2 if i == 0 else 13}, {srd(SRD_WO)}, s{sT1} offen lds', tok='wo')
            if hd == 3 and half == 1: t('s_mov_b64 exec, -1')
            u.append(t.l)
    return u

def hflag_poll(S):
    S(f'v_lshlrev_b32 v8, 7, v{vLANE}')
    S(f's_lshl_b32 s{sT0}, s{sTB}, 3\ns_add_u32 s{sT0}, s{sT0}, s{sCB}\ns_lshl_b32 s{sT0}, s{sT0}, 12\ns_lshl_b32 s{sT1}, s{sW4}, 9\ns_add_u32 s{sT0}, s{sT0}, s{sT1}\ns_add_u32 s{sT0}, s{sT0}, {WS_FH}')
    poll(S, 8, sT0, 4, 9)

def f_phase2(S, attn):
    inl = attn and Opt.early_f
    stamp(S, 10)
    if Opt.fprio: S('s_setprio 1')
    sK = sU1
    vH0, vH1 = 14, 15
    S(f's_mul_i32 s{sT3}, s{sW4}, {F_REG}\nv_add_u32 v10, s{sT3}, v{vVW2[1]}\nv_add_u32 v11, s{sT3}, v{vVW2[0]}')
    S(f's_mul_i32 s{sU2}, s{sTB}, {224*K1}\ns_mul_i32 s{sT2}, s{sW4}, {28*K1}\ns_add_u32 s{sU2}, s{sU2}, s{sT2}\ns_add_u32 s{sU2}, s{sU2}, {WS_H}\ns_lshl_b32 s{sK}, s{sROT2}, 10')
    S(f's_and_b32 s{sT2}, s{sW4}, 1\ns_mul_i32 s{sT2}, s{sT2}, {112*K1}\nv_add_u32 v{vH1}, s{sT2}, v{vL16}\ns_sub_u32 s{sT2}, {112*K1}, s{sT2}\nv_add_u32 v{vH0}, s{sT2}, v{vL16}')
    S(f'v_mov_b32 v12, v11\nv_mov_b32 v11, v{vL2}')
    assert not inl and not Opt.wolate
    out_addr(S, 4, 0)
    S('s_waitcnt lgkmcnt(0)')
    hflag_poll(S)
    S(f'v_mov_b32 v9, v12\nv_mov_b32 v12, 4')
    wol = (attn and Opt.wolate) or Opt.wolate == 2
    S(f'v_lshlrev_b32 v8, 2, v{vLANE}\nv_add_u32 v8, {CTL}, v8\nv_mov_b32 v{W2R-3}, v13') if False else None
    S(f'v_lshlrev_b32 v8, 2, v{vLANE}\nv_add_u32 v8, {CTL}, v8\nv_mov_b32 v{HR+47}, 1\ns_mov_b64 exec, 15\nds_add_u32 v8, v{HR+47} offset:{128 + 16*CN_WO}\ns_mov_b64 exec, -1\ns_waitcnt lgkmcnt(0)')
    stamp(S, 8)
    NG = Opt.nreg
    def slot(i): return W2R + 8 * i if i < 16 else HR + 8 * (i - 16)
    free = list(range(NG, 22))
    hdst, adst, when = {}, {}, {}
    for ks in range(NG): adst[ks] = slot(ks)
    ring = [NG - 6, NG - 5, NG - 4]
    for ks in range(NG, 28): adst[ks] = slot(ring[(ks - NG) % 3])
    sched = {ks: [] for ks in range(-1, 28)}
    nxt = 0; hs = {}
    for ks in range(-1, 28):
        if ks >= 0:
            if ks < NG and ks not in ring: free.append(ks)
            free.append(hs[ks])
        while nxt < 28 and free:
            hs[nxt] = free.pop(0); hdst[nxt] = slot(hs[nxt]); sched[ks].append(nxt); nxt += 1
    sW2, sK2 = sU4, sU5
    def hload(ks):
        S(f's_add_u32 s{sT0}, s{sU2}, s{sK}')
        S(f'buffer_load_dwordx4 {v(hdst[ks],4)}, v{vH0}, {srd(SRD_WS)}, s{sT0} offen sc1')
        S(f'buffer_load_dwordx4 {v(hdst[ks]+4,4)}, v{vH1}, {srd(SRD_WS)}, s{sT0} offen sc1')
        if ks < 27: wrap_inc(S, sK, 1024, 28 * K1)
    def aread(ks):
        o = ((ks - NG) % 12) * 2048; b = adst[ks]
        S.wait(('w2', ks))
        for c in range(2):
            for u in range(2):
                S(f'ds_read_b64_tr_b16 {v(b + 4*c + 2*u, 2)}, v{9+c} offset:{o + 1024*u}', tok=('ar', ks))
    for k in sched[-1]: hload(k)
    for ks in range(28):
        for c in range(2):
            for tt2 in range(2):
                acc = FACC + 16 * (2 * c + tt2)
                S(f'v_mfma_f32_32x32x16_bf16 {v(acc,16)}, {v(adst[ks]+4*c,4)}, {v(hdst[ks]+4*tt2,4)}, {"0" if ks == 0 else v(acc,16)}')
                if c == 0 and tt2 == 0 and NG <= ks + 2 < 28: aread(ks + 2)
        if Opt.fdiag and ks in (0, 5, 10, 15, 19, 23): stamp(S, 1 + (0, 5, 10, 15, 19, 23).index(ks))
        if ks == (Opt.gk0 if attn else Opt.gk1): S(f'ds_write_b32 v{vCTL}, v12 offset:{128 + 16*CN_W2}')
        if ks >= NG and ks + 12 < 28:
            o = (ks - NG) * 2048
            S(f's_add_u32 m0, s{sT3}, {o}\ns_add_u32 s{sT1}, s{sW2}, s{sK2}')
            S(f'buffer_load_dwordx4 v11, {srd(SRD_W2)}, s{sT1} offen lds', tok=('w2', ks + 12))
            S(f's_add_u32 m0, s{sT3}, {o + 1024}')
            wrap_inc(S, sK2, 16 * 896, 448 * 896)
            S(f'buffer_load_dwordx4 v13, {srd(SRD_W2)}, s{sT1} offen lds', tok=('w2', ks + 12))
        for k in sched[ks]: hload(k)
    stamp(S, 9)
    final_f(S, FACC, 4)

def a_phase2(S):
    S(f's_lshl_b32 s{sU4}, s{sTB}, 16\ns_and_b32 s{sT2}, s{sW4}, 1\ns_lshl_b32 s{sT1}, s{sT2}, 15\ns_add_u32 s{sU4}, s{sU4}, s{sT1}\ns_lshr_b32 s{sT3}, s{sW4}, 1\ns_lshl_b32 s{sT1}, s{sT3}, 14\ns_add_u32 s{sU4}, s{sU4}, s{sT1}\ns_add_u32 s{sU4}, s{sU4}, {WS_PQ}')
    S(f'v_lshlrev_b32 v8, 8, v{vLANE}')
    S(f's_lshl_b32 s{sT0}, s{sTB}, 3\ns_add_u32 s{sT0}, s{sT0}, s{sCB}\ns_lshl_b32 s{sT0}, s{sT0}, 12\ns_lshl_b32 s{sT1}, s{sT3}, 10\ns_add_u32 s{sT0}, s{sT0}, s{sT1}\ns_lshl_b32 s{sT1}, s{sT2}, 7\ns_add_u32 s{sT0}, s{sT0}, s{sT1}\ns_add_u32 s{sT0}, s{sT0}, {WS_FH + 2048}')
    fa = final_addr(True)
    S.ext(fa)
    if Opt.aprio: S(f's_setprio {Opt.aprio}')
    S.ext(cnt_read(CN_W2, vCT)); S.ext(cnt_check(CN_W2, vCT, 1))
    stamp(S, 11)
    poll(S, 8, sT0, 4, 9, Opt.ksleep)
    stamp(S, 14)
    OB = 32
    for i in range(8):
        if i % 2 == 0: S(f's_add_u32 s{sT2}, s{sU4}, {i*2048}')
        for st in range(2):
            S(f'buffer_load_dwordx4 {v(OB+8*i+4*st,4)}, v{vL16}, {srd(SRD_WS)}, s{sT2} offen offset:{(i%2)*2048 + st*1024} sc1')
    S.ext(cnt_read(CN_WO, vCT)); S.ext(cnt_check(CN_WO, vCT, 1))
    SA, WB = 144, 96
    def woread(n):
        b = WB + 8 * (n % 6)
        for c in range(2):
            for u in range(2):
                S(f'ds_read_b64_tr_b16 {v(b+4*c+2*u,2)}, v{vVW2[c]} offset:{(16*n + 8*u)*128}')
    for n in range(5): woread(n)
    for n in range(16):
        b = WB + 8 * (n % 6)
        for c in range(2):
            acc = SA + 16 * c
            S(f'v_mfma_f32_32x32x16_bf16 {v(acc,16)}, {v(b+4*c,4)}, {v(OB+4*n,4)}, {"0" if n == 0 else v(acc,16)}')
            if c == 0 and n + 5 < 16: woread(n + 5)
    stamp(S, 12)
    final_a(S, SA)

XS = 96 * K1
def final_addr(isA):
    S = Stream()
    if isA:
        S(f's_mul_i32 s{sT1}, s{sW4}, {F_REG}\ns_add_u32 s{sT1}, s{sT1}, {16*K1}\nv_add_u32 v16, s{sT1}, v{vL16}')
        S(f's_xor_b32 s{sT1}, s{sW4}, 2\ns_mul_i32 s{sT1}, s{sT1}, {F_REG}\ns_add_u32 s{sT1}, s{sT1}, {16*K1}\nv_add_u32 v17, s{sT1}, v{vL16}')
    return S.l

def finish(S, xt, E, Sg, G, off):
    for i in range(8): S(f'v_fmac_f32 v{E+i}, v{Sg+i}, v{G+i}')
    for i in range(4): S(f'v_cvt_pk_bf16_f32 v{xt+i}, v{E+2*i}, v{E+2*i+1}')
    S(f'v_permlane32_swap_b32 v{xt}, v{xt+2}\nv_permlane32_swap_b32 v{xt+1}, v{xt+3}')
    S(f'buffer_store_dwordx4 {v(xt,4)}, v{vO}, {srd(SRD_OUT)}, s{sFT} offen offset:{off} {("", "sc1", "nt", "sc0 sc1")[Opt.osc]}')
def unpack_x(S, xt, E):
    S(f'v_permlane32_swap_b32 v{xt}, v{xt+2}\nv_permlane32_swap_b32 v{xt+1}, v{xt+3}')
    for i in range(4): S(f'v_lshlrev_b32 v{E+2*i}, 16, v{xt+i}\nv_and_b32 v{E+2*i+1}, 0xffff0000, v{xt+i}')

def final_a(S, SA):
    E = 20
    unpack_x(S, XT, E)
    S.ext(cnt_read(CN_G, vCT)); S.ext(cnt_check(CN_G, vCT, 1))
    for i in range(4): S(f'ds_write_b128 v17, {v(SA+4*i,4)} offset:{i*1024}')
    for i in range(2): S(f'ds_write_b128 v16, {v(SA+16+4*i,4)} offset:{4096 + i*1024}')
    S('s_waitcnt lgkmcnt(0)\ns_barrier')
    stamp(S, 13)
    for i in range(2): S(f'ds_read_b128 {v(32+4*i,4)}, v16 offset:{2048 + i*1024}')
    for i in range(2): S(f'ds_read_b128 {v(40+4*i,4)}, v16 offset:{6144 + i*1024}')
    for i in range(8): S(f'v_add_f32 v{32+i}, v{32+i}, v{SA+24+i}')
    finish(S, XT, E, 32, 40, 32)

def final_f(S, acc, xt):
    W = [16, 17, 18]
    S(f's_mul_i32 s{sT3}, s{sW4}, {F_REG}')
    for vq in range(3):
        S(f's_xor_b32 s{sT0}, s{sW4}, {vq ^ 3}\ns_lshl_b32 s{sT0}, s{sT0}, 12\ns_add_u32 s{sT0}, s{sT0}, s{sT3}\nv_add_u32 v{W[vq]}, s{sT0}, v{vL16}')
    S(f'v_lshlrev_b32 v24, 2, v{vLANE}\nv_add_u32 v24, {CTL}, v24\nv_mov_b32 v25, 1')
    for vq in range(3):
        for i in range(4):
            S(f'ds_write_b128 v{W[vq]}, {v(acc+16*vq+4*i,4)} offset:{i*1024}')
    S(f's_mov_b64 exec, 15\nds_add_u32 v24, v25 offset:{128 + 16*CN_G}\ns_mov_b64 exec, -1')
    S(f's_lshl_b32 s{sT2}, s{sW4}, 12')
    for k in range(1, 4):
        S(f's_xor_b32 s{sT0}, s{sW4}, {k}\ns_mul_i32 s{sT0}, s{sT0}, {F_REG}\ns_add_u32 s{sT0}, s{sT0}, s{sT2}\nv_add_u32 v{19+k}, s{sT0}, v{vL16}')
    S(f's_add_u32 s{sT3}, s{sT3}, {16*K1}\nv_add_u32 v23, s{sT3}, v{vL16}')
    E = 104
    unpack_x(S, xt, E)
    S.ext(cnt_read(CN_G, 26)); S.ext(cnt_check(CN_G, 26, 0))
    P_ = 32
    for k in range(3):
        for i in range(4): S(f'ds_read_b128 {v(P_+16*k+4*i,4)}, v{20+k} offset:{i*1024}')
    G = acc + 48
    for k in range(3):
        for i in range(16): S(f'v_add_f32 v{G+i}, v{G+i}, v{P_+16*k+i}')
    Q = 80
    for i in range(16): S(f'v_mul_f32 v{Q+i}, {hx(f2u(-L2E))}, v{G+i}')
    for i in range(16): S(f'v_exp_f32 v{Q+i}, v{Q+i}')
    for i in range(16): S(f'v_add_f32 v{Q+i}, 1.0, v{Q+i}')
    for i in range(16): S(f'v_rcp_f32 v{Q+i}, v{Q+i}')
    for i in range(16): S(f'v_mul_f32 v{G+i}, v{G+i}, v{Q+i}')
    for i in range(2): S(f'ds_write_b128 v23, {v(G+8+4*i,4)} offset:{6144 + i*1024}')
    S('s_waitcnt lgkmcnt(0)')
    stamp(S, 13)
    S('s_barrier')
    stamp(S, 14)
    for i in range(2): S(f'ds_read_b128 {v(32+4*i,4)}, v23 offset:{i*1024}')
    for i in range(2): S(f'ds_read_b128 {v(40+4*i,4)}, v23 offset:{4096 + i*1024}')
    for i in range(8): S(f'v_add_f32 v{32+i}, v{32+i}, v{40+i}')
    finish(S, xt, E, 32, G, 0)

def reducer(S):
    S(f's_cmp_ge_u32 s{sW4}, 2\ns_cbranch_scc1 L_fin')
    S(f'v_lshlrev_b32 v8, 7, v{vLANE}\ns_lshl_b32 s{sT0}, s{sTB}, 11\ns_add_u32 s{sT0}, s{sT0}, {WS_FP}')
    S(f's_lshl_b32 s{sU2}, s{sTB}, 15\ns_lshl_b32 s{sT2}, s{sW4}, 10\ns_add_u32 s{sU2}, s{sU2}, s{sT2}\ns_add_u32 s{sU2}, s{sU2}, {WS_KVP}')
    S(f's_lshl_b32 s{sU1}, s{sTB}, 1\ns_add_u32 s{sU1}, s{sU1}, s{sW4}\ns_lshl_b32 s{sU0}, s{sU1}, 7\ns_add_u32 s{sU0}, s{sU0}, {WS_FK}\ns_lshl_b32 s{sU1}, s{sU1}, 10\ns_add_u32 s{sU1}, s{sU1}, {WS_KVF}')
    S(f's_mov_b32 s{sSEL_LO}, 0x00003f80\ns_mov_b32 s{sSEL_HI}, 0x3f800000')
    for i in range(8): S(f'v_mov_b32 v{16+i}, 0')
    S(f's_cmp_eq_u32 s{sW4}, 1\ns_cselect_b32 s{sT3}, -1, 0\ns_mov_b32 s{sT2}, 0')
    poll(S, 8, sT0, 16, 9, 1)
    stamp(S, 8)
    for rb in range(16):
        if rb % 2 == 0: S(f's_add_u32 s{sT0}, s{sU2}, {rb*2048}')
        S(f'buffer_load_dwordx4 {v(32+4*rb,4)}, v{vL16}, {srd(SRD_WS)}, s{sT0} offen offset:{(rb%2)*2048} sc1')
    S(f'v_and_b32 v8, 31, v{vLANE}\nv_cmp_eq_u32 vcc, 29, v8')
    for rb in range(16):
        for i in range(4):
            S(f'v_dot2c_f32_bf16 v{16+2*i}, s{sSEL_LO}, v{32+4*rb+i}\nv_dot2c_f32_bf16 v{17+2*i}, s{sSEL_HI}, v{32+4*rb+i}')
    stamp(S, 10)
    for i in range(8): S(f'v_cndmask_b32 v{16+i}, v{16+i}, 1.0, vcc')
    for i in range(4): S(f'v_cvt_pk_bf16_f32 v{24+i}, v{16+2*i}, v{17+2*i}')
    S(f'v_cndmask_b32 v26, v26, 0, s[{sT2}:{sT3}]\nv_cndmask_b32 v27, v27, 0, s[{sT2}:{sT3}]')
    S(f'buffer_store_dwordx4 v[24:27], v{vL16}, {srd(SRD_WS)}, s{sU1} offen sc1')
    S('s_waitcnt vmcnt(0)')
    flag_store(S, sU0, 28)
    stamp(S, 9)

Opt.kvstep = 14
def fin_after(prefix, body):
    mark = Ins('L_MARK__:')
    o = finalize(prefix + [mark] + body)
    return o[o.index(mark) + 1:]

def build():
    assert sT2 % 2 == 0 and sT3 == sT2 + 1
    parts = []
    P = Stream(); prologue(P)
    P(f's_cmp_ge_u32 s{sWAVE}, 4\ns_cbranch_scc1 L_lwave')
    parts.append(finalize(P.l))
    C = Stream(); c_common(C); C(f's_cmp_ge_u32 s{sROLE}, 8\ns_cbranch_scc1 L_cattn')
    S = Stream(); c_ffn(S); c_publish(S, False, True); S('s_branch L_aphase'); parts.append(finalize(C.l + S.l))
    S = Stream(); S('L_cspare:\ns_waitcnt vmcnt(0)'); c_publish(S, True, False); S('s_branch L_fin'); parts.append(finalize(S.l))
    S = Stream(); S('L_cattn:'); c_attn(S)
    S(f's_cmp_ge_u32 s{sI}, 12\ns_cbranch_scc1 L_cspare'); c_publish(S, True, True); parts.append(fin_after(C.l, S.l))
    S = Stream(); S('L_aphase:'); a_phase2(S); S('s_branch L_fin'); parts.append(finalize(S.l))
    S = Stream(); S('L_lwave:'); l_decode(S)
    S(f's_cmp_ge_u32 s{sROLE}, 8\ns_cbranch_scc1 L_lattn'); l_phase1(S, True, True); f_phase2(S, False); S('s_branch L_fin'); parts.append(finalize(S.l))
    S = Stream(); S('L_lattn:'); S(f's_cmp_ge_u32 s{sI}, 12\ns_cbranch_scc1 L_lspare'); l_phase1(S, False, True); f_phase2(S, True); S('s_branch L_fin'); parts.append(finalize(S.l))
    S = Stream(); S('L_lspare:'); l_phase1(S, False, False); reducer(S); parts.append(finalize(S.l))
    S = Stream(); S('L_fin:'); diag_out(S); S('L_end:\ns_endpgm'); parts.append(finalize(S.l))
    hdr = open('recurrent_scan__linear_kernel_hedgehog__dense_activation_silu__prompt.s.ref').read().split('\n')
    top = [l for l in hdr[:13] if l.startswith(';') and '@launch' not in l and 'Override' not in l and 'grid=ceil' not in l]
    out = '\n'.join(top) + f'\n; @launch grid=(256,1,1) block=(512,1,1) lds={LDS_TOTAL}\n'
    out += f'.amdgcn_target "amdgcn-amd-amdhsa--gfx950"\n.text\n.globl {NAME}\n.p2align 8\n.type {NAME},@function\n{NAME}:\n'
    for p in parts:
        t = text(p)
        if Opt.nosc1 == 2: t = '\n'.join(l.replace(' sc1', ' nt sc1') if 'buffer_store_dwordx4' in l else l for l in t.split('\n'))
        if Opt.nosc1 == 3: t = '\n'.join(l.replace('offen', 'offen idxen').replace(', v2,', ', v[0:1],') if False else l for l in t.split('\n'))
        if Opt.nosc1 == 1: t = '\n'.join(l.replace(' sc1', '') if 'buffer_store_dwordx4' in l else l for l in t.split('\n'))
        out += t
    out += f'''.section .rodata,"a"
.p2align 6
.amdhsa_kernel {NAME}
  .amdhsa_next_free_vgpr 256
  .amdhsa_next_free_sgpr 102
  .amdhsa_accum_offset 256
  .amdhsa_group_segment_fixed_size 0
  .amdhsa_kernarg_size 80
  .amdhsa_user_sgpr_count 2
  .amdhsa_user_sgpr_kernarg_segment_ptr 1
  .amdhsa_system_sgpr_workgroup_id_x 1
.end_amdhsa_kernel
'''
    return out

if __name__ == '__main__':
    for a in sys.argv[2:]:
        k, _, val = a.partition('='); setattr(Opt, k, int(val) if val else True)
    open(sys.argv[1], 'w').write(build())
```

```python
import sys, struct
sys.path.insert(0, "dev")
from asmlib import *

NAME = "recurrent_scan__linear_kernel_hedgehog__dense_activation_silu__prompt_kernel"
K1 = 1024
import os
WS_H   = int(os.environ.get('WSOFF', '0')) << 20
WS_PQ  = WS_H + 64 * 112 * K1
WS_KVP = WS_PQ + 64 * 16 * 4096
WS_KVF = WS_KVP + 32 * 16 * 4096
WS_FH  = WS_KVF + 64 * K1
WS_FP  = WS_FH + 256 * 4096
WS_FK  = WS_FP + 32 * 2048
WS_TAG = WS_FK + 8 * 4096
WS_DIAG = WS_TAG + 4096
WS_SIZE = WS_DIAG + 256 * 8 * 64
SLOT = 28 * K1
SPARE = 140 * K1
WPHI_L = 156 * K1
CTL = 160 * K1 - 512
LDS_TOTAL = 160 * K1
F_REG = 24 * K1
A_BASE = 96 * K1
A_REG = 16 * K1
EV_XFREE, EV_C0, EV_C1, EV_C2, EV_C3, EV_PK, EV_END, EV_V = range(8)
CN_WO, CN_LT, CN_PH, CN_KV, CN_PQ, CN_K2, CN_W2, CN_KG, CN_G = 7, 8, 9, 10, 11, 13, 15, 16, 17
EV_X1, EV_X2, EV_PL = 25, 26, 27
sBND = 70
L2E = 1.4426950408889634
def f2u(x): return struct.unpack('<I', struct.pack('<f', x))[0]
def hx(x): return '0x%08x' % (x & 0xffffffff)

sWAVE, sXCD, sI, sRB, sROLE = 3, 4, 5, 6, 7
SRD_X, SRD_W, SRD_WS, SRD_W2, SRD_WO, SRD_OUT, SRD_DBG, SRD_WPHI = 8, 12, 16, 20, 24, 28, 32, 36
sTB, sCB, sIDX, sTAG, sPITCH = 40, 41, 42, 43, 44
sCOL = [45, 46, 47]
sCOLS = 48
sSEL_LO, sSEL_HI = 49, 63
sT0, sT1, sT2, sT3 = 50, 51, 52, 53
sHI = 54
sROT1, sROT2, sM70 = 1, 57, 56
sCNT, sW4, sFT, sFS, sL2E = 58, 59, 60, 61, 62
sU0, sU1, sU2, sU3, sU4, sU5 = 64, 65, 66, 67, 68, 69
sKA_QKV, sKA_W1 = 80, 82
STAMP0 = 84
def srd(b): return f's[{b}:{b+3}]'
def v(a, n=1): return f'v{a}' if n == 1 else f'v[{a}:{a+n-1}]'
HI = f's[{sHI}:{sHI+1}]'

class Opt:
    diag = False
    ncen = 15
    sleep = 12
    early = False
    rot = 1
    lprio = 1
    lsleep = 1
    nodma = 0
    nosc1 = 0
    nowo = 0
    wpf = 0
    xfirst = 3
    w2pf = 0
    gpf = 0
    mini = 0
    vsteps = 3
    hint = 1
    athr = 4
    rsleep = 3
    ackdiag = 0
    pk = 0
    pkq = 1
    trpace = 1
    aw2 = 8
    tr1 = 3
    tlb = 0
    s4hook = 1
    afirst = 0
    mixst = 0
    l2pf = 0
    gk0 = 14
    early_f = 0
    oprio = 1
    qtail = 1
    rdel = 0
    r2sleep = 3
    nstg = 5
    amp = 0
    ampwg = 200
    ampw = 0
    ampf = 10
    osc = 0
    stf = 0
    smin = 110
    nreg = 12
    xbar = 6
    kgat = 20
    wolate = 0
    wostep = 9
    map2 = 0
    ppf = 0
    pps = 3
    ppw = 4
    tr0 = 0
    plwait = 0
    gk1 = 25
    agate = 3
    h5at = 44
    kprio = 1
    aprio = 0
    bthr = 20
    trfirst = 0
    thr = 40
    xpipe = 4
    fine = -1
    cpf = 1
    wopf = 1
    phi1 = 1
    fprio = 1
    dbgout = 0
    outsc = ''
    empty = 0
    xcc = 0
    fdiag = 0
    nophi = 0
    notr = 0
    cprio = 0
    predelay = 0
    ksleep = 6

def stamp(S, k):
    if not Opt.diag: return
    if Opt.mini and k not in (0, 15): return
    if Opt.amp and k not in (0, 15, Opt.amp): return
    if Opt.fine >= 0:
        if k == 0: S('s_memtime s[100:101]\ns_waitcnt lgkmcnt(0)\ns_mov_b32 s71, s100')
        return
    if isinstance(k, str):
        if not Opt.early: return
        k = int(k[1:])
    elif Opt.early and 3 <= k < 15: return
    S(f'{"s_memtime" if Opt.diag == 2 else "s_memrealtime"} s[100:101]\ns_waitcnt lgkmcnt(0)\ns_mov_b32 s{STAMP0+k}, s100')

def diag_out(S):
    if not Opt.diag: return
    S('s_waitcnt vmcnt(0) lgkmcnt(0)')
    stamp(S, 15)
    if Opt.amp:
        lab, a = newlab('am'), newlab('am')
        S(f's_cmp_lg_u32 s2, {Opt.ampwg}\ns_cbranch_scc1 {lab}\ns_cmp_lg_u32 s{sWAVE}, {Opt.ampw}\ns_cbranch_scc1 {lab}')
        S(f's_sub_u32 s{sT0}, s{STAMP0+Opt.amp}, s{STAMP0}\ns_mul_i32 s{sT0}, s{sT0}, {Opt.ampf}\ns_add_u32 s{sT0}, s{sT0}, s{STAMP0}\ns_add_u32 s{sT0}, s{sT0}, 3000')
        S(f'{a}:\ns_memrealtime s[100:101]\ns_waitcnt lgkmcnt(0)\ns_sub_u32 s{sT1}, s{sT0}, s100\ns_cmp_gt_i32 s{sT1}, 0\ns_cbranch_scc1 {a}\n{lab}:\ns_endpgm')
    if Opt.xcc: S(f's_getreg_b32 s{STAMP0+11}, hwreg(HW_REG_XCC_ID)\ns_getreg_b32 s{STAMP0+12}, hwreg(HW_REG_HW_ID)')
    if Opt.dbgout:
        lab = newlab('dg')
        S(f's_not_b32 s{STAMP0+14}, s{STAMP0}')
        if Opt.dbgout == 1: S(f's_cmp_ge_u32 s{sWAVE}, 4')
        else: S(f's_cmp_lt_u32 s{sWAVE}, 4')
        S(f's_cbranch_scc1 {lab}')
        S('v_mov_b32 v16, 0')
        for k in range(1, 16): S(f'v_writelane_b32 v16, s{STAMP0+k}, {k}')
        S(f'v_mbcnt_lo_u32_b32 v17, -1, 0\nv_lshlrev_b32 v17, 2, v17\ns_mov_b64 exec, 0xfffe')
        S(f'buffer_atomic_umax v16, v17, {srd(SRD_DBG)}, 0 offen sc1')
        S(f'{lab}:\ns_endpgm')
    if Opt.fine >= 0:
        S('v_mov_b32 v16, s71\nv_mov_b32 v31, s71')
        for k in range(14): S(f'v_mov_b32 v{17+k}, s{72+2*k}')
    else:
        for k in range(16): S(f'v_mov_b32 v{16+k}, s{STAMP0+k}')
    S(f's_lshl_b32 s{sT0}, s2, 3\ns_add_u32 s{sT0}, s{sT0}, s{sWAVE}\ns_lshl_b32 s{sT0}, s{sT0}, 6\ns_add_u32 s{sT0}, s{sT0}, {WS_DIAG}')
    S('v_mov_b32 v40, 0\ns_mov_b64 exec, 1')
    for k in range(4): S(f'buffer_store_dwordx4 v[{16+4*k}:{19+4*k}], v40, {srd(SRD_WS)}, s{sT0} offen offset:{16*k}')

def half_base(h): return ((h + 4) % 5) * SLOT

_lab = [0]
def newlab(p):
    _lab[0] += 1; return f'L_{p}{_lab[0]}'
def RAW(t):
    i = Ins(t); i.kind = 'salu'; i.rd = set(); i.wr = set(); return i
def raw(S, t):
    for l in t.split('\n'):
        S.l.append(Ins(l) if l.endswith(':') else RAW(l))

vCTL, vLANE, vL16 = 0, 1, 2
def mk_srd(S, items):
    for b, lo, size in items:
        S(f's_mov_b64 s[{b}:{b+1}], s[{lo}:{lo+1}]\ns_mov_b32 s{b+2}, {size}\ns_mov_b32 s{b+3}, 0x20000')
def prologue(S):
    S(f's_cmp_ge_u32 s2, {0 if Opt.empty else 256}\ns_cbranch_scc1 L_end')
    if Opt.diag:
        for k in range(16): S(f's_mov_b32 s{STAMP0+k}, 0')
        if Opt.fine >= 0: S('s_mov_b32 s84, 1\ns_mov_b32 s86, 1\ns_mov_b32 s88, 1\ns_mov_b32 s90, 1\ns_mov_b32 s92, 1\ns_mov_b32 s94, 1\ns_mov_b32 s96, 1\ns_mov_b32 s98, 1')
    stamp(S, 0)
    S('s_load_dwordx16 s[64:79], s[0:1], 0\ns_load_dwordx4 s[80:83], s[0:1], 64')
    S(f'v_lshrrev_b32 v3, 6, v0\nv_and_b32 v{vLANE}, 63, v0\nv_readfirstlane_b32 s{sWAVE}, v3\nv_lshlrev_b32 v{vL16}, 4, v{vLANE}')
    S(f's_and_b32 s{sXCD}, s2, 7\ns_lshr_b32 s{sI}, s2, 3\ns_and_b32 s{sT3}, s{sI}, 3\ns_lshr_b32 s{sT2}, s{sI}, 2\ns_xor_b32 s{sT2}, s{sT2}, 4')
    S(f's_lshr_b32 s{sRB}, s{sXCD}, 1\ns_lshl_b32 s{sRB}, s{sRB}, 2\ns_add_u32 s{sRB}, s{sRB}, s{sT3}')
    S(f's_lshl_b32 s{sROT1}, s{sT3}, 1\ns_add_u32 s{sROT1}, s{sROT1}, s{sT2}\ns_sub_u32 s{sT0}, s{sROT1}, 7\ns_cmp_ge_u32 s{sROT1}, 7\ns_cselect_b32 s{sROT1}, s{sT0}, s{sROT1}')
    S(f's_and_b32 s{sW4}, s{sWAVE}, 3')
def decode2(S):
    if Opt.map2:
        S(f's_and_b32 s{sT1}, s{sXCD}, 1\ns_lshr_b32 s{sCB}, s{sROT1}, 1\ns_and_b32 s{sT0}, s{sROT1}, 1\ns_cmp_eq_u32 s{sROT1}, 6\ns_cselect_b32 s{sT0}, s{sT1}, s{sT0}')
        S(f's_lshl_b32 s{sT0}, s{sT0}, 2\ns_add_u32 s{sTB}, s{sT0}, s{sT3}')
        S(f's_lshl_b32 s{sROT2}, s{sCB}, 3\ns_mul_i32 s{sT0}, s{sTB}, 3\ns_add_u32 s{sROT2}, s{sROT2}, s{sT0}\ns_sub_u32 s{sT0}, s{sROT2}, 28\ns_cmp_ge_u32 s{sROT2}, 28\ns_cselect_b32 s{sROT2}, s{sT0}, s{sROT2}')
        S(f's_lshl_b32 s{sT1}, s{sT1}, 2\ns_add_u32 s{sT1}, s{sT1}, s{sCB}\ns_cmp_eq_u32 s{sROT1}, 6\ns_cselect_b32 s{sCB}, 3, s{sT1}')
        S(f's_lshr_b32 s{sT0}, s{sXCD}, 1\ns_lshl_b32 s{sT0}, s{sT0}, 3\ns_add_u32 s{sTB}, s{sTB}, s{sT0}')
    else:
        S(f's_mov_b32 s{sCB}, s{sROT1}\ns_lshl_b32 s{sTB}, s{sXCD}, 2\ns_add_u32 s{sTB}, s{sTB}, s{sT3}')
    S(f's_and_b32 s{sIDX}, s{sXCD}, 1\ns_lshl_b32 s{sIDX}, s{sIDX}, 2\ns_and_b32 s{sT0}, s{sT2}, 3\ns_add_u32 s{sIDX}, s{sIDX}, s{sT0}')
    S(f's_and_b32 s{sT0}, s{sT2}, 4\ns_lshl_b32 s{sT0}, s{sT0}, 1\ns_add_u32 s{sROLE}, s{sIDX}, s{sT0}')
    if not Opt.map2: S(f's_mul_i32 s{sROT2}, s{sT3}, 7\ns_lshl_b32 s{sT0}, s{sCB}, 2\ns_add_u32 s{sROT2}, s{sROT2}, s{sT0}\ns_sub_u32 s{sT0}, s{sROT2}, 28\ns_cmp_ge_u32 s{sROT2}, 28\ns_cselect_b32 s{sROT2}, s{sT0}, s{sROT2}')
    S(f's_lshl_b32 s{sT0}, s{sW4}, 2\ns_add_u32 s{sT0}, s{sT0}, {CTL}\nv_mov_b32 v{vCTL}, s{sT0}')
    S(f's_mov_b32 s{sHI}, 0\ns_mov_b32 s{sHI+1}, -1\ns_mov_b32 s{sL2E}, {hx(f2u(L2E))}\ns_movk_i32 s{sM70}, 0x70')
def l_decode(S):
    S(f'v_lshlrev_b32 v4, 3, v{vLANE}\nv_add_u32 v4, {CTL}, v4\nv_mov_b32 v6, 0\nv_mov_b32 v7, 0\nds_write_b64 v4, v[6:7]')
    decode2(S)
    S(f's_mul_i32 s{sT0}, s{sIDX}, 448\ns_and_b32 s{sT1}, s{sIDX}, 1\ns_lshl_b32 s{sT2}, s{sT1}, 6\ns_add_u32 s{sT2}, s{sT2}, s{sT0}')
    S(f's_mul_i32 s{sT1}, s{sT1}, 384\ns_sub_u32 s{sCOLS}, s{sT0}, s{sT1}\ns_add_u32 s{sCOLS}, s{sCOLS}, 384')
    S(f's_mul_i32 s{sT0}, s{sIDX}, 112')
    S(f's_add_u32 s{sT1}, s{sT0}, 896\ns_add_u32 s{sT3}, s{sT0}, 1792\ns_add_u32 s{sCOL[1]}, s{sT2}, 128\ns_add_u32 s{sCOL[2]}, s{sT2}, 256')
    S(f's_movk_i32 s{sPITCH}, 3584\ns_cmp_ge_u32 s{sROLE}, 8')
    S(f's_cselect_b32 s{sCOL[0]}, s{sT1}, s{sT2}\ns_cselect_b32 s{sPITCH}, 2688, s{sPITCH}')
    S(f's_cselect_b32 s{sCOL[1]}, s{sT3}, s{sCOL[1]}\ns_cselect_b32 s{sCOL[2]}, s{sT0}, s{sCOL[2]}')
    S(f's_mul_i32 s{SRD_W+2}, s{sPITCH}, 448\ns_mov_b32 s{SRD_W+3}, 0x20000')
    swz_voff(S, vLW, f's{sPITCH}', 8)
    S('s_waitcnt lgkmcnt(0)')
    S(f's_cmp_ge_u32 s{sROLE}, 8\ns_cselect_b64 s[{SRD_W}:{SRD_W+1}], s[66:67], s[74:75]')
    mk_srd(S, ((SRD_X, 64, 2048 * 896), (SRD_WS, 82, WS_SIZE), (SRD_W2, 76, 1792 * 896), (SRD_WO, 70, 448 * 896), (SRD_OUT, 78, 2048 * 896), (SRD_DBG, 80, 256), (SRD_WPHI, 68, 16 * 1568)))
    S(f's_mov_b64 s[{sKA_QKV}:{sKA_QKV+1}], s[66:67]\ns_mov_b64 s[{sKA_W1}:{sKA_W1+1}], s[74:75]')

TAGW = 320
def tag_fetch_l0(S):
    a, b = newlab('tf'), newlab('tf')
    S(f's_cmp_lg_u32 s{sW4}, 0\ns_cbranch_scc1 {b}')
    raw(S, f's_mov_b32 s{sBND}, 0\nv_mov_b32 v15, 0\n{a}:\nbuffer_load_dword v14, v15, {srd(SRD_DBG)}, 0 offen sc1\ns_waitcnt vmcnt(0)\nv_readfirstlane_b32 s{sTAG}, v14\ns_add_u32 s{sBND}, s{sBND}, 1\n'
           f's_max_u32 s{sCNT}, s{sBND}, 0x400000\ns_sub_u32 s{sCNT}, s{sCNT}, 0x400000\ns_or_b32 s{sTAG}, s{sTAG}, s{sCNT}\ns_cmp_eq_u32 s{sTAG}, 0\ns_cbranch_scc1 {a}\n'
           f'v_mov_b32 v14, s{sTAG}\ns_mov_b64 exec, 15\nds_write_b32 v{vLC}, v14 offset:{TAGW}\ns_mov_b64 exec, -1\ns_waitcnt lgkmcnt(0)\n{b}:')
def ltag_issue(S):
    S(f'v_mov_b32 v197, 0\nbuffer_load_dword v198, v197, {srd(SRD_DBG)}, 0 offen sc1')
def ltag_get(S):
    a, b = newlab('tf'), newlab('tf')
    S(f'v_readfirstlane_b32 s{sTAG}, v198\ns_cmp_lg_u32 s{sTAG}, 0\ns_cbranch_scc1 {b}')
    raw(S, f's_mov_b32 s{sBND}, 0\n{a}:\nbuffer_load_dword v198, v197, {srd(SRD_DBG)}, 0 offen sc1\ns_waitcnt vmcnt(0)\nv_readfirstlane_b32 s{sTAG}, v198\ns_add_u32 s{sBND}, s{sBND}, 1\n'
           f's_max_u32 s{sCNT}, s{sBND}, 0x400000\ns_sub_u32 s{sCNT}, s{sCNT}, 0x400000\ns_or_b32 s{sTAG}, s{sTAG}, s{sCNT}\ns_cmp_eq_u32 s{sTAG}, 0\ns_cbranch_scc1 {a}\n{b}:')
    S(f'v_mov_b32 v198, s{sTAG}\nds_write_b32 v{vCTL}, v198 offset:{TAGW}')
def tag_prefetch(S, vt):
    S(f'ds_read_b32 v{vt}, v{vCTL} offset:{TAGW}')
def tag_get(S, vt):
    a, b = newlab('tg'), newlab('tg')
    S(f'v_readfirstlane_b32 s{sTAG}, v{vt}')
    S(f's_cmp_lg_u32 s{sTAG}, 0\ns_cbranch_scc1 {b}')
    raw(S, f'{a}:\nds_read_b32 v{vt}, v{vCTL} offset:{TAGW}\ns_sleep 1\ns_waitcnt lgkmcnt(0)\nv_readfirstlane_b32 s{sTAG}, v{vt}\ns_nop 0\ns_cmp_eq_u32 s{sTAG}, 0\ns_cbranch_scc1 {a}\n{b}:')

def poll(S, voff, soff, nl, vt, sleep=None):
    a, b = newlab('pl'), newlab('pl')
    S(f's_mov_b64 exec, {hex((1 << nl) - 1)}\ns_mov_b32 s{sCNT}, 0')
    S(f'{a}:')
    S(f'buffer_load_dword v{vt}, v{voff}, {srd(SRD_WS)}, s{soff} offen sc1')
    S('s_waitcnt vmcnt(0)')
    S(f'v_cmp_ne_u32 vcc, s{sTAG}, v{vt}')
    S(f's_add_u32 s{sCNT}, s{sCNT}, 1\ns_cbranch_vccz {b}\ns_cmp_gt_u32 s{sCNT}, 0x400000\ns_cbranch_scc1 {b}\ns_sleep {sleep or Opt.sleep}\ns_branch {a}')
    S(f'{b}:')
    S('s_mov_b64 exec, -1')

def flag_store(S, soff, vt, n=1, shift=8):
    for i in range(4): S(f'v_mov_b32 v{vt+i}, s{sTAG}')
    S(f'v_lshrrev_b32 v{vt+4}, 3, v{vLANE}\nv_lshlrev_b32 v{vt+4}, {shift}, v{vt+4}\nv_and_or_b32 v{vt+4}, v{vL16}, s{sM70}, v{vt+4}')
    m = (1 << (8 * n)) - 1
    if n < 8: S(f's_mov_b32 exec_lo, {hex(m & 0xffffffff)}\ns_mov_b32 exec_hi, {hex(m >> 32)}')
    S(f'buffer_store_dwordx4 {v(vt,4)}, v{vt+4}, {srd(SRD_WS)}, s{soff} offen sc1')
    if n < 8: S('s_mov_b64 exec, -1')

def c_signal(ev):
    return [Ins(f'ds_write_b32 v{vCTL}, v{vCTL} offset:{16*ev}')]
def cnt_read(idx, vt):
    return [Ins(f'ds_read_b32 v{vt}, v{vCTL} offset:{128 + 16*idx}')]
SLOW = []
def cnt_check(idx, vt, sleep=0):
    S = Stream(); a, b, c = newlab('ck'), newlab('ck'), newlab('ck')
    S(f'v_readfirstlane_b32 s{sCNT}, v{vt}\ns_cmp_ge_u32 s{sCNT}, 4\ns_cbranch_scc0 {c}\n{b}:')
    SLOW.append((c, f'{c}:\ns_mov_b32 s{sBND}, 0\n{a}:\nds_read_b32 v{vt}, v{vCTL} offset:{128 + 16*idx}\ns_add_u32 s{sBND}, s{sBND}, 1\ns_cmp_gt_u32 s{sBND}, 0x1000000\ns_cbranch_scc1 {b}\ns_sleep {sleep}\ns_waitcnt lgkmcnt(0)\nv_readfirstlane_b32 s{sCNT}, v{vt}\ns_nop 0\ns_cmp_lt_u32 s{sCNT}, 4\ns_cbranch_scc1 {a}\ns_branch {b}'))
    return S.l
def c_allflags(ev, vt, va):
    S = Stream(); a, b, c = newlab('cf'), newlab('cf'), newlab('cf')
    S(f'v_mov_b32 v{va}, {CTL}\nds_read_b128 v[{vt}:{vt+3}], v{va} offset:{16*ev}')
    S2 = Stream()
    S2(f'v_min3_u32 v{vt}, v{vt}, v{vt+1}, v{vt+2}\nv_min_u32 v{vt}, v{vt}, v{vt+3}\nv_readfirstlane_b32 s{sCNT}, v{vt}\ns_cmp_lg_u32 s{sCNT}, 0\ns_cbranch_scc0 {c}\n{b}:')
    SLOW.append((c, f'{c}:\ns_mov_b32 s{sBND}, 0\n{a}:\nds_read_b128 v[{vt}:{vt+3}], v{va} offset:{16*ev}\ns_add_u32 s{sBND}, s{sBND}, 1\ns_cmp_gt_u32 s{sBND}, 0x1000000\ns_cbranch_scc1 {b}\ns_waitcnt lgkmcnt(0)\n'
            f'v_min3_u32 v{vt}, v{vt}, v{vt+1}, v{vt+2}\nv_min_u32 v{vt}, v{vt}, v{vt+3}\ns_nop 0\nv_readfirstlane_b32 s{sCNT}, v{vt}\ns_nop 0\ns_cmp_eq_u32 s{sCNT}, 0\ns_cbranch_scc1 {a}\ns_branch {b}'))
    return S.l, S2.l
vLC, vLONE, vLP = 11, 12, 188
def l_signal(S, idx):
    S(f's_mov_b64 exec, 15\nds_add_u32 v{vLC}, v{vLONE} offset:{128 + 16*idx}\ns_mov_b64 exec, -1')
def l_wait(S, ev, vLP=vLP):
    a, b = newlab('lw'), newlab('lw')
    S('s_waitcnt lgkmcnt(0)')
    raw(S, f's_mov_b32 s{sBND}, 0\n{a}:\nds_read_b128 v[{vLP}:{vLP+3}], v{vLP+4} offset:{16*ev}\ns_add_u32 s{sBND}, s{sBND}, 1\ns_cmp_gt_u32 s{sBND}, 0x1000000\ns_cbranch_scc1 {b}\ns_sleep {Opt.lsleep}\ns_waitcnt lgkmcnt(0)\nv_min3_u32 v{vLP}, v{vLP}, v{vLP+1}, v{vLP+2}\nv_min_u32 v{vLP}, v{vLP}, v{vLP+3}\ns_nop 0\nv_readfirstlane_b32 s{sCNT}, v{vLP}\ns_nop 0\ns_cmp_eq_u32 s{sCNT}, 0\ns_cbranch_scc1 {a}\n{b}:\ns_waitcnt lgkmcnt(0)')

X0 = 16; ACC = [[128, 144], [160, 176]]; AF = 192; WPHI = 224; T = 240; U = 224; TT = 248; NR = 4
vVA = [3, 4]; vWA = [5, 6]; vVS = 7; vR, vRM, vNRL, vSD, vCT, vNM = 8, 9, 10, 11, 12, 13; vTAG = 14

def lane_consts_tr(S, dst, tmp, cstride, rowmap):
    t0, t1, t2 = tmp, tmp + 1, tmp + 2
    S(f'v_bfe_u32 v{t0}, v{vLANE}, 2, 2')
    S(f'v_lshrrev_b32 v{t1}, 5, v{vLANE}')
    S(f'v_lshlrev_b32 v{t1}, {10 if rowmap == "A" else 9}, v{t1}\nv_lshl_add_u32 v{t1}, v{t0}, 7, v{t1}')
    S(f'v_bfe_u32 v{t0}, v{vLANE}, 3, 1\nv_lshlrev_b32 v{t0}, 6, v{t0}')
    S(f'v_bfe_u32 v{t2}, v{vLANE}, 4, 1\nv_lshlrev_b32 v{t2}, 5, v{t2}\nv_and_b32 v{dst[0]}, 3, v{vLANE}\nv_lshl_add_u32 v{t2}, v{dst[0]}, 3, v{t2}')
    S(f'v_xor_b32 v{dst[0]}, v{t2}, v{t0}\nv_add_u32 v{dst[0]}, v{dst[0]}, v{t1}')
    S(f'v_add_u32 v{t2}, {cstride}, v{t2}\nv_xor_b32 v{dst[1]}, v{t2}, v{t0}\nv_add_u32 v{dst[1]}, v{dst[1]}, v{t1}')

def trb(St, dst, hfshift, pitch, tmp):
    St(f'v_lshrrev_b32 v{tmp}, 5, v{vLANE}\nv_lshlrev_b32 v{tmp}, {hfshift}, v{tmp}\nv_bfe_u32 v{dst}, v{vLANE}, 2, 2\nv_add_u32 v{tmp}, v{tmp}, v{dst}\nv_mul_u32_u24 v{dst}, {pitch}, v{tmp}')
    St(f'v_bfe_u32 v{tmp}, v{vLANE}, 4, 1\nv_lshl_add_u32 v{dst}, v{tmp}, 5, v{dst}\nv_and_b32 v{tmp}, 3, v{vLANE}\nv_lshl_add_u32 v{dst}, v{tmp}, 3, v{dst}')

def wrap_inc(S, reg, inc, lim):
    S(f's_add_u32 s{reg}, s{reg}, {inc}\ns_cmp_eq_u32 s{reg}, {lim}\ns_cselect_b32 s{reg}, 0, s{reg}')

def c_load_x(S):
    a, b = T, T + 1
    S(f'v_lshrrev_b32 v{T+2}, 3, v{vLANE}\nv_mul_u32_u24 v{a}, 896, v{T+2}')
    S(f'v_lshrrev_b32 v{T+2}, 4, v{vLANE}\nv_and_b32 v{T+3}, 7, v{vLANE}\nv_xor_b32 v{T+2}, v{T+2}, v{T+3}\nv_lshl_add_u32 v{a}, v{T+2}, 4, v{a}\nv_xor_b32 v{b}, 64, v{a}')
    S(f'v_add_u32 v{b}, {8*896}, v{b}\nv_add_u32 v{T+2}, {16*896}, v{a}\nv_add_u32 v{T+3}, {16*896}, v{b}')
    sXB, sXL, sXR, sXO = sFT, sFS, sCOL[0], sCOL[1]
    S(f's_lshl_b32 s{sXB}, s{sRB}, 2\ns_add_u32 s{sXB}, s{sXB}, s{sWAVE}\ns_mul_i32 s{sXB}, s{sXB}, {32*896}')
    S(f's_mul_i32 s{sXL}, s{sWAVE}, {SLOT}\ns_lshl_b32 s{sXR}, s{sROT1}, 7')
    S(f's_mov_b32 s{SRD_X+2}, {2048*896}\ns_mov_b32 s{SRD_X+3}, 0x20000')
    stamp(S, 'e3')
    S(f's_waitcnt lgkmcnt(0)\ns_mov_b64 s[{SRD_X}:{SRD_X+1}], s[64:65]')
    stamp(S, 'e4')
    def xdma(lc):
        S(f's_add_u32 s{sXO}, s{sXB}, s{sXR}')
        for g in range(4):
            S(f's_add_u32 m0, s{sXL}, {lc*4096 + g*1024}')
            if g == 0 and lc < 6: wrap_inc(S, sXR, 128, 896)
            S(f'buffer_load_dwordx4 v{T+g}, {srd(SRD_X)}, s{sXO} offen lds', tok=('x', lc))
    for lc in range(Opt.xpipe): xdma(lc)
    decode2(S)
    mk_srd(S, ((SRD_WS, 82, WS_SIZE), (SRD_OUT, 78, 2048 * 896), (SRD_WO, 70, 448 * 896)))
    if Opt.xpipe >= 7: S('s_barrier')
    sT1_ = sXL
    stamp(S, 'e5')
    xa = T + 4
    S(f'v_and_b32 v{TT}, 31, v{vLANE}\nv_bfe_u32 v{TT+1}, v{vLANE}, 1, 3\nv_lshrrev_b32 v{xa}, 5, v{vLANE}\nv_xor_b32 v{TT+1}, v{TT+1}, v{xa}')
    S(f'v_lshlrev_b32 v{TT+1}, 4, v{TT+1}\nv_lshl_add_u32 v{xa}, v{TT}, 7, v{TT+1}\nv_add_u32 v{xa}, s{sXL}, v{xa}')
    for q in range(1, 4): S(f'v_xor_b32 v{xa+q}, {q*32}, v{xa}')
    S(f's_mov_b32 s{sSEL_LO}, 0x00003f80\ns_mov_b32 s{sSEL_HI}, 0x3f800000')
    S(f's_cmp_ge_u32 s{sROLE}, 8\ns_cselect_b32 s{sT0}, 56, 64')
    lane_consts_tr(S, vVA, TT, f's{sT0}', 'A')
    sA, sB, qA, qB, one = U, U + 1, U + 2, U + 3, U + 4
    S(f'v_mov_b32 v{sA}, 0\nv_mov_b32 v{sB}, 0\nv_mov_b32 v{qA}, 0\nv_mov_b32 v{qB}, 0\nv_mov_b32 v{one}, 0x3f803f80')
    def stats(lc):
        for q in range(4):
            for j in range(4):
                r = X0 + (lc * 4 + q) * 4 + j
                S(f'v_dot2c_f32_bf16 v{sA + (j & 1)}, v{r}, v{one}\nv_dot2c_f32_bf16 v{qA + (j & 1)}, v{r}, v{r}')
    for lc in range(7):
        S.wait(('x', lc))
        if lc in (0, 3, 6): stamp(S, 'e%d' % (6 + lc // 3))
        for q in range(4):
            S(f'ds_read_b128 {v(X0 + (lc*4+q)*4, 4)}, v{xa+q} offset:{lc*4096}')
        if lc == 6: S.ext(c_signal(EV_XFREE))
        if lc + Opt.xpipe < 7: xdma(lc + Opt.xpipe)
        if lc + Opt.xpipe == Opt.xbar: S('s_barrier')
        if lc > 0: stats(lc - 1)
    stamp(S, 1)
    stats(6)
    t = U + 5
    S(f'v_add_f32 v{sA}, v{sA}, v{sB}\nv_add_f32 v{qA}, v{qA}, v{qB}\nv_mov_b32 v{sB}, v{sA}\nv_mov_b32 v{qB}, v{qA}')
    S(f'v_permlane32_swap_b32 v{sA}, v{sB}\nv_permlane32_swap_b32 v{qA}, v{qB}')
    S(f'v_add_f32 v{sA}, v{sA}, v{sB}\nv_add_f32 v{qA}, v{qA}, v{qB}')
    inv = hx(f2u(1.0 / 448))
    S(f'v_mul_f32 v{sA}, {inv}, v{sA}\nv_mul_f32 v{qA}, {inv}, v{qA}')
    S(f'v_fma_f32 v{qA}, -v{sA}, v{sA}, v{qA}\nv_max_f32 v{qA}, 0, v{qA}')
    S(f'v_cvt_pk_bf16_f32 v{t}, v{sA}, v{qA}')
    S(f'v_lshlrev_b32 v{vNM}, 16, v{t}\nv_xor_b32 v{vNM}, 0x80000000, v{vNM}')
    R = Stream()
    R(f'v_and_b32 v{qA}, 0xffff0000, v{t}\nv_add_f32 v{qA}, {hx(f2u(1e-5))}, v{qA}')
    R(f'v_cvt_pk_bf16_f32 v{t}, v{qA}, v{qA}\nv_and_b32 v{qA}, 0xffff0000, v{t}\nv_sqrt_f32 v{qA}, v{qA}')
    R(f'v_nop\nv_cvt_pk_bf16_f32 v{t}, v{qA}, v{qA}\nv_and_b32 v{vSD}, 0xffff0000, v{t}\nv_rcp_f32 v{vR}, v{vSD}')
    R(f'v_nop\nv_mul_f32 v{vNRL}, {hx(f2u(-L2E))}, v{vR}\nv_cndmask_b32 v{vRM}, v{vR}, 0, {HI}')
    return R.l

def center(s):
    S = Stream()
    for j in range(4):
        r = X0 + s * 4 + j
        a, b = TT + 2 * j, TT + 2 * j + 1
        S(f'v_dot2_f32_bf16 v{a}, v{r}, s{sSEL_LO}, v{vNM}\nv_dot2_f32_bf16 v{b}, v{r}, s{sSEL_HI}, v{vNM}')
    for j in range(4):
        r = X0 + s * 4 + j
        S(f'v_cvt_pk_bf16_f32 v{r}, v{TT+2*j}, v{TT+2*j+1}')
    return S.l
def center5(s):
    S = Stream()
    for j in range(4):
        r = X0 + s * 4 + j
        a, b = TT + 2 * j, TT + 2 * j + 1
        S(f'v_lshlrev_b32 v{a}, 16, v{r}\nv_and_b32 v{b}, 0xffff0000, v{r}\nv_add_f32 v{a}, v{a}, v{vNM}\nv_add_f32 v{b}, v{b}, v{vNM}')
        S(f'v_cvt_pk_bf16_f32 v{r}, v{a}, v{b}')
    return S.l

def silu_tile(acc, u, soff, tok):
    S = Stream()
    for g in range(4):
        a = acc + 4 * g
        for i in range(4): S(f'v_mul_f32 v{TT+i}, v{a+i}, v{vNRL}')
        for i in range(4): S(f'v_exp_f32 v{TT+i}, v{TT+i}')
        for i in range(4): S(f'v_fma_f32 v{TT+i}, v{TT+i}, v{vSD}, v{vSD}')
        for i in range(4): S(f'v_rcp_f32 v{TT+i}, v{TT+i}')
        for i in range(4): S(f'v_mul_f32 v{TT+4+i}, v{a+i}, v{TT+i}')
        S(f'v_cvt_pk_bf16_f32 v{u+2*g}, v{TT+4}, v{TT+5}\nv_cvt_pk_bf16_f32 v{u+2*g+1}, v{TT+6}, v{TT+7}')
        if g % 2 == 1:
            S(f'buffer_store_dwordx4 {v(u + 4*(g//2), 4)}, v{vL16}, {srd(SRD_WS)}, s{soff[0]} offen offset:{soff[1] + 1024*(g//2)} {("sc1", "sc1 nt", "sc0 sc1", "")[Opt.stf]}', tok=tok)
    return S.l

def part(f, s, lo, hi):
    n = len(f); k = hi - lo + 1
    return f[(s - lo) * n // k:(s - lo + 1) * n // k]

CN_H1B = 14
class Steps:
    def __init__(self, single):
        self.steps = []
        for st in range(3):
            for s in range(28):
                h = st * 2 + s // 14; sp = s % 14
                p = dict(st=st, s=s, nt=2, h=h, off=sp * 2048, first=(sp == 0), last=(sp == 13), base=half_base(h), cn=h)
                if h == 1:
                    if sp < 8: p.update(base=SPARE, h1a=(sp == 7))
                    else: p.update(base=0, off=(sp - 8) * 2048, first=(sp == 8), cn=CN_H1B)
                self.steps.append(p)
        if single:
            for s in range(28):
                self.steps.append(dict(st=3, s=s, nt=1, h=6, off=s * K1, first=(s == 0), last=False, cn=6))
    def reads(self, n):
        if n >= len(self.steps): return [], []
        p = self.steps[n]; S = Stream(); pre = Stream()
        ring = AF + (n % NR) * 8
        if p['first']:
            pre.ext(cnt_check(p['cn'], vCT))
            if p['nt'] == 2:
                b = p['base']
                pre(f'v_add_u32 v{vWA[0]}, {b}, v{vVA[0]}\nv_add_u32 v{vWA[1]}, {b}, v{vVA[1]}')
        if p['nt'] == 2:
            for c in range(2):
                for u in range(2):
                    S(f'ds_read_b64_tr_b16 {v(ring + 4*c + 2*u, 2)}, v{vWA[c]} offset:{p["off"] + 512*u}', tok=('a', n))
        else:
            for u in range(2):
                S(f'ds_read_b64_tr_b16 {v(ring + 2*u, 2)}, v{vVS} offset:{p["off"] + 256*u}', tok=('a', n))
        if p['last'] and p['h'] < 4: S.ext(c_signal(EV_C0 + p['h']))
        if n + 3 < len(self.steps) and self.steps[n + 3]['first']:
            S.ext(cnt_read(self.steps[n + 3]['cn'], vCT))
        return pre.l, S.l
    def mfmas(self, n):
        p = self.steps[n]; ring = AF + (n % NR) * 8; out = []
        for c in range(p['nt']):
            acc = ACC[p['st'] % 2][c]
            C = '0' if p['s'] == 0 else v(acc, 16)
            out.append(Ins(f'v_mfma_f32_32x32x16_bf16 {v(acc,16)}, {v(ring+4*c,4)}, {v(X0+4*p["s"],4)}, {C}'))
        return out
    def stage(self, st, fill=None, perstep=None, mid=None):
        idx = [n for n, p in enumerate(self.steps) if p['st'] == st]
        groups = []
        for n in idx:
            p = self.steps[n]
            rd = self.reads(n + NR - 1)[1]
            pre = self.reads(n + NR)[0]
            m = self.mfmas(n)
            g = []
            if Opt.fine == st and p['s'] % 2 == 0 and p['s'] < 26: g.append(RAW(f's_memtime s[{72+p["s"]}:{73+p["s"]}]'))
            if mid and p['s'] in mid: g += mid[p['s']]
            on = p['s'] > 0 or perstep
            w = Stream(); w.wait(('a', n + 1))
            k = 2 if pre else 5
            if p['nt'] == 2:
                g += [m[0]] + rd + ([None] * 2 if on else []) + [m[1]] + w.l + ([None] * k if on else []) + pre
            else:
                g += [m[0]] + rd + ([None] * 3 if on else [])
            if perstep: g = interleave([g], perstep(p['s']))
            if Opt.fine == st and p['s'] == 27: g.append(RAW('s_memtime s[98:99]'))
            groups.append(g)
        if perstep: return [x for g in groups for x in g]
        return interleave(groups, fill)

def c_common(S):
    if Opt.cprio: S('s_setprio 2')
    rest = c_load_x(S)
    S.ext(cnt_read(0, vCT))
    for s in range(Opt.ncen): S.ext(center(s))
    P = Steps(True)
    for n in range(NR - 1):
        pre, rd = P.reads(n); S.ext(pre); S.ext(rd)
    stamp(S, 2)
    f = []
    for s in range(Opt.ncen, 28): f += center5(s)
    S.ext(P.stage(0, perstep=lambda s: part(f, s, 0, 25) if s < 26 else (rest if s == 26 else [])))
    stamp(S, 3)

def c_ffn(S):
    P = Steps(True)
    e = Stream(); t = T
    trb(e, vVS, 3, 64, t)
    e(f's_lshl_b32 s{sT0}, s{sRB}, 2\ns_add_u32 s{sT0}, s{sT0}, s{sWAVE}\ns_mul_i32 s{sT0}, s{sT0}, {112*K1}\ns_add_u32 s{sT0}, s{sT0}, {WS_H}')
    e(f's_mul_i32 s{sT1}, s{sIDX}, 7\ns_and_b32 s{sT2}, s{sIDX}, 1\ns_add_u32 s{sT3}, s{sT1}, s{sT2}\ns_lshl_b32 s{sT3}, s{sT3}, 11\ns_add_u32 s{sFT}, s{sT0}, s{sT3}')
    e(f's_mul_i32 s{sT2}, s{sT2}, 6\ns_sub_u32 s{sT1}, s{sT1}, s{sT2}\ns_add_u32 s{sT1}, s{sT1}, 6\ns_lshl_b32 s{sT1}, s{sT1}, 11\ns_add_u32 s{sFS}, s{sT0}, s{sT1}')
    for st in (1, 2, 3):
        pa = ACC[(st - 1) % 2]
        fill = (e.l if st == 1 else []) + [Ins(f's_add_u32 s{sT0}, s{sFT}, {(st-1)*4096}')]
        fill += silu_tile(pa[0], T, (sT0, 0), 'st') + silu_tile(pa[1], U, (sT0, 2048), 'st')
        if st == 3:
            t = Stream(); tag_prefetch(t, vTAG); fill = fill + t.l
        S.ext(P.stage(st, fill))
        stamp(S, 3 + st)
    S.ext(silu_tile(ACC[1][0], T, (sFS, 0), 'st'))

def minmax(S, X, mx, mn, t0, t1):
    for op, d in (('v_max3_f32', mx), ('v_min3_f32', mn)):
        S(f'{op} v{d}, v{X}, v{X+1}, v{X+2}')
        for i in range(3, 15, 2): S(f'{op} v{d}, v{d}, v{X+i}, v{X+i+1}')
    S(f'v_max_f32 v{mx}, v{mx}, v{X+15}\nv_min_f32 v{mn}, v{mn}, v{X+15}')
    S(f'v_mov_b32 v{t0}, v{mx}\nv_mov_b32 v{t1}, v{mn}\nv_permlane32_swap_b32 v{mx}, v{t0}\nv_permlane32_swap_b32 v{mn}, v{t1}')
    S(f'v_max_f32 v{mx}, v{mx}, v{t0}\nv_min_f32 v{mn}, v{mn}, v{t1}')
    S(f'v_mul_f32 v{mx}, {hx(f2u(-L2E))}, v{mx}\nv_mul_f32 v{mn}, {hx(f2u(L2E))}, v{mn}')

LX, LE, LT = 144, 160, 176
vLPW, vLMK, vLL2E, vLRD, vLWP = 185, 184, 186, 187, 193
def softmax_body(S, X, E0, tmp, l2e, pw, off, hook0=None):
    for i in range(4): S(f'v_cndmask_b32 v{X+12+i}, v{X+12+i}, v{X+8+i}, {HI}')
    mx, mn, t0, t1 = tmp, tmp + 2, tmp + 1, tmp + 3
    minmax(S, X, mx, mn, t0, t1)
    for sign in range(2):
        E = E0 if sign == 0 else X
        s0, s1 = tmp + 4, tmp + 5
        for i in range(16):
            if sign == 0: S(f'v_fma_f32 v{E+i}, v{X+i}, {l2e}, v{mx}')
            else: S(f'v_fma_f32 v{E+i}, -v{X+i}, {l2e}, v{mn}')
        for i in range(16): S(f'v_exp_f32 v{E+i}, v{E+i}')
        S(f'v_add_f32 v{s1}, v{E+12}, v{E+13}\nv_add_f32 v{s0}, v{E}, v{E+1}\nv_add_f32 v{s1}, v{s1}, v{E+14}')
        S(f'v_add_f32 v{s0}, v{s0}, v{E+2}\nv_add_f32 v{s1}, v{s1}, v{E+15}\nv_add_f32 v{s0}, v{s0}, v{E+3}\nv_cndmask_b32 v{s1}, v{s1}, 0, {HI}')
        for i in range(4, 12): S(f'v_add_f32 v{s0 + (i & 1)}, v{s0 + (i & 1)}, v{E+i}')
        S(f'v_add_f32 v{s0}, v{s0}, v{s1}\nv_mov_b32 v{s1}, v{s0}\nv_permlane32_swap_b32 v{s0}, v{s1}\nv_add_f32 v{s0}, v{s0}, v{s1}\nv_rcp_f32 v{s0}, v{s0}')
        for i in range(16): S(f'v_mul_f32 v{E+i}, v{E+i}, v{s0}')
        for i in range(8): S(f'v_cvt_pk_bf16_f32 v{E+i}, v{E+2*i}, v{E+2*i+1}')
        for qd in range(3):
            S(f'ds_write_b64 v{pw}, {v(E+2*qd, 2)} offset:{off + sign*56 + qd*16}')
        g = Stream(); g(f's_mov_b64 exec, 0xffffffff\nds_write_b64 v{pw}, {v(E+6, 2)} offset:{off + sign*56 + 48}\ns_mov_b64 exec, -1')
        S.l.append(Group(g.l))
        if sign == 0 and hook0: S.ext(hook0)

def softmax_k(hook0):
    S = Stream()
    rw = LE
    S(f'ds_read_b128 {v(rw,4)}, v{vLRD}\nds_read_b128 {v(rw+4,4)}, v{vLRD} offset:1024')
    for st in range(2):
        for u in range(2):
            S(f'ds_read_b64_tr_b16 {v(rw + 8 + 4*st + 2*u, 2)}, v{vLWP} offset:{(16*st + 8*u)*56}')
    S(f'v_mfma_f32_32x32x16_bf16 {v(LX,16)}, {v(rw+8,4)}, {v(rw,4)}, 0')
    S(f'v_mfma_f32_32x32x16_bf16 {v(LX,16)}, {v(rw+12,4)}, {v(rw+4,4)}, {v(LX,16)}')
    softmax_body(S, LX, LE, LT, f'v{vLL2E}', vLPW, 0, hook0)
    return S.l

def scale_pack(acc, dst, masked=True):
    S = Stream()
    for i in range(16): S(f'v_mul_f32 v{acc+i}, v{acc+i}, v{vRM if (masked and i >= 12) else vR}')
    for i in range(8): S(f'v_cvt_pk_bf16_f32 v{dst+i}, v{acc+2*i}, v{acc+2*i+1}')
    return S.l

def phi_mfma(acc, c, b):
    return [Ins(f'v_mfma_f32_32x32x16_bf16 {v(acc,16)}, {v(WPHI+8*c,4)}, {v(b,4)}, 0'),
            Ins(f'v_mfma_f32_32x32x16_bf16 {v(acc,16)}, {v(WPHI+8*c+4,4)}, {v(b+4,4)}, {v(acc,16)}')]

def c_attn(S):
    vHO, vVW, vWP = vVS, vNRL, vSD
    P = Steps(False)
    e = Stream(); t = TT
    trb(e, vWP, 2, 56, t)
    e(f'v_add_u32 v{vWP}, {WPHI_L}, v{vWP}')
    for c in range(2):
        for st in range(2):
            for u in range(2):
                e(f'ds_read_b64_tr_b16 {v(WPHI + 8*c + 4*st + 2*u, 2)}, v{vWP} offset:{c*1568 + (16*st + 8*u)*56}')
    ka = ACC[0]
    vPW = vNM
    h0 = Stream()
    h0(f's_lshl_b32 s{sT0}, s{sWAVE}, 12\ns_add_u32 s{sT0}, s{sT0}, {SPARE}\nv_add_u32 v{vHO}, s{sT0}, v{vL16}')
    h0.ext(scale_pack(ka[0], T))
    h0(f'ds_write_b128 v{vHO}, {v(T,4)}\nds_write_b128 v{vHO}, {v(T+4,4)} offset:1024')
    f1 = h0.l + c_signal(EV_PK)
    f1b = e.l + scale_pack(ka[1], T)
    sm = Stream(); softmax_body(sm, ka[1], ka[0], TT, f's{sL2E}', vPW, 14336)
    t = Stream()
    t(f'v_and_b32 v{TT+3}, 31, v{vLANE}\ns_lshl_b32 s{sT0}, s{sWAVE}, 5\nv_add_u32 v{TT+3}, s{sT0}, v{TT+3}\nv_lshrrev_b32 v{TT+4}, 5, v{vLANE}\nv_lshlrev_b32 v{TT+4}, 3, v{TT+4}')
    t(f'v_mul_u32_u24 v{vVW}, 72, v{TT+3}\nv_add_u32 v{vVW}, v{vVW}, v{TT+4}\nv_add_u32 v{vVW}, {SLOT}, v{vVW}')
    t(f'v_mul_u32_u24 v{vPW}, 112, v{TT+3}\nv_add_u32 v{vPW}, v{vPW}, v{TT+4}')
    f3 = t.l
    g1, g2 = c_allflags(EV_C2, T, T + 4)
    k1, k2 = c_allflags(EV_C1, TT, TT + 4)
    f1 = k1 + f1
    assert all(not x.op.startswith('ds_write') for x in part(f1, 1, 1, 4) + part(f1, 2, 1, 4))
    f2 = f1b + f3
    def ps1(s):
        if 1 <= s <= 4: return part(f1, s, 1, 4)
        if 5 <= s <= 9: return part(f2, s, 5, 9)
        if 11 <= s <= 27: return part(sm.l[:Opt.smin], s, 11, 27) + (g1 if s == 24 else [])
        return []
    S.ext(P.stage(1, perstep=ps1, mid={3: k2, 10: phi_mfma(ka[1], 1, T), 27: g2}))
    stamp(S, 4)
    va = ACC[1]
    t = Stream()
    for c in range(2):
        t.ext(scale_pack(va[c], T, masked=False))
        d = T
        t(f'v_cndmask_b32 v{d+6}, v{d+6}, v{TT+7}, {HI}\nv_cndmask_b32 v{d+7}, v{d+7}, 0, {HI}')
        for qd in range(4): t(f'ds_write_b64 v{vVW}, {v(d+2*qd, 2)} offset:{c*9216 + qd*16}')
    vfill = [Ins(f'v_mov_b32 v{TT+7}, 0x3f80')] + t.l
    if Opt.smin < len(sm.l):
        S.ext(sm.l[Opt.smin:Opt.smin + 14]); S.ext(vfill); S.ext(sm.l[Opt.smin + 14:]); S.ext(c_signal(EV_V)); vfill = []
        stamp(S, 11)
    else:
        vfill += c_signal(EV_V)
    tp = Stream(); tag_prefetch(tp, vTAG)
    def ps2(s):
        if 1 <= s <= Opt.vsteps: return part(vfill, s, 1, Opt.vsteps)
        if s == 20: return tp.l
        return []
    S.ext(P.stage(2, perstep=ps2))
    stamp(S, 5)
    S.ext(c_signal(EV_END))
    qa = ACC[0]
    S(f'v_mov_b32 v{TT}, s{sL2E}')
    S.ext(scale_pack(qa[0], T)); S.ext(phi_mfma(qa[0], 0, T)); S.ext(scale_pack(qa[1], AF + 16)); S.ext(phi_mfma(qa[1], 1, AF + 16))
    out_addr(S, XT, 32)
    for c in range(2):
        X = qa[c]; E = va[c]; d = AF + 16 * c
        for i in range(4): S(f'v_cndmask_b32 v{X+12+i}, v{X+12+i}, v{X+8+i}, {HI}')
        mx, mn = TT + 4, TT + 6
        minmax(S, X, mx, mn, TT + 5, TT + 7)
        for i in range(0, 16, 2): S(f'v_pk_fma_f32 {v(E+i,2)}, {v(X+i,2)}, {v(TT,2)}, {v(mx,2)} op_sel_hi:[1,0,0]')
        for i in range(16): S(f'v_exp_f32 v{E+i}, v{E+i}')
        for i in range(8): S(f'v_cvt_pk_bf16_f32 v{d+i}, v{E+2*i}, v{E+2*i+1}')
        for i in range(0, 16, 2): S(f'v_pk_fma_f32 {v(X+i,2)}, {v(X+i,2)}, {v(TT,2)}, {v(mn,2)} op_sel_hi:[1,0,0] neg_lo:[1,0,0] neg_hi:[1,0,0]')
        for i in range(16): S(f'v_exp_f32 v{X+i}, v{X+i}')
        for i in range(8): S(f'v_cvt_pk_bf16_f32 v{d+8+i}, v{X+2*i}, v{X+2*i+1}')
    stamp(S, 6)
    if Opt.oprio: S('s_setprio 2')
    tag_get(S, vTAG)
    PB, KF = 16, 160
    S(f's_lshl_b32 s{sT0}, s{sIDX}, 10\ns_add_u32 s{sT0}, s{sT0}, {WS_FK}\ns_lshl_b32 s{sT1}, s{sIDX}, 13\ns_add_u32 s{sT1}, s{sT1}, {WS_KVF}\ns_add_u32 s{sT2}, s{sT1}, 4096')
    S(f's_lshl_b32 s{sFS}, s{sRB}, 2\ns_add_u32 s{sFS}, s{sFS}, s{sWAVE}\ns_lshl_b32 s{sFS}, s{sFS}, 3\ns_add_u32 s{sFS}, s{sFS}, s{sIDX}\ns_lshl_b32 s{sFS}, s{sFS}, 12\ns_add_u32 s{sFS}, s{sFS}, {WS_PQ}')
    S(f'v_lshlrev_b32 v8, 7, v{vLANE}\nv_lshlrev_b32 v13, 2, v{vLANE}\nv_add_u32 v13, {CTL}, v13\nv_mov_b32 v9, 4')
    g_ = CN_W2 if False else CN_KG
    S.ext(cnt_read(g_, vCT)); S.ext(cnt_check(g_, vCT, 1))
    stamp(S, 8)
    again, oth, done = newlab('kv'), newlab('kv'), newlab('kv')
    S(f's_waitcnt vmcnt(0)\ns_mov_b32 s{sBND}, 0\ns_cmp_lg_u32 s{sW4}, 0\ns_cbranch_scc1 {oth}')
    raw(S, f'{again}:\ns_mov_b64 exec, 0xff\nbuffer_load_dword v10, v8, {srd(SRD_WS)}, s{sT0} offen sc1\ns_waitcnt vmcnt(0)\nv_cmp_ne_u32 vcc, s{sTAG}, v10\ns_nop 1\ns_cbranch_vccz {done}\n'
           f's_add_u32 s{sBND}, s{sBND}, 1\ns_cmp_gt_u32 s{sBND}, 0x400000\ns_cbranch_scc1 {done}\ns_sleep {Opt.rsleep}\ns_branch {again}\n'
           f'{done}:\ns_mov_b64 exec, 15\nds_write_b32 v13, v9 offset:{128 + 16*CN_KV}\ns_mov_b64 exec, -1\n{oth}:')
    S.ext(cnt_read(CN_KV, vCT)); S.ext(cnt_check(CN_KV, vCT, 0))
    stamp(S, 9)
    for j in range(8):
        S(f'buffer_load_dwordx4 {v(KF+4*j,4)}, v{vL16}, {srd(SRD_WS)}, s{sT1 + j//4} offen offset:{(j%4)*1024} sc1')
    for c in range(2):
        S.ext(num_mfma(PB + 32 * c, KF + 16 * c, AF + 16 * c))
    for c in range(2):
        S.ext(onorm(PB + 32 * c, AF + 16 * c))
        for hh in range(2):
            S(f'buffer_store_dwordx4 {v(AF+16*c+4*hh,4)}, v{vL16}, {srd(SRD_WS)}, s{sFS} offen offset:{c*2048 + hh*1024} sc1', tok='st')
    stamp(S, 10)

def num_mfma(aP, kb, ph):
    aN = aP + 16
    return [Ins(f'v_mfma_f32_32x32x16_bf16 {v(aP,16)}, {v(kb,4)}, {v(ph,4)}, 0'),
            Ins(f'v_mfma_f32_32x32x16_bf16 {v(aN,16)}, {v(kb+8,4)}, {v(ph+8,4)}, 0'),
            Ins(f'v_mfma_f32_32x32x16_bf16 {v(aP,16)}, {v(kb+4,4)}, {v(ph+4,4)}, {v(aP,16)}'),
            Ins(f'v_mfma_f32_32x32x16_bf16 {v(aN,16)}, {v(kb+12,4)}, {v(ph+12,4)}, {v(aN,16)}')]
def onorm(aP, ph):
    S = Stream()
    aN = aP + 16
    rP, rN, dn, a, b = TT, TT + 1, TT + 2, TT + 3, TT + 4
    S(f'v_rcp_f32 v{rP}, v{aP+13}\nv_rcp_f32 v{rN}, v{aN+13}')
    S(f'v_mov_b32 v{dn}, {hx(f2u(1e-6))}\nv_fmac_f32 v{dn}, v{aP+12}, v{rP}\nv_fmac_f32 v{dn}, v{aN+12}, v{rN}\nv_rcp_f32 v{dn}, v{dn}')
    S(f'v_mul_f32 v{rP}, v{rP}, v{dn}\nv_mul_f32 v{rN}, v{rN}, v{dn}\nv_mov_b32 v{a}, v{rP}\nv_mov_b32 v{b}, v{rN}')
    S(f'v_permlane32_swap_b32 v{rP}, v{a}\nv_permlane32_swap_b32 v{rN}, v{b}')
    for i in range(16): S(f'v_mul_f32 v{aP+i}, v{aP+i}, v{a}')
    for i in range(16): S(f'v_fmac_f32 v{aP+i}, v{aN+i}, v{b}')
    for i in range(8): S(f'v_cvt_pk_bf16_f32 v{ph+i}, v{aP+2*i}, v{aP+2*i+1}')
    S(f'v_cndmask_b32 v{ph+6}, v{ph+6}, 0, {HI}\nv_cndmask_b32 v{ph+7}, v{ph+7}, 0, {HI}')
    return S.l

def wo_dma(S, va, vb, thr=None):
    S(f's_lshl_b32 s{sT2}, s{sW4}, 14\ns_add_u32 s{sT2}, s{sT2}, {A_BASE}\ns_lshl_b32 s{sU0}, s{sCB}, 7')
    for hd in range(4):
        S(f's_add_u32 s{sT0}, s{sCB}, {hd}\ns_and_b32 s{sT0}, s{sT0}, 3\ns_lshl_b32 s{sT1}, s{sW4}, 2\ns_add_u32 s{sT0}, s{sT0}, s{sT1}\ns_mul_i32 s{sT0}, s{sT0}, {28*896}\ns_add_u32 s{sT0}, s{sT0}, s{sU0}')
        for i in range(4):
            S(f's_add_u32 m0, s{sT2}, {hd*4096 + i*1024}')
            if thr: S(f's_waitcnt vmcnt({thr})')
            if i == 2: S(f's_add_u32 s{sT0}, s{sT0}, {16*896}')
            if hd == 3 and i == 3: S(f's_cmp_eq_u32 s{sW4}, 3\ns_cselect_b32 exec_hi, 0, -1')
            S(f'buffer_load_dwordx4 v{va if i % 2 == 0 else vb}, {srd(SRD_WO)}, s{sT0} offen lds', tok='wo')
    S('s_mov_b64 exec, -1')

PHI = 16; PN = 144; XT = 236
vO = 3; vVW2 = [6, 7]
def out_addr(S, xt, off):
    S(f'v_and_b32 v8, 31, v{vLANE}\nv_mul_u32_u24 v{vO}, 896, v8\nv_lshrrev_b32 v8, 5, v{vLANE}\nv_lshl_add_u32 v{vO}, v8, 4, v{vO}')
    S(f's_and_b32 s{sT0}, s{sW4}, 1\ns_lshl_b32 s{sT1}, s{sTB}, 1\ns_add_u32 s{sT0}, s{sT0}, s{sT1}\ns_mul_i32 s{sFT}, s{sT0}, {32*896}')
    S(f's_lshr_b32 s{sT0}, s{sW4}, 1\ns_lshl_b32 s{sT0}, s{sT0}, 6\ns_add_u32 s{sFT}, s{sFT}, s{sT0}\ns_lshl_b32 s{sT0}, s{sCB}, 7\ns_add_u32 s{sFT}, s{sFT}, s{sT0}')
    S(f'buffer_load_dwordx4 {v(xt,4)}, v{vO}, {srd(SRD_X)}, s{sFT} offen offset:{off}')

def final_half(S, isA, acc, xt):
    own = acc + 48 + (8 if isA else 0)
    oth = acc + 48 + (0 if isA else 8)
    reg = A_REG if isA else F_REG; base = A_BASE if isA else 0
    ho = 2048 if isA else 0
    W = [16, 17, 18, 19]
    S(f's_mul_i32 s{sT3}, s{sW4}, {reg}')
    for vq in range(4):
        S(f's_xor_b32 s{sT0}, s{sW4}, {vq ^ 3}\ns_lshl_b32 s{sT0}, s{sT0}, 12\ns_add_u32 s{sT0}, s{sT0}, s{sT3}\ns_add_u32 s{sT0}, s{sT0}, {base}\nv_add_u32 v{W[vq]}, s{sT0}, v{vL16}')
    for i in range(2):
        S(f'ds_write_b128 v{W[3]}, {v(oth+4*i,4)} offset:{(2048 - ho) + i*1024}')
    for vq in range(3):
        for i in range(4):
            S(f'ds_write_b128 v{W[vq]}, {v(acc+16*vq+4*i,4)} offset:{i*1024}')
    S(f's_lshl_b32 s{sT2}, s{sW4}, 12\ns_add_u32 s{sT2}, s{sT2}, {ho}')
    for k in range(1, 4):
        S(f's_xor_b32 s{sT0}, s{sW4}, {k}\ns_mul_i32 s{sT0}, s{sT0}, {reg}\ns_add_u32 s{sT0}, s{sT0}, s{sT2}\ns_add_u32 s{sT0}, s{sT0}, {base}\nv_add_u32 v{19+k}, s{sT0}, v{vL16}')
    oreg = F_REG if isA else A_REG; obase = 0 if isA else A_BASE
    S(f's_add_u32 s{sT0}, s{sT2}, {obase}\nv_add_u32 v23, s{sT0}, v{vL16}\nv_add_u32 v24, {2*oreg}, v23')
    S(f'v_permlane32_swap_b32 v{xt}, v{xt+2}\nv_permlane32_swap_b32 v{xt+1}, v{xt+3}')
    E = 96
    for i in range(4): S(f'v_lshlrev_b32 v{E+2*i}, 16, v{xt+i}\nv_and_b32 v{E+2*i+1}, 0xffff0000, v{xt+i}')
    S('s_waitcnt lgkmcnt(0)\ns_barrier')
    stamp(S, 13 if isA else 14)
    O, P_ = 32, 64
    rdO = [f'ds_read_b128 {v(O+8*f+4*i,4)}, v{23 + f//2} offset:{(f%2)*oreg + i*1024}' for f in range(4) for i in range(2)]
    rdP = [f'ds_read_b128 {v(P_+8*k+4*i,4)}, v{20+k} offset:{i*1024}' for k in range(3) for i in range(2)]
    for r in (rdO + rdP if isA else rdP + rdO): S(r)
    def sumO():
        for i in range(8): S(f'v_add_f32 v{O+i}, v{O+i}, v{O+8+i}')
        for i in range(8): S(f'v_add_f32 v{O+16+i}, v{O+16+i}, v{O+24+i}')
        for i in range(8): S(f'v_add_f32 v{O+i}, v{O+i}, v{O+16+i}')
    def sumP():
        for i in range(8): S(f'v_add_f32 v{P_+i}, v{P_+i}, v{own+i}')
        for i in range(8): S(f'v_add_f32 v{P_+8+i}, v{P_+8+i}, v{P_+16+i}')
        for i in range(8): S(f'v_add_f32 v{P_+i}, v{P_+i}, v{P_+8+i}')
    G, Sg = (O, P_) if isA else (P_, O)
    (sumO if isA else sumP)()
    Q = 104
    for i in range(8): S(f'v_mul_f32 v{Q+i}, {hx(f2u(-L2E))}, v{G+i}')
    for i in range(8): S(f'v_exp_f32 v{Q+i}, v{Q+i}')
    (sumP if isA else sumO)()
    for i in range(8): S(f'v_add_f32 v{Q+i}, 1.0, v{Q+i}')
    for i in range(8): S(f'v_rcp_f32 v{Q+i}, v{Q+i}')
    for i in range(8): S(f'v_mul_f32 v{G+i}, v{G+i}, v{Sg+i}')
    for i in range(8): S(f'v_fmac_f32 v{E+i}, v{G+i}, v{Q+i}')
    for i in range(4): S(f'v_cvt_pk_bf16_f32 v{xt+i}, v{E+2*i}, v{E+2*i+1}')
    S(f'v_permlane32_swap_b32 v{xt}, v{xt+2}\nv_permlane32_swap_b32 v{xt+1}, v{xt+3}')
    S(f'buffer_store_dwordx4 {v(xt,4)}, v{vO}, {srd(SRD_OUT)}, s{sFT} offen offset:{32 if isA else 0}')

def c_publish(S, attn, tile):
    if tile and not attn: S.ext(c_signal(EV_END))
    S(f's_lshl_b32 s{sFS}, s{sRB}, 1\ns_lshr_b32 s{sT1}, s{sW4}, 1\ns_add_u32 s{sFS}, s{sFS}, s{sT1}\ns_lshl_b32 s{sFS}, s{sFS}, 15\ns_lshl_b32 s{sT1}, s{sROLE}, 8\ns_add_u32 s{sFS}, s{sFS}, s{sT1}')
    S(f's_and_b32 s{sT1}, s{sW4}, 1\ns_lshl_b32 s{sT1}, s{sT1}, 7\ns_add_u32 s{sFS}, s{sFS}, s{sT1}\ns_add_u32 s{sFS}, s{sFS}, {WS_FH}')
    if tile:
        lane_consts_tr(S, vVW2, 8, 64, 'B')
        S(f's_lshr_b32 s{sT0}, s{sW4}, 1\ns_lshl_b32 s{sT3}, s{sT0}, 15\ns_add_u32 s{sT3}, s{sT3}, {A_BASE}\ns_xor_b32 s{sT1}, s{sT0}, 1\ns_lshl_b32 s{sT1}, s{sT1}, 6')
        S(f'v_add_u32 v{vVW2[0]}, s{sT3}, v{vVW2[0]}\nv_xor_b32 v{vVW2[0]}, s{sT1}, v{vVW2[0]}\nv_xor_b32 v{vVW2[1]}, 64, v{vVW2[0]}')
    if not attn: tag_get(S, vTAG)
    S.wait('st')
    flag_store(S, sFS, TT, 7, 12)
    if attn and Opt.oprio: S('s_setprio 0')
    stamp(S, 7)
    if tile and not attn:
        out_addr(S, XT, 32)

W2R = 16; FACC = 144; HR = 208
vLW, vLS, vL2 = 3, 4, 5
def swz_voff(S, dst, pitch, tmp):
    S(f'v_lshrrev_b32 v{tmp}, 3, v{vLANE}')
    S(f'v_mul_lo_u32 v{dst}, v{tmp}, {pitch}' if isinstance(pitch, str) else f'v_mul_u32_u24 v{dst}, {pitch}, v{tmp}')
    S(f'v_bfe_u32 v{tmp}, v{vLANE}, 4, 1\nv_lshlrev_b32 v{tmp}, 2, v{tmp}\nv_and_b32 v{tmp+1}, 7, v{vLANE}\nv_xor_b32 v{tmp}, v{tmp}, v{tmp+1}\nv_lshl_add_u32 v{dst}, v{tmp}, 4, v{dst}')
def flat(l): return [x for y in l for x in y]
def sprinkle(main, units, start=0):
    out = []; n = len(main) - start; k = len(units); j = 0
    for i, x in enumerate(main):
        while j < k and i >= start and (j + 0.5) * n / max(k, 1) <= i - start and x.kind in ('valu', 'trans'):
            out += units[j]; j += 1
        out.append(x)
    return out + flat(units[j:])

def l_phase1(S, ffn, tile):
    sBLK, sP64, sP448, sP32, sW2, sK2 = sU0, sU1, sU2, sU3, sU4, sU5
    S(f's_mul_i32 s{sFS}, s{sW4}, s{sPITCH}\ns_lshl_b32 s{sFS}, s{sFS}, 3')
    S(f's_lshl_b32 s{sT3}, s{sW4}, 10\ns_lshl_b32 s{sP64}, s{sPITCH}, 6\ns_lshl_b32 s{sP32}, s{sPITCH}, 5\ns_mul_i32 s{sP448}, s{sPITCH}, 448\ns_mul_i32 s{sBLK}, s{sP64}, s{sROT1}')
    def dma_half(h):
        units = []
        st = h // 2
        for k in range(7):
            St = Stream()
            kk = (h % 2) * 7 + k
            St(f's_add_u32 m0, s{sT3}, {(half_base(h) + k*4096) if h != 1 else (SPARE + k*4096 if k < 4 else (k - 4)*4096)}')
            if kk % 2 == 0:
                St(f's_add_u32 s{sT0}, s{sBLK}, s{sFS}\ns_add_u32 s{sT0}, s{sT0}, s{sCOL[st]}')
            else:
                if k == 0: St(f's_add_u32 s{sT0}, s{sBLK}, s{sFS}\ns_add_u32 s{sT0}, s{sT0}, s{sCOL[st]}')
                St(f's_add_u32 s{sT0}, s{sT0}, s{sP32}')
                wrap_inc(St, sBLK, f's{sP64}', f's{sP448}')
            St(f'buffer_load_dwordx4 v{vLW}, {srd(SRD_W)}, s{sT0} offen lds', tok=('h', h if not (h == 1 and k >= 4) else CN_H1B))
            units.append(St.l)
        return units
    def sig(h):
        S.wait(('h', h))
        if h < 5: stamp(S, 2 + h)
        l_signal(S, h)
    if Opt.cpf:
        lab = newlab('pc')
        S(f's_getpc_b64 s[72:73]\n{lab}:\ns_sub_u32 s72, s72, {lab} - {NAME}\ns_subb_u32 s73, s73, 0')
        S(f's_lshl_b32 s{sT0}, s{sI}, 2\ns_add_u32 s{sT0}, s{sT0}, s{sW4}\ns_lshl_b32 s{sT0}, s{sT0}, 2\nv_add_u32 v8, s{sT0}, v{vLANE}\nv_lshlrev_b32 v8, 7, v8\nv_min_u32 v8, L_end - {NAME}, v8')
        S(f's_mov_b64 exec, 15\nglobal_load_dword v200, v8, s[72:73]\ns_mov_b64 exec, -1')
    S('s_barrier')
    S.ext(flat(dma_half(0)))
    if not ffn:
        S(f's_add_u32 m0, s{sT3}, {WPHI_L}\ns_mul_i32 s{sT0}, s{sIDX}, 3136\ns_add_u32 s{sT0}, s{sT0}, s{sT3}\ns_cmp_eq_u32 s{sW4}, 3\ns_cselect_b32 exec_hi, 0, -1')
        S(f'buffer_load_dwordx4 v{vL16}, {srd(SRD_WPHI)}, s{sT0} offen lds', tok=('h', 0))
        S('s_mov_b64 exec, -1')
    h1 = dma_half(1)
    S.ext(flat(h1[:4]))
    if Opt.tlb:
        st_ = Opt.tlb
        S(f'v_lshlrev_b32 v8, {st_}, v{vLANE}')
        S(f's_mul_i32 s{sT0}, s{sTB}, {224*K1}\ns_lshl_b32 s{sT1}, s{sTB}, 17\ns_add_u32 s{sT1}, s{sT1}, {WS_PQ}\ns_cmp_eq_u32 s{sW4}, 1\ns_cselect_b32 s{sT0}, s{sT1}, s{sT0}')
        S(f's_mov_b32 s{sT1}, {WS_KVF}\ns_cmp_eq_u32 s{sW4}, 2\ns_cselect_b32 s{sT0}, s{sT1}, s{sT0}')
        S(f's_mul_i32 s{sT1}, s{sRB}, {448*K1}\ns_cmp_eq_u32 s{sW4}, 3\ns_cselect_b32 s{sT0}, s{sT1}, s{sT0}')
        n_ = min(64, (448 * K1) >> st_)
        S(f's_mov_b32 exec_lo, {hex(((1 << n_) - 1) & 0xffffffff)}\ns_mov_b32 exec_hi, {hex(((1 << n_) - 1) >> 32)}')
        S(f'buffer_load_dword v200, v8, {srd(SRD_WS)}, s{sT0} offen sc1\ns_mul_i32 s{sT1}, s{sTB}, {64*896}\ns_mov_b64 exec, 3\nbuffer_load_dword v200, v8, {srd(SRD_OUT)}, s{sT1} offen\nbuffer_load_dword v200, v8, {srd(SRD_W2)}, 0 offen\nbuffer_load_dword v200, v8, {srd(SRD_WO)}, 0 offen\ns_mov_b64 exec, -1')
    stamp(S, 'e5')
    lab = newlab('nt')
    S(f's_or_b32 s{sT0}, s2, s{sW4}\ns_cmp_lg_u32 s{sT0}, 0\ns_cbranch_scc1 {lab}')
    raw(S, f's_mov_b32 s{sT0}, {WS_TAG}\nv_mov_b32 v9, 0\ns_mov_b64 exec, 1\nbuffer_load_dword v8, v9, {srd(SRD_WS)}, s{sT0} offen sc1\ns_waitcnt vmcnt(0)\n'
           f'v_add_u32 v8, 1, v8\nv_max_u32 v8, 1, v8\ns_nop 1\nbuffer_store_dword v8, v9, {srd(SRD_WS)}, s{sT0} offen sc1\nbuffer_store_dword v8, v9, {srd(SRD_DBG)}, 0 offen sc1\ns_waitcnt vmcnt(0)\ns_mov_b64 exec, -1\n{lab}:')
    S(f'v_lshlrev_b32 v{vLC}, 2, v{vLANE}\nv_add_u32 v{vLC}, {CTL}, v{vLC}\nv_mov_b32 v{vLONE}, 1\nv_mov_b32 v{vLP+4}, {CTL}')
    if ffn:
        S(f'v_lshrrev_b32 v8, 2, v{vLANE}\nv_mul_u32_u24 v{vLS}, 3584, v8\nv_and_b32 v8, 3, v{vLANE}\nv_lshl_add_u32 v{vLS}, v8, 4, v{vLS}')
    else:
        S(f'v_and_b32 v8, 31, v{vLANE}\ns_lshl_b32 s{sT0}, s{sW4}, 5\nv_add_u32 v8, s{sT0}, v8\nv_lshrrev_b32 v9, 5, v{vLANE}\nv_lshlrev_b32 v9, 3, v9')
        S(f'v_mul_u32_u24 v{vLPW}, 112, v8\nv_add_u32 v{vLPW}, v{vLPW}, v9')
        S(f'v_cndmask_b32 v{vLMK}, 1.0, 0, {HI}\nv_mov_b32 v{vLL2E}, s{sL2E}')
        trb(S, vLWP, 2, 56, 8)
        S(f'v_add_u32 v{vLWP}, {WPHI_L}, v{vLWP}')
    S(f's_lshl_b32 s{sT0}, s{sW4}, 12\ns_add_u32 s{sT0}, s{sT0}, {SPARE}\nv_add_u32 v{vLRD}, s{sT0}, v{vL16}')
    if tile:
        S(f's_mov_b32 s{sT1}, 896'); swz_voff(S, vL2, f's{sT1}', 8)
        lane_consts_tr(S, vVW2, 8, 64, 'B')
        S(f's_xor_b32 s{sT1}, s{sW4}, 3\ns_lshr_b32 s{sT1}, s{sT1}, 1\ns_lshl_b32 s{sT1}, s{sT1}, 6\nv_xor_b32 v{vVW2[0]}, s{sT1}, v{vVW2[0]}\nv_xor_b32 v{vVW2[1]}, 64, v{vVW2[0]}')
        S(f's_mul_i32 s{sW2}, s{sW4}, {448*896}\ns_lshl_b32 s{sT2}, s{sCB}, 7\ns_add_u32 s{sW2}, s{sW2}, s{sT2}\ns_mul_i32 s{sK2}, s{sROT2}, {16*896}')
        S(f'v_add_u32 v13, {8*896}, v{vL2}')
    def w2stage(base, stride, ns):
        if not tile: return
        S(f's_mul_i32 s{sT2}, s{sW4}, {stride}\ns_add_u32 s{sT2}, s{sT2}, {base}\nv_add_u32 v9, s{sT2}, v{vVW2[0]}\nv_add_u32 v10, s{sT2}, v{vVW2[1]}')
        def dma(ks):
            o = (ks % ns) * 2048
            S(f's_add_u32 m0, s{sT2}, {o}\ns_add_u32 s{sT1}, s{sW2}, s{sK2}')
            if ks >= ns: S.wait(('wr', ks - ns))
            S(f'buffer_load_dwordx4 v{vL2}, {srd(SRD_W2)}, s{sT1} offen lds', tok=('w', ks))
            S(f's_add_u32 m0, s{sT2}, {o + 1024}')
            wrap_inc(S, sK2, 16 * 896, 448 * 896)
            S(f'buffer_load_dwordx4 v13, {srd(SRD_W2)}, s{sT1} offen lds', tok=('w', ks))
        d = ns - 1
        for ks in range(min(d, Opt.nreg)): dma(ks)
        for ks in range(Opt.nreg):
            if ks + d < Opt.nreg: dma(ks + d)
            S.wait(('w', ks))
            o = (ks % ns) * 2048; b = W2R + 8 * ks
            for c in range(2):
                for u in range(2):
                    S(f'ds_read_b64_tr_b16 {v(b + 4*c + 2*u, 2)}, v{9+c} offset:{o + 1024*u}', tok=('wr', ks))
            if not ffn and ks in (0, 8): stamp(S, 3 + ks // 8)
    def w2raw(lo, hi):
        if not tile: return
        for ks in range(lo, hi):
            S(f's_add_u32 s{sT1}, s{sW2}, s{sK2}')
            S(f'buffer_load_dwordx4 {v(W2R+8*ks,4)}, v{vL2}, {srd(SRD_W2)}, s{sT1} offen')
            S(f'buffer_load_dwordx4 {v(W2R+8*ks+4,4)}, v13, {srd(SRD_W2)}, s{sT1} offen')
            wrap_inc(S, sK2, 16 * 896, 448 * 896)
    def tr(lo, hi):
        if not tile: return
        if lo == 0: S(f's_lshl_b32 s{sT0}, s{sW4}, 12\ns_add_u32 s{sT0}, s{sT0}, {SPARE}\nv_add_u32 v9, s{sT0}, v{vVW2[0]}\nv_add_u32 v10, s{sT0}, v{vVW2[1]}')
        for ks in range(lo, hi):
            o = (ks % 2) * 2048; b = W2R + 8 * ks
            S(f'ds_write_b128 v{vLRD}, {v(b,4)} offset:{o}\nds_write_b128 v{vLRD}, {v(b+4,4)} offset:{o+1024}')
            for c in range(2):
                for u in range(2):
                    S(f'ds_read_b64_tr_b16 {v(b + 4*c + 2*u, 2)}, v{9+c} offset:{o + 1024*u}')
    DUM = 200
    def pf(srd_, voff, soff, n):
        S(f's_mov_b32 exec_hi, {hex((1 << (n - 32)) - 1)}\nbuffer_load_dword v{DUM}, v{voff}, {srd(srd_)}, s{soff} offen\ns_mov_b32 exec_hi, -1', tok='pf')
    if Opt.wpf:
        S(f'v_mul_lo_u32 v14, v{vLANE}, s{sPITCH}\ns_and_b32 s{sT0}, s{sI}, 3\ns_mul_i32 s{sT0}, s{sT0}, 112')
        if ffn:
            S(f's_mul_i32 s{sT0}, s{sT0}, s{sPITCH}\ns_lshl_b32 s{sT1}, s{sW4}, 7\ns_add_u32 s{sT1}, s{sT1}, s{sCOL[0]}\ns_cmp_eq_u32 s{sW4}, 3\ns_cselect_b32 s{sT1}, s{sCOLS}, s{sT1}\ns_add_u32 s{sT0}, s{sT0}, s{sT1}')
            pf(SRD_W, 14, sT0, 56)
            S(f's_add_u32 s{sT0}, s{sT0}, {56*3584}')
            pf(SRD_W, 14, sT0, 56)
        else:
            S(f's_lshr_b32 s{sT1}, s{sW4}, 1\ns_mul_i32 s{sT1}, s{sT1}, 56\ns_add_u32 s{sT0}, s{sT0}, s{sT1}\ns_mul_i32 s{sT0}, s{sT0}, s{sPITCH}\ns_and_b32 s{sT1}, s{sW4}, 1\ns_mul_i32 s{sT1}, s{sT1}, 124\ns_add_u32 s{sT0}, s{sT0}, s{sT1}')
            for st in range(3):
                S(f's_add_u32 s{sT1}, s{sT0}, s{sCOL[st]}')
                pf(SRD_W, 14, sT1, 56)
    def w2_prefetch():
        if not Opt.w2pf: return
        S(f'v_lshlrev_b32 v14, 7, v{vLANE}\ns_lshl_b32 s{sT0}, s{sI}, 2\ns_add_u32 s{sT0}, s{sT0}, s{sW4}\ns_mul_i32 s{sT1}, s{sT0}, {98*128}')
        pf(SRD_W2, 14, sT1, 49)
        S(f's_add_u32 s{sT1}, s{sT1}, {49*128}')
        pf(SRD_W2, 14, sT1, 49)
        S(f's_mul_i32 s{sT1}, s{sT0}, {25*128}\ns_mov_b64 exec, 0x1ffffff\nbuffer_load_dword v{DUM}, v14, {srd(SRD_WO)}, s{sT1} offen\ns_mov_b64 exec, -1', tok='pf')
    def gpf(which):
        if not Opt.gpf: return
        S(f's_sub_u32 s{sT0}, s2, 128\ns_lshl_b32 s{sT0}, s{sT0}, 2\ns_add_u32 s{sT0}, s{sT0}, s{sW4}\nv_lshlrev_b32 v14, 7, v{vLANE}')
        S(f's_mov_b64 s[72:73], s[66:67]\ns_mov_b32 s74, {448*2688}\ns_mov_b32 s75, 0x20000') if False else None
        for (lo, n, size) in ((sKA_QKV, 10, 448*2688), (sKA_W1, 13, 448*3584), (SRD_W2, 25, None), (SRD_WO, 7, None))[which]:
            if size:
                S(f's_mov_b64 s[76:77], s[{lo}:{lo+1}]\ns_mov_b32 s78, {size}\ns_mov_b32 s79, 0x20000'); d = 76
            else: d = lo
            S(f's_mul_i32 s{sT1}, s{sT0}, {n*128}\ns_mov_b64 exec, {hex((1 << n) - 1)}\nbuffer_load_dword v{DUM}, v14, {srd(d)}, s{sT1} offen\ns_mov_b64 exec, -1', tok='pf')
    if Opt.gpf == 2: gpf(slice(0, 2))
    def wo_prefetch():
        if not Opt.wopf: return
        S(f'v_lshlrev_b32 v14, 7, v{vLANE}\ns_lshl_b32 s{sT0}, s{sI}, 2\ns_add_u32 s{sT0}, s{sT0}, s{sW4}')
        S(f's_mul_i32 s{sT1}, s{sT0}, {25*128}\ns_mov_b64 exec, 0x1ffffff\nbuffer_load_dword v{DUM}, v14, {srd(SRD_WO)}, s{sT1} offen\ns_mov_b64 exec, -1', tok='pf')
    l_wait(S, EV_XFREE)
    stamp(S, 1)
    S(f's_add_u32 s{sT0}, s{sBLK}, s{sFS}\ns_add_u32 s{sT0}, s{sT0}, s{sCOL[0]}')
    S.ext(flat(h1[4:])); sig(0)
    h2 = dma_half(2)
    S.ext(flat(h2[:3])); sig(1); S.ext(flat(h2[3:5])); sig(CN_H1B); S.ext(flat(h2[5:]))
    h3 = dma_half(3)
    S.ext(flat(h3[:3])); sig(2); S.ext(flat(h3[3:]))
    ltag_issue(S)
    h4 = dma_half(4)
    S.ext(flat(h4[:3])); sig(3); S.ext(flat(h4[3:]))
    if ffn:
        gpf(slice(2, 4))
    if ffn:
        sig(4)
        l_wait(S, EV_C0)
        S.ext(flat(dma_half(5)))
        sig(5)
        ltag_get(S)
        l_wait(S, EV_C1)
        S(f's_lshl_b32 s{sFS}, s{sFS}, 1\ns_add_u32 s{sFS}, s{sFS}, s{sCOLS}')
        for k in range(7):
            S(f's_add_u32 m0, s{sT3}, {k*4096}\ns_add_u32 s{sT0}, s{sBLK}, s{sFS}')
            wrap_inc(S, sBLK, f's{sP64}', f's{sP448}')
            S(f'buffer_load_dwordx4 v{vLS}, {srd(SRD_W)}, s{sT0} offen lds', tok=('h', 6))
        if Opt.l2pf:
            S(f'v_lshlrev_b32 v14, 7, v{vLANE}\ns_sub_u32 s{sT0}, s{sI}, 16\ns_lshl_b32 s{sT0}, s{sT0}, 2\ns_add_u32 s{sT0}, s{sT0}, s{sW4}\ns_mul_i32 s{sT1}, s{sT0}, {196*128}\ns_mov_b32 exec_hi, 0x1ffff')
            for i in range(4):
                S(f'buffer_load_dword v{DUM}, v14, {srd(SRD_W2)}, s{sT1} offen\ns_add_u32 s{sT1}, s{sT1}, {49*128}', tok='pf')
            S(f's_mul_i32 s{sT1}, s{sT0}, {49*128}\nbuffer_load_dword v{DUM}, v14, {srd(SRD_WO)}, s{sT1} offen\ns_mov_b64 exec, -1', tok='pf')
        sig(6)
        if Opt.ppf:
            n_ = Opt.ppf
            S(f'v_lshlrev_b32 v14, 7, v{vLANE}\ns_sub_u32 s{sT0}, s{sI}, 16\ns_lshl_b32 s{sT0}, s{sT0}, 2\ns_add_u32 s{sT0}, s{sT0}, s{sW4}\ns_mov_b64 exec, {hex((1 << n_) - 1)}')
            for (d, tot) in ((SRD_W2, 196), (SRD_WO, 49)):
                lab = newlab('pp')
                S(f's_mul_i32 s{sT1}, s{sT0}, {tot*128}\ns_mov_b32 s{sT2}, {(tot + n_ - 1) // n_}')
                raw(S, f'{lab}:\nbuffer_load_dword v{DUM}, v14, {srd(d)}, s{sT1} offen\ns_add_u32 s{sT1}, s{sT1}, {n_*128}\ns_sleep {Opt.pps}\ns_waitcnt vmcnt({Opt.ppw})\ns_sub_u32 s{sT2}, s{sT2}, 1\ns_cmp_lg_u32 s{sT2}, 0\ns_cbranch_scc1 {lab}')
            S('s_mov_b64 exec, -1')
        elif not Opt.l2pf: wo_prefetch()
        l_wait(S, EV_C3)
        w2stage(SLOT, 14 * K1, Opt.nstg)
        stamp(S, 11)
    else:
        l_wait(S, EV_C0)
        S.ext(flat(dma_half(5)))
        kA, kB, KA = 194, 195, LX
        trb(S, kA, 3, 112, 8); trb(S, kB, 3, 72, 8)
        S(f's_lshr_b32 s{sT0}, s{sW4}, 1\ns_and_b32 s{sT1}, s{sW4}, 1\ns_mul_i32 s{sT2}, s{sT0}, 14336\ns_mul_i32 s{sT1}, s{sT1}, 56\ns_add_u32 s{sT2}, s{sT2}, s{sT1}\nv_add_u32 v{kA}, s{sT2}, v{kA}')
        S(f's_mul_i32 s{sT2}, s{sT0}, 9216\ns_add_u32 s{sT2}, s{sT2}, {SLOT}\nv_add_u32 v{kB}, s{sT2}, v{kB}')
        S(f's_lshl_b32 s{74}, s{sIDX}, 2\ns_add_u32 s{74}, s{74}, s{sW4}\ns_lshl_b32 s{75}, s{74}, 11\ns_lshl_b32 s{74}, s{74}, 4\ns_add_u32 s{74}, s{74}, s{sRB}\ns_lshl_b32 s{74}, s{74}, 11\ns_add_u32 s{74}, s{74}, {WS_KVP}')
        S(f's_lshl_b32 s{sT0}, s{sRB}, 7\ns_add_u32 s{75}, s{75}, s{sT0}\ns_add_u32 s{75}, s{75}, {WS_FP}')
        l_wait(S, EV_PK)
        stamp(S, 12)
        if Opt.lprio: S('s_setprio 1')
        sm = softmax_k(None)
        S.ext(sm[:8]); sig(4); S.ext(sm[8:Opt.h5at]); sig(5); S.ext(sm[Opt.h5at:])
        l_signal(S, CN_PH)
        stamp(S, 11)
        ltag_get(S)
        w2raw(0, Opt.aw2)
        if Opt.tr0: tr(0, Opt.tr0)
        stamp(S, 5)
        if Opt.kprio: S('s_setprio 1')
        l_wait(S, EV_V)
        S.ext(cnt_read(CN_PH, vLP)); S.ext(cnt_check(CN_PH, vLP))
        for ts in range(8):
            b = HR + 8 * (ts % 6)
            if ts >= 6: S(f'v_mfma_f32_32x32x16_bf16 {v(KA,16)}, {v(b,4)}, {v(b+4,4)}, {"0" if ts == 6 else v(KA,16)}')
            for u in range(2): S(f'ds_read_b64_tr_b16 {v(b + 2*u, 2)}, v{kA} offset:{(16*ts + 4*u)*112}')
            for u in range(2): S(f'ds_read_b64_tr_b16 {v(b + 4 + 2*u, 2)}, v{kB} offset:{(16*ts + 4*u)*72}')
        for ts in range(2, 8):
            b = HR + 8 * (ts % 6)
            S(f'v_mfma_f32_32x32x16_bf16 {v(KA,16)}, {v(b,4)}, {v(b+4,4)}, {v(KA,16)}')
        G_ = HR
        for i in range(8): S(f'v_cvt_pk_bf16_f32 v{G_+i}, v{KA+2*i}, v{KA+2*i+1}')
        for j in range(2):
            S(f'buffer_store_dwordx4 {v(G_+4*j,4)}, v{vL16}, {srd(SRD_WS)}, s{74} offen offset:{j*1024} sc1', tok='kvp')
        tr(Opt.tr0, Opt.tr0 + Opt.tr1)
        S.wait('kvp')
        flag_store(S, 75, LE)
        S('s_setprio 0')
        stamp(S, 1)
        if Opt.ackdiag: S.wait('kvp'); stamp(S, 2); S('s_waitcnt vmcnt(0)')
        w2raw(Opt.aw2, Opt.nreg)
        wo_prefetch()
        tr(Opt.tr0 + Opt.tr1, Opt.nreg)
        stamp(S, 6)
    if tile:
        l_signal(S, CN_LT)
        if not (Opt.early_f and not ffn):
            l_wait(S, EV_END)
            S.ext(cnt_read(CN_LT, vLP)); S.ext(cnt_check(CN_LT, vLP))
            stamp(S, 7)
            bu_ = bubble_units(Opt.bthr)
            S.ext(flat(bu_[:Opt.kgat])); l_signal(S, CN_KG); S.ext(flat(bu_[Opt.kgat:]))

def bubble_units(thr):
    sW2, sK2 = sU4, sU5
    u = []
    for i in range(12):
        t = Stream()
        if i == 0: t(f's_mul_i32 s{sT3}, s{sW4}, {F_REG}')
        t(f's_add_u32 m0, s{sT3}, {i*2048}\ns_add_u32 s{sT1}, s{sW2}, s{sK2}')
        if thr: t(f's_waitcnt vmcnt({thr})')
        t(f'buffer_load_dwordx4 v{vL2}, {srd(SRD_W2)}, s{sT1} offen lds', tok=('w2', Opt.nreg + i))
        t(f's_add_u32 m0, s{sT3}, {i*2048 + 1024}')
        wrap_inc(t, sK2, 16 * 896, 448 * 896)
        t(f'buffer_load_dwordx4 v13, {srd(SRD_W2)}, s{sT1} offen lds', tok=('w2', Opt.nreg + i))
        u.append(t.l)
    for hd in range(4):
        for half in range(2):
            t = Stream()
            t(f's_lshl_b32 s{sT2}, s{sW4}, 14\ns_add_u32 s{sT2}, s{sT2}, {A_BASE}')
            t(f's_lshl_b32 s{sT1}, s{sW4}, 2\ns_add_u32 s{sT1}, s{sT1}, {hd}\ns_mul_i32 s{sT1}, s{sT1}, {28*896}\ns_lshl_b32 s{sCNT}, s{sCB}, 7\ns_add_u32 s{sT1}, s{sT1}, s{sCNT}')
            if half: t(f's_add_u32 s{sT1}, s{sT1}, {16*896}')
            for i in range(2):
                t(f's_add_u32 m0, s{sT2}, {hd*4096 + half*2048 + i*1024}')
                if thr: t(f's_waitcnt vmcnt({thr})')
                if hd == 3 and half == 1 and i == 1: t(f's_cmp_eq_u32 s{sW4}, 3\ns_cselect_b32 exec_hi, 0, -1')
                else: t('s_nop 0')
                t(f'buffer_load_dwordx4 v{vL2 if i == 0 else 13}, {srd(SRD_WO)}, s{sT1} offen lds', tok='wo')
            if hd == 3 and half == 1: t('s_mov_b64 exec, -1')
            u.append(t.l)
    return u

def hflag_poll(S):
    S(f'v_lshlrev_b32 v8, 7, v{vLANE}')
    S(f's_lshl_b32 s{sT0}, s{sTB}, 3\ns_add_u32 s{sT0}, s{sT0}, s{sCB}\ns_lshl_b32 s{sT0}, s{sT0}, 12\ns_lshl_b32 s{sT1}, s{sW4}, 9\ns_add_u32 s{sT0}, s{sT0}, s{sT1}\ns_add_u32 s{sT0}, s{sT0}, {WS_FH}')
    poll(S, 8, sT0, 4, 9)

def f_phase2(S, attn):
    inl = attn and Opt.early_f
    stamp(S, 10)
    if Opt.fprio: S('s_setprio 1')
    sK = sU1
    vH0, vH1 = 14, 15
    S(f's_mul_i32 s{sT3}, s{sW4}, {F_REG}\nv_add_u32 v10, s{sT3}, v{vVW2[1]}\nv_add_u32 v11, s{sT3}, v{vVW2[0]}')
    S(f's_mul_i32 s{sU2}, s{sTB}, {224*K1}\ns_mul_i32 s{sT2}, s{sW4}, {28*K1}\ns_add_u32 s{sU2}, s{sU2}, s{sT2}\ns_add_u32 s{sU2}, s{sU2}, {WS_H}\ns_lshl_b32 s{sK}, s{sROT2}, 10')
    S(f's_and_b32 s{sT2}, s{sW4}, 1\ns_mul_i32 s{sT2}, s{sT2}, {112*K1}\nv_add_u32 v{vH1}, s{sT2}, v{vL16}\ns_sub_u32 s{sT2}, {112*K1}, s{sT2}\nv_add_u32 v{vH0}, s{sT2}, v{vL16}')
    S(f'v_mov_b32 v12, v11\nv_mov_b32 v11, v{vL2}')
    assert not inl and not Opt.wolate
    out_addr(S, 4, 0)
    S('s_waitcnt lgkmcnt(0)')
    hflag_poll(S)
    S(f'v_mov_b32 v9, v12\nv_mov_b32 v12, 4')
    wol = (attn and Opt.wolate) or Opt.wolate == 2
    S(f'v_lshlrev_b32 v8, 2, v{vLANE}\nv_add_u32 v8, {CTL}, v8\nv_mov_b32 v{W2R-3}, v13') if False else None
    S(f'v_lshlrev_b32 v8, 2, v{vLANE}\nv_add_u32 v8, {CTL}, v8\nv_mov_b32 v{HR+47}, 1\ns_mov_b64 exec, 15\nds_add_u32 v8, v{HR+47} offset:{128 + 16*CN_WO}\ns_mov_b64 exec, -1\ns_waitcnt lgkmcnt(0)')
    stamp(S, 8)
    NG = Opt.nreg
    def slot(i): return W2R + 8 * i if i < 16 else HR + 8 * (i - 16)
    free = list(range(NG, 22))
    hdst, adst, when = {}, {}, {}
    for ks in range(NG): adst[ks] = slot(ks)
    ring = [NG - 6, NG - 5, NG - 4]
    for ks in range(NG, 28): adst[ks] = slot(ring[(ks - NG) % 3])
    sched = {ks: [] for ks in range(-1, 28)}
    nxt = 0; hs = {}
    for ks in range(-1, 28):
        if ks >= 0:
            if ks < NG and ks not in ring: free.append(ks)
            free.append(hs[ks])
        while nxt < 28 and free:
            hs[nxt] = free.pop(0); hdst[nxt] = slot(hs[nxt]); sched[ks].append(nxt); nxt += 1
    sW2, sK2 = sU4, sU5
    def hload(ks):
        S(f's_add_u32 s{sT0}, s{sU2}, s{sK}')
        S(f'buffer_load_dwordx4 {v(hdst[ks],4)}, v{vH0}, {srd(SRD_WS)}, s{sT0} offen sc1')
        S(f'buffer_load_dwordx4 {v(hdst[ks]+4,4)}, v{vH1}, {srd(SRD_WS)}, s{sT0} offen sc1')
        if ks < 27: wrap_inc(S, sK, 1024, 28 * K1)
    def aread(ks):
        o = ((ks - NG) % 12) * 2048; b = adst[ks]
        S.wait(('w2', ks))
        for c in range(2):
            for u in range(2):
                S(f'ds_read_b64_tr_b16 {v(b + 4*c + 2*u, 2)}, v{9+c} offset:{o + 1024*u}', tok=('ar', ks))
    for k in sched[-1]: hload(k)
    last = 25 if Opt.qtail else 28
    for ks in range(last):
        for c in range(2):
            for tt2 in range(2):
                acc = FACC + 16 * (2 * c + tt2)
                S(f'v_mfma_f32_32x32x16_bf16 {v(acc,16)}, {v(adst[ks]+4*c,4)}, {v(hdst[ks]+4*tt2,4)}, {"0" if ks == 0 else v(acc,16)}')
                if c == 0 and tt2 == 0 and NG <= ks + 2 < 28: aread(ks + 2)
        if Opt.fdiag and ks in (0, 5, 10, 15, 19, 23): stamp(S, 1 + (0, 5, 10, 15, 19, 23).index(ks))
        if ks == min(last - 1, Opt.gk0 if attn else Opt.gk1): S(f'ds_write_b32 v{vCTL}, v12 offset:{128 + 16*CN_W2}')
        if ks >= NG and ks + 12 < 28:
            o = (ks - NG) * 2048
            S(f's_add_u32 m0, s{sT3}, {o}\ns_add_u32 s{sT1}, s{sW2}, s{sK2}')
            S(f'buffer_load_dwordx4 v11, {srd(SRD_W2)}, s{sT1} offen lds', tok=('w2', ks + 12))
            S(f's_add_u32 m0, s{sT3}, {o + 1024}')
            wrap_inc(S, sK2, 16 * 896, 448 * 896)
            S(f'buffer_load_dwordx4 v13, {srd(SRD_W2)}, s{sT1} offen lds', tok=('w2', ks + 12))
        for k in sched[ks]: hload(k)
    tailq = None
    if Opt.qtail:
        aread(27)
        tailq = [[Ins(f'v_mfma_f32_32x32x16_bf16 {v(FACC+16*q,16)}, {v(adst[ks]+4*(q//2),4)}, {v(hdst[ks]+4*(q%2),4)}, {v(FACC+16*q,16)}') for ks in (25, 26, 27)] for q in range(4)]
    stamp(S, 9)
    used = {r for ks in (25, 26, 27) for b in (adst[ks], hdst[ks]) for r in range(b, b + 8)}
    final_f(S, FACC, 4, tailq, used)

def a_phase2(S):
    S(f's_lshl_b32 s{sU4}, s{sTB}, 16\ns_and_b32 s{sT2}, s{sW4}, 1\ns_lshl_b32 s{sT1}, s{sT2}, 15\ns_add_u32 s{sU4}, s{sU4}, s{sT1}\ns_lshr_b32 s{sT3}, s{sW4}, 1\ns_lshl_b32 s{sT1}, s{sT3}, 14\ns_add_u32 s{sU4}, s{sU4}, s{sT1}\ns_add_u32 s{sU4}, s{sU4}, {WS_PQ}')
    S(f'v_lshlrev_b32 v8, 8, v{vLANE}')
    S(f's_lshl_b32 s{sT0}, s{sTB}, 3\ns_add_u32 s{sT0}, s{sT0}, s{sCB}\ns_lshl_b32 s{sT0}, s{sT0}, 12\ns_lshl_b32 s{sT1}, s{sT3}, 10\ns_add_u32 s{sT0}, s{sT0}, s{sT1}\ns_lshl_b32 s{sT1}, s{sT2}, 7\ns_add_u32 s{sT0}, s{sT0}, s{sT1}\ns_add_u32 s{sT0}, s{sT0}, {WS_FH + 2048}')
    fa = final_addr(True)
    S.ext(fa)
    if Opt.aprio: S(f's_setprio {Opt.aprio}')
    S.ext(cnt_read(CN_W2, vCT)); S.ext(cnt_check(CN_W2, vCT, 1))
    stamp(S, 11)
    poll(S, 8, sT0, 4, 9, Opt.ksleep)
    stamp(S, 14)
    OB = 32
    for i in range(8):
        if i % 2 == 0: S(f's_add_u32 s{sT2}, s{sU4}, {i*2048}')
        for st in range(2):
            S(f'buffer_load_dwordx4 {v(OB+8*i+4*st,4)}, v{vL16}, {srd(SRD_WS)}, s{sT2} offen offset:{(i%2)*2048 + st*1024} sc1')
    S.ext(cnt_read(CN_WO, vCT)); S.ext(cnt_check(CN_WO, vCT, 1))
    SA, WB = 144, 96
    def woread(n):
        b = WB + 8 * (n % 6)
        for c in range(2):
            for u in range(2):
                S(f'ds_read_b64_tr_b16 {v(b+4*c+2*u,2)}, v{vVW2[c]} offset:{(16*n + 8*u)*128}')
    for n in range(5): woread(n)
    for n in range(16):
        b = WB + 8 * (n % 6)
        for c in range(2):
            acc = SA + 16 * c
            S(f'v_mfma_f32_32x32x16_bf16 {v(acc,16)}, {v(b+4*c,4)}, {v(OB+4*n,4)}, {"0" if n == 0 else v(acc,16)}')
            if c == 0 and n + 5 < 16: woread(n + 5)
    stamp(S, 12)
    final_a(S, SA)

XS = 96 * K1
def final_addr(isA):
    S = Stream()
    if isA:
        S(f's_mul_i32 s{sT1}, s{sW4}, {F_REG}\ns_add_u32 s{sT1}, s{sT1}, {16*K1}\nv_add_u32 v16, s{sT1}, v{vL16}')
        S(f's_xor_b32 s{sT1}, s{sW4}, 2\ns_mul_i32 s{sT1}, s{sT1}, {F_REG}\ns_add_u32 s{sT1}, s{sT1}, {16*K1}\nv_add_u32 v17, s{sT1}, v{vL16}')
    return S.l

def finish(S, xt, E, Sg, G, off):
    for i in range(8): S(f'v_fmac_f32 v{E+i}, v{Sg+i}, v{G+i}')
    for i in range(4): S(f'v_cvt_pk_bf16_f32 v{xt+i}, v{E+2*i}, v{E+2*i+1}')
    S(f'v_permlane32_swap_b32 v{xt}, v{xt+2}\nv_permlane32_swap_b32 v{xt+1}, v{xt+3}')
    S(f'buffer_store_dwordx4 {v(xt,4)}, v{vO}, {srd(SRD_OUT)}, s{sFT} offen offset:{off} {("", "sc1", "nt", "sc0 sc1")[Opt.osc]}')
def unpack_x(S, xt, E):
    S(f'v_permlane32_swap_b32 v{xt}, v{xt+2}\nv_permlane32_swap_b32 v{xt+1}, v{xt+3}')
    for i in range(4): S(f'v_lshlrev_b32 v{E+2*i}, 16, v{xt+i}\nv_and_b32 v{E+2*i+1}, 0xffff0000, v{xt+i}')

def final_a(S, SA):
    E = 20
    unpack_x(S, XT, E)
    S.ext(cnt_read(CN_G, vCT)); S.ext(cnt_check(CN_G, vCT, 1))
    for i in range(4): S(f'ds_write_b128 v17, {v(SA+4*i,4)} offset:{i*1024}')
    for i in range(2): S(f'ds_write_b128 v16, {v(SA+16+4*i,4)} offset:{4096 + i*1024}')
    S('s_waitcnt lgkmcnt(0)\ns_barrier')
    stamp(S, 13)
    for i in range(2): S(f'ds_read_b128 {v(32+4*i,4)}, v16 offset:{2048 + i*1024}')
    for i in range(2): S(f'ds_read_b128 {v(40+4*i,4)}, v16 offset:{6144 + i*1024}')
    for i in range(8): S(f'v_add_f32 v{32+i}, v{32+i}, v{SA+24+i}')
    finish(S, XT, E, 32, 40, 32)

def final_f(S, acc, xt, tailq, used):
    fr = [r for r in list(range(16, 144)) + list(range(208, 256)) if r not in used]
    W = fr[0:3]; a24, a25 = fr[3], fr[4]
    S(f's_mul_i32 s{sT3}, s{sW4}, {F_REG}')
    for vq in range(3):
        S(f's_xor_b32 s{sT0}, s{sW4}, {vq ^ 3}\ns_lshl_b32 s{sT0}, s{sT0}, 12\ns_add_u32 s{sT0}, s{sT0}, s{sT3}\nv_add_u32 v{W[vq]}, s{sT0}, v{vL16}')
    S(f'v_lshlrev_b32 v{a24}, 2, v{vLANE}\nv_add_u32 v{a24}, {CTL}, v{a24}\nv_mov_b32 v{a25}, 1')
    def wr(vq):
        for i in range(4): S(f'ds_write_b128 v{W[vq]}, {v(acc+16*vq+4*i,4)} offset:{i*1024}')
    if tailq:
        S.ext(tailq[0]); S.ext(tailq[1]); S.ext(tailq[2]); wr(0); S.ext(tailq[3]); wr(1); wr(2)
    else:
        for vq in range(3): wr(vq)
    S(f's_mov_b64 exec, 15\nds_add_u32 v{a24}, v{a25} offset:{128 + 16*CN_G}\ns_mov_b64 exec, -1')
    S(f's_lshl_b32 s{sT2}, s{sW4}, 12')
    for k in range(1, 4):
        S(f's_xor_b32 s{sT0}, s{sW4}, {k}\ns_mul_i32 s{sT0}, s{sT0}, {F_REG}\ns_add_u32 s{sT0}, s{sT0}, s{sT2}\nv_add_u32 v{19+k}, s{sT0}, v{vL16}')
    S(f's_add_u32 s{sT3}, s{sT3}, {16*K1}\nv_add_u32 v23, s{sT3}, v{vL16}')
    E = 104
    unpack_x(S, xt, E)
    S.ext(cnt_read(CN_G, 26)); S.ext(cnt_check(CN_G, 26, 0))
    P_ = 32
    for k in range(3):
        for i in range(4): S(f'ds_read_b128 {v(P_+16*k+4*i,4)}, v{20+k} offset:{i*1024}')
    G = acc + 48
    for k in range(3):
        for i in range(16): S(f'v_add_f32 v{G+i}, v{G+i}, v{P_+16*k+i}')
    Q = 80
    for i in range(16): S(f'v_mul_f32 v{Q+i}, {hx(f2u(-L2E))}, v{G+i}')
    for i in range(16): S(f'v_exp_f32 v{Q+i}, v{Q+i}')
    for i in range(16): S(f'v_add_f32 v{Q+i}, 1.0, v{Q+i}')
    for i in range(16): S(f'v_rcp_f32 v{Q+i}, v{Q+i}')
    for i in range(16): S(f'v_mul_f32 v{G+i}, v{G+i}, v{Q+i}')
    for i in range(2): S(f'ds_write_b128 v23, {v(G+8+4*i,4)} offset:{6144 + i*1024}')
    S('s_waitcnt lgkmcnt(0)')
    stamp(S, 13)
    S('s_barrier')
    stamp(S, 14)
    for i in range(2): S(f'ds_read_b128 {v(32+4*i,4)}, v23 offset:{i*1024}')
    for i in range(2): S(f'ds_read_b128 {v(40+4*i,4)}, v23 offset:{4096 + i*1024}')
    for i in range(8): S(f'v_add_f32 v{32+i}, v{32+i}, v{40+i}')
    finish(S, xt, E, 32, G, 0)

def reducer(S):
    S(f's_cmp_ge_u32 s{sW4}, 2\ns_cbranch_scc1 L_fin')
    S(f'v_lshlrev_b32 v8, 7, v{vLANE}\ns_lshl_b32 s{sT0}, s{sTB}, 11\ns_add_u32 s{sT0}, s{sT0}, {WS_FP}')
    S(f's_lshl_b32 s{sU2}, s{sTB}, 15\ns_lshl_b32 s{sT2}, s{sW4}, 10\ns_add_u32 s{sU2}, s{sU2}, s{sT2}\ns_add_u32 s{sU2}, s{sU2}, {WS_KVP}')
    S(f's_lshl_b32 s{sU1}, s{sTB}, 1\ns_add_u32 s{sU1}, s{sU1}, s{sW4}\ns_lshl_b32 s{sU0}, s{sU1}, 7\ns_add_u32 s{sU0}, s{sU0}, {WS_FK}\ns_lshl_b32 s{sU1}, s{sU1}, 10\ns_add_u32 s{sU1}, s{sU1}, {WS_KVF}')
    S(f's_mov_b32 s{sSEL_LO}, 0x00003f80\ns_mov_b32 s{sSEL_HI}, 0x3f800000')
    for i in range(8): S(f'v_mov_b32 v{16+i}, 0')
    S(f's_cmp_eq_u32 s{sW4}, 1\ns_cselect_b32 s{sT3}, -1, 0\ns_mov_b32 s{sT2}, 0')
    if Opt.rdel: S(f's_sleep {Opt.rdel}')
    poll(S, 8, sT0, 16, 9, Opt.r2sleep)
    stamp(S, 8)
    for rb in range(16):
        if rb % 2 == 0: S(f's_add_u32 s{sT0}, s{sU2}, {rb*2048}')
        S(f'buffer_load_dwordx4 {v(32+4*rb,4)}, v{vL16}, {srd(SRD_WS)}, s{sT0} offen offset:{(rb%2)*2048} sc1')
    S(f'v_and_b32 v8, 31, v{vLANE}\nv_cmp_eq_u32 vcc, 29, v8')
    for rb in range(16):
        for i in range(4):
            S(f'v_dot2c_f32_bf16 v{16+2*i}, s{sSEL_LO}, v{32+4*rb+i}\nv_dot2c_f32_bf16 v{17+2*i}, s{sSEL_HI}, v{32+4*rb+i}')
    stamp(S, 10)
    for i in range(8): S(f'v_cndmask_b32 v{16+i}, v{16+i}, 1.0, vcc')
    for i in range(4): S(f'v_cvt_pk_bf16_f32 v{24+i}, v{16+2*i}, v{17+2*i}')
    S(f'v_cndmask_b32 v26, v26, 0, s[{sT2}:{sT3}]\nv_cndmask_b32 v27, v27, 0, s[{sT2}:{sT3}]')
    S(f'buffer_store_dwordx4 v[24:27], v{vL16}, {srd(SRD_WS)}, s{sU1} offen sc1')
    S('s_waitcnt vmcnt(0)')
    flag_store(S, sU0, 28)
    l_signal(S, CN_KG); l_signal(S, CN_KG)
    stamp(S, 9)

Opt.kvstep = 14
def fin_after(prefix, body):
    mark = Ins('L_MARK__:')
    o = finalize(prefix + [mark] + body)
    return o[o.index(mark) + 1:]

def build():
    assert sT2 % 2 == 0 and sT3 == sT2 + 1
    parts = []
    P = Stream(); prologue(P)
    P(f's_cmp_ge_u32 s{sWAVE}, 4\ns_cbranch_scc1 L_lwave')
    parts.append(finalize(P.l))
    C = Stream(); c_common(C); C(f's_cmp_ge_u32 s{sROLE}, 8\ns_cbranch_scc1 L_cattn')
    S = Stream(); c_ffn(S); c_publish(S, False, True); S('s_branch L_aphase'); parts.append(finalize(C.l + S.l))
    S = Stream(); S('L_cspare:\ns_waitcnt vmcnt(0)'); c_publish(S, True, False); S('s_branch L_fin'); parts.append(finalize(S.l))
    S = Stream(); S('L_cattn:'); c_attn(S)
    S(f's_cmp_ge_u32 s{sI}, 12\ns_cbranch_scc1 L_cspare'); c_publish(S, True, True); parts.append(fin_after(C.l, S.l))
    S = Stream(); S('L_aphase:'); a_phase2(S); S('s_branch L_fin'); parts.append(finalize(S.l))
    S = Stream(); S('L_lwave:'); l_decode(S)
    S(f's_cmp_ge_u32 s{sROLE}, 8\ns_cbranch_scc1 L_lattn'); l_phase1(S, True, True); f_phase2(S, False); S('s_branch L_fin'); parts.append(finalize(S.l))
    S = Stream(); S('L_lattn:'); S(f's_cmp_ge_u32 s{sI}, 12\ns_cbranch_scc1 L_lspare'); l_phase1(S, False, True); f_phase2(S, True); S('s_branch L_fin'); parts.append(finalize(S.l))
    S = Stream(); S('L_lspare:'); l_phase1(S, False, False); reducer(S); parts.append(finalize(S.l))
    S = Stream(); S('L_fin:'); diag_out(S); S('L_end:\ns_endpgm'); parts.append(finalize(S.l))
    hdr = open('recurrent_scan__linear_kernel_hedgehog__dense_activation_silu__prompt.s.ref').read().split('\n')
    top = [l for l in hdr[:13] if l.startswith(';') and '@launch' not in l and 'Override' not in l and 'grid=ceil' not in l]
    out = '\n'.join(top) + f'\n; @launch grid=(256,1,1) block=(512,1,1) lds={LDS_TOTAL}\n'
    out += f'.amdgcn_target "amdgcn-amd-amdhsa--gfx950"\n.text\n.globl {NAME}\n.p2align 8\n.type {NAME},@function\n{NAME}:\n'
    for p in parts:
        t = text(p)
        if Opt.nosc1 == 2: t = '\n'.join(l.replace(' sc1', ' nt sc1') if 'buffer_store_dwordx4' in l else l for l in t.split('\n'))
        if Opt.nosc1 == 3: t = '\n'.join(l.replace('offen', 'offen idxen').replace(', v2,', ', v[0:1],') if False else l for l in t.split('\n'))
        if Opt.nosc1 == 1: t = '\n'.join(l.replace(' sc1', '') if 'buffer_store_dwordx4' in l else l for l in t.split('\n'))
        out += t
    used = out
    for c, code in SLOW:
        if f'{c}\n' in used: out += '\n'.join(l if l.endswith(':') else '    ' + l for l in code.split('\n')) + '\n'
    out += f'''.section .rodata,"a"
.p2align 6
.amdhsa_kernel {NAME}
  .amdhsa_next_free_vgpr 256
  .amdhsa_next_free_sgpr 102
  .amdhsa_accum_offset 256
  .amdhsa_group_segment_fixed_size 0
  .amdhsa_kernarg_size 80
  .amdhsa_user_sgpr_count 2
  .amdhsa_user_sgpr_kernarg_segment_ptr 1
  .amdhsa_system_sgpr_workgroup_id_x 1
.end_amdhsa_kernel
'''
    return out

if __name__ == '__main__':
    for a in sys.argv[2:]:
        k, _, val = a.partition('='); setattr(Opt, k, int(val) if val else True)
    open(sys.argv[1], 'w').write(build())
```

```python
import sys, struct
sys.path.insert(0, "dev")
from asmlib import *

NAME = "recurrent_scan__linear_kernel_hedgehog__dense_activation_silu__prompt_kernel"
K1 = 1024
import os
WS_H   = int(os.environ.get('WSOFF', '0')) << 20
WS_PQ  = WS_H + 64 * 112 * K1
WS_KVP = WS_PQ + 64 * 16 * 4096
WS_KVF = WS_KVP + 32 * 16 * 4096
WS_FH  = WS_KVF + 64 * K1
WS_FP  = WS_FH + 256 * 4096
WS_FK  = WS_FP + 32 * 2048
WS_TAG = WS_FK + 8 * 4096
WS_DIAG = WS_TAG + 4096
WS_SIZE = WS_DIAG + 256 * 8 * 64
SLOT = 28 * K1
SPARE = 140 * K1
WPHI_L = 156 * K1
CTL = 160 * K1 - 512
LDS_TOTAL = 160 * K1
F_REG = 24 * K1
A_BASE = 96 * K1
A_REG = 16 * K1
EV_XFREE, EV_C0, EV_C1, EV_C2, EV_C3, EV_PK, EV_END, EV_V = range(8)
CN_WO, CN_LT, CN_PH, CN_KV, CN_PQ, CN_K2, CN_W2, CN_KG, CN_G = 7, 8, 9, 10, 11, 13, 15, 16, 17
EV_X1, EV_X2, EV_PL = 25, 26, 27
sBND = 70
L2E = 1.4426950408889634
def f2u(x): return struct.unpack('<I', struct.pack('<f', x))[0]
def hx(x): return '0x%08x' % (x & 0xffffffff)

sWAVE, sXCD, sI, sRB, sROLE = 3, 4, 5, 6, 7
SRD_X, SRD_W, SRD_WS, SRD_W2, SRD_WO, SRD_OUT, SRD_DBG, SRD_WPHI = 8, 12, 16, 20, 24, 28, 32, 36
sTB, sCB, sIDX, sTAG, sPITCH = 40, 41, 42, 43, 44
sCOL = [45, 46, 47]
sCOLS = 48
sSEL_LO, sSEL_HI = 49, 63
sT0, sT1, sT2, sT3 = 50, 51, 52, 53
sHI = 54
sROT1, sROT2, sM70 = 1, 57, 56
sCNT, sW4, sFT, sFS, sL2E = 58, 59, 60, 61, 62
sU0, sU1, sU2, sU3, sU4, sU5 = 64, 65, 66, 67, 68, 69
sKA_QKV, sKA_W1 = 80, 82
STAMP0 = 84
def srd(b): return f's[{b}:{b+3}]'
def v(a, n=1): return f'v{a}' if n == 1 else f'v[{a}:{a+n-1}]'
HI = f's[{sHI}:{sHI+1}]'

class Opt:
    diag = False
    ncen = 15
    sleep = 12
    early = False
    rot = 1
    lprio = 1
    lsleep = 1
    nodma = 0
    nosc1 = 0
    nowo = 0
    wpf = 0
    xfirst = 3
    w2pf = 0
    gpf = 0
    mini = 0
    vsteps = 3
    hint = 1
    athr = 4
    rsleep = 3
    ackdiag = 0
    pk = 0
    pkq = 1
    trpace = 1
    aw2 = 8
    tr1 = 3
    tlb = 0
    s4hook = 1
    afirst = 0
    mixst = 0
    l2pf = 0
    gk0 = 14
    early_f = 0
    oprio = 1
    qtail = 1
    rdel = 0
    r2sleep = 3
    nstg = 5
    amp = 0
    ampwg = 200
    ampw = 0
    ampf = 10
    osc = 0
    stf = 0
    smin = 110
    nreg = 12
    xbar = 6
    kgat = 20
    wolate = 0
    wostep = 9
    map2 = 0
    ppf = 0
    pps = 3
    ppw = 4
    tr0 = 0
    plwait = 0
    gk1 = 25
    agate = 3
    h5at = 44
    kprio = 1
    aprio = 0
    bthr = 20
    trfirst = 0
    thr = 40
    xpipe = 4
    fine = -1
    cpf = 1
    wopf = 1
    phi1 = 1
    fprio = 1
    dbgout = 0
    outsc = ''
    empty = 0
    xcc = 0
    fdiag = 0
    nophi = 0
    notr = 0
    cprio = 0
    predelay = 0
    ksleep = 6

def stamp(S, k):
    if not Opt.diag: return
    if Opt.mini and k not in (0, 15): return
    if Opt.amp and k not in (0, 15, Opt.amp): return
    if Opt.fine >= 0:
        if k == 0: S('s_memtime s[100:101]\ns_waitcnt lgkmcnt(0)\ns_mov_b32 s71, s100')
        return
    if isinstance(k, str):
        if not Opt.early: return
        k = int(k[1:])
    elif Opt.early and 3 <= k < 15: return
    S(f'{"s_memtime" if Opt.diag == 2 else "s_memrealtime"} s[100:101]\ns_waitcnt lgkmcnt(0)\ns_mov_b32 s{STAMP0+k}, s100')

def diag_out(S):
    if not Opt.diag: return
    S('s_waitcnt vmcnt(0) lgkmcnt(0)')
    stamp(S, 15)
    if Opt.amp:
        lab, a = newlab('am'), newlab('am')
        S(f's_cmp_lg_u32 s2, {Opt.ampwg}\ns_cbranch_scc1 {lab}\ns_cmp_lg_u32 s{sWAVE}, {Opt.ampw}\ns_cbranch_scc1 {lab}')
        S(f's_sub_u32 s{sT0}, s{STAMP0+Opt.amp}, s{STAMP0}\ns_mul_i32 s{sT0}, s{sT0}, {Opt.ampf}\ns_add_u32 s{sT0}, s{sT0}, s{STAMP0}\ns_add_u32 s{sT0}, s{sT0}, 3000')
        S(f'{a}:\ns_memrealtime s[100:101]\ns_waitcnt lgkmcnt(0)\ns_sub_u32 s{sT1}, s{sT0}, s100\ns_cmp_gt_i32 s{sT1}, 0\ns_cbranch_scc1 {a}\n{lab}:\ns_endpgm')
    if Opt.xcc: S(f's_getreg_b32 s{STAMP0+11}, hwreg(HW_REG_XCC_ID)\ns_getreg_b32 s{STAMP0+12}, hwreg(HW_REG_HW_ID)')
    if Opt.dbgout:
        lab = newlab('dg')
        S(f's_not_b32 s{STAMP0+14}, s{STAMP0}')
        if Opt.dbgout == 1: S(f's_cmp_ge_u32 s{sWAVE}, 4')
        else: S(f's_cmp_lt_u32 s{sWAVE}, 4')
        S(f's_cbranch_scc1 {lab}')
        S('v_mov_b32 v16, 0')
        for k in range(1, 16): S(f'v_writelane_b32 v16, s{STAMP0+k}, {k}')
        S(f'v_mbcnt_lo_u32_b32 v17, -1, 0\nv_lshlrev_b32 v17, 2, v17\ns_mov_b64 exec, 0xfffe')
        S(f'buffer_atomic_umax v16, v17, {srd(SRD_DBG)}, 0 offen sc1')
        S(f'{lab}:\ns_endpgm')
    if Opt.fine >= 0:
        S('v_mov_b32 v16, s71\nv_mov_b32 v31, s71')
        for k in range(14): S(f'v_mov_b32 v{17+k}, s{72+2*k}')
    else:
        for k in range(16): S(f'v_mov_b32 v{16+k}, s{STAMP0+k}')
    S(f's_lshl_b32 s{sT0}, s2, 3\ns_add_u32 s{sT0}, s{sT0}, s{sWAVE}\ns_lshl_b32 s{sT0}, s{sT0}, 6\ns_add_u32 s{sT0}, s{sT0}, {WS_DIAG}')
    S('v_mov_b32 v40, 0\ns_mov_b64 exec, 1')
    for k in range(4): S(f'buffer_store_dwordx4 v[{16+4*k}:{19+4*k}], v40, {srd(SRD_WS)}, s{sT0} offen offset:{16*k}')

def half_base(h): return ((h + 4) % 5) * SLOT

_lab = [0]
def newlab(p):
    _lab[0] += 1; return f'L_{p}{_lab[0]}'
def RAW(t):
    i = Ins(t); i.kind = 'salu'; i.rd = set(); i.wr = set(); return i
def raw(S, t):
    for l in t.split('\n'):
        S.l.append(Ins(l) if l.endswith(':') else RAW(l))

vCTL, vLANE, vL16 = 0, 1, 2
def mk_srd(S, items):
    for b, lo, size in items:
        S(f's_mov_b64 s[{b}:{b+1}], s[{lo}:{lo+1}]\ns_mov_b32 s{b+2}, {size}\ns_mov_b32 s{b+3}, 0x20000')
def prologue(S):
    S(f's_cmp_ge_u32 s2, {0 if Opt.empty else 256}\ns_cbranch_scc1 L_end')
    if Opt.diag:
        for k in range(16): S(f's_mov_b32 s{STAMP0+k}, 0')
        if Opt.fine >= 0: S('s_mov_b32 s84, 1\ns_mov_b32 s86, 1\ns_mov_b32 s88, 1\ns_mov_b32 s90, 1\ns_mov_b32 s92, 1\ns_mov_b32 s94, 1\ns_mov_b32 s96, 1\ns_mov_b32 s98, 1')
    stamp(S, 0)
    S('s_load_dwordx16 s[64:79], s[0:1], 0\ns_load_dwordx4 s[80:83], s[0:1], 64')
    S(f'v_lshrrev_b32 v3, 6, v0\nv_and_b32 v{vLANE}, 63, v0\nv_readfirstlane_b32 s{sWAVE}, v3\nv_lshlrev_b32 v{vL16}, 4, v{vLANE}')
    S(f's_and_b32 s{sXCD}, s2, 7\ns_lshr_b32 s{sI}, s2, 3\ns_and_b32 s{sT3}, s{sI}, 3\ns_lshr_b32 s{sT2}, s{sI}, 2\ns_xor_b32 s{sT2}, s{sT2}, 4')
    S(f's_lshr_b32 s{sRB}, s{sXCD}, 1\ns_lshl_b32 s{sRB}, s{sRB}, 2\ns_add_u32 s{sRB}, s{sRB}, s{sT3}')
    S(f's_lshl_b32 s{sROT1}, s{sT3}, 1\ns_add_u32 s{sROT1}, s{sROT1}, s{sT2}\ns_sub_u32 s{sT0}, s{sROT1}, 7\ns_cmp_ge_u32 s{sROT1}, 7\ns_cselect_b32 s{sROT1}, s{sT0}, s{sROT1}')
    S(f's_and_b32 s{sW4}, s{sWAVE}, 3')
def decode2(S):
    if Opt.map2:
        S(f's_and_b32 s{sT1}, s{sXCD}, 1\ns_lshr_b32 s{sCB}, s{sROT1}, 1\ns_and_b32 s{sT0}, s{sROT1}, 1\ns_cmp_eq_u32 s{sROT1}, 6\ns_cselect_b32 s{sT0}, s{sT1}, s{sT0}')
        S(f's_lshl_b32 s{sT0}, s{sT0}, 2\ns_add_u32 s{sTB}, s{sT0}, s{sT3}')
        S(f's_lshl_b32 s{sROT2}, s{sCB}, 3\ns_mul_i32 s{sT0}, s{sTB}, 3\ns_add_u32 s{sROT2}, s{sROT2}, s{sT0}\ns_sub_u32 s{sT0}, s{sROT2}, 28\ns_cmp_ge_u32 s{sROT2}, 28\ns_cselect_b32 s{sROT2}, s{sT0}, s{sROT2}')
        S(f's_lshl_b32 s{sT1}, s{sT1}, 2\ns_add_u32 s{sT1}, s{sT1}, s{sCB}\ns_cmp_eq_u32 s{sROT1}, 6\ns_cselect_b32 s{sCB}, 3, s{sT1}')
        S(f's_lshr_b32 s{sT0}, s{sXCD}, 1\ns_lshl_b32 s{sT0}, s{sT0}, 3\ns_add_u32 s{sTB}, s{sTB}, s{sT0}')
    else:
        S(f's_mov_b32 s{sCB}, s{sROT1}\ns_lshl_b32 s{sTB}, s{sXCD}, 2\ns_add_u32 s{sTB}, s{sTB}, s{sT3}')
    S(f's_and_b32 s{sIDX}, s{sXCD}, 1\ns_lshl_b32 s{sIDX}, s{sIDX}, 2\ns_and_b32 s{sT0}, s{sT2}, 3\ns_add_u32 s{sIDX}, s{sIDX}, s{sT0}')
    S(f's_and_b32 s{sT0}, s{sT2}, 4\ns_lshl_b32 s{sT0}, s{sT0}, 1\ns_add_u32 s{sROLE}, s{sIDX}, s{sT0}')
    if not Opt.map2: S(f's_mul_i32 s{sROT2}, s{sT3}, 7\ns_lshl_b32 s{sT0}, s{sCB}, 2\ns_add_u32 s{sROT2}, s{sROT2}, s{sT0}\ns_sub_u32 s{sT0}, s{sROT2}, 28\ns_cmp_ge_u32 s{sROT2}, 28\ns_cselect_b32 s{sROT2}, s{sT0}, s{sROT2}')
    S(f's_lshl_b32 s{sT0}, s{sW4}, 2\ns_add_u32 s{sT0}, s{sT0}, {CTL}\nv_mov_b32 v{vCTL}, s{sT0}')
    S(f's_mov_b32 s{sHI}, 0\ns_mov_b32 s{sHI+1}, -1\ns_mov_b32 s{sL2E}, {hx(f2u(L2E))}\ns_movk_i32 s{sM70}, 0x70')
def l_decode(S):
    S(f'v_lshlrev_b32 v4, 3, v{vLANE}\nv_add_u32 v4, {CTL}, v4\nv_mov_b32 v6, 0\nv_mov_b32 v7, 0\nds_write_b64 v4, v[6:7]')
    decode2(S)
    S(f's_mul_i32 s{sT0}, s{sIDX}, 448\ns_and_b32 s{sT1}, s{sIDX}, 1\ns_lshl_b32 s{sT2}, s{sT1}, 6\ns_add_u32 s{sT2}, s{sT2}, s{sT0}')
    S(f's_mul_i32 s{sT1}, s{sT1}, 384\ns_sub_u32 s{sCOLS}, s{sT0}, s{sT1}\ns_add_u32 s{sCOLS}, s{sCOLS}, 384')
    S(f's_mul_i32 s{sT0}, s{sIDX}, 112')
    S(f's_add_u32 s{sT1}, s{sT0}, 896\ns_add_u32 s{sT3}, s{sT0}, 1792\ns_add_u32 s{sCOL[1]}, s{sT2}, 128\ns_add_u32 s{sCOL[2]}, s{sT2}, 256')
    S(f's_movk_i32 s{sPITCH}, 3584\ns_cmp_ge_u32 s{sROLE}, 8')
    S(f's_cselect_b32 s{sCOL[0]}, s{sT1}, s{sT2}\ns_cselect_b32 s{sPITCH}, 2688, s{sPITCH}')
    S(f's_cselect_b32 s{sCOL[1]}, s{sT3}, s{sCOL[1]}\ns_cselect_b32 s{sCOL[2]}, s{sT0}, s{sCOL[2]}')
    S(f's_mul_i32 s{SRD_W+2}, s{sPITCH}, 448\ns_mov_b32 s{SRD_W+3}, 0x20000')
    swz_voff(S, vLW, f's{sPITCH}', 8)
    S('s_waitcnt lgkmcnt(0)')
    S(f's_cmp_ge_u32 s{sROLE}, 8\ns_cselect_b64 s[{SRD_W}:{SRD_W+1}], s[66:67], s[74:75]')
    mk_srd(S, ((SRD_X, 64, 2048 * 896), (SRD_WS, 82, WS_SIZE), (SRD_W2, 76, 1792 * 896), (SRD_WO, 70, 448 * 896), (SRD_OUT, 78, 2048 * 896), (SRD_DBG, 80, 256), (SRD_WPHI, 68, 16 * 1568)))
    S(f's_mov_b64 s[{sKA_QKV}:{sKA_QKV+1}], s[66:67]\ns_mov_b64 s[{sKA_W1}:{sKA_W1+1}], s[74:75]')

TAGW = 320
def tag_fetch_l0(S):
    a, b = newlab('tf'), newlab('tf')
    S(f's_cmp_lg_u32 s{sW4}, 0\ns_cbranch_scc1 {b}')
    raw(S, f's_mov_b32 s{sBND}, 0\nv_mov_b32 v15, 0\n{a}:\nbuffer_load_dword v14, v15, {srd(SRD_DBG)}, 0 offen sc1\ns_waitcnt vmcnt(0)\nv_readfirstlane_b32 s{sTAG}, v14\ns_add_u32 s{sBND}, s{sBND}, 1\n'
           f's_max_u32 s{sCNT}, s{sBND}, 0x400000\ns_sub_u32 s{sCNT}, s{sCNT}, 0x400000\ns_or_b32 s{sTAG}, s{sTAG}, s{sCNT}\ns_cmp_eq_u32 s{sTAG}, 0\ns_cbranch_scc1 {a}\n'
           f'v_mov_b32 v14, s{sTAG}\ns_mov_b64 exec, 15\nds_write_b32 v{vLC}, v14 offset:{TAGW}\ns_mov_b64 exec, -1\ns_waitcnt lgkmcnt(0)\n{b}:')
def ltag_issue(S):
    S(f'v_mov_b32 v197, 0\nbuffer_load_dword v198, v197, {srd(SRD_DBG)}, 0 offen sc1')
def ltag_get(S):
    a, b = newlab('tf'), newlab('tf')
    S(f'v_readfirstlane_b32 s{sTAG}, v198\ns_cmp_lg_u32 s{sTAG}, 0\ns_cbranch_scc1 {b}')
    raw(S, f's_mov_b32 s{sBND}, 0\n{a}:\nbuffer_load_dword v198, v197, {srd(SRD_DBG)}, 0 offen sc1\ns_waitcnt vmcnt(0)\nv_readfirstlane_b32 s{sTAG}, v198\ns_add_u32 s{sBND}, s{sBND}, 1\n'
           f's_max_u32 s{sCNT}, s{sBND}, 0x400000\ns_sub_u32 s{sCNT}, s{sCNT}, 0x400000\ns_or_b32 s{sTAG}, s{sTAG}, s{sCNT}\ns_cmp_eq_u32 s{sTAG}, 0\ns_cbranch_scc1 {a}\n{b}:')
    S(f'v_mov_b32 v198, s{sTAG}\nds_write_b32 v{vCTL}, v198 offset:{TAGW}')
def tag_prefetch(S, vt):
    S(f'ds_read_b32 v{vt}, v{vCTL} offset:{TAGW}')
def tag_get(S, vt):
    a, b = newlab('tg'), newlab('tg')
    S(f'v_readfirstlane_b32 s{sTAG}, v{vt}')
    S(f's_cmp_lg_u32 s{sTAG}, 0\ns_cbranch_scc1 {b}')
    raw(S, f'{a}:\nds_read_b32 v{vt}, v{vCTL} offset:{TAGW}\ns_sleep 1\ns_waitcnt lgkmcnt(0)\nv_readfirstlane_b32 s{sTAG}, v{vt}\ns_nop 0\ns_cmp_eq_u32 s{sTAG}, 0\ns_cbranch_scc1 {a}\n{b}:')

def poll(S, voff, soff, nl, vt, sleep=None):
    a, b = newlab('pl'), newlab('pl')
    S(f's_mov_b64 exec, {hex((1 << nl) - 1)}\ns_mov_b32 s{sCNT}, 0')
    S(f'{a}:')
    S(f'buffer_load_dword v{vt}, v{voff}, {srd(SRD_WS)}, s{soff} offen sc1')
    S('s_waitcnt vmcnt(0)')
    S(f'v_cmp_ne_u32 vcc, s{sTAG}, v{vt}')
    S(f's_add_u32 s{sCNT}, s{sCNT}, 1\ns_cbranch_vccz {b}\ns_cmp_gt_u32 s{sCNT}, 0x400000\ns_cbranch_scc1 {b}\ns_sleep {sleep or Opt.sleep}\ns_branch {a}')
    S(f'{b}:')
    S('s_mov_b64 exec, -1')

def flag_store(S, soff, vt, n=1, shift=8):
    for i in range(4): S(f'v_mov_b32 v{vt+i}, s{sTAG}')
    S(f'v_lshrrev_b32 v{vt+4}, 3, v{vLANE}\nv_lshlrev_b32 v{vt+4}, {shift}, v{vt+4}\nv_and_or_b32 v{vt+4}, v{vL16}, s{sM70}, v{vt+4}')
    m = (1 << (8 * n)) - 1
    if n < 8: S(f's_mov_b32 exec_lo, {hex(m & 0xffffffff)}\ns_mov_b32 exec_hi, {hex(m >> 32)}')
    S(f'buffer_store_dwordx4 {v(vt,4)}, v{vt+4}, {srd(SRD_WS)}, s{soff} offen sc1')
    if n < 8: S('s_mov_b64 exec, -1')

def c_signal(ev):
    return [Ins(f'ds_write_b32 v{vCTL}, v{vCTL} offset:{16*ev}')]
def cnt_read(idx, vt):
    return [Ins(f'ds_read_b32 v{vt}, v{vCTL} offset:{128 + 16*idx}')]
SLOW = []
def cnt_check(idx, vt, sleep=0):
    S = Stream(); a, b, c = newlab('ck'), newlab('ck'), newlab('ck')
    S(f'v_readfirstlane_b32 s{sCNT}, v{vt}\ns_cmp_ge_u32 s{sCNT}, 4\ns_cbranch_scc0 {c}\n{b}:')
    SLOW.append((c, f'{c}:\ns_mov_b32 s{sBND}, 0\n{a}:\nds_read_b32 v{vt}, v{vCTL} offset:{128 + 16*idx}\ns_add_u32 s{sBND}, s{sBND}, 1\ns_cmp_gt_u32 s{sBND}, 0x1000000\ns_cbranch_scc1 {b}\ns_sleep {sleep}\ns_waitcnt lgkmcnt(0)\nv_readfirstlane_b32 s{sCNT}, v{vt}\ns_nop 0\ns_cmp_lt_u32 s{sCNT}, 4\ns_cbranch_scc1 {a}\ns_branch {b}'))
    return S.l
def c_allflags(ev, vt, va):
    S = Stream(); a, b, c = newlab('cf'), newlab('cf'), newlab('cf')
    S(f'v_mov_b32 v{va}, {CTL}\nds_read_b128 v[{vt}:{vt+3}], v{va} offset:{16*ev}')
    S2 = Stream()
    S2(f'v_min3_u32 v{vt}, v{vt}, v{vt+1}, v{vt+2}\nv_min_u32 v{vt}, v{vt}, v{vt+3}\nv_readfirstlane_b32 s{sCNT}, v{vt}\ns_cmp_lg_u32 s{sCNT}, 0\ns_cbranch_scc0 {c}\n{b}:')
    SLOW.append((c, f'{c}:\ns_mov_b32 s{sBND}, 0\n{a}:\nds_read_b128 v[{vt}:{vt+3}], v{va} offset:{16*ev}\ns_add_u32 s{sBND}, s{sBND}, 1\ns_cmp_gt_u32 s{sBND}, 0x1000000\ns_cbranch_scc1 {b}\ns_waitcnt lgkmcnt(0)\n'
            f'v_min3_u32 v{vt}, v{vt}, v{vt+1}, v{vt+2}\nv_min_u32 v{vt}, v{vt}, v{vt+3}\ns_nop 0\nv_readfirstlane_b32 s{sCNT}, v{vt}\ns_nop 0\ns_cmp_eq_u32 s{sCNT}, 0\ns_cbranch_scc1 {a}\ns_branch {b}'))
    return S.l, S2.l
vLC, vLONE, vLP = 11, 12, 188
def l_signal(S, idx):
    S(f's_mov_b64 exec, 15\nds_add_u32 v{vLC}, v{vLONE} offset:{128 + 16*idx}\ns_mov_b64 exec, -1')
def l_wait(S, ev, vLP=vLP):
    a, b = newlab('lw'), newlab('lw')
    S('s_waitcnt lgkmcnt(0)')
    raw(S, f's_mov_b32 s{sBND}, 0\n{a}:\nds_read_b128 v[{vLP}:{vLP+3}], v{vLP+4} offset:{16*ev}\ns_add_u32 s{sBND}, s{sBND}, 1\ns_cmp_gt_u32 s{sBND}, 0x1000000\ns_cbranch_scc1 {b}\ns_sleep {Opt.lsleep}\ns_waitcnt lgkmcnt(0)\nv_min3_u32 v{vLP}, v{vLP}, v{vLP+1}, v{vLP+2}\nv_min_u32 v{vLP}, v{vLP}, v{vLP+3}\ns_nop 0\nv_readfirstlane_b32 s{sCNT}, v{vLP}\ns_nop 0\ns_cmp_eq_u32 s{sCNT}, 0\ns_cbranch_scc1 {a}\n{b}:\ns_waitcnt lgkmcnt(0)')

X0 = 16; ACC = [[128, 144], [160, 176]]; AF = 192; WPHI = 224; T = 240; U = 224; TT = 248; NR = 4
vVA = [3, 4]; vWA = [5, 6]; vVS = 7; vR, vRM, vNRL, vSD, vCT, vNM = 8, 9, 10, 11, 12, 13; vTAG = 14

def lane_consts_tr(S, dst, tmp, cstride, rowmap):
    t0, t1, t2 = tmp, tmp + 1, tmp + 2
    S(f'v_bfe_u32 v{t0}, v{vLANE}, 2, 2')
    S(f'v_lshrrev_b32 v{t1}, 5, v{vLANE}')
    S(f'v_lshlrev_b32 v{t1}, {10 if rowmap == "A" else 9}, v{t1}\nv_lshl_add_u32 v{t1}, v{t0}, 7, v{t1}')
    S(f'v_bfe_u32 v{t0}, v{vLANE}, 3, 1\nv_lshlrev_b32 v{t0}, 6, v{t0}')
    S(f'v_bfe_u32 v{t2}, v{vLANE}, 4, 1\nv_lshlrev_b32 v{t2}, 5, v{t2}\nv_and_b32 v{dst[0]}, 3, v{vLANE}\nv_lshl_add_u32 v{t2}, v{dst[0]}, 3, v{t2}')
    S(f'v_xor_b32 v{dst[0]}, v{t2}, v{t0}\nv_add_u32 v{dst[0]}, v{dst[0]}, v{t1}')
    S(f'v_add_u32 v{t2}, {cstride}, v{t2}\nv_xor_b32 v{dst[1]}, v{t2}, v{t0}\nv_add_u32 v{dst[1]}, v{dst[1]}, v{t1}')

def trb(St, dst, hfshift, pitch, tmp):
    St(f'v_lshrrev_b32 v{tmp}, 5, v{vLANE}\nv_lshlrev_b32 v{tmp}, {hfshift}, v{tmp}\nv_bfe_u32 v{dst}, v{vLANE}, 2, 2\nv_add_u32 v{tmp}, v{tmp}, v{dst}\nv_mul_u32_u24 v{dst}, {pitch}, v{tmp}')
    St(f'v_bfe_u32 v{tmp}, v{vLANE}, 4, 1\nv_lshl_add_u32 v{dst}, v{tmp}, 5, v{dst}\nv_and_b32 v{tmp}, 3, v{vLANE}\nv_lshl_add_u32 v{dst}, v{tmp}, 3, v{dst}')

def wrap_inc(S, reg, inc, lim):
    S(f's_add_u32 s{reg}, s{reg}, {inc}\ns_cmp_eq_u32 s{reg}, {lim}\ns_cselect_b32 s{reg}, 0, s{reg}')

def c_load_x(S):
    a, b = T, T + 1
    S(f'v_lshrrev_b32 v{T+2}, 3, v{vLANE}\nv_mul_u32_u24 v{a}, 896, v{T+2}')
    S(f'v_lshrrev_b32 v{T+2}, 4, v{vLANE}\nv_and_b32 v{T+3}, 7, v{vLANE}\nv_xor_b32 v{T+2}, v{T+2}, v{T+3}\nv_lshl_add_u32 v{a}, v{T+2}, 4, v{a}\nv_xor_b32 v{b}, 64, v{a}')
    S(f'v_add_u32 v{b}, {8*896}, v{b}\nv_add_u32 v{T+2}, {16*896}, v{a}\nv_add_u32 v{T+3}, {16*896}, v{b}')
    sXB, sXL, sXR, sXO = sFT, sFS, sCOL[0], sCOL[1]
    S(f's_lshl_b32 s{sXB}, s{sRB}, 2\ns_add_u32 s{sXB}, s{sXB}, s{sWAVE}\ns_mul_i32 s{sXB}, s{sXB}, {32*896}')
    S(f's_mul_i32 s{sXL}, s{sWAVE}, {SLOT}\ns_lshl_b32 s{sXR}, s{sROT1}, 7')
    S(f's_mov_b32 s{SRD_X+2}, {2048*896}\ns_mov_b32 s{SRD_X+3}, 0x20000')
    stamp(S, 'e3')
    S(f's_waitcnt lgkmcnt(0)\ns_mov_b64 s[{SRD_X}:{SRD_X+1}], s[64:65]')
    stamp(S, 'e4')
    def xdma(lc):
        S(f's_add_u32 s{sXO}, s{sXB}, s{sXR}')
        for g in range(4):
            S(f's_add_u32 m0, s{sXL}, {lc*4096 + g*1024}')
            if g == 0 and lc < 6: wrap_inc(S, sXR, 128, 896)
            S(f'buffer_load_dwordx4 v{T+g}, {srd(SRD_X)}, s{sXO} offen lds', tok=('x', lc))
    for lc in range(Opt.xpipe): xdma(lc)
    decode2(S)
    mk_srd(S, ((SRD_WS, 82, WS_SIZE), (SRD_OUT, 78, 2048 * 896), (SRD_WO, 70, 448 * 896)))
    if Opt.xpipe >= 7: S('s_barrier')
    sT1_ = sXL
    stamp(S, 'e5')
    xa = T + 4
    S(f'v_and_b32 v{TT}, 31, v{vLANE}\nv_bfe_u32 v{TT+1}, v{vLANE}, 1, 3\nv_lshrrev_b32 v{xa}, 5, v{vLANE}\nv_xor_b32 v{TT+1}, v{TT+1}, v{xa}')
    S(f'v_lshlrev_b32 v{TT+1}, 4, v{TT+1}\nv_lshl_add_u32 v{xa}, v{TT}, 7, v{TT+1}\nv_add_u32 v{xa}, s{sXL}, v{xa}')
    for q in range(1, 4): S(f'v_xor_b32 v{xa+q}, {q*32}, v{xa}')
    S(f's_mov_b32 s{sSEL_LO}, 0x00003f80\ns_mov_b32 s{sSEL_HI}, 0x3f800000')
    S(f's_cmp_ge_u32 s{sROLE}, 8\ns_cselect_b32 s{sT0}, 56, 64')
    lane_consts_tr(S, vVA, TT, f's{sT0}', 'A')
    sA, sB, qA, qB, one = U, U + 1, U + 2, U + 3, U + 4
    S(f'v_mov_b32 v{sA}, 0\nv_mov_b32 v{sB}, 0\nv_mov_b32 v{qA}, 0\nv_mov_b32 v{qB}, 0\nv_mov_b32 v{one}, 0x3f803f80')
    def stats(lc):
        for q in range(4):
            for j in range(4):
                r = X0 + (lc * 4 + q) * 4 + j
                S(f'v_dot2c_f32_bf16 v{sA + (j & 1)}, v{r}, v{one}\nv_dot2c_f32_bf16 v{qA + (j & 1)}, v{r}, v{r}')
    for lc in range(7):
        S.wait(('x', lc))
        if lc in (0, 3, 6): stamp(S, 'e%d' % (6 + lc // 3))
        for q in range(4):
            S(f'ds_read_b128 {v(X0 + (lc*4+q)*4, 4)}, v{xa+q} offset:{lc*4096}')
        if lc == 6: S.ext(c_signal(EV_XFREE))
        if lc + Opt.xpipe < 7: xdma(lc + Opt.xpipe)
        if lc + Opt.xpipe == Opt.xbar: S('s_barrier')
        if lc > 0: stats(lc - 1)
    stamp(S, 1)
    stats(6)
    t = U + 5
    S(f'v_add_f32 v{sA}, v{sA}, v{sB}\nv_add_f32 v{qA}, v{qA}, v{qB}\nv_mov_b32 v{sB}, v{sA}\nv_mov_b32 v{qB}, v{qA}')
    S(f'v_permlane32_swap_b32 v{sA}, v{sB}\nv_permlane32_swap_b32 v{qA}, v{qB}')
    S(f'v_add_f32 v{sA}, v{sA}, v{sB}\nv_add_f32 v{qA}, v{qA}, v{qB}')
    inv = hx(f2u(1.0 / 448))
    S(f'v_mul_f32 v{sA}, {inv}, v{sA}\nv_mul_f32 v{qA}, {inv}, v{qA}')
    S(f'v_fma_f32 v{qA}, -v{sA}, v{sA}, v{qA}\nv_max_f32 v{qA}, 0, v{qA}')
    S(f'v_cvt_pk_bf16_f32 v{t}, v{sA}, v{qA}')
    S(f'v_lshlrev_b32 v{vNM}, 16, v{t}\nv_xor_b32 v{vNM}, 0x80000000, v{vNM}')
    R = Stream()
    R(f'v_and_b32 v{qA}, 0xffff0000, v{t}\nv_add_f32 v{qA}, {hx(f2u(1e-5))}, v{qA}')
    R(f'v_cvt_pk_bf16_f32 v{t}, v{qA}, v{qA}\nv_and_b32 v{qA}, 0xffff0000, v{t}\nv_sqrt_f32 v{qA}, v{qA}')
    R(f'v_nop\nv_cvt_pk_bf16_f32 v{t}, v{qA}, v{qA}\nv_and_b32 v{vSD}, 0xffff0000, v{t}\nv_rcp_f32 v{vR}, v{vSD}')
    R(f'v_nop\nv_mul_f32 v{vNRL}, {hx(f2u(-L2E))}, v{vR}\nv_cndmask_b32 v{vRM}, v{vR}, 0, {HI}')
    return R.l

def center(s):
    S = Stream()
    for j in range(4):
        r = X0 + s * 4 + j
        a, b = TT + 2 * j, TT + 2 * j + 1
        S(f'v_dot2_f32_bf16 v{a}, v{r}, s{sSEL_LO}, v{vNM}\nv_dot2_f32_bf16 v{b}, v{r}, s{sSEL_HI}, v{vNM}')
    for j in range(4):
        r = X0 + s * 4 + j
        S(f'v_cvt_pk_bf16_f32 v{r}, v{TT+2*j}, v{TT+2*j+1}')
    return S.l
def center5(s):
    S = Stream()
    for j in range(4):
        r = X0 + s * 4 + j
        a, b = TT + 2 * j, TT + 2 * j + 1
        S(f'v_lshlrev_b32 v{a}, 16, v{r}\nv_and_b32 v{b}, 0xffff0000, v{r}\nv_add_f32 v{a}, v{a}, v{vNM}\nv_add_f32 v{b}, v{b}, v{vNM}')
        S(f'v_cvt_pk_bf16_f32 v{r}, v{a}, v{b}')
    return S.l

def silu_tile(acc, u, soff, tok):
    S = Stream()
    for g in range(4):
        a = acc + 4 * g
        for i in range(4): S(f'v_mul_f32 v{TT+i}, v{a+i}, v{vNRL}')
        for i in range(4): S(f'v_exp_f32 v{TT+i}, v{TT+i}')
        for i in range(4): S(f'v_fma_f32 v{TT+i}, v{TT+i}, v{vSD}, v{vSD}')
        for i in range(4): S(f'v_rcp_f32 v{TT+i}, v{TT+i}')
        for i in range(4): S(f'v_mul_f32 v{TT+4+i}, v{a+i}, v{TT+i}')
        S(f'v_cvt_pk_bf16_f32 v{u+2*g}, v{TT+4}, v{TT+5}\nv_cvt_pk_bf16_f32 v{u+2*g+1}, v{TT+6}, v{TT+7}')
        if g % 2 == 1:
            S(f'buffer_store_dwordx4 {v(u + 4*(g//2), 4)}, v{vL16}, {srd(SRD_WS)}, s{soff[0]} offen offset:{soff[1] + 1024*(g//2)} {("sc1", "sc1 nt", "sc0 sc1", "")[Opt.stf]}', tok=tok)
    return S.l

def part(f, s, lo, hi):
    n = len(f); k = hi - lo + 1
    return f[(s - lo) * n // k:(s - lo + 1) * n // k]

CN_H1B = 14
class Steps:
    def __init__(self, single):
        self.steps = []
        for st in range(3):
            for s in range(28):
                h = st * 2 + s // 14; sp = s % 14
                p = dict(st=st, s=s, nt=2, h=h, off=sp * 2048, first=(sp == 0), last=(sp == 13), base=half_base(h), cn=h)
                if h == 1:
                    if sp < 8: p.update(base=SPARE, h1a=(sp == 7))
                    else: p.update(base=0, off=(sp - 8) * 2048, first=(sp == 8), cn=CN_H1B)
                self.steps.append(p)
        if single:
            for s in range(28):
                self.steps.append(dict(st=3, s=s, nt=1, h=6, off=s * K1, first=(s == 0), last=False, cn=6))
    def reads(self, n):
        if n >= len(self.steps): return [], []
        p = self.steps[n]; S = Stream(); pre = Stream()
        ring = AF + (n % NR) * 8
        if p['first']:
            pre.ext(cnt_check(p['cn'], vCT))
            if p['nt'] == 2:
                b = p['base']
                pre(f'v_add_u32 v{vWA[0]}, {b}, v{vVA[0]}\nv_add_u32 v{vWA[1]}, {b}, v{vVA[1]}')
        if p['nt'] == 2:
            for c in range(2):
                for u in range(2):
                    S(f'ds_read_b64_tr_b16 {v(ring + 4*c + 2*u, 2)}, v{vWA[c]} offset:{p["off"] + 512*u}', tok=('a', n))
        else:
            for u in range(2):
                S(f'ds_read_b64_tr_b16 {v(ring + 2*u, 2)}, v{vVS} offset:{p["off"] + 256*u}', tok=('a', n))
        if p['last'] and p['h'] < 4: S.ext(c_signal(EV_C0 + p['h']))
        if n + 3 < len(self.steps) and self.steps[n + 3]['first']:
            S.ext(cnt_read(self.steps[n + 3]['cn'], vCT))
        return pre.l, S.l
    def mfmas(self, n):
        p = self.steps[n]; ring = AF + (n % NR) * 8; out = []
        for c in range(p['nt']):
            acc = ACC[p['st'] % 2][c]
            C = '0' if p['s'] == 0 else v(acc, 16)
            out.append(Ins(f'v_mfma_f32_32x32x16_bf16 {v(acc,16)}, {v(ring+4*c,4)}, {v(X0+4*p["s"],4)}, {C}'))
        return out
    def stage(self, st, fill=None, perstep=None, mid=None):
        idx = [n for n, p in enumerate(self.steps) if p['st'] == st]
        groups = []
        for n in idx:
            p = self.steps[n]
            rd = self.reads(n + NR - 1)[1]
            pre = self.reads(n + NR)[0]
            m = self.mfmas(n)
            g = []
            if Opt.fine == st and p['s'] % 2 == 0 and p['s'] < 26: g.append(RAW(f's_memtime s[{72+p["s"]}:{73+p["s"]}]'))
            if mid and p['s'] in mid: g += mid[p['s']]
            on = p['s'] > 0 or perstep
            w = Stream(); w.wait(('a', n + 1))
            k = 2 if pre else 5
            if p['nt'] == 2:
                g += [m[0]] + rd + ([None] * 2 if on else []) + [m[1]] + w.l + ([None] * k if on else []) + pre
            else:
                g += [m[0]] + rd + ([None] * 3 if on else [])
            if perstep: g = interleave([g], perstep(p['s']))
            if Opt.fine == st and p['s'] == 27: g.append(RAW('s_memtime s[98:99]'))
            groups.append(g)
        if perstep: return [x for g in groups for x in g]
        return interleave(groups, fill)

def c_common(S):
    if Opt.cprio: S('s_setprio 2')
    rest = c_load_x(S)
    S.ext(cnt_read(0, vCT))
    for s in range(Opt.ncen): S.ext(center(s))
    P = Steps(True)
    for n in range(NR - 1):
        pre, rd = P.reads(n); S.ext(pre); S.ext(rd)
    stamp(S, 2)
    f = []
    for s in range(Opt.ncen, 28): f += center5(s)
    S.ext(P.stage(0, perstep=lambda s: part(f, s, 0, 25) if s < 26 else (rest if s == 26 else [])))
    stamp(S, 3)

def c_ffn(S):
    P = Steps(True)
    e = Stream(); t = T
    trb(e, vVS, 3, 64, t)
    e(f's_lshl_b32 s{sT0}, s{sRB}, 2\ns_add_u32 s{sT0}, s{sT0}, s{sWAVE}\ns_mul_i32 s{sT0}, s{sT0}, {112*K1}\ns_add_u32 s{sT0}, s{sT0}, {WS_H}')
    e(f's_mul_i32 s{sT1}, s{sIDX}, 7\ns_and_b32 s{sT2}, s{sIDX}, 1\ns_add_u32 s{sT3}, s{sT1}, s{sT2}\ns_lshl_b32 s{sT3}, s{sT3}, 11\ns_add_u32 s{sFT}, s{sT0}, s{sT3}')
    e(f's_mul_i32 s{sT2}, s{sT2}, 6\ns_sub_u32 s{sT1}, s{sT1}, s{sT2}\ns_add_u32 s{sT1}, s{sT1}, 6\ns_lshl_b32 s{sT1}, s{sT1}, 11\ns_add_u32 s{sFS}, s{sT0}, s{sT1}')
    for st in (1, 2, 3):
        pa = ACC[(st - 1) % 2]
        fill = (e.l if st == 1 else []) + [Ins(f's_add_u32 s{sT0}, s{sFT}, {(st-1)*4096}')]
        fill += silu_tile(pa[0], T, (sT0, 0), 'st') + silu_tile(pa[1], U, (sT0, 2048), 'st')
        if st == 3:
            t = Stream(); tag_prefetch(t, vTAG); fill = fill + t.l
        S.ext(P.stage(st, fill))
        stamp(S, 3 + st)
    S.ext(silu_tile(ACC[1][0], T, (sFS, 0), 'st'))

def minmax(S, X, mx, mn, t0, t1):
    for op, d in (('v_max3_f32', mx), ('v_min3_f32', mn)):
        S(f'{op} v{d}, v{X}, v{X+1}, v{X+2}')
        for i in range(3, 15, 2): S(f'{op} v{d}, v{d}, v{X+i}, v{X+i+1}')
    S(f'v_max_f32 v{mx}, v{mx}, v{X+15}\nv_min_f32 v{mn}, v{mn}, v{X+15}')
    S(f'v_mov_b32 v{t0}, v{mx}\nv_mov_b32 v{t1}, v{mn}\nv_permlane32_swap_b32 v{mx}, v{t0}\nv_permlane32_swap_b32 v{mn}, v{t1}')
    S(f'v_max_f32 v{mx}, v{mx}, v{t0}\nv_min_f32 v{mn}, v{mn}, v{t1}')
    S(f'v_mul_f32 v{mx}, {hx(f2u(-L2E))}, v{mx}\nv_mul_f32 v{mn}, {hx(f2u(L2E))}, v{mn}')

LX, LE, LT = 144, 160, 176
vLPW, vLMK, vLL2E, vLRD, vLWP = 185, 184, 186, 187, 193
def softmax_body(S, X, E0, tmp, l2e, pw, off, hook0=None):
    for i in range(4): S(f'v_cndmask_b32 v{X+12+i}, v{X+12+i}, v{X+8+i}, {HI}')
    mx, mn, t0, t1 = tmp, tmp + 2, tmp + 1, tmp + 3
    minmax(S, X, mx, mn, t0, t1)
    for sign in range(2):
        E = E0 if sign == 0 else X
        s0, s1 = tmp + 4, tmp + 5
        for i in range(16):
            if sign == 0: S(f'v_fma_f32 v{E+i}, v{X+i}, {l2e}, v{mx}')
            else: S(f'v_fma_f32 v{E+i}, -v{X+i}, {l2e}, v{mn}')
        for i in range(16): S(f'v_exp_f32 v{E+i}, v{E+i}')
        S(f'v_add_f32 v{s1}, v{E+12}, v{E+13}\nv_add_f32 v{s0}, v{E}, v{E+1}\nv_add_f32 v{s1}, v{s1}, v{E+14}')
        S(f'v_add_f32 v{s0}, v{s0}, v{E+2}\nv_add_f32 v{s1}, v{s1}, v{E+15}\nv_add_f32 v{s0}, v{s0}, v{E+3}\nv_cndmask_b32 v{s1}, v{s1}, 0, {HI}')
        for i in range(4, 12): S(f'v_add_f32 v{s0 + (i & 1)}, v{s0 + (i & 1)}, v{E+i}')
        S(f'v_add_f32 v{s0}, v{s0}, v{s1}\nv_mov_b32 v{s1}, v{s0}\nv_permlane32_swap_b32 v{s0}, v{s1}\nv_add_f32 v{s0}, v{s0}, v{s1}\nv_rcp_f32 v{s0}, v{s0}')
        for i in range(16): S(f'v_mul_f32 v{E+i}, v{E+i}, v{s0}')
        for i in range(8): S(f'v_cvt_pk_bf16_f32 v{E+i}, v{E+2*i}, v{E+2*i+1}')
        for qd in range(3):
            S(f'ds_write_b64 v{pw}, {v(E+2*qd, 2)} offset:{off + sign*56 + qd*16}')
        g = Stream(); g(f's_mov_b64 exec, 0xffffffff\nds_write_b64 v{pw}, {v(E+6, 2)} offset:{off + sign*56 + 48}\ns_mov_b64 exec, -1')
        S.l.append(Group(g.l))
        if sign == 0 and hook0: S.ext(hook0)

def softmax_k(hook0):
    S = Stream()
    rw = LE
    S(f'ds_read_b128 {v(rw,4)}, v{vLRD}\nds_read_b128 {v(rw+4,4)}, v{vLRD} offset:1024')
    for st in range(2):
        for u in range(2):
            S(f'ds_read_b64_tr_b16 {v(rw + 8 + 4*st + 2*u, 2)}, v{vLWP} offset:{(16*st + 8*u)*56}')
    S(f'v_mfma_f32_32x32x16_bf16 {v(LX,16)}, {v(rw+8,4)}, {v(rw,4)}, 0')
    S(f'v_mfma_f32_32x32x16_bf16 {v(LX,16)}, {v(rw+12,4)}, {v(rw+4,4)}, {v(LX,16)}')
    softmax_body(S, LX, LE, LT, f'v{vLL2E}', vLPW, 0, hook0)
    return S.l

def scale_pack(acc, dst, masked=True):
    S = Stream()
    for i in range(16): S(f'v_mul_f32 v{acc+i}, v{acc+i}, v{vRM if (masked and i >= 12) else vR}')
    for i in range(8): S(f'v_cvt_pk_bf16_f32 v{dst+i}, v{acc+2*i}, v{acc+2*i+1}')
    return S.l

def phi_mfma(acc, c, b):
    return [Ins(f'v_mfma_f32_32x32x16_bf16 {v(acc,16)}, {v(WPHI+8*c,4)}, {v(b,4)}, 0'),
            Ins(f'v_mfma_f32_32x32x16_bf16 {v(acc,16)}, {v(WPHI+8*c+4,4)}, {v(b+4,4)}, {v(acc,16)}')]

def c_attn(S):
    vHO, vVW, vWP = vVS, vNRL, vSD
    P = Steps(False)
    e = Stream(); t = TT
    trb(e, vWP, 2, 56, t)
    e(f'v_add_u32 v{vWP}, {WPHI_L}, v{vWP}')
    for c in range(2):
        for st in range(2):
            for u in range(2):
                e(f'ds_read_b64_tr_b16 {v(WPHI + 8*c + 4*st + 2*u, 2)}, v{vWP} offset:{c*1568 + (16*st + 8*u)*56}')
    ka = ACC[0]
    vPW = vNM
    h0 = Stream()
    h0(f's_lshl_b32 s{sT0}, s{sWAVE}, 12\ns_add_u32 s{sT0}, s{sT0}, {SPARE}\nv_add_u32 v{vHO}, s{sT0}, v{vL16}')
    h0.ext(scale_pack(ka[0], T))
    h0(f'ds_write_b128 v{vHO}, {v(T,4)}\nds_write_b128 v{vHO}, {v(T+4,4)} offset:1024')
    f1 = h0.l + c_signal(EV_PK)
    f1b = e.l + scale_pack(ka[1], T)
    sm = Stream(); softmax_body(sm, ka[1], ka[0], TT, f's{sL2E}', vPW, 14336)
    t = Stream()
    t(f'v_and_b32 v{TT+3}, 31, v{vLANE}\ns_lshl_b32 s{sT0}, s{sWAVE}, 5\nv_add_u32 v{TT+3}, s{sT0}, v{TT+3}\nv_lshrrev_b32 v{TT+4}, 5, v{vLANE}\nv_lshlrev_b32 v{TT+4}, 3, v{TT+4}')
    t(f'v_mul_u32_u24 v{vVW}, 72, v{TT+3}\nv_add_u32 v{vVW}, v{vVW}, v{TT+4}\nv_add_u32 v{vVW}, {SLOT}, v{vVW}')
    t(f'v_mul_u32_u24 v{vPW}, 112, v{TT+3}\nv_add_u32 v{vPW}, v{vPW}, v{TT+4}')
    f3 = t.l
    g1, g2 = c_allflags(EV_C2, T, T + 4)
    k1, k2 = c_allflags(EV_C1, TT, TT + 4)
    f1 = k1 + f1
    assert all(not x.op.startswith('ds_write') for x in part(f1, 1, 1, 4) + part(f1, 2, 1, 4))
    f2 = f1b + f3
    def ps1(s):
        if 1 <= s <= 4: return part(f1, s, 1, 4)
        if 5 <= s <= 9: return part(f2, s, 5, 9)
        if 11 <= s <= 27: return part(sm.l[:Opt.smin], s, 11, 27) + (g1 if s == 24 else [])
        return []
    S.ext(P.stage(1, perstep=ps1, mid={3: k2, 10: phi_mfma(ka[1], 1, T), 27: g2}))
    stamp(S, 4)
    va = ACC[1]
    t = Stream()
    for c in range(2):
        t.ext(scale_pack(va[c], T, masked=False))
        d = T
        t(f'v_cndmask_b32 v{d+6}, v{d+6}, v{TT+7}, {HI}\nv_cndmask_b32 v{d+7}, v{d+7}, 0, {HI}')
        for qd in range(4): t(f'ds_write_b64 v{vVW}, {v(d+2*qd, 2)} offset:{c*9216 + qd*16}')
    vfill = [Ins(f'v_mov_b32 v{TT+7}, 0x3f80')] + t.l
    if Opt.smin < len(sm.l):
        S.ext(sm.l[Opt.smin:Opt.smin + 14]); S.ext(vfill); S.ext(sm.l[Opt.smin + 14:]); S.ext(c_signal(EV_V)); vfill = []
        stamp(S, 11)
    else:
        vfill += c_signal(EV_V)
    tp = Stream(); tag_prefetch(tp, vTAG)
    def ps2(s):
        if 1 <= s <= Opt.vsteps: return part(vfill, s, 1, Opt.vsteps)
        if s == 20: return tp.l
        return []
    S.ext(P.stage(2, perstep=ps2))
    stamp(S, 5)
    S.ext(c_signal(EV_END))
    qa = ACC[0]
    S(f'v_mov_b32 v{TT}, s{sL2E}')
    S.ext(scale_pack(qa[0], T)); S.ext(phi_mfma(qa[0], 0, T)); S.ext(scale_pack(qa[1], AF + 16)); S.ext(phi_mfma(qa[1], 1, AF + 16))
    out_addr(S, XT, 32)
    for c in range(2):
        X = qa[c]; E = va[c]; d = AF + 16 * c
        for i in range(4): S(f'v_cndmask_b32 v{X+12+i}, v{X+12+i}, v{X+8+i}, {HI}')
        mx, mn = TT + 4, TT + 6
        minmax(S, X, mx, mn, TT + 5, TT + 7)
        for i in range(0, 16, 2): S(f'v_pk_fma_f32 {v(E+i,2)}, {v(X+i,2)}, {v(TT,2)}, {v(mx,2)} op_sel_hi:[1,0,0]')
        for i in range(16): S(f'v_exp_f32 v{E+i}, v{E+i}')
        for i in range(8): S(f'v_cvt_pk_bf16_f32 v{d+i}, v{E+2*i}, v{E+2*i+1}')
        for i in range(0, 16, 2): S(f'v_pk_fma_f32 {v(X+i,2)}, {v(X+i,2)}, {v(TT,2)}, {v(mn,2)} op_sel_hi:[1,0,0] neg_lo:[1,0,0] neg_hi:[1,0,0]')
        for i in range(16): S(f'v_exp_f32 v{X+i}, v{X+i}')
        for i in range(8): S(f'v_cvt_pk_bf16_f32 v{d+8+i}, v{X+2*i}, v{X+2*i+1}')
    stamp(S, 6)
    if Opt.oprio: S('s_setprio 2')
    tag_get(S, vTAG)
    PB, KF = 16, 160
    S(f's_lshl_b32 s{sT0}, s{sIDX}, 10\ns_add_u32 s{sT0}, s{sT0}, {WS_FK}\ns_lshl_b32 s{sT1}, s{sIDX}, 13\ns_add_u32 s{sT1}, s{sT1}, {WS_KVF}\ns_add_u32 s{sT2}, s{sT1}, 4096')
    S(f's_lshl_b32 s{sFS}, s{sRB}, 2\ns_add_u32 s{sFS}, s{sFS}, s{sWAVE}\ns_lshl_b32 s{sFS}, s{sFS}, 3\ns_add_u32 s{sFS}, s{sFS}, s{sIDX}\ns_lshl_b32 s{sFS}, s{sFS}, 12\ns_add_u32 s{sFS}, s{sFS}, {WS_PQ}')
    S(f'v_lshlrev_b32 v8, 7, v{vLANE}\nv_lshlrev_b32 v13, 2, v{vLANE}\nv_add_u32 v13, {CTL}, v13\nv_mov_b32 v9, 4')
    g_ = CN_W2 if False else CN_KG
    S.ext(cnt_read(g_, vCT)); S.ext(cnt_check(g_, vCT, 1))
    stamp(S, 8)
    again, oth, done = newlab('kv'), newlab('kv'), newlab('kv')
    S(f's_waitcnt vmcnt(0)\ns_mov_b32 s{sBND}, 0\ns_cmp_lg_u32 s{sW4}, 0\ns_cbranch_scc1 {oth}')
    raw(S, f'{again}:\ns_mov_b64 exec, 0xff\nbuffer_load_dword v10, v8, {srd(SRD_WS)}, s{sT0} offen sc1\ns_waitcnt vmcnt(0)\nv_cmp_ne_u32 vcc, s{sTAG}, v10\ns_nop 1\ns_cbranch_vccz {done}\n'
           f's_add_u32 s{sBND}, s{sBND}, 1\ns_cmp_gt_u32 s{sBND}, 0x400000\ns_cbranch_scc1 {done}\ns_sleep {Opt.rsleep}\ns_branch {again}\n'
           f'{done}:\ns_mov_b64 exec, 15\nds_write_b32 v13, v9 offset:{128 + 16*CN_KV}\ns_mov_b64 exec, -1\n{oth}:')
    S.ext(cnt_read(CN_KV, vCT)); S.ext(cnt_check(CN_KV, vCT, 0))
    stamp(S, 9)
    for j in range(8):
        S(f'buffer_load_dwordx4 {v(KF+4*j,4)}, v{vL16}, {srd(SRD_WS)}, s{sT1 + j//4} offen offset:{(j%4)*1024} sc1')
    for c in range(2):
        S.ext(num_mfma(PB + 32 * c, KF + 16 * c, AF + 16 * c))
    for c in range(2):
        S.ext(onorm(PB + 32 * c, AF + 16 * c))
        for hh in range(2):
            S(f'buffer_store_dwordx4 {v(AF+16*c+4*hh,4)}, v{vL16}, {srd(SRD_WS)}, s{sFS} offen offset:{c*2048 + hh*1024} sc1', tok='st')
    stamp(S, 10)

def num_mfma(aP, kb, ph):
    aN = aP + 16
    return [Ins(f'v_mfma_f32_32x32x16_bf16 {v(aP,16)}, {v(kb,4)}, {v(ph,4)}, 0'),
            Ins(f'v_mfma_f32_32x32x16_bf16 {v(aN,16)}, {v(kb+8,4)}, {v(ph+8,4)}, 0'),
            Ins(f'v_mfma_f32_32x32x16_bf16 {v(aP,16)}, {v(kb+4,4)}, {v(ph+4,4)}, {v(aP,16)}'),
            Ins(f'v_mfma_f32_32x32x16_bf16 {v(aN,16)}, {v(kb+12,4)}, {v(ph+12,4)}, {v(aN,16)}')]
def onorm(aP, ph):
    S = Stream()
    aN = aP + 16
    rP, rN, dn, a, b = TT, TT + 1, TT + 2, TT + 3, TT + 4
    S(f'v_rcp_f32 v{rP}, v{aP+13}\nv_rcp_f32 v{rN}, v{aN+13}')
    S(f'v_mov_b32 v{dn}, {hx(f2u(1e-6))}\nv_fmac_f32 v{dn}, v{aP+12}, v{rP}\nv_fmac_f32 v{dn}, v{aN+12}, v{rN}\nv_rcp_f32 v{dn}, v{dn}')
    S(f'v_mul_f32 v{rP}, v{rP}, v{dn}\nv_mul_f32 v{rN}, v{rN}, v{dn}\nv_mov_b32 v{a}, v{rP}\nv_mov_b32 v{b}, v{rN}')
    S(f'v_permlane32_swap_b32 v{rP}, v{a}\nv_permlane32_swap_b32 v{rN}, v{b}')
    for i in range(16): S(f'v_mul_f32 v{aP+i}, v{aP+i}, v{a}')
    for i in range(16): S(f'v_fmac_f32 v{aP+i}, v{aN+i}, v{b}')
    for i in range(8): S(f'v_cvt_pk_bf16_f32 v{ph+i}, v{aP+2*i}, v{aP+2*i+1}')
    S(f'v_cndmask_b32 v{ph+6}, v{ph+6}, 0, {HI}\nv_cndmask_b32 v{ph+7}, v{ph+7}, 0, {HI}')
    return S.l

def wo_dma(S, va, vb, thr=None):
    S(f's_lshl_b32 s{sT2}, s{sW4}, 14\ns_add_u32 s{sT2}, s{sT2}, {A_BASE}\ns_lshl_b32 s{sU0}, s{sCB}, 7')
    for hd in range(4):
        S(f's_add_u32 s{sT0}, s{sCB}, {hd}\ns_and_b32 s{sT0}, s{sT0}, 3\ns_lshl_b32 s{sT1}, s{sW4}, 2\ns_add_u32 s{sT0}, s{sT0}, s{sT1}\ns_mul_i32 s{sT0}, s{sT0}, {28*896}\ns_add_u32 s{sT0}, s{sT0}, s{sU0}')
        for i in range(4):
            S(f's_add_u32 m0, s{sT2}, {hd*4096 + i*1024}')
            if thr: S(f's_waitcnt vmcnt({thr})')
            if i == 2: S(f's_add_u32 s{sT0}, s{sT0}, {16*896}')
            if hd == 3 and i == 3: S(f's_cmp_eq_u32 s{sW4}, 3\ns_cselect_b32 exec_hi, 0, -1')
            S(f'buffer_load_dwordx4 v{va if i % 2 == 0 else vb}, {srd(SRD_WO)}, s{sT0} offen lds', tok='wo')
    S('s_mov_b64 exec, -1')

PHI = 16; PN = 144; XT = 236
vO = 3; vVW2 = [6, 7]
def out_addr(S, xt, off):
    S(f'v_and_b32 v8, 31, v{vLANE}\nv_mul_u32_u24 v{vO}, 896, v8\nv_lshrrev_b32 v8, 5, v{vLANE}\nv_lshl_add_u32 v{vO}, v8, 4, v{vO}')
    S(f's_and_b32 s{sT0}, s{sW4}, 1\ns_lshl_b32 s{sT1}, s{sTB}, 1\ns_add_u32 s{sT0}, s{sT0}, s{sT1}\ns_mul_i32 s{sFT}, s{sT0}, {32*896}')
    S(f's_lshr_b32 s{sT0}, s{sW4}, 1\ns_lshl_b32 s{sT0}, s{sT0}, 6\ns_add_u32 s{sFT}, s{sFT}, s{sT0}\ns_lshl_b32 s{sT0}, s{sCB}, 7\ns_add_u32 s{sFT}, s{sFT}, s{sT0}')
    S(f'buffer_load_dwordx4 {v(xt,4)}, v{vO}, {srd(SRD_X)}, s{sFT} offen offset:{off}')

def final_half(S, isA, acc, xt):
    own = acc + 48 + (8 if isA else 0)
    oth = acc + 48 + (0 if isA else 8)
    reg = A_REG if isA else F_REG; base = A_BASE if isA else 0
    ho = 2048 if isA else 0
    W = [16, 17, 18, 19]
    S(f's_mul_i32 s{sT3}, s{sW4}, {reg}')
    for vq in range(4):
        S(f's_xor_b32 s{sT0}, s{sW4}, {vq ^ 3}\ns_lshl_b32 s{sT0}, s{sT0}, 12\ns_add_u32 s{sT0}, s{sT0}, s{sT3}\ns_add_u32 s{sT0}, s{sT0}, {base}\nv_add_u32 v{W[vq]}, s{sT0}, v{vL16}')
    for i in range(2):
        S(f'ds_write_b128 v{W[3]}, {v(oth+4*i,4)} offset:{(2048 - ho) + i*1024}')
    for vq in range(3):
        for i in range(4):
            S(f'ds_write_b128 v{W[vq]}, {v(acc+16*vq+4*i,4)} offset:{i*1024}')
    S(f's_lshl_b32 s{sT2}, s{sW4}, 12\ns_add_u32 s{sT2}, s{sT2}, {ho}')
    for k in range(1, 4):
        S(f's_xor_b32 s{sT0}, s{sW4}, {k}\ns_mul_i32 s{sT0}, s{sT0}, {reg}\ns_add_u32 s{sT0}, s{sT0}, s{sT2}\ns_add_u32 s{sT0}, s{sT0}, {base}\nv_add_u32 v{19+k}, s{sT0}, v{vL16}')
    oreg = F_REG if isA else A_REG; obase = 0 if isA else A_BASE
    S(f's_add_u32 s{sT0}, s{sT2}, {obase}\nv_add_u32 v23, s{sT0}, v{vL16}\nv_add_u32 v24, {2*oreg}, v23')
    S(f'v_permlane32_swap_b32 v{xt}, v{xt+2}\nv_permlane32_swap_b32 v{xt+1}, v{xt+3}')
    E = 96
    for i in range(4): S(f'v_lshlrev_b32 v{E+2*i}, 16, v{xt+i}\nv_and_b32 v{E+2*i+1}, 0xffff0000, v{xt+i}')
    S('s_waitcnt lgkmcnt(0)\ns_barrier')
    stamp(S, 13 if isA else 14)
    O, P_ = 32, 64
    rdO = [f'ds_read_b128 {v(O+8*f+4*i,4)}, v{23 + f//2} offset:{(f%2)*oreg + i*1024}' for f in range(4) for i in range(2)]
    rdP = [f'ds_read_b128 {v(P_+8*k+4*i,4)}, v{20+k} offset:{i*1024}' for k in range(3) for i in range(2)]
    for r in (rdO + rdP if isA else rdP + rdO): S(r)
    def sumO():
        for i in range(8): S(f'v_add_f32 v{O+i}, v{O+i}, v{O+8+i}')
        for i in range(8): S(f'v_add_f32 v{O+16+i}, v{O+16+i}, v{O+24+i}')
        for i in range(8): S(f'v_add_f32 v{O+i}, v{O+i}, v{O+16+i}')
    def sumP():
        for i in range(8): S(f'v_add_f32 v{P_+i}, v{P_+i}, v{own+i}')
        for i in range(8): S(f'v_add_f32 v{P_+8+i}, v{P_+8+i}, v{P_+16+i}')
        for i in range(8): S(f'v_add_f32 v{P_+i}, v{P_+i}, v{P_+8+i}')
    G, Sg = (O, P_) if isA else (P_, O)
    (sumO if isA else sumP)()
    Q = 104
    for i in range(8): S(f'v_mul_f32 v{Q+i}, {hx(f2u(-L2E))}, v{G+i}')
    for i in range(8): S(f'v_exp_f32 v{Q+i}, v{Q+i}')
    (sumP if isA else sumO)()
    for i in range(8): S(f'v_add_f32 v{Q+i}, 1.0, v{Q+i}')
    for i in range(8): S(f'v_rcp_f32 v{Q+i}, v{Q+i}')
    for i in range(8): S(f'v_mul_f32 v{G+i}, v{G+i}, v{Sg+i}')
    for i in range(8): S(f'v_fmac_f32 v{E+i}, v{G+i}, v{Q+i}')
    for i in range(4): S(f'v_cvt_pk_bf16_f32 v{xt+i}, v{E+2*i}, v{E+2*i+1}')
    S(f'v_permlane32_swap_b32 v{xt}, v{xt+2}\nv_permlane32_swap_b32 v{xt+1}, v{xt+3}')
    S(f'buffer_store_dwordx4 {v(xt,4)}, v{vO}, {srd(SRD_OUT)}, s{sFT} offen offset:{32 if isA else 0}')

def c_publish(S, attn, tile):
    if tile and not attn: S.ext(c_signal(EV_END))
    S(f's_lshl_b32 s{sFS}, s{sRB}, 1\ns_lshr_b32 s{sT1}, s{sW4}, 1\ns_add_u32 s{sFS}, s{sFS}, s{sT1}\ns_lshl_b32 s{sFS}, s{sFS}, 15\ns_lshl_b32 s{sT1}, s{sROLE}, 8\ns_add_u32 s{sFS}, s{sFS}, s{sT1}')
    S(f's_and_b32 s{sT1}, s{sW4}, 1\ns_lshl_b32 s{sT1}, s{sT1}, 7\ns_add_u32 s{sFS}, s{sFS}, s{sT1}\ns_add_u32 s{sFS}, s{sFS}, {WS_FH}')
    if tile:
        lane_consts_tr(S, vVW2, 8, 64, 'B')
        S(f's_lshr_b32 s{sT0}, s{sW4}, 1\ns_lshl_b32 s{sT3}, s{sT0}, 15\ns_add_u32 s{sT3}, s{sT3}, {A_BASE}\ns_xor_b32 s{sT1}, s{sT0}, 1\ns_lshl_b32 s{sT1}, s{sT1}, 6')
        S(f'v_add_u32 v{vVW2[0]}, s{sT3}, v{vVW2[0]}\nv_xor_b32 v{vVW2[0]}, s{sT1}, v{vVW2[0]}\nv_xor_b32 v{vVW2[1]}, 64, v{vVW2[0]}')
    if not attn: tag_get(S, vTAG)
    S.wait('st')
    flag_store(S, sFS, TT, 7, 12)
    if attn and Opt.oprio: S('s_setprio 0')
    stamp(S, 7)
    if tile and not attn:
        out_addr(S, XT, 32)

W2R = 16; FACC = 144; HR = 208
vLW, vLS, vL2 = 3, 4, 5
def swz_voff(S, dst, pitch, tmp):
    S(f'v_lshrrev_b32 v{tmp}, 3, v{vLANE}')
    S(f'v_mul_lo_u32 v{dst}, v{tmp}, {pitch}' if isinstance(pitch, str) else f'v_mul_u32_u24 v{dst}, {pitch}, v{tmp}')
    S(f'v_bfe_u32 v{tmp}, v{vLANE}, 4, 1\nv_lshlrev_b32 v{tmp}, 2, v{tmp}\nv_and_b32 v{tmp+1}, 7, v{vLANE}\nv_xor_b32 v{tmp}, v{tmp}, v{tmp+1}\nv_lshl_add_u32 v{dst}, v{tmp}, 4, v{dst}')
def flat(l): return [x for y in l for x in y]
def sprinkle(main, units, start=0):
    out = []; n = len(main) - start; k = len(units); j = 0
    for i, x in enumerate(main):
        while j < k and i >= start and (j + 0.5) * n / max(k, 1) <= i - start and x.kind in ('valu', 'trans'):
            out += units[j]; j += 1
        out.append(x)
    return out + flat(units[j:])

def l_phase1(S, ffn, tile):
    sBLK, sP64, sP448, sP32, sW2, sK2 = sU0, sU1, sU2, sU3, sU4, sU5
    S(f's_mul_i32 s{sFS}, s{sW4}, s{sPITCH}\ns_lshl_b32 s{sFS}, s{sFS}, 3')
    S(f's_lshl_b32 s{sT3}, s{sW4}, 10\ns_lshl_b32 s{sP64}, s{sPITCH}, 6\ns_lshl_b32 s{sP32}, s{sPITCH}, 5\ns_mul_i32 s{sP448}, s{sPITCH}, 448\ns_mul_i32 s{sBLK}, s{sP64}, s{sROT1}')
    def dma_half(h):
        units = []
        st = h // 2
        for k in range(7):
            St = Stream()
            kk = (h % 2) * 7 + k
            St(f's_add_u32 m0, s{sT3}, {(half_base(h) + k*4096) if h != 1 else (SPARE + k*4096 if k < 4 else (k - 4)*4096)}')
            if kk % 2 == 0:
                St(f's_add_u32 s{sT0}, s{sBLK}, s{sFS}\ns_add_u32 s{sT0}, s{sT0}, s{sCOL[st]}')
            else:
                if k == 0: St(f's_add_u32 s{sT0}, s{sBLK}, s{sFS}\ns_add_u32 s{sT0}, s{sT0}, s{sCOL[st]}')
                St(f's_add_u32 s{sT0}, s{sT0}, s{sP32}')
                wrap_inc(St, sBLK, f's{sP64}', f's{sP448}')
            St(f'buffer_load_dwordx4 v{vLW}, {srd(SRD_W)}, s{sT0} offen lds', tok=('h', h if not (h == 1 and k >= 4) else CN_H1B))
            units.append(St.l)
        return units
    def sig(h):
        S.wait(('h', h))
        if h < 5: stamp(S, 2 + h)
        l_signal(S, h)
    if Opt.cpf:
        lab = newlab('pc')
        S(f's_getpc_b64 s[72:73]\n{lab}:\ns_sub_u32 s72, s72, {lab} - {NAME}\ns_subb_u32 s73, s73, 0')
        S(f's_lshl_b32 s{sT0}, s{sI}, 2\ns_add_u32 s{sT0}, s{sT0}, s{sW4}\ns_lshl_b32 s{sT0}, s{sT0}, 2\nv_add_u32 v8, s{sT0}, v{vLANE}\nv_lshlrev_b32 v8, 7, v8\nv_min_u32 v8, L_end - {NAME}, v8')
        S(f's_mov_b64 exec, 15\nglobal_load_dword v200, v8, s[72:73]\ns_mov_b64 exec, -1')
    S('s_barrier')
    S.ext(flat(dma_half(0)))
    if not ffn:
        S(f's_add_u32 m0, s{sT3}, {WPHI_L}\ns_mul_i32 s{sT0}, s{sIDX}, 3136\ns_add_u32 s{sT0}, s{sT0}, s{sT3}\ns_cmp_eq_u32 s{sW4}, 3\ns_cselect_b32 exec_hi, 0, -1')
        S(f'buffer_load_dwordx4 v{vL16}, {srd(SRD_WPHI)}, s{sT0} offen lds', tok=('h', 0))
        S('s_mov_b64 exec, -1')
    h1 = dma_half(1)
    S.ext(flat(h1[:4]))
    if Opt.tlb:
        st_ = Opt.tlb
        S(f'v_lshlrev_b32 v8, {st_}, v{vLANE}')
        S(f's_mul_i32 s{sT0}, s{sTB}, {224*K1}\ns_lshl_b32 s{sT1}, s{sTB}, 17\ns_add_u32 s{sT1}, s{sT1}, {WS_PQ}\ns_cmp_eq_u32 s{sW4}, 1\ns_cselect_b32 s{sT0}, s{sT1}, s{sT0}')
        S(f's_mov_b32 s{sT1}, {WS_KVF}\ns_cmp_eq_u32 s{sW4}, 2\ns_cselect_b32 s{sT0}, s{sT1}, s{sT0}')
        S(f's_mul_i32 s{sT1}, s{sRB}, {448*K1}\ns_cmp_eq_u32 s{sW4}, 3\ns_cselect_b32 s{sT0}, s{sT1}, s{sT0}')
        n_ = min(64, (448 * K1) >> st_)
        S(f's_mov_b32 exec_lo, {hex(((1 << n_) - 1) & 0xffffffff)}\ns_mov_b32 exec_hi, {hex(((1 << n_) - 1) >> 32)}')
        S(f'buffer_load_dword v200, v8, {srd(SRD_WS)}, s{sT0} offen sc1\ns_mul_i32 s{sT1}, s{sTB}, {64*896}\ns_mov_b64 exec, 3\nbuffer_load_dword v200, v8, {srd(SRD_OUT)}, s{sT1} offen\nbuffer_load_dword v200, v8, {srd(SRD_W2)}, 0 offen\nbuffer_load_dword v200, v8, {srd(SRD_WO)}, 0 offen\ns_mov_b64 exec, -1')
    stamp(S, 'e5')
    lab = newlab('nt')
    S(f's_or_b32 s{sT0}, s2, s{sW4}\ns_cmp_lg_u32 s{sT0}, 0\ns_cbranch_scc1 {lab}')
    raw(S, f's_mov_b32 s{sT0}, {WS_TAG}\nv_mov_b32 v9, 0\ns_mov_b64 exec, 1\nbuffer_load_dword v8, v9, {srd(SRD_WS)}, s{sT0} offen sc1\ns_waitcnt vmcnt(0)\n'
           f'v_add_u32 v8, 1, v8\nv_max_u32 v8, 1, v8\ns_nop 1\nbuffer_store_dword v8, v9, {srd(SRD_WS)}, s{sT0} offen sc1\nbuffer_store_dword v8, v9, {srd(SRD_DBG)}, 0 offen sc1\ns_waitcnt vmcnt(0)\ns_mov_b64 exec, -1\n{lab}:')
    S(f'v_lshlrev_b32 v{vLC}, 2, v{vLANE}\nv_add_u32 v{vLC}, {CTL}, v{vLC}\nv_mov_b32 v{vLONE}, 1\nv_mov_b32 v{vLP+4}, {CTL}')
    if ffn:
        S(f'v_lshrrev_b32 v8, 2, v{vLANE}\nv_mul_u32_u24 v{vLS}, 3584, v8\nv_and_b32 v8, 3, v{vLANE}\nv_lshl_add_u32 v{vLS}, v8, 4, v{vLS}')
    else:
        S(f'v_and_b32 v8, 31, v{vLANE}\ns_lshl_b32 s{sT0}, s{sW4}, 5\nv_add_u32 v8, s{sT0}, v8\nv_lshrrev_b32 v9, 5, v{vLANE}\nv_lshlrev_b32 v9, 3, v9')
        S(f'v_mul_u32_u24 v{vLPW}, 112, v8\nv_add_u32 v{vLPW}, v{vLPW}, v9')
        S(f'v_cndmask_b32 v{vLMK}, 1.0, 0, {HI}\nv_mov_b32 v{vLL2E}, s{sL2E}')
        trb(S, vLWP, 2, 56, 8)
        S(f'v_add_u32 v{vLWP}, {WPHI_L}, v{vLWP}')
    S(f's_lshl_b32 s{sT0}, s{sW4}, 12\ns_add_u32 s{sT0}, s{sT0}, {SPARE}\nv_add_u32 v{vLRD}, s{sT0}, v{vL16}')
    if tile:
        S(f's_mov_b32 s{sT1}, 896'); swz_voff(S, vL2, f's{sT1}', 8)
        lane_consts_tr(S, vVW2, 8, 64, 'B')
        S(f's_xor_b32 s{sT1}, s{sW4}, 3\ns_lshr_b32 s{sT1}, s{sT1}, 1\ns_lshl_b32 s{sT1}, s{sT1}, 6\nv_xor_b32 v{vVW2[0]}, s{sT1}, v{vVW2[0]}\nv_xor_b32 v{vVW2[1]}, 64, v{vVW2[0]}')
        S(f's_mul_i32 s{sW2}, s{sW4}, {448*896}\ns_lshl_b32 s{sT2}, s{sCB}, 7\ns_add_u32 s{sW2}, s{sW2}, s{sT2}\ns_mul_i32 s{sK2}, s{sROT2}, {16*896}')
        S(f'v_add_u32 v13, {8*896}, v{vL2}')
    def w2stage(base, stride, ns):
        if not tile: return
        S(f's_mul_i32 s{sT2}, s{sW4}, {stride}\ns_add_u32 s{sT2}, s{sT2}, {base}\nv_add_u32 v9, s{sT2}, v{vVW2[0]}\nv_add_u32 v10, s{sT2}, v{vVW2[1]}')
        def dma(ks):
            o = (ks % ns) * 2048
            S(f's_add_u32 m0, s{sT2}, {o}\ns_add_u32 s{sT1}, s{sW2}, s{sK2}')
            if ks >= ns: S.wait(('wr', ks - ns))
            S(f'buffer_load_dwordx4 v{vL2}, {srd(SRD_W2)}, s{sT1} offen lds', tok=('w', ks))
            S(f's_add_u32 m0, s{sT2}, {o + 1024}')
            wrap_inc(S, sK2, 16 * 896, 448 * 896)
            S(f'buffer_load_dwordx4 v13, {srd(SRD_W2)}, s{sT1} offen lds', tok=('w', ks))
        d = ns - 1
        for ks in range(min(d, Opt.nreg)): dma(ks)
        for ks in range(Opt.nreg):
            if ks + d < Opt.nreg: dma(ks + d)
            S.wait(('w', ks))
            o = (ks % ns) * 2048; b = W2R + 8 * ks
            for c in range(2):
                for u in range(2):
                    S(f'ds_read_b64_tr_b16 {v(b + 4*c + 2*u, 2)}, v{9+c} offset:{o + 1024*u}', tok=('wr', ks))
            if not ffn and ks in (0, 8): stamp(S, 3 + ks // 8)
    def w2raw(lo, hi):
        if not tile: return
        for ks in range(lo, hi):
            S(f's_add_u32 s{sT1}, s{sW2}, s{sK2}')
            S(f'buffer_load_dwordx4 {v(W2R+8*ks,4)}, v{vL2}, {srd(SRD_W2)}, s{sT1} offen')
            S(f'buffer_load_dwordx4 {v(W2R+8*ks+4,4)}, v13, {srd(SRD_W2)}, s{sT1} offen')
            wrap_inc(S, sK2, 16 * 896, 448 * 896)
    def tr(lo, hi):
        if not tile: return
        if lo == 0: S(f's_lshl_b32 s{sT0}, s{sW4}, 12\ns_add_u32 s{sT0}, s{sT0}, {SPARE}\nv_add_u32 v9, s{sT0}, v{vVW2[0]}\nv_add_u32 v10, s{sT0}, v{vVW2[1]}')
        for ks in range(lo, hi):
            o = (ks % 2) * 2048; b = W2R + 8 * ks
            S(f'ds_write_b128 v{vLRD}, {v(b,4)} offset:{o}\nds_write_b128 v{vLRD}, {v(b+4,4)} offset:{o+1024}')
            for c in range(2):
                for u in range(2):
                    S(f'ds_read_b64_tr_b16 {v(b + 4*c + 2*u, 2)}, v{9+c} offset:{o + 1024*u}')
    DUM = 200
    def pf(srd_, voff, soff, n):
        S(f's_mov_b32 exec_hi, {hex((1 << (n - 32)) - 1)}\nbuffer_load_dword v{DUM}, v{voff}, {srd(srd_)}, s{soff} offen\ns_mov_b32 exec_hi, -1', tok='pf')
    if Opt.wpf:
        S(f'v_mul_lo_u32 v14, v{vLANE}, s{sPITCH}\ns_and_b32 s{sT0}, s{sI}, 3\ns_mul_i32 s{sT0}, s{sT0}, 112')
        if ffn:
            S(f's_mul_i32 s{sT0}, s{sT0}, s{sPITCH}\ns_lshl_b32 s{sT1}, s{sW4}, 7\ns_add_u32 s{sT1}, s{sT1}, s{sCOL[0]}\ns_cmp_eq_u32 s{sW4}, 3\ns_cselect_b32 s{sT1}, s{sCOLS}, s{sT1}\ns_add_u32 s{sT0}, s{sT0}, s{sT1}')
            pf(SRD_W, 14, sT0, 56)
            S(f's_add_u32 s{sT0}, s{sT0}, {56*3584}')
            pf(SRD_W, 14, sT0, 56)
        else:
            S(f's_lshr_b32 s{sT1}, s{sW4}, 1\ns_mul_i32 s{sT1}, s{sT1}, 56\ns_add_u32 s{sT0}, s{sT0}, s{sT1}\ns_mul_i32 s{sT0}, s{sT0}, s{sPITCH}\ns_and_b32 s{sT1}, s{sW4}, 1\ns_mul_i32 s{sT1}, s{sT1}, 124\ns_add_u32 s{sT0}, s{sT0}, s{sT1}')
            for st in range(3):
                S(f's_add_u32 s{sT1}, s{sT0}, s{sCOL[st]}')
                pf(SRD_W, 14, sT1, 56)
    def w2_prefetch():
        if not Opt.w2pf: return
        S(f'v_lshlrev_b32 v14, 7, v{vLANE}\ns_lshl_b32 s{sT0}, s{sI}, 2\ns_add_u32 s{sT0}, s{sT0}, s{sW4}\ns_mul_i32 s{sT1}, s{sT0}, {98*128}')
        pf(SRD_W2, 14, sT1, 49)
        S(f's_add_u32 s{sT1}, s{sT1}, {49*128}')
        pf(SRD_W2, 14, sT1, 49)
        S(f's_mul_i32 s{sT1}, s{sT0}, {25*128}\ns_mov_b64 exec, 0x1ffffff\nbuffer_load_dword v{DUM}, v14, {srd(SRD_WO)}, s{sT1} offen\ns_mov_b64 exec, -1', tok='pf')
    def gpf(which):
        if not Opt.gpf: return
        S(f's_sub_u32 s{sT0}, s2, 128\ns_lshl_b32 s{sT0}, s{sT0}, 2\ns_add_u32 s{sT0}, s{sT0}, s{sW4}\nv_lshlrev_b32 v14, 7, v{vLANE}')
        S(f's_mov_b64 s[72:73], s[66:67]\ns_mov_b32 s74, {448*2688}\ns_mov_b32 s75, 0x20000') if False else None
        for (lo, n, size) in ((sKA_QKV, 10, 448*2688), (sKA_W1, 13, 448*3584), (SRD_W2, 25, None), (SRD_WO, 7, None))[which]:
            if size:
                S(f's_mov_b64 s[76:77], s[{lo}:{lo+1}]\ns_mov_b32 s78, {size}\ns_mov_b32 s79, 0x20000'); d = 76
            else: d = lo
            S(f's_mul_i32 s{sT1}, s{sT0}, {n*128}\ns_mov_b64 exec, {hex((1 << n) - 1)}\nbuffer_load_dword v{DUM}, v14, {srd(d)}, s{sT1} offen\ns_mov_b64 exec, -1', tok='pf')
    if Opt.gpf == 2: gpf(slice(0, 2))
    def wo_prefetch():
        if not Opt.wopf: return
        S(f'v_lshlrev_b32 v14, 7, v{vLANE}\ns_lshl_b32 s{sT0}, s{sI}, 2\ns_add_u32 s{sT0}, s{sT0}, s{sW4}')
        S(f's_mul_i32 s{sT1}, s{sT0}, {25*128}\ns_mov_b64 exec, 0x1ffffff\nbuffer_load_dword v{DUM}, v14, {srd(SRD_WO)}, s{sT1} offen\ns_mov_b64 exec, -1', tok='pf')
    l_wait(S, EV_XFREE)
    stamp(S, 1)
    S(f's_add_u32 s{sT0}, s{sBLK}, s{sFS}\ns_add_u32 s{sT0}, s{sT0}, s{sCOL[0]}')
    S.ext(flat(h1[4:])); sig(0)
    h2 = dma_half(2)
    S.ext(flat(h2[:3])); sig(1); S.ext(flat(h2[3:5])); sig(CN_H1B); S.ext(flat(h2[5:]))
    h3 = dma_half(3)
    S.ext(flat(h3[:3])); sig(2); S.ext(flat(h3[3:]))
    ltag_issue(S)
    h4 = dma_half(4)
    S.ext(flat(h4[:3])); sig(3); S.ext(flat(h4[3:]))
    if ffn:
        gpf(slice(2, 4))
    if ffn:
        sig(4)
        l_wait(S, EV_C0)
        S.ext(flat(dma_half(5)))
        sig(5)
        ltag_get(S)
        l_wait(S, EV_C1)
        S(f's_lshl_b32 s{sFS}, s{sFS}, 1\ns_add_u32 s{sFS}, s{sFS}, s{sCOLS}')
        for k in range(7):
            S(f's_add_u32 m0, s{sT3}, {k*4096}\ns_add_u32 s{sT0}, s{sBLK}, s{sFS}')
            wrap_inc(S, sBLK, f's{sP64}', f's{sP448}')
            S(f'buffer_load_dwordx4 v{vLS}, {srd(SRD_W)}, s{sT0} offen lds', tok=('h', 6))
        if Opt.l2pf:
            S(f'v_lshlrev_b32 v14, 7, v{vLANE}\ns_sub_u32 s{sT0}, s{sI}, 16\ns_lshl_b32 s{sT0}, s{sT0}, 2\ns_add_u32 s{sT0}, s{sT0}, s{sW4}\ns_mul_i32 s{sT1}, s{sT0}, {196*128}\ns_mov_b32 exec_hi, 0x1ffff')
            for i in range(4):
                S(f'buffer_load_dword v{DUM}, v14, {srd(SRD_W2)}, s{sT1} offen\ns_add_u32 s{sT1}, s{sT1}, {49*128}', tok='pf')
            S(f's_mul_i32 s{sT1}, s{sT0}, {49*128}\nbuffer_load_dword v{DUM}, v14, {srd(SRD_WO)}, s{sT1} offen\ns_mov_b64 exec, -1', tok='pf')
        sig(6)
        if Opt.ppf:
            n_ = Opt.ppf
            S(f'v_lshlrev_b32 v14, 7, v{vLANE}\ns_sub_u32 s{sT0}, s{sI}, 16\ns_lshl_b32 s{sT0}, s{sT0}, 2\ns_add_u32 s{sT0}, s{sT0}, s{sW4}\ns_mov_b64 exec, {hex((1 << n_) - 1)}')
            for (d, tot) in ((SRD_W2, 196), (SRD_WO, 49)):
                lab = newlab('pp')
                S(f's_mul_i32 s{sT1}, s{sT0}, {tot*128}\ns_mov_b32 s{sT2}, {(tot + n_ - 1) // n_}')
                raw(S, f'{lab}:\nbuffer_load_dword v{DUM}, v14, {srd(d)}, s{sT1} offen\ns_add_u32 s{sT1}, s{sT1}, {n_*128}\ns_sleep {Opt.pps}\ns_waitcnt vmcnt({Opt.ppw})\ns_sub_u32 s{sT2}, s{sT2}, 1\ns_cmp_lg_u32 s{sT2}, 0\ns_cbranch_scc1 {lab}')
            S('s_mov_b64 exec, -1')
        elif not Opt.l2pf: wo_prefetch()
        l_wait(S, EV_C3)
        w2stage(SLOT, 14 * K1, Opt.nstg)
        stamp(S, 11)
    else:
        l_wait(S, EV_C0)
        S.ext(flat(dma_half(5)))
        kA, kB, KA = 194, 195, LX
        trb(S, kA, 3, 112, 8); trb(S, kB, 3, 72, 8)
        S(f's_lshr_b32 s{sT0}, s{sW4}, 1\ns_and_b32 s{sT1}, s{sW4}, 1\ns_mul_i32 s{sT2}, s{sT0}, 14336\ns_mul_i32 s{sT1}, s{sT1}, 56\ns_add_u32 s{sT2}, s{sT2}, s{sT1}\nv_add_u32 v{kA}, s{sT2}, v{kA}')
        S(f's_mul_i32 s{sT2}, s{sT0}, 9216\ns_add_u32 s{sT2}, s{sT2}, {SLOT}\nv_add_u32 v{kB}, s{sT2}, v{kB}')
        S(f's_lshl_b32 s{74}, s{sIDX}, 2\ns_add_u32 s{74}, s{74}, s{sW4}\ns_lshl_b32 s{75}, s{74}, 11\ns_lshl_b32 s{74}, s{74}, 4\ns_add_u32 s{74}, s{74}, s{sRB}\ns_lshl_b32 s{74}, s{74}, 11\ns_add_u32 s{74}, s{74}, {WS_KVP}')
        S(f's_lshl_b32 s{sT0}, s{sRB}, 7\ns_add_u32 s{75}, s{75}, s{sT0}\ns_add_u32 s{75}, s{75}, {WS_FP}')
        l_wait(S, EV_PK)
        stamp(S, 12)
        if Opt.lprio: S('s_setprio 1')
        sm = softmax_k(None)
        S.ext(sm[:8]); sig(4); S.ext(sm[8:Opt.h5at]); sig(5); S.ext(sm[Opt.h5at:])
        l_signal(S, CN_PH)
        stamp(S, 11)
        ltag_get(S)
        w2raw(0, Opt.aw2)
        if Opt.tr0: tr(0, Opt.tr0)
        stamp(S, 5)
        if Opt.kprio: S('s_setprio 1')
        l_wait(S, EV_V)
        S.ext(cnt_read(CN_PH, vLP)); S.ext(cnt_check(CN_PH, vLP))
        for ts in range(8):
            b = HR + 8 * (ts % 6)
            if ts >= 6: S(f'v_mfma_f32_32x32x16_bf16 {v(KA,16)}, {v(b,4)}, {v(b+4,4)}, {"0" if ts == 6 else v(KA,16)}')
            for u in range(2): S(f'ds_read_b64_tr_b16 {v(b + 2*u, 2)}, v{kA} offset:{(16*ts + 4*u)*112}')
            for u in range(2): S(f'ds_read_b64_tr_b16 {v(b + 4 + 2*u, 2)}, v{kB} offset:{(16*ts + 4*u)*72}')
        for ts in range(2, 8):
            b = HR + 8 * (ts % 6)
            S(f'v_mfma_f32_32x32x16_bf16 {v(KA,16)}, {v(b,4)}, {v(b+4,4)}, {v(KA,16)}')
        G_ = HR
        for i in range(8): S(f'v_cvt_pk_bf16_f32 v{G_+i}, v{KA+2*i}, v{KA+2*i+1}')
        for j in range(2):
            S(f'buffer_store_dwordx4 {v(G_+4*j,4)}, v{vL16}, {srd(SRD_WS)}, s{74} offen offset:{j*1024} sc1', tok='kvp')
        tr(Opt.tr0, Opt.tr0 + Opt.tr1)
        S.wait('kvp')
        flag_store(S, 75, LE)
        S('s_setprio 0')
        stamp(S, 1)
        if Opt.ackdiag: S.wait('kvp'); stamp(S, 2); S('s_waitcnt vmcnt(0)')
        w2raw(Opt.aw2, Opt.nreg)
        wo_prefetch()
        tr(Opt.tr0 + Opt.tr1, Opt.nreg)
        stamp(S, 6)
    if tile:
        l_signal(S, CN_LT)
        if not (Opt.early_f and not ffn):
            l_wait(S, EV_END)
            S.ext(cnt_read(CN_LT, vLP)); S.ext(cnt_check(CN_LT, vLP))
            stamp(S, 7)
            bu_ = bubble_units(Opt.bthr)
            S.ext(flat(bu_[:Opt.kgat])); l_signal(S, CN_KG); S.ext(flat(bu_[Opt.kgat:]))

def bubble_units(thr):
    sW2, sK2 = sU4, sU5
    u = []
    for i in range(12):
        t = Stream()
        if i == 0: t(f's_mul_i32 s{sT3}, s{sW4}, {F_REG}')
        t(f's_add_u32 m0, s{sT3}, {i*2048}\ns_add_u32 s{sT1}, s{sW2}, s{sK2}')
        if thr: t(f's_waitcnt vmcnt({thr})')
        t(f'buffer_load_dwordx4 v{vL2}, {srd(SRD_W2)}, s{sT1} offen lds', tok=('w2', Opt.nreg + i))
        t(f's_add_u32 m0, s{sT3}, {i*2048 + 1024}')
        wrap_inc(t, sK2, 16 * 896, 448 * 896)
        t(f'buffer_load_dwordx4 v13, {srd(SRD_W2)}, s{sT1} offen lds', tok=('w2', Opt.nreg + i))
        u.append(t.l)
    for hd in range(4):
        for half in range(2):
            t = Stream()
            t(f's_lshl_b32 s{sT2}, s{sW4}, 14\ns_add_u32 s{sT2}, s{sT2}, {A_BASE}')
            t(f's_lshl_b32 s{sT1}, s{sW4}, 2\ns_add_u32 s{sT1}, s{sT1}, {hd}\ns_mul_i32 s{sT1}, s{sT1}, {28*896}\ns_lshl_b32 s{sCNT}, s{sCB}, 7\ns_add_u32 s{sT1}, s{sT1}, s{sCNT}')
            if half: t(f's_add_u32 s{sT1}, s{sT1}, {16*896}')
            for i in range(2):
                t(f's_add_u32 m0, s{sT2}, {hd*4096 + half*2048 + i*1024}')
                if thr: t(f's_waitcnt vmcnt({thr})')
                if hd == 3 and half == 1 and i == 1: t(f's_cmp_eq_u32 s{sW4}, 3\ns_cselect_b32 exec_hi, 0, -1')
                else: t('s_nop 0')
                t(f'buffer_load_dwordx4 v{vL2 if i == 0 else 13}, {srd(SRD_WO)}, s{sT1} offen lds', tok='wo')
            if hd == 3 and half == 1: t('s_mov_b64 exec, -1')
            u.append(t.l)
    return u

def hflag_poll(S):
    S(f'v_lshlrev_b32 v8, 7, v{vLANE}')
    S(f's_lshl_b32 s{sT0}, s{sTB}, 3\ns_add_u32 s{sT0}, s{sT0}, s{sCB}\ns_lshl_b32 s{sT0}, s{sT0}, 12\ns_lshl_b32 s{sT1}, s{sW4}, 9\ns_add_u32 s{sT0}, s{sT0}, s{sT1}\ns_add_u32 s{sT0}, s{sT0}, {WS_FH}')
    poll(S, 8, sT0, 4, 9)

def f_phase2(S, attn):
    inl = attn and Opt.early_f
    stamp(S, 10)
    if Opt.fprio: S('s_setprio 1')
    sK = sU1
    vH0, vH1 = 14, 15
    S(f's_mul_i32 s{sT3}, s{sW4}, {F_REG}\nv_add_u32 v10, s{sT3}, v{vVW2[1]}\nv_add_u32 v11, s{sT3}, v{vVW2[0]}')
    S(f's_mul_i32 s{sU2}, s{sTB}, {224*K1}\ns_mul_i32 s{sT2}, s{sW4}, {28*K1}\ns_add_u32 s{sU2}, s{sU2}, s{sT2}\ns_add_u32 s{sU2}, s{sU2}, {WS_H}\ns_lshl_b32 s{sK}, s{sROT2}, 10')
    S(f's_and_b32 s{sT2}, s{sW4}, 1\ns_mul_i32 s{sT2}, s{sT2}, {112*K1}\nv_add_u32 v{vH1}, s{sT2}, v{vL16}\ns_sub_u32 s{sT2}, {112*K1}, s{sT2}\nv_add_u32 v{vH0}, s{sT2}, v{vL16}')
    S(f'v_mov_b32 v12, v11\nv_mov_b32 v11, v{vL2}')
    assert not inl and not Opt.wolate
    out_addr(S, 4, 0)
    S('s_waitcnt lgkmcnt(0)')
    hflag_poll(S)
    S(f'v_mov_b32 v9, v12\nv_mov_b32 v12, 4')
    wol = (attn and Opt.wolate) or Opt.wolate == 2
    S(f'v_lshlrev_b32 v8, 2, v{vLANE}\nv_add_u32 v8, {CTL}, v8\nv_mov_b32 v{W2R-3}, v13') if False else None
    S(f'v_lshlrev_b32 v8, 2, v{vLANE}\nv_add_u32 v8, {CTL}, v8\nv_mov_b32 v{HR+47}, 1\ns_mov_b64 exec, 15\nds_add_u32 v8, v{HR+47} offset:{128 + 16*CN_WO}\ns_mov_b64 exec, -1\ns_waitcnt lgkmcnt(0)')
    stamp(S, 8)
    NG = Opt.nreg
    def slot(i): return W2R + 8 * i if i < 16 else HR + 8 * (i - 16)
    free = list(range(NG, 22))
    hdst, adst, when = {}, {}, {}
    for ks in range(NG): adst[ks] = slot(ks)
    ring = [NG - 6, NG - 5, NG - 4]
    for ks in range(NG, 28): adst[ks] = slot(ring[(ks - NG) % 3])
    sched = {ks: [] for ks in range(-1, 28)}
    nxt = 0; hs = {}
    for ks in range(-1, 28):
        if ks >= 0:
            if ks < NG and ks not in ring: free.append(ks)
            free.append(hs[ks])
        while nxt < 28 and free:
            hs[nxt] = free.pop(0); hdst[nxt] = slot(hs[nxt]); sched[ks].append(nxt); nxt += 1
    sW2, sK2 = sU4, sU5
    def hload(ks):
        S(f's_add_u32 s{sT0}, s{sU2}, s{sK}')
        S(f'buffer_load_dwordx4 {v(hdst[ks],4)}, v{vH0}, {srd(SRD_WS)}, s{sT0} offen sc1')
        S(f'buffer_load_dwordx4 {v(hdst[ks]+4,4)}, v{vH1}, {srd(SRD_WS)}, s{sT0} offen sc1')
        if ks < 27: wrap_inc(S, sK, 1024, 28 * K1)
    def aread(ks):
        o = ((ks - NG) % 12) * 2048; b = adst[ks]
        S.wait(('w2', ks))
        for c in range(2):
            for u in range(2):
                S(f'ds_read_b64_tr_b16 {v(b + 4*c + 2*u, 2)}, v{9+c} offset:{o + 1024*u}', tok=('ar', ks))
    for k in sched[-1]: hload(k)
    last = 25 if Opt.qtail else 28
    for ks in range(last):
        for c in range(2):
            for tt2 in range(2):
                acc = FACC + 16 * (2 * c + tt2)
                S(f'v_mfma_f32_32x32x16_bf16 {v(acc,16)}, {v(adst[ks]+4*c,4)}, {v(hdst[ks]+4*tt2,4)}, {"0" if ks == 0 else v(acc,16)}')
                if c == 0 and tt2 == 0 and NG <= ks + 2 < 28: aread(ks + 2)
        if Opt.fdiag and ks in (0, 5, 10, 15, 19, 23): stamp(S, 1 + (0, 5, 10, 15, 19, 23).index(ks))
        if ks == min(last - 1, Opt.gk0 if attn else Opt.gk1): S(f'ds_write_b32 v{vCTL}, v12 offset:{128 + 16*CN_W2}')
        if ks >= NG and ks + 12 < 28:
            o = (ks - NG) * 2048
            S(f's_add_u32 m0, s{sT3}, {o}\ns_add_u32 s{sT1}, s{sW2}, s{sK2}')
            S(f'buffer_load_dwordx4 v11, {srd(SRD_W2)}, s{sT1} offen lds', tok=('w2', ks + 12))
            S(f's_add_u32 m0, s{sT3}, {o + 1024}')
            wrap_inc(S, sK2, 16 * 896, 448 * 896)
            S(f'buffer_load_dwordx4 v13, {srd(SRD_W2)}, s{sT1} offen lds', tok=('w2', ks + 12))
        for k in sched[ks]: hload(k)
    tailq = None
    if Opt.qtail:
        aread(27)
        tailq = [[Ins(f'v_mfma_f32_32x32x16_bf16 {v(FACC+16*q,16)}, {v(adst[ks]+4*(q//2),4)}, {v(hdst[ks]+4*(q%2),4)}, {v(FACC+16*q,16)}') for ks in (25, 26, 27)] for q in range(4)]
    stamp(S, 9)
    used = {r for ks in (25, 26, 27) for b in (adst[ks], hdst[ks]) for r in range(b, b + 8)}
    final_f(S, FACC, 4, tailq, used)

def a_phase2(S):
    S(f's_lshl_b32 s{sU4}, s{sTB}, 16\ns_and_b32 s{sT2}, s{sW4}, 1\ns_lshl_b32 s{sT1}, s{sT2}, 15\ns_add_u32 s{sU4}, s{sU4}, s{sT1}\ns_lshr_b32 s{sT3}, s{sW4}, 1\ns_lshl_b32 s{sT1}, s{sT3}, 14\ns_add_u32 s{sU4}, s{sU4}, s{sT1}\ns_add_u32 s{sU4}, s{sU4}, {WS_PQ}')
    S(f'v_lshlrev_b32 v8, 8, v{vLANE}')
    S(f's_lshl_b32 s{sT0}, s{sTB}, 3\ns_add_u32 s{sT0}, s{sT0}, s{sCB}\ns_lshl_b32 s{sT0}, s{sT0}, 12\ns_lshl_b32 s{sT1}, s{sT3}, 10\ns_add_u32 s{sT0}, s{sT0}, s{sT1}\ns_lshl_b32 s{sT1}, s{sT2}, 7\ns_add_u32 s{sT0}, s{sT0}, s{sT1}\ns_add_u32 s{sT0}, s{sT0}, {WS_FH + 2048}')
    fa = final_addr(True)
    S.ext(fa)
    if Opt.aprio: S(f's_setprio {Opt.aprio}')
    S.ext(cnt_read(CN_W2, vCT)); S.ext(cnt_check(CN_W2, vCT, 1))
    stamp(S, 11)
    poll(S, 8, sT0, 4, 9, Opt.ksleep)
    stamp(S, 14)
    OB = 32
    for i in range(8):
        if i % 2 == 0: S(f's_add_u32 s{sT2}, s{sU4}, {i*2048}')
        for st in range(2):
            S(f'buffer_load_dwordx4 {v(OB+8*i+4*st,4)}, v{vL16}, {srd(SRD_WS)}, s{sT2} offen offset:{(i%2)*2048 + st*1024} sc1')
    S.ext(cnt_read(CN_WO, vCT)); S.ext(cnt_check(CN_WO, vCT, 1))
    SA, WB = 144, 96
    def woread(n):
        b = WB + 8 * (n % 6)
        for c in range(2):
            for u in range(2):
                S(f'ds_read_b64_tr_b16 {v(b+4*c+2*u,2)}, v{vVW2[c]} offset:{(16*n + 8*u)*128}')
    for n in range(5): woread(n)
    for n in range(16):
        b = WB + 8 * (n % 6)
        for c in range(2):
            acc = SA + 16 * c
            S(f'v_mfma_f32_32x32x16_bf16 {v(acc,16)}, {v(b+4*c,4)}, {v(OB+4*n,4)}, {"0" if n == 0 else v(acc,16)}')
            if c == 0 and n + 5 < 16: woread(n + 5)
    stamp(S, 12)
    final_a(S, SA)

XS = 96 * K1
def final_addr(isA):
    S = Stream()
    if isA:
        S(f's_mul_i32 s{sT1}, s{sW4}, {F_REG}\ns_add_u32 s{sT1}, s{sT1}, {16*K1}\nv_add_u32 v16, s{sT1}, v{vL16}')
        S(f's_xor_b32 s{sT1}, s{sW4}, 2\ns_mul_i32 s{sT1}, s{sT1}, {F_REG}\ns_add_u32 s{sT1}, s{sT1}, {16*K1}\nv_add_u32 v17, s{sT1}, v{vL16}')
    return S.l

def finish(S, xt, E, Sg, G, off):
    for i in range(8): S(f'v_fmac_f32 v{E+i}, v{Sg+i}, v{G+i}')
    for i in range(4): S(f'v_cvt_pk_bf16_f32 v{xt+i}, v{E+2*i}, v{E+2*i+1}')
    S(f'v_permlane32_swap_b32 v{xt}, v{xt+2}\nv_permlane32_swap_b32 v{xt+1}, v{xt+3}')
    S(f'buffer_store_dwordx4 {v(xt,4)}, v{vO}, {srd(SRD_OUT)}, s{sFT} offen offset:{off} {("", "sc1", "nt", "sc0 sc1")[Opt.osc]}')
def unpack_x(S, xt, E):
    S(f'v_permlane32_swap_b32 v{xt}, v{xt+2}\nv_permlane32_swap_b32 v{xt+1}, v{xt+3}')
    for i in range(4): S(f'v_lshlrev_b32 v{E+2*i}, 16, v{xt+i}\nv_and_b32 v{E+2*i+1}, 0xffff0000, v{xt+i}')

def final_a(S, SA):
    E = 20
    unpack_x(S, XT, E)
    S.ext(cnt_read(CN_G, vCT)); S.ext(cnt_check(CN_G, vCT, 1))
    for i in range(4): S(f'ds_write_b128 v17, {v(SA+4*i,4)} offset:{i*1024}')
    for i in range(2): S(f'ds_write_b128 v16, {v(SA+16+4*i,4)} offset:{4096 + i*1024}')
    S('s_waitcnt lgkmcnt(0)\ns_barrier')
    stamp(S, 13)
    for i in range(2): S(f'ds_read_b128 {v(32+4*i,4)}, v16 offset:{2048 + i*1024}')
    for i in range(2): S(f'ds_read_b128 {v(40+4*i,4)}, v16 offset:{6144 + i*1024}')
    for i in range(8): S(f'v_add_f32 v{32+i}, v{32+i}, v{SA+24+i}')
    finish(S, XT, E, 32, 40, 32)

def final_f(S, acc, xt, tailq, used):
    fr = [r for r in list(range(16, 144)) + list(range(208, 256)) if r not in used]
    W = fr[0:3]; a24, a25 = fr[3], fr[4]
    S(f's_mul_i32 s{sT3}, s{sW4}, {F_REG}')
    for vq in range(3):
        S(f's_xor_b32 s{sT0}, s{sW4}, {vq ^ 3}\ns_lshl_b32 s{sT0}, s{sT0}, 12\ns_add_u32 s{sT0}, s{sT0}, s{sT3}\nv_add_u32 v{W[vq]}, s{sT0}, v{vL16}')
    S(f'v_lshlrev_b32 v{a24}, 2, v{vLANE}\nv_add_u32 v{a24}, {CTL}, v{a24}\nv_mov_b32 v{a25}, 1')
    def wr(vq):
        for i in range(4): S(f'ds_write_b128 v{W[vq]}, {v(acc+16*vq+4*i,4)} offset:{i*1024}')
    if tailq:
        S.ext(tailq[0]); S.ext(tailq[1]); S.ext(tailq[2]); wr(0); S.ext(tailq[3]); wr(1); wr(2)
    else:
        for vq in range(3): wr(vq)
    S(f's_mov_b64 exec, 15\nds_add_u32 v{a24}, v{a25} offset:{128 + 16*CN_G}\ns_mov_b64 exec, -1')
    S(f's_lshl_b32 s{sT2}, s{sW4}, 12')
    for k in range(1, 4):
        S(f's_xor_b32 s{sT0}, s{sW4}, {k}\ns_mul_i32 s{sT0}, s{sT0}, {F_REG}\ns_add_u32 s{sT0}, s{sT0}, s{sT2}\nv_add_u32 v{19+k}, s{sT0}, v{vL16}')
    S(f's_add_u32 s{sT3}, s{sT3}, {16*K1}\nv_add_u32 v23, s{sT3}, v{vL16}')
    E = 104
    unpack_x(S, xt, E)
    S.ext(cnt_read(CN_G, 26)); S.ext(cnt_check(CN_G, 26, 0))
    P_ = 32
    for k in range(3):
        for i in range(4): S(f'ds_read_b128 {v(P_+16*k+4*i,4)}, v{20+k} offset:{i*1024}')
    G = acc + 48
    for k in range(3):
        for i in range(16): S(f'v_add_f32 v{G+i}, v{G+i}, v{P_+16*k+i}')
    Q = 80
    for i in range(16): S(f'v_mul_f32 v{Q+i}, {hx(f2u(-L2E))}, v{G+i}')
    for i in range(16): S(f'v_exp_f32 v{Q+i}, v{Q+i}')
    for i in range(16): S(f'v_add_f32 v{Q+i}, 1.0, v{Q+i}')
    for i in range(16): S(f'v_rcp_f32 v{Q+i}, v{Q+i}')
    for i in range(16): S(f'v_mul_f32 v{G+i}, v{G+i}, v{Q+i}')
    for i in range(2): S(f'ds_write_b128 v23, {v(G+8+4*i,4)} offset:{6144 + i*1024}')
    S('s_waitcnt lgkmcnt(0)')
    stamp(S, 13)
    S('s_barrier')
    stamp(S, 14)
    for i in range(2): S(f'ds_read_b128 {v(32+4*i,4)}, v23 offset:{i*1024}')
    for i in range(2): S(f'ds_read_b128 {v(40+4*i,4)}, v23 offset:{4096 + i*1024}')
    for i in range(8): S(f'v_add_f32 v{32+i}, v{32+i}, v{40+i}')
    finish(S, xt, E, 32, G, 0)

def reducer(S):
    S(f's_cmp_ge_u32 s{sW4}, 2\ns_cbranch_scc1 L_fin')
    S(f'v_lshlrev_b32 v8, 7, v{vLANE}\ns_lshl_b32 s{sT0}, s{sTB}, 11\ns_add_u32 s{sT0}, s{sT0}, {WS_FP}')
    S(f's_lshl_b32 s{sU2}, s{sTB}, 15\ns_lshl_b32 s{sT2}, s{sW4}, 10\ns_add_u32 s{sU2}, s{sU2}, s{sT2}\ns_add_u32 s{sU2}, s{sU2}, {WS_KVP}')
    S(f's_lshl_b32 s{sU1}, s{sTB}, 1\ns_add_u32 s{sU1}, s{sU1}, s{sW4}\ns_lshl_b32 s{sU0}, s{sU1}, 7\ns_add_u32 s{sU0}, s{sU0}, {WS_FK}\ns_lshl_b32 s{sU1}, s{sU1}, 10\ns_add_u32 s{sU1}, s{sU1}, {WS_KVF}')
    S(f's_mov_b32 s{sSEL_LO}, 0x00003f80\ns_mov_b32 s{sSEL_HI}, 0x3f800000')
    for i in range(8): S(f'v_mov_b32 v{16+i}, 0')
    S(f's_cmp_eq_u32 s{sW4}, 1\ns_cselect_b32 s{sT3}, -1, 0\ns_mov_b32 s{sT2}, 0')
    if Opt.rdel: S(f's_sleep {Opt.rdel}')
    poll(S, 8, sT0, 16, 9, Opt.r2sleep)
    stamp(S, 8)
    for rb in range(16):
        if rb % 2 == 0: S(f's_add_u32 s{sT0}, s{sU2}, {rb*2048}')
        S(f'buffer_load_dwordx4 {v(32+4*rb,4)}, v{vL16}, {srd(SRD_WS)}, s{sT0} offen offset:{(rb%2)*2048} sc1')
    S(f'v_and_b32 v8, 31, v{vLANE}\nv_cmp_eq_u32 vcc, 29, v8')
    for rb in range(16):
        for i in range(4):
            S(f'v_dot2c_f32_bf16 v{16+2*i}, s{sSEL_LO}, v{32+4*rb+i}\nv_dot2c_f32_bf16 v{17+2*i}, s{sSEL_HI}, v{32+4*rb+i}')
    stamp(S, 10)
    for i in range(8): S(f'v_cndmask_b32 v{16+i}, v{16+i}, 1.0, vcc')
    for i in range(4): S(f'v_cvt_pk_bf16_f32 v{24+i}, v{16+2*i}, v{17+2*i}')
    S(f'v_cndmask_b32 v26, v26, 0, s[{sT2}:{sT3}]\nv_cndmask_b32 v27, v27, 0, s[{sT2}:{sT3}]')
    S(f'buffer_store_dwordx4 v[24:27], v{vL16}, {srd(SRD_WS)}, s{sU1} offen sc1')
    S('s_waitcnt vmcnt(0)')
    flag_store(S, sU0, 28)
    l_signal(S, CN_KG); l_signal(S, CN_KG)
    stamp(S, 9)

Opt.kvstep = 14
def fin_after(prefix, body):
    mark = Ins('L_MARK__:')
    o = finalize(prefix + [mark] + body)
    return o[o.index(mark) + 1:]

DOC = """; One launch, 256 workgroups (one per CU) of 8 waves; written by a generator script of the author's own.
; Phase 1: workgroup = 128 tokens x (224 columns of w1 | k, v, q of two heads). Waves 0-3 keep the centred x rows as
;   matrix fragments in registers and multiply; waves 4-7 stream the weights into LDS, do one of the two softmaxes and
;   the per-row-block phi_k^T [v | 1] product. h goes to d_ws in fragment order. Waves of workgroups without a
;   phase-2 tile add up the 16 row-block partials; the attention workgroups then finish o = num / den.
; Hand-offs between workgroups: write-through stores, wait, then one 128-byte line holding this launch's tag
"""
def build():
    assert sT2 % 2 == 0 and sT3 == sT2 + 1
    parts = []
    P = Stream(); prologue(P)
    P(f's_cmp_ge_u32 s{sWAVE}, 4\ns_cbranch_scc1 L_lwave')
    parts.append(finalize(P.l))
    C = Stream(); c_common(C); C(f's_cmp_ge_u32 s{sROLE}, 8\ns_cbranch_scc1 L_cattn')
    S = Stream(); c_ffn(S); c_publish(S, False, True); S('s_branch L_aphase'); parts.append(finalize(C.l + S.l))
    S = Stream(); S('L_cspare:\ns_waitcnt vmcnt(0)'); c_publish(S, True, False); S('s_branch L_fin'); parts.append(finalize(S.l))
    S = Stream(); S('L_cattn:'); c_attn(S)
    S(f's_cmp_ge_u32 s{sI}, 12\ns_cbranch_scc1 L_cspare'); c_publish(S, True, True); parts.append(fin_after(C.l, S.l))
    S = Stream(); S('L_aphase:'); a_phase2(S); S('s_branch L_fin'); parts.append(finalize(S.l))
    S = Stream(); S('L_lwave:'); l_decode(S)
    S(f's_cmp_ge_u32 s{sROLE}, 8\ns_cbranch_scc1 L_lattn'); l_phase1(S, True, True); f_phase2(S, False); S('s_branch L_fin'); parts.append(finalize(S.l))
    S = Stream(); S('L_lattn:'); S(f's_cmp_ge_u32 s{sI}, 12\ns_cbranch_scc1 L_lspare'); l_phase1(S, False, True); f_phase2(S, True); S('s_branch L_fin'); parts.append(finalize(S.l))
    S = Stream(); S('L_lspare:'); l_phase1(S, False, False); reducer(S); parts.append(finalize(S.l))
    S = Stream(); S('L_fin:'); diag_out(S); S('L_end:\ns_endpgm'); parts.append(finalize(S.l))
    hdr = open('recurrent_scan__linear_kernel_hedgehog__dense_activation_silu__prompt.s.ref').read().split('\n')
    top = [l for l in hdr[:13] if l.startswith(';') and '@launch' not in l and 'Override' not in l and 'grid=ceil' not in l]
    out = '\n'.join(top) + f'\n; @launch grid=(256,1,1) block=(512,1,1) lds={LDS_TOTAL}\n'
    out += DOC
    out += f'.amdgcn_target "amdgcn-amd-amdhsa--gfx950"\n.text\n.globl {NAME}\n.p2align 8\n.type {NAME},@function\n{NAME}:\n'
    for p in parts:
        t = text(p)
        if Opt.nosc1 == 2: t = '\n'.join(l.replace(' sc1', ' nt sc1') if 'buffer_store_dwordx4' in l else l for l in t.split('\n'))
        if Opt.nosc1 == 3: t = '\n'.join(l.replace('offen', 'offen idxen').replace(', v2,', ', v[0:1],') if False else l for l in t.split('\n'))
        if Opt.nosc1 == 1: t = '\n'.join(l.replace(' sc1', '') if 'buffer_store_dwordx4' in l else l for l in t.split('\n'))
        out += t
    used = out
    for c, code in SLOW:
        if f'{c}\n' in used: out += '\n'.join(l if l.endswith(':') else '    ' + l for l in code.split('\n')) + '\n'
    out += f'''.section .rodata,"a"
.p2align 6
.amdhsa_kernel {NAME}
  .amdhsa_next_free_vgpr 256
  .amdhsa_next_free_sgpr 102
  .amdhsa_accum_offset 256
  .amdhsa_group_segment_fixed_size 0
  .amdhsa_kernarg_size 80
  .amdhsa_user_sgpr_count 2
  .amdhsa_user_sgpr_kernarg_segment_ptr 1
  .amdhsa_system_sgpr_workgroup_id_x 1
.end_amdhsa_kernel
'''
    return out

if __name__ == '__main__':
    for a in sys.argv[2:]:
        k, _, val = a.partition('='); setattr(Opt, k, int(val) if val else True)
    open(sys.argv[1], 'w').write(build())
```
